```python
import torch

def _softmax(x, axis=-1):
    return torch.softmax(x, dim=axis)

def _gelu(x):
    return torch.nn.functional.gelu(x, approximate='tanh')

def _silu(x):
    return torch.nn.functional.silu(x)

def _sigmoid(x):
    return torch.sigmoid(x)

def _layernorm(x, axis=-1, eps=1e-05):
    m = x.mean(dim=axis, keepdim=True)
    v = x.var(dim=axis, keepdim=True, unbiased=False)
    return (x - m) / torch.sqrt(v + eps)

def _scatter_add(tgt, idx, src, axis=0):
    return tgt.clone().index_add_(axis, idx, src)

def _segment_sum(src, seg, n):
    out = torch.zeros((n,) + src.shape[1:], dtype=src.dtype)
    return out.index_add_(0, seg, src)

def _pad(x, pw):
    flat = tuple((v for pair in reversed(pw) for v in pair))
    return torch.nn.functional.pad(x, flat)
kernel_name = 'adaLN_cond__memory_aug_recurrent_mem_tr__glu_gated_bilinear__prompt'

def setup_inputs():

    _w = lambda a: (lambda t: t.to(torch.bfloat16) if t.is_floating_point() else t)(torch.as_tensor(a))

    def _A_setup():
        B, S, Dm = (1, 2048, 640)
        H, Dh = (32, 192)
        M, seg = (8, 32)
        seg = min(seg, S)
        S = S // seg * seg
        return {'x': _w((lambda *s: torch.randn(*s, dtype=torch.bfloat16) * 0.05)(B, S, Dm)), 'mem0': _w((lambda *s: torch.randn(*s, dtype=torch.bfloat16) * 0.8)(B, M, Dm)), 'Wq': _w((lambda *s: torch.randn(*s, dtype=torch.bfloat16) * 0.8)(Dm, H, Dh) * Dm ** (-0.5)), 'Wk': _w((lambda *s: torch.randn(*s, dtype=torch.bfloat16) * 0.8)(Dm, H, Dh) * Dm ** (-0.5)), 'Wv': _w((lambda *s: torch.randn(*s, dtype=torch.bfloat16) * 0.8)(Dm, H, Dh) * Dm ** (-0.5)), 'Wo': _w((lambda *s: torch.randn(*s, dtype=torch.bfloat16) * 0.8)(H, Dh, Dm) * (H * Dh) ** (-0.5)), 'seg_len': seg}
    _A_in = _A_setup()

    def _B_setup():
        B, S, D, F = (1, 2048, 640, 1536)
        return {'x': _w((lambda *s: torch.randn(*s, dtype=torch.bfloat16) * 0.05)(B, S, D)), 'w_gate': _w((lambda *s: torch.randn(*s, dtype=torch.bfloat16) * 0.4)(D, F) * D ** (-0.5)), 'w_up': _w((lambda *s: torch.randn(*s, dtype=torch.bfloat16) * 0.4)(D, F) * D ** (-0.5)), 'w_down': _w((lambda *s: torch.randn(*s, dtype=torch.bfloat16) * 0.4)(F, D) * F ** (-0.5))}
    _B_in = _B_setup()
    return {'A_x': _A_in['x'], 'A_mem0': _A_in['mem0'], 'A_Wq': _A_in['Wq'], 'A_Wk': _A_in['Wk'], 'A_Wv': _A_in['Wv'], 'A_Wo': _A_in['Wo'], 'A_seg_len': _A_in['seg_len'], 'B_x': _B_in['x'], 'B_w_gate': _B_in['w_gate'], 'B_w_up': _B_in['w_up'], 'B_w_down': _B_in['w_down'], 'c': _w((lambda *s: torch.randn(*s, dtype=torch.bfloat16) * 0.1)(1, 640) * 8.0), 'w_mod': _w((lambda *s: torch.randn(*s, dtype=torch.bfloat16) * 0.1)(640, 6 * 640) * 640 ** (-0.5) * 8.0)}

def reference(A_x, A_mem0, A_Wq, A_Wk, A_Wv, A_Wo, A_seg_len, B_x, B_w_gate, B_w_up, B_w_down, c, w_mod):

    def _A_ref(x, mem0, Wq, Wk, Wv, Wo, seg_len):
        B, S, Dm = x.shape
        H, Dh = (Wq.shape[1], Wq.shape[2])
        M = mem0.shape[1]
        scale = Dh ** (-0.5)
        n_seg = S // seg_len
        L = M + seg_len
        idx = torch.arange(L)
        mask = (idx[:, None] < M) | (idx[:, None] >= idx[None, :])
        mem = mem0
        outs = []
        for s in range(n_seg):
            xs = x[:, s * seg_len:(s + 1) * seg_len, :].clone()
            h = torch.concatenate([mem, xs], axis=1)
            q = torch.einsum('btd,dhe->bhte', h, Wq)
            k = torch.einsum('btd,dhe->bhte', h, Wk)
            v = torch.einsum('btd,dhe->bhte', h, Wv)
            scores = torch.einsum('bhqe,bhke->bhqk', q, k) * scale
            scores = torch.where(mask[None, None], scores, -1000000000.0)
            p = _softmax(scores, axis=-1)
            o = torch.einsum('bhqk,bhke->bhqe', p, v)
            o = torch.einsum('bhte,hed->btd', o, Wo)
            mem = o[:, :M, :].clone()
            outs.append(o[:, M:, :])
        return torch.concatenate(outs, axis=1)

    def _B_ref(x, w_gate, w_up, w_down):
        g = torch.einsum('bsd,df->bsf', x, w_gate)
        u = torch.einsum('bsd,df->bsf', x, w_up)
        h = g * u
        return torch.einsum('bsf,fd->bsd', h, w_down)
    x = A_x
    mod = (_silu(c) @ w_mod).reshape(c.shape[0], 6, 1, -1)
    sa, ca, ga, sb, cb, gb = (mod[:, 0].clone(), mod[:, 1].clone(), mod[:, 2].clone(), mod[:, 3].clone(), mod[:, 4].clone(), mod[:, 5].clone())
    h = _layernorm(x, axis=-1) * (1 + ca) + sa
    x = x + ga * _A_ref(h, A_mem0, A_Wq, A_Wk, A_Wv, A_Wo, A_seg_len)
    h = _layernorm(x, axis=-1) * (1 + cb) + sb
    x = x + gb * _B_ref(h, B_w_gate, B_w_up, B_w_down)
    return x
```

```python
import re

_REG = re.compile(r'^(-|\|)?(abs\(|neg\()?([vas])(?:(\d+)|\[(\d+):(\d+)\])\)?\|?$')

def regs_of(tok):
    tok = tok.strip()
    if tok in ('vcc',): return [('s', 106), ('s', 107)]
    if tok == 'vcc_lo': return [('s', 106)]
    if tok == 'vcc_hi': return [('s', 107)]
    if tok == 'exec': return [('s', 126), ('s', 127)]
    if tok == 'exec_lo': return [('s', 126)]
    if tok == 'exec_hi': return [('s', 127)]
    if tok == 'm0': return [('s', 124)]
    m = _REG.match(tok)
    if not m: return []
    f = m.group(3)
    if m.group(4) is not None: return [(f, int(m.group(4)))]
    return [(f, i) for i in range(int(m.group(5)), int(m.group(6)) + 1)]

def split_ops(s):
    ops, depth, cur = [], 0, ''
    for ch in s + ',':
        if ch in '[(': depth += 1
        elif ch in '])': depth -= 1
        if ch == ',' and depth == 0:
            ops.append(cur.strip()); cur = ''
        else: cur += ch
    ops = [o for o in ops if o]
    out = []
    for o in ops:
        out.append(o.split()[0] if not o.startswith('|') else o.split()[0])
    return out

TRANS = ('v_exp_f32', 'v_log_f32', 'v_rcp_f32', 'v_rsq_f32', 'v_sqrt_f32', 'v_sin_f32', 'v_cos_f32', 'v_rcp_iflag_f32')

class Ins:
    __slots__ = ('text', 'mn', 'dst', 'src', 'kind', 'states', 'label', 'target', 'mods')
    def __init__(self, text):
        self.text = text
        t = text.split(';')[0].split('//')[0].strip()
        self.label = None; self.target = None; self.dst = []; self.src = []; self.states = 0; self.kind = 'none'; self.mn = ''; self.mods = ''
        if not t: return
        if t.endswith(':'):
            self.label = t[:-1]; self.kind = 'label'; return
        if t.startswith('.'):
            self.kind = 'directive'; return
        parts = t.split(None, 1)
        mn = parts[0]; rest = parts[1] if len(parts) > 1 else ''
        mn = re.sub(r'_(e32|e64)$', '', mn)
        self.mn = mn; self.mods = rest
        ops = split_ops(rest)
        R = [regs_of(o) for o in ops]
        self.states = 1
        flat = lambda L: [r for x in L for r in x]
        if mn == 's_nop':
            self.states = int(rest.strip(), 0) + 1; self.kind = 'salu'; return
        if mn.startswith('v_mfma') :
            self.kind = 'mfma'; self.dst = R[0]; self.src = flat(R[1:]); return
        if mn.startswith('v_smfmac'):
            self.kind = 'mfma'; self.dst = R[0]; self.src = flat(R[1:]) + R[0]; return
        if mn.startswith('v_permlane') and 'swap' in mn:
            self.kind = 'valu'; self.dst = R[0] + R[1]; self.src = R[0] + R[1]; return
        if mn.startswith('v_cmpx'):
            self.kind = 'valu'; self.dst = R[0] + [('s', 126), ('s', 127)]; self.src = flat(R[1:]); return
        if mn.startswith('v_cmp'):
            self.kind = 'valu'; self.dst = R[0]; self.src = flat(R[1:]); return
        if mn in ('v_readfirstlane_b32', 'v_readlane_b32'):
            self.kind = 'valu'; self.dst = R[0]; self.src = flat(R[1:]); return
        if mn.startswith(('v_add_co', 'v_sub_co', 'v_addc_co', 'v_subb_co', 'v_subrev_co')):
            self.kind = 'valu'; self.dst = R[0] + R[1]; self.src = flat(R[2:]); return
        if mn.startswith('v_'):
            self.kind = 'valu'; self.dst = R[0]; self.src = flat(R[1:])
            if mn.startswith(('v_fmac', 'v_mac', 'v_writelane', 'v_dot2c', 'v_pk_fmac')) or '_dpp' in mn or 'sdwa' in mn: self.src = self.src + R[0]
            if mn.startswith('v_cndmask') and len(ops) == 3: self.src += [('s', 106), ('s', 107)]
            return
        if mn.startswith('ds_'):
            self.kind = 'ds'
            if mn.startswith(('ds_read', 'ds_bpermute', 'ds_permute', 'ds_swizzle')) or '_rtn' in mn:
                self.dst = R[0]; self.src = flat(R[1:])
            else: self.src = flat(R)
            return
        if mn.startswith(('buffer_', 'global_', 'flat_')):
            self.kind = 'vmem'
            if mn.startswith(('buffer_wbl2', 'buffer_inv')): return
            islds = (' lds' in (' ' + rest)) or ('load_lds' in mn)
            if 'store' in mn or ('atomic' in mn and 'sc0' not in rest):
                self.src = flat(R)
            elif islds:
                self.src = flat(R) + [('s', 124)]
            else:
                self.dst = R[0]; self.src = flat(R[1:])
                if 'atomic' in mn: self.src += R[0]
            return
        if mn.startswith(('s_cbranch', 's_branch')):
            self.kind = 'branch'; self.target = rest.strip().split()[0]
            if 'vcc' in mn: self.src = [('s', 106), ('s', 107)]
            if 'exec' in mn: self.src = [('s', 126), ('s', 127)]
            return
        if mn.startswith('s_'):
            self.kind = 'salu'
            if mn.startswith(('s_cmp', 's_bitcmp', 's_waitcnt', 's_barrier', 's_endpgm', 's_sleep', 's_setprio', 's_setreg')):
                self.src = flat(R)
            elif mn.startswith('s_load') or mn.startswith('s_buffer_load') or mn.startswith('s_mem'):
                self.kind = 'smem'; self.dst = R[0] if R else []; self.src = flat(R[1:])
            else:
                self.dst = R[0] if R else []; self.src = flat(R[1:])
                if 'saveexec' in mn: self.dst = self.dst + [('s', 126), ('s', 127)]
            return
        raise ValueError('unknown instruction: ' + text)

def mfma_passes(mn):
    if '32x32' in mn: return 8
    return 4

def needed(ins, events):
    need = 0
    srcs = set(ins.src); dsts = set(ins.dst)
    isvalu = ins.kind == 'valu'; ismf = ins.kind == 'mfma'
    for (k, regs, age, extra) in events:
        req = 0
        if k == 'valu_w':
            if ismf and regs & srcs: req = 2
            if isvalu and ins.mn.startswith('v_permlane') and regs & srcs: req = max(req, 2)
            if isvalu and '_dpp' in ins.mn and regs & srcs: req = max(req, 2)
            if isvalu and ins.mn in ('v_readfirstlane_b32', 'v_readlane_b32') and regs & srcs: req = max(req, 1)
        elif k == 'trans_w':
            if (isvalu or ismf) and regs & srcs: req = 1 if isvalu else 2
            elif ins.kind in ('vmem', 'ds') and regs & srcs: req = 1
        elif k == 'valu_sw':
            if isvalu and regs & srcs:
                req = 4 if ins.mn in ('v_readlane_b32', 'v_writelane_b32') else 2
            if ins.kind == 'vmem' and regs & srcs: req = 5
            if ins.kind in ('salu', 'smem') and regs & srcs: req = max(req, extra)
        elif k == 'valu_exec':
            if ismf: req = 4
            elif isvalu and ('_dpp' in ins.mn): req = 5
            elif isvalu and (ins.mn.startswith('v_permlane') or ins.mn.startswith('v_read') or ins.mn.startswith('v_writelane')): req = 4
        elif k == 'mfma_w':
            p = extra
            if ismf:
                creg = set(ins.dst) if ins.mn.startswith('v_smfmac') else set(_mfma_c(ins))
                ab = srcs - creg
                if regs & ab: req = p + 4
                elif regs & creg and regs != creg: req = p + 2
                elif regs & dsts and not (regs & creg): req = p + 4
            elif isvalu:
                if regs & (srcs | dsts): req = p + 4
            elif ins.kind in ('vmem', 'ds'):
                if regs & (srcs | dsts): req = p + 4
        elif k == 'mfma_c':
            if isvalu and regs & dsts: req = extra - 1
        elif k == 'store_w':
            if isvalu and regs & dsts: req = 2
            elif ins.kind in ('ds', 'vmem', 'mfma') and regs & dsts: req = 1
        elif k == 'm0_w':
            if ('s', 124) in srcs and ins.kind in ('vmem', 'ds'): req = 1
        elif k == 'salu_exec':
            pass
        if req - age > need: need = req - age
    return need

def _mfma_c(ins):
    ops = split_ops(ins.mods)
    return regs_of(ops[3]) if len(ops) > 3 else []

def produce(ins):
    ev = []
    vd = frozenset(r for r in ins.dst if r[0] in 'va')
    sd = frozenset(r for r in ins.dst if r[0] == 's')
    if ins.kind == 'valu':
        if vd:
            ev.append(('valu_w', vd, 0, 0))
            if ins.mn in TRANS: ev.append(('trans_w', vd, 0, 0))
        if sd:
            ev.append(('valu_sw', sd, 0, 4 if ins.mn.startswith('v_read') else 0))
            if ('s', 126) in sd: ev.append(('valu_exec', sd, 0, 0))
    elif ins.kind == 'mfma':
        p = mfma_passes(ins.mn)
        ev.append(('mfma_w', frozenset(ins.dst), 0, p))
        c = frozenset(ins.dst) if ins.mn.startswith('v_smfmac') else frozenset(_mfma_c(ins))
        if c: ev.append(('mfma_c', c, 0, p))
    elif ins.kind == 'vmem' and 'store' in ins.mn and (ins.mn.endswith('x4') or ins.mn.endswith('x3')):
        ops = split_ops(ins.mods)
        data = regs_of(ops[0]) if ins.mn.startswith('buffer') else regs_of(ops[1])
        ev.append(('store_w', frozenset(data), 0, 0))
    elif ins.kind == 'salu' and ('s', 124) in sd:
        ev.append(('m0_w', sd, 0, 0))
    return ev

MAXAGE = 24
def age_events(events, n):
    return [(k, r, a + n, e) for (k, r, a, e) in events if a + n < MAXAGE]

def merge(a, b):
    d = {}
    for (k, r, ag, e) in a + b:
        key = (k, r, e)
        d[key] = min(d.get(key, 99), ag)
    return [(k, r, ag, e) for (k, r, e), ag in d.items()]

class Prog:
    def __init__(self):
        self.lines = []
        self.uid = 0
    def __call__(self, text):
        for ln in text.split('\n'):
            if ln.strip(): self.lines.append(ln.strip())
    def raw(self, text): self.lines.append(text)
    def label(self, name): self.lines.append(name + ':')
    def newlabel(self, base='L'):
        self.uid += 1
        return '%s_%d' % (base, self.uid)
    def finalize(self):
        ins = [Ins(l) for l in self.lines]
        pads = [0] * len(ins)
        labels = {x.label: i for i, x in enumerate(ins) if x.label}
        for it in range(6):
            entry = {}
            changed = False
            for rnd in range(2):
                ev = []
                for i, x in enumerate(ins):
                    if x.kind == 'label':
                        ev = merge(ev, entry.get(x.label, []))
                        continue
                    if x.kind in ('none', 'directive'): continue
                    if pads[i]: ev = age_events(ev, pads[i])
                    n = needed(x, ev)
                    if n > 0 and rnd == 1:
                        pads[i] += n; changed = True
                        ev = age_events(ev, n)
                    ev = age_events(ev, x.states)
                    ev = ev + produce(x)
                    if x.kind == 'branch':
                        if x.target in labels:
                            entry[x.target] = merge(entry.get(x.target, []), ev)
                        if x.mn == 's_branch': ev = []
                    if x.mn == 's_endpgm': ev = []
            if not changed: break
        out = []
        nn = 0
        for i, x in enumerate(ins):
            p = pads[i]
            while p > 0:
                k = min(p, 16)
                out.append('  s_nop %d' % (k - 1)); p -= k; nn += 1
            t = x.text
            out.append(t if x.kind in ('label',) or t.startswith('.') or t.startswith(';') else '  ' + t)
        self.nops = nn
        return out
    def text(self):
        return '\n'.join(self.finalize()) + '\n'
```

```python
from asmlib import Prog
from layout import *

WS_BYTES = 268435456
KA = dict(x=0, mem0=8, Wq=16, Wk=24, Wv=32, Wo=40, wg=64, wu=72, wd=80, c=88, wmod=96, out=104, dbg=112, ws=120)

F_QK = OFF_FLAGS; F_VO = OFF_FLAGS + 256; F_P = OFF_FLAGS + 512; F_X1 = OFF_FLAGS + 768; F_H2 = OFF_FLAGS + 1024; F_HM = OFF_FLAGS + 1280
S_WS = 4
S_W1 = 8
S_W2 = 12
S_WAVE = 16; S_IDX = 17; S_STEP = 18; S_SPIN = 19
S_T0 = 20; S_T1 = 21; S_T2 = 22; S_T3 = 23
S_MASK = 24
S_MEMO = 26; S_PO = 27; S_ZO = 28; S_QKO = 29; S_VOO = 30; S_NST = 31
S_DBG = 32
S_T4 = 34; S_T5 = 35; S_T6 = 36; S_T7 = 37
S_C = 38
S_TR0 = 40
S_TRO = 42
S_COMM = 43
PARITY = 0
HIST = True
SPIN_BUDGET = 400000

class Cnt:
    def __init__(self, p, name, maxv):
        self.p = p; self.name = name; self.maxv = maxv; self.q = []
    def issue(self, tag): self.q.append(tag)
    def wait(self, tag):
        if tag not in self.q: return
        i = len(self.q) - 1 - self.q[::-1].index(tag)
        n = len(self.q) - 1 - i
        n = min(n, self.maxv)
        self.p('s_waitcnt %s(%d)' % (self.name, n))
        self.q = self.q[len(self.q) - n:] if n else []
    def drain(self):
        self.p('s_waitcnt %s(0)' % self.name); self.q = []
    def reset(self): self.q = []

def srd(p, s, karg, nbytes):
    p('s_load_dwordx2 s[%d:%d], s[0:1], %d' % (s, s + 1, karg))
    p('s_mov_b32 s%d, 0x%x' % (s + 2, nbytes))
    p('s_mov_b32 s%d, 0x00020000' % (s + 3))

def vr(a, n=1): return 'v%d' % a if n == 1 else 'v[%d:%d]' % (a, a + n - 1)
def ar(a, n=1): return 'a%d' % a if n == 1 else 'a[%d:%d]' % (a, a + n - 1)

def unit_reg(rr, lo=0, n=8):
    if rr < 32: return ar(8 * rr + lo, n)
    return vr(128 + 8 * (rr - 32) + lo, n)

def unit_map():
    m = []; rr = 0
    for o in range(60):
        if o % 5 == 4: m.append(('lds', o // 5))
        else: m.append(('reg', rr)); rr += 1
    return m
UM = unit_map()

def poll_check(p, regs, tmp, done, again):
    r = list(regs)
    p('v_max3_u32 v%d, v%d, v%d, v%d' % (tmp, r[0], r[1], r[2])); r = r[3:]
    while len(r) >= 2:
        p('v_max3_u32 v%d, v%d, v%d, v%d' % (tmp, tmp, r[0], r[1])); r = r[2:]
    if r: p('v_max_u32 v%d, v%d, v%d' % (tmp, tmp, r[0]))
    p('v_cmp_eq_u32 vcc, -1, v%d' % tmp)
    p('s_cbranch_vccz %s' % done)
    p('s_cmp_eq_u32 s%d, 0' % S_SPIN)
    p('s_cbranch_scc1 %s' % done)
    p('s_sub_u32 s%d, s%d, 1' % (S_SPIN, S_SPIN))
    p('s_branch %s' % again)

POLL_D = 4
POLL_SLEEP = {'mem': 1, 'z': 1, 'p': 2}
PRE_SLEEP = {'memA': 0, 'memB': 0, 'z': 0, 'p': 0}
def poll_loop(p, loads, regs, tmp, kind, pre=None):
    top = p.newlabel('Lpl'); done = p.newlabel('Lpld')
    for r in regs: p('v_mov_b32 v%d, -1' % r)
    if pre and PRE_SLEEP[pre]: p('s_sleep %d' % PRE_SLEEP[pre])
    p.label(top)
    n = loads()
    p('s_waitcnt vmcnt(%d)' % (n * (POLL_D - 1)))
    r = list(regs)
    p('v_max3_u32 v%d, v%d, v%d, v%d' % (tmp, r[0], r[1], r[2])); r = r[3:]
    while len(r) >= 2:
        p('v_max3_u32 v%d, v%d, v%d, v%d' % (tmp, tmp, r[0], r[1])); r = r[2:]
    if r: p('v_max_u32 v%d, v%d, v%d' % (tmp, tmp, r[0]))
    p('v_cmp_eq_u32 vcc, -1, v%d' % tmp)
    p('s_cbranch_vccz %s' % done)
    if POLL_SLEEP[kind]: p('s_sleep %d' % POLL_SLEEP[kind])
    p('s_cmp_eq_u32 s%d, 0' % S_SPIN)
    p('s_cbranch_scc1 %s' % done)
    p('s_sub_u32 s%d, s%d, 1' % (S_SPIN, S_SPIN))
    p('s_branch %s' % top)
    p.label(done)

def step_offsets(p, mem_add=0, want=('mem', 'p', 'z')):
    if 'mem' in want:
        p('s_add_u32 s%d, s%d, %d' % (S_T0, S_STEP, mem_add)); p('s_and_b32 s%d, s%d, %d' % (S_T0, S_T0, MEM_RING - 1))
        p('s_lshl_b32 s%d, s%d, 15' % (S_T0, S_T0)); p('s_add_u32 s%d, s%d, s%d' % (S_MEMO, S_T0, S_COMM))
        if BLK_MEM: p('s_add_u32 s%d, s%d, %d' % (S_MEMO, S_MEMO, BLK_MEM * BLK))
    if 'p' in want:
        p('s_and_b32 s%d, s%d, %d' % (S_T0, S_STEP, P_RING - 1)); p('s_mul_i32 s%d, s%d, %d' % (S_T0, S_T0, 3 * BLK))
        p('s_add_u32 s%d, s%d, s%d' % (S_PO, S_T0, S_COMM)); p('s_add_u32 s%d, s%d, %d' % (S_PO, S_PO, BLK_P * BLK))
    if 'z' in want:
        p('s_and_b32 s%d, s%d, %d' % (S_T0, S_STEP, Z_RING - 1)); p('s_mul_i32 s%d, s%d, %d' % (S_T0, S_T0, 40 * BLK))
        p('s_add_u32 s%d, s%d, s%d' % (S_ZO, S_T0, S_COMM)); p('s_add_u32 s%d, s%d, %d' % (S_ZO, S_ZO, BLK_Z * BLK))

def comm_setup(p):
    p('s_add_u32 s%d, s%d, %d' % (S_T0, S_WS, OFF_COMM))
    p('s_sub_u32 s%d, 0, s%d' % (S_T0, S_T0)); p('s_and_b32 s%d, s%d, 0x1fffff' % (S_T0, S_T0))
    p('s_add_u32 s%d, s%d, %d' % (S_COMM, S_T0, OFF_COMM + PARITY * 8192))

def wait_flags(p, voff, foff, need_s, tmp, nlanes_note=''):
    top = p.newlabel('Lwf'); done = p.newlabel('Lwfd')
    p('s_mov_b32 s%d, %d' % (S_T2, foff))
    p.label(top)
    p('buffer_load_dword v%d, v%d, s[%d:%d], s%d offen sc1' % (tmp, voff, S_WS, S_WS + 3, S_T2))
    p('s_waitcnt vmcnt(0)')
    p('v_cmp_gt_u32 vcc, s%d, v%d' % (need_s, tmp))
    p('s_cbranch_vccz %s' % done)
    p('s_sleep 2')
    p('s_cmp_eq_u32 s%d, 0' % S_SPIN); p('s_cbranch_scc1 %s' % done)
    p('s_sub_u32 s%d, s%d, 1' % (S_SPIN, S_SPIN)); p('s_branch %s' % top)
    p.label(done)

def trace(p, slot, on):
    if not on: return
    l = p.newlabel('Ltr')
    p('s_cmp_lg_u32 s%d, 0' % S_WAVE)
    p('s_cbranch_scc1 %s' % l)
    p('s_memrealtime s[%d:%d]' % (S_TR0, S_TR0 + 1))
    p('s_lshl_b32 s%d, s%d, 8' % (S_T7, S_STEP))
    p('s_add_u32 s%d, s%d, s2' % (S_T7, S_T7))
    p('s_lshl_b32 s%d, s%d, 4' % (S_T7, S_T7))
    p('s_add_u32 s%d, s%d, %d' % (S_T7, S_T7, OFF_TRACE + slot * 4))
    p('s_waitcnt lgkmcnt(0)')
    p('v_mov_b32 v7, s%d' % S_TR0)
    p('v_mov_b32 v1, 0')
    p('buffer_store_dword v7, v1, s[%d:%d], s%d offen' % (S_WS, S_WS + 3, S_T7))
    p.label(l)

PROF = False
PSEG = True
USE_FLAGS = True
NOBG = 0
def pf(p, k):
    if PROF: p('s_memtime s[%d:%d]' % (46 + 2 * k, 47 + 2 * k))
def pf_init(p):
    if PROF:
        for k in range(5): p('s_mov_b32 s%d, 0' % (56 + k))
def pf_acc(p):
    if PROF:
        p('s_waitcnt lgkmcnt(0)')
        for k in range(4):
            p('s_sub_u32 s61, s%d, s%d' % (48 + 2 * k, 46 + 2 * k))
            p('s_add_u32 s%d, s%d, s61' % (56 + k, 56 + k))
def pf_out(p):
    if PROF:
        l = p.newlabel('Lpf')
        p('s_cmp_lg_u32 s%d, 0' % S_WAVE); p('s_cbranch_scc1 %s' % l)
        p('s_lshl_b32 s%d, s2, 6' % S_T7)
        p('s_add_u32 s%d, s%d, %d' % (S_T7, S_T7, OFF_TRACE + 524288 + 32))
        for k in range(4): p('v_mov_b32 v%d, s%d' % (20 + k, 56 + k))
        p('v_mov_b32 v7, 0')
        p('buffer_store_dwordx4 v[20:23], v7, s[%d:%d], s%d offen' % (S_WS, S_WS + 3, S_T7))
        p.label(l)

def stamp(p, slot, on):
    if not on: return
    l = p.newlabel('Lst')
    p('s_cmp_lg_u32 s%d, 0' % S_WAVE)
    p('s_cbranch_scc1 %s' % l)
    p('s_memrealtime s[%d:%d]' % (S_TR0, S_TR0 + 1))
    p('s_memtime s[46:47]')
    p('s_lshl_b32 s%d, s2, 6' % S_T7)
    p('s_add_u32 s%d, s%d, %d' % (S_T7, S_T7, OFF_TRACE + 524288 + slot * 8))
    p('s_waitcnt lgkmcnt(0)')
    p('v_mov_b32 v16, s%d' % S_TR0)
    p('v_mov_b32 v17, s46')
    p('v_mov_b32 v7, 0')
    p('buffer_store_dwordx2 v[16:17], v7, s[%d:%d], s%d offen' % (S_WS, S_WS + 3, S_T7))
    p('s_waitcnt vmcnt(0)')
    p.label(l)

def load_weights_type1(p, jobs, stg_base_v, slot_bytes, nslots, voffs, ninstr, rowbytes, lg, vm, wres_v, tmpv, stg_s, zrows=4):
    n = len(jobs)
    def issue(j):
        job = jobs[j]
        job['soff'](S_T0)
        for i in range(ninstr):
            p('s_add_u32 s%d, s%d, %d' % (S_T1, stg_s, (j % nslots) * slot_bytes + i * 1024))
            p('s_mov_b32 m0, s%d' % S_T1)
            p('buffer_load_dwordx4 v%d, s[%d:%d], s%d offen lds' % (voffs[i], job['srd'], job['srd'] + 3, S_T0))
            vm.issue(('w', j))
    depth = nslots - 1
    for j in range(min(depth, n)): issue(j)
    for j in range(n):
        vm.wait(('w', j))
        slot = (j % nslots) * slot_bytes
        pend = []
        for di, (toff, dest) in enumerate(jobs[j]['dests']):
            if dest[0] == 'reg':
                for z in range(2):
                    p('ds_read_b64_tr_b16 %s, v%d offset:%d' % (dest[1 + z], stg_base_v, slot + z * zrows * rowbytes + toff))
            else:
                t = tmpv + 4 * (len(pend) % 3)
                for z in range(2):
                    p('ds_read_b64_tr_b16 %s, v%d offset:%d' % (vr(t + 2 * z, 2), stg_base_v, slot + z * zrows * rowbytes + toff))
                pend.append((t, dest[1]))
        p('s_waitcnt lgkmcnt(0)')
        for (t, off) in pend:
            p('ds_write_b128 v%d, %s offset:%d' % (wres_v, vr(t, 4), off))
        if j + depth < n: issue(j + depth)
    p('s_waitcnt lgkmcnt(0)')

def magic_div(p, dst, src, d, tmp_s):
    m = (1 << 20) // d + 1
    for x in range(4096): assert (x * m) >> 20 == x // d
    p('s_mov_b32 s%d, %d' % (tmp_s, m))
    p('v_mul_lo_u32 v%d, v%d, s%d' % (dst, src, tmp_s))
    p('v_lshrrev_b32 v%d, 20, v%d' % (dst, dst))

def stage_offsets(p, voffs, cpr, gstride, vlane, t1, t2):
    for i, vo in enumerate(voffs):
        p('v_add_u32 v%d, %d, v%d' % (t1, i * 64, vlane))
        magic_div(p, t2, t1, cpr, S_T0)
        p('v_mul_u32_u24 v%d, %d, v%d' % (vo, cpr, t2))
        p('v_sub_u32 v%d, v%d, v%d' % (vo, t1, vo))
        p('v_lshlrev_b32 v%d, 4, v%d' % (vo, vo))
        p('s_mov_b32 s%d, %d' % (S_T0, gstride))
        p('v_mul_lo_u32 v%d, v%d, s%d' % (t2, t2, S_T0))
        p('v_add_u32 v%d, v%d, v%d' % (vo, vo, t2))

def common_lane_setup(p):
    p('v_lshrrev_b32 v3, 6, v0')
    p('v_and_b32 v1, 63, v0')
    p('v_readfirstlane_b32 s%d, v3' % S_WAVE)
    p('v_lshlrev_b32 v2, 4, v1')
    p('s_mov_b32 s%d, %d' % (S_SPIN, SPIN_BUDGET))

def mem_gather_setup(p, memx):
    p('s_mul_i32 s%d, s%d, 3' % (S_T0, S_WAVE))
    def tmod(dst, add):
        p('s_add_u32 s%d, s%d, %d' % (dst, S_T0, add))
        p('s_sub_u32 s%d, s%d, 10' % (S_T2, dst))
        p('s_cmp_ge_u32 s%d, 10' % dst)
        p('s_cselect_b32 s%d, s%d, s%d' % (dst, S_T2, dst))
        p('s_lshl_b32 s%d, s%d, 10' % (dst, dst))
    for j in range(3):
        tmod(S_T1, j)
        p('s_add_u32 s%d, s%d, 8192' % (S_T2, S_T1)); p('s_cmp_ge_u32 s%d, 8192' % S_T1); p('s_cselect_b32 s%d, s%d, s%d' % (S_T1, S_T2, S_T1))
        p('v_add_u32 v%d, s%d, v2' % (4 + j, S_T1))
    for (vreg, tau) in ((8, 3), (9, 4), (10, 7)):
        tmod(S_T1, tau)
        p('s_add_u32 s%d, s%d, %d' % (S_T1, S_T1, memx))
        p('v_add_u32 v%d, s%d, v2' % (vreg, S_T1))
    p('v_and_b32 v3, 8, v1')
    p('v_cmp_eq_u32 vcc, 0, v3')
    p('v_mov_b32 v3, 0xeeeeeeee')
    p('v_mov_b32 v7, 0x44444444')
    p('v_cndmask_b32 v3, v3, v7, vcc')

def memfrag_addr(tau, memx_unused=None):
    if tau == 3: return (8, 0)
    if tau <= 6: return (9, (tau - 4) * 1024)
    return (10, (tau - 7) * 1024)

P0 = 40; RING = 52; WST = 64

def emit_poll_mem(p, memx, lg, pre):
    def loads():
        for j in range(3):
            p('buffer_load_dwordx4 %s, v%d, s[%d:%d], s%d offen sc1' % (vr(P0 + 4 * j, 4), 4 + j, S_WS, S_WS + 3, S_MEMO))
        return 3
    poll_loop(p, loads, range(P0, P0 + 12), 7, 'mem', pre)
    for j in range(3):
        p('ds_write_b128 v%d, %s' % (RING + j, vr(P0 + 4 * j, 4)))
        lg.issue(('mw', j))

def mem_lds_addr(p):
    for j in range(3):
        p('v_lshrrev_b32 v7, 1, v%d' % (4 + j)); p('v_and_b32 v7, 0x2000, v7')
        p('v_and_b32 v%d, 0x1fff, v%d' % (RING + j, 4 + j)); p('v_or_b32 v%d, v7, v%d' % (RING + j, RING + j))

def wst_load(p, k, wres_v, lg):
    b = WST + 8 * (k & 1)
    p('ds_read_b128 %s, v%d offset:%d' % (vr(b, 4), wres_v, k * 2048)); lg.issue(('w', k))
    p('ds_read_b128 %s, v%d offset:%d' % (vr(b + 4, 4), wres_v, k * 2048 + 1024)); lg.issue(('w', k))

def smf(p, acc, afrag, o, lg, wres_v, idxv=3, nlds=12):
    kind, n = UM[o]
    if kind == 'reg':
        p('v_smfmac_f32_16x16x64_bf16 %s, %s, %s, v%d' % (vr(acc, 4), vr(afrag, 4), unit_reg(n), idxv))
    else:
        lg.wait(('w', n))
        p('v_smfmac_f32_16x16x64_bf16 %s, %s, %s, v%d' % (vr(acc, 4), vr(afrag, 4), vr(WST + 8 * (n & 1), 8), idxv))
        if n + 2 < nlds: wst_load(p, n + 2, wres_v, lg)

def proj_phase(p, lg, ntile, acc0, obase, wres_v, extra=None):
    def frag(tau): return P0 + 4 * tau if tau < 3 else RING + 4 * ((tau - 3) % 3)
    def rd(tau):
        a, off = memfrag_addr(tau)
        p('ds_read_b128 %s, v%d offset:%d' % (vr(frag(tau), 4), a, off)); lg.issue(('m', tau))
    for tau in range(10):
        if tau == 2:
            lg.wait(('mw', 2))
            p('s_barrier')
            for t in (3, 4, 5): rd(t)
        if tau >= 3: lg.wait(('m', tau))
        for tile in range(ntile):
            smf(p, acc0 + 4 * tile, frag(tau), obase + tau * ntile + tile, lg, wres_v)
        if tau >= 3 and tau + 3 < 10: rd(tau + 3)
        if extra: extra(tau)

def half_sum(p, X, Y):
    for r in range(4): p('v_permlane32_swap_b32 v%d, v%d' % (X + r, Y + r))
    for r in range(4): p('v_add_f32 v%d, v%d, v%d' % (X + r, X + r, Y + r))

A_MEMX = 0; A_QX = 10240; A_QKB = 16384; A_WRES = 65536
def gen_A(p, trace_on=False, st=False):
    lg = Cnt(p, 'lgkmcnt', 15); vm = Cnt(p, 'vmcnt', 63)
    h = S_IDX
    srd(p, S_W1, KA['Wq'], 640 * 12288); srd(p, S_W2, KA['Wk'], 640 * 12288)
    common_lane_setup(p)
    p('s_waitcnt lgkmcnt(0)')
    mem_gather_setup(p, A_MEMX)
    p('s_mul_i32 s%d, s%d, 24576' % (S_T0, S_WAVE)); p('s_add_u32 s%d, s%d, 65536' % (S_T0, S_T0)); p('v_add_u32 v15, s%d, v2' % S_T0)
    STG = A_MEMX
    voffs = [80, 81, 82]
    stage_offsets(p, voffs, 6, 12288, 1, 83, 84)
    p('v_lshrrev_b32 v83, 4, v1'); p('v_lshlrev_b32 v83, 3, v83')
    p('v_bfe_u32 v84, v1, 2, 2'); p('v_add_u32 v83, v83, v84')
    p('v_mul_u32_u24 v83, 96, v83'); p('v_and_b32 v84, 3, v1'); p('v_lshlrev_b32 v84, 3, v84')
    p('v_add_u32 v85, v83, v84')
    p('s_lshl_b32 s%d, s%d, 14' % (S_T4, S_WAVE)); p('s_add_u32 s%d, s%d, %d' % (S_T4, S_T4, STG))
    p('v_add_u32 v85, s%d, v85' % S_T4)
    p('s_mul_i32 s%d, s%d, 384' % (S_T5, h)); p('s_mul_i32 s%d, s%d, 96' % (S_T0, S_WAVE)); p('s_add_u32 s%d, s%d, s%d' % (S_T5, S_T5, S_T0))
    p('s_mul_i32 s%d, s%d, 3' % (S_T6, S_WAVE))
    jobs = []
    for tau in range(10):
        for half in range(2):
            for mat in range(2):
                def soff(dst, tau=tau, half=half):
                    p('s_add_u32 s%d, s%d, %d' % (dst, S_T6, tau))
                    p('s_sub_u32 s%d, s%d, 10' % (S_T2, dst)); p('s_cmp_ge_u32 s%d, 10' % dst); p('s_cselect_b32 s%d, s%d, s%d' % (dst, S_T2, dst))
                    p('s_mul_i32 s%d, s%d, %d' % (dst, dst, 64 * 12288))
                    p('s_add_u32 s%d, s%d, s%d' % (dst, dst, S_T5))
                    if half: p('s_add_u32 s%d, s%d, %d' % (dst, dst, 32 * 12288))
                dests = []
                for x in range(3):
                    kind, n = UM[tau * 6 + mat * 3 + x]
                    if kind == 'reg': dests.append((x * 32, ('reg', unit_reg(n, 4 * half, 2), unit_reg(n, 4 * half + 2, 2))))
                    else: dests.append((x * 32, ('lds', n * 2048 + half * 1024)))
                jobs.append(dict(srd=S_W1 if mat == 0 else S_W2, soff=soff, dests=dests))
    load_weights_type1(p, jobs, 85, 3072, 5, voffs, 3, 96, lg, vm, 15, 88, S_T4)
    p('s_barrier')
    p('v_lshrrev_b32 v80, 5, v1'); p('v_mul_u32_u24 v80, 3072, v80')
    p('v_and_b32 v81, 3, v1'); p('v_lshlrev_b32 v81, 6, v81'); p('v_add_u32 v80, v80, v81')
    p('v_bfe_u32 v81, v1, 2, 2'); p('v_lshlrev_b32 v81, 4, v81'); p('v_add_u32 v80, v80, v81')
    p('v_bfe_u32 v81, v1, 4, 1'); p('v_lshlrev_b32 v81, 3, v81'); p('v_add_u32 v80, v80, v81')
    p('s_mul_i32 s%d, s%d, 768' % (S_T0, S_WAVE)); p('s_add_u32 s%d, s%d, %d' % (S_T0, S_T0, A_QX))
    p('v_add_u32 v11, s%d, v80' % S_T0)
    p('v_bfe_u32 v80, v1, 2, 2'); p('v_lshlrev_b32 v80, 6, v80')
    p('v_lshrrev_b32 v81, 4, v1'); p('v_lshlrev_b32 v81, 4, v81'); p('v_add_u32 v80, v80, v81')
    p('v_and_b32 v81, 1, v1'); p('v_lshlrev_b32 v81, 3, v81'); p('v_add_u32 v80, v80, v81')
    p('v_add_u32 v12, %d, v80' % A_QX)
    p('v_lshrrev_b32 v80, 5, v1'); p('v_lshlrev_b32 v80, 8, v80')
    p('v_bfe_u32 v81, v1, 4, 1'); p('v_lshlrev_b32 v81, 7, v81'); p('v_add_u32 v80, v80, v81')
    p('v_and_b32 v81, 7, v1'); p('v_lshlrev_b32 v82, 4, v81'); p('v_add_u32 v80, v80, v82')
    p('s_lshr_b32 s%d, s%d, 4' % (S_T1, h)); p('s_lshl_b32 s%d, s%d, 14' % (S_T1, S_T1)); p('s_and_b32 s%d, s%d, 15' % (S_T0, h)); p('s_lshl_b32 s%d, s%d, 9' % (S_T0, S_T0)); p('s_add_u32 s%d, s%d, s%d' % (S_T0, S_T0, S_T1))
    p('v_add_u32 v13, s%d, v80' % S_T0)
    p('v_mov_b32 v82, 0x7ff00000'); p('v_and_b32 v83, 8, v1'); p('v_cmp_eq_u32 vcc, 0, v83'); p('v_cndmask_b32 v13, v82, v13, vcc')
    p('v_lshlrev_b32 v80, 4, v1')
    p('s_lshl_b32 s%d, s%d, 7' % (S_T0, h)); p('s_add_u32 s%d, s%d, 32768' % (S_T0, S_T0)); p('v_add_u32 v14, s%d, v80' % S_T0)
    p('v_cmp_gt_u32 vcc, 8, v1'); p('v_cndmask_b32 v14, v82, v14, vcc')
    p('s_mov_b32 s%d, 0' % S_MASK); p('s_mov_b32 s%d, -1' % (S_MASK + 1))
    p('s_mov_b32 s%d, 0x%x' % (S_C, __import__('struct').unpack('<I', __import__('struct').pack('<f', 192 ** -0.5 * 1.4426950408889634))[0]))
    p('s_mov_b32 s%d, 0' % S_STEP)
    p('s_mul_i32 s%d, s%d, 24576' % (S_QKO, h)); p('s_add_u32 s%d, s%d, %d' % (S_QKO, S_QKO, OFF_QK))
    def qk_dma(bufsel_s):
        p('s_mov_b32 s%d, s%d' % (S_T1, S_QKO))
        for j in range(24):
            p('s_add_u32 s%d, s%d, %d' % (S_T0, bufsel_s, j * 1024))
            p('s_mov_b32 m0, s%d' % S_T0)
            p('buffer_load_dwordx4 v2, s[%d:%d], s%d offen sc1 lds' % (S_WS, S_WS + 3, S_T1))
            if j < 23: p('s_add_u32 s%d, s%d, 1024' % (S_T1, S_T1))
    def KS(jt, u): return 80 + 4 * (jt * 6 + u)
    def k_direct():
        for j in range(12):
            if j % 4 == 0: p('s_add_u32 s%d, s%d, %d' % (S_T0, S_QKO, 12288 + j * 1024))
            p('buffer_load_dwordx4 %s, v2, s[%d:%d], s%d offen offset:%d sc1' % (vr(80 + 4 * j, 4), S_WS, S_WS + 3, S_T0, (j % 4) * 1024))
    def qk_wait(add):
        if USE_FLAGS:
            p('s_add_u32 s%d, s%d, %d' % (S_T3, S_STEP, add)); wait_flags(p, 0, F_QK, S_T3, 7)
    p('s_lshl_b32 s%d, s%d, 2' % (S_T0, h)); p('v_mov_b32 v0, s%d' % S_T0)
    l = p.newlabel('La')
    p('s_cmp_lg_u32 s%d, 3' % S_WAVE); p('s_cbranch_scc1 %s' % l)
    qk_wait(1)
    p('s_mov_b32 s%d, %d' % (S_T3, A_QKB)); qk_dma(S_T3)
    p.label(l)
    l = p.newlabel('La')
    p('s_cmp_lg_u32 s%d, 0' % S_WAVE); p('s_cbranch_scc1 %s' % l)
    qk_wait(1)
    k_direct()
    p.label(l)
    stamp(p, 1, st)
    pf_init(p)
    loop = p.newlabel('LAloop'); p.label(loop)
    lg.reset(); vm.reset()
    pf(p, 0)
    for r in range(16, 40): p('v_mov_b32 v%d, 0' % r)
    wst_load(p, 0, 15, lg); wst_load(p, 1, 15, lg)
    step_offsets(p, 0, ('mem', 'p')); mem_lds_addr(p)
    p('s_waitcnt lgkmcnt(0)'); lg.reset()
    emit_poll_mem(p, A_MEMX, lg, 'memA')
    pf(p, 1)
    trace(p, 0, trace_on)
    proj_phase(p, lg, 6, 16, 0, 15)
    for x in range(3): half_sum(p, 16 + 4 * x, 28 + 4 * x)
    for x in range(3):
        a = 16 + 4 * x
        p('v_cvt_pk_bf16_f32 v%d, v%d, v%d' % (a, a, a + 1)); p('v_cvt_pk_bf16_f32 v%d, v%d, v%d' % (a + 1, a + 2, a + 3))
        p('ds_write_b64 v11, %s offset:%d' % (vr(a, 2), x * 256))
    pf(p, 2)
    p('s_waitcnt vmcnt(0) lgkmcnt(0)'); lg.reset()
    p('s_barrier')
    pf(p, 3)
    trace(p, 1, trace_on)
    lw = p.newlabel('LAw'); lend = p.newlabel('LAe'); lw3 = p.newlabel('LAw3')
    QF = 16; KM = 40; SA = 64
    def scores(kind):
        lg.reset()
        if kind == 'mem':
            for u in range(6):
                for z in range(2):
                    p('ds_read_b64_tr_b16 %s, v12 offset:%d' % (vr(QF + 4 * u + 2 * z, 2), (2 * u + z) * 256)); lg.issue(('q', u))
        else:
            p('s_and_b32 s%d, s%d, 1' % (S_T0, S_STEP)); p('s_mul_i32 s%d, s%d, 24576' % (S_T0, S_T0)); p('s_add_u32 s%d, s%d, %d' % (S_T0, S_T0, A_QKB))
            p('v_add_u32 v7, s%d, v2' % S_T0)
            p('s_sub_u32 s%d, s%d, 1' % (S_T1, S_WAVE)); p('s_mul_i32 s%d, s%d, 6144' % (S_T1, S_T1)); p('v_add_u32 v76, s%d, v7' % S_T1)
            for u in range(6):
                p('ds_read_b128 %s, v76 offset:%d' % (vr(QF + 4 * u, 4), u * 1024)); lg.issue(('q', u))
                for jt in range(2):
                    p('ds_read_b128 %s, v7 offset:%d' % (vr(KS(jt, u), 4), 12288 + jt * 6144 + u * 1024)); lg.issue(('q', u))
        for u in range(6):
            lg.wait(('q', u))
            for jt in range(2):
                p('v_mfma_f32_16x16x32_bf16 %s, %s, %s, %s' % (vr(SA + 4 * jt, 4), vr(KS(jt, u), 4), vr(QF + 4 * u, 4), '0' if u == 0 else vr(SA + 4 * jt, 4)))
            if u == 0:
                for uu in range(6):
                    for z in range(2):
                        p('ds_read_b64_tr_b16 %s, v12 offset:%d' % (vr(KM + 4 * uu + 2 * z, 2), 3072 + (2 * uu + z) * 256)); lg.issue(('km', uu))
        SM = 72
        for u in range(6):
            lg.wait(('km', u))
            p('v_mfma_f32_16x16x32_bf16 %s, %s, %s, %s' % (vr(SM, 4), vr(KM + 4 * u, 4), vr(QF + 4 * u, 4), '0' if u == 0 else vr(SM, 4)))
        vals = list(range(SA, SA + 8)) + list(range(SM, SM + 4))
        p('v_mov_b32 v40, 0xff800000')
        if kind == 'seg':
            p('v_lshrrev_b32 v41, 4, v2'); p('v_and_b32 v42, 15, v41'); p('v_lshrrev_b32 v41, 4, v41'); p('v_lshlrev_b32 v41, 2, v41'); p('v_sub_u32 v41, v42, v41')
            p('s_sub_u32 s%d, s%d, 1' % (S_T1, S_WAVE)); p('s_lshl_b32 s%d, s%d, 4' % (S_T1, S_T1)); p('v_add_u32 v41, s%d, v41' % S_T1)
            for jt in range(2):
                for r in range(4):
                    p('v_cmp_le_i32 vcc, %d, v41' % (16 * jt + r))
                    p('v_cndmask_b32 v%d, v40, v%d, vcc' % (SA + 4 * jt + r, SA + 4 * jt + r))
        for r in range(4): p('v_cndmask_b32 v%d, v%d, v40, s[%d:%d]' % (SM + r, SM + r, S_MASK, S_MASK + 1))
        p('v_max3_f32 v17, v%d, v%d, v%d' % tuple(vals[0:3]))
        for i in range(3, 11, 2): p('v_max3_f32 v17, v17, v%d, v%d' % (vals[i], vals[i + 1]))
        p('v_max_f32 v17, v17, v%d' % vals[11])
        p('v_mov_b32 v18, v17'); p('v_permlane16_swap_b32 v17, v18'); p('v_max_f32 v17, v17, v18')
        p('v_mov_b32 v18, v17'); p('v_permlane32_swap_b32 v17, v18'); p('v_max_f32 v17, v17, v18')
        p('v_mul_f32 v17, s%d, v17' % S_C)
        for v in vals: p('v_fma_f32 v%d, v%d, s%d, -v17' % (v, v, S_C))
        for v in vals: p('v_exp_f32 v%d, v%d' % (v, v))
        p('v_add_f32 v18, v%d, v%d' % (vals[0], vals[1])); p('v_add_f32 v19, v%d, v%d' % (vals[2], vals[3]))
        for i in range(4, 12, 2):
            p('v_add_f32 v18, v18, v%d' % vals[i]); p('v_add_f32 v19, v19, v%d' % vals[i + 1])
        p('v_add_f32 v18, v18, v19')
        p('v_mov_b32 v19, v18'); p('v_permlane16_swap_b32 v18, v19'); p('v_add_f32 v18, v18, v19')
        p('v_mov_b32 v19, v18'); p('v_permlane32_swap_b32 v18, v19'); p('v_add_f32 v18, v18, v19')
        p('v_rcp_f32 v18, v18')
        for v in vals: p('v_mul_f32 v%d, v%d, v18' % (v, v))
        W = 20
        if kind == 'mem':
            p('v_cvt_pk_bf16_f32 v%d, v%d, v%d' % (W + 0, SA + 0, SA + 1)); p('v_cvt_pk_bf16_f32 v%d, v%d, v%d' % (W + 2, SA + 2, SA + 3))
            p('v_cvt_pk_bf16_f32 v%d, v%d, v%d' % (W + 1, SA + 4, SA + 5)); p('v_cvt_pk_bf16_f32 v%d, v%d, v%d' % (W + 3, SA + 6, SA + 7))
            p('v_cvt_pk_bf16_f32 v%d, v%d, v%d' % (W + 4, SM + 0, SM + 1)); p('v_cvt_pk_bf16_f32 v%d, v%d, v%d' % (W + 6, SM + 2, SM + 3))
            p('v_permlane16_swap_b32 v%d, v%d' % (W + 0, W + 2)); p('v_permlane16_swap_b32 v%d, v%d' % (W + 1, W + 3))
            p('buffer_store_dwordx4 %s, v13, s[%d:%d], s%d offen sc1' % (vr(W, 4), S_WS, S_WS + 3, S_PO))
            p('v_mov_b32 v%d, v%d' % (W + 5, W + 4)); p('v_mov_b32 v%d, v%d' % (W + 7, W + 6))
            p('v_permlane16_swap_b32 v%d, v%d' % (W + 4, W + 5)); p('v_permlane16_swap_b32 v%d, v%d' % (W + 6, W + 7))
            p('buffer_store_dwordx4 %s, v14, s[%d:%d], s%d offen sc1' % (vr(W + 4, 4), S_WS, S_WS + 3, S_PO))
        else:
            for k in range(4): p('v_cvt_pk_bf16_f32 v%d, v%d, v%d' % (W + k, SA + 2 * k, SA + 2 * k + 1))
            p('v_cvt_pk_bf16_f32 v%d, v%d, v%d' % (W + 4, SM + 0, SM + 1)); p('v_cvt_pk_bf16_f32 v%d, v%d, v%d' % (W + 5, SM + 2, SM + 3))
            p('s_mul_i32 s%d, s%d, 81920' % (S_T0, S_STEP)); p('s_sub_u32 s%d, s%d, 1' % (S_T1, S_WAVE)); p('s_lshl_b32 s%d, s%d, 15' % (S_T2, S_T1))
            p('s_add_u32 s%d, s%d, s%d' % (S_T2, S_T2, S_T0)); p('s_lshl_b32 s%d, s%d, 10' % (S_T3, h)); p('s_add_u32 s%d, s%d, s%d' % (S_T2, S_T2, S_T3)); p('s_add_u32 s%d, s%d, %d' % (S_T2, S_T2, OFF_PS))
            p('buffer_store_dwordx4 %s, v2, s[%d:%d], s%d offen sc1' % (vr(W, 4), S_WS, S_WS + 3, S_T2))
            p('v_mov_b32 v%d, v%d' % (W + 6, W + 4)); p('v_mov_b32 v%d, v%d' % (W + 7, W + 5))
            p('v_permlane16_swap_b32 v%d, v%d' % (W + 4, W + 6)); p('v_permlane16_swap_b32 v%d, v%d' % (W + 5, W + 7))
            p('s_lshl_b32 s%d, s%d, 13' % (S_T1, S_T1)); p('s_add_u32 s%d, s%d, s%d' % (S_T0, S_T0, S_T1)); p('s_lshl_b32 s%d, s%d, 8' % (S_T3, h)); p('s_add_u32 s%d, s%d, s%d' % (S_T0, S_T0, S_T3))
            p('s_add_u32 s%d, s%d, %d' % (S_T0, S_T0, OFF_PS + 65536))
            p('v_mov_b32 v42, 0x7ff00000'); p('v_cmp_gt_u32 vcc, 256, v2'); p('v_cndmask_b32 v42, v42, v2, vcc')
            p('buffer_store_dwordx4 %s, v42, s[%d:%d], s%d offen sc1' % (vr(W + 4, 4), S_WS, S_WS + 3, S_T0))
    p('s_cmp_lg_u32 s%d, 0' % S_WAVE); p('s_cbranch_scc1 %s' % lw)
    scores('mem')
    pf(p, 4)
    pf_acc(p)
    trace(p, 2, trace_on)
    p('s_barrier')
    p('s_cmp_ge_u32 s%d, 63' % S_STEP); p('s_cbranch_scc1 %s' % lend)
    p('s_add_u32 s%d, s%d, %d' % (S_QKO, S_QKO, 32 * 24576))
    qk_wait(2)
    if not NOBG & 1: k_direct()
    p('s_branch %s' % lend)
    p.label(lw)
    p('s_cmp_eq_u32 s%d, 3' % S_WAVE); p('s_cbranch_scc1 %s' % lw3)
    if PSEG: scores('seg')
    p('s_barrier')
    p('s_branch %s' % lend)
    p.label(lw3)
    p('s_add_u32 s%d, s%d, %d' % (S_T0, S_STEP, P_RING - 1)); p('s_and_b32 s%d, s%d, %d' % (S_T0, S_T0, P_RING - 1)); p('s_mul_i32 s%d, s%d, %d' % (S_T0, S_T0, 3 * BLK))
    p('s_add_u32 s%d, s%d, s%d' % (S_T0, S_T0, S_COMM)); p('s_add_u32 s%d, s%d, %d' % (S_T0, S_T0, BLK_P * BLK))
    for r in range(16, 20): p('v_mov_b32 v%d, -1' % r)
    p('buffer_store_dwordx4 v[16:19], v13, s[%d:%d], s%d offen sc1' % (S_WS, S_WS + 3, S_T0))
    p('buffer_store_dwordx4 v[16:19], v14, s[%d:%d], s%d offen sc1' % (S_WS, S_WS + 3, S_T0))
    def fp_flag():
        p('v_mov_b32 v20, 0x7ff00000'); p('v_cmp_eq_u32 vcc, 0, v2'); p('v_cndmask_b32 v20, v20, v0, vcc')
        p('v_mov_b32 v21, s%d' % S_STEP); p('s_mov_b32 s%d, %d' % (S_T0, F_P))
        p('buffer_store_dword v21, v20, s[%d:%d], s%d offen sc1' % (S_WS, S_WS + 3, S_T0))
    fp_flag()
    p('s_barrier')
    p('s_cmp_ge_u32 s%d, 63' % S_STEP); p('s_cbranch_scc1 %s' % lend)
    p('s_add_u32 s%d, s%d, %d' % (S_QKO, S_QKO, 32 * 24576))
    qk_wait(2)
    p('s_add_u32 s%d, s%d, 1' % (S_T3, S_STEP)); p('s_and_b32 s%d, s%d, 1' % (S_T3, S_T3)); p('s_mul_i32 s%d, s%d, 24576' % (S_T3, S_T3)); p('s_add_u32 s%d, s%d, %d' % (S_T3, S_T3, A_QKB))
    if not NOBG & 2: qk_dma(S_T3)
    p.label(lend)
    p('s_add_u32 s%d, s%d, 1' % (S_STEP, S_STEP)); p('s_cmp_lt_u32 s%d, s%d' % (S_STEP, S_NST)); p('s_cbranch_scc1 %s' % loop)
    p('s_waitcnt vmcnt(0)'); p('s_barrier')
    l = p.newlabel('LAfin'); p('s_cmp_lg_u32 s%d, 3' % S_WAVE); p('s_cbranch_scc1 %s' % l)
    fp_flag()
    p.label(l)

B_MEMX = 0; B_VX = 10240; B_WRES = 65536
def gen_B(p, trace_on=False, st=False):
    lg = Cnt(p, 'lgkmcnt', 15); vm = Cnt(p, 'vmcnt', 63)
    h = S_IDX
    srd(p, S_W1, KA['Wv'], 640 * 12288); srd(p, S_W2, KA['Wo'], 32 * 192 * 1280)
    common_lane_setup(p)
    p('s_waitcnt lgkmcnt(0)')
    mem_gather_setup(p, B_MEMX)
    p('s_mul_i32 s%d, s%d, 24576' % (S_T0, S_WAVE)); p('s_add_u32 s%d, s%d, 65536' % (S_T0, S_T0)); p('v_add_u32 v15, s%d, v2' % S_T0)
    STG = B_MEMX
    p('s_lshl_b32 s%d, s%d, 14' % (S_T4, S_WAVE)); p('s_add_u32 s%d, s%d, %d' % (S_T4, S_T4, STG))
    voffs = [80, 81, 82]
    stage_offsets(p, voffs, 6, 12288, 1, 83, 84)
    p('v_lshrrev_b32 v83, 4, v1'); p('v_lshlrev_b32 v83, 3, v83'); p('v_bfe_u32 v84, v1, 2, 2'); p('v_add_u32 v83, v83, v84')
    p('v_and_b32 v84, 3, v1'); p('v_lshlrev_b32 v84, 3, v84')
    p('v_mul_u32_u24 v85, 96, v83'); p('v_add_u32 v85, v85, v84'); p('v_add_u32 v85, s%d, v85' % S_T4)
    p('v_mul_u32_u24 v86, 160, v83'); p('v_add_u32 v86, v86, v84'); p('v_add_u32 v86, s%d, v86' % S_T4)
    p('s_mul_i32 s%d, s%d, 384' % (S_T5, h)); p('s_mul_i32 s%d, s%d, 96' % (S_T0, S_WAVE)); p('s_add_u32 s%d, s%d, s%d' % (S_T5, S_T5, S_T0))
    p('s_mul_i32 s%d, s%d, 3' % (S_T6, S_WAVE))
    jobs = []
    for tau in range(10):
        for half in range(2):
            def soff(dst, tau=tau, half=half):
                p('s_add_u32 s%d, s%d, %d' % (dst, S_T6, tau))
                p('s_sub_u32 s%d, s%d, 10' % (S_T2, dst)); p('s_cmp_ge_u32 s%d, 10' % dst); p('s_cselect_b32 s%d, s%d, s%d' % (dst, S_T2, dst))
                p('s_mul_i32 s%d, s%d, %d' % (dst, dst, 64 * 12288))
                p('s_add_u32 s%d, s%d, s%d' % (dst, dst, S_T5))
                if half: p('s_add_u32 s%d, s%d, %d' % (dst, dst, 32 * 12288))
            dests = []
            for x in range(3):
                kind, n = UM[tau * 3 + x]
                if kind == 'reg': dests.append((x * 32, ('reg', unit_reg(n, 4 * half, 2), unit_reg(n, 4 * half + 2, 2))))
                else: dests.append((x * 32, ('lds', n * 2048 + half * 1024)))
            jobs.append(dict(srd=S_W1, soff=soff, dests=dests))
    load_weights_type1(p, jobs, 85, 3072, 5, voffs, 3, 96, lg, vm, 15, 88, S_T4)
    voffs = [100, 101, 102, 103, 104]
    stage_offsets(p, voffs, 10, 1280, 1, 83, 84)
    p('s_mul_i32 s%d, s%d, %d' % (S_T5, h, 192 * 1280)); p('s_mul_i32 s%d, s%d, 320' % (S_T0, S_WAVE)); p('s_add_u32 s%d, s%d, s%d' % (S_T5, S_T5, S_T0))
    jobs = []
    for u in range(6):
        for ch in range(2):
            def soff(dst, u=u, ch=ch): p('s_add_u32 s%d, s%d, %d' % (dst, S_T5, u * 32 * 1280 + ch * 160))
            dests = []
            for x in range(5):
                cc = ch * 5 + x
                kind, n = UM[30 + cc * 3 + (u >> 1)]
                half = u & 1
                if kind == 'reg': dests.append((x * 32, ('reg', unit_reg(n, 4 * half, 2), unit_reg(n, 4 * half + 2, 2))))
                else: dests.append((x * 32, ('lds', n * 2048 + half * 1024)))
            jobs.append(dict(srd=S_W2, soff=soff, dests=dests))
    load_weights_type1(p, jobs, 86, 5120, 3, voffs, 5, 160, lg, vm, 15, 88, S_T4)
    p('s_barrier')
    p('v_bfe_u32 v80, v1, 3, 1'); p('v_lshlrev_b32 v80, 9, v80')
    p('v_bfe_u32 v81, v1, 2, 1'); p('v_lshlrev_b32 v81, 6, v81'); p('v_add_u32 v80, v80, v81')
    p('v_and_b32 v81, 1, v1'); p('v_lshlrev_b32 v81, 5, v81'); p('v_add_u32 v80, v80, v81')
    p('v_bfe_u32 v81, v1, 1, 1'); p('v_lshlrev_b32 v81, 4, v81'); p('v_add_u32 v80, v80, v81')
    p('v_bfe_u32 v81, v1, 4, 1'); p('v_lshlrev_b32 v81, 3, v81'); p('v_add_u32 v80, v80, v81')
    def tile_off(dstv, tv):
        p('v_lshrrev_b32 v82, 2, v%d' % tv); p('v_lshlrev_b32 v82, 10, v82')
        p('v_and_b32 v83, 3, v%d' % tv); p('v_lshlrev_b32 v83, 7, v83')
        p('v_add3_u32 v%d, v80, v82, v83' % dstv); p('v_add_u32 v%d, %d, v%d' % (dstv, B_VX, dstv))
    p('s_mul_i32 s%d, s%d, 3' % (S_T0, S_WAVE))
    p('v_lshrrev_b32 v84, 5, v1'); p('v_add_u32 v84, s%d, v84' % S_T0); tile_off(11, 84)
    p('v_mov_b32 v84, s%d' % S_T0); p('v_add_u32 v84, 2, v84'); tile_off(12, 84)
    p('v_lshrrev_b32 v80, 4, v1'); p('v_lshlrev_b32 v80, 7, v80')
    p('v_bfe_u32 v81, v1, 2, 2'); p('v_lshlrev_b32 v81, 5, v81'); p('v_add_u32 v80, v80, v81')
    p('v_and_b32 v81, 3, v1'); p('v_lshlrev_b32 v81, 3, v81'); p('v_add_u32 v80, v80, v81')
    p('v_add_u32 v13, %d, v80' % B_VX)
    p('v_lshrrev_b32 v80, 5, v1'); p('v_bfe_u32 v81, v1, 4, 1'); p('v_lshlrev_b32 v81, 1, v81'); p('v_add_u32 v80, v80, v81')
    p('s_mul_i32 s%d, s%d, 10' % (S_T0, S_WAVE)); p('v_add_u32 v80, s%d, v80' % S_T0); p('v_lshlrev_b32 v80, 14, v80')
    p('v_and_b32 v81, 15, v1'); p('v_lshlrev_b32 v81, 4, v81'); p('v_add_u32 v80, v80, v81')
    p('s_lshl_b32 s%d, s%d, 8' % (S_T0, h)); p('v_add_u32 v14, s%d, v80' % S_T0)
    p('v_lshrrev_b32 v80, 5, v1'); p('s_mul_i32 s%d, s%d, 10' % (S_T1, S_WAVE)); p('s_add_u32 s%d, s%d, 8' % (S_T1, S_T1)); p('v_add_u32 v80, s%d, v80' % S_T1); p('v_lshlrev_b32 v80, 14, v80')
    p('v_add_u32 v80, v80, v81'); p('v_add_u32 v120, s%d, v80' % S_T0)
    p('v_mov_b32 v82, 0x7ff00000'); p('v_and_b32 v83, 16, v1'); p('v_cmp_eq_u32 vcc, 0, v83'); p('v_cndmask_b32 v120, v82, v120, vcc')
    p('s_mov_b32 s%d, 0' % S_STEP)
    ACC1 = 16; VF = 28; ACC2 = 80
    stamp(p, 1, st)
    pf_init(p)
    loop = p.newlabel('LBloop'); p.label(loop)
    lg.reset(); vm.reset()
    pf(p, 0)
    for r in range(ACC1, ACC1 + 12): p('v_mov_b32 v%d, 0' % r)
    for r in range(ACC2, ACC2 + 40): p('v_mov_b32 v%d, 0' % r)
    wst_load(p, 0, 15, lg); wst_load(p, 1, 15, lg)
    step_offsets(p, 0, ('mem', 'z')); mem_lds_addr(p)
    p('s_waitcnt lgkmcnt(0)'); lg.reset()
    emit_poll_mem(p, B_MEMX, lg, 'memB')
    pf(p, 1)
    trace(p, 0, trace_on)
    proj_phase(p, lg, 3, ACC1, 0, 15)
    half_sum(p, 16, 20)
    for r in range(4): p('v_mov_b32 v%d, v%d' % (28 + r, 24 + r))
    half_sum(p, 24, 28)
    for a, addr in ((16, 11), (24, 12)):
        p('v_cvt_pk_bf16_f32 v%d, v%d, v%d' % (a, a, a + 1)); p('v_cvt_pk_bf16_f32 v%d, v%d, v%d' % (a + 1, a + 2, a + 3))
        p('ds_write_b64 v%d, %s' % (addr, vr(a, 2))); lg.issue('vx')
    pf(p, 2)
    p('s_waitcnt vmcnt(0)')
    lg.wait('vx')
    p('s_barrier')
    pf(p, 3)
    VFR = 40
    for t in range(3):
        for z in range(2):
            p('ds_read_b64_tr_b16 %s, v13 offset:%d' % (vr(VFR + 4 * t + 2 * z, 2), t * 1024 + z * 512)); lg.issue(('vf', t))
    def hs(pair):
        a = ACC2 + 8 * pair
        half_sum(p, a, a + 4)
        p('v_cvt_pk_bf16_f32 v%d, v%d, v%d' % (a, a, a + 1)); p('v_cvt_pk_bf16_f32 v%d, v%d, v%d' % (a + 1, a + 2, a + 3))
    def fin4(grp):
        a = ACC2 + 16 * grp; b = a + 8
        p('v_mov_b32 v%d, v%d' % (a + 2, b)); p('v_mov_b32 v%d, v%d' % (a + 3, b + 1))
        p('v_permlane16_swap_b32 v%d, v%d' % (a, a + 2)); p('v_permlane16_swap_b32 v%d, v%d' % (a + 1, a + 3))
        p('s_add_u32 s%d, s%d, %d' % (S_T0, S_ZO, grp * 4 * BLK))
        p('buffer_store_dwordx4 %s, v14, s[%d:%d], s%d offen sc1' % (vr(a, 4), S_WS, S_WS + 3, S_T0))
    def fin_last():
        a = ACC2 + 32
        p('v_mov_b32 v%d, v%d' % (a + 2, a)); p('v_mov_b32 v%d, v%d' % (a + 3, a + 1))
        p('v_permlane16_swap_b32 v%d, v%d' % (a, a + 2)); p('v_permlane16_swap_b32 v%d, v%d' % (a + 1, a + 3))
        p('buffer_store_dwordx4 %s, v120, s[%d:%d], s%d offen sc1' % (vr(a, 4), S_WS, S_WS + 3, S_ZO))
    for cc in range(10):
        for t in range(3):
            if cc == 0: lg.wait(('vf', t))
            smf(p, ACC2 + 4 * cc, VFR + 4 * t, 30 + cc * 3 + t, lg, 15)
        if cc >= 3 and cc % 2 == 1:
            pr = (cc - 3) // 2
            hs(pr)
            if pr % 2 == 1: fin4(pr // 2)
    hs(4); fin_last()
    p('s_barrier')
    pf(p, 4)
    pf_acc(p)
    trace(p, 2, trace_on)
    p('s_add_u32 s%d, s%d, 1' % (S_STEP, S_STEP)); p('s_cmp_lt_u32 s%d, s%d' % (S_STEP, S_NST)); p('s_cbranch_scc1 %s' % loop)

R_RED = 0; R_RED2 = 4096
SEGROWS = True
def gen_R(p, trace_on=False, st=False):
    c = S_IDX
    srd(p, S_W1, KA['x'], 2048 * 1280)
    common_lane_setup(p)
    p('s_waitcnt lgkmcnt(0)')
    p('v_and_b32 v3, 8, v1'); p('v_cmp_eq_u32 vcc, 0, v3'); p('v_mov_b32 v3, 0xeeeeeeee'); p('v_mov_b32 v7, 0x44444444'); p('v_cndmask_b32 v3, v3, v7, vcc')
    p('s_lshr_b32 s%d, s%d, 1' % (S_T1, S_WAVE)); p('s_lshl_b32 s%d, s%d, 14' % (S_T1, S_T1)); p('s_and_b32 s%d, s%d, 1' % (S_T0, S_WAVE)); p('s_lshl_b32 s%d, s%d, 12' % (S_T0, S_T0))
    p('s_add_u32 s%d, s%d, s%d' % (S_T0, S_T0, S_T1)); p('v_add_u32 v4, s%d, v2' % S_T0)
    p('v_lshrrev_b32 v8, 4, v1'); p('v_lshlrev_b32 v8, 8, v8'); p('v_and_b32 v9, 7, v1'); p('v_lshlrev_b32 v9, 4, v9'); p('v_add_u32 v8, v8, v9')
    p('v_bfe_u32 v9, v1, 3, 1'); p('v_lshlrev_b32 v9, 3, v9'); p('v_add_u32 v8, v8, v9')
    p('s_lshl_b32 s%d, s%d, 10' % (S_T0, S_WAVE)); p('s_add_u32 s%d, s%d, 32768' % (S_T0, S_T0)); p('v_add_u32 v5, s%d, v8' % S_T0)
    p('s_lshl_b32 s%d, s%d, 14' % (S_T0, c)); p('s_lshl_b32 s%d, s%d, 11' % (S_T1, S_WAVE)); p('s_add_u32 s%d, s%d, s%d' % (S_T0, S_T0, S_T1)); p('v_add_u32 v6, s%d, v2' % S_T0)
    p('s_lshl_b32 s%d, s%d, 15' % (S_T0, c)); p('s_lshl_b32 s%d, s%d, 13' % (S_T1, S_WAVE)); p('s_add_u32 s%d, s%d, s%d' % (S_T0, S_T0, S_T1)); p('v_add_u32 v10, s%d, v2' % S_T0)
    p('v_bfe_u32 v8, v1, 1, 1'); p('v_lshlrev_b32 v8, 8, v8')
    p('v_bfe_u32 v9, v1, 4, 1'); p('v_lshlrev_b32 v9, 7, v9'); p('v_add_u32 v8, v8, v9')
    p('v_lshrrev_b32 v9, 5, v1'); p('v_lshlrev_b32 v9, 5, v9'); p('v_add_u32 v8, v8, v9')
    p('v_bfe_u32 v9, v1, 2, 2'); p('v_lshlrev_b32 v9, 3, v9'); p('v_add_u32 v8, v8, v9')
    p('v_and_b32 v9, 1, v1'); p('v_lshlrev_b32 v9, 2, v9'); p('v_add_u32 v8, v8, v9')
    p('s_lshl_b32 s%d, s%d, 9' % (S_T0, S_WAVE)); p('v_add_u32 v11, s%d, v8' % S_T0)
    p('v_lshlrev_b32 v12, 3, v1'); p('v_lshlrev_b32 v13, 2, v1'); p('s_lshl_b32 s%d, s%d, 8' % (S_T0, c))
    p('s_add_u32 s%d, s%d, 8192' % (S_T1, S_T0)); p('s_cmp_ge_u32 s%d, 32' % c); p('s_cselect_b32 s%d, s%d, s%d' % (S_T0, S_T1, S_T0))
    p('v_add_u32 v13, s%d, v13' % S_T0)
    p('v_lshlrev_b32 v14, 2, v1'); p('s_lshl_b32 s%d, s%d, 8' % (S_T0, c)); p('v_add_u32 v14, s%d, v14' % S_T0)
    p('v_mov_b32 v8, 0x7ff00000'); p('v_and_b32 v9, 3, v1'); p('v_cmp_eq_u32 vcc, 0, v9'); p('v_cndmask_b32 v13, v8, v13, vcc')
    p('s_lshl_b32 s%d, s%d, 11' % (S_T0, S_WAVE)); p('s_add_u32 s%d, s%d, %d' % (S_T0, S_T0, R_RED2)); p('v_add_u32 v15, s%d, v2' % S_T0)
    p('v_and_b32 v8, 15, v1'); p('s_and_b32 s%d, s%d, 1' % (S_T0, S_WAVE)); p('s_lshl_b32 s%d, s%d, 4' % (S_T0, S_T0)); p('v_add_u32 v8, s%d, v8' % S_T0); p('v_mul_u32_u24 v8, 1280, v8')
    p('v_lshrrev_b32 v9, 4, v1'); p('v_lshlrev_b32 v9, 3, v9'); p('s_lshl_b32 s%d, s%d, 5' % (S_T0, c)); p('v_add_u32 v9, s%d, v9' % S_T0)
    p('v_add_u32 v28, v8, v9')
    p('s_and_b32 s%d, s%d, 1' % (S_T0, S_WAVE)); p('s_lshl_b32 s%d, s%d, 10' % (S_T0, S_T0)); p('s_add_u32 s%d, s%d, %d' % (S_T0, S_T0, R_RED2)); p('v_add_u32 v29, s%d, v2' % S_T0)
    p('s_mov_b32 s%d, %d' % (S_T0, OFF_MOD + 2 * 1280))
    p('buffer_load_dwordx2 v[30:31], v9, s[%d:%d], s%d offen' % (S_WS, S_WS + 3, S_T0))
    p('s_waitcnt vmcnt(0)')
    p('v_lshlrev_b32 v24, 16, v30'); p('v_and_b32 v25, 0xffff0000, v30'); p('v_lshlrev_b32 v26, 16, v31'); p('v_and_b32 v27, 0xffff0000, v31')
    p('s_lshl_b32 s%d, s%d, 2' % (S_T0, c)); p('v_mov_b32 v30, s%d' % S_T0); p('v_mov_b32 v8, 0x7ff00000'); p('v_cmp_eq_u32 vcc, 0, v1'); p('v_cndmask_b32 v30, v8, v30, vcc')
    p('v_and_b32 v0, 31, v1'); p('v_lshlrev_b32 v0, 2, v0')
    p('s_mov_b32 s%d, 0' % S_STEP)
    p('s_mov_b32 s%d, %d' % (S_VOO, OFF_VO))
    ZB = 64; PA = 72; PM = 88; ACC = 16; SENT = 96; PF = 128
    def VOa(k, j, n=4): return ar(40 * k + 4 * j, n)
    def Za(k, a): return ar(40 * k + 32 + 4 * a, 4)
    def vo_load(k):
        for j in range(8):
            if j == 4: p('s_add_u32 s%d, s%d, 4096' % (S_T0, S_VOO))
            p('buffer_load_dwordx4 %s, v10, s[%d:%d], s%d offen offset:%d sc1' % (VOa(k, j), S_WS, S_WS + 3, S_VOO if j < 4 else S_T0, (j % 4) * 1024))
    def vo_wait(add):
        if USE_FLAGS:
            p('s_add_u32 s%d, s%d, %d' % (S_T3, S_STEP, add)); wait_flags(p, 0, F_VO, S_T3, 7)
    S_SG = S_T6
    def seg_rows(k):
        p('s_add_u32 s%d, s%d, 1' % (S_T3, S_SG))
        if USE_FLAGS: wait_flags(p, 0, F_P, S_T3, 7)
        p('s_mul_i32 s%d, s%d, 81920' % (S_T4, S_SG)); p('s_add_u32 s%d, s%d, %d' % (S_T4, S_T4, OFF_PS))
        for tau in range(2):
            p('s_lshl_b32 s%d, s%d, 13' % (S_T0, S_WAVE)); p('s_add_u32 s%d, s%d, s%d' % (S_T0, S_T0, S_T4)); p('s_add_u32 s%d, s%d, %d' % (S_T0, S_T0, tau * 32768))
            for j in range(8):
                if j == 4: p('s_add_u32 s%d, s%d, 4096' % (S_T0, S_T0))
                p('buffer_load_dwordx4 %s, v2, s[%d:%d], s%d offen offset:%d sc1' % (vr(PF + 40 * tau + 4 * j, 4), S_WS, S_WS + 3, S_T0, (j % 4) * 1024))
            p('s_lshl_b32 s%d, s%d, 11' % (S_T0, S_WAVE)); p('s_add_u32 s%d, s%d, s%d' % (S_T0, S_T0, S_T4)); p('s_add_u32 s%d, s%d, %d' % (S_T0, S_T0, 65536 + tau * 8192))
            for a in range(2):
                p('buffer_load_dwordx4 %s, v2, s[%d:%d], s%d offen offset:%d sc1' % (vr(PF + 40 * tau + 32 + 4 * a, 4), S_WS, S_WS + 3, S_T0, a * 1024))
        p('s_mul_i32 s%d, s%d, %d' % (S_T5, S_SG, 32 * 1280))
        p('buffer_load_dwordx2 v[100:101], v28, s[%d:%d], s%d offen' % (S_W1, S_W1 + 3, S_T5))
        for tau in range(2):
            p('s_waitcnt vmcnt(%d)' % (11 if tau == 0 else 1))
            a = 104 + 4 * tau
            for j in range(8):
                p('v_mfma_f32_16x16x32_bf16 %s, %s, %s, %s' % (vr(a, 4), VOa(k, j), vr(PF + 40 * tau + 4 * j, 4), '0' if j == 0 else vr(a, 4)))
            for aa in range(2):
                p('v_mfma_f32_16x16x32_bf16 %s, %s, %s, %s' % (vr(a, 4), Za(k, aa), vr(PF + 40 * tau + 32 + 4 * aa, 4), vr(a, 4)))
        p('ds_write_b128 v15, v[104:107]'); p('ds_write_b128 v15, v[108:111] offset:1024')
        p('s_waitcnt lgkmcnt(0)'); p('s_barrier')
        l = p.newlabel('LRs'); p('s_cmp_ge_u32 s%d, 2' % S_WAVE); p('s_cbranch_scc1 %s' % l)
        for w in range(4): p('ds_read_b128 %s, v29 offset:%d' % (vr(104 + 4 * w, 4), w * 2048))
        p('s_waitcnt vmcnt(0) lgkmcnt(0)')
        for r in range(4):
            p('v_add_f32 v%d, v%d, v%d' % (104 + r, 104 + r, 108 + r)); p('v_add_f32 v%d, v%d, v%d' % (112 + r, 112 + r, 116 + r)); p('v_add_f32 v%d, v%d, v%d' % (104 + r, 104 + r, 112 + r))
        p('v_lshlrev_b32 v108, 16, v100'); p('v_and_b32 v109, 0xffff0000, v100'); p('v_lshlrev_b32 v110, 16, v101'); p('v_and_b32 v111, 0xffff0000, v101')
        for r in range(4): p('v_fmac_f32 v%d, v%d, v%d' % (108 + r, 24 + r, 104 + r))
        p('v_cvt_pk_bf16_f32 v100, v108, v109'); p('v_cvt_pk_bf16_f32 v101, v110, v111')
        p('s_add_u32 s%d, s%d, %d' % (S_T5, S_T5, OFF_X1))
        p('buffer_store_dwordx2 v[100:101], v28, s[%d:%d], s%d offen sc1' % (S_WS, S_WS + 3, S_T5))
        p.label(l)
    def x1_flag(val_s):
        p('v_mov_b32 v102, s%d' % val_s); p('s_mov_b32 s%d, %d' % (S_T0, F_X1))
        p('buffer_store_dword v102, v30, s[%d:%d], s%d offen sc1' % (S_WS, S_WS + 3, S_T0))
    vo_wait(1)
    vo_load(0)
    stamp(p, 1, st)
    pf_init(p)
    for r in range(SENT, SENT + 4): p('v_mov_b32 v%d, -1' % r)
    loop = p.newlabel('LRloop'); p.label(loop)
    for k in range(4):
        pf(p, 0)
        for r in range(ACC, ACC + 4): p('v_mov_b32 v%d, 0' % r)
        step_offsets(p, 1)
        p('s_waitcnt vmcnt(0)')
        def loads():
            for z in range(4): p('buffer_load_dwordx4 %s, v4, s[%d:%d], s%d offen offset:%d sc1' % (vr(PA + 4 * z, 4), S_WS, S_WS + 3, S_PO, z * 1024))
            for hp in range(2): p('buffer_load_dwordx2 %s, v5, s[%d:%d], s%d offen offset:%d sc1' % (vr(PM + 2 * hp, 2), S_WS, S_WS + 3, S_PO, hp * 128))
            p('buffer_load_dwordx4 %s, v6, s[%d:%d], s%d offen sc1' % (vr(ZB, 4), S_WS, S_WS + 3, S_ZO))
            p('buffer_load_dwordx4 %s, v6, s[%d:%d], s%d offen offset:1024 sc1' % (vr(ZB + 4, 4), S_WS, S_WS + 3, S_ZO))
            return 8
        pf(p, 1)
        poll_loop(p, loads, list(range(PA, PA + 20)) + list(range(ZB, ZB + 8)), 7, 'p', 'p')
        pf(p, 2)
        trace(p, 0, trace_on)
        p('v_smfmac_f32_16x16x64_bf16 %s, %s, %s, v3' % (vr(ACC, 4), vr(PM, 4), vr(ZB, 8)))
        for z in range(4): p('v_smfmac_f32_16x16x64_bf16 %s, %s, %s, v3' % (vr(ACC, 4), vr(PA + 4 * z, 4), VOa(k, 2 * z, 8)))
        p('v_permlane32_swap_b32 v%d, v%d' % (ACC, ACC + 1)); p('v_permlane32_swap_b32 v%d, v%d' % (ACC + 2, ACC + 3))
        p('v_add_f32 v%d, v%d, v%d' % (ACC, ACC, ACC + 1)); p('v_add_f32 v%d, v%d, v%d' % (ACC + 2, ACC + 2, ACC + 3))
        p('ds_write2_b32 v11, v%d, v%d offset0:0 offset1:16' % (ACC, ACC + 2))
        p('s_waitcnt lgkmcnt(0)')
        p('s_barrier')
        pf(p, 3)
        l = p.newlabel('LRw'); p('s_cmp_lg_u32 s%d, 0' % S_WAVE); p('s_cbranch_scc1 %s' % l)
        for w in range(4): p('ds_read_b64 %s, v12 offset:%d' % (vr(20 + 2 * w, 2) if w < 2 else vr(32 + 2 * (w - 2), 2), w * 512))
        p('s_waitcnt lgkmcnt(0)')
        p('v_add_f32 v20, v20, v22'); p('v_add_f32 v21, v21, v23'); p('v_add_f32 v32, v32, v34'); p('v_add_f32 v33, v33, v35')
        p('v_add_f32 v20, v20, v32'); p('v_add_f32 v21, v21, v33')
        p('v_cvt_pk_bf16_f32 v20, v20, v21')
        if HIST: p('v_mov_b32 v32, v20')
        for kk in (1, 2, 3): p('v_mov_b32_dpp v%d, v20 quad_perm:[%d,%d,%d,%d] row_mask:0xf bank_mask:0xf' % (20 + kk, kk, kk, kk, kk))
        p('buffer_store_dwordx4 v[20:23], v13, s[%d:%d], s%d offen sc1' % (S_WS, S_WS + 3, S_MEMO))
        pf(p, 4)
        pf_acc(p)
        trace(p, 2, trace_on)
        if HIST:
            p('s_mul_i32 s%d, s%d, 10240' % (S_T0, S_STEP)); p('s_add_u32 s%d, s%d, %d' % (S_T0, S_T0, OFF_HIST + 10240))
            p('buffer_store_dword v32, v14, s[%d:%d], s%d offen' % (S_WS, S_WS + 3, S_T0))
        p.label(l)
        l3 = p.newlabel('LRq'); p('s_cmp_lg_u32 s%d, 1' % S_WAVE); p('s_cbranch_scc1 %s' % l3)
        p('s_and_b32 s%d, s%d, %d' % (S_T0, S_STEP, MEM_RING - 1)); p('s_lshl_b32 s%d, s%d, 15' % (S_T0, S_T0)); p('s_add_u32 s%d, s%d, s%d' % (S_T0, S_T0, S_COMM))
        p('buffer_store_dwordx4 %s, v13, s[%d:%d], s%d offen sc1' % (vr(SENT, 4), S_WS, S_WS + 3, S_T0))
        p.label(l3)
        if SEGROWS:
            l4 = p.newlabel('LRx'); p('s_cmp_lg_u32 s%d, 2' % S_WAVE); p('s_cbranch_scc1 %s' % l4)
            p('s_cmp_lt_u32 s%d, 3' % S_STEP); p('s_cbranch_scc1 %s' % l4)
            p('s_sub_u32 s%d, s%d, 2' % (S_T1, S_STEP)); x1_flag(S_T1)
            p.label(l4)
        p('s_barrier')
        p('buffer_store_dwordx4 %s, v6, s[%d:%d], s%d offen sc1' % (vr(SENT, 4), S_WS, S_WS + 3, S_ZO))
        p('buffer_store_dwordx4 %s, v6, s[%d:%d], s%d offen offset:1024 sc1' % (vr(SENT, 4), S_WS, S_WS + 3, S_ZO))
        for r in range(8): p('v_accvgpr_write_b32 a%d, v%d' % (40 * k + 32 + r, ZB + r))
        p('s_add_u32 s%d, s%d, 1' % (S_STEP, S_STEP))
        l2 = p.newlabel('LRn'); p('s_cmp_ge_u32 s%d, 64' % S_STEP); p('s_cbranch_scc1 %s' % l2)
        p('s_add_u32 s%d, s%d, %d' % (S_VOO, S_VOO, 40 * 32 * 1024))
        vo_wait(1)
        if not NOBG & 4: vo_load((k + 1) & 3)
        p.label(l2)
        if SEGROWS:
            l5 = p.newlabel('LRg'); p('s_cmp_lt_u32 s%d, 3' % S_STEP); p('s_cbranch_scc1 %s' % l5)
            p('s_sub_u32 s%d, s%d, 3' % (S_SG, S_STEP)); seg_rows((k + 2) & 3)
            p.label(l5)
    p('s_cmp_lt_u32 s%d, s%d' % (S_STEP, S_NST)); p('s_cbranch_scc1 %s' % loop)
    if SEGROWS:
        for sg in (62, 63):
            p('s_barrier')
            p('s_mov_b32 s%d, %d' % (S_SG, sg)); seg_rows(sg & 3)
        p('s_waitcnt vmcnt(0)'); p('s_barrier')
        l = p.newlabel('LRf'); p('s_cmp_lg_u32 s%d, 2' % S_WAVE); p('s_cbranch_scc1 %s' % l)
        p('s_mov_b32 s%d, 64' % S_T1); x1_flag(S_T1)
        p.label(l)

HEADER = '''.amdgcn_target "amdgcn-amd-amdhsa--gfx950"
.text
'''
def kernel_desc(name, vgpr=512, accum=256, sgpr=96):
    return '''.section .rodata,"a"
.p2align 6
.amdhsa_kernel %s
  .amdhsa_next_free_vgpr %d
  .amdhsa_next_free_sgpr %d
  .amdhsa_accum_offset %d
  .amdhsa_group_segment_fixed_size 0
  .amdhsa_kernarg_size 128
  .amdhsa_user_sgpr_count 2
  .amdhsa_user_sgpr_kernarg_segment_ptr 1
  .amdhsa_system_sgpr_workgroup_id_x 1
.end_amdhsa_kernel
''' % (name, vgpr, sgpr, accum)

PLACE = 0
def gen_core_test(nsteps=64, trace_on=False, st=False):
    p = Prog()
    name = 'core_kernel'
    p.raw('.globl %s' % name); p.raw('.p2align 8'); p.raw('.type %s,@function' % name); p.label(name)
    srd(p, S_WS, KA['ws'], WS_BYTES)
    p('s_load_dwordx2 s[%d:%d], s[0:1], %d' % (S_DBG, S_DBG + 1, KA['dbg']))
    p('s_mov_b32 s%d, %d' % (S_NST, nsteps))
    p('s_waitcnt lgkmcnt(0)')
    comm_setup(p)
    lA, lB, lR, lend = 'L_roleA', 'L_roleB', 'L_roleR', 'L_end'
    if PLACE == 1:
        p('s_and_b32 s20, s2, 7'); p('s_cmp_ge_u32 s20, 4'); p('s_cbranch_scc1 L_exit')
        p('s_lshr_b32 s21, s2, 3'); p('s_lshl_b32 s21, s21, 2'); p('s_add_u32 s2, s21, s20')
    elif PLACE == 2:
        p('s_and_b32 s20, s2, 7'); p('s_cmp_ge_u32 s20, 4'); p('s_cbranch_scc1 L_exit')
        p('s_lshr_b32 s21, s2, 3')
        l0 = p.newlabel('Lpl'); l1 = p.newlabel('Lpl')
        p('s_cmp_ge_u32 s20, 2'); p('s_cbranch_scc1 %s' % l0)
        p('s_lshl_b32 s20, s20, 5'); p('s_add_u32 s2, s20, s21'); p('s_branch %s' % l1)
        p.label(l0)
        p('s_cmp_ge_u32 s21, 20'); p('s_cbranch_scc1 L_exit')
        p('s_sub_u32 s20, s20, 2'); p('s_mul_i32 s20, s20, 20'); p('s_add_u32 s2, s20, s21'); p('s_add_u32 s2, s2, 64')
        p.label(l1)
    elif PLACE == 3:
        p('s_and_b32 s20, s2, 7'); p('s_cmp_ge_u32 s20, 4'); p('s_cbranch_scc1 L_exit')
        p('s_lshr_b32 s21, s2, 3')
        l0 = p.newlabel('Lpl'); l1 = p.newlabel('Lpl')
        p('s_cmp_ge_u32 s20, 2'); p('s_cbranch_scc1 %s' % l0)
        p('s_lshr_b32 s22, s21, 1'); p('s_lshl_b32 s23, s20, 4'); p('s_add_u32 s22, s22, s23'); p('s_and_b32 s21, s21, 1'); p('s_lshl_b32 s21, s21, 5'); p('s_add_u32 s2, s22, s21'); p('s_branch %s' % l1)
        p.label(l0)
        p('s_cmp_ge_u32 s21, 20'); p('s_cbranch_scc1 L_exit')
        p('s_sub_u32 s20, s20, 2'); p('s_mul_i32 s20, s20, 20'); p('s_add_u32 s2, s20, s21'); p('s_add_u32 s2, s2, 64')
        p.label(l1)
    if st:
        p('v_lshrrev_b32 v3, 6, v0'); p('v_readfirstlane_b32 s%d, v3' % S_WAVE); p('v_mov_b32 v20, v0'); stamp(p, 0, True); p('v_mov_b32 v0, v20')
    p('s_cmp_lt_u32 s2, 32'); p('s_cbranch_scc1 %s' % lA)
    p('s_cmp_lt_u32 s2, 64'); p('s_cbranch_scc1 %s' % lB)
    p('s_cmp_lt_u32 s2, 104'); p('s_cbranch_scc1 %s' % lR)
    p.label('L_exit')
    p('s_endpgm')
    p.label(lA); p('s_mov_b32 s%d, s2' % S_IDX); gen_A(p, trace_on, st); p('s_branch %s' % lend)
    p.label(lB); p('s_sub_u32 s%d, s2, 32' % S_IDX); gen_B(p, trace_on, st); p('s_branch %s' % lend)
    p.label(lR); p('s_sub_u32 s%d, s2, 64' % S_IDX); gen_R(p, trace_on, st)
    p.label(lend)
    stamp(p, 2, st)
    pf_out(p)
    l = p.newlabel('Lok'); p('s_cmp_lg_u32 s%d, 0' % S_SPIN); p('s_cbranch_scc1 %s' % l)
    p('v_mov_b32 v4, 0'); p('v_mov_b32 v5, s2'); p('v_add_u32 v5, 1, v5'); p('global_store_dword v4, v5, s[%d:%d]' % (S_DBG, S_DBG + 1))
    p.label(l)
    p('s_waitcnt vmcnt(0)')
    p('s_endpgm')
    body = p.text()
    return '; @launch grid=(256,1,1) block=(256,1,1) lds=163840\n' + HEADER + body + kernel_desc(name), p

if __name__ == '__main__':
    t, p = gen_core_test()
    open('core.s', 'w').write(t)
    print(len(t), 'bytes', p.nops, 'nops')
```

```python
H, DH, D, M, L, S, F = 32, 192, 640, 8, 32, 64, 1536
off = 0
def _take(n, align=4096):
    global off
    off = (off + align - 1) // align * align
    o = off; off += n
    return o
OFF_FLAGS = _take(65536)
OFF_MOD  = _take(3840 * 4)
OFF_COMM = _take(4 << 20)
OFF_H    = _take(64 * 40960)
OFF_QK   = _take(64 * 32 * 24576)
OFF_VO   = _take(64 * 40 * 32 * 1024)
OFF_PS   = _take(64 * 81920)
OFF_X1   = _take(64 * 40960)
OFF_HM   = _take(64 * 98304)
OFF_H2   = _take(64 * 40960)
OFF_HIST = _take(65 * 10240)
OFF_TRACE = _take(1 << 20)
WS_END = off
assert WS_END <= 268435456
BLK = 16384
MEM_RING = 4; P_RING = 4; Z_RING = 2
BLK_MEM = 0
BLK_P   = BLK_MEM + 2 * MEM_RING
BLK_Z   = BLK_P + 3 * P_RING
BLK_END = BLK_Z + 40 * Z_RING
assert BLK_END <= 128
def comm_page(ws_ptr):
    base = ws_ptr + OFF_COMM
    return OFF_COMM + ((-base) & ((2 << 20) - 1))
if __name__ == '__main__':
    for k, v in list(globals().items()):
        if k.startswith('OFF_') or k.startswith('BLK') or k in ('WS_END',): print(k, v, hex(v))
```

```python
from core import *
import core, roles2, roles3, pro

NAME = 'adaLN_cond__memory_aug_recurrent_mem_tr__glu_gated_bilinear__prompt_kernel'
ROLES = dict(A=True, B=True, R=True, AP=True, BP=True, L2=True, F1=True, F2=True)

def gen_main(name, nsteps=64, st=False, trace_on=False):
    p = Prog()
    p.raw('.globl %s' % name); p.raw('.p2align 8'); p.raw('.type %s,@function' % name); p.label(name)
    p('s_cmp_ge_u32 s2, 256'); p('s_cbranch_scc1 L_exit')
    srd(p, S_WS, KA['ws'], WS_BYTES)
    p('s_load_dwordx2 s[%d:%d], s[0:1], %d' % (S_DBG, S_DBG + 1, KA['dbg']))
    p('s_mov_b32 s%d, %d' % (S_NST, nsteps))
    p('s_waitcnt lgkmcnt(0)')
    comm_setup(p)
    p('s_and_b32 s20, s2, 7'); p('s_lshr_b32 s21, s2, 3'); p('s_lshl_b32 s21, s21, 2'); p('s_and_b32 s22, s20, 3'); p('s_add_u32 s21, s21, s22')
    p('s_lshr_b32 s20, s20, 2'); p('s_lshl_b32 s20, s20, 7'); p('s_add_u32 s2, s21, s20')
    if st:
        p('v_lshrrev_b32 v3, 6, v0'); p('v_readfirstlane_b32 s%d, v3' % S_WAVE); stamp(p, 0, True)
    table = [('A', 0, 32, lambda: gen_A(p, trace_on, st)), ('B', 32, 64, lambda: gen_B(p, trace_on, st)), ('R', 64, 104, lambda: gen_R(p, trace_on, st)),
             ('AP', 128, 160, lambda: roles2.gen_AP(p, st)), ('BP', 160, 192, lambda: roles2.gen_BP(p, st)),
             ('F2', 104, 124, lambda: roles3.gen_F2(p, st)), ('L2', 124, 128, lambda: roles3.gen_L2(p, st)), ('F1', 192, 240, lambda: roles3.gen_F1(p, st))]
    for nm, lo, hi, fn in table:
        if not ROLES.get(nm): continue
        l = 'L_not' + nm
        p('s_cmp_lt_u32 s2, %d' % lo); p('s_cbranch_scc1 %s' % l)
        p('s_cmp_ge_u32 s2, %d' % hi); p('s_cbranch_scc1 %s' % l)
        p('s_sub_u32 s%d, s2, %d' % (S_IDX, lo))
        p('s_branch L_go' + nm)
        p.label(l)
    p.label('L_exit')
    p('s_endpgm')
    for nm, lo, hi, fn in table:
        if not ROLES.get(nm): continue
        p.label('L_go' + nm); fn(); p('s_branch L_end')
    p.label('L_end')
    stamp(p, 2, st)
    pf_out(p)
    l = p.newlabel('Lok'); p('s_cmp_lg_u32 s%d, 0' % S_SPIN); p('s_cbranch_scc1 %s' % l)
    p('v_mov_b32 v4, 0'); p('v_mov_b32 v5, s2'); p('v_add_u32 v5, 1, v5'); p('global_store_dword v4, v5, s[%d:%d]' % (S_DBG, S_DBG + 1))
    p.label(l)
    p('s_waitcnt vmcnt(0)')
    p('s_endpgm')
    return p.text(), kernel_desc(name), p

def gen_all(st=False, trace_on=False, names=('k0_kernel', 'k1_kernel', 'main_kernel')):
    t0, d0 = pro.gen_k0(names[0]); t1, d1 = pro.gen_k1(names[1]); t2, d2, p = gen_main(names[2], 64, st, trace_on)
    launches = [(names[0], 249, 8192), (names[1], 128, 1024), (names[2], 256, 163840)]
    head = ''.join('; @launch kernel=%s grid=(%d,1,1) block=(256,1,1) lds=%d\n' % l for l in launches)
    return head + HEADER + t0 + t1 + t2 + d0 + d1 + d2, launches

if __name__ == '__main__':
    txt, _ = gen_all()
    open('all.s', 'w').write(txt); print(len(txt))
```

```python
from asmlib import Prog
from layout import *
from core import srd, vr, KA, WS_BYTES, kernel_desc, S_WS, S_WAVE, S_T0, S_T1, S_T2, S_T3, comm_setup, S_COMM
import core, struct

def f2u(x): return struct.unpack('<I', struct.pack('<f', x))[0]
OOB = 0x7ff00000

def gen_k0(name):
    p = Prog()
    p.raw('.globl %s' % name); p.raw('.p2align 8'); p.raw('.type %s,@function' % name); p.label(name)
    srd(p, S_WS, KA['ws'], WS_BYTES)
    srd(p, 8, KA['wmod'], 640 * 7680); srd(p, 12, KA['c'], 1280); srd(p, 16, KA['mem0'], 10240)
    p('s_waitcnt lgkmcnt(0)')
    lmod, lcomm, lflag, lend = 'K0_mod', 'K0_comm', 'K0_flag', 'K0_end'
    p('s_cmp_lt_u32 s2, 120'); p('s_cbranch_scc1 %s' % lmod)
    p('s_cmp_lt_u32 s2, 248'); p('s_cbranch_scc1 %s' % lcomm)
    p('s_cmp_eq_u32 s2, 248'); p('s_cbranch_scc1 %s' % lflag)
    p('s_endpgm')
    p.label(lflag)
    p('v_lshlrev_b32 v1, 4, v0')
    for r in range(4, 8): p('v_mov_b32 v%d, 0' % r)
    p('s_mov_b32 s20, %d' % OFF_FLAGS)
    for j in range(8):
        p('buffer_store_dwordx4 v[4:7], v1, s[4:7], s20 offen')
        p('s_add_u32 s20, s20, 4096')
    p('s_branch %s' % lend)
    p.label(lcomm)
    save = core.PARITY; core.PARITY = 0; comm_setup(p); core.PARITY = save
    p('s_sub_u32 s22, s2, 120')
    p('s_lshl_b32 s23, s22, 14'); p('s_add_u32 s23, s23, s%d' % S_COMM)
    lpk = 'K0_pack'
    p('s_cmp_lt_u32 s22, 2'); p('s_cbranch_scc1 %s' % lpk)
    p('v_lshlrev_b32 v1, 4, v0')
    for r in range(4, 8): p('v_mov_b32 v%d, -1' % r)
    for j in range(4):
        p('buffer_store_dwordx4 v[4:7], v1, s[4:7], s23 offen')
        if j < 3: p('s_add_u32 s23, s23, 4096')
    p('s_branch %s' % lend)
    p.label(lpk)
    for rep in range(2):
        p('v_lshrrev_b32 v2, 6, v0'); p('v_and_b32 v3, 63, v0')
        p('v_add_u32 v2, %d, v2' % (rep * 4))
        p('s_lshl_b32 s24, s22, 3'); p('v_add_u32 v8, s24, v2')
        p('v_and_b32 v9, 7, v3'); p('v_mul_u32_u24 v9, 1280, v9')
        p('v_lshlrev_b32 v10, 7, v8'); p('v_add_u32 v9, v9, v10')
        p('v_lshrrev_b32 v10, 4, v3'); p('v_lshlrev_b32 v10, 5, v10'); p('v_add_u32 v9, v9, v10')
        p('v_bfe_u32 v10, v3, 3, 1'); p('v_lshlrev_b32 v10, 2, v10'); p('v_add_u32 v9, v9, v10')
        p('v_mov_b32 v11, 0x%x' % OOB); p('v_cmp_gt_u32 vcc, 10, v8'); p('v_cndmask_b32 v9, v11, v9, vcc')
        for q in range(4): p('buffer_load_dword v%d, v9, s[16:19], 0 offen offset:%d' % (4 + q, q * 8))
        p('v_lshlrev_b32 v12, 10, v2'); p('v_lshlrev_b32 v13, 4, v3'); p('v_add_u32 v12, v12, v13'); p('v_cndmask_b32 v12, v11, v12, vcc')
        p('s_waitcnt vmcnt(0)')
        p('buffer_store_dwordx4 v[4:7], v12, s[4:7], s23 offen')
        p('s_add_u32 s24, s23, 8192')
        p('buffer_store_dwordx4 v[4:7], v12, s[4:7], s24 offen')
        p('s_waitcnt vmcnt(0)')
    p('s_branch %s' % lend)
    p.label(lmod)
    p('v_and_b32 v1, 3, v0'); p('v_lshrrev_b32 v2, 2, v0')
    p('v_mul_u32_u24 v3, 7680, v2'); p('v_lshlrev_b32 v4, 4, v1'); p('v_add_u32 v3, v3, v4')
    p('s_lshl_b32 s20, s2, 6'); p('v_add_u32 v3, s20, v3')
    p('v_lshlrev_b32 v5, 1, v2')
    for i in range(10):
        p('s_mov_b32 s21, %d' % (i * 64 * 7680))
        p('buffer_load_dwordx4 %s, v3, s[8:11], s21 offen' % vr(40 + 4 * i, 4))
        p('buffer_load_ushort v%d, v5, s[12:15], 0 offen offset:%d' % (24 + i, i * 128))
    for r in range(8, 16): p('v_mov_b32 v%d, 0' % r)
    p('s_waitcnt vmcnt(0)')
    for i in range(10):
        c = 24 + i
        p('v_lshlrev_b32 v%d, 16, v%d' % (c, c))
        p('v_mul_f32 v6, 0xbfb8aa3b, v%d' % c)
        p('v_exp_f32 v6, v6'); p('v_add_f32 v6, 1.0, v6'); p('v_rcp_f32 v6, v6'); p('v_mul_f32 v6, v%d, v6' % c)
        p('v_cvt_pk_bf16_f32 v6, v6, v6'); p('v_and_b32 v6, 0xffff0000, v6')
        for k in range(4):
            w = 40 + 4 * i + k
            p('v_lshlrev_b32 v7, 16, v%d' % w); p('v_fmac_f32 v%d, v6, v7' % (8 + 2 * k))
            p('v_and_b32 v7, 0xffff0000, v%d' % w); p('v_fmac_f32 v%d, v6, v7' % (9 + 2 * k))
    p('v_lshlrev_b32 v16, 7, v2'); p('v_lshlrev_b32 v17, 5, v1'); p('v_add_u32 v16, v16, v17')
    p('ds_write_b128 v16, v[8:11]'); p('ds_write_b128 v16, v[12:15] offset:16')
    p('s_waitcnt lgkmcnt(0)'); p('s_barrier')
    p('v_and_b32 v1, 31, v0'); p('v_lshrrev_b32 v2, 5, v0')
    p('v_lshlrev_b32 v3, 10, v2'); p('v_lshlrev_b32 v4, 2, v1'); p('v_add_u32 v3, v3, v4')
    for k in range(8): p('ds_read_b32 v%d, v3 offset:%d' % (8 + k, k * 128))
    p('s_waitcnt lgkmcnt(0)')
    for k in range(1, 8): p('v_add_f32 v8, v8, v%d' % (8 + k))
    p('s_barrier')
    p('v_lshlrev_b32 v3, 7, v2'); p('v_add_u32 v3, v3, v4')
    p('ds_write_b32 v3, v8')
    p('s_waitcnt lgkmcnt(0)'); p('s_barrier')
    for k in range(8): p('ds_read_b32 v%d, v4 offset:%d' % (8 + k, k * 128))
    p('s_waitcnt lgkmcnt(0)')
    for k in range(1, 8): p('v_add_f32 v8, v8, v%d' % (8 + k))
    p('v_cvt_pk_bf16_f32 v8, v8, v8'); p('v_and_b32 v8, 0xffff0000, v8')
    p('s_mul_hi_u32 s21, s2, %d' % ((1 << 32) // 20 + 1))
    l1 = 'K0_noadd'; l2 = 'K0_add'
    p('s_cmp_eq_u32 s21, 1'); p('s_cbranch_scc1 %s' % l2)
    p('s_cmp_eq_u32 s21, 4'); p('s_cbranch_scc0 %s' % l1)
    p.label(l2)
    p('v_add_f32 v8, 1.0, v8'); p('v_cvt_pk_bf16_f32 v8, v8, v8'); p('v_and_b32 v8, 0xffff0000, v8')
    p.label(l1)
    p('v_lshrrev_b32 v8, 16, v8')
    p('v_lshlrev_b32 v5, 1, v0'); p('v_add_u32 v5, s20, v5')
    p('v_mov_b32 v6, 0x%x' % OOB); p('v_cmp_gt_u32 vcc, 32, v0'); p('v_cndmask_b32 v5, v6, v5, vcc')
    p('s_mov_b32 s22, %d' % OFF_MOD)
    p('buffer_store_short v8, v5, s[4:7], s22 offen')
    p.label(lend)
    p('s_waitcnt vmcnt(0)')
    p('s_endpgm')
    return p.text(), kernel_desc(name, vgpr=96, accum=96, sgpr=64)

def ln_setup(p, vb):
    p('v_and_b32 v%d, 15, v1' % vb); p('v_mul_u32_u24 v%d, 1280, v%d' % (vb, vb))
    p('v_lshrrev_b32 v%d, 4, v1' % (vb + 1)); p('v_lshlrev_b32 v%d, 4, v%d' % (vb + 1, vb + 1))
    p('s_mul_i32 s%d, s%d, 320' % (S_T0, S_WAVE)); p('v_add_u32 v%d, s%d, v%d' % (vb + 1, S_T0, vb + 1))
    p('v_add_u32 v%d, v%d, v%d' % (vb, vb, vb + 1))
    p('v_and_b32 v%d, 15, v1' % (vb + 2)); p('v_lshlrev_b32 v%d, 2, v%d' % (vb + 2, vb + 2))

def ln_load_mod(p, vb, A0, B0, rowA, rowB, tmp):
    for (dst, row) in ((A0, rowA), (B0, rowB)):
        p('s_mov_b32 s%d, %d' % (S_T0, OFF_MOD + row * 1280))
        for k in range(5): p('buffer_load_dwordx4 %s, v%d, s[%d:%d], s%d offen offset:%d' % (vr(tmp + 4 * k, 4), vb + 1, S_WS, S_WS + 3, S_T0, k * 64))
        p('s_waitcnt vmcnt(0)')
        for k in range(20):
            p('v_lshlrev_b32 v%d, 16, v%d' % (dst + 2 * k, tmp + k)); p('v_and_b32 v%d, 0xffff0000, v%d' % (dst + 2 * k + 1, tmp + k))

def ln_compute(p, X0, D0, A0, B0, vstat, lds_base, t0):
    for k in range(20):
        p('v_lshlrev_b32 v%d, 16, v%d' % (D0 + 2 * k, X0 + k)); p('v_and_b32 v%d, 0xffff0000, v%d' % (D0 + 2 * k + 1, X0 + k))
    def reduce_all(acc, slot):
        p('v_mov_b32 v%d, v%d' % (t0 + 1, acc)); p('v_permlane16_swap_b32 v%d, v%d' % (acc, t0 + 1)); p('v_add_f32 v%d, v%d, v%d' % (acc, acc, t0 + 1))
        p('v_mov_b32 v%d, v%d' % (t0 + 1, acc)); p('v_permlane32_swap_b32 v%d, v%d' % (acc, t0 + 1)); p('v_add_f32 v%d, v%d, v%d' % (acc, acc, t0 + 1))
        p('s_lshl_b32 s%d, s%d, 6' % (S_T0, S_WAVE)); p('v_add_u32 v%d, s%d, v%d' % (t0 + 1, S_T0, vstat))
        p('ds_write_b32 v%d, v%d offset:%d' % (t0 + 1, acc, lds_base + slot * 256))
        p('s_waitcnt lgkmcnt(0)'); p('s_barrier')
        for w in range(4): p('ds_read_b32 v%d, v%d offset:%d' % (t0 + w, vstat, lds_base + slot * 256 + w * 64))
        p('s_waitcnt lgkmcnt(0)')
        p('v_add_f32 v%d, v%d, v%d' % (t0, t0, t0 + 1)); p('v_add_f32 v%d, v%d, v%d' % (t0 + 2, t0 + 2, t0 + 3)); p('v_add_f32 v%d, v%d, v%d' % (acc, t0, t0 + 2))
    a = t0 + 4; b = t0 + 5
    p('v_add_f32 v%d, v%d, v%d' % (a, D0, D0 + 1)); p('v_add_f32 v%d, v%d, v%d' % (b, D0 + 2, D0 + 3))
    for k in range(4, 40, 2):
        p('v_add_f32 v%d, v%d, v%d' % (a, a, D0 + k)); p('v_add_f32 v%d, v%d, v%d' % (b, b, D0 + k + 1))
    p('v_add_f32 v%d, v%d, v%d' % (a, a, b))
    reduce_all(a, 0)
    p('v_mul_f32 v%d, 0x%x, v%d' % (a, f2u(1.0 / 640), a))
    for k in range(40): p('v_sub_f32 v%d, v%d, v%d' % (D0 + k, D0 + k, a))
    p('v_mul_f32 v%d, v%d, v%d' % (a, D0, D0)); p('v_mul_f32 v%d, v%d, v%d' % (b, D0 + 1, D0 + 1))
    for k in range(2, 40, 2):
        p('v_fmac_f32 v%d, v%d, v%d' % (a, D0 + k, D0 + k)); p('v_fmac_f32 v%d, v%d, v%d' % (b, D0 + k + 1, D0 + k + 1))
    p('v_add_f32 v%d, v%d, v%d' % (a, a, b))
    reduce_all(a, 1)
    p('v_mov_b32 v%d, 0x%x' % (b, f2u(1e-5)))
    p('v_fmac_f32 v%d, 0x%x, v%d' % (b, f2u(1.0 / 640), a))
    p('v_rsq_f32 v%d, v%d' % (b, b))
    for k in range(40):
        p('v_mul_f32 v%d, v%d, v%d' % (D0 + k, D0 + k, b))
        p('v_fma_f32 v%d, v%d, v%d, v%d' % (D0 + k, D0 + k, A0 + k, B0 + k))
    for k in range(20): p('v_cvt_pk_bf16_f32 v%d, v%d, v%d' % (X0 + k, D0 + 2 * k, D0 + 2 * k + 1))

def gen_k1(name):
    p = Prog()
    p.raw('.globl %s' % name); p.raw('.p2align 8'); p.raw('.type %s,@function' % name); p.label(name)
    p('s_cmp_ge_u32 s2, 128'); p('s_cbranch_scc1 K1_exit')
    srd(p, S_WS, KA['ws'], WS_BYTES); srd(p, 8, KA['x'], 2048 * 1280)
    p('v_lshrrev_b32 v3, 6, v0'); p('v_and_b32 v1, 63, v0'); p('v_readfirstlane_b32 s%d, v3' % S_WAVE)
    p('s_waitcnt lgkmcnt(0)')
    ln_setup(p, 4)
    X0 = 8; D0 = 28; A0 = 68; B0 = 108; T = 148
    p('s_mul_i32 s24, s2, %d' % (16 * 1280))
    for k in range(5): p('buffer_load_dwordx4 %s, v4, s[8:11], s24 offen offset:%d' % (vr(X0 + 4 * k, 4), k * 64))
    ln_load_mod(p, 4, A0, B0, 1, 0, D0)
    ln_compute(p, X0, D0, A0, B0, 6, 0, T)
    p('s_mul_i32 s24, s2, 20480'); p('s_mul_i32 s25, s%d, 5120' % S_WAVE); p('s_add_u32 s24, s24, s25'); p('s_add_u32 s24, s24, %d' % OFF_H)
    p('v_lshlrev_b32 v2, 4, v1')
    for k in range(5):
        if k == 4: p('s_add_u32 s24, s24, 4096')
        p('buffer_store_dwordx4 %s, v2, s[4:7], s24 offen offset:%d' % (vr(X0 + 4 * k, 4), (k % 4) * 1024))
    p('s_waitcnt vmcnt(0)')
    p.label('K1_exit')
    p('s_endpgm')
    return p.text(), kernel_desc(name, vgpr=160, accum=160, sgpr=64)

if __name__ == '__main__':
    t0, d0 = gen_k0('k0_kernel'); t1, d1 = gen_k1('k1_kernel')
    txt = '; @launch kernel=k0_kernel grid=(249,1,1) block=(256,1,1) lds=8192\n; @launch kernel=k1_kernel grid=(128,1,1) block=(256,1,1) lds=1024\n' + core.HEADER + t0 + t1 + d0 + d1
    open('pro.s', 'w').write(txt)
    print(len(txt))
```

```python
from core import *
import core

def flag_store(p, voff, foff_add_s, val_s, tmpv):
    p('v_mov_b32 v%d, s%d' % (tmpv, val_s))
    p('buffer_store_dword v%d, v%d, s[%d:%d], s%d offen sc1' % (tmpv, voff, S_WS, S_WS + 3, foff_add_s))

def one_lane_off(p, dst, tmp, off_s=None, const=0):
    if off_s is not None: p('v_mov_b32 v%d, s%d' % (dst, off_s))
    else: p('v_mov_b32 v%d, %d' % (dst, const))
    p('v_mov_b32 v%d, 0x7ff00000' % tmp); p('v_cmp_eq_u32 vcc, 0, v0'); p('v_cndmask_b32 v%d, v%d, v%d, vcc' % (dst, tmp, dst))

def tr_base(p, dst, rowbytes, rowmul, stg_s, t1, t2):
    p('v_lshrrev_b32 v%d, 4, v1' % t1); p('v_mul_u32_u24 v%d, %d, v%d' % (t1, rowmul, t1))
    p('v_bfe_u32 v%d, v1, 2, 2' % t2); p('v_add_u32 v%d, v%d, v%d' % (t1, t1, t2))
    p('v_mul_u32_u24 v%d, %d, v%d' % (t1, rowbytes, t1)); p('v_and_b32 v%d, 3, v1' % t2); p('v_lshlrev_b32 v%d, 3, v%d' % (t2, t2))
    p('v_add_u32 v%d, v%d, v%d' % (dst, t1, t2)); p('v_add_u32 v%d, s%d, v%d' % (dst, stg_s, dst))

class WStream:
    def __init__(self, p, lg, wres_v, base):
        self.p = p; self.lg = lg; self.v = wres_v; self.base = base
    def load(self, k):
        b = self.base + 8 * (k & 1)
        self.p('ds_read_b128 %s, v%d offset:%d' % (vr(b, 4), self.v, k * 2048)); self.lg.issue(('w', k))
        self.p('ds_read_b128 %s, v%d offset:%d' % (vr(b + 4, 4), self.v, k * 2048 + 1024)); self.lg.issue(('w', k))
    def operand(self, o, half):
        kind, n = UM[o]
        if kind == 'reg': return unit_reg(n, 4 * half, 4)
        self.lg.wait(('w', n))
        return vr(self.base + 8 * (n & 1) + 4 * half, 4)
    def done(self, o, wrap=True):
        kind, n = UM[o]
        if kind == 'lds':
            if n + 2 < 12: self.load(n + 2)
            elif wrap: self.load(n + 2 - 12)

S_SEG = S_STEP
S_HO = 26; S_LB = 27; S_LB1 = 28; S_LB2 = 29; S_OUT = 30; S_FL = 44; S_VAL = 45

def gen_AP(p, st=False):
    lg = Cnt(p, 'lgkmcnt', 15); vm = Cnt(p, 'vmcnt', 63)
    h = S_IDX
    p('s_load_dwordx2 s[%d:%d], s[0:1], %d' % (S_W1, S_W1 + 1, KA['Wq'])); p('s_load_dwordx2 s[%d:%d], s[0:1], %d' % (S_W2, S_W2 + 1, KA['Wk']))
    common_lane_setup(p)
    p('s_waitcnt lgkmcnt(0)')
    p('s_cmp_ge_u32 s%d, 2' % S_WAVE)
    p('s_cselect_b32 s%d, s%d, s%d' % (S_W1, S_W2, S_W1)); p('s_cselect_b32 s%d, s%d, s%d' % (S_W1 + 1, S_W2 + 1, S_W1 + 1))
    p('s_mov_b32 s%d, 0x%x' % (S_W1 + 2, 640 * 12288)); p('s_mov_b32 s%d, 0x00020000' % (S_W1 + 3))
    one_lane_off(p, 8, 80, off_s=None, const=0); p('s_lshl_b32 s%d, s%d, %d' % (S_T0, h, FSH)); p('s_add_u32 s%d, s%d, %d' % (S_FL, S_T0, F_QK))
    p('s_mul_i32 s%d, s%d, 24576' % (S_T0, S_WAVE)); p('s_add_u32 s%d, s%d, 65536' % (S_T0, S_T0)); p('v_add_u32 v15, s%d, v2' % S_T0)
    p('s_lshl_b32 s%d, s%d, 14' % (S_T4, S_WAVE))
    voffs = [80, 81, 82]
    stage_offsets(p, voffs, 6, 12288, 1, 83, 84)
    tr_base(p, 85, 96, 8, S_T4, 83, 84)
    p('s_mul_i32 s%d, s%d, 384' % (S_T5, h)); p('s_and_b32 s%d, s%d, 1' % (S_T0, S_WAVE)); p('s_mul_i32 s%d, s%d, 192' % (S_T0, S_T0)); p('s_add_u32 s%d, s%d, s%d' % (S_T5, S_T5, S_T0))
    jobs = []
    for u in range(20):
        for ch in range(2):
            def soff(dst, u=u, ch=ch): p('s_add_u32 s%d, s%d, %d' % (dst, S_T5, u * 32 * 12288 + ch * 96))
            dests = []
            for xx in range(3):
                x = ch * 3 + xx
                kind, n = UM[(u >> 1) * 6 + x]; half = u & 1
                if kind == 'reg': dests.append((xx * 32, ('reg', unit_reg(n, 4 * half, 2), unit_reg(n, 4 * half + 2, 2))))
                else: dests.append((xx * 32, ('lds', n * 2048 + half * 1024)))
            jobs.append(dict(srd=S_W1, soff=soff, dests=dests))
    load_weights_type1(p, jobs, 85, 3072, 5, voffs, 3, 96, lg, vm, 15, 88, S_T4)
    p('s_barrier')
    stamp(p, 1, st)
    p('s_mul_i32 s%d, s%d, 24576' % (S_OUT, h)); p('s_lshr_b32 s%d, s%d, 1' % (S_T0, S_WAVE)); p('s_mul_i32 s%d, s%d, 12288' % (S_T0, S_T0)); p('s_add_u32 s%d, s%d, s%d' % (S_OUT, S_OUT, S_T0))
    p('s_and_b32 s%d, s%d, 1' % (S_T0, S_WAVE)); p('s_mul_i32 s%d, s%d, 3072' % (S_T0, S_T0)); p('s_add_u32 s%d, s%d, s%d' % (S_OUT, S_OUT, S_T0)); p('s_add_u32 s%d, s%d, %d' % (S_OUT, S_OUT, OFF_QK))
    p('s_lshr_b32 s%d, s%d, 1' % (S_T0, S_WAVE)); p('s_and_b32 s%d, s%d, 1' % (S_T1, S_WAVE)); p('s_mul_i32 s%d, s%d, 5120' % (S_T1, S_T1))
    p('s_mul_i32 s%d, s%d, 20480' % (S_T2, S_T0)); p('s_add_u32 s%d, s%d, s%d' % (S_T5, S_T2, S_T1)); p('s_add_u32 s%d, s%d, %d' % (S_T5, S_T5, OFF_H))
    p('s_mul_i32 s%d, s%d, 10240' % (S_T2, S_T0)); p('s_add_u32 s%d, s%d, s%d' % (S_T6, S_T2, S_T1))
    def dma(slot_s, goff_s):
        for i in range(5):
            p('s_add_u32 s%d, s%d, s%d' % (S_T0, slot_s, S_T6));
            if i: p('s_add_u32 s%d, s%d, %d' % (S_T0, S_T0, i * 1024))
            p('s_mov_b32 m0, s%d' % S_T0)
            p('s_add_u32 s%d, s%d, %d' % (S_T1, goff_s, i * 1024))
            p('buffer_load_dwordx4 v2, s[%d:%d], s%d offen lds' % (S_WS, S_WS + 3, S_T1))
    p('s_mov_b32 s%d, 0' % S_LB); p('s_mov_b32 s%d, 20480' % S_LB1); p('s_mov_b32 s%d, 40960' % S_LB2)
    p('s_mov_b32 s%d, s%d' % (S_HO, S_T5))
    dma(S_LB, S_HO); p('s_add_u32 s%d, s%d, 10240' % (S_HO, S_HO)); dma(S_LB1, S_HO)
    p('s_add_u32 s%d, s%d, %d' % (S_HO, S_HO, 40960 - 10240))
    ws = WStream(p, lg, 15, 80)
    ACC = 16; HF = 64; OUT = 96
    p('s_mov_b32 s%d, 0' % S_SEG)
    ws.load(0); ws.load(1)
    first = p.newlabel('LAPf')
    p('s_waitcnt vmcnt(5)')
    p('s_branch %s' % first)
    loop = p.newlabel('LAPl'); p.label(loop)
    p('s_waitcnt vmcnt(12)')
    p.label(first)
    lg.q = [('w', 0), ('w', 0), ('w', 1), ('w', 1)]
    for hf in range(2):
        if hf == 1: p('s_waitcnt vmcnt(5)')
        p('s_barrier')
        if hf == 1:
            flag_store(p, 8, S_FL, S_SEG, 9)
        dma(S_LB2, S_HO)
        p('s_add_u32 s%d, s%d, %d' % (S_HO, S_HO, 10240 if hf == 0 else 40960 - 10240))
        p('v_add_u32 v10, s%d, v2' % S_LB)
        def hread(uu):
            b = HF + 8 * (uu & 1)
            for tau in range(2):
                p('ds_read_b128 %s, v10 offset:%d' % (vr(b + 4 * tau, 4), tau * 10240 + uu * 1024)); lg.issue(('h', uu))
        hread(0)
        for uu in range(10):
            u = 10 * hf + uu; t = u >> 1; half = u & 1
            if uu + 1 < 10: hread(uu + 1)
            lg.wait(('h', uu))
            for x in range(6):
                o = t * 6 + x
                wop = ws.operand(o, half)
                for tau in range(2):
                    a = ACC + 8 * x + 4 * tau
                    p('v_mfma_f32_16x16x32_bf16 %s, %s, %s, %s' % (vr(a, 4), wop, vr(HF + 8 * (uu & 1) + 4 * tau, 4), '0' if u == 0 else vr(a, 4)))
                if half == 1: ws.done(o)
        p('s_mov_b32 s%d, s%d' % (S_T0, S_LB)); p('s_mov_b32 s%d, s%d' % (S_LB, S_LB1)); p('s_mov_b32 s%d, s%d' % (S_LB1, S_LB2)); p('s_mov_b32 s%d, s%d' % (S_LB2, S_T0))
    for pr in range(3):
        for tau in range(2):
            o = OUT + 4 * ((pr * 2 + tau) % 6)
            a0 = ACC + 8 * (2 * pr) + 4 * tau; a1 = ACC + 8 * (2 * pr + 1) + 4 * tau
            p('v_cvt_pk_bf16_f32 v%d, v%d, v%d' % (o, a0, a0 + 1)); p('v_cvt_pk_bf16_f32 v%d, v%d, v%d' % (o + 1, a0 + 2, a0 + 3))
            p('v_cvt_pk_bf16_f32 v%d, v%d, v%d' % (o + 2, a1, a1 + 1)); p('v_cvt_pk_bf16_f32 v%d, v%d, v%d' % (o + 3, a1 + 2, a1 + 3))
            p('s_add_u32 s%d, s%d, %d' % (S_T0, S_OUT, tau * 6144 + pr * 1024))
            p('buffer_store_dwordx4 %s, v2, s[%d:%d], s%d offen sc1' % (vr(o, 4), S_WS, S_WS + 3, S_T0))
    p('s_add_u32 s%d, s%d, %d' % (S_OUT, S_OUT, 32 * 24576))
    p('s_add_u32 s%d, s%d, 1' % (S_SEG, S_SEG)); p('s_cmp_lt_u32 s%d, s%d' % (S_SEG, S_NST)); p('s_cbranch_scc1 %s' % loop)
    p('s_waitcnt vmcnt(0) lgkmcnt(0)'); p('s_barrier')
    flag_store(p, 8, S_FL, S_SEG, 9)

BP_H = 0; BP_VX = 40960
def gen_BP(p, st=False):
    lg = Cnt(p, 'lgkmcnt', 15); vm = Cnt(p, 'vmcnt', 63)
    h = S_IDX
    srd(p, S_W1, KA['Wv'], 640 * 12288); srd(p, S_W2, KA['Wo'], 32 * 192 * 1280)
    common_lane_setup(p)
    p('s_waitcnt lgkmcnt(0)')
    one_lane_off(p, 8, 80, off_s=None, const=0); p('s_lshl_b32 s%d, s%d, %d' % (S_T0, h, FSH)); p('s_add_u32 s%d, s%d, %d' % (S_FL, S_T0, F_VO))
    p('s_mul_i32 s%d, s%d, 24576' % (S_T0, S_WAVE)); p('s_add_u32 s%d, s%d, 65536' % (S_T0, S_T0)); p('v_add_u32 v15, s%d, v2' % S_T0)
    p('s_lshl_b32 s%d, s%d, 14' % (S_T4, S_WAVE))
    voffs = [80, 81, 82]
    stage_offsets(p, voffs, 6, 12288, 1, 83, 84)
    tr_base(p, 85, 96, 8, S_T4, 83, 84)
    p('s_mul_i32 s%d, s%d, 384' % (S_T5, h)); p('s_mul_i32 s%d, s%d, 96' % (S_T0, S_WAVE)); p('s_add_u32 s%d, s%d, s%d' % (S_T5, S_T5, S_T0))
    jobs = []
    for u in range(20):
        def soff(dst, u=u): p('s_add_u32 s%d, s%d, %d' % (dst, S_T5, u * 32 * 12288))
        dests = []
        for x in range(3):
            kind, n = UM[(u >> 1) * 3 + x]; half = u & 1
            if kind == 'reg': dests.append((x * 32, ('reg', unit_reg(n, 4 * half, 2), unit_reg(n, 4 * half + 2, 2))))
            else: dests.append((x * 32, ('lds', n * 2048 + half * 1024)))
        jobs.append(dict(srd=S_W1, soff=soff, dests=dests))
    load_weights_type1(p, jobs, 85, 3072, 5, voffs, 3, 96, lg, vm, 15, 88, S_T4)
    voffs = [100, 101, 102, 103, 104]
    stage_offsets(p, voffs, 10, 1280, 1, 83, 84)
    tr_base(p, 86, 160, 4, S_T4, 83, 84)
    p('s_mul_i32 s%d, s%d, %d' % (S_T5, h, 192 * 1280)); p('s_mul_i32 s%d, s%d, 320' % (S_T0, S_WAVE)); p('s_add_u32 s%d, s%d, s%d' % (S_T5, S_T5, S_T0))
    jobs = []
    for u in range(6):
        for ch in range(2):
            def soff(dst, u=u, ch=ch): p('s_add_u32 s%d, s%d, %d' % (dst, S_T5, u * 32 * 1280 + ch * 160))
            dests = []
            for x in range(5):
                cc = ch * 5 + x
                kind, n = UM[30 + cc * 3 + (u >> 1)]; half = u & 1
                if kind == 'reg': dests.append((x * 32, ('reg', unit_reg(n, 4 * half, 2), unit_reg(n, 4 * half + 2, 2))))
                else: dests.append((x * 32, ('lds', n * 2048 + half * 1024)))
            jobs.append(dict(srd=S_W2, soff=soff, dests=dests))
    load_weights_type1(p, jobs, 86, 5120, 3, voffs, 5, 160, lg, vm, 15, 88, S_T4, zrows=16)
    p('s_barrier')
    stamp(p, 1, st)
    for x in range(3):
        p('s_mul_i32 s%d, s%d, 3' % (S_T0, S_WAVE)); p('s_add_u32 s%d, s%d, %d' % (S_T0, S_T0, x))
        p('s_lshr_b32 s%d, s%d, 1' % (S_T1, S_T0)); p('s_lshl_b32 s%d, s%d, 10' % (S_T1, S_T1))
        p('s_and_b32 s%d, s%d, 1' % (S_T0, S_T0)); p('s_lshl_b32 s%d, s%d, 3' % (S_T0, S_T0)); p('s_add_u32 s%d, s%d, s%d' % (S_T0, S_T0, S_T1)); p('s_add_u32 s%d, s%d, %d' % (S_T0, S_T0, BP_VX))
        p('v_add_u32 v%d, s%d, v2' % (10 + x, S_T0))
    p('v_add_u32 v13, %d, v2' % BP_VX)
    p('s_mul_i32 s%d, s%d, 10240' % (S_T6, S_WAVE)); p('s_add_u32 s%d, s%d, %d' % (S_HO, S_T6, OFF_H))
    def dma():
        for i in range(10):
            p('s_add_u32 s%d, s%d, %d' % (S_T0, S_T6, BP_H + i * 1024)); p('s_mov_b32 m0, s%d' % S_T0)
            p('s_add_u32 s%d, s%d, %d' % (S_T1, S_HO, i * 1024))
            p('buffer_load_dwordx4 v2, s[%d:%d], s%d offen lds' % (S_WS, S_WS + 3, S_T1))
    dma()
    p('s_mul_i32 s%d, s%d, %d' % (S_OUT, S_WAVE, 10 * 32768)); p('s_lshl_b32 s%d, s%d, 10' % (S_T0, h)); p('s_add_u32 s%d, s%d, s%d' % (S_OUT, S_OUT, S_T0)); p('s_add_u32 s%d, s%d, %d' % (S_OUT, S_OUT, OFF_VO))
    ws = WStream(p, lg, 15, 56)
    ACCV = 16; HF = 40; VF = 72; ACCO = 16; OUT = 32
    p('s_mov_b32 s%d, 0' % S_SEG)
    ws.load(0); ws.load(1)
    first = p.newlabel('LBPf')
    p('s_waitcnt vmcnt(0)'); p('s_branch %s' % first)
    loop = p.newlabel('LBPl'); p.label(loop)
    p('s_waitcnt vmcnt(10)')
    p.label(first)
    lg.q = [('w', 0), ('w', 0), ('w', 1), ('w', 1)]
    p('s_barrier')
    def hread(u):
        b = HF + 8 * (u & 1)
        for tau in range(2):
            p('ds_read_b128 %s, v2 offset:%d' % (vr(b + 4 * tau, 4), BP_H + tau * 20480 + u * 1024)); lg.issue(('h', u))
    hread(0)
    for u in range(20):
        t = u >> 1; half = u & 1
        if u + 1 < 20: hread(u + 1)
        lg.wait(('h', u))
        for x in range(3):
            o = t * 3 + x
            wop = ws.operand(o, half)
            for tau in range(2):
                a = ACCV + 8 * x + 4 * tau
                p('v_mfma_f32_16x16x32_bf16 %s, %s, %s, %s' % (vr(a, 4), wop, vr(HF + 8 * (u & 1) + 4 * tau, 4), '0' if u == 0 else vr(a, 4)))
            if half == 1: ws.done(o)
    for x in range(3):
        for tau in range(2):
            a = ACCV + 8 * x + 4 * tau
            p('v_cvt_pk_bf16_f32 v%d, v%d, v%d' % (a, a, a + 1)); p('v_cvt_pk_bf16_f32 v%d, v%d, v%d' % (a + 1, a + 2, a + 3))
            p('ds_write_b64 v%d, %s offset:%d' % (10 + x, vr(a, 2), tau * 6144)); lg.issue('vx')
    p('s_waitcnt vmcnt(0)')
    lg.wait('vx')
    p('s_barrier')
    flag_store(p, 8, S_FL, S_SEG, 9)
    p('s_add_u32 s%d, s%d, 40960' % (S_HO, S_HO)); dma()
    for tau in range(2):
        for u in range(6):
            p('ds_read_b128 %s, v13 offset:%d' % (vr(VF + 4 * (tau * 6 + u), 4), tau * 6144 + u * 1024)); lg.issue(('v', tau * 6 + u))
    def epi(cc):
        a = ACCO + 8 * (cc & 1); o = OUT + 4 * (cc & 1)
        p('v_cvt_pk_bf16_f32 v%d, v%d, v%d' % (o, a, a + 1)); p('v_cvt_pk_bf16_f32 v%d, v%d, v%d' % (o + 1, a + 2, a + 3))
        p('v_cvt_pk_bf16_f32 v%d, v%d, v%d' % (o + 2, a + 4, a + 5)); p('v_cvt_pk_bf16_f32 v%d, v%d, v%d' % (o + 3, a + 6, a + 7))
        p('s_add_u32 s%d, s%d, %d' % (S_T0, S_OUT, cc * 32768))
        p('buffer_store_dwordx4 %s, v2, s[%d:%d], s%d offen sc1' % (vr(o, 4), S_WS, S_WS + 3, S_T0))
    for cc in range(10):
        for u in range(6):
            o = 30 + cc * 3 + (u >> 1); half = u & 1
            wop = ws.operand(o, half)
            for tau in range(2):
                if cc == 0: lg.wait(('v', tau * 6 + u))
                a = ACCO + 8 * (cc & 1) + 4 * tau
                p('v_mfma_f32_16x16x32_bf16 %s, %s, %s, %s' % (vr(a, 4), vr(VF + 4 * (tau * 6 + u), 4), wop, '0' if u == 0 else vr(a, 4)))
            if half == 1: ws.done(o)
            if u == 2 and cc > 0: epi(cc - 1)
    epi(9)
    p('s_add_u32 s%d, s%d, %d' % (S_OUT, S_OUT, 40 * 32768))
    p('s_add_u32 s%d, s%d, 1' % (S_SEG, S_SEG)); p('s_cmp_lt_u32 s%d, s%d' % (S_SEG, S_NST)); p('s_cbranch_scc1 %s' % loop)
    p('s_waitcnt vmcnt(0) lgkmcnt(0)'); p('s_barrier')
    flag_store(p, 8, S_FL, S_SEG, 9)
```

```python
from core import *
import core, pro
from roles2 import flag_store, one_lane_off, tr_base
S_SEG = S_STEP
S_HO = 26; S_OUT = 30; S_FL = 44; S_SET = 45; S_J = 27

def lane_flag_off(p, dst, n, tmp):
    p('v_min_u32 v%d, %d, v1' % (dst, n - 1)); p('v_lshlrev_b32 v%d, 2, v%d' % (dst, dst))

def gen_L2(p, st=False):
    common_lane_setup(p)
    p('s_and_b32 s%d, s%d, 1' % (S_J, S_IDX)); p('s_lshr_b32 s%d, s%d, 1' % (S_SET, S_IDX))
    one_lane_off(p, 8, 9, const=0)
    p('s_lshl_b32 s%d, s%d, 2' % (S_T0, S_IDX)); p('s_add_u32 s%d, s%d, %d' % (S_FL, S_T0, F_H2))
    lane_flag_off(p, 0, 40, 9)
    pro.ln_setup(p, 4)
    X0 = 16; D0 = 36; A0 = 76; B0 = 116; T = 156
    pro.ln_load_mod(p, 4, A0, B0, 4, 3, D0)
    stamp(p, 1, st)
    p('s_mov_b32 s%d, s%d' % (S_SEG, S_SET))
    loop = p.newlabel('LL2'); p.label(loop)
    p('s_add_u32 s%d, s%d, 1' % (S_T3, S_SEG)); wait_flags(p, 0, F_X1, S_T3, 7)
    p('s_lshl_b32 s%d, s%d, 1' % (S_T0, S_SEG)); p('s_add_u32 s%d, s%d, s%d' % (S_T0, S_T0, S_J)); p('s_mul_i32 s%d, s%d, %d' % (S_T1, S_T0, 16 * 1280)); p('s_add_u32 s%d, s%d, %d' % (S_T1, S_T1, OFF_X1))
    for k in range(5): p('buffer_load_dwordx4 %s, v4, s[%d:%d], s%d offen offset:%d sc1' % (vr(X0 + 4 * k, 4), S_WS, S_WS + 3, S_T1, k * 64))
    p('s_mul_i32 s%d, s%d, 20480' % (S_OUT, S_T0)); p('s_mul_i32 s%d, s%d, 5120' % (S_T1, S_WAVE)); p('s_add_u32 s%d, s%d, s%d' % (S_OUT, S_OUT, S_T1)); p('s_add_u32 s%d, s%d, %d' % (S_OUT, S_OUT, OFF_H2))
    p('s_waitcnt vmcnt(0)')
    pro.ln_compute(p, X0, D0, A0, B0, 6, 0, T)
    for k in range(5):
        if k == 4: p('s_add_u32 s%d, s%d, 4096' % (S_OUT, S_OUT))
        p('buffer_store_dwordx4 %s, v2, s[%d:%d], s%d offen offset:%d sc1' % (vr(X0 + 4 * k, 4), S_WS, S_WS + 3, S_OUT, (k % 4) * 1024))
    p('s_waitcnt vmcnt(0)'); p('s_barrier')
    p('s_add_u32 s%d, s%d, 1' % (S_T3, S_SEG)); flag_store(p, 8, S_FL, S_T3, 9)
    p('s_add_u32 s%d, s%d, 2' % (S_SEG, S_SEG)); p('s_cmp_lt_u32 s%d, s%d' % (S_SEG, S_NST)); p('s_cbranch_scc1 %s' % loop)

def gen_F1(p, st=False):
    lg = Cnt(p, 'lgkmcnt', 15); vm = Cnt(p, 'vmcnt', 63)
    srd(p, S_W1, KA['wg'], 640 * 3072); srd(p, S_W2, KA['wu'], 640 * 3072)
    common_lane_setup(p)
    p('s_waitcnt lgkmcnt(0)')
    p('s_cmp_ge_u32 s%d, 24' % S_IDX); p('s_cselect_b32 s%d, 1, 0' % S_SET)
    p('s_mul_i32 s%d, s%d, 24' % (S_T0, S_SET)); p('s_sub_u32 s%d, s%d, s%d' % (S_J, S_IDX, S_T0))
    one_lane_off(p, 8, 9, const=0)
    p('s_lshl_b32 s%d, s%d, 2' % (S_T0, S_IDX)); p('s_add_u32 s%d, s%d, %d' % (S_FL, S_T0, F_HM))
    p('v_and_b32 v0, 1, v1'); p('s_lshl_b32 s%d, s%d, 1' % (S_T0, S_SET)); p('v_add_u32 v0, s%d, v0' % S_T0); p('v_lshlrev_b32 v0, 2, v0')
    p('s_lshl_b32 s%d, s%d, 14' % (S_T4, S_WAVE))
    voffs = [80, 81]
    stage_offsets(p, voffs, 4, 3072, 1, 83, 84)
    tr_base(p, 85, 64, 8, S_T4, 83, 84)
    p('s_lshl_b32 s%d, s%d, 7' % (S_T5, S_J)); p('s_lshr_b32 s%d, s%d, 1' % (S_T0, S_WAVE)); p('s_lshl_b32 s%d, s%d, 6' % (S_T0, S_T0)); p('s_add_u32 s%d, s%d, s%d' % (S_T5, S_T5, S_T0))
    def wreg(mat, x, u, lo=0, n=4):
        f = (u * 4 + mat * 2 + x)
        return ar(4 * f + lo, n) if f < 64 else vr(128 + 4 * (f - 64) + lo, n)
    jobs = []
    for u in range(20):
        for mat in range(2):
            def soff(dst, u=u): p('s_add_u32 s%d, s%d, %d' % (dst, S_T5, u * 32 * 3072))
            dests = [(x * 32, ('reg', wreg(mat, x, u, 0, 2), wreg(mat, x, u, 2, 2))) for x in range(2)]
            jobs.append(dict(srd=S_W1 if mat == 0 else S_W2, soff=soff, dests=dests))
    load_weights_type1(p, jobs, 85, 2048, 8, voffs, 2, 64, lg, vm, 15, 88, S_T4)
    p('s_barrier')
    stamp(p, 1, st)
    p('s_mul_i32 s%d, s%d, 10240' % (S_T6, S_WAVE))
    p('s_and_b32 s%d, s%d, 1' % (S_T0, S_WAVE)); p('s_mul_i32 s%d, s%d, 20480' % (S_T0, S_T0)); p('v_add_u32 v10, s%d, v2' % S_T0)
    ACC = 16; HF = 32; OUT = 48
    p('s_mov_b32 s%d, s%d' % (S_SEG, S_SET))
    loop = p.newlabel('LF1'); p.label(loop)
    p('s_add_u32 s%d, s%d, 1' % (S_T3, S_SEG)); wait_flags(p, 0, F_H2, S_T3, 7)
    p('s_barrier')
    p('s_mul_i32 s%d, s%d, 40960' % (S_HO, S_SEG)); p('s_add_u32 s%d, s%d, s%d' % (S_HO, S_HO, S_T6)); p('s_add_u32 s%d, s%d, %d' % (S_HO, S_HO, OFF_H2))
    for i in range(10):
        p('s_add_u32 s%d, s%d, %d' % (S_T0, S_T6, i * 1024)); p('s_mov_b32 m0, s%d' % S_T0)
        p('s_add_u32 s%d, s%d, %d' % (S_T1, S_HO, i * 1024))
        p('buffer_load_dwordx4 v2, s[%d:%d], s%d offen sc1 lds' % (S_WS, S_WS + 3, S_T1))
    p('s_waitcnt vmcnt(0)'); p('s_barrier')
    lg.reset()
    def hread(u):
        p('ds_read_b128 %s, v10 offset:%d' % (vr(HF + 4 * (u % 4), 4), u * 1024)); lg.issue(('h', u))
    for u in range(3): hread(u)
    for u in range(20):
        if u + 3 < 20: hread(u + 3)
        lg.wait(('h', u))
        for mat in range(2):
            for x in range(2):
                a = ACC + 8 * mat + 4 * x
                p('v_mfma_f32_16x16x32_bf16 %s, %s, %s, %s' % (vr(a, 4), wreg(mat, x, u), vr(HF + 4 * (u % 4), 4), '0' if u == 0 else vr(a, 4)))
    for k in range(8): p('v_mul_f32 v%d, v%d, v%d' % (ACC + k, ACC + k, ACC + 8 + k))
    for k in range(4): p('v_cvt_pk_bf16_f32 v%d, v%d, v%d' % (OUT + k, ACC + 2 * k, ACC + 2 * k + 1))
    p('s_mul_i32 s%d, s%d, 98304' % (S_OUT, S_SEG)); p('s_and_b32 s%d, s%d, 1' % (S_T0, S_WAVE)); p('s_mul_i32 s%d, s%d, 49152' % (S_T0, S_T0)); p('s_add_u32 s%d, s%d, s%d' % (S_OUT, S_OUT, S_T0))
    p('s_lshl_b32 s%d, s%d, 1' % (S_T0, S_J)); p('s_lshr_b32 s%d, s%d, 1' % (S_T1, S_WAVE)); p('s_add_u32 s%d, s%d, s%d' % (S_T0, S_T0, S_T1)); p('s_lshl_b32 s%d, s%d, 10' % (S_T0, S_T0))
    p('s_add_u32 s%d, s%d, s%d' % (S_OUT, S_OUT, S_T0)); p('s_add_u32 s%d, s%d, %d' % (S_OUT, S_OUT, OFF_HM))
    p('buffer_store_dwordx4 %s, v2, s[%d:%d], s%d offen sc1' % (vr(OUT, 4), S_WS, S_WS + 3, S_OUT))
    p('s_waitcnt vmcnt(0)'); p('s_barrier')
    p('s_add_u32 s%d, s%d, 1' % (S_T3, S_SEG)); flag_store(p, 8, S_FL, S_T3, 9)
    p('s_add_u32 s%d, s%d, 2' % (S_SEG, S_SEG)); p('s_cmp_lt_u32 s%d, s%d' % (S_SEG, S_NST)); p('s_cbranch_scc1 %s' % loop)

def gen_F2(p, st=False):
    lg = Cnt(p, 'lgkmcnt', 15); vm = Cnt(p, 'vmcnt', 63)
    srd(p, S_W1, KA['wd'], 1536 * 1280); srd(p, S_W2, KA['out'], 2048 * 1280)
    common_lane_setup(p)
    p('s_waitcnt lgkmcnt(0)')
    p('s_cmp_ge_u32 s%d, 10' % S_IDX); p('s_cselect_b32 s%d, 1, 0' % S_SET)
    p('s_mul_i32 s%d, s%d, 10' % (S_T0, S_SET)); p('s_sub_u32 s%d, s%d, s%d' % (S_J, S_IDX, S_T0))
    p('v_min_u32 v0, 23, v1'); p('s_mul_i32 s%d, s%d, 24' % (S_T0, S_SET)); p('v_add_u32 v0, s%d, v0' % S_T0); p('v_lshlrev_b32 v0, 2, v0')
    p('s_lshl_b32 s%d, s%d, 14' % (S_T4, S_WAVE))
    voffs = [80]
    stage_offsets(p, voffs, 2, 1280, 1, 83, 84)
    tr_base(p, 85, 32, 4, S_T4, 83, 84)
    p('s_lshl_b32 s%d, s%d, 2' % (S_T5, S_J)); p('s_add_u32 s%d, s%d, s%d' % (S_T5, S_T5, S_WAVE)); p('s_lshl_b32 s%d, s%d, 5' % (S_T5, S_T5))
    p('s_mov_b32 s%d, s%d' % (S_T7 + 1, S_T5))
    jobs = []
    for u in range(48):
        def soff(dst, u=u): p('s_add_u32 s%d, s%d, %d' % (dst, S_T5, u * 32 * 1280))
        jobs.append(dict(srd=S_W1, soff=soff, dests=[(0, ('reg', ar(4 * u, 2), ar(4 * u + 2, 2)))]))
    load_weights_type1(p, jobs, 85, 1024, 16, voffs, 1, 32, lg, vm, 15, 88, S_T4, zrows=16)
    p('s_barrier')
    p('v_lshrrev_b32 v9, 4, v1'); p('v_lshlrev_b32 v9, 3, v9'); p('v_add_u32 v9, s%d, v9' % S_T5)
    p('v_and_b32 v11, 15, v1'); p('v_mul_u32_u24 v11, 1280, v11'); p('v_add_u32 v11, v11, v9')
    p('s_mov_b32 s%d, %d' % (S_T0, OFF_MOD + 5 * 1280))
    p('buffer_load_dwordx2 v[30:31], v9, s[%d:%d], s%d offen' % (S_WS, S_WS + 3, S_T0))
    p('s_waitcnt vmcnt(0)')
    p('v_lshlrev_b32 v24, 16, v30'); p('v_and_b32 v25, 0xffff0000, v30'); p('v_lshlrev_b32 v26, 16, v31'); p('v_and_b32 v27, 0xffff0000, v31')
    stamp(p, 1, st)
    p('s_mul_i32 s%d, s%d, 24576' % (S_T6, S_WAVE))
    ACC = 16; HF = 32; XR = 64
    p('s_mov_b32 s%d, s%d' % (S_SEG, S_SET))
    loop = p.newlabel('LF2'); p.label(loop)
    p('s_add_u32 s%d, s%d, 1' % (S_T3, S_SEG)); wait_flags(p, 0, F_HM, S_T3, 7)
    p('s_barrier')
    p('s_mul_i32 s%d, s%d, 98304' % (S_HO, S_SEG)); p('s_add_u32 s%d, s%d, %d' % (S_HO, S_HO, OFF_HM))
    p('s_and_b32 s%d, s%d, 1' % (S_T0, S_WAVE)); p('s_mul_i32 s%d, s%d, 49152' % (S_T0, S_T0)); p('s_lshr_b32 s%d, s%d, 1' % (S_T1, S_WAVE)); p('s_mul_i32 s%d, s%d, 24576' % (S_T1, S_T1))
    p('s_add_u32 s%d, s%d, s%d' % (S_T6, S_T0, S_T1)); p('s_add_u32 s%d, s%d, s%d' % (S_HO, S_HO, S_T6))
    for i in range(24):
        p('s_add_u32 s%d, s%d, %d' % (S_T0, S_T6, i * 1024)); p('s_mov_b32 m0, s%d' % S_T0)
        p('s_add_u32 s%d, s%d, %d' % (S_T1, S_HO, i * 1024))
        p('buffer_load_dwordx4 v2, s[%d:%d], s%d offen sc1 lds' % (S_WS, S_WS + 3, S_T1))
    p('s_mul_i32 s%d, s%d, %d' % (S_OUT, S_SEG, 32 * 1280)); p('s_add_u32 s%d, s%d, %d' % (S_T1, S_OUT, OFF_X1))
    p('buffer_load_dwordx2 %s, v11, s[%d:%d], s%d offen sc1' % (vr(XR, 2), S_WS, S_WS + 3, S_T1))
    p('s_add_u32 s%d, s%d, %d' % (S_T1, S_T1, 16 * 1280))
    p('buffer_load_dwordx2 %s, v11, s[%d:%d], s%d offen sc1' % (vr(XR + 2, 2), S_WS, S_WS + 3, S_T1))
    p('s_waitcnt vmcnt(0)'); p('s_barrier')
    lg.reset()
    def hread(u):
        for tau in range(2):
            p('ds_read_b128 %s, v12 offset:%d' % (vr(HF + 8 * (u % 4) + 4 * tau, 4), u * 1024) if tau == 0 else
              'ds_read_b128 %s, v13 offset:%d' % (vr(HF + 8 * (u % 4) + 4 * tau, 4), u * 1024))
            lg.issue(('h', u))
    p('v_mov_b32 v12, v2'); p('v_add_u32 v13, 49152, v2')
    for u in range(3): hread(u)
    for u in range(48):
        if u + 3 < 48: hread(u + 3)
        lg.wait(('h', u))
        for tau in range(2):
            a = ACC + 4 * tau
            p('v_mfma_f32_16x16x32_bf16 %s, %s, %s, %s' % (vr(a, 4), ar(4 * u, 4), vr(HF + 8 * (u % 4) + 4 * tau, 4), '0' if u == 0 else vr(a, 4)))
    for tau in range(2):
        a = ACC + 4 * tau; x = XR + 2 * tau; t = 68
        p('v_lshlrev_b32 v%d, 16, v%d' % (t, x)); p('v_and_b32 v%d, 0xffff0000, v%d' % (t + 1, x)); p('v_lshlrev_b32 v%d, 16, v%d' % (t + 2, x + 1)); p('v_and_b32 v%d, 0xffff0000, v%d' % (t + 3, x + 1))
        for r in range(4): p('v_fmac_f32 v%d, v%d, v%d' % (t + r, 24 + r, a + r))
        p('v_cvt_pk_bf16_f32 v%d, v%d, v%d' % (x, t, t + 1)); p('v_cvt_pk_bf16_f32 v%d, v%d, v%d' % (x + 1, t + 2, t + 3))
        if tau: p('s_add_u32 s%d, s%d, %d' % (S_OUT, S_OUT, 16 * 1280))
        p('buffer_store_dwordx2 %s, v11, s[%d:%d], s%d offen' % (vr(x, 2), S_W2, S_W2 + 3, S_OUT))
    p('s_add_u32 s%d, s%d, 2' % (S_SEG, S_SEG)); p('s_cmp_lt_u32 s%d, s%d' % (S_SEG, S_NST)); p('s_cbranch_scc1 %s' % loop)
```

```python
import sys
sys.path.insert(0, 'gen')
import core, main
core.HIST = False; core.PROF = False
core.POLL_D = 1; core.POLL_SLEEP = {'mem': 0, 'z': 0, 'p': 0}
core.DYN_PAR = True
N = main.NAME
txt, launches = main.gen_all(names=('pro0_kernel', 'pro1_kernel', N))
hdr = open('adaLN_cond__memory_aug_recurrent_mem_tr__glu_gated_bilinear__prompt.s.ref').read().split('; Override launch geometry')[0]
out = sys.argv[1] if len(sys.argv) > 1 else 'adaLN_cond__memory_aug_recurrent_mem_tr__glu_gated_bilinear__prompt.s'
open(out, 'w').write(hdr + txt)
print('wrote', out, len(hdr + txt))
```

```python
from asmlib import Prog
from layout import *

WS_BYTES = 268435456
KA = dict(x=0, mem0=8, Wq=16, Wk=24, Wv=32, Wo=40, wg=64, wu=72, wd=80, c=88, wmod=96, out=104, dbg=112, ws=120)

FS = 128
F_QK = OFF_FLAGS; F_VO = F_QK + 32 * FS; F_P = F_VO + 32 * FS; F_X1 = F_P + 32 * FS; F_H2 = F_X1 + 40 * FS; F_HM = F_H2 + 4 * FS; F_END = F_HM + 48 * FS
FSH = 7
S_WS = 4
S_W1 = 8
S_W2 = 12
S_WAVE = 16; S_IDX = 17; S_STEP = 18; S_SPIN = 19
S_T0 = 20; S_T1 = 21; S_T2 = 22; S_T3 = 23
S_MASK = 24
S_MEMO = 26; S_PO = 27; S_ZO = 28; S_QKO = 29; S_VOO = 30; S_NST = 31
S_DBG = 32
S_T4 = 34; S_T5 = 35; S_T6 = 36; S_T7 = 37
S_C = 38
S_TR0 = 40
S_TRO = 42
S_COMM = 43
PARITY = 0
DYN_PAR = False
HIST = True
SPIN_BUDGET = 400000

class Cnt:
    def __init__(self, p, name, maxv):
        self.p = p; self.name = name; self.maxv = maxv; self.q = []
    def issue(self, tag): self.q.append(tag)
    def wait(self, tag):
        if tag not in self.q: return
        i = len(self.q) - 1 - self.q[::-1].index(tag)
        n = len(self.q) - 1 - i
        n = min(n, self.maxv)
        self.p('s_waitcnt %s(%d)' % (self.name, n))
        self.q = self.q[len(self.q) - n:] if n else []
    def drain(self):
        self.p('s_waitcnt %s(0)' % self.name); self.q = []
    def reset(self): self.q = []

def srd(p, s, karg, nbytes):
    p('s_load_dwordx2 s[%d:%d], s[0:1], %d' % (s, s + 1, karg))
    p('s_mov_b32 s%d, 0x%x' % (s + 2, nbytes))
    p('s_mov_b32 s%d, 0x00020000' % (s + 3))

def vr(a, n=1): return 'v%d' % a if n == 1 else 'v[%d:%d]' % (a, a + n - 1)
def ar(a, n=1): return 'a%d' % a if n == 1 else 'a[%d:%d]' % (a, a + n - 1)

def unit_reg(rr, lo=0, n=8):
    if rr < 32: return ar(8 * rr + lo, n)
    return vr(128 + 8 * (rr - 32) + lo, n)

def unit_map():
    m = []; rr = 0
    for o in range(60):
        if o % 5 == 4: m.append(('lds', o // 5))
        else: m.append(('reg', rr)); rr += 1
    return m
UM = unit_map()

def poll_check(p, regs, tmp, done, again):
    r = list(regs)
    p('v_max3_u32 v%d, v%d, v%d, v%d' % (tmp, r[0], r[1], r[2])); r = r[3:]
    while len(r) >= 2:
        p('v_max3_u32 v%d, v%d, v%d, v%d' % (tmp, tmp, r[0], r[1])); r = r[2:]
    if r: p('v_max_u32 v%d, v%d, v%d' % (tmp, tmp, r[0]))
    p('v_cmp_eq_u32 vcc, -1, v%d' % tmp)
    p('s_cbranch_vccz %s' % done)
    p('s_cmp_eq_u32 s%d, 0' % S_SPIN)
    p('s_cbranch_scc1 %s' % done)
    p('s_sub_u32 s%d, s%d, 1' % (S_SPIN, S_SPIN))
    p('s_branch %s' % again)

POLL_D = 4
POLL_DK = {}
R_MODE = 0
POLL_SLEEP = {'mem': 1, 'z': 1, 'p': 2}
PRE_SLEEP = {'memA': 0, 'memB': 0, 'z': 0, 'p': 0}
def poll_loop(p, loads, regs, tmp, kind, pre=None):
    top = p.newlabel('Lpl'); done = p.newlabel('Lpld')
    for r in regs: p('v_mov_b32 v%d, -1' % r)
    if pre and PRE_SLEEP[pre]: p('s_sleep %d' % PRE_SLEEP[pre])
    p.label(top)
    n = loads()
    p('s_waitcnt vmcnt(%d)' % (n * (POLL_DK.get(kind, POLL_D) - 1)))
    r = list(regs)
    p('v_max3_u32 v%d, v%d, v%d, v%d' % (tmp, r[0], r[1], r[2])); r = r[3:]
    while len(r) >= 2:
        p('v_max3_u32 v%d, v%d, v%d, v%d' % (tmp, tmp, r[0], r[1])); r = r[2:]
    if r: p('v_max_u32 v%d, v%d, v%d' % (tmp, tmp, r[0]))
    p('v_cmp_eq_u32 vcc, -1, v%d' % tmp)
    p('s_cbranch_vccz %s' % done)
    if POLL_SLEEP[kind]: p('s_sleep %d' % POLL_SLEEP[kind])
    p('s_cmp_eq_u32 s%d, 0' % S_SPIN)
    p('s_cbranch_scc1 %s' % done)
    p('s_sub_u32 s%d, s%d, 1' % (S_SPIN, S_SPIN))
    p('s_branch %s' % top)
    p.label(done)

def step_offsets(p, mem_add=0, want=('mem', 'p', 'z')):
    if 'mem' in want:
        p('s_add_u32 s%d, s%d, %d' % (S_T0, S_STEP, mem_add)); p('s_and_b32 s%d, s%d, %d' % (S_T0, S_T0, MEM_RING - 1))
        p('s_lshl_b32 s%d, s%d, 15' % (S_T0, S_T0)); p('s_add_u32 s%d, s%d, s%d' % (S_MEMO, S_T0, S_COMM))
        if BLK_MEM: p('s_add_u32 s%d, s%d, %d' % (S_MEMO, S_MEMO, BLK_MEM * BLK))
    if 'p' in want:
        p('s_and_b32 s%d, s%d, %d' % (S_T0, S_STEP, P_RING - 1)); p('s_mul_i32 s%d, s%d, %d' % (S_T0, S_T0, 3 * BLK))
        p('s_add_u32 s%d, s%d, s%d' % (S_PO, S_T0, S_COMM)); p('s_add_u32 s%d, s%d, %d' % (S_PO, S_PO, BLK_P * BLK))
    if 'z' in want:
        p('s_and_b32 s%d, s%d, %d' % (S_T0, S_STEP, Z_RING - 1)); p('s_mul_i32 s%d, s%d, %d' % (S_T0, S_T0, 40 * BLK))
        p('s_add_u32 s%d, s%d, s%d' % (S_ZO, S_T0, S_COMM)); p('s_add_u32 s%d, s%d, %d' % (S_ZO, S_ZO, BLK_Z * BLK))

def comm_setup(p):
    p('s_add_u32 s%d, s%d, %d' % (S_T0, S_WS, OFF_COMM))
    p('s_sub_u32 s%d, 0, s%d' % (S_T0, S_T0)); p('s_and_b32 s%d, s%d, 0x1fffff' % (S_T0, S_T0))
    p('s_add_u32 s%d, s%d, %d' % (S_COMM, S_T0, OFF_COMM + (0 if DYN_PAR else PARITY * 8192)))

def wait_flags(p, voff, foff, need_s, tmp, sleep=2):
    top = p.newlabel('Lwf'); done = p.newlabel('Lwfd')
    p('s_mov_b32 s%d, %d' % (S_T2, foff))
    p.label(top)
    p('buffer_load_dword v%d, v%d, s[%d:%d], s%d offen sc1' % (tmp, voff, S_WS, S_WS + 3, S_T2))
    p('s_waitcnt vmcnt(0)')
    p('v_cmp_gt_u32 vcc, s%d, v%d' % (need_s, tmp))
    p('s_cbranch_vccz %s' % done)
    p('s_sleep %d' % sleep)
    p('s_cmp_eq_u32 s%d, 0' % S_SPIN); p('s_cbranch_scc1 %s' % done)
    p('s_sub_u32 s%d, s%d, 1' % (S_SPIN, S_SPIN)); p('s_branch %s' % top)
    p.label(done)

def wait_flags_w0(p, voff, foff, need_s, tmp, sleep=4):
    l = p.newlabel('Lw0'); p('s_cmp_lg_u32 s%d, 0' % S_WAVE); p('s_cbranch_scc1 %s' % l)
    wait_flags(p, voff, foff, need_s, tmp, sleep)
    p.label(l)

def dbg_srd(p, s):
    p('s_mov_b32 s%d, s%d' % (s, S_DBG)); p('s_mov_b32 s%d, s%d' % (s + 1, S_DBG + 1))
    p('s_mov_b32 s%d, 256' % (s + 2)); p('s_mov_b32 s%d, 0x00020000' % (s + 3))

def parity_probe(p):
    if not DYN_PAR: return
    l = p.newlabel('Lpp'); p('s_cmp_lg_u32 s%d, 0' % S_WAVE); p('s_cbranch_scc1 %s' % l)
    p('s_cmp_lg_u32 s%d, 0' % S_IDX); p('s_cbranch_scc1 %s' % l)
    p('v_mov_b32 v16, 0'); p('v_mov_b32 v17, -1')
    p('s_mov_b32 s48, 0'); p('s_mov_b32 s49, 0')
    for i in range(4):
        for par in range(2):
            p('s_add_u32 s%d, s%d, %d' % (S_T0, S_COMM, (112 + i) * BLK + par * 8192 + i * 256))
            p('buffer_store_dword v17, v16, s[%d:%d], s%d offen sc1' % (S_WS, S_WS + 3, S_T0))
            p('s_waitcnt vmcnt(0)')
            p('s_memtime s[50:51]'); p('s_waitcnt lgkmcnt(0)')
            p('buffer_load_dword v18, v16, s[%d:%d], s%d offen sc1' % (S_WS, S_WS + 3, S_T0))
            p('s_waitcnt vmcnt(0)')
            p('s_memtime s[52:53]'); p('s_waitcnt lgkmcnt(0)')
            p('s_sub_u32 s50, s52, s50')
            if i > 0: p('s_add_u32 s%d, s%d, s50' % (48 + par, 48 + par))
    p('s_cmp_lt_u32 s49, s48'); p('s_cselect_b32 s50, 2, 1')
    dbg_srd(p, 52)
    p('v_mov_b32 v17, s50')
    p('v_cmp_eq_u32 vcc, 0, v1'); p('v_mov_b32 v18, 0x7ff00000'); p('v_cndmask_b32 v16, v18, v16, vcc')
    p('buffer_store_dword v17, v16, s[52:55], 0 offen sc1')
    p('s_waitcnt vmcnt(0)')
    p.label(l)

def parity_wait(p):
    if not DYN_PAR: return
    dbg_srd(p, 52)
    top = p.newlabel('Lpw'); done = p.newlabel('Lpwd')
    p('v_mov_b32 v16, 0')
    p.label(top)
    p('buffer_load_dword v17, v16, s[52:55], 0 offen sc1'); p('s_waitcnt vmcnt(0)')
    p('v_readfirstlane_b32 s50, v17')
    p('s_cmp_lg_u32 s50, 0'); p('s_cbranch_scc1 %s' % done)
    p('s_sleep 4')
    p('s_cmp_eq_u32 s%d, 0' % S_SPIN); p('s_cbranch_scc1 %s' % done)
    p('s_sub_u32 s%d, s%d, 1' % (S_SPIN, S_SPIN)); p('s_branch %s' % top)
    p.label(done)
    p('s_lshr_b32 s50, s50, 1'); p('s_lshl_b32 s50, s50, 13'); p('s_add_u32 s%d, s%d, s50' % (S_COMM, S_COMM))

def trace(p, slot, on):
    if not on: return
    l = p.newlabel('Ltr')
    p('s_cmp_lg_u32 s%d, 0' % S_WAVE)
    p('s_cbranch_scc1 %s' % l)
    p('s_memrealtime s[%d:%d]' % (S_TR0, S_TR0 + 1))
    p('s_lshl_b32 s%d, s%d, 8' % (S_T7, S_STEP))
    p('s_add_u32 s%d, s%d, s2' % (S_T7, S_T7))
    p('s_lshl_b32 s%d, s%d, 4' % (S_T7, S_T7))
    p('s_add_u32 s%d, s%d, %d' % (S_T7, S_T7, OFF_TRACE + slot * 4))
    p('s_waitcnt lgkmcnt(0)')
    p('v_mov_b32 v7, s%d' % S_TR0)
    p('v_mov_b32 v1, 0')
    p('buffer_store_dword v7, v1, s[%d:%d], s%d offen' % (S_WS, S_WS + 3, S_T7))
    p.label(l)

PROF = False
PSEG = True
USE_FLAGS = True
NOBG = 0
def pf(p, k):
    if PROF: p('s_memtime s[%d:%d]' % (46 + 2 * k, 47 + 2 * k))
def pf_init(p):
    if PROF:
        for k in range(5): p('s_mov_b32 s%d, 0' % (56 + k))
def pf_acc(p):
    if PROF:
        p('s_waitcnt lgkmcnt(0)')
        for k in range(4):
            p('s_sub_u32 s61, s%d, s%d' % (48 + 2 * k, 46 + 2 * k))
            p('s_add_u32 s%d, s%d, s61' % (56 + k, 56 + k))
def pf_out(p):
    if PROF:
        l = p.newlabel('Lpf')
        p('s_cmp_lg_u32 s%d, 0' % S_WAVE); p('s_cbranch_scc1 %s' % l)
        p('s_lshl_b32 s%d, s2, 6' % S_T7)
        p('s_add_u32 s%d, s%d, %d' % (S_T7, S_T7, OFF_TRACE + 524288 + 32))
        for k in range(4): p('v_mov_b32 v%d, s%d' % (20 + k, 56 + k))
        p('v_mov_b32 v7, 0')
        p('buffer_store_dwordx4 v[20:23], v7, s[%d:%d], s%d offen' % (S_WS, S_WS + 3, S_T7))
        p.label(l)

def stamp(p, slot, on):
    if not on: return
    l = p.newlabel('Lst')
    p('s_cmp_lg_u32 s%d, 0' % S_WAVE)
    p('s_cbranch_scc1 %s' % l)
    p('s_memrealtime s[%d:%d]' % (S_TR0, S_TR0 + 1))
    p('s_memtime s[46:47]')
    p('s_lshl_b32 s%d, s2, 6' % S_T7)
    p('s_add_u32 s%d, s%d, %d' % (S_T7, S_T7, OFF_TRACE + 524288 + slot * 8))
    p('s_waitcnt lgkmcnt(0)')
    p('v_mov_b32 v16, s%d' % S_TR0)
    p('v_mov_b32 v17, s46')
    p('v_mov_b32 v7, 0')
    p('buffer_store_dwordx2 v[16:17], v7, s[%d:%d], s%d offen' % (S_WS, S_WS + 3, S_T7))
    p('s_waitcnt vmcnt(0)')
    p.label(l)

def load_weights_type1(p, jobs, stg_base_v, slot_bytes, nslots, voffs, ninstr, rowbytes, lg, vm, wres_v, tmpv, stg_s, zrows=4):
    n = len(jobs)
    def issue(j):
        job = jobs[j]
        job['soff'](S_T0)
        for i in range(ninstr):
            p('s_add_u32 s%d, s%d, %d' % (S_T1, stg_s, (j % nslots) * slot_bytes + i * 1024))
            p('s_mov_b32 m0, s%d' % S_T1)
            p('buffer_load_dwordx4 v%d, s[%d:%d], s%d offen lds' % (voffs[i], job['srd'], job['srd'] + 3, S_T0))
            vm.issue(('w', j))
    depth = nslots - 1
    for j in range(min(depth, n)): issue(j)
    for j in range(n):
        vm.wait(('w', j))
        slot = (j % nslots) * slot_bytes
        pend = []
        for di, (toff, dest) in enumerate(jobs[j]['dests']):
            if dest[0] == 'reg':
                for z in range(2):
                    p('ds_read_b64_tr_b16 %s, v%d offset:%d' % (dest[1 + z], stg_base_v, slot + z * zrows * rowbytes + toff))
            else:
                t = tmpv + 4 * (len(pend) % 3)
                for z in range(2):
                    p('ds_read_b64_tr_b16 %s, v%d offset:%d' % (vr(t + 2 * z, 2), stg_base_v, slot + z * zrows * rowbytes + toff))
                pend.append((t, dest[1]))
        p('s_waitcnt lgkmcnt(0)')
        for (t, off) in pend:
            p('ds_write_b128 v%d, %s offset:%d' % (wres_v, vr(t, 4), off))
        if j + depth < n: issue(j + depth)
    p('s_waitcnt lgkmcnt(0)')

def magic_div(p, dst, src, d, tmp_s):
    m = (1 << 20) // d + 1
    for x in range(4096): assert (x * m) >> 20 == x // d
    p('s_mov_b32 s%d, %d' % (tmp_s, m))
    p('v_mul_lo_u32 v%d, v%d, s%d' % (dst, src, tmp_s))
    p('v_lshrrev_b32 v%d, 20, v%d' % (dst, dst))

def stage_offsets(p, voffs, cpr, gstride, vlane, t1, t2):
    for i, vo in enumerate(voffs):
        p('v_add_u32 v%d, %d, v%d' % (t1, i * 64, vlane))
        magic_div(p, t2, t1, cpr, S_T0)
        p('v_mul_u32_u24 v%d, %d, v%d' % (vo, cpr, t2))
        p('v_sub_u32 v%d, v%d, v%d' % (vo, t1, vo))
        p('v_lshlrev_b32 v%d, 4, v%d' % (vo, vo))
        p('s_mov_b32 s%d, %d' % (S_T0, gstride))
        p('v_mul_lo_u32 v%d, v%d, s%d' % (t2, t2, S_T0))
        p('v_add_u32 v%d, v%d, v%d' % (vo, vo, t2))

def common_lane_setup(p):
    p('v_lshrrev_b32 v3, 6, v0')
    p('v_and_b32 v1, 63, v0')
    p('v_readfirstlane_b32 s%d, v3' % S_WAVE)
    p('v_lshlrev_b32 v2, 4, v1')
    p('s_mov_b32 s%d, %d' % (S_SPIN, SPIN_BUDGET))

def mem_gather_setup(p, memx):
    p('s_mul_i32 s%d, s%d, 3' % (S_T0, S_WAVE))
    def tmod(dst, add):
        p('s_add_u32 s%d, s%d, %d' % (dst, S_T0, add))
        p('s_sub_u32 s%d, s%d, 10' % (S_T2, dst))
        p('s_cmp_ge_u32 s%d, 10' % dst)
        p('s_cselect_b32 s%d, s%d, s%d' % (dst, S_T2, dst))
        p('s_lshl_b32 s%d, s%d, 10' % (dst, dst))
    for j in range(3):
        tmod(S_T1, j)
        p('s_add_u32 s%d, s%d, 8192' % (S_T2, S_T1)); p('s_cmp_ge_u32 s%d, 8192' % S_T1); p('s_cselect_b32 s%d, s%d, s%d' % (S_T1, S_T2, S_T1))
        p('v_add_u32 v%d, s%d, v2' % (4 + j, S_T1))
    for (vreg, tau) in ((8, 3), (9, 4), (10, 7)):
        tmod(S_T1, tau)
        p('s_add_u32 s%d, s%d, %d' % (S_T1, S_T1, memx))
        p('v_add_u32 v%d, s%d, v2' % (vreg, S_T1))
    p('v_and_b32 v3, 8, v1')
    p('v_cmp_eq_u32 vcc, 0, v3')
    p('v_mov_b32 v3, 0xeeeeeeee')
    p('v_mov_b32 v7, 0x44444444')
    p('v_cndmask_b32 v3, v3, v7, vcc')

def memfrag_addr(tau, memx_unused=None):
    if tau == 3: return (8, 0)
    if tau <= 6: return (9, (tau - 4) * 1024)
    return (10, (tau - 7) * 1024)

P0 = 40; RING = 52; WST = 64

def emit_poll_mem(p, memx, lg, pre):
    def loads():
        for j in range(3):
            p('buffer_load_dwordx4 %s, v%d, s[%d:%d], s%d offen sc1' % (vr(P0 + 4 * j, 4), 4 + j, S_WS, S_WS + 3, S_MEMO))
        return 3
    poll_loop(p, loads, range(P0, P0 + 12), 7, 'mem', pre)
    for j in range(3):
        p('ds_write_b128 v%d, %s' % (RING + j, vr(P0 + 4 * j, 4)))
        lg.issue(('mw', j))

def mem_lds_addr(p):
    for j in range(3):
        p('v_lshrrev_b32 v7, 1, v%d' % (4 + j)); p('v_and_b32 v7, 0x2000, v7')
        p('v_and_b32 v%d, 0x1fff, v%d' % (RING + j, 4 + j)); p('v_or_b32 v%d, v7, v%d' % (RING + j, RING + j))

def wst_load(p, k, wres_v, lg):
    b = WST + 8 * (k & 1)
    p('ds_read_b128 %s, v%d offset:%d' % (vr(b, 4), wres_v, k * 2048)); lg.issue(('w', k))
    p('ds_read_b128 %s, v%d offset:%d' % (vr(b + 4, 4), wres_v, k * 2048 + 1024)); lg.issue(('w', k))

def smf(p, acc, afrag, o, lg, wres_v, idxv=3, nlds=12):
    kind, n = UM[o]
    if kind == 'reg':
        p('v_smfmac_f32_16x16x64_bf16 %s, %s, %s, v%d' % (vr(acc, 4), vr(afrag, 4), unit_reg(n), idxv))
    else:
        lg.wait(('w', n))
        p('v_smfmac_f32_16x16x64_bf16 %s, %s, %s, v%d' % (vr(acc, 4), vr(afrag, 4), vr(WST + 8 * (n & 1), 8), idxv))
        if n + 2 < nlds: wst_load(p, n + 2, wres_v, lg)

def proj_phase(p, lg, ntile, acc0, obase, wres_v, extra=None):
    def frag(tau): return P0 + 4 * tau if tau < 3 else RING + 4 * ((tau - 3) % 3)
    def rd(tau):
        a, off = memfrag_addr(tau)
        p('ds_read_b128 %s, v%d offset:%d' % (vr(frag(tau), 4), a, off)); lg.issue(('m', tau))
    for tau in range(10):
        if tau == 2:
            lg.wait(('mw', 2))
            p('s_barrier')
            for t in (3, 4, 5): rd(t)
        if tau >= 3: lg.wait(('m', tau))
        for tile in range(ntile):
            smf(p, acc0 + 4 * tile, frag(tau), obase + tau * ntile + tile, lg, wres_v)
        if tau >= 3 and tau + 3 < 10: rd(tau + 3)
        if extra: extra(tau)

def half_sum(p, X, Y):
    for r in range(4): p('v_permlane32_swap_b32 v%d, v%d' % (X + r, Y + r))
    for r in range(4): p('v_add_f32 v%d, v%d, v%d' % (X + r, X + r, Y + r))

A_MEMX = 0; A_QX = 10240; A_QKB = 16384; A_WRES = 65536
def gen_A(p, trace_on=False, st=False):
    lg = Cnt(p, 'lgkmcnt', 15); vm = Cnt(p, 'vmcnt', 63)
    h = S_IDX
    srd(p, S_W1, KA['Wq'], 640 * 12288); srd(p, S_W2, KA['Wk'], 640 * 12288)
    common_lane_setup(p)
    p('s_waitcnt lgkmcnt(0)')
    mem_gather_setup(p, A_MEMX)
    p('s_mul_i32 s%d, s%d, 24576' % (S_T0, S_WAVE)); p('s_add_u32 s%d, s%d, 65536' % (S_T0, S_T0)); p('v_add_u32 v15, s%d, v2' % S_T0)
    STG = A_MEMX
    voffs = [80, 81, 82]
    stage_offsets(p, voffs, 6, 12288, 1, 83, 84)
    p('v_lshrrev_b32 v83, 4, v1'); p('v_lshlrev_b32 v83, 3, v83')
    p('v_bfe_u32 v84, v1, 2, 2'); p('v_add_u32 v83, v83, v84')
    p('v_mul_u32_u24 v83, 96, v83'); p('v_and_b32 v84, 3, v1'); p('v_lshlrev_b32 v84, 3, v84')
    p('v_add_u32 v85, v83, v84')
    p('s_lshl_b32 s%d, s%d, 14' % (S_T4, S_WAVE)); p('s_add_u32 s%d, s%d, %d' % (S_T4, S_T4, STG))
    p('v_add_u32 v85, s%d, v85' % S_T4)
    p('s_mul_i32 s%d, s%d, 384' % (S_T5, h)); p('s_mul_i32 s%d, s%d, 96' % (S_T0, S_WAVE)); p('s_add_u32 s%d, s%d, s%d' % (S_T5, S_T5, S_T0))
    p('s_mul_i32 s%d, s%d, 3' % (S_T6, S_WAVE))
    jobs = []
    for tau in range(10):
        for half in range(2):
            for mat in range(2):
                def soff(dst, tau=tau, half=half):
                    p('s_add_u32 s%d, s%d, %d' % (dst, S_T6, tau))
                    p('s_sub_u32 s%d, s%d, 10' % (S_T2, dst)); p('s_cmp_ge_u32 s%d, 10' % dst); p('s_cselect_b32 s%d, s%d, s%d' % (dst, S_T2, dst))
                    p('s_mul_i32 s%d, s%d, %d' % (dst, dst, 64 * 12288))
                    p('s_add_u32 s%d, s%d, s%d' % (dst, dst, S_T5))
                    if half: p('s_add_u32 s%d, s%d, %d' % (dst, dst, 32 * 12288))
                dests = []
                for x in range(3):
                    kind, n = UM[tau * 6 + mat * 3 + x]
                    if kind == 'reg': dests.append((x * 32, ('reg', unit_reg(n, 4 * half, 2), unit_reg(n, 4 * half + 2, 2))))
                    else: dests.append((x * 32, ('lds', n * 2048 + half * 1024)))
                jobs.append(dict(srd=S_W1 if mat == 0 else S_W2, soff=soff, dests=dests))
    load_weights_type1(p, jobs, 85, 3072, 5, voffs, 3, 96, lg, vm, 15, 88, S_T4)
    p('s_barrier')
    p('v_lshrrev_b32 v80, 5, v1'); p('v_mul_u32_u24 v80, 3072, v80')
    p('v_and_b32 v81, 3, v1'); p('v_lshlrev_b32 v81, 6, v81'); p('v_add_u32 v80, v80, v81')
    p('v_bfe_u32 v81, v1, 2, 2'); p('v_lshlrev_b32 v81, 4, v81'); p('v_add_u32 v80, v80, v81')
    p('v_bfe_u32 v81, v1, 4, 1'); p('v_lshlrev_b32 v81, 3, v81'); p('v_add_u32 v80, v80, v81')
    p('s_mul_i32 s%d, s%d, 768' % (S_T0, S_WAVE)); p('s_add_u32 s%d, s%d, %d' % (S_T0, S_T0, A_QX))
    p('v_add_u32 v11, s%d, v80' % S_T0)
    p('v_bfe_u32 v80, v1, 2, 2'); p('v_lshlrev_b32 v80, 6, v80')
    p('v_lshrrev_b32 v81, 4, v1'); p('v_lshlrev_b32 v81, 4, v81'); p('v_add_u32 v80, v80, v81')
    p('v_and_b32 v81, 1, v1'); p('v_lshlrev_b32 v81, 3, v81'); p('v_add_u32 v80, v80, v81')
    p('v_add_u32 v12, %d, v80' % A_QX)
    p('v_lshrrev_b32 v80, 5, v1'); p('v_lshlrev_b32 v80, 8, v80')
    p('v_bfe_u32 v81, v1, 4, 1'); p('v_lshlrev_b32 v81, 7, v81'); p('v_add_u32 v80, v80, v81')
    p('v_and_b32 v81, 7, v1'); p('v_lshlrev_b32 v82, 4, v81'); p('v_add_u32 v80, v80, v82')
    p('s_lshr_b32 s%d, s%d, 4' % (S_T1, h)); p('s_lshl_b32 s%d, s%d, 14' % (S_T1, S_T1)); p('s_and_b32 s%d, s%d, 15' % (S_T0, h)); p('s_lshl_b32 s%d, s%d, 9' % (S_T0, S_T0)); p('s_add_u32 s%d, s%d, s%d' % (S_T0, S_T0, S_T1))
    p('v_add_u32 v13, s%d, v80' % S_T0)
    p('v_mov_b32 v82, 0x7ff00000'); p('v_and_b32 v83, 8, v1'); p('v_cmp_eq_u32 vcc, 0, v83'); p('v_cndmask_b32 v13, v82, v13, vcc')
    p('v_lshlrev_b32 v80, 4, v1')
    p('s_lshl_b32 s%d, s%d, 7' % (S_T0, h)); p('s_add_u32 s%d, s%d, 32768' % (S_T0, S_T0)); p('v_add_u32 v14, s%d, v80' % S_T0)
    p('v_cmp_gt_u32 vcc, 8, v1'); p('v_cndmask_b32 v14, v82, v14, vcc')
    p('s_mov_b32 s%d, 0' % S_MASK); p('s_mov_b32 s%d, -1' % (S_MASK + 1))
    p('s_mov_b32 s%d, 0x%x' % (S_C, __import__('struct').unpack('<I', __import__('struct').pack('<f', 192 ** -0.5 * 1.4426950408889634))[0]))
    p('s_mov_b32 s%d, 0' % S_STEP)
    p('s_mul_i32 s%d, s%d, 24576' % (S_QKO, h)); p('s_add_u32 s%d, s%d, %d' % (S_QKO, S_QKO, OFF_QK))
    parity_wait(p)
    def qk_dma(bufsel_s):
        p('s_mov_b32 s%d, s%d' % (S_T1, S_QKO))
        for j in range(24):
            p('s_add_u32 s%d, s%d, %d' % (S_T0, bufsel_s, j * 1024))
            p('s_mov_b32 m0, s%d' % S_T0)
            p('buffer_load_dwordx4 v2, s[%d:%d], s%d offen sc1 lds' % (S_WS, S_WS + 3, S_T1))
            if j < 23: p('s_add_u32 s%d, s%d, 1024' % (S_T1, S_T1))
    def KS(jt, u): return 80 + 4 * (jt * 6 + u)
    def k_direct():
        for j in range(12):
            if j % 4 == 0: p('s_add_u32 s%d, s%d, %d' % (S_T0, S_QKO, 12288 + j * 1024))
            p('buffer_load_dwordx4 %s, v2, s[%d:%d], s%d offen offset:%d sc1' % (vr(80 + 4 * j, 4), S_WS, S_WS + 3, S_T0, (j % 4) * 1024))
    def qk_wait(add, sampled=False):
        if USE_FLAGS:
            p('s_add_u32 s%d, s%d, %d' % (S_T3, S_STEP, add))
            lok = p.newlabel('LAok')
            if sampled:
                p('v_cmp_gt_u32 vcc, s%d, v1' % S_T3); p('s_cbranch_vccz %s' % lok)
            wait_flags(p, 0, F_QK, S_T3, 7)
            p.label(lok)
    p('s_lshl_b32 s%d, s%d, %d' % (S_T0, h, FSH)); p('v_mov_b32 v0, s%d' % S_T0)
    l = p.newlabel('La')
    p('s_cmp_lg_u32 s%d, 3' % S_WAVE); p('s_cbranch_scc1 %s' % l)
    qk_wait(1)
    p('s_mov_b32 s%d, %d' % (S_T3, A_QKB)); qk_dma(S_T3)
    p.label(l)
    l = p.newlabel('La')
    p('s_cmp_lg_u32 s%d, 0' % S_WAVE); p('s_cbranch_scc1 %s' % l)
    qk_wait(1)
    k_direct()
    p.label(l)
    stamp(p, 1, st)
    pf_init(p)
    loop = p.newlabel('LAloop'); p.label(loop)
    lg.reset(); vm.reset()
    pf(p, 0)
    for r in range(16, 40): p('v_mov_b32 v%d, 0' % r)
    wst_load(p, 0, 15, lg); wst_load(p, 1, 15, lg)
    step_offsets(p, 0, ('mem', 'p')); mem_lds_addr(p)
    p('s_mov_b32 s%d, %d' % (S_T0, F_QK))
    p('buffer_load_dword v1, v0, s[%d:%d], s%d offen sc1' % (S_WS, S_WS + 3, S_T0))
    p('s_waitcnt lgkmcnt(0)'); lg.reset()
    emit_poll_mem(p, A_MEMX, lg, 'memA')
    pf(p, 1)
    trace(p, 0, trace_on)
    proj_phase(p, lg, 6, 16, 0, 15)
    for x in range(3): half_sum(p, 16 + 4 * x, 28 + 4 * x)
    for x in range(3):
        a = 16 + 4 * x
        p('v_cvt_pk_bf16_f32 v%d, v%d, v%d' % (a, a, a + 1)); p('v_cvt_pk_bf16_f32 v%d, v%d, v%d' % (a + 1, a + 2, a + 3))
        p('ds_write_b64 v11, %s offset:%d' % (vr(a, 2), x * 256))
    pf(p, 2)
    p('s_waitcnt vmcnt(0) lgkmcnt(0)'); lg.reset()
    p('s_barrier')
    pf(p, 3)
    trace(p, 1, trace_on)
    lw = p.newlabel('LAw'); lend = p.newlabel('LAe'); lw3 = p.newlabel('LAw3')
    QF = 16; KM = 40; SA = 64
    def scores(kind):
        lg.reset()
        if kind == 'mem':
            for u in range(6):
                for z in range(2):
                    p('ds_read_b64_tr_b16 %s, v12 offset:%d' % (vr(QF + 4 * u + 2 * z, 2), (2 * u + z) * 256)); lg.issue(('q', u))
        else:
            p('s_and_b32 s%d, s%d, 1' % (S_T0, S_STEP)); p('s_mul_i32 s%d, s%d, 24576' % (S_T0, S_T0)); p('s_add_u32 s%d, s%d, %d' % (S_T0, S_T0, A_QKB))
            p('v_add_u32 v7, s%d, v2' % S_T0)
            p('s_sub_u32 s%d, s%d, 1' % (S_T1, S_WAVE)); p('s_mul_i32 s%d, s%d, 6144' % (S_T1, S_T1)); p('v_add_u32 v76, s%d, v7' % S_T1)
            for u in range(6):
                p('ds_read_b128 %s, v76 offset:%d' % (vr(QF + 4 * u, 4), u * 1024)); lg.issue(('q', u))
                for jt in range(2):
                    p('ds_read_b128 %s, v7 offset:%d' % (vr(KS(jt, u), 4), 12288 + jt * 6144 + u * 1024)); lg.issue(('q', u))
        for u in range(6):
            lg.wait(('q', u))
            for jt in range(2):
                p('v_mfma_f32_16x16x32_bf16 %s, %s, %s, %s' % (vr(SA + 4 * jt, 4), vr(KS(jt, u), 4), vr(QF + 4 * u, 4), '0' if u == 0 else vr(SA + 4 * jt, 4)))
            if u == 0:
                for uu in range(6):
                    for z in range(2):
                        p('ds_read_b64_tr_b16 %s, v12 offset:%d' % (vr(KM + 4 * uu + 2 * z, 2), 3072 + (2 * uu + z) * 256)); lg.issue(('km', uu))
        SM = 72
        for u in range(6):
            lg.wait(('km', u))
            p('v_mfma_f32_16x16x32_bf16 %s, %s, %s, %s' % (vr(SM, 4), vr(KM + 4 * u, 4), vr(QF + 4 * u, 4), '0' if u == 0 else vr(SM, 4)))
        vals = list(range(SA, SA + 8)) + list(range(SM, SM + 4))
        p('v_mov_b32 v40, 0xff800000')
        if kind == 'seg':
            p('v_lshrrev_b32 v41, 4, v2'); p('v_and_b32 v42, 15, v41'); p('v_lshrrev_b32 v41, 4, v41'); p('v_lshlrev_b32 v41, 2, v41'); p('v_sub_u32 v41, v42, v41')
            p('s_sub_u32 s%d, s%d, 1' % (S_T1, S_WAVE)); p('s_lshl_b32 s%d, s%d, 4' % (S_T1, S_T1)); p('v_add_u32 v41, s%d, v41' % S_T1)
            for jt in range(2):
                for r in range(4):
                    p('v_cmp_le_i32 vcc, %d, v41' % (16 * jt + r))
                    p('v_cndmask_b32 v%d, v40, v%d, vcc' % (SA + 4 * jt + r, SA + 4 * jt + r))
        for r in range(4): p('v_cndmask_b32 v%d, v%d, v40, s[%d:%d]' % (SM + r, SM + r, S_MASK, S_MASK + 1))
        p('v_max3_f32 v17, v%d, v%d, v%d' % tuple(vals[0:3]))
        for i in range(3, 11, 2): p('v_max3_f32 v17, v17, v%d, v%d' % (vals[i], vals[i + 1]))
        p('v_max_f32 v17, v17, v%d' % vals[11])
        p('v_mov_b32 v18, v17'); p('v_permlane16_swap_b32 v17, v18'); p('v_max_f32 v17, v17, v18')
        p('v_mov_b32 v18, v17'); p('v_permlane32_swap_b32 v17, v18'); p('v_max_f32 v17, v17, v18')
        p('v_mul_f32 v17, s%d, v17' % S_C)
        for v in vals: p('v_fma_f32 v%d, v%d, s%d, -v17' % (v, v, S_C))
        for v in vals: p('v_exp_f32 v%d, v%d' % (v, v))
        p('v_add_f32 v18, v%d, v%d' % (vals[0], vals[1])); p('v_add_f32 v19, v%d, v%d' % (vals[2], vals[3]))
        for i in range(4, 12, 2):
            p('v_add_f32 v18, v18, v%d' % vals[i]); p('v_add_f32 v19, v19, v%d' % vals[i + 1])
        p('v_add_f32 v18, v18, v19')
        p('v_mov_b32 v19, v18'); p('v_permlane16_swap_b32 v18, v19'); p('v_add_f32 v18, v18, v19')
        p('v_mov_b32 v19, v18'); p('v_permlane32_swap_b32 v18, v19'); p('v_add_f32 v18, v18, v19')
        p('v_rcp_f32 v18, v18')
        for v in vals: p('v_mul_f32 v%d, v%d, v18' % (v, v))
        W = 20
        if kind == 'mem':
            p('v_cvt_pk_bf16_f32 v%d, v%d, v%d' % (W + 0, SA + 0, SA + 1)); p('v_cvt_pk_bf16_f32 v%d, v%d, v%d' % (W + 2, SA + 2, SA + 3))
            p('v_cvt_pk_bf16_f32 v%d, v%d, v%d' % (W + 1, SA + 4, SA + 5)); p('v_cvt_pk_bf16_f32 v%d, v%d, v%d' % (W + 3, SA + 6, SA + 7))
            p('v_cvt_pk_bf16_f32 v%d, v%d, v%d' % (W + 4, SM + 0, SM + 1)); p('v_cvt_pk_bf16_f32 v%d, v%d, v%d' % (W + 6, SM + 2, SM + 3))
            p('v_permlane16_swap_b32 v%d, v%d' % (W + 0, W + 2)); p('v_permlane16_swap_b32 v%d, v%d' % (W + 1, W + 3))
            p('buffer_store_dwordx4 %s, v13, s[%d:%d], s%d offen sc1' % (vr(W, 4), S_WS, S_WS + 3, S_PO))
            p('v_mov_b32 v%d, v%d' % (W + 5, W + 4)); p('v_mov_b32 v%d, v%d' % (W + 7, W + 6))
            p('v_permlane16_swap_b32 v%d, v%d' % (W + 4, W + 5)); p('v_permlane16_swap_b32 v%d, v%d' % (W + 6, W + 7))
            p('buffer_store_dwordx4 %s, v14, s[%d:%d], s%d offen sc1' % (vr(W + 4, 4), S_WS, S_WS + 3, S_PO))
        else:
            for k in range(4): p('v_cvt_pk_bf16_f32 v%d, v%d, v%d' % (W + k, SA + 2 * k, SA + 2 * k + 1))
            p('v_cvt_pk_bf16_f32 v%d, v%d, v%d' % (W + 4, SM + 0, SM + 1)); p('v_cvt_pk_bf16_f32 v%d, v%d, v%d' % (W + 5, SM + 2, SM + 3))
            p('s_mul_i32 s%d, s%d, 81920' % (S_T0, S_STEP)); p('s_sub_u32 s%d, s%d, 1' % (S_T1, S_WAVE)); p('s_lshl_b32 s%d, s%d, 15' % (S_T2, S_T1))
            p('s_add_u32 s%d, s%d, s%d' % (S_T2, S_T2, S_T0)); p('s_lshl_b32 s%d, s%d, 10' % (S_T3, h)); p('s_add_u32 s%d, s%d, s%d' % (S_T2, S_T2, S_T3)); p('s_add_u32 s%d, s%d, %d' % (S_T2, S_T2, OFF_PS))
            p('buffer_store_dwordx4 %s, v2, s[%d:%d], s%d offen sc1' % (vr(W, 4), S_WS, S_WS + 3, S_T2))
            p('v_mov_b32 v%d, v%d' % (W + 6, W + 4)); p('v_mov_b32 v%d, v%d' % (W + 7, W + 5))
            p('v_permlane16_swap_b32 v%d, v%d' % (W + 4, W + 6)); p('v_permlane16_swap_b32 v%d, v%d' % (W + 5, W + 7))
            p('s_lshl_b32 s%d, s%d, 13' % (S_T1, S_T1)); p('s_add_u32 s%d, s%d, s%d' % (S_T0, S_T0, S_T1)); p('s_lshl_b32 s%d, s%d, 8' % (S_T3, h)); p('s_add_u32 s%d, s%d, s%d' % (S_T0, S_T0, S_T3))
            p('s_add_u32 s%d, s%d, %d' % (S_T0, S_T0, OFF_PS + 65536))
            p('v_mov_b32 v42, 0x7ff00000'); p('v_cmp_gt_u32 vcc, 256, v2'); p('v_cndmask_b32 v42, v42, v2, vcc')
            p('buffer_store_dwordx4 %s, v42, s[%d:%d], s%d offen sc1' % (vr(W + 4, 4), S_WS, S_WS + 3, S_T0))
    p('s_cmp_lg_u32 s%d, 0' % S_WAVE); p('s_cbranch_scc1 %s' % lw)
    scores('mem')
    pf(p, 4)
    pf_acc(p)
    trace(p, 2, trace_on)
    p('s_barrier')
    p('s_cmp_ge_u32 s%d, 63' % S_STEP); p('s_cbranch_scc1 %s' % lend)
    p('s_add_u32 s%d, s%d, %d' % (S_QKO, S_QKO, 32 * 24576))
    qk_wait(2, True)
    if not NOBG & 1: k_direct()
    p('s_branch %s' % lend)
    p.label(lw)
    p('s_cmp_eq_u32 s%d, 3' % S_WAVE); p('s_cbranch_scc1 %s' % lw3)
    if PSEG: scores('seg')
    p('s_barrier')
    p('s_branch %s' % lend)
    p.label(lw3)
    p('s_add_u32 s%d, s%d, %d' % (S_T0, S_STEP, P_RING - 1)); p('s_and_b32 s%d, s%d, %d' % (S_T0, S_T0, P_RING - 1)); p('s_mul_i32 s%d, s%d, %d' % (S_T0, S_T0, 3 * BLK))
    p('s_add_u32 s%d, s%d, s%d' % (S_T0, S_T0, S_COMM)); p('s_add_u32 s%d, s%d, %d' % (S_T0, S_T0, BLK_P * BLK))
    for r in range(16, 20): p('v_mov_b32 v%d, -1' % r)
    p('buffer_store_dwordx4 v[16:19], v13, s[%d:%d], s%d offen sc1' % (S_WS, S_WS + 3, S_T0))
    p('buffer_store_dwordx4 v[16:19], v14, s[%d:%d], s%d offen sc1' % (S_WS, S_WS + 3, S_T0))
    def fp_flag():
        p('v_mov_b32 v20, 0x7ff00000'); p('v_cmp_eq_u32 vcc, 0, v2'); p('v_cndmask_b32 v20, v20, v0, vcc')
        p('v_mov_b32 v21, s%d' % S_STEP); p('s_mov_b32 s%d, %d' % (S_T0, F_P))
        p('buffer_store_dword v21, v20, s[%d:%d], s%d offen sc1' % (S_WS, S_WS + 3, S_T0))
    fp_flag()
    p('s_barrier')
    p('s_cmp_ge_u32 s%d, 63' % S_STEP); p('s_cbranch_scc1 %s' % lend)
    p('s_add_u32 s%d, s%d, %d' % (S_QKO, S_QKO, 32 * 24576))
    qk_wait(2, True)
    p('s_add_u32 s%d, s%d, 1' % (S_T3, S_STEP)); p('s_and_b32 s%d, s%d, 1' % (S_T3, S_T3)); p('s_mul_i32 s%d, s%d, 24576' % (S_T3, S_T3)); p('s_add_u32 s%d, s%d, %d' % (S_T3, S_T3, A_QKB))
    if not NOBG & 2: qk_dma(S_T3)
    p.label(lend)
    p('s_add_u32 s%d, s%d, 1' % (S_STEP, S_STEP)); p('s_cmp_lt_u32 s%d, s%d' % (S_STEP, S_NST)); p('s_cbranch_scc1 %s' % loop)
    p('s_waitcnt vmcnt(0)'); p('s_barrier')
    l = p.newlabel('LAfin'); p('s_cmp_lg_u32 s%d, 3' % S_WAVE); p('s_cbranch_scc1 %s' % l)
    fp_flag()
    p.label(l)

B_MEMX = 0; B_VX = 10240; B_WRES = 65536
def gen_B(p, trace_on=False, st=False):
    lg = Cnt(p, 'lgkmcnt', 15); vm = Cnt(p, 'vmcnt', 63)
    h = S_IDX
    srd(p, S_W1, KA['Wv'], 640 * 12288); srd(p, S_W2, KA['Wo'], 32 * 192 * 1280)
    common_lane_setup(p)
    p('s_waitcnt lgkmcnt(0)')
    mem_gather_setup(p, B_MEMX)
    p('s_mul_i32 s%d, s%d, 24576' % (S_T0, S_WAVE)); p('s_add_u32 s%d, s%d, 65536' % (S_T0, S_T0)); p('v_add_u32 v15, s%d, v2' % S_T0)
    STG = B_MEMX
    p('s_lshl_b32 s%d, s%d, 14' % (S_T4, S_WAVE)); p('s_add_u32 s%d, s%d, %d' % (S_T4, S_T4, STG))
    voffs = [80, 81, 82]
    stage_offsets(p, voffs, 6, 12288, 1, 83, 84)
    p('v_lshrrev_b32 v83, 4, v1'); p('v_lshlrev_b32 v83, 3, v83'); p('v_bfe_u32 v84, v1, 2, 2'); p('v_add_u32 v83, v83, v84')
    p('v_and_b32 v84, 3, v1'); p('v_lshlrev_b32 v84, 3, v84')
    p('v_mul_u32_u24 v85, 96, v83'); p('v_add_u32 v85, v85, v84'); p('v_add_u32 v85, s%d, v85' % S_T4)
    p('v_mul_u32_u24 v86, 160, v83'); p('v_add_u32 v86, v86, v84'); p('v_add_u32 v86, s%d, v86' % S_T4)
    p('s_mul_i32 s%d, s%d, 384' % (S_T5, h)); p('s_mul_i32 s%d, s%d, 96' % (S_T0, S_WAVE)); p('s_add_u32 s%d, s%d, s%d' % (S_T5, S_T5, S_T0))
    p('s_mul_i32 s%d, s%d, 3' % (S_T6, S_WAVE))
    jobs = []
    for tau in range(10):
        for half in range(2):
            def soff(dst, tau=tau, half=half):
                p('s_add_u32 s%d, s%d, %d' % (dst, S_T6, tau))
                p('s_sub_u32 s%d, s%d, 10' % (S_T2, dst)); p('s_cmp_ge_u32 s%d, 10' % dst); p('s_cselect_b32 s%d, s%d, s%d' % (dst, S_T2, dst))
                p('s_mul_i32 s%d, s%d, %d' % (dst, dst, 64 * 12288))
                p('s_add_u32 s%d, s%d, s%d' % (dst, dst, S_T5))
                if half: p('s_add_u32 s%d, s%d, %d' % (dst, dst, 32 * 12288))
            dests = []
            for x in range(3):
                kind, n = UM[tau * 3 + x]
                if kind == 'reg': dests.append((x * 32, ('reg', unit_reg(n, 4 * half, 2), unit_reg(n, 4 * half + 2, 2))))
                else: dests.append((x * 32, ('lds', n * 2048 + half * 1024)))
            jobs.append(dict(srd=S_W1, soff=soff, dests=dests))
    load_weights_type1(p, jobs, 85, 3072, 5, voffs, 3, 96, lg, vm, 15, 88, S_T4)
    voffs = [100, 101, 102, 103, 104]
    stage_offsets(p, voffs, 10, 1280, 1, 83, 84)
    p('s_mul_i32 s%d, s%d, %d' % (S_T5, h, 192 * 1280)); p('s_mul_i32 s%d, s%d, 320' % (S_T0, S_WAVE)); p('s_add_u32 s%d, s%d, s%d' % (S_T5, S_T5, S_T0))
    jobs = []
    for u in range(6):
        for ch in range(2):
            def soff(dst, u=u, ch=ch): p('s_add_u32 s%d, s%d, %d' % (dst, S_T5, u * 32 * 1280 + ch * 160))
            dests = []
            for x in range(5):
                cc = ch * 5 + x
                kind, n = UM[30 + cc * 3 + (u >> 1)]
                half = u & 1
                if kind == 'reg': dests.append((x * 32, ('reg', unit_reg(n, 4 * half, 2), unit_reg(n, 4 * half + 2, 2))))
                else: dests.append((x * 32, ('lds', n * 2048 + half * 1024)))
            jobs.append(dict(srd=S_W2, soff=soff, dests=dests))
    load_weights_type1(p, jobs, 86, 5120, 3, voffs, 5, 160, lg, vm, 15, 88, S_T4)
    p('s_barrier')
    p('v_bfe_u32 v80, v1, 3, 1'); p('v_lshlrev_b32 v80, 9, v80')
    p('v_bfe_u32 v81, v1, 2, 1'); p('v_lshlrev_b32 v81, 6, v81'); p('v_add_u32 v80, v80, v81')
    p('v_and_b32 v81, 1, v1'); p('v_lshlrev_b32 v81, 5, v81'); p('v_add_u32 v80, v80, v81')
    p('v_bfe_u32 v81, v1, 1, 1'); p('v_lshlrev_b32 v81, 4, v81'); p('v_add_u32 v80, v80, v81')
    p('v_bfe_u32 v81, v1, 4, 1'); p('v_lshlrev_b32 v81, 3, v81'); p('v_add_u32 v80, v80, v81')
    def tile_off(dstv, tv):
        p('v_lshrrev_b32 v82, 2, v%d' % tv); p('v_lshlrev_b32 v82, 10, v82')
        p('v_and_b32 v83, 3, v%d' % tv); p('v_lshlrev_b32 v83, 7, v83')
        p('v_add3_u32 v%d, v80, v82, v83' % dstv); p('v_add_u32 v%d, %d, v%d' % (dstv, B_VX, dstv))
    p('s_mul_i32 s%d, s%d, 3' % (S_T0, S_WAVE))
    p('v_lshrrev_b32 v84, 5, v1'); p('v_add_u32 v84, s%d, v84' % S_T0); tile_off(11, 84)
    p('v_mov_b32 v84, s%d' % S_T0); p('v_add_u32 v84, 2, v84'); tile_off(12, 84)
    p('v_lshrrev_b32 v80, 4, v1'); p('v_lshlrev_b32 v80, 7, v80')
    p('v_bfe_u32 v81, v1, 2, 2'); p('v_lshlrev_b32 v81, 5, v81'); p('v_add_u32 v80, v80, v81')
    p('v_and_b32 v81, 3, v1'); p('v_lshlrev_b32 v81, 3, v81'); p('v_add_u32 v80, v80, v81')
    p('v_add_u32 v13, %d, v80' % B_VX)
    p('v_lshrrev_b32 v80, 5, v1'); p('v_bfe_u32 v81, v1, 4, 1'); p('v_lshlrev_b32 v81, 1, v81'); p('v_add_u32 v80, v80, v81')
    p('s_mul_i32 s%d, s%d, 10' % (S_T0, S_WAVE)); p('v_add_u32 v80, s%d, v80' % S_T0); p('v_lshlrev_b32 v80, 14, v80')
    p('v_and_b32 v81, 15, v1'); p('v_lshlrev_b32 v81, 4, v81'); p('v_add_u32 v80, v80, v81')
    p('s_lshl_b32 s%d, s%d, 8' % (S_T0, h)); p('v_add_u32 v14, s%d, v80' % S_T0)
    p('v_lshrrev_b32 v80, 5, v1'); p('s_mul_i32 s%d, s%d, 10' % (S_T1, S_WAVE)); p('s_add_u32 s%d, s%d, 8' % (S_T1, S_T1)); p('v_add_u32 v80, s%d, v80' % S_T1); p('v_lshlrev_b32 v80, 14, v80')
    p('v_add_u32 v80, v80, v81'); p('v_add_u32 v120, s%d, v80' % S_T0)
    p('v_mov_b32 v82, 0x7ff00000'); p('v_and_b32 v83, 16, v1'); p('v_cmp_eq_u32 vcc, 0, v83'); p('v_cndmask_b32 v120, v82, v120, vcc')
    p('s_mov_b32 s%d, 0' % S_STEP)
    parity_wait(p)
    ACC1 = 16; VF = 28; ACC2 = 80
    stamp(p, 1, st)
    pf_init(p)
    loop = p.newlabel('LBloop'); p.label(loop)
    lg.reset(); vm.reset()
    pf(p, 0)
    for r in range(ACC1, ACC1 + 12): p('v_mov_b32 v%d, 0' % r)
    for r in range(ACC2, ACC2 + 40): p('v_mov_b32 v%d, 0' % r)
    wst_load(p, 0, 15, lg); wst_load(p, 1, 15, lg)
    step_offsets(p, 0, ('mem', 'z')); mem_lds_addr(p)
    p('s_waitcnt lgkmcnt(0)'); lg.reset()
    emit_poll_mem(p, B_MEMX, lg, 'memB')
    pf(p, 1)
    trace(p, 0, trace_on)
    proj_phase(p, lg, 3, ACC1, 0, 15)
    half_sum(p, 16, 20)
    for r in range(4): p('v_mov_b32 v%d, v%d' % (28 + r, 24 + r))
    half_sum(p, 24, 28)
    for a, addr in ((16, 11), (24, 12)):
        p('v_cvt_pk_bf16_f32 v%d, v%d, v%d' % (a, a, a + 1)); p('v_cvt_pk_bf16_f32 v%d, v%d, v%d' % (a + 1, a + 2, a + 3))
        p('ds_write_b64 v%d, %s' % (addr, vr(a, 2))); lg.issue('vx')
    pf(p, 2)
    p('s_waitcnt vmcnt(0)')
    lg.wait('vx')
    p('s_barrier')
    pf(p, 3)
    VFR = 40
    for t in range(3):
        for z in range(2):
            p('ds_read_b64_tr_b16 %s, v13 offset:%d' % (vr(VFR + 4 * t + 2 * z, 2), t * 1024 + z * 512)); lg.issue(('vf', t))
    def hs(pair):
        a = ACC2 + 8 * pair
        half_sum(p, a, a + 4)
        p('v_cvt_pk_bf16_f32 v%d, v%d, v%d' % (a, a, a + 1)); p('v_cvt_pk_bf16_f32 v%d, v%d, v%d' % (a + 1, a + 2, a + 3))
    def fin4(grp):
        a = ACC2 + 16 * grp; b = a + 8
        p('v_mov_b32 v%d, v%d' % (a + 2, b)); p('v_mov_b32 v%d, v%d' % (a + 3, b + 1))
        p('v_permlane16_swap_b32 v%d, v%d' % (a, a + 2)); p('v_permlane16_swap_b32 v%d, v%d' % (a + 1, a + 3))
        p('s_add_u32 s%d, s%d, %d' % (S_T0, S_ZO, grp * 4 * BLK))
        p('buffer_store_dwordx4 %s, v14, s[%d:%d], s%d offen sc1' % (vr(a, 4), S_WS, S_WS + 3, S_T0))
    def fin_last():
        a = ACC2 + 32
        p('v_mov_b32 v%d, v%d' % (a + 2, a)); p('v_mov_b32 v%d, v%d' % (a + 3, a + 1))
        p('v_permlane16_swap_b32 v%d, v%d' % (a, a + 2)); p('v_permlane16_swap_b32 v%d, v%d' % (a + 1, a + 3))
        p('buffer_store_dwordx4 %s, v120, s[%d:%d], s%d offen sc1' % (vr(a, 4), S_WS, S_WS + 3, S_ZO))
    for cc in range(10):
        for t in range(3):
            if cc == 0: lg.wait(('vf', t))
            smf(p, ACC2 + 4 * cc, VFR + 4 * t, 30 + cc * 3 + t, lg, 15)
        if cc >= 3 and cc % 2 == 1:
            pr = (cc - 3) // 2
            hs(pr)
            if pr % 2 == 1: fin4(pr // 2)
    hs(4); fin_last()
    p('s_barrier')
    pf(p, 4)
    pf_acc(p)
    trace(p, 2, trace_on)
    p('s_add_u32 s%d, s%d, 1' % (S_STEP, S_STEP)); p('s_cmp_lt_u32 s%d, s%d' % (S_STEP, S_NST)); p('s_cbranch_scc1 %s' % loop)

R_RED = 0; R_RED2 = 4096
SEGROWS = True
def gen_R(p, trace_on=False, st=False):
    c = S_IDX
    srd(p, S_W1, KA['x'], 2048 * 1280)
    common_lane_setup(p)
    p('s_waitcnt lgkmcnt(0)')
    p('v_and_b32 v3, 8, v1'); p('v_cmp_eq_u32 vcc, 0, v3'); p('v_mov_b32 v3, 0xeeeeeeee'); p('v_mov_b32 v7, 0x44444444'); p('v_cndmask_b32 v3, v3, v7, vcc')
    p('s_lshr_b32 s%d, s%d, 1' % (S_T1, S_WAVE)); p('s_lshl_b32 s%d, s%d, 14' % (S_T1, S_T1)); p('s_and_b32 s%d, s%d, 1' % (S_T0, S_WAVE)); p('s_lshl_b32 s%d, s%d, 12' % (S_T0, S_T0))
    p('s_add_u32 s%d, s%d, s%d' % (S_T0, S_T0, S_T1)); p('v_add_u32 v4, s%d, v2' % S_T0)
    p('v_lshrrev_b32 v8, 4, v1'); p('v_lshlrev_b32 v8, 8, v8'); p('v_and_b32 v9, 7, v1'); p('v_lshlrev_b32 v9, 4, v9'); p('v_add_u32 v8, v8, v9')
    p('v_bfe_u32 v9, v1, 3, 1'); p('v_lshlrev_b32 v9, 3, v9'); p('v_add_u32 v8, v8, v9')
    p('s_lshl_b32 s%d, s%d, 10' % (S_T0, S_WAVE)); p('s_add_u32 s%d, s%d, 32768' % (S_T0, S_T0)); p('v_add_u32 v5, s%d, v8' % S_T0)
    p('s_lshl_b32 s%d, s%d, 14' % (S_T0, c)); p('s_lshl_b32 s%d, s%d, 11' % (S_T1, S_WAVE)); p('s_add_u32 s%d, s%d, s%d' % (S_T0, S_T0, S_T1)); p('v_add_u32 v6, s%d, v2' % S_T0)
    p('s_lshl_b32 s%d, s%d, 15' % (S_T0, c)); p('s_lshl_b32 s%d, s%d, 13' % (S_T1, S_WAVE)); p('s_add_u32 s%d, s%d, s%d' % (S_T0, S_T0, S_T1)); p('v_add_u32 v10, s%d, v2' % S_T0)
    p('v_bfe_u32 v8, v1, 1, 1'); p('v_lshlrev_b32 v8, 8, v8')
    p('v_bfe_u32 v9, v1, 4, 1'); p('v_lshlrev_b32 v9, 7, v9'); p('v_add_u32 v8, v8, v9')
    p('v_lshrrev_b32 v9, 5, v1'); p('v_lshlrev_b32 v9, 5, v9'); p('v_add_u32 v8, v8, v9')
    p('v_bfe_u32 v9, v1, 2, 2'); p('v_lshlrev_b32 v9, 3, v9'); p('v_add_u32 v8, v8, v9')
    p('v_and_b32 v9, 1, v1'); p('v_lshlrev_b32 v9, 2, v9'); p('v_add_u32 v8, v8, v9')
    p('s_lshl_b32 s%d, s%d, 9' % (S_T0, S_WAVE)); p('v_add_u32 v11, s%d, v8' % S_T0)
    p('v_lshlrev_b32 v12, 3, v1'); p('v_lshlrev_b32 v13, 2, v1'); p('s_lshl_b32 s%d, s%d, 8' % (S_T0, c))
    p('s_add_u32 s%d, s%d, 8192' % (S_T1, S_T0)); p('s_cmp_ge_u32 s%d, 32' % c); p('s_cselect_b32 s%d, s%d, s%d' % (S_T0, S_T1, S_T0))
    p('v_add_u32 v13, s%d, v13' % S_T0)
    p('v_lshlrev_b32 v14, 2, v1'); p('s_lshl_b32 s%d, s%d, 8' % (S_T0, c)); p('v_add_u32 v14, s%d, v14' % S_T0)
    p('v_mov_b32 v8, 0x7ff00000'); p('v_and_b32 v9, 3, v1'); p('v_cmp_eq_u32 vcc, 0, v9'); p('v_cndmask_b32 v13, v8, v13, vcc')
    p('s_lshl_b32 s%d, s%d, 11' % (S_T0, S_WAVE)); p('s_add_u32 s%d, s%d, %d' % (S_T0, S_T0, R_RED2)); p('v_add_u32 v15, s%d, v2' % S_T0)
    p('v_and_b32 v8, 15, v1'); p('s_and_b32 s%d, s%d, 1' % (S_T0, S_WAVE)); p('s_lshl_b32 s%d, s%d, 4' % (S_T0, S_T0)); p('v_add_u32 v8, s%d, v8' % S_T0); p('v_mul_u32_u24 v8, 1280, v8')
    p('v_lshrrev_b32 v9, 4, v1'); p('v_lshlrev_b32 v9, 3, v9'); p('s_lshl_b32 s%d, s%d, 5' % (S_T0, c)); p('v_add_u32 v9, s%d, v9' % S_T0)
    p('v_add_u32 v28, v8, v9')
    p('s_and_b32 s%d, s%d, 1' % (S_T0, S_WAVE)); p('s_lshl_b32 s%d, s%d, 10' % (S_T0, S_T0)); p('s_add_u32 s%d, s%d, %d' % (S_T0, S_T0, R_RED2)); p('v_add_u32 v29, s%d, v2' % S_T0)
    p('s_mov_b32 s%d, %d' % (S_T0, OFF_MOD + 2 * 1280))
    p('buffer_load_dwordx2 v[30:31], v9, s[%d:%d], s%d offen' % (S_WS, S_WS + 3, S_T0))
    p('s_waitcnt vmcnt(0)')
    p('v_lshlrev_b32 v24, 16, v30'); p('v_and_b32 v25, 0xffff0000, v30'); p('v_lshlrev_b32 v26, 16, v31'); p('v_and_b32 v27, 0xffff0000, v31')
    p('s_lshl_b32 s%d, s%d, %d' % (S_T0, c, FSH)); p('v_mov_b32 v30, s%d' % S_T0); p('v_mov_b32 v8, 0x7ff00000'); p('v_cmp_eq_u32 vcc, 0, v1'); p('v_cndmask_b32 v30, v8, v30, vcc')
    p('v_and_b32 v0, 31, v1'); p('v_lshlrev_b32 v0, %d, v0' % FSH)
    p('s_mov_b32 s%d, 0' % S_MASK); p('s_mov_b32 s%d, -1' % (S_MASK + 1))
    p('s_mov_b32 s%d, 0' % S_STEP)
    p('s_mov_b32 s%d, %d' % (S_VOO, OFF_VO))
    ZB = 64; PA = 72; PM = 88; ACC = 16; SENT = 96; PF = 128
    def VOa(k, j, n=4): return ar(40 * k + 4 * j, n)
    def Za(k, a): return ar(40 * k + 32 + 4 * a, 4)
    def vo_load(k):
        for j in range(8):
            if j == 4: p('s_add_u32 s%d, s%d, 4096' % (S_T0, S_VOO))
            p('buffer_load_dwordx4 %s, v10, s[%d:%d], s%d offen offset:%d sc1' % (VOa(k, j), S_WS, S_WS + 3, S_VOO if j < 4 else S_T0, (j % 4) * 1024))
    def vo_wait(add):
        if USE_FLAGS:
            p('s_add_u32 s%d, s%d, %d' % (S_T3, S_STEP, add)); wait_flags(p, 0, F_VO, S_T3, 7)
    S_SG = S_T6
    def seg_issue(wait):
        if wait and USE_FLAGS:
            p('s_add_u32 s%d, s%d, 1' % (S_T3, S_SG)); wait_flags(p, 0, F_P, S_T3, 7)
        p('s_mul_i32 s%d, s%d, 81920' % (S_T4, S_SG)); p('s_add_u32 s%d, s%d, %d' % (S_T4, S_T4, OFF_PS))
        for tau in range(2):
            p('s_lshl_b32 s%d, s%d, 13' % (S_T0, S_WAVE)); p('s_add_u32 s%d, s%d, s%d' % (S_T0, S_T0, S_T4)); p('s_add_u32 s%d, s%d, %d' % (S_T0, S_T0, tau * 32768))
            for j in range(8):
                if j == 4: p('s_add_u32 s%d, s%d, 4096' % (S_T0, S_T0))
                p('buffer_load_dwordx4 %s, v2, s[%d:%d], s%d offen offset:%d sc1' % (vr(PF + 40 * tau + 4 * j, 4), S_WS, S_WS + 3, S_T0, (j % 4) * 1024))
            p('s_lshl_b32 s%d, s%d, 11' % (S_T0, S_WAVE)); p('s_add_u32 s%d, s%d, s%d' % (S_T0, S_T0, S_T4)); p('s_add_u32 s%d, s%d, %d' % (S_T0, S_T0, 65536 + tau * 8192))
            for a in range(2):
                p('buffer_load_dwordx4 %s, v2, s[%d:%d], s%d offen offset:%d sc1' % (vr(PF + 40 * tau + 32 + 4 * a, 4), S_WS, S_WS + 3, S_T0, a * 1024))
        p('s_mul_i32 s%d, s%d, %d' % (S_T5, S_SG, 32 * 1280))
        p('buffer_load_dwordx2 v[100:101], v28, s[%d:%d], s%d offen' % (S_W1, S_W1 + 3, S_T5))
    def seg_compute(k, after):
        for tau in range(2):
            p('s_waitcnt vmcnt(%d)' % ((11 if tau == 0 else 1) + after))
            a = 104 + 4 * tau
            for j in range(8):
                p('v_mfma_f32_16x16x32_bf16 %s, %s, %s, %s' % (vr(a, 4), VOa(k, j), vr(PF + 40 * tau + 4 * j, 4), '0' if j == 0 else vr(a, 4)))
            for aa in range(2):
                p('v_mfma_f32_16x16x32_bf16 %s, %s, %s, %s' % (vr(a, 4), Za(k, aa), vr(PF + 40 * tau + 32 + 4 * aa, 4), vr(a, 4)))
        p('ds_write_b128 v15, v[104:107]'); p('ds_write_b128 v15, v[108:111] offset:1024')
        p('s_waitcnt lgkmcnt(0)'); p('s_barrier')
        l = p.newlabel('LRs'); p('s_cmp_ge_u32 s%d, 2' % S_WAVE); p('s_cbranch_scc1 %s' % l)
        for w in range(4): p('ds_read_b128 %s, v29 offset:%d' % (vr(104 + 4 * w, 4), w * 2048))
        p('s_waitcnt vmcnt(%d) lgkmcnt(0)' % after)
        for r in range(4):
            p('v_add_f32 v%d, v%d, v%d' % (104 + r, 104 + r, 108 + r)); p('v_add_f32 v%d, v%d, v%d' % (112 + r, 112 + r, 116 + r)); p('v_add_f32 v%d, v%d, v%d' % (104 + r, 104 + r, 112 + r))
        p('v_lshlrev_b32 v108, 16, v100'); p('v_and_b32 v109, 0xffff0000, v100'); p('v_lshlrev_b32 v110, 16, v101'); p('v_and_b32 v111, 0xffff0000, v101')
        for r in range(4): p('v_fmac_f32 v%d, v%d, v%d' % (108 + r, 24 + r, 104 + r))
        p('v_cvt_pk_bf16_f32 v100, v108, v109'); p('v_cvt_pk_bf16_f32 v101, v110, v111')
        p('s_add_u32 s%d, s%d, %d' % (S_T5, S_T5, OFF_X1))
        p('buffer_store_dwordx2 v[100:101], v28, s[%d:%d], s%d offen sc1' % (S_WS, S_WS + 3, S_T5))
        p.label(l)
    def x1_flag(val_s):
        p('v_mov_b32 v102, s%d' % val_s); p('s_mov_b32 s%d, %d' % (S_T0, F_X1))
        p('buffer_store_dword v102, v30, s[%d:%d], s%d offen sc1' % (S_WS, S_WS + 3, S_T0))
    parity_probe(p); parity_wait(p)
    vo_wait(1)
    vo_load(0)
    stamp(p, 1, st)
    pf_init(p)
    for r in range(SENT, SENT + 4): p('v_mov_b32 v%d, -1' % r)
    p('v_lshrrev_b32 v31, 5, v1'); p('v_lshlrev_b32 v31, %d, v31' % (FSH + 5)); p('v_add_u32 v31, v31, v0')
    loop = p.newlabel('LRloop'); p.label(loop)
    for k in range(4):
        pf(p, 0)
        for r in range(ACC, ACC + 4): p('v_mov_b32 v%d, 0' % r)
        step_offsets(p, 1)
        p('s_mov_b32 s%d, %d' % (S_T0, F_VO))
        p('buffer_load_dword v103, v31, s[%d:%d], s%d offen sc1' % (S_WS, S_WS + 3, S_T0))
        def ploads():
            for z in range(4): p('buffer_load_dwordx4 %s, v4, s[%d:%d], s%d offen offset:%d sc1' % (vr(PA + 4 * z, 4), S_WS, S_WS + 3, S_PO, z * 1024))
            for hp in range(2): p('buffer_load_dwordx2 %s, v5, s[%d:%d], s%d offen offset:%d sc1' % (vr(PM + 2 * hp, 2), S_WS, S_WS + 3, S_PO, hp * 128))
            return 6
        def zloads():
            p('buffer_load_dwordx4 %s, v6, s[%d:%d], s%d offen sc1' % (vr(ZB, 4), S_WS, S_WS + 3, S_ZO))
            p('buffer_load_dwordx4 %s, v6, s[%d:%d], s%d offen offset:1024 sc1' % (vr(ZB + 4, 4), S_WS, S_WS + 3, S_ZO))
            return 2
        if R_MODE == 0:
            pf(p, 1)
            poll_loop(p, lambda: ploads() + zloads(), list(range(PA, PA + 20)) + list(range(ZB, ZB + 8)), 7, 'p', 'p')
        elif R_MODE == 1:
            poll_loop(p, zloads, list(range(ZB, ZB + 8)), 7, 'z', 'z')
            pf(p, 1)
            poll_loop(p, ploads, list(range(PA, PA + 20)), 7, 'p', 'p')
        else:
            poll_loop(p, ploads, list(range(PA, PA + 20)), 7, 'p', 'p')
            pf(p, 1)
            poll_loop(p, zloads, list(range(ZB, ZB + 8)), 7, 'z', 'z')
        pf(p, 2)
        trace(p, 0, trace_on)
        p('v_smfmac_f32_16x16x64_bf16 %s, %s, %s, v3' % (vr(ACC, 4), vr(PM, 4), vr(ZB, 8)))
        for z in range(4): p('v_smfmac_f32_16x16x64_bf16 %s, %s, %s, v3' % (vr(ACC, 4), vr(PA + 4 * z, 4), VOa(k, 2 * z, 8)))
        p('v_permlane32_swap_b32 v%d, v%d' % (ACC, ACC + 1)); p('v_permlane32_swap_b32 v%d, v%d' % (ACC + 2, ACC + 3))
        p('v_add_f32 v%d, v%d, v%d' % (ACC, ACC, ACC + 1)); p('v_add_f32 v%d, v%d, v%d' % (ACC + 2, ACC + 2, ACC + 3))
        p('ds_write2_b32 v11, v%d, v%d offset0:0 offset1:16' % (ACC, ACC + 2))
        p('s_waitcnt lgkmcnt(0)')
        p('s_barrier')
        pf(p, 3)
        l = p.newlabel('LRw'); p('s_cmp_lg_u32 s%d, 0' % S_WAVE); p('s_cbranch_scc1 %s' % l)
        for w in range(4): p('ds_read_b64 %s, v12 offset:%d' % (vr(20 + 2 * w, 2) if w < 2 else vr(32 + 2 * (w - 2), 2), w * 512))
        p('s_waitcnt lgkmcnt(0)')
        p('v_add_f32 v20, v20, v22'); p('v_add_f32 v21, v21, v23'); p('v_add_f32 v32, v32, v34'); p('v_add_f32 v33, v33, v35')
        p('v_add_f32 v20, v20, v32'); p('v_add_f32 v21, v21, v33')
        p('v_cvt_pk_bf16_f32 v20, v20, v21')
        if HIST: p('v_mov_b32 v32, v20')
        for kk in (1, 2, 3): p('v_mov_b32_dpp v%d, v20 quad_perm:[%d,%d,%d,%d] row_mask:0xf bank_mask:0xf' % (20 + kk, kk, kk, kk, kk))
        p('buffer_store_dwordx4 v[20:23], v13, s[%d:%d], s%d offen sc1' % (S_WS, S_WS + 3, S_MEMO))
        pf(p, 4)
        pf_acc(p)
        trace(p, 2, trace_on)
        if HIST:
            p('s_mul_i32 s%d, s%d, 10240' % (S_T0, S_STEP)); p('s_add_u32 s%d, s%d, %d' % (S_T0, S_T0, OFF_HIST + 10240))
            p('buffer_store_dword v32, v14, s[%d:%d], s%d offen' % (S_WS, S_WS + 3, S_T0))
        p.label(l)
        l3 = p.newlabel('LRq'); p('s_cmp_lg_u32 s%d, 1' % S_WAVE); p('s_cbranch_scc1 %s' % l3)
        p('s_and_b32 s%d, s%d, %d' % (S_T0, S_STEP, MEM_RING - 1)); p('s_lshl_b32 s%d, s%d, 15' % (S_T0, S_T0)); p('s_add_u32 s%d, s%d, s%d' % (S_T0, S_T0, S_COMM))
        p('buffer_store_dwordx4 %s, v13, s[%d:%d], s%d offen sc1' % (vr(SENT, 4), S_WS, S_WS + 3, S_T0))
        p.label(l3)
        if SEGROWS:
            l4 = p.newlabel('LRx'); p('s_cmp_lg_u32 s%d, 2' % S_WAVE); p('s_cbranch_scc1 %s' % l4)
            p('s_cmp_lt_u32 s%d, 3' % S_STEP); p('s_cbranch_scc1 %s' % l4)
            p('s_sub_u32 s%d, s%d, 2' % (S_T1, S_STEP)); x1_flag(S_T1)
            p.label(l4)
        p('s_barrier')
        lok = p.newlabel('LRok')
        if USE_FLAGS:
            p('s_add_u32 s%d, s%d, 2' % (S_T1, S_STEP)); p('s_min_u32 s%d, s%d, 64' % (S_T1, S_T1))
            p('s_max_u32 s%d, s%d, 1' % (S_T2, S_STEP)); p('s_sub_u32 s%d, s%d, 1' % (S_T2, S_T2))
            p('v_mov_b32 v102, s%d' % S_T1); p('v_mov_b32 v7, s%d' % S_T2); p('v_cndmask_b32 v102, v102, v7, s[%d:%d]' % (S_MASK, S_MASK + 1))
            p('v_cmp_gt_u32 vcc, v102, v103'); p('s_cbranch_vccz %s' % lok)
            p('s_mov_b32 s%d, s%d' % (S_T3, S_T1)); wait_flags(p, 0, F_VO, S_T3, 7)
            p('s_max_u32 s%d, s%d, 1' % (S_T3, S_STEP)); p('s_sub_u32 s%d, s%d, 1' % (S_T3, S_T3)); wait_flags(p, 0, F_P, S_T3, 7)
        p.label(lok)
        for r in range(8): p('v_accvgpr_write_b32 a%d, v%d' % (40 * k + 32 + r, ZB + r))
        p('s_add_u32 s%d, s%d, 1' % (S_STEP, S_STEP))
        lns = p.newlabel('LRns'); ljoin = p.newlabel('LRj')
        def tail_loads():
            p('buffer_store_dwordx4 %s, v6, s[%d:%d], s%d offen sc1' % (vr(SENT, 4), S_WS, S_WS + 3, S_ZO))
            p('buffer_store_dwordx4 %s, v6, s[%d:%d], s%d offen offset:1024 sc1' % (vr(SENT, 4), S_WS, S_WS + 3, S_ZO))
            p('s_add_u32 s%d, s%d, %d' % (S_VOO, S_VOO, 40 * 32 * 1024))
            vo_load((k + 1) & 3)
        if SEGROWS:
            p('s_cmp_lt_u32 s%d, 3' % S_STEP); p('s_cbranch_scc1 %s' % lns)
            p('s_sub_u32 s%d, s%d, 3' % (S_SG, S_STEP)); seg_issue(False)
            tail_loads()
            seg_compute((k + 2) & 3, 10)
            p('s_branch %s' % ljoin)
        p.label(lns)
        tail_loads()
        p.label(ljoin)
    p('s_cmp_lt_u32 s%d, s%d' % (S_STEP, S_NST)); p('s_cbranch_scc1 %s' % loop)
    if SEGROWS:
        for sg in (62, 63):
            p('s_barrier')
            p('s_mov_b32 s%d, %d' % (S_SG, sg)); seg_issue(True); seg_compute(sg & 3, 0)
        p('s_waitcnt vmcnt(0)'); p('s_barrier')
        l = p.newlabel('LRf'); p('s_cmp_lg_u32 s%d, 2' % S_WAVE); p('s_cbranch_scc1 %s' % l)
        p('s_mov_b32 s%d, 64' % S_T1); x1_flag(S_T1)
        p.label(l)

HEADER = '''.amdgcn_target "amdgcn-amd-amdhsa--gfx950"
.text
'''
def kernel_desc(name, vgpr=512, accum=256, sgpr=96):
    return '''.section .rodata,"a"
.p2align 6
.amdhsa_kernel %s
  .amdhsa_next_free_vgpr %d
  .amdhsa_next_free_sgpr %d
  .amdhsa_accum_offset %d
  .amdhsa_group_segment_fixed_size 0
  .amdhsa_kernarg_size 128
  .amdhsa_user_sgpr_count 2
  .amdhsa_user_sgpr_kernarg_segment_ptr 1
  .amdhsa_system_sgpr_workgroup_id_x 1
.end_amdhsa_kernel
''' % (name, vgpr, sgpr, accum)

PLACE = 0
def gen_core_test(nsteps=64, trace_on=False, st=False):
    p = Prog()
    name = 'core_kernel'
    p.raw('.globl %s' % name); p.raw('.p2align 8'); p.raw('.type %s,@function' % name); p.label(name)
    srd(p, S_WS, KA['ws'], WS_BYTES)
    p('s_load_dwordx2 s[%d:%d], s[0:1], %d' % (S_DBG, S_DBG + 1, KA['dbg']))
    p('s_mov_b32 s%d, %d' % (S_NST, nsteps))
    p('s_waitcnt lgkmcnt(0)')
    comm_setup(p)
    lA, lB, lR, lend = 'L_roleA', 'L_roleB', 'L_roleR', 'L_end'
    if PLACE == 1:
        p('s_and_b32 s20, s2, 7'); p('s_cmp_ge_u32 s20, 4'); p('s_cbranch_scc1 L_exit')
        p('s_lshr_b32 s21, s2, 3'); p('s_lshl_b32 s21, s21, 2'); p('s_add_u32 s2, s21, s20')
    elif PLACE == 2:
        p('s_and_b32 s20, s2, 7'); p('s_cmp_ge_u32 s20, 4'); p('s_cbranch_scc1 L_exit')
        p('s_lshr_b32 s21, s2, 3')
        l0 = p.newlabel('Lpl'); l1 = p.newlabel('Lpl')
        p('s_cmp_ge_u32 s20, 2'); p('s_cbranch_scc1 %s' % l0)
        p('s_lshl_b32 s20, s20, 5'); p('s_add_u32 s2, s20, s21'); p('s_branch %s' % l1)
        p.label(l0)
        p('s_cmp_ge_u32 s21, 20'); p('s_cbranch_scc1 L_exit')
        p('s_sub_u32 s20, s20, 2'); p('s_mul_i32 s20, s20, 20'); p('s_add_u32 s2, s20, s21'); p('s_add_u32 s2, s2, 64')
        p.label(l1)
    elif PLACE == 3:
        p('s_and_b32 s20, s2, 7'); p('s_cmp_ge_u32 s20, 4'); p('s_cbranch_scc1 L_exit')
        p('s_lshr_b32 s21, s2, 3')
        l0 = p.newlabel('Lpl'); l1 = p.newlabel('Lpl')
        p('s_cmp_ge_u32 s20, 2'); p('s_cbranch_scc1 %s' % l0)
        p('s_lshr_b32 s22, s21, 1'); p('s_lshl_b32 s23, s20, 4'); p('s_add_u32 s22, s22, s23'); p('s_and_b32 s21, s21, 1'); p('s_lshl_b32 s21, s21, 5'); p('s_add_u32 s2, s22, s21'); p('s_branch %s' % l1)
        p.label(l0)
        p('s_cmp_ge_u32 s21, 20'); p('s_cbranch_scc1 L_exit')
        p('s_sub_u32 s20, s20, 2'); p('s_mul_i32 s20, s20, 20'); p('s_add_u32 s2, s20, s21'); p('s_add_u32 s2, s2, 64')
        p.label(l1)
    if st:
        p('v_lshrrev_b32 v3, 6, v0'); p('v_readfirstlane_b32 s%d, v3' % S_WAVE); p('v_mov_b32 v20, v0'); stamp(p, 0, True); p('v_mov_b32 v0, v20')
    p('s_cmp_lt_u32 s2, 32'); p('s_cbranch_scc1 %s' % lA)
    p('s_cmp_lt_u32 s2, 64'); p('s_cbranch_scc1 %s' % lB)
    p('s_cmp_lt_u32 s2, 104'); p('s_cbranch_scc1 %s' % lR)
    p.label('L_exit')
    p('s_endpgm')
    p.label(lA); p('s_mov_b32 s%d, s2' % S_IDX); gen_A(p, trace_on, st); p('s_branch %s' % lend)
    p.label(lB); p('s_sub_u32 s%d, s2, 32' % S_IDX); gen_B(p, trace_on, st); p('s_branch %s' % lend)
    p.label(lR); p('s_sub_u32 s%d, s2, 64' % S_IDX); gen_R(p, trace_on, st)
    p.label(lend)
    stamp(p, 2, st)
    pf_out(p)
    l = p.newlabel('Lok'); p('s_cmp_lg_u32 s%d, 0' % S_SPIN); p('s_cbranch_scc1 %s' % l)
    p('v_mov_b32 v4, 0'); p('v_mov_b32 v5, s2'); p('v_add_u32 v5, 1, v5'); p('global_store_dword v4, v5, s[%d:%d]' % (S_DBG, S_DBG + 1))
    p.label(l)
    p('s_waitcnt vmcnt(0)')
    p('s_endpgm')
    body = p.text()
    return '; @launch grid=(256,1,1) block=(256,1,1) lds=163840\n' + HEADER + body + kernel_desc(name), p

if __name__ == '__main__':
    t, p = gen_core_test()
    open('core.s', 'w').write(t)
    print(len(t), 'bytes', p.nops, 'nops')
```

```python
from core import *
import core, roles2, roles3, pro

NAME = 'adaLN_cond__memory_aug_recurrent_mem_tr__glu_gated_bilinear__prompt_kernel'
DYN_ROLE = True
FAKE_XCC = 0
ROLES = dict(A=True, B=True, R=True, AP=True, BP=True, L2=True, F1=True, F2=True)

def gen_main(name, nsteps=64, st=False, trace_on=False):
    p = Prog()
    p.raw('.globl %s' % name); p.raw('.p2align 8'); p.raw('.type %s,@function' % name); p.label(name)
    p('s_cmp_ge_u32 s2, 256'); p('s_cbranch_scc1 L_exit')
    srd(p, S_WS, KA['ws'], WS_BYTES)
    p('s_load_dwordx2 s[%d:%d], s[0:1], %d' % (S_DBG, S_DBG + 1, KA['dbg']))
    p('s_mov_b32 s%d, %d' % (S_NST, nsteps))
    p('s_waitcnt lgkmcnt(0)')
    comm_setup(p)
    if DYN_ROLE:
        dbg_srd(p, 52)
        if FAKE_XCC: p('s_lshr_b32 s20, s2, 6'); p('s_and_b32 s20, s20, 7'); p('s_mul_i32 s20, s20, %d' % FAKE_XCC); p('s_and_b32 s20, s20, 7')
        else: p('s_getreg_b32 s20, hwreg(HW_REG_XCC_ID)'); p('s_and_b32 s20, s20, 7')
        lw = 'L_tk_other'
        p('v_lshrrev_b32 v3, 6, v0'); p('v_readfirstlane_b32 s%d, v3' % S_WAVE)
        p('s_cmp_lg_u32 s%d, 0' % S_WAVE); p('s_cbranch_scc1 %s' % lw)
        p('v_mov_b32 v4, 0x7ff00000'); p('v_mov_b32 v5, 0'); p('v_cmp_eq_u32 vcc, 0, v0'); p('v_cndmask_b32 v4, v4, v5, vcc')
        p('s_lshl_b32 s21, s20, 2'); p('s_add_u32 s21, s21, 32')
        p('v_mov_b32 v6, 1')
        p('buffer_atomic_add v6, v4, s[52:55], s21 offen sc0 sc1'); p('s_waitcnt vmcnt(0)')
        p('v_readfirstlane_b32 s22, v6')
        p('s_cmp_lt_u32 s22, 32'); p('s_cbranch_scc1 L_tk_ok')
        p('v_mov_b32 v6, 1'); p('s_mov_b32 s21, 64')
        p('buffer_atomic_add v6, v4, s[52:55], s21 offen sc0 sc1'); p('s_waitcnt vmcnt(0)')
        p('v_readfirstlane_b32 s23, v6')
        p('v_lshlrev_b32 v7, 2, v0'); p('v_min_u32 v7, 28, v7')
        p('s_mov_b32 s26, %d' % SPIN_BUDGET)
        p.label('L_tk_wait')
        p('buffer_load_dword v8, v7, s[52:55], 0 offen offset:32 sc1'); p('s_waitcnt vmcnt(0)')
        p('s_mov_b32 s24, 0')
        for y in range(8): p('v_readlane_b32 s25, v8, %d' % y); p('s_add_u32 s24, s24, s25')
        p('s_cmp_ge_u32 s24, 256'); p('s_cbranch_scc1 L_tk_all')
        p('s_sleep 8'); p('s_sub_u32 s26, s26, 1'); p('s_cmp_lg_u32 s26, 0'); p('s_cbranch_scc1 L_tk_wait')
        p.label('L_tk_all')
        for y in range(8):
            ln = 'L_tk_n%d' % y
            p('v_readlane_b32 s25, v8, %d' % y); p('s_min_u32 s25, s25, 32'); p('s_sub_u32 s24, 32, s25')
            p('s_cmp_lt_u32 s23, s24'); p('s_cbranch_scc0 %s' % ln)
            p('s_mov_b32 s20, %d' % y); p('s_add_u32 s22, s25, s23'); p('s_branch L_tk_ok')
            p.label(ln)
            p('s_sub_u32 s23, s23, s24')
        p('s_mov_b32 s20, 7'); p('s_mov_b32 s22, 31')
        p.label('L_tk_ok')
        p('s_lshl_b32 s22, s22, 2'); p('s_and_b32 s21, s20, 3'); p('s_add_u32 s22, s22, s21')
        p('s_lshr_b32 s20, s20, 2'); p('s_lshl_b32 s20, s20, 7'); p('s_add_u32 s22, s22, s20')
        p('v_mov_b32 v6, s22'); p('v_mov_b32 v7, 0'); p('ds_write_b32 v7, v6'); p('s_waitcnt lgkmcnt(0)')
        p.label(lw)
        p('s_barrier')
        p('v_mov_b32 v7, 0'); p('ds_read_b32 v6, v7'); p('s_waitcnt lgkmcnt(0)')
        p('v_readfirstlane_b32 s2, v6')
        p('s_barrier')
    else:
        p('s_and_b32 s20, s2, 7'); p('s_lshr_b32 s21, s2, 3'); p('s_lshl_b32 s21, s21, 2'); p('s_and_b32 s22, s20, 3'); p('s_add_u32 s21, s21, s22')
        p('s_lshr_b32 s20, s20, 2'); p('s_lshl_b32 s20, s20, 7'); p('s_add_u32 s2, s21, s20')
    if st:
        p('v_lshrrev_b32 v3, 6, v0'); p('v_readfirstlane_b32 s%d, v3' % S_WAVE); stamp(p, 0, True)
    table = [('A', 0, 32, lambda: gen_A(p, trace_on, st)), ('B', 32, 64, lambda: gen_B(p, trace_on, st)), ('R', 64, 104, lambda: gen_R(p, trace_on, st)),
             ('AP', 128, 160, lambda: roles2.gen_AP(p, st)), ('BP', 160, 192, lambda: roles2.gen_BP(p, st)),
             ('F2', 104, 124, lambda: roles3.gen_F2(p, st)), ('L2', 124, 128, lambda: roles3.gen_L2(p, st)), ('F1', 192, 240, lambda: roles3.gen_F1(p, st))]
    for nm, lo, hi, fn in table:
        if not ROLES.get(nm): continue
        l = 'L_not' + nm
        p('s_cmp_lt_u32 s2, %d' % lo); p('s_cbranch_scc1 %s' % l)
        p('s_cmp_ge_u32 s2, %d' % hi); p('s_cbranch_scc1 %s' % l)
        p('s_sub_u32 s%d, s2, %d' % (S_IDX, lo))
        p('s_branch L_go' + nm)
        p.label(l)
    p.label('L_exit')
    p('s_endpgm')
    for nm, lo, hi, fn in table:
        if not ROLES.get(nm): continue
        p.label('L_go' + nm); fn(); p('s_branch L_end')
    p.label('L_end')
    stamp(p, 2, st)
    pf_out(p)
    l = p.newlabel('Lok'); p('s_cmp_lg_u32 s%d, 0' % S_SPIN); p('s_cbranch_scc1 %s' % l)
    p('v_mov_b32 v4, 4'); p('v_mov_b32 v5, s2'); p('v_add_u32 v5, 1, v5'); p('global_store_dword v4, v5, s[%d:%d]' % (S_DBG, S_DBG + 1))
    p.label(l)
    p('s_waitcnt vmcnt(0)')
    p('s_endpgm')
    return p.text(), kernel_desc(name), p

def gen_all(st=False, trace_on=False, names=('k0_kernel', 'k1_kernel', 'main_kernel')):
    t0, d0 = pro.gen_k0(names[0]); t1, d1 = pro.gen_k1(names[1]); t2, d2, p = gen_main(names[2], 64, st, trace_on)
    launches = [(names[0], 249, 8192), (names[1], 128, 1024), (names[2], 256, 163840)]
    head = ''.join('; @launch kernel=%s grid=(%d,1,1) block=(256,1,1) lds=%d\n' % l for l in launches)
    return head + HEADER + t0 + t1 + t2 + d0 + d1 + d2, launches

if __name__ == '__main__':
    txt, _ = gen_all()
    open('all.s', 'w').write(txt); print(len(txt))
```

```python
from core import *
import core, pro
from roles2 import flag_store, one_lane_off, tr_base
S_SEG = S_STEP
S_HO = 26; S_OUT = 30; S_FL = 44; S_SET = 45; S_J = 27

def lane_flag_off(p, dst, n, tmp):
    p('v_min_u32 v%d, %d, v1' % (dst, n - 1)); p('v_lshlrev_b32 v%d, %d, v%d' % (dst, FSH, dst))

def gen_L2(p, st=False):
    common_lane_setup(p)
    p('s_and_b32 s%d, s%d, 1' % (S_J, S_IDX)); p('s_lshr_b32 s%d, s%d, 1' % (S_SET, S_IDX))
    one_lane_off(p, 8, 9, const=0)
    p('s_lshl_b32 s%d, s%d, %d' % (S_T0, S_IDX, FSH)); p('s_add_u32 s%d, s%d, %d' % (S_FL, S_T0, F_H2))
    lane_flag_off(p, 0, 40, 9)
    pro.ln_setup(p, 4)
    X0 = 16; D0 = 36; A0 = 76; B0 = 116; T = 156
    pro.ln_load_mod(p, 4, A0, B0, 4, 3, D0)
    stamp(p, 1, st)
    p('s_mov_b32 s%d, s%d' % (S_SEG, S_SET))
    loop = p.newlabel('LL2'); p.label(loop)
    p('s_add_u32 s%d, s%d, 1' % (S_T3, S_SEG)); wait_flags_w0(p, 0, F_X1, S_T3, 7)
    p('s_barrier')
    p('s_lshl_b32 s%d, s%d, 1' % (S_T0, S_SEG)); p('s_add_u32 s%d, s%d, s%d' % (S_T0, S_T0, S_J)); p('s_mul_i32 s%d, s%d, %d' % (S_T1, S_T0, 16 * 1280)); p('s_add_u32 s%d, s%d, %d' % (S_T1, S_T1, OFF_X1))
    for k in range(5): p('buffer_load_dwordx4 %s, v4, s[%d:%d], s%d offen offset:%d sc1' % (vr(X0 + 4 * k, 4), S_WS, S_WS + 3, S_T1, k * 64))
    p('s_mul_i32 s%d, s%d, 20480' % (S_OUT, S_T0)); p('s_mul_i32 s%d, s%d, 5120' % (S_T1, S_WAVE)); p('s_add_u32 s%d, s%d, s%d' % (S_OUT, S_OUT, S_T1)); p('s_add_u32 s%d, s%d, %d' % (S_OUT, S_OUT, OFF_H2))
    p('s_waitcnt vmcnt(0)')
    pro.ln_compute(p, X0, D0, A0, B0, 6, 0, T)
    for k in range(5):
        if k == 4: p('s_add_u32 s%d, s%d, 4096' % (S_OUT, S_OUT))
        p('buffer_store_dwordx4 %s, v2, s[%d:%d], s%d offen offset:%d sc1' % (vr(X0 + 4 * k, 4), S_WS, S_WS + 3, S_OUT, (k % 4) * 1024))
    p('s_waitcnt vmcnt(0)'); p('s_barrier')
    p('s_add_u32 s%d, s%d, 1' % (S_T3, S_SEG)); flag_store(p, 8, S_FL, S_T3, 9)
    p('s_add_u32 s%d, s%d, 2' % (S_SEG, S_SEG)); p('s_cmp_lt_u32 s%d, s%d' % (S_SEG, S_NST)); p('s_cbranch_scc1 %s' % loop)

def gen_F1(p, st=False):
    lg = Cnt(p, 'lgkmcnt', 15); vm = Cnt(p, 'vmcnt', 63)
    srd(p, S_W1, KA['wg'], 640 * 3072); srd(p, S_W2, KA['wu'], 640 * 3072)
    common_lane_setup(p)
    p('s_waitcnt lgkmcnt(0)')
    p('s_cmp_ge_u32 s%d, 24' % S_IDX); p('s_cselect_b32 s%d, 1, 0' % S_SET)
    p('s_mul_i32 s%d, s%d, 24' % (S_T0, S_SET)); p('s_sub_u32 s%d, s%d, s%d' % (S_J, S_IDX, S_T0))
    one_lane_off(p, 8, 9, const=0)
    p('s_lshl_b32 s%d, s%d, %d' % (S_T0, S_IDX, FSH)); p('s_add_u32 s%d, s%d, %d' % (S_FL, S_T0, F_HM))
    p('v_and_b32 v0, 1, v1'); p('s_lshl_b32 s%d, s%d, 1' % (S_T0, S_SET)); p('v_add_u32 v0, s%d, v0' % S_T0); p('v_lshlrev_b32 v0, %d, v0' % FSH)
    p('s_lshl_b32 s%d, s%d, 14' % (S_T4, S_WAVE))
    voffs = [80, 81]
    stage_offsets(p, voffs, 4, 3072, 1, 83, 84)
    tr_base(p, 85, 64, 8, S_T4, 83, 84)
    p('s_lshl_b32 s%d, s%d, 7' % (S_T5, S_J)); p('s_lshr_b32 s%d, s%d, 1' % (S_T0, S_WAVE)); p('s_lshl_b32 s%d, s%d, 6' % (S_T0, S_T0)); p('s_add_u32 s%d, s%d, s%d' % (S_T5, S_T5, S_T0))
    def wreg(mat, x, u, lo=0, n=4):
        f = (u * 4 + mat * 2 + x)
        return ar(4 * f + lo, n) if f < 64 else vr(128 + 4 * (f - 64) + lo, n)
    jobs = []
    for u in range(20):
        for mat in range(2):
            def soff(dst, u=u): p('s_add_u32 s%d, s%d, %d' % (dst, S_T5, u * 32 * 3072))
            dests = [(x * 32, ('reg', wreg(mat, x, u, 0, 2), wreg(mat, x, u, 2, 2))) for x in range(2)]
            jobs.append(dict(srd=S_W1 if mat == 0 else S_W2, soff=soff, dests=dests))
    load_weights_type1(p, jobs, 85, 2048, 8, voffs, 2, 64, lg, vm, 15, 88, S_T4)
    p('s_barrier')
    stamp(p, 1, st)
    p('s_mul_i32 s%d, s%d, 10240' % (S_T6, S_WAVE))
    p('s_and_b32 s%d, s%d, 1' % (S_T0, S_WAVE)); p('s_mul_i32 s%d, s%d, 20480' % (S_T0, S_T0)); p('v_add_u32 v10, s%d, v2' % S_T0)
    ACC = 16; HF = 32; OUT = 48
    p('s_mov_b32 s%d, s%d' % (S_SEG, S_SET))
    loop = p.newlabel('LF1'); p.label(loop)
    p('s_add_u32 s%d, s%d, 1' % (S_T3, S_SEG)); wait_flags_w0(p, 0, F_H2, S_T3, 7)
    p('s_barrier')
    p('s_mul_i32 s%d, s%d, 40960' % (S_HO, S_SEG)); p('s_add_u32 s%d, s%d, s%d' % (S_HO, S_HO, S_T6)); p('s_add_u32 s%d, s%d, %d' % (S_HO, S_HO, OFF_H2))
    for i in range(10):
        p('s_add_u32 s%d, s%d, %d' % (S_T0, S_T6, i * 1024)); p('s_mov_b32 m0, s%d' % S_T0)
        p('s_add_u32 s%d, s%d, %d' % (S_T1, S_HO, i * 1024))
        p('buffer_load_dwordx4 v2, s[%d:%d], s%d offen sc1 lds' % (S_WS, S_WS + 3, S_T1))
    p('s_waitcnt vmcnt(0)'); p('s_barrier')
    lg.reset()
    def hread(u):
        p('ds_read_b128 %s, v10 offset:%d' % (vr(HF + 4 * (u % 4), 4), u * 1024)); lg.issue(('h', u))
    for u in range(3): hread(u)
    for u in range(20):
        if u + 3 < 20: hread(u + 3)
        lg.wait(('h', u))
        for mat in range(2):
            for x in range(2):
                a = ACC + 8 * mat + 4 * x
                p('v_mfma_f32_16x16x32_bf16 %s, %s, %s, %s' % (vr(a, 4), wreg(mat, x, u), vr(HF + 4 * (u % 4), 4), '0' if u == 0 else vr(a, 4)))
    for k in range(8): p('v_mul_f32 v%d, v%d, v%d' % (ACC + k, ACC + k, ACC + 8 + k))
    for k in range(4): p('v_cvt_pk_bf16_f32 v%d, v%d, v%d' % (OUT + k, ACC + 2 * k, ACC + 2 * k + 1))
    p('s_mul_i32 s%d, s%d, 98304' % (S_OUT, S_SEG)); p('s_and_b32 s%d, s%d, 1' % (S_T0, S_WAVE)); p('s_mul_i32 s%d, s%d, 49152' % (S_T0, S_T0)); p('s_add_u32 s%d, s%d, s%d' % (S_OUT, S_OUT, S_T0))
    p('s_lshl_b32 s%d, s%d, 1' % (S_T0, S_J)); p('s_lshr_b32 s%d, s%d, 1' % (S_T1, S_WAVE)); p('s_add_u32 s%d, s%d, s%d' % (S_T0, S_T0, S_T1)); p('s_lshl_b32 s%d, s%d, 10' % (S_T0, S_T0))
    p('s_add_u32 s%d, s%d, s%d' % (S_OUT, S_OUT, S_T0)); p('s_add_u32 s%d, s%d, %d' % (S_OUT, S_OUT, OFF_HM))
    p('buffer_store_dwordx4 %s, v2, s[%d:%d], s%d offen sc1' % (vr(OUT, 4), S_WS, S_WS + 3, S_OUT))
    p('s_waitcnt vmcnt(0)'); p('s_barrier')
    p('s_add_u32 s%d, s%d, 1' % (S_T3, S_SEG)); flag_store(p, 8, S_FL, S_T3, 9)
    p('s_add_u32 s%d, s%d, 2' % (S_SEG, S_SEG)); p('s_cmp_lt_u32 s%d, s%d' % (S_SEG, S_NST)); p('s_cbranch_scc1 %s' % loop)

def gen_F2(p, st=False):
    lg = Cnt(p, 'lgkmcnt', 15); vm = Cnt(p, 'vmcnt', 63)
    srd(p, S_W1, KA['wd'], 1536 * 1280); srd(p, S_W2, KA['out'], 2048 * 1280)
    common_lane_setup(p)
    p('s_waitcnt lgkmcnt(0)')
    p('s_cmp_ge_u32 s%d, 10' % S_IDX); p('s_cselect_b32 s%d, 1, 0' % S_SET)
    p('s_mul_i32 s%d, s%d, 10' % (S_T0, S_SET)); p('s_sub_u32 s%d, s%d, s%d' % (S_J, S_IDX, S_T0))
    p('v_min_u32 v0, 23, v1'); p('s_mul_i32 s%d, s%d, 24' % (S_T0, S_SET)); p('v_add_u32 v0, s%d, v0' % S_T0); p('v_lshlrev_b32 v0, %d, v0' % FSH)
    p('s_lshl_b32 s%d, s%d, 14' % (S_T4, S_WAVE))
    voffs = [80]
    stage_offsets(p, voffs, 2, 1280, 1, 83, 84)
    tr_base(p, 85, 32, 4, S_T4, 83, 84)
    p('s_lshl_b32 s%d, s%d, 2' % (S_T5, S_J)); p('s_add_u32 s%d, s%d, s%d' % (S_T5, S_T5, S_WAVE)); p('s_lshl_b32 s%d, s%d, 5' % (S_T5, S_T5))
    p('s_mov_b32 s%d, s%d' % (S_T7 + 1, S_T5))
    jobs = []
    for u in range(48):
        def soff(dst, u=u): p('s_add_u32 s%d, s%d, %d' % (dst, S_T5, u * 32 * 1280))
        jobs.append(dict(srd=S_W1, soff=soff, dests=[(0, ('reg', ar(4 * u, 2), ar(4 * u + 2, 2)))]))
    load_weights_type1(p, jobs, 85, 1024, 16, voffs, 1, 32, lg, vm, 15, 88, S_T4, zrows=16)
    p('s_barrier')
    p('v_lshrrev_b32 v9, 4, v1'); p('v_lshlrev_b32 v9, 3, v9'); p('v_add_u32 v9, s%d, v9' % S_T5)
    p('v_and_b32 v11, 15, v1'); p('v_mul_u32_u24 v11, 1280, v11'); p('v_add_u32 v11, v11, v9')
    p('s_mov_b32 s%d, %d' % (S_T0, OFF_MOD + 5 * 1280))
    p('buffer_load_dwordx2 v[30:31], v9, s[%d:%d], s%d offen' % (S_WS, S_WS + 3, S_T0))
    p('s_waitcnt vmcnt(0)')
    p('v_lshlrev_b32 v24, 16, v30'); p('v_and_b32 v25, 0xffff0000, v30'); p('v_lshlrev_b32 v26, 16, v31'); p('v_and_b32 v27, 0xffff0000, v31')
    stamp(p, 1, st)
    p('s_mul_i32 s%d, s%d, 24576' % (S_T6, S_WAVE))
    ACC = 16; HF = 32; XR = 64
    p('s_mov_b32 s%d, s%d' % (S_SEG, S_SET))
    loop = p.newlabel('LF2'); p.label(loop)
    p('s_add_u32 s%d, s%d, 1' % (S_T3, S_SEG)); wait_flags_w0(p, 0, F_HM, S_T3, 7)
    p('s_barrier')
    p('s_mul_i32 s%d, s%d, 98304' % (S_HO, S_SEG)); p('s_add_u32 s%d, s%d, %d' % (S_HO, S_HO, OFF_HM))
    p('s_and_b32 s%d, s%d, 1' % (S_T0, S_WAVE)); p('s_mul_i32 s%d, s%d, 49152' % (S_T0, S_T0)); p('s_lshr_b32 s%d, s%d, 1' % (S_T1, S_WAVE)); p('s_mul_i32 s%d, s%d, 24576' % (S_T1, S_T1))
    p('s_add_u32 s%d, s%d, s%d' % (S_T6, S_T0, S_T1)); p('s_add_u32 s%d, s%d, s%d' % (S_HO, S_HO, S_T6))
    for i in range(24):
        p('s_add_u32 s%d, s%d, %d' % (S_T0, S_T6, i * 1024)); p('s_mov_b32 m0, s%d' % S_T0)
        p('s_add_u32 s%d, s%d, %d' % (S_T1, S_HO, i * 1024))
        p('buffer_load_dwordx4 v2, s[%d:%d], s%d offen sc1 lds' % (S_WS, S_WS + 3, S_T1))
    p('s_mul_i32 s%d, s%d, %d' % (S_OUT, S_SEG, 32 * 1280)); p('s_add_u32 s%d, s%d, %d' % (S_T1, S_OUT, OFF_X1))
    p('buffer_load_dwordx2 %s, v11, s[%d:%d], s%d offen sc1' % (vr(XR, 2), S_WS, S_WS + 3, S_T1))
    p('s_add_u32 s%d, s%d, %d' % (S_T1, S_T1, 16 * 1280))
    p('buffer_load_dwordx2 %s, v11, s[%d:%d], s%d offen sc1' % (vr(XR + 2, 2), S_WS, S_WS + 3, S_T1))
    p('s_waitcnt vmcnt(0)'); p('s_barrier')
    lg.reset()
    def hread(u):
        for tau in range(2):
            p('ds_read_b128 %s, v12 offset:%d' % (vr(HF + 8 * (u % 4) + 4 * tau, 4), u * 1024) if tau == 0 else
              'ds_read_b128 %s, v13 offset:%d' % (vr(HF + 8 * (u % 4) + 4 * tau, 4), u * 1024))
            lg.issue(('h', u))
    p('v_mov_b32 v12, v2'); p('v_add_u32 v13, 49152, v2')
    for u in range(3): hread(u)
    for u in range(48):
        if u + 3 < 48: hread(u + 3)
        lg.wait(('h', u))
        for tau in range(2):
            a = ACC + 4 * tau
            p('v_mfma_f32_16x16x32_bf16 %s, %s, %s, %s' % (vr(a, 4), ar(4 * u, 4), vr(HF + 8 * (u % 4) + 4 * tau, 4), '0' if u == 0 else vr(a, 4)))
    for tau in range(2):
        a = ACC + 4 * tau; x = XR + 2 * tau; t = 68
        p('v_lshlrev_b32 v%d, 16, v%d' % (t, x)); p('v_and_b32 v%d, 0xffff0000, v%d' % (t + 1, x)); p('v_lshlrev_b32 v%d, 16, v%d' % (t + 2, x + 1)); p('v_and_b32 v%d, 0xffff0000, v%d' % (t + 3, x + 1))
        for r in range(4): p('v_fmac_f32 v%d, v%d, v%d' % (t + r, 24 + r, a + r))
        p('v_cvt_pk_bf16_f32 v%d, v%d, v%d' % (x, t, t + 1)); p('v_cvt_pk_bf16_f32 v%d, v%d, v%d' % (x + 1, t + 2, t + 3))
        if tau: p('s_add_u32 s%d, s%d, %d' % (S_OUT, S_OUT, 16 * 1280))
        p('buffer_store_dwordx2 %s, v11, s[%d:%d], s%d offen' % (vr(x, 2), S_W2, S_W2 + 3, S_OUT))
    p('s_add_u32 s%d, s%d, 2' % (S_SEG, S_SEG)); p('s_cmp_lt_u32 s%d, s%d' % (S_SEG, S_NST)); p('s_cbranch_scc1 %s' % loop)
```

```python
import re

_REG = re.compile(r'^(-|\|)?(abs\(|neg\()?([vas])(?:(\d+)|\[(\d+):(\d+)\])\)?\|?$')

def regs_of(tok):
    tok = tok.strip()
    if tok in ('vcc',): return [('s', 106), ('s', 107)]
    if tok == 'vcc_lo': return [('s', 106)]
    if tok == 'vcc_hi': return [('s', 107)]
    if tok == 'exec': return [('s', 126), ('s', 127)]
    if tok == 'exec_lo': return [('s', 126)]
    if tok == 'exec_hi': return [('s', 127)]
    if tok == 'm0': return [('s', 124)]
    m = _REG.match(tok)
    if not m: return []
    f = m.group(3)
    if m.group(4) is not None: return [(f, int(m.group(4)))]
    return [(f, i) for i in range(int(m.group(5)), int(m.group(6)) + 1)]

def split_ops(s):
    ops, depth, cur = [], 0, ''
    for ch in s + ',':
        if ch in '[(': depth += 1
        elif ch in '])': depth -= 1
        if ch == ',' and depth == 0:
            ops.append(cur.strip()); cur = ''
        else: cur += ch
    ops = [o for o in ops if o]
    out = []
    for o in ops:
        out.append(o.split()[0] if not o.startswith('|') else o.split()[0])
    return out

TRANS = ('v_exp_f32', 'v_log_f32', 'v_rcp_f32', 'v_rsq_f32', 'v_sqrt_f32', 'v_sin_f32', 'v_cos_f32', 'v_rcp_iflag_f32')

class Ins:
    __slots__ = ('text', 'mn', 'dst', 'src', 'kind', 'states', 'label', 'target', 'mods')
    def __init__(self, text):
        self.text = text
        t = text.split(';')[0].split('//')[0].strip()
        self.label = None; self.target = None; self.dst = []; self.src = []; self.states = 0; self.kind = 'none'; self.mn = ''; self.mods = ''
        if not t: return
        if t.endswith(':'):
            self.label = t[:-1]; self.kind = 'label'; return
        if t.startswith('.'):
            self.kind = 'directive'; return
        parts = t.split(None, 1)
        mn = parts[0]; rest = parts[1] if len(parts) > 1 else ''
        mn = re.sub(r'_(e32|e64)$', '', mn)
        self.mn = mn; self.mods = rest
        ops = split_ops(rest)
        R = [regs_of(o) for o in ops]
        self.states = 1
        flat = lambda L: [r for x in L for r in x]
        if mn == 's_nop':
            self.states = int(rest.strip(), 0) + 1; self.kind = 'salu'; return
        if mn.startswith('v_mfma') :
            self.kind = 'mfma'; self.dst = R[0]; self.src = flat(R[1:]); return
        if mn.startswith('v_smfmac'):
            self.kind = 'mfma'; self.dst = R[0]; self.src = flat(R[1:]) + R[0]; return
        if mn.startswith('v_permlane') and 'swap' in mn:
            self.kind = 'valu'; self.dst = R[0] + R[1]; self.src = R[0] + R[1]; return
        if mn.startswith('v_cmpx'):
            self.kind = 'valu'; self.dst = R[0] + [('s', 126), ('s', 127)]; self.src = flat(R[1:]); return
        if mn.startswith('v_cmp'):
            self.kind = 'valu'; self.dst = R[0]; self.src = flat(R[1:]); return
        if mn in ('v_readfirstlane_b32', 'v_readlane_b32'):
            self.kind = 'valu'; self.dst = R[0]; self.src = flat(R[1:]); return
        if mn.startswith(('v_add_co', 'v_sub_co', 'v_addc_co', 'v_subb_co', 'v_subrev_co')):
            self.kind = 'valu'; self.dst = R[0] + R[1]; self.src = flat(R[2:]); return
        if mn.startswith('v_'):
            self.kind = 'valu'; self.dst = R[0]; self.src = flat(R[1:])
            if mn.startswith(('v_fmac', 'v_mac', 'v_writelane', 'v_dot2c', 'v_pk_fmac')) or '_dpp' in mn or 'sdwa' in mn: self.src = self.src + R[0]
            if mn.startswith('v_cndmask') and len(ops) == 3: self.src += [('s', 106), ('s', 107)]
            return
        if mn.startswith('ds_'):
            self.kind = 'ds'
            if mn.startswith(('ds_read', 'ds_bpermute', 'ds_permute', 'ds_swizzle')) or '_rtn' in mn:
                self.dst = R[0]; self.src = flat(R[1:])
            else: self.src = flat(R)
            return
        if mn.startswith(('buffer_', 'global_', 'flat_')):
            self.kind = 'vmem'
            if mn.startswith(('buffer_wbl2', 'buffer_inv')): return
            islds = (' lds' in (' ' + rest)) or ('load_lds' in mn)
            if 'store' in mn or ('atomic' in mn and 'sc0' not in rest):
                self.src = flat(R)
            elif islds:
                self.src = flat(R) + [('s', 124)]
            else:
                self.dst = R[0]; self.src = flat(R[1:])
                if 'atomic' in mn: self.src += R[0]
            return
        if mn.startswith(('s_cbranch', 's_branch')):
            self.kind = 'branch'; self.target = rest.strip().split()[0]
            if 'vcc' in mn: self.src = [('s', 106), ('s', 107)]
            if 'exec' in mn: self.src = [('s', 126), ('s', 127)]
            return
        if mn.startswith('s_'):
            self.kind = 'salu'
            if mn.startswith(('s_cmp', 's_bitcmp', 's_waitcnt', 's_barrier', 's_endpgm', 's_sleep', 's_setprio', 's_setreg')):
                self.src = flat(R)
            elif mn.startswith('s_load') or mn.startswith('s_buffer_load') or mn.startswith('s_mem'):
                self.kind = 'smem'; self.dst = R[0] if R else []; self.src = flat(R[1:])
            else:
                self.dst = R[0] if R else []; self.src = flat(R[1:])
                if 'saveexec' in mn: self.dst = self.dst + [('s', 126), ('s', 127)]
            return
        raise ValueError('unknown instruction: ' + text)

def mfma_passes(mn):
    if '32x32' in mn: return 8
    return 4

def needed(ins, events):
    need = 0
    srcs = set(ins.src); dsts = set(ins.dst)
    isvalu = ins.kind == 'valu'; ismf = ins.kind == 'mfma'
    for (k, regs, age, extra) in events:
        req = 0
        if k == 'valu_w':
            if ismf and regs & srcs: req = 2
            if isvalu and ins.mn.startswith('v_permlane') and regs & srcs: req = max(req, 2)
            if isvalu and '_dpp' in ins.mn and regs & srcs: req = max(req, 2)
            if isvalu and ins.mn in ('v_readfirstlane_b32', 'v_readlane_b32') and regs & srcs: req = max(req, 1)
        elif k == 'trans_w':
            if (isvalu or ismf) and regs & srcs: req = 1 if isvalu else 2
            elif ins.kind in ('vmem', 'ds') and regs & srcs: req = 1
        elif k == 'valu_sw':
            if isvalu and regs & srcs:
                req = 4 if ins.mn in ('v_readlane_b32', 'v_writelane_b32') else 2
            if ins.kind == 'vmem' and regs & srcs: req = 5
            if ins.kind in ('salu', 'smem') and regs & srcs: req = max(req, extra)
        elif k == 'valu_exec':
            if ismf: req = 4
            elif isvalu and ('_dpp' in ins.mn): req = 5
            elif isvalu and (ins.mn.startswith('v_permlane') or ins.mn.startswith('v_read') or ins.mn.startswith('v_writelane')): req = 4
        elif k == 'mfma_w':
            p = extra
            if ismf:
                creg = set(ins.dst) if ins.mn.startswith('v_smfmac') else set(_mfma_c(ins))
                ab = srcs - creg
                if regs & ab: req = p + 4
                elif regs & creg and regs != creg: req = p + 2
                elif regs & dsts and not (regs & creg): req = p + 4
            elif isvalu:
                if regs & (srcs | dsts): req = p + 4
            elif ins.kind in ('vmem', 'ds'):
                if regs & (srcs | dsts): req = p + 4
        elif k == 'mfma_c':
            if isvalu and regs & dsts: req = extra - 1
        elif k == 'store_w':
            if isvalu and regs & dsts: req = 2
            elif ins.kind in ('ds', 'vmem', 'mfma') and regs & dsts: req = 1
        elif k == 'm0_w':
            if ('s', 124) in srcs and ins.kind in ('vmem', 'ds'): req = 1
        elif k == 'salu_exec':
            pass
        if req - age > need: need = req - age
    return need

def _mfma_c(ins):
    ops = split_ops(ins.mods)
    return regs_of(ops[3]) if len(ops) > 3 else []

def produce(ins):
    ev = []
    vd = frozenset(r for r in ins.dst if r[0] in 'va')
    sd = frozenset(r for r in ins.dst if r[0] == 's')
    if ins.kind == 'valu':
        if vd:
            ev.append(('valu_w', vd, 0, 0))
            if ins.mn in TRANS: ev.append(('trans_w', vd, 0, 0))
        if sd:
            ev.append(('valu_sw', sd, 0, 4 if ins.mn.startswith('v_read') else 0))
            if ('s', 126) in sd: ev.append(('valu_exec', sd, 0, 0))
    elif ins.kind == 'mfma':
        p = mfma_passes(ins.mn)
        ev.append(('mfma_w', frozenset(ins.dst), 0, p))
        c = frozenset(ins.dst) if ins.mn.startswith('v_smfmac') else frozenset(_mfma_c(ins))
        if c: ev.append(('mfma_c', c, 0, p))
    elif ins.kind == 'vmem' and 'store' in ins.mn and (ins.mn.endswith('x4') or ins.mn.endswith('x3')):
        ops = split_ops(ins.mods)
        data = regs_of(ops[0]) if ins.mn.startswith('buffer') else regs_of(ops[1])
        ev.append(('store_w', frozenset(data), 0, 0))
    elif ins.kind == 'salu' and ('s', 124) in sd:
        ev.append(('m0_w', sd, 0, 0))
    return ev

MAXAGE = 24
def age_events(events, n, mfma=False):
    out = []
    for (k, r, a, e) in events:
        d = 3 if (mfma and RELAX and k in ('mfma_w', 'mfma_c')) else n
        if a + d < MAXAGE: out.append((k, r, a + d, e))
    return out
RELAX = True

def merge(a, b):
    d = {}
    for (k, r, ag, e) in a + b:
        key = (k, r, e)
        d[key] = min(d.get(key, 99), ag)
    return [(k, r, ag, e) for (k, r, e), ag in d.items()]

class Prog:
    def __init__(self):
        self.lines = []
        self.uid = 0
    def __call__(self, text):
        for ln in text.split('\n'):
            if ln.strip(): self.lines.append(ln.strip())
    def raw(self, text): self.lines.append(text)
    def label(self, name): self.lines.append(name + ':')
    def newlabel(self, base='L'):
        self.uid += 1
        return '%s_%d' % (base, self.uid)
    def finalize(self):
        ins = [Ins(l) for l in self.lines]
        pads = [0] * len(ins)
        labels = {x.label: i for i, x in enumerate(ins) if x.label}
        for it in range(6):
            entry = {}
            changed = False
            for rnd in range(2):
                ev = []
                for i, x in enumerate(ins):
                    if x.kind == 'label':
                        ev = merge(ev, entry.get(x.label, []))
                        continue
                    if x.kind in ('none', 'directive'): continue
                    if pads[i]: ev = age_events(ev, pads[i])
                    n = needed(x, ev)
                    if n > 0 and rnd == 1:
                        pads[i] += n; changed = True
                        ev = age_events(ev, n)
                    ev = age_events(ev, x.states, x.kind == 'mfma')
                    ev = ev + produce(x)
                    if x.kind == 'branch':
                        if x.target in labels:
                            entry[x.target] = merge(entry.get(x.target, []), ev)
                        if x.mn == 's_branch': ev = []
                    if x.mn == 's_endpgm': ev = []
            if not changed: break
        out = []
        nn = 0
        for i, x in enumerate(ins):
            p = pads[i]
            while p > 0:
                k = min(p, 16)
                out.append('  s_nop %d' % (k - 1)); p -= k; nn += 1
            t = x.text
            out.append(t if x.kind in ('label',) or t.startswith('.') or t.startswith(';') else '  ' + t)
        self.nops = nn
        return out
    def text(self):
        return '\n'.join(self.finalize()) + '\n'
```

```python
from asmlib import Prog
from layout import *

WS_BYTES = 268435456
KA = dict(x=0, mem0=8, Wq=16, Wk=24, Wv=32, Wo=40, wg=64, wu=72, wd=80, c=88, wmod=96, out=104, dbg=112, ws=120)

FS = 128
F_QK = OFF_FLAGS; F_VO = F_QK + 32 * FS; F_P = F_VO + 32 * FS; F_X1 = F_P + 32 * FS; F_H2 = F_X1 + 40 * FS; F_HM = F_H2 + 4 * FS; F_END = F_HM + 48 * FS
FSH = 7
S_WS = 4
S_W1 = 8
S_W2 = 12
S_WAVE = 16; S_IDX = 17; S_STEP = 18; S_SPIN = 19
S_T0 = 20; S_T1 = 21; S_T2 = 22; S_T3 = 23
S_MASK = 24
S_MEMO = 26; S_PO = 27; S_ZO = 28; S_QKO = 29; S_VOO = 30; S_NST = 31
S_DBG = 32
S_T4 = 34; S_T5 = 35; S_T6 = 36; S_T7 = 37
S_C = 38
S_TR0 = 40
S_TRO = 42
S_COMM = 43
PARITY = 0
DYN_PAR = False
HIST = True
SPIN_BUDGET = 400000

class Cnt:
    def __init__(self, p, name, maxv):
        self.p = p; self.name = name; self.maxv = maxv; self.q = []
    def issue(self, tag): self.q.append(tag)
    def wait(self, tag):
        if tag not in self.q: return
        i = len(self.q) - 1 - self.q[::-1].index(tag)
        n = len(self.q) - 1 - i
        n = min(n, self.maxv)
        self.p('s_waitcnt %s(%d)' % (self.name, n))
        self.q = self.q[len(self.q) - n:] if n else []
    def drain(self):
        self.p('s_waitcnt %s(0)' % self.name); self.q = []
    def reset(self): self.q = []

def srd(p, s, karg, nbytes):
    p('s_load_dwordx2 s[%d:%d], s[0:1], %d' % (s, s + 1, karg))
    p('s_mov_b32 s%d, 0x%x' % (s + 2, nbytes))
    p('s_mov_b32 s%d, 0x00020000' % (s + 3))

def vr(a, n=1): return 'v%d' % a if n == 1 else 'v[%d:%d]' % (a, a + n - 1)
def ar(a, n=1): return 'a%d' % a if n == 1 else 'a[%d:%d]' % (a, a + n - 1)

def unit_reg(rr, lo=0, n=8):
    if rr < 32: return ar(8 * rr + lo, n)
    return vr(128 + 8 * (rr - 32) + lo, n)

def unit_map():
    m = []; rr = 0
    for o in range(60):
        if o % 5 == 4: m.append(('lds', o // 5))
        else: m.append(('reg', rr)); rr += 1
    return m
UM = unit_map()

def poll_check(p, regs, tmp, done, again):
    r = list(regs)
    p('v_max3_u32 v%d, v%d, v%d, v%d' % (tmp, r[0], r[1], r[2])); r = r[3:]
    while len(r) >= 2:
        p('v_max3_u32 v%d, v%d, v%d, v%d' % (tmp, tmp, r[0], r[1])); r = r[2:]
    if r: p('v_max_u32 v%d, v%d, v%d' % (tmp, tmp, r[0]))
    p('v_cmp_eq_u32 vcc, -1, v%d' % tmp)
    p('s_cbranch_vccz %s' % done)
    p('s_cmp_eq_u32 s%d, 0' % S_SPIN)
    p('s_cbranch_scc1 %s' % done)
    p('s_sub_u32 s%d, s%d, 1' % (S_SPIN, S_SPIN))
    p('s_branch %s' % again)

POLL_D = 4
POLL_DK = {}
R_MODE = 0
POLL_SLEEP = {'mem': 1, 'z': 1, 'p': 2}
PRE_SLEEP = {'memA': 0, 'memB': 0, 'z': 0, 'p': 0}
def poll_loop(p, loads, regs, tmp, kind, pre=None):
    top = p.newlabel('Lpl'); done = p.newlabel('Lpld')
    for r in regs: p('v_mov_b32 v%d, -1' % r)
    if pre and PRE_SLEEP[pre]: p('s_sleep %d' % PRE_SLEEP[pre])
    p.label(top)
    n = loads()
    p('s_waitcnt vmcnt(%d)' % (n * (POLL_DK.get(kind, POLL_D) - 1)))
    r = list(regs)
    p('v_max3_u32 v%d, v%d, v%d, v%d' % (tmp, r[0], r[1], r[2])); r = r[3:]
    while len(r) >= 2:
        p('v_max3_u32 v%d, v%d, v%d, v%d' % (tmp, tmp, r[0], r[1])); r = r[2:]
    if r: p('v_max_u32 v%d, v%d, v%d' % (tmp, tmp, r[0]))
    p('v_cmp_eq_u32 vcc, -1, v%d' % tmp)
    p('s_cbranch_vccz %s' % done)
    if POLL_SLEEP[kind]: p('s_sleep %d' % POLL_SLEEP[kind])
    p('s_cmp_eq_u32 s%d, 0' % S_SPIN)
    p('s_cbranch_scc1 %s' % done)
    p('s_sub_u32 s%d, s%d, 1' % (S_SPIN, S_SPIN))
    p('s_branch %s' % top)
    p.label(done)

def step_offsets(p, mem_add=0, want=('mem', 'p', 'z')):
    if 'mem' in want:
        p('s_add_u32 s%d, s%d, %d' % (S_T0, S_STEP, mem_add)); p('s_and_b32 s%d, s%d, %d' % (S_T0, S_T0, MEM_RING - 1))
        p('s_lshl_b32 s%d, s%d, 15' % (S_T0, S_T0)); p('s_add_u32 s%d, s%d, s%d' % (S_MEMO, S_T0, S_COMM))
        if BLK_MEM: p('s_add_u32 s%d, s%d, %d' % (S_MEMO, S_MEMO, BLK_MEM * BLK))
    if 'p' in want:
        p('s_and_b32 s%d, s%d, %d' % (S_T0, S_STEP, P_RING - 1)); p('s_mul_i32 s%d, s%d, %d' % (S_T0, S_T0, 3 * BLK))
        p('s_add_u32 s%d, s%d, s%d' % (S_PO, S_T0, S_COMM)); p('s_add_u32 s%d, s%d, %d' % (S_PO, S_PO, BLK_P * BLK))
    if 'z' in want:
        p('s_and_b32 s%d, s%d, %d' % (S_T0, S_STEP, Z_RING - 1)); p('s_mul_i32 s%d, s%d, %d' % (S_T0, S_T0, 40 * BLK))
        p('s_add_u32 s%d, s%d, s%d' % (S_ZO, S_T0, S_COMM)); p('s_add_u32 s%d, s%d, %d' % (S_ZO, S_ZO, BLK_Z * BLK))

def comm_setup(p):
    p('s_add_u32 s%d, s%d, %d' % (S_T0, S_WS, OFF_COMM))
    p('s_sub_u32 s%d, 0, s%d' % (S_T0, S_T0)); p('s_and_b32 s%d, s%d, 0x1fffff' % (S_T0, S_T0))
    p('s_add_u32 s%d, s%d, %d' % (S_COMM, S_T0, OFF_COMM + (0 if DYN_PAR else PARITY * 8192)))

def wait_flags(p, voff, foff, need_s, tmp, sleep=2):
    top = p.newlabel('Lwf'); done = p.newlabel('Lwfd')
    p('s_mov_b32 s%d, %d' % (S_T2, foff))
    p.label(top)
    p('buffer_load_dword v%d, v%d, s[%d:%d], s%d offen sc1' % (tmp, voff, S_WS, S_WS + 3, S_T2))
    p('s_waitcnt vmcnt(0)')
    p('v_cmp_gt_u32 vcc, s%d, v%d' % (need_s, tmp))
    p('s_cbranch_vccz %s' % done)
    p('s_sleep %d' % sleep)
    p('s_cmp_eq_u32 s%d, 0' % S_SPIN); p('s_cbranch_scc1 %s' % done)
    p('s_sub_u32 s%d, s%d, 1' % (S_SPIN, S_SPIN)); p('s_branch %s' % top)
    p.label(done)

def wait_flags_w0(p, voff, foff, need_s, tmp, sleep=4):
    l = p.newlabel('Lw0'); p('s_cmp_lg_u32 s%d, 0' % S_WAVE); p('s_cbranch_scc1 %s' % l)
    wait_flags(p, voff, foff, need_s, tmp, sleep)
    p.label(l)

def dbg_srd(p, s):
    p('s_mov_b32 s%d, s%d' % (s, S_DBG)); p('s_mov_b32 s%d, s%d' % (s + 1, S_DBG + 1))
    p('s_mov_b32 s%d, 256' % (s + 2)); p('s_mov_b32 s%d, 0x00020000' % (s + 3))

def parity_probe(p):
    if not DYN_PAR: return
    l = p.newlabel('Lpp'); p('s_cmp_lg_u32 s%d, 0' % S_WAVE); p('s_cbranch_scc1 %s' % l)
    p('s_cmp_lg_u32 s%d, 0' % S_IDX); p('s_cbranch_scc1 %s' % l)
    p('v_mov_b32 v16, 0'); p('v_mov_b32 v17, -1')
    p('s_mov_b32 s48, 0'); p('s_mov_b32 s49, 0')
    for i in range(4):
        for par in range(2):
            p('s_add_u32 s%d, s%d, %d' % (S_T0, S_COMM, (112 + i) * BLK + par * 8192 + i * 256))
            p('buffer_store_dword v17, v16, s[%d:%d], s%d offen sc1' % (S_WS, S_WS + 3, S_T0))
            p('s_waitcnt vmcnt(0)')
            p('s_memtime s[50:51]'); p('s_waitcnt lgkmcnt(0)')
            p('buffer_load_dword v18, v16, s[%d:%d], s%d offen sc1' % (S_WS, S_WS + 3, S_T0))
            p('s_waitcnt vmcnt(0)')
            p('s_memtime s[52:53]'); p('s_waitcnt lgkmcnt(0)')
            p('s_sub_u32 s50, s52, s50')
            if i > 0: p('s_add_u32 s%d, s%d, s50' % (48 + par, 48 + par))
    p('s_cmp_lt_u32 s49, s48'); p('s_cselect_b32 s50, 2, 1')
    dbg_srd(p, 52)
    p('v_mov_b32 v17, s50')
    p('v_cmp_eq_u32 vcc, 0, v1'); p('v_mov_b32 v18, 0x7ff00000'); p('v_cndmask_b32 v16, v18, v16, vcc')
    p('buffer_store_dword v17, v16, s[52:55], 0 offen sc1')
    p('s_waitcnt vmcnt(0)')
    p.label(l)

def parity_wait(p):
    if not DYN_PAR: return
    dbg_srd(p, 52)
    top = p.newlabel('Lpw'); done = p.newlabel('Lpwd')
    p('v_mov_b32 v16, 0')
    p.label(top)
    p('buffer_load_dword v17, v16, s[52:55], 0 offen sc1'); p('s_waitcnt vmcnt(0)')
    p('v_readfirstlane_b32 s50, v17')
    p('s_cmp_lg_u32 s50, 0'); p('s_cbranch_scc1 %s' % done)
    p('s_sleep 4')
    p('s_cmp_eq_u32 s%d, 0' % S_SPIN); p('s_cbranch_scc1 %s' % done)
    p('s_sub_u32 s%d, s%d, 1' % (S_SPIN, S_SPIN)); p('s_branch %s' % top)
    p.label(done)
    p('s_lshr_b32 s50, s50, 1'); p('s_lshl_b32 s50, s50, 13'); p('s_add_u32 s%d, s%d, s50' % (S_COMM, S_COMM))

TRV = 46
def trace(p, slot, on):
    if not on: return
    l = p.newlabel('Ltr')
    p('s_cmp_lg_u32 s%d, 0' % S_WAVE)
    p('s_cbranch_scc1 %s' % l)
    p('s_memrealtime s[%d:%d]' % (S_TR0, S_TR0 + 1))
    p('s_lshl_b32 s%d, s%d, 8' % (S_T7, S_STEP))
    p('s_add_u32 s%d, s%d, s2' % (S_T7, S_T7))
    p('s_lshl_b32 s%d, s%d, 4' % (S_T7, S_T7))
    p('s_add_u32 s%d, s%d, %d' % (S_T7, S_T7, OFF_TRACE + slot * 4))
    p('s_waitcnt lgkmcnt(0)')
    p('v_mov_b32 v%d, s%d' % (TRV, S_TR0))
    p('v_mov_b32 v%d, 0' % (TRV + 1))
    p('buffer_store_dword v%d, v%d, s[%d:%d], s%d offen' % (TRV, TRV + 1, S_WS, S_WS + 3, S_T7))
    p.label(l)

PROF = False
FUSED = False
PSEG = True
USE_FLAGS = True
NOBG = 0
def pf(p, k):
    if PROF: p('s_memtime s[%d:%d]' % (46 + 2 * k, 47 + 2 * k))
def pf_init(p):
    if PROF:
        for k in range(5): p('s_mov_b32 s%d, 0' % (56 + k))
def pf_acc(p):
    if PROF:
        p('s_waitcnt lgkmcnt(0)')
        for k in range(4):
            p('s_sub_u32 s61, s%d, s%d' % (48 + 2 * k, 46 + 2 * k))
            p('s_add_u32 s%d, s%d, s61' % (56 + k, 56 + k))
def pf_out(p):
    if PROF:
        l = p.newlabel('Lpf')
        p('s_cmp_lg_u32 s%d, 0' % S_WAVE); p('s_cbranch_scc1 %s' % l)
        p('s_lshl_b32 s%d, s2, 6' % S_T7)
        p('s_add_u32 s%d, s%d, %d' % (S_T7, S_T7, OFF_TRACE + 524288 + 32))
        for k in range(4): p('v_mov_b32 v%d, s%d' % (20 + k, 56 + k))
        p('v_mov_b32 v7, 0')
        p('buffer_store_dwordx4 v[20:23], v7, s[%d:%d], s%d offen' % (S_WS, S_WS + 3, S_T7))
        p('v_mov_b32 v24, s60'); p('v_mov_b32 v25, s62'); p('buffer_store_dwordx2 v[24:25], v7, s[%d:%d], s%d offen offset:16' % (S_WS, S_WS + 3, S_T7))
        p.label(l)

def stamp(p, slot, on):
    if not on: return
    l = p.newlabel('Lst')
    p('s_cmp_lg_u32 s%d, 0' % S_WAVE)
    p('s_cbranch_scc1 %s' % l)
    p('s_memrealtime s[%d:%d]' % (S_TR0, S_TR0 + 1))
    p('s_memtime s[46:47]')
    p('s_lshl_b32 s%d, s2, 6' % S_T7)
    p('s_add_u32 s%d, s%d, %d' % (S_T7, S_T7, OFF_TRACE + 524288 + slot * 8))
    p('s_waitcnt lgkmcnt(0)')
    p('v_mov_b32 v16, s%d' % S_TR0)
    p('v_mov_b32 v17, s46')
    p('v_mov_b32 v7, 0')
    p('buffer_store_dwordx2 v[16:17], v7, s[%d:%d], s%d offen' % (S_WS, S_WS + 3, S_T7))
    p('s_waitcnt vmcnt(0)')
    p.label(l)

DEEP_LOAD = False
def load_weights_type1(p, jobs, stg_base_v, slot_bytes, nslots, voffs, ninstr, rowbytes, lg, vm, wres_v, tmpv, stg_s, zrows=4):
    if DEEP_LOAD and all(len(j['dests']) == ninstr for j in jobs):
        return load_weights_deep(p, jobs, stg_base_v, slot_bytes, nslots, voffs, ninstr, rowbytes, wres_v, stg_s, zrows)
    n = len(jobs)
    def issue(j):
        job = jobs[j]
        job['soff'](S_T0)
        for i in range(ninstr):
            p('s_add_u32 s%d, s%d, %d' % (S_T1, stg_s, (j % nslots) * slot_bytes + i * 1024))
            p('s_mov_b32 m0, s%d' % S_T1)
            p('buffer_load_dwordx4 v%d, s[%d:%d], s%d offen lds' % (voffs[i], job['srd'], job['srd'] + 3, S_T0))
            vm.issue(('w', j))
    depth = nslots - 1
    for j in range(min(depth, n)): issue(j)
    for j in range(n):
        vm.wait(('w', j))
        slot = (j % nslots) * slot_bytes
        pend = []
        for di, (toff, dest) in enumerate(jobs[j]['dests']):
            if dest[0] == 'reg':
                for z in range(2):
                    p('ds_read_b64_tr_b16 %s, v%d offset:%d' % (dest[1 + z], stg_base_v, slot + z * zrows * rowbytes + toff))
            else:
                t = tmpv + 4 * (len(pend) % 3)
                for z in range(2):
                    p('ds_read_b64_tr_b16 %s, v%d offset:%d' % (vr(t + 2 * z, 2), stg_base_v, slot + z * zrows * rowbytes + toff))
                pend.append((t, dest[1]))
        p('s_waitcnt lgkmcnt(0)')
        for (t, off) in pend:
            p('ds_write_b128 v%d, %s offset:%d' % (wres_v, vr(t, 4), off))
        if j + depth < n: issue(j + depth)
    p('s_waitcnt lgkmcnt(0)')

def _quad(op2):
    import re
    m = re.match(r'([va])\[(\d+):', op2); return '%s[%d:%d]' % (m.group(1), int(m.group(2)), int(m.group(2)) + 3)

DEEP_TMP = 16
def load_weights_deep(p, jobs, stg_base_v, slot_bytes, nslots, voffs, ninstr, rowbytes, wres_v, stg_s, zrows):
    n = len(jobs)
    vm = Cnt(p, 'vmcnt', 63); lg = Cnt(p, 'lgkmcnt', 15)
    raw = []; tmpi = 0
    for job in jobs:
        q = []
        for (toff, dest) in job['dests']:
            if dest[0] == 'reg': q.append(_quad(dest[1]))
            else: q.append(vr(DEEP_TMP + 4 * (tmpi % 16), 4)); tmpi += 1
        raw.append(q)
    p('v_add_u32 v127, s%d, v2' % stg_s)
    maxjobs = 60 // ninstr
    def lds_cnt(a, b): return sum(1 for j in range(a, b) for (t, d) in jobs[j]['dests'] if d[0] == 'lds')
    issued = [0]
    def issue_upto(done):
        while issued[0] < n and issued[0] - done < maxjobs and lds_cnt(done, issued[0] + 1) <= 16:
            j = issued[0]; jobs[j]['soff'](S_T0)
            for i in range(ninstr):
                p('buffer_load_dwordx4 %s, v%d, s[%d:%d], s%d offen' % (raw[j][i], voffs[i], jobs[j]['srd'], jobs[j]['srd'] + 3, S_T0)); vm.issue(('w', j))
            issued[0] += 1
    issue_upto(0)
    def wr(j):
        vm.wait(('w', j))
        for i in range(ninstr):
            p('ds_write_b128 v127, %s offset:%d' % (raw[j][i], (j % nslots) * slot_bytes + i * 1024)); lg.issue(('sw', j))
    wr(0)
    for j in range(n):
        if j + 1 < n: wr(j + 1)
        lg.wait(('sw', j))
        slot = (j % nslots) * slot_bytes
        for di, (toff, dest) in enumerate(jobs[j]['dests']):
            ops = (dest[1], dest[2]) if dest[0] == 'reg' else tuple(raw[j][di].replace(']', ']') and x for x in (_half(raw[j][di], 0), _half(raw[j][di], 1)))
            for z in range(2):
                p('ds_read_b64_tr_b16 %s, v%d offset:%d' % (ops[z], stg_base_v, slot + z * zrows * rowbytes + toff)); lg.issue(('tr', j))
        ldsd = [(di, d) for di, (t, d) in enumerate(jobs[j]['dests']) if d[0] == 'lds']
        if ldsd or nslots < 3:
            lg.wait(('tr', j))
        for di, d in ldsd:
            p('ds_write_b128 v%d, %s offset:%d' % (wres_v, raw[j][di], d[1])); lg.issue(('rw', j))
        if ldsd: lg.wait(('rw', j))
        issue_upto(j + 1)
    p('s_waitcnt lgkmcnt(0)')

def _half(q, z):
    import re
    m = re.match(r'([va])\[(\d+):', q); b = int(m.group(2)) + 2 * z
    return '%s[%d:%d]' % (m.group(1), b, b + 1)

def magic_div(p, dst, src, d, tmp_s):
    m = (1 << 20) // d + 1
    for x in range(4096): assert (x * m) >> 20 == x // d
    p('s_mov_b32 s%d, %d' % (tmp_s, m))
    p('v_mul_lo_u32 v%d, v%d, s%d' % (dst, src, tmp_s))
    p('v_lshrrev_b32 v%d, 20, v%d' % (dst, dst))

def stage_offsets(p, voffs, cpr, gstride, vlane, t1, t2):
    for i, vo in enumerate(voffs):
        p('v_add_u32 v%d, %d, v%d' % (t1, i * 64, vlane))
        magic_div(p, t2, t1, cpr, S_T0)
        p('v_mul_u32_u24 v%d, %d, v%d' % (vo, cpr, t2))
        p('v_sub_u32 v%d, v%d, v%d' % (vo, t1, vo))
        p('v_lshlrev_b32 v%d, 4, v%d' % (vo, vo))
        p('s_mov_b32 s%d, %d' % (S_T0, gstride))
        p('v_mul_lo_u32 v%d, v%d, s%d' % (t2, t2, S_T0))
        p('v_add_u32 v%d, v%d, v%d' % (vo, vo, t2))

def common_lane_setup(p):
    p('v_lshrrev_b32 v3, 6, v0')
    p('v_and_b32 v1, 63, v0')
    p('v_readfirstlane_b32 s%d, v3' % S_WAVE)
    p('v_lshlrev_b32 v2, 4, v1')
    p('s_mov_b32 s%d, %d' % (S_SPIN, SPIN_BUDGET))

def mem_gather_setup(p, memx):
    p('s_mul_i32 s%d, s%d, 3' % (S_T0, S_WAVE))
    def tmod(dst, add):
        p('s_add_u32 s%d, s%d, %d' % (dst, S_T0, add))
        p('s_sub_u32 s%d, s%d, 10' % (S_T2, dst))
        p('s_cmp_ge_u32 s%d, 10' % dst)
        p('s_cselect_b32 s%d, s%d, s%d' % (dst, S_T2, dst))
        p('s_lshl_b32 s%d, s%d, 10' % (dst, dst))
    for j in range(3):
        tmod(S_T1, j)
        p('s_add_u32 s%d, s%d, 8192' % (S_T2, S_T1)); p('s_cmp_ge_u32 s%d, 8192' % S_T1); p('s_cselect_b32 s%d, s%d, s%d' % (S_T1, S_T2, S_T1))
        p('v_add_u32 v%d, s%d, v2' % (4 + j, S_T1))
    for (vreg, tau) in ((8, 3), (9, 4), (10, 7)):
        tmod(S_T1, tau)
        p('s_add_u32 s%d, s%d, %d' % (S_T1, S_T1, memx))
        p('v_add_u32 v%d, s%d, v2' % (vreg, S_T1))
    p('v_and_b32 v3, 8, v1')
    p('v_cmp_eq_u32 vcc, 0, v3')
    p('v_mov_b32 v3, 0xeeeeeeee')
    p('v_mov_b32 v7, 0x44444444')
    p('v_cndmask_b32 v3, v3, v7, vcc')

def memfrag_addr(tau, memx_unused=None):
    if tau == 3: return (8, 0)
    if tau <= 6: return (9, (tau - 4) * 1024)
    return (10, (tau - 7) * 1024)

P0 = 40; RING = 52; WST = 64

def emit_poll_mem(p, memx, lg, pre):
    def loads():
        for j in range(3):
            p('buffer_load_dwordx4 %s, v%d, s[%d:%d], s%d offen sc1' % (vr(P0 + 4 * j, 4), 4 + j, S_WS, S_WS + 3, S_MEMO))
        return 3
    poll_loop(p, loads, range(P0, P0 + 12), 7, 'mem', pre)
    for j in range(3):
        p('ds_write_b128 v%d, %s' % (RING + j, vr(P0 + 4 * j, 4)))
        lg.issue(('mw', j))

def mem_lds_addr(p):
    for j in range(3):
        p('v_lshrrev_b32 v7, 1, v%d' % (4 + j)); p('v_and_b32 v7, 0x2000, v7')
        p('v_and_b32 v%d, 0x1fff, v%d' % (RING + j, 4 + j)); p('v_or_b32 v%d, v7, v%d' % (RING + j, RING + j))

def wst_load(p, k, wres_v, lg):
    b = WST + 8 * (k & 1)
    p('ds_read_b128 %s, v%d offset:%d' % (vr(b, 4), wres_v, k * 2048)); lg.issue(('w', k))
    p('ds_read_b128 %s, v%d offset:%d' % (vr(b + 4, 4), wres_v, k * 2048 + 1024)); lg.issue(('w', k))

def smf(p, acc, afrag, o, lg, wres_v, idxv=3, nlds=12):
    kind, n = UM[o]
    if kind == 'reg':
        p('v_smfmac_f32_16x16x64_bf16 %s, %s, %s, v%d' % (vr(acc, 4), vr(afrag, 4), unit_reg(n), idxv))
    else:
        lg.wait(('w', n))
        p('v_smfmac_f32_16x16x64_bf16 %s, %s, %s, v%d' % (vr(acc, 4), vr(afrag, 4), vr(WST + 8 * (n & 1), 8), idxv))
        if n + 2 < nlds: wst_load(p, n + 2, wres_v, lg)

def proj_phase(p, lg, ntile, acc0, obase, wres_v, extra=None):
    def frag(tau): return P0 + 4 * tau if tau < 3 else RING + 4 * ((tau - 3) % 3)
    def rd(tau):
        a, off = memfrag_addr(tau)
        p('ds_read_b128 %s, v%d offset:%d' % (vr(frag(tau), 4), a, off)); lg.issue(('m', tau))
    for tau in range(10):
        if tau == 2:
            lg.wait(('mw', 2))
            p('s_barrier')
            for t in (3, 4, 5): rd(t)
        if tau >= 3: lg.wait(('m', tau))
        for tile in range(ntile):
            smf(p, acc0 + 4 * tile, frag(tau), obase + tau * ntile + tile, lg, wres_v)
        if tau >= 3 and tau + 3 < 10: rd(tau + 3)
        if extra: extra(tau)

def half_sum(p, X, Y):
    for r in range(4): p('v_permlane32_swap_b32 v%d, v%d' % (X + r, Y + r))
    for r in range(4): p('v_add_f32 v%d, v%d, v%d' % (X + r, X + r, Y + r))

A_MEMX = 0; A_QX = 10240; A_QKB = 16384; A_WRES = 65536
def gen_A(p, trace_on=False, st=False):
    lg = Cnt(p, 'lgkmcnt', 15); vm = Cnt(p, 'vmcnt', 63)
    h = S_IDX
    srd(p, S_W1, KA['Wq'], 640 * 12288); srd(p, S_W2, KA['Wk'], 640 * 12288)
    common_lane_setup(p)
    p('s_waitcnt lgkmcnt(0)')
    mem_gather_setup(p, A_MEMX)
    p('s_mul_i32 s%d, s%d, 24576' % (S_T0, S_WAVE)); p('s_add_u32 s%d, s%d, 65536' % (S_T0, S_T0)); p('v_add_u32 v15, s%d, v2' % S_T0)
    STG = A_MEMX
    voffs = [80, 81, 82]
    stage_offsets(p, voffs, 6, 12288, 1, 83, 84)
    p('v_lshrrev_b32 v83, 4, v1'); p('v_lshlrev_b32 v83, 3, v83')
    p('v_bfe_u32 v84, v1, 2, 2'); p('v_add_u32 v83, v83, v84')
    p('v_mul_u32_u24 v83, 96, v83'); p('v_and_b32 v84, 3, v1'); p('v_lshlrev_b32 v84, 3, v84')
    p('v_add_u32 v85, v83, v84')
    p('s_lshl_b32 s%d, s%d, 14' % (S_T4, S_WAVE)); p('s_add_u32 s%d, s%d, %d' % (S_T4, S_T4, STG))
    p('v_add_u32 v85, s%d, v85' % S_T4)
    p('s_mul_i32 s%d, s%d, 384' % (S_T5, h)); p('s_mul_i32 s%d, s%d, 96' % (S_T0, S_WAVE)); p('s_add_u32 s%d, s%d, s%d' % (S_T5, S_T5, S_T0))
    p('s_mul_i32 s%d, s%d, 3' % (S_T6, S_WAVE))
    jobs = []
    for tau in range(10):
        for half in range(2):
            for mat in range(2):
                def soff(dst, tau=tau, half=half):
                    p('s_add_u32 s%d, s%d, %d' % (dst, S_T6, tau))
                    p('s_sub_u32 s%d, s%d, 10' % (S_T2, dst)); p('s_cmp_ge_u32 s%d, 10' % dst); p('s_cselect_b32 s%d, s%d, s%d' % (dst, S_T2, dst))
                    p('s_mul_i32 s%d, s%d, %d' % (dst, dst, 64 * 12288))
                    p('s_add_u32 s%d, s%d, s%d' % (dst, dst, S_T5))
                    if half: p('s_add_u32 s%d, s%d, %d' % (dst, dst, 32 * 12288))
                dests = []
                for x in range(3):
                    kind, n = UM[tau * 6 + mat * 3 + x]
                    if kind == 'reg': dests.append((x * 32, ('reg', unit_reg(n, 4 * half, 2), unit_reg(n, 4 * half + 2, 2))))
                    else: dests.append((x * 32, ('lds', n * 2048 + half * 1024)))
                jobs.append(dict(srd=S_W1 if mat == 0 else S_W2, soff=soff, dests=dests))
    load_weights_type1(p, jobs, 85, 3072, 5, voffs, 3, 96, lg, vm, 15, 88, S_T4)
    p('s_barrier')
    p('v_lshrrev_b32 v80, 5, v1'); p('v_mul_u32_u24 v80, 3072, v80')
    p('v_and_b32 v81, 3, v1'); p('v_lshlrev_b32 v81, 6, v81'); p('v_add_u32 v80, v80, v81')
    p('v_bfe_u32 v81, v1, 2, 2'); p('v_lshlrev_b32 v81, 4, v81'); p('v_add_u32 v80, v80, v81')
    p('v_bfe_u32 v81, v1, 4, 1'); p('v_lshlrev_b32 v81, 3, v81'); p('v_add_u32 v80, v80, v81')
    p('s_mul_i32 s%d, s%d, 768' % (S_T0, S_WAVE)); p('s_add_u32 s%d, s%d, %d' % (S_T0, S_T0, A_QX))
    p('v_add_u32 v11, s%d, v80' % S_T0)
    p('v_bfe_u32 v80, v1, 2, 2'); p('v_lshlrev_b32 v80, 6, v80')
    p('v_lshrrev_b32 v81, 4, v1'); p('v_lshlrev_b32 v81, 4, v81'); p('v_add_u32 v80, v80, v81')
    p('v_and_b32 v81, 1, v1'); p('v_lshlrev_b32 v81, 3, v81'); p('v_add_u32 v80, v80, v81')
    p('v_add_u32 v12, %d, v80' % A_QX)
    p('v_lshrrev_b32 v80, 5, v1'); p('v_lshlrev_b32 v80, 8, v80')
    p('v_bfe_u32 v81, v1, 4, 1'); p('v_lshlrev_b32 v81, 7, v81'); p('v_add_u32 v80, v80, v81')
    p('v_and_b32 v81, 7, v1'); p('v_lshlrev_b32 v82, 4, v81'); p('v_add_u32 v80, v80, v82')
    p('s_lshr_b32 s%d, s%d, 4' % (S_T1, h)); p('s_lshl_b32 s%d, s%d, 14' % (S_T1, S_T1)); p('s_and_b32 s%d, s%d, 15' % (S_T0, h)); p('s_lshl_b32 s%d, s%d, 9' % (S_T0, S_T0)); p('s_add_u32 s%d, s%d, s%d' % (S_T0, S_T0, S_T1))
    p('v_add_u32 v13, s%d, v80' % S_T0)
    p('v_mov_b32 v82, 0x7ff00000'); p('v_and_b32 v83, 8, v1'); p('v_cmp_eq_u32 vcc, 0, v83'); p('v_cndmask_b32 v13, v82, v13, vcc')
    p('v_lshlrev_b32 v80, 4, v1')
    p('s_lshl_b32 s%d, s%d, 7' % (S_T0, h)); p('s_add_u32 s%d, s%d, 32768' % (S_T0, S_T0)); p('v_add_u32 v14, s%d, v80' % S_T0)
    p('v_cmp_gt_u32 vcc, 8, v1'); p('v_cndmask_b32 v14, v82, v14, vcc')
    p('s_mov_b32 s%d, 0' % S_MASK); p('s_mov_b32 s%d, -1' % (S_MASK + 1))
    p('s_mov_b32 s%d, 0x%x' % (S_C, __import__('struct').unpack('<I', __import__('struct').pack('<f', 192 ** -0.5 * 1.4426950408889634))[0]))
    p('s_mov_b32 s%d, 0' % S_STEP)
    p('s_mul_i32 s%d, s%d, 24576' % (S_QKO, h)); p('s_add_u32 s%d, s%d, %d' % (S_QKO, S_QKO, OFF_QK))
    parity_wait(p)
    def qk_dma(bufsel_s):
        p('s_mov_b32 s%d, s%d' % (S_T1, S_QKO))
        for j in range(24):
            p('s_add_u32 s%d, s%d, %d' % (S_T0, bufsel_s, j * 1024))
            p('s_mov_b32 m0, s%d' % S_T0)
            p('buffer_load_dwordx4 v2, s[%d:%d], s%d offen sc1 lds' % (S_WS, S_WS + 3, S_T1))
            if j < 23: p('s_add_u32 s%d, s%d, 1024' % (S_T1, S_T1))
    def KS(jt, u): return 80 + 4 * (jt * 6 + u)
    def k_direct():
        for j in range(12):
            if j % 4 == 0: p('s_add_u32 s%d, s%d, %d' % (S_T0, S_QKO, 12288 + j * 1024))
            p('buffer_load_dwordx4 %s, v2, s[%d:%d], s%d offen offset:%d sc1' % (vr(80 + 4 * j, 4), S_WS, S_WS + 3, S_T0, (j % 4) * 1024))
    def qk_wait(add, sampled=False):
        if USE_FLAGS:
            p('s_add_u32 s%d, s%d, %d' % (S_T3, S_STEP, add))
            lok = p.newlabel('LAok')
            if sampled:
                p('v_cmp_gt_u32 vcc, s%d, v1' % S_T3); p('s_cbranch_vccz %s' % lok)
            wait_flags(p, 0, F_QK, S_T3, 7)
            p.label(lok)
    p('s_lshl_b32 s%d, s%d, %d' % (S_T0, h, FSH)); p('v_mov_b32 v0, s%d' % S_T0)
    l = p.newlabel('La')
    p('s_cmp_lg_u32 s%d, 3' % S_WAVE); p('s_cbranch_scc1 %s' % l)
    qk_wait(1)
    p('s_mov_b32 s%d, %d' % (S_T3, A_QKB)); qk_dma(S_T3)
    p.label(l)
    l = p.newlabel('La')
    p('s_cmp_lg_u32 s%d, 0' % S_WAVE); p('s_cbranch_scc1 %s' % l)
    qk_wait(1)
    k_direct()
    p.label(l)
    stamp(p, 1, st)
    pf_init(p)
    loop = p.newlabel('LAloop'); p.label(loop)
    lg.reset(); vm.reset()
    pf(p, 0)
    for r in range(16, 40): p('v_mov_b32 v%d, 0' % r)
    wst_load(p, 0, 15, lg); wst_load(p, 1, 15, lg)
    step_offsets(p, 0, ('mem', 'p')); mem_lds_addr(p)
    p('s_mov_b32 s%d, %d' % (S_T0, F_QK))
    p('buffer_load_dword v1, v0, s[%d:%d], s%d offen sc1' % (S_WS, S_WS + 3, S_T0))
    p('s_waitcnt lgkmcnt(0)'); lg.reset()
    emit_poll_mem(p, A_MEMX, lg, 'memA')
    pf(p, 1)
    trace(p, 0, trace_on)
    proj_phase(p, lg, 6, 16, 0, 15)
    for x in range(3): half_sum(p, 16 + 4 * x, 28 + 4 * x)
    for x in range(3):
        a = 16 + 4 * x
        p('v_cvt_pk_bf16_f32 v%d, v%d, v%d' % (a, a, a + 1)); p('v_cvt_pk_bf16_f32 v%d, v%d, v%d' % (a + 1, a + 2, a + 3))
        p('ds_write_b64 v11, %s offset:%d' % (vr(a, 2), x * 256))
    pf(p, 2)
    p('s_waitcnt vmcnt(0) lgkmcnt(0)'); lg.reset()
    p('s_barrier')
    pf(p, 3)
    trace(p, 1, trace_on)
    lw = p.newlabel('LAw'); lend = p.newlabel('LAe'); lw3 = p.newlabel('LAw3')
    QF = 16; KM = 40; SA = 64
    def scores(kind):
        lg.reset()
        if kind == 'mem':
            for u in range(6):
                for z in range(2):
                    p('ds_read_b64_tr_b16 %s, v12 offset:%d' % (vr(QF + 4 * u + 2 * z, 2), (2 * u + z) * 256)); lg.issue(('q', u))
        else:
            p('s_and_b32 s%d, s%d, 1' % (S_T0, S_STEP)); p('s_mul_i32 s%d, s%d, 24576' % (S_T0, S_T0)); p('s_add_u32 s%d, s%d, %d' % (S_T0, S_T0, A_QKB))
            p('v_add_u32 v7, s%d, v2' % S_T0)
            p('s_sub_u32 s%d, s%d, 1' % (S_T1, S_WAVE)); p('s_mul_i32 s%d, s%d, 6144' % (S_T1, S_T1)); p('v_add_u32 v76, s%d, v7' % S_T1)
            for u in range(6):
                p('ds_read_b128 %s, v76 offset:%d' % (vr(QF + 4 * u, 4), u * 1024)); lg.issue(('q', u))
                for jt in range(2):
                    p('ds_read_b128 %s, v7 offset:%d' % (vr(KS(jt, u), 4), 12288 + jt * 6144 + u * 1024)); lg.issue(('q', u))
        for u in range(6):
            lg.wait(('q', u))
            for jt in range(2):
                p('v_mfma_f32_16x16x32_bf16 %s, %s, %s, %s' % (vr(SA + 4 * jt, 4), vr(KS(jt, u), 4), vr(QF + 4 * u, 4), '0' if u == 0 else vr(SA + 4 * jt, 4)))
            if u == 0:
                for uu in range(6):
                    for z in range(2):
                        p('ds_read_b64_tr_b16 %s, v12 offset:%d' % (vr(KM + 4 * uu + 2 * z, 2), 3072 + (2 * uu + z) * 256)); lg.issue(('km', uu))
        SM = 72
        for u in range(6):
            lg.wait(('km', u))
            p('v_mfma_f32_16x16x32_bf16 %s, %s, %s, %s' % (vr(SM, 4), vr(KM + 4 * u, 4), vr(QF + 4 * u, 4), '0' if u == 0 else vr(SM, 4)))
        vals = list(range(SA, SA + 8)) + list(range(SM, SM + 4))
        p('v_mov_b32 v40, 0xff800000')
        if kind == 'seg':
            p('v_lshrrev_b32 v41, 4, v2'); p('v_and_b32 v42, 15, v41'); p('v_lshrrev_b32 v41, 4, v41'); p('v_lshlrev_b32 v41, 2, v41'); p('v_sub_u32 v41, v42, v41')
            p('s_sub_u32 s%d, s%d, 1' % (S_T1, S_WAVE)); p('s_lshl_b32 s%d, s%d, 4' % (S_T1, S_T1)); p('v_add_u32 v41, s%d, v41' % S_T1)
            for jt in range(2):
                for r in range(4):
                    p('v_cmp_le_i32 vcc, %d, v41' % (16 * jt + r))
                    p('v_cndmask_b32 v%d, v40, v%d, vcc' % (SA + 4 * jt + r, SA + 4 * jt + r))
        for r in range(4): p('v_cndmask_b32 v%d, v%d, v40, s[%d:%d]' % (SM + r, SM + r, S_MASK, S_MASK + 1))
        p('v_max3_f32 v17, v%d, v%d, v%d' % tuple(vals[0:3]))
        for i in range(3, 11, 2): p('v_max3_f32 v17, v17, v%d, v%d' % (vals[i], vals[i + 1]))
        p('v_max_f32 v17, v17, v%d' % vals[11])
        p('v_mov_b32 v18, v17'); p('v_permlane16_swap_b32 v17, v18'); p('v_max_f32 v17, v17, v18')
        p('v_mov_b32 v18, v17'); p('v_permlane32_swap_b32 v17, v18'); p('v_max_f32 v17, v17, v18')
        p('v_mul_f32 v17, s%d, v17' % S_C)
        for v in vals: p('v_fma_f32 v%d, v%d, s%d, -v17' % (v, v, S_C))
        for v in vals: p('v_exp_f32 v%d, v%d' % (v, v))
        p('v_add_f32 v18, v%d, v%d' % (vals[0], vals[1])); p('v_add_f32 v19, v%d, v%d' % (vals[2], vals[3]))
        for i in range(4, 12, 2):
            p('v_add_f32 v18, v18, v%d' % vals[i]); p('v_add_f32 v19, v19, v%d' % vals[i + 1])
        p('v_add_f32 v18, v18, v19')
        p('v_mov_b32 v19, v18'); p('v_permlane16_swap_b32 v18, v19'); p('v_add_f32 v18, v18, v19')
        p('v_mov_b32 v19, v18'); p('v_permlane32_swap_b32 v18, v19'); p('v_add_f32 v18, v18, v19')
        p('v_rcp_f32 v18, v18')
        for v in vals: p('v_mul_f32 v%d, v%d, v18' % (v, v))
        W = 20
        if kind == 'mem':
            p('v_cvt_pk_bf16_f32 v%d, v%d, v%d' % (W + 0, SA + 0, SA + 1)); p('v_cvt_pk_bf16_f32 v%d, v%d, v%d' % (W + 2, SA + 2, SA + 3))
            p('v_cvt_pk_bf16_f32 v%d, v%d, v%d' % (W + 1, SA + 4, SA + 5)); p('v_cvt_pk_bf16_f32 v%d, v%d, v%d' % (W + 3, SA + 6, SA + 7))
            p('v_cvt_pk_bf16_f32 v%d, v%d, v%d' % (W + 4, SM + 0, SM + 1)); p('v_cvt_pk_bf16_f32 v%d, v%d, v%d' % (W + 6, SM + 2, SM + 3))
            p('v_permlane16_swap_b32 v%d, v%d' % (W + 0, W + 2)); p('v_permlane16_swap_b32 v%d, v%d' % (W + 1, W + 3))
            p('buffer_store_dwordx4 %s, v13, s[%d:%d], s%d offen sc1' % (vr(W, 4), S_WS, S_WS + 3, S_PO))
            p('v_mov_b32 v%d, v%d' % (W + 5, W + 4)); p('v_mov_b32 v%d, v%d' % (W + 7, W + 6))
            p('v_permlane16_swap_b32 v%d, v%d' % (W + 4, W + 5)); p('v_permlane16_swap_b32 v%d, v%d' % (W + 6, W + 7))
            p('buffer_store_dwordx4 %s, v14, s[%d:%d], s%d offen sc1' % (vr(W + 4, 4), S_WS, S_WS + 3, S_PO))
        else:
            for k in range(4): p('v_cvt_pk_bf16_f32 v%d, v%d, v%d' % (W + k, SA + 2 * k, SA + 2 * k + 1))
            p('v_cvt_pk_bf16_f32 v%d, v%d, v%d' % (W + 4, SM + 0, SM + 1)); p('v_cvt_pk_bf16_f32 v%d, v%d, v%d' % (W + 5, SM + 2, SM + 3))
            p('s_mul_i32 s%d, s%d, 81920' % (S_T0, S_STEP)); p('s_sub_u32 s%d, s%d, 1' % (S_T1, S_WAVE)); p('s_lshl_b32 s%d, s%d, 15' % (S_T2, S_T1))
            p('s_add_u32 s%d, s%d, s%d' % (S_T2, S_T2, S_T0)); p('s_lshl_b32 s%d, s%d, 10' % (S_T3, h)); p('s_add_u32 s%d, s%d, s%d' % (S_T2, S_T2, S_T3)); p('s_add_u32 s%d, s%d, %d' % (S_T2, S_T2, OFF_PS))
            p('buffer_store_dwordx4 %s, v2, s[%d:%d], s%d offen sc1' % (vr(W, 4), S_WS, S_WS + 3, S_T2))
            p('v_mov_b32 v%d, v%d' % (W + 6, W + 4)); p('v_mov_b32 v%d, v%d' % (W + 7, W + 5))
            p('v_permlane16_swap_b32 v%d, v%d' % (W + 4, W + 6)); p('v_permlane16_swap_b32 v%d, v%d' % (W + 5, W + 7))
            p('s_lshl_b32 s%d, s%d, 13' % (S_T1, S_T1)); p('s_add_u32 s%d, s%d, s%d' % (S_T0, S_T0, S_T1)); p('s_lshl_b32 s%d, s%d, 8' % (S_T3, h)); p('s_add_u32 s%d, s%d, s%d' % (S_T0, S_T0, S_T3))
            p('s_add_u32 s%d, s%d, %d' % (S_T0, S_T0, OFF_PS + 65536))
            p('v_mov_b32 v42, 0x7ff00000'); p('v_cmp_gt_u32 vcc, 256, v2'); p('v_cndmask_b32 v42, v42, v2, vcc')
            p('buffer_store_dwordx4 %s, v42, s[%d:%d], s%d offen sc1' % (vr(W + 4, 4), S_WS, S_WS + 3, S_T0))
    p('s_cmp_lg_u32 s%d, 0' % S_WAVE); p('s_cbranch_scc1 %s' % lw)
    scores('mem')
    pf(p, 4)
    pf_acc(p)
    trace(p, 2, trace_on)
    p('s_barrier')
    p('s_cmp_ge_u32 s%d, 63' % S_STEP); p('s_cbranch_scc1 %s' % lend)
    p('s_add_u32 s%d, s%d, %d' % (S_QKO, S_QKO, 32 * 24576))
    qk_wait(2, True)
    if not NOBG & 1: k_direct()
    p('s_branch %s' % lend)
    p.label(lw)
    p('s_cmp_eq_u32 s%d, 3' % S_WAVE); p('s_cbranch_scc1 %s' % lw3)
    if PSEG: scores('seg')
    p('s_barrier')
    p('s_branch %s' % lend)
    p.label(lw3)
    p('s_add_u32 s%d, s%d, %d' % (S_T0, S_STEP, P_RING - 1)); p('s_and_b32 s%d, s%d, %d' % (S_T0, S_T0, P_RING - 1)); p('s_mul_i32 s%d, s%d, %d' % (S_T0, S_T0, 3 * BLK))
    p('s_add_u32 s%d, s%d, s%d' % (S_T0, S_T0, S_COMM)); p('s_add_u32 s%d, s%d, %d' % (S_T0, S_T0, BLK_P * BLK))
    for r in range(16, 20): p('v_mov_b32 v%d, -1' % r)
    p('buffer_store_dwordx4 v[16:19], v13, s[%d:%d], s%d offen sc1' % (S_WS, S_WS + 3, S_T0))
    p('buffer_store_dwordx4 v[16:19], v14, s[%d:%d], s%d offen sc1' % (S_WS, S_WS + 3, S_T0))
    def fp_flag():
        p('v_mov_b32 v20, 0x7ff00000'); p('v_cmp_eq_u32 vcc, 0, v2'); p('v_cndmask_b32 v20, v20, v0, vcc')
        p('v_mov_b32 v21, s%d' % S_STEP); p('s_mov_b32 s%d, %d' % (S_T0, F_P))
        p('buffer_store_dword v21, v20, s[%d:%d], s%d offen sc1' % (S_WS, S_WS + 3, S_T0))
    fp_flag()
    p('s_barrier')
    p('s_cmp_ge_u32 s%d, 63' % S_STEP); p('s_cbranch_scc1 %s' % lend)
    p('s_add_u32 s%d, s%d, %d' % (S_QKO, S_QKO, 32 * 24576))
    qk_wait(2, True)
    p('s_add_u32 s%d, s%d, 1' % (S_T3, S_STEP)); p('s_and_b32 s%d, s%d, 1' % (S_T3, S_T3)); p('s_mul_i32 s%d, s%d, 24576' % (S_T3, S_T3)); p('s_add_u32 s%d, s%d, %d' % (S_T3, S_T3, A_QKB))
    if not NOBG & 2: qk_dma(S_T3)
    p.label(lend)
    p('s_add_u32 s%d, s%d, 1' % (S_STEP, S_STEP)); p('s_cmp_lt_u32 s%d, s%d' % (S_STEP, S_NST)); p('s_cbranch_scc1 %s' % loop)
    p('s_waitcnt vmcnt(0)'); p('s_barrier')
    l = p.newlabel('LAfin'); p('s_cmp_lg_u32 s%d, 3' % S_WAVE); p('s_cbranch_scc1 %s' % l)
    fp_flag()
    p.label(l)

B_MEMX = 0; B_VX = 10240; B_WRES = 65536
def gen_B(p, trace_on=False, st=False):
    lg = Cnt(p, 'lgkmcnt', 15); vm = Cnt(p, 'vmcnt', 63)
    h = S_IDX
    srd(p, S_W1, KA['Wv'], 640 * 12288); srd(p, S_W2, KA['Wo'], 32 * 192 * 1280)
    common_lane_setup(p)
    p('s_waitcnt lgkmcnt(0)')
    mem_gather_setup(p, B_MEMX)
    p('s_mul_i32 s%d, s%d, 24576' % (S_T0, S_WAVE)); p('s_add_u32 s%d, s%d, 65536' % (S_T0, S_T0)); p('v_add_u32 v15, s%d, v2' % S_T0)
    STG = B_MEMX
    p('s_lshl_b32 s%d, s%d, 14' % (S_T4, S_WAVE)); p('s_add_u32 s%d, s%d, %d' % (S_T4, S_T4, STG))
    voffs = [80, 81, 82]
    stage_offsets(p, voffs, 6, 12288, 1, 83, 84)
    p('v_lshrrev_b32 v83, 4, v1'); p('v_lshlrev_b32 v83, 3, v83'); p('v_bfe_u32 v84, v1, 2, 2'); p('v_add_u32 v83, v83, v84')
    p('v_and_b32 v84, 3, v1'); p('v_lshlrev_b32 v84, 3, v84')
    p('v_mul_u32_u24 v85, 96, v83'); p('v_add_u32 v85, v85, v84'); p('v_add_u32 v85, s%d, v85' % S_T4)
    p('v_mul_u32_u24 v86, 160, v83'); p('v_add_u32 v86, v86, v84'); p('v_add_u32 v86, s%d, v86' % S_T4)
    p('s_mul_i32 s%d, s%d, 384' % (S_T5, h)); p('s_mul_i32 s%d, s%d, 96' % (S_T0, S_WAVE)); p('s_add_u32 s%d, s%d, s%d' % (S_T5, S_T5, S_T0))
    p('s_mul_i32 s%d, s%d, 3' % (S_T6, S_WAVE))
    jobs = []
    for tau in range(10):
        for half in range(2):
            def soff(dst, tau=tau, half=half):
                p('s_add_u32 s%d, s%d, %d' % (dst, S_T6, tau))
                p('s_sub_u32 s%d, s%d, 10' % (S_T2, dst)); p('s_cmp_ge_u32 s%d, 10' % dst); p('s_cselect_b32 s%d, s%d, s%d' % (dst, S_T2, dst))
                p('s_mul_i32 s%d, s%d, %d' % (dst, dst, 64 * 12288))
                p('s_add_u32 s%d, s%d, s%d' % (dst, dst, S_T5))
                if half: p('s_add_u32 s%d, s%d, %d' % (dst, dst, 32 * 12288))
            dests = []
            for x in range(3):
                kind, n = UM[tau * 3 + x]
                if kind == 'reg': dests.append((x * 32, ('reg', unit_reg(n, 4 * half, 2), unit_reg(n, 4 * half + 2, 2))))
                else: dests.append((x * 32, ('lds', n * 2048 + half * 1024)))
            jobs.append(dict(srd=S_W1, soff=soff, dests=dests))
    load_weights_type1(p, jobs, 85, 3072, 5, voffs, 3, 96, lg, vm, 15, 88, S_T4)
    voffs = [100, 101, 102, 103, 104]
    stage_offsets(p, voffs, 10, 1280, 1, 83, 84)
    p('s_mul_i32 s%d, s%d, %d' % (S_T5, h, 192 * 1280)); p('s_mul_i32 s%d, s%d, 320' % (S_T0, S_WAVE)); p('s_add_u32 s%d, s%d, s%d' % (S_T5, S_T5, S_T0))
    jobs = []
    for u in range(6):
        for ch in range(2):
            def soff(dst, u=u, ch=ch): p('s_add_u32 s%d, s%d, %d' % (dst, S_T5, u * 32 * 1280 + ch * 160))
            dests = []
            for x in range(5):
                cc = ch * 5 + x
                kind, n = UM[30 + cc * 3 + (u >> 1)]
                half = u & 1
                if kind == 'reg': dests.append((x * 32, ('reg', unit_reg(n, 4 * half, 2), unit_reg(n, 4 * half + 2, 2))))
                else: dests.append((x * 32, ('lds', n * 2048 + half * 1024)))
            jobs.append(dict(srd=S_W2, soff=soff, dests=dests))
    load_weights_type1(p, jobs, 86, 5120, 3, voffs, 5, 160, lg, vm, 15, 88, S_T4)
    p('s_barrier')
    p('v_bfe_u32 v80, v1, 3, 1'); p('v_lshlrev_b32 v80, 9, v80')
    p('v_bfe_u32 v81, v1, 2, 1'); p('v_lshlrev_b32 v81, 6, v81'); p('v_add_u32 v80, v80, v81')
    p('v_and_b32 v81, 1, v1'); p('v_lshlrev_b32 v81, 5, v81'); p('v_add_u32 v80, v80, v81')
    p('v_bfe_u32 v81, v1, 1, 1'); p('v_lshlrev_b32 v81, 4, v81'); p('v_add_u32 v80, v80, v81')
    p('v_bfe_u32 v81, v1, 4, 1'); p('v_lshlrev_b32 v81, 3, v81'); p('v_add_u32 v80, v80, v81')
    def tile_off(dstv, tv):
        p('v_lshrrev_b32 v82, 2, v%d' % tv); p('v_lshlrev_b32 v82, 10, v82')
        p('v_and_b32 v83, 3, v%d' % tv); p('v_lshlrev_b32 v83, 7, v83')
        p('v_add3_u32 v%d, v80, v82, v83' % dstv); p('v_add_u32 v%d, %d, v%d' % (dstv, B_VX, dstv))
    p('s_mul_i32 s%d, s%d, 3' % (S_T0, S_WAVE))
    p('v_lshrrev_b32 v84, 5, v1'); p('v_add_u32 v84, s%d, v84' % S_T0); tile_off(11, 84)
    p('v_mov_b32 v84, s%d' % S_T0); p('v_add_u32 v84, 2, v84'); tile_off(12, 84)
    p('v_lshrrev_b32 v80, 4, v1'); p('v_lshlrev_b32 v80, 7, v80')
    p('v_bfe_u32 v81, v1, 2, 2'); p('v_lshlrev_b32 v81, 5, v81'); p('v_add_u32 v80, v80, v81')
    p('v_and_b32 v81, 3, v1'); p('v_lshlrev_b32 v81, 3, v81'); p('v_add_u32 v80, v80, v81')
    p('v_add_u32 v13, %d, v80' % B_VX)
    p('v_lshrrev_b32 v80, 5, v1'); p('v_bfe_u32 v81, v1, 4, 1'); p('v_lshlrev_b32 v81, 1, v81'); p('v_add_u32 v80, v80, v81')
    p('s_mul_i32 s%d, s%d, 10' % (S_T0, S_WAVE)); p('v_add_u32 v80, s%d, v80' % S_T0); p('v_lshlrev_b32 v80, 14, v80')
    p('v_and_b32 v81, 15, v1'); p('v_lshlrev_b32 v81, 4, v81'); p('v_add_u32 v80, v80, v81')
    p('s_lshl_b32 s%d, s%d, 8' % (S_T0, h)); p('v_add_u32 v14, s%d, v80' % S_T0)
    p('v_lshrrev_b32 v80, 5, v1'); p('s_mul_i32 s%d, s%d, 10' % (S_T1, S_WAVE)); p('s_add_u32 s%d, s%d, 8' % (S_T1, S_T1)); p('v_add_u32 v80, s%d, v80' % S_T1); p('v_lshlrev_b32 v80, 14, v80')
    p('v_add_u32 v80, v80, v81'); p('v_add_u32 v120, s%d, v80' % S_T0)
    p('v_mov_b32 v82, 0x7ff00000'); p('v_and_b32 v83, 16, v1'); p('v_cmp_eq_u32 vcc, 0, v83'); p('v_cndmask_b32 v120, v82, v120, vcc')
    p('s_mov_b32 s%d, 0' % S_STEP)
    parity_wait(p)
    ACC1 = 16; VF = 28; ACC2 = 80
    stamp(p, 1, st)
    pf_init(p)
    loop = p.newlabel('LBloop'); p.label(loop)
    lg.reset(); vm.reset()
    pf(p, 0)
    for r in range(ACC1, ACC1 + 12): p('v_mov_b32 v%d, 0' % r)
    for r in range(ACC2, ACC2 + 40): p('v_mov_b32 v%d, 0' % r)
    wst_load(p, 0, 15, lg); wst_load(p, 1, 15, lg)
    step_offsets(p, 0, ('mem', 'z')); mem_lds_addr(p)
    p('s_waitcnt lgkmcnt(0)'); lg.reset()
    emit_poll_mem(p, B_MEMX, lg, 'memB')
    pf(p, 1)
    trace(p, 0, trace_on)
    proj_phase(p, lg, 3, ACC1, 0, 15)
    half_sum(p, 16, 20)
    for r in range(4): p('v_mov_b32 v%d, v%d' % (28 + r, 24 + r))
    half_sum(p, 24, 28)
    for a, addr in ((16, 11), (24, 12)):
        p('v_cvt_pk_bf16_f32 v%d, v%d, v%d' % (a, a, a + 1)); p('v_cvt_pk_bf16_f32 v%d, v%d, v%d' % (a + 1, a + 2, a + 3))
        p('ds_write_b64 v%d, %s' % (addr, vr(a, 2))); lg.issue('vx')
    pf(p, 2)
    p('s_waitcnt vmcnt(0)')
    lg.wait('vx')
    p('s_barrier')
    pf(p, 3)
    VFR = 40
    for t in range(3):
        for z in range(2):
            p('ds_read_b64_tr_b16 %s, v13 offset:%d' % (vr(VFR + 4 * t + 2 * z, 2), t * 1024 + z * 512)); lg.issue(('vf', t))
    def hs(pair):
        a = ACC2 + 8 * pair
        half_sum(p, a, a + 4)
        p('v_cvt_pk_bf16_f32 v%d, v%d, v%d' % (a, a, a + 1)); p('v_cvt_pk_bf16_f32 v%d, v%d, v%d' % (a + 1, a + 2, a + 3))
    def fin4(grp):
        a = ACC2 + 16 * grp; b = a + 8
        p('v_mov_b32 v%d, v%d' % (a + 2, b)); p('v_mov_b32 v%d, v%d' % (a + 3, b + 1))
        p('v_permlane16_swap_b32 v%d, v%d' % (a, a + 2)); p('v_permlane16_swap_b32 v%d, v%d' % (a + 1, a + 3))
        p('s_add_u32 s%d, s%d, %d' % (S_T0, S_ZO, grp * 4 * BLK))
        p('buffer_store_dwordx4 %s, v14, s[%d:%d], s%d offen sc1' % (vr(a, 4), S_WS, S_WS + 3, S_T0))
    def fin_last():
        a = ACC2 + 32
        p('v_mov_b32 v%d, v%d' % (a + 2, a)); p('v_mov_b32 v%d, v%d' % (a + 3, a + 1))
        p('v_permlane16_swap_b32 v%d, v%d' % (a, a + 2)); p('v_permlane16_swap_b32 v%d, v%d' % (a + 1, a + 3))
        p('buffer_store_dwordx4 %s, v120, s[%d:%d], s%d offen sc1' % (vr(a, 4), S_WS, S_WS + 3, S_ZO))
    for cc in range(10):
        for t in range(3):
            if cc == 0: lg.wait(('vf', t))
            smf(p, ACC2 + 4 * cc, VFR + 4 * t, 30 + cc * 3 + t, lg, 15)
        if cc >= 3 and cc % 2 == 1:
            pr = (cc - 3) // 2
            hs(pr)
            if pr % 2 == 1: fin4(pr // 2)
    hs(4); fin_last()
    p('s_barrier')
    pf(p, 4)
    pf_acc(p)
    trace(p, 2, trace_on)
    p('s_add_u32 s%d, s%d, 1' % (S_STEP, S_STEP)); p('s_cmp_lt_u32 s%d, s%d' % (S_STEP, S_NST)); p('s_cbranch_scc1 %s' % loop)

R_RED = 0; R_RED2 = 4096
SEGROWS = True
def gen_R(p, trace_on=False, st=False):
    c = S_IDX
    srd(p, S_W1, KA['x'], 2048 * 1280)
    common_lane_setup(p)
    p('s_waitcnt lgkmcnt(0)')
    p('v_and_b32 v3, 8, v1'); p('v_cmp_eq_u32 vcc, 0, v3'); p('v_mov_b32 v3, 0xeeeeeeee'); p('v_mov_b32 v7, 0x44444444'); p('v_cndmask_b32 v3, v3, v7, vcc')
    p('s_lshr_b32 s%d, s%d, 1' % (S_T1, S_WAVE)); p('s_lshl_b32 s%d, s%d, 14' % (S_T1, S_T1)); p('s_and_b32 s%d, s%d, 1' % (S_T0, S_WAVE)); p('s_lshl_b32 s%d, s%d, 12' % (S_T0, S_T0))
    p('s_add_u32 s%d, s%d, s%d' % (S_T0, S_T0, S_T1)); p('v_add_u32 v4, s%d, v2' % S_T0)
    p('v_lshrrev_b32 v8, 4, v1'); p('v_lshlrev_b32 v8, 8, v8'); p('v_and_b32 v9, 7, v1'); p('v_lshlrev_b32 v9, 4, v9'); p('v_add_u32 v8, v8, v9')
    p('v_bfe_u32 v9, v1, 3, 1'); p('v_lshlrev_b32 v9, 3, v9'); p('v_add_u32 v8, v8, v9')
    p('s_lshl_b32 s%d, s%d, 10' % (S_T0, S_WAVE)); p('s_add_u32 s%d, s%d, 32768' % (S_T0, S_T0)); p('v_add_u32 v5, s%d, v8' % S_T0)
    p('s_lshl_b32 s%d, s%d, 14' % (S_T0, c)); p('s_lshl_b32 s%d, s%d, 11' % (S_T1, S_WAVE)); p('s_add_u32 s%d, s%d, s%d' % (S_T0, S_T0, S_T1)); p('v_add_u32 v6, s%d, v2' % S_T0)
    p('s_lshl_b32 s%d, s%d, 15' % (S_T0, c)); p('s_lshl_b32 s%d, s%d, 13' % (S_T1, S_WAVE)); p('s_add_u32 s%d, s%d, s%d' % (S_T0, S_T0, S_T1)); p('v_add_u32 v10, s%d, v2' % S_T0)
    p('v_bfe_u32 v8, v1, 1, 1'); p('v_lshlrev_b32 v8, 8, v8')
    p('v_bfe_u32 v9, v1, 4, 1'); p('v_lshlrev_b32 v9, 7, v9'); p('v_add_u32 v8, v8, v9')
    p('v_lshrrev_b32 v9, 5, v1'); p('v_lshlrev_b32 v9, 5, v9'); p('v_add_u32 v8, v8, v9')
    p('v_bfe_u32 v9, v1, 2, 2'); p('v_lshlrev_b32 v9, 3, v9'); p('v_add_u32 v8, v8, v9')
    p('v_and_b32 v9, 1, v1'); p('v_lshlrev_b32 v9, 2, v9'); p('v_add_u32 v8, v8, v9')
    p('s_lshl_b32 s%d, s%d, 9' % (S_T0, S_WAVE)); p('v_add_u32 v11, s%d, v8' % S_T0)
    p('v_lshlrev_b32 v12, 3, v1'); p('v_lshlrev_b32 v13, 2, v1'); p('s_lshl_b32 s%d, s%d, 8' % (S_T0, c))
    p('s_add_u32 s%d, s%d, 8192' % (S_T1, S_T0)); p('s_cmp_ge_u32 s%d, 32' % c); p('s_cselect_b32 s%d, s%d, s%d' % (S_T0, S_T1, S_T0))
    p('v_add_u32 v13, s%d, v13' % S_T0)
    p('v_lshlrev_b32 v14, 2, v1'); p('s_lshl_b32 s%d, s%d, 8' % (S_T0, c)); p('v_add_u32 v14, s%d, v14' % S_T0)
    p('v_mov_b32 v8, 0x7ff00000'); p('v_and_b32 v9, 3, v1'); p('v_cmp_eq_u32 vcc, 0, v9'); p('v_cndmask_b32 v13, v8, v13, vcc')
    p('s_lshl_b32 s%d, s%d, 11' % (S_T0, S_WAVE)); p('s_add_u32 s%d, s%d, %d' % (S_T0, S_T0, R_RED2)); p('v_add_u32 v15, s%d, v2' % S_T0)
    p('v_and_b32 v8, 15, v1'); p('s_and_b32 s%d, s%d, 1' % (S_T0, S_WAVE)); p('s_lshl_b32 s%d, s%d, 4' % (S_T0, S_T0)); p('v_add_u32 v8, s%d, v8' % S_T0); p('v_mul_u32_u24 v8, 1280, v8')
    p('v_lshrrev_b32 v9, 4, v1'); p('v_lshlrev_b32 v9, 3, v9'); p('s_lshl_b32 s%d, s%d, 5' % (S_T0, c)); p('v_add_u32 v9, s%d, v9' % S_T0)
    p('v_add_u32 v28, v8, v9')
    p('s_and_b32 s%d, s%d, 1' % (S_T0, S_WAVE)); p('s_lshl_b32 s%d, s%d, 10' % (S_T0, S_T0)); p('s_add_u32 s%d, s%d, %d' % (S_T0, S_T0, R_RED2)); p('v_add_u32 v29, s%d, v2' % S_T0)
    p('s_mov_b32 s%d, %d' % (S_T0, OFF_MOD + 2 * 1280))
    p('buffer_load_dwordx2 v[30:31], v9, s[%d:%d], s%d offen' % (S_WS, S_WS + 3, S_T0))
    p('s_waitcnt vmcnt(0)')
    p('v_lshlrev_b32 v24, 16, v30'); p('v_and_b32 v25, 0xffff0000, v30'); p('v_lshlrev_b32 v26, 16, v31'); p('v_and_b32 v27, 0xffff0000, v31')
    p('s_lshl_b32 s%d, s%d, %d' % (S_T0, c, FSH)); p('v_mov_b32 v30, s%d' % S_T0); p('v_mov_b32 v8, 0x7ff00000'); p('v_cmp_eq_u32 vcc, 0, v1'); p('v_cndmask_b32 v30, v8, v30, vcc')
    p('v_and_b32 v0, 31, v1'); p('v_lshlrev_b32 v0, %d, v0' % FSH)
    p('s_mov_b32 s%d, 0' % S_MASK); p('s_mov_b32 s%d, -1' % (S_MASK + 1))
    p('s_mov_b32 s%d, 0' % S_STEP)
    p('s_mov_b32 s%d, %d' % (S_VOO, OFF_VO))
    ZB = 64; PA = 72; PM = 88; ACC = 16; SENT = 96; PF = 128
    def VOa(k, j, n=4): return ar(40 * k + 4 * j, n)
    def Za(k, a): return ar(40 * k + 32 + 4 * a, 4)
    def vo_load(k):
        for j in range(8):
            if j == 4: p('s_add_u32 s%d, s%d, 4096' % (S_T0, S_VOO))
            p('buffer_load_dwordx4 %s, v10, s[%d:%d], s%d offen offset:%d sc1' % (VOa(k, j), S_WS, S_WS + 3, S_VOO if j < 4 else S_T0, (j % 4) * 1024))
    def vo_wait(add):
        if USE_FLAGS:
            p('s_add_u32 s%d, s%d, %d' % (S_T3, S_STEP, add)); wait_flags(p, 0, F_VO, S_T3, 7)
    S_SG = S_T6
    def seg_issue(wait):
        if wait and USE_FLAGS:
            p('s_add_u32 s%d, s%d, 1' % (S_T3, S_SG)); wait_flags(p, 0, F_P, S_T3, 7)
        p('s_mul_i32 s%d, s%d, 81920' % (S_T4, S_SG)); p('s_add_u32 s%d, s%d, %d' % (S_T4, S_T4, OFF_PS))
        for tau in range(2):
            p('s_lshl_b32 s%d, s%d, 13' % (S_T0, S_WAVE)); p('s_add_u32 s%d, s%d, s%d' % (S_T0, S_T0, S_T4)); p('s_add_u32 s%d, s%d, %d' % (S_T0, S_T0, tau * 32768))
            for j in range(8):
                if j == 4: p('s_add_u32 s%d, s%d, 4096' % (S_T0, S_T0))
                p('buffer_load_dwordx4 %s, v2, s[%d:%d], s%d offen offset:%d sc1' % (vr(PF + 40 * tau + 4 * j, 4), S_WS, S_WS + 3, S_T0, (j % 4) * 1024))
            p('s_lshl_b32 s%d, s%d, 11' % (S_T0, S_WAVE)); p('s_add_u32 s%d, s%d, s%d' % (S_T0, S_T0, S_T4)); p('s_add_u32 s%d, s%d, %d' % (S_T0, S_T0, 65536 + tau * 8192))
            for a in range(2):
                p('buffer_load_dwordx4 %s, v2, s[%d:%d], s%d offen offset:%d sc1' % (vr(PF + 40 * tau + 32 + 4 * a, 4), S_WS, S_WS + 3, S_T0, a * 1024))
        p('s_mul_i32 s%d, s%d, %d' % (S_T5, S_SG, 32 * 1280))
        p('buffer_load_dwordx2 v[100:101], v28, s[%d:%d], s%d offen' % (S_W1, S_W1 + 3, S_T5))
    def seg_compute(k, after):
        for tau in range(2):
            p('s_waitcnt vmcnt(%d)' % ((11 if tau == 0 else 1) + after))
            a = 104 + 4 * tau
            for j in range(8):
                p('v_mfma_f32_16x16x32_bf16 %s, %s, %s, %s' % (vr(a, 4), VOa(k, j), vr(PF + 40 * tau + 4 * j, 4), '0' if j == 0 else vr(a, 4)))
            for aa in range(2):
                p('v_mfma_f32_16x16x32_bf16 %s, %s, %s, %s' % (vr(a, 4), Za(k, aa), vr(PF + 40 * tau + 32 + 4 * aa, 4), vr(a, 4)))
        p('ds_write_b128 v15, v[104:107]'); p('ds_write_b128 v15, v[108:111] offset:1024')
        p('s_waitcnt lgkmcnt(0)'); p('s_barrier')
        l = p.newlabel('LRs'); p('s_cmp_ge_u32 s%d, 2' % S_WAVE); p('s_cbranch_scc1 %s' % l)
        for w in range(4): p('ds_read_b128 %s, v29 offset:%d' % (vr(104 + 4 * w, 4), w * 2048))
        p('s_waitcnt vmcnt(%d) lgkmcnt(0)' % after)
        for r in range(4):
            p('v_add_f32 v%d, v%d, v%d' % (104 + r, 104 + r, 108 + r)); p('v_add_f32 v%d, v%d, v%d' % (112 + r, 112 + r, 116 + r)); p('v_add_f32 v%d, v%d, v%d' % (104 + r, 104 + r, 112 + r))
        p('v_lshlrev_b32 v108, 16, v100'); p('v_and_b32 v109, 0xffff0000, v100'); p('v_lshlrev_b32 v110, 16, v101'); p('v_and_b32 v111, 0xffff0000, v101')
        for r in range(4): p('v_fmac_f32 v%d, v%d, v%d' % (108 + r, 24 + r, 104 + r))
        p('v_cvt_pk_bf16_f32 v100, v108, v109'); p('v_cvt_pk_bf16_f32 v101, v110, v111')
        p('s_add_u32 s%d, s%d, %d' % (S_T5, S_T5, OFF_X1))
        p('buffer_store_dwordx2 v[100:101], v28, s[%d:%d], s%d offen sc1' % (S_WS, S_WS + 3, S_T5))
        p.label(l)
    def x1_flag(val_s):
        p('v_mov_b32 v102, s%d' % val_s); p('s_mov_b32 s%d, %d' % (S_T0, F_X1))
        p('buffer_store_dword v102, v30, s[%d:%d], s%d offen sc1' % (S_WS, S_WS + 3, S_T0))
    parity_probe(p); parity_wait(p)
    vo_wait(1)
    vo_load(0)
    stamp(p, 1, st)
    pf_init(p)
    for r in range(SENT, SENT + 4): p('v_mov_b32 v%d, -1' % r)
    p('v_lshrrev_b32 v31, 5, v1'); p('v_lshlrev_b32 v31, %d, v31' % (FSH + 5)); p('v_add_u32 v31, v31, v0')
    loop = p.newlabel('LRloop'); p.label(loop)
    for k in range(4):
        pf(p, 0)
        for r in range(ACC, ACC + 4): p('v_mov_b32 v%d, 0' % r)
        step_offsets(p, 1)
        p('s_mov_b32 s%d, %d' % (S_T0, F_VO))
        p('buffer_load_dword v103, v31, s[%d:%d], s%d offen sc1' % (S_WS, S_WS + 3, S_T0))
        def ploads():
            for z in range(4): p('buffer_load_dwordx4 %s, v4, s[%d:%d], s%d offen offset:%d sc1' % (vr(PA + 4 * z, 4), S_WS, S_WS + 3, S_PO, z * 1024))
            for hp in range(2): p('buffer_load_dwordx2 %s, v5, s[%d:%d], s%d offen offset:%d sc1' % (vr(PM + 2 * hp, 2), S_WS, S_WS + 3, S_PO, hp * 128))
            return 6
        def zloads():
            p('buffer_load_dwordx4 %s, v6, s[%d:%d], s%d offen sc1' % (vr(ZB, 4), S_WS, S_WS + 3, S_ZO))
            p('buffer_load_dwordx4 %s, v6, s[%d:%d], s%d offen offset:1024 sc1' % (vr(ZB + 4, 4), S_WS, S_WS + 3, S_ZO))
            return 2
        if R_MODE == 0:
            pf(p, 1)
            poll_loop(p, lambda: ploads() + zloads(), list(range(PA, PA + 20)) + list(range(ZB, ZB + 8)), 7, 'p', 'p')
        elif R_MODE == 1:
            poll_loop(p, zloads, list(range(ZB, ZB + 8)), 7, 'z', 'z')
            pf(p, 1)
            poll_loop(p, ploads, list(range(PA, PA + 20)), 7, 'p', 'p')
        else:
            poll_loop(p, ploads, list(range(PA, PA + 20)), 7, 'p', 'p')
            pf(p, 1)
            poll_loop(p, zloads, list(range(ZB, ZB + 8)), 7, 'z', 'z')
        pf(p, 2)
        trace(p, 0, trace_on)
        p('v_smfmac_f32_16x16x64_bf16 %s, %s, %s, v3' % (vr(ACC, 4), vr(PM, 4), vr(ZB, 8)))
        for z in range(4): p('v_smfmac_f32_16x16x64_bf16 %s, %s, %s, v3' % (vr(ACC, 4), vr(PA + 4 * z, 4), VOa(k, 2 * z, 8)))
        p('v_permlane32_swap_b32 v%d, v%d' % (ACC, ACC + 1)); p('v_permlane32_swap_b32 v%d, v%d' % (ACC + 2, ACC + 3))
        p('v_add_f32 v%d, v%d, v%d' % (ACC, ACC, ACC + 1)); p('v_add_f32 v%d, v%d, v%d' % (ACC + 2, ACC + 2, ACC + 3))
        p('ds_write2_b32 v11, v%d, v%d offset0:0 offset1:16' % (ACC, ACC + 2))
        p('s_waitcnt lgkmcnt(0)')
        p('s_barrier')
        pf(p, 3)
        l = p.newlabel('LRw'); p('s_cmp_lg_u32 s%d, 0' % S_WAVE); p('s_cbranch_scc1 %s' % l)
        for w in range(4): p('ds_read_b64 %s, v12 offset:%d' % (vr(20 + 2 * w, 2) if w < 2 else vr(32 + 2 * (w - 2), 2), w * 512))
        p('s_waitcnt lgkmcnt(0)')
        p('v_add_f32 v20, v20, v22'); p('v_add_f32 v21, v21, v23'); p('v_add_f32 v32, v32, v34'); p('v_add_f32 v33, v33, v35')
        p('v_add_f32 v20, v20, v32'); p('v_add_f32 v21, v21, v33')
        p('v_cvt_pk_bf16_f32 v20, v20, v21')
        if HIST: p('v_mov_b32 v32, v20')
        for kk in (1, 2, 3): p('v_mov_b32_dpp v%d, v20 quad_perm:[%d,%d,%d,%d] row_mask:0xf bank_mask:0xf' % (20 + kk, kk, kk, kk, kk))
        p('buffer_store_dwordx4 v[20:23], v13, s[%d:%d], s%d offen sc1' % (S_WS, S_WS + 3, S_MEMO))
        pf(p, 4)
        pf_acc(p)
        trace(p, 2, trace_on)
        if HIST:
            p('s_mul_i32 s%d, s%d, 10240' % (S_T0, S_STEP)); p('s_add_u32 s%d, s%d, %d' % (S_T0, S_T0, OFF_HIST + 10240))
            p('buffer_store_dword v32, v14, s[%d:%d], s%d offen' % (S_WS, S_WS + 3, S_T0))
        p.label(l)
        l3 = p.newlabel('LRq'); p('s_cmp_lg_u32 s%d, 1' % S_WAVE); p('s_cbranch_scc1 %s' % l3)
        p('s_and_b32 s%d, s%d, %d' % (S_T0, S_STEP, MEM_RING - 1)); p('s_lshl_b32 s%d, s%d, 15' % (S_T0, S_T0)); p('s_add_u32 s%d, s%d, s%d' % (S_T0, S_T0, S_COMM))
        p('buffer_store_dwordx4 %s, v13, s[%d:%d], s%d offen sc1' % (vr(SENT, 4), S_WS, S_WS + 3, S_T0))
        p.label(l3)
        if SEGROWS:
            l4 = p.newlabel('LRx'); p('s_cmp_lg_u32 s%d, 2' % S_WAVE); p('s_cbranch_scc1 %s' % l4)
            p('s_cmp_lt_u32 s%d, 3' % S_STEP); p('s_cbranch_scc1 %s' % l4)
            p('s_sub_u32 s%d, s%d, 2' % (S_T1, S_STEP)); x1_flag(S_T1)
            p.label(l4)
        p('s_barrier')
        lok = p.newlabel('LRok')
        if USE_FLAGS:
            p('s_add_u32 s%d, s%d, 2' % (S_T1, S_STEP)); p('s_min_u32 s%d, s%d, 64' % (S_T1, S_T1))
            p('s_max_u32 s%d, s%d, 1' % (S_T2, S_STEP)); p('s_sub_u32 s%d, s%d, 1' % (S_T2, S_T2))
            p('v_mov_b32 v102, s%d' % S_T1); p('v_mov_b32 v7, s%d' % S_T2); p('v_cndmask_b32 v102, v102, v7, s[%d:%d]' % (S_MASK, S_MASK + 1))
            p('v_cmp_gt_u32 vcc, v102, v103'); p('s_cbranch_vccz %s' % lok)
            p('s_mov_b32 s%d, s%d' % (S_T3, S_T1)); wait_flags(p, 0, F_VO, S_T3, 7)
            p('s_max_u32 s%d, s%d, 1' % (S_T3, S_STEP)); p('s_sub_u32 s%d, s%d, 1' % (S_T3, S_T3)); wait_flags(p, 0, F_P, S_T3, 7)
        p.label(lok)
        for r in range(8): p('v_accvgpr_write_b32 a%d, v%d' % (40 * k + 32 + r, ZB + r))
        p('s_add_u32 s%d, s%d, 1' % (S_STEP, S_STEP))
        lns = p.newlabel('LRns'); ljoin = p.newlabel('LRj')
        def tail_loads():
            p('buffer_store_dwordx4 %s, v6, s[%d:%d], s%d offen sc1' % (vr(SENT, 4), S_WS, S_WS + 3, S_ZO))
            p('buffer_store_dwordx4 %s, v6, s[%d:%d], s%d offen offset:1024 sc1' % (vr(SENT, 4), S_WS, S_WS + 3, S_ZO))
            p('s_add_u32 s%d, s%d, %d' % (S_VOO, S_VOO, 40 * 32 * 1024))
            vo_load((k + 1) & 3)
        if SEGROWS:
            p('s_cmp_lt_u32 s%d, 3' % S_STEP); p('s_cbranch_scc1 %s' % lns)
            p('s_sub_u32 s%d, s%d, 3' % (S_SG, S_STEP)); seg_issue(False)
            tail_loads()
            seg_compute((k + 2) & 3, 10)
            p('s_branch %s' % ljoin)
        p.label(lns)
        tail_loads()
        p.label(ljoin)
    p('s_cmp_lt_u32 s%d, s%d' % (S_STEP, S_NST)); p('s_cbranch_scc1 %s' % loop)
    if SEGROWS:
        for sg in (62, 63):
            p('s_barrier')
            p('s_mov_b32 s%d, %d' % (S_SG, sg)); seg_issue(True); seg_compute(sg & 3, 0)
        p('s_waitcnt vmcnt(0)'); p('s_barrier')
        l = p.newlabel('LRf'); p('s_cmp_lg_u32 s%d, 2' % S_WAVE); p('s_cbranch_scc1 %s' % l)
        p('s_mov_b32 s%d, 64' % S_T1); x1_flag(S_T1)
        p.label(l)

HEADER = '''.amdgcn_target "amdgcn-amd-amdhsa--gfx950"
.text
'''
def kernel_desc(name, vgpr=512, accum=256, sgpr=96):
    return '''.section .rodata,"a"
.p2align 6
.amdhsa_kernel %s
  .amdhsa_next_free_vgpr %d
  .amdhsa_next_free_sgpr %d
  .amdhsa_accum_offset %d
  .amdhsa_group_segment_fixed_size 0
  .amdhsa_kernarg_size 128
  .amdhsa_user_sgpr_count 2
  .amdhsa_user_sgpr_kernarg_segment_ptr 1
  .amdhsa_system_sgpr_workgroup_id_x 1
.end_amdhsa_kernel
''' % (name, vgpr, sgpr, accum)

PLACE = 0
def gen_core_test(nsteps=64, trace_on=False, st=False):
    p = Prog()
    name = 'core_kernel'
    p.raw('.globl %s' % name); p.raw('.p2align 8'); p.raw('.type %s,@function' % name); p.label(name)
    srd(p, S_WS, KA['ws'], WS_BYTES)
    p('s_load_dwordx2 s[%d:%d], s[0:1], %d' % (S_DBG, S_DBG + 1, KA['dbg']))
    p('s_mov_b32 s%d, %d' % (S_NST, nsteps))
    p('s_waitcnt lgkmcnt(0)')
    comm_setup(p)
    lA, lB, lR, lend = 'L_roleA', 'L_roleB', 'L_roleR', 'L_end'
    if PLACE == 1:
        p('s_and_b32 s20, s2, 7'); p('s_cmp_ge_u32 s20, 4'); p('s_cbranch_scc1 L_exit')
        p('s_lshr_b32 s21, s2, 3'); p('s_lshl_b32 s21, s21, 2'); p('s_add_u32 s2, s21, s20')
    elif PLACE == 2:
        p('s_and_b32 s20, s2, 7'); p('s_cmp_ge_u32 s20, 4'); p('s_cbranch_scc1 L_exit')
        p('s_lshr_b32 s21, s2, 3')
        l0 = p.newlabel('Lpl'); l1 = p.newlabel('Lpl')
        p('s_cmp_ge_u32 s20, 2'); p('s_cbranch_scc1 %s' % l0)
        p('s_lshl_b32 s20, s20, 5'); p('s_add_u32 s2, s20, s21'); p('s_branch %s' % l1)
        p.label(l0)
        p('s_cmp_ge_u32 s21, 20'); p('s_cbranch_scc1 L_exit')
        p('s_sub_u32 s20, s20, 2'); p('s_mul_i32 s20, s20, 20'); p('s_add_u32 s2, s20, s21'); p('s_add_u32 s2, s2, 64')
        p.label(l1)
    elif PLACE == 3:
        p('s_and_b32 s20, s2, 7'); p('s_cmp_ge_u32 s20, 4'); p('s_cbranch_scc1 L_exit')
        p('s_lshr_b32 s21, s2, 3')
        l0 = p.newlabel('Lpl'); l1 = p.newlabel('Lpl')
        p('s_cmp_ge_u32 s20, 2'); p('s_cbranch_scc1 %s' % l0)
        p('s_lshr_b32 s22, s21, 1'); p('s_lshl_b32 s23, s20, 4'); p('s_add_u32 s22, s22, s23'); p('s_and_b32 s21, s21, 1'); p('s_lshl_b32 s21, s21, 5'); p('s_add_u32 s2, s22, s21'); p('s_branch %s' % l1)
        p.label(l0)
        p('s_cmp_ge_u32 s21, 20'); p('s_cbranch_scc1 L_exit')
        p('s_sub_u32 s20, s20, 2'); p('s_mul_i32 s20, s20, 20'); p('s_add_u32 s2, s20, s21'); p('s_add_u32 s2, s2, 64')
        p.label(l1)
    if st:
        p('v_lshrrev_b32 v3, 6, v0'); p('v_readfirstlane_b32 s%d, v3' % S_WAVE); p('v_mov_b32 v20, v0'); stamp(p, 0, True); p('v_mov_b32 v0, v20')
    p('s_cmp_lt_u32 s2, 32'); p('s_cbranch_scc1 %s' % lA)
    p('s_cmp_lt_u32 s2, 64'); p('s_cbranch_scc1 %s' % lB)
    p('s_cmp_lt_u32 s2, 104'); p('s_cbranch_scc1 %s' % lR)
    p.label('L_exit')
    p('s_endpgm')
    p.label(lA); p('s_mov_b32 s%d, s2' % S_IDX); gen_A(p, trace_on, st); p('s_branch %s' % lend)
    p.label(lB); p('s_sub_u32 s%d, s2, 32' % S_IDX); gen_B(p, trace_on, st); p('s_branch %s' % lend)
    p.label(lR); p('s_sub_u32 s%d, s2, 64' % S_IDX); gen_R(p, trace_on, st)
    p.label(lend)
    stamp(p, 2, st)
    pf_out(p)
    l = p.newlabel('Lok'); p('s_cmp_lg_u32 s%d, 0' % S_SPIN); p('s_cbranch_scc1 %s' % l)
    p('v_mov_b32 v4, 0'); p('v_mov_b32 v5, s2'); p('v_add_u32 v5, 1, v5'); p('global_store_dword v4, v5, s[%d:%d]' % (S_DBG, S_DBG + 1))
    p.label(l)
    p('s_waitcnt vmcnt(0)')
    p('s_endpgm')
    body = p.text()
    return '; @launch grid=(256,1,1) block=(256,1,1) lds=163840\n' + HEADER + body + kernel_desc(name), p

if __name__ == '__main__':
    t, p = gen_core_test()
    open('core.s', 'w').write(t)
    print(len(t), 'bytes', p.nops, 'nops')
```

```python
from core import *
import core, struct

S_COMZ = 39
CLASSIC = {'mem': True, 'p': True}
CHECK1 = True
S_DLY = 62; S_RND = 63; S_RSUM = 60
PACE = {'mem': 2, 'p': 4}
DLY_INIT = {'A': 0, 'B': 0, 'R': 0}
DLY_ADJ = [-3, 0, 2, 4, 8]

def comm_setup2(p):
    p('s_add_u32 s%d, s%d, %d' % (S_T0, S_WS, OFF_COMM))
    p('s_sub_u32 s%d, 0, s%d' % (S_T0, S_T0)); p('s_and_b32 s%d, s%d, 0x1fffff' % (S_T0, S_T0))
    if core.DYN_PAR:
        p('s_add_u32 s%d, s%d, %d' % (S_COMM, S_T0, OFF_COMM)); p('s_add_u32 s%d, s%d, %d' % (S_COMZ, S_COMM, 2 << 20))
    else:
        p('s_add_u32 s%d, s%d, %d' % (S_COMM, S_T0, OFF_COMM + (core.PARITY & 1) * 8192))
        p('s_add_u32 s%d, s%d, %d' % (S_COMZ, S_T0, OFF_COMM + (2 << 20) + ((core.PARITY >> 1) & 1) * 8192))

def parity_probe2(p):
    if not core.DYN_PAR: return
    l = p.newlabel('Lpp'); p('s_cmp_lg_u32 s%d, 0' % S_WAVE); p('s_cbranch_scc1 %s' % l)
    p('s_cmp_lg_u32 s%d, 0' % S_IDX); p('s_cbranch_scc1 %s' % l)
    p('v_mov_b32 v16, 0'); p('v_mov_b32 v17, -1')
    p('s_mov_b32 s54, 4')
    for pg, base in ((0, S_COMM), (1, S_COMZ)):
        p('s_mov_b32 s48, 0'); p('s_mov_b32 s49, 0')
        for i in range(4):
            for par in range(2):
                p('s_add_u32 s%d, s%d, %d' % (S_T0, base, (BLK_PROBE + i) * BLK + par * 8192 + i * 256))
                p('buffer_store_dword v17, v16, s[%d:%d], s%d offen sc1' % (S_WS, S_WS + 3, S_T0))
                p('s_waitcnt vmcnt(0)')
                p('s_memtime s[50:51]'); p('s_waitcnt lgkmcnt(0)')
                p('buffer_load_dword v18, v16, s[%d:%d], s%d offen sc1' % (S_WS, S_WS + 3, S_T0))
                p('s_waitcnt vmcnt(0)')
                p('s_memtime s[52:53]'); p('s_waitcnt lgkmcnt(0)')
                p('s_sub_u32 s50, s52, s50')
                if i > 0: p('s_add_u32 s%d, s%d, s50' % (48 + par, 48 + par))
        p('s_cmp_lt_u32 s49, s48'); p('s_cselect_b32 s50, %d, 0' % (1 << pg)); p('s_add_u32 s54, s54, s50')
    p('v_mov_b32 v17, s54')
    dbg_srd(p, 52)
    p('v_cmp_eq_u32 vcc, 0, v1'); p('v_mov_b32 v18, 0x7ff00000'); p('v_cndmask_b32 v16, v18, v16, vcc')
    p('buffer_store_dword v17, v16, s[52:55], 0 offen sc1')
    p('s_waitcnt vmcnt(0)')
    p.label(l)

def ready(p):
    if core.FUSED:
        import fused
        fused.wait_ready(p)

def parity_wait2(p, lds_off=10240):
    if core.FUSED and core.DYN_PAR:
        import fused
        fused.wait_ready(p, parity=lds_off)
    else:
        ready(p)
        if not core.DYN_PAR: return
        dbg_srd(p, 52)
        top = p.newlabel('Lpw'); done = p.newlabel('Lpwd')
        p('v_mov_b32 v16, 0')
        p.label(top)
        p('buffer_load_dword v17, v16, s[52:55], 0 offen sc1'); p('s_waitcnt vmcnt(0)')
        p('v_readfirstlane_b32 s50, v17')
        p('s_cmp_lg_u32 s50, 0'); p('s_cbranch_scc1 %s' % done)
        p('s_sleep 4')
        p('s_cmp_eq_u32 s%d, 0' % S_SPIN); p('s_cbranch_scc1 %s' % done)
        p('s_sub_u32 s%d, s%d, 1' % (S_SPIN, S_SPIN)); p('s_branch %s' % top)
        p.label(done)
    p('s_and_b32 s51, s50, 1'); p('s_lshl_b32 s51, s51, 13'); p('s_add_u32 s%d, s%d, s51' % (S_COMM, S_COMM))
    p('s_and_b32 s51, s50, 2'); p('s_lshl_b32 s51, s51, 12'); p('s_add_u32 s%d, s%d, s51' % (S_COMZ, S_COMZ))

def offsets2(p, mem_add=0, want=('mem', 'p', 'z')):
    if 'mem' in want:
        p('s_add_u32 s%d, s%d, %d' % (S_T0, S_STEP, mem_add)); p('s_and_b32 s%d, s%d, %d' % (S_T0, S_T0, MEM_RING - 1))
        p('s_mul_i32 s%d, s%d, %d' % (S_T0, S_T0, MEM_SLOT * BLK)); p('s_add_u32 s%d, s%d, s%d' % (S_MEMO, S_T0, S_COMM))
        if BLK_MEM: p('s_add_u32 s%d, s%d, %d' % (S_MEMO, S_MEMO, BLK_MEM * BLK))
    if 'p' in want:
        p('s_and_b32 s%d, s%d, %d' % (S_T0, S_STEP, P_RING - 1)); p('s_mul_i32 s%d, s%d, %d' % (S_T0, S_T0, P_SLOT * BLK))
        p('s_add_u32 s%d, s%d, s%d' % (S_PO, S_T0, S_COMM)); p('s_add_u32 s%d, s%d, %d' % (S_PO, S_PO, BLK_P * BLK))
    if 'z' in want:
        p('s_and_b32 s%d, s%d, %d' % (S_T0, S_STEP, Z_RING - 1)); p('s_mul_i32 s%d, s%d, %d' % (S_T0, S_T0, 40 * BLK))
        p('s_add_u32 s%d, s%d, s%d' % (S_ZO, S_T0, S_COMZ))

def check_regs(p, regs, tmp, quads=None):
    r = list(regs)
    if CHECK1 and quads: r = list(quads)
    if len(r) < 3: r = r + [r[0]] * (3 - len(r))
    p('v_max3_u32 v%d, v%d, v%d, v%d' % (tmp, r[0], r[1], r[2])); r = r[3:]
    while len(r) >= 2:
        p('v_max3_u32 v%d, v%d, v%d, v%d' % (tmp, tmp, r[0], r[1])); r = r[2:]
    if r: p('v_max_u32 v%d, v%d, v%d' % (tmp, tmp, r[0]))
    p('v_cmp_eq_u32 vcc, -1, v%d' % tmp)

def budget(p, giveup, again):
    p('s_cmp_eq_u32 s%d, 0' % S_SPIN); p('s_cbranch_scc1 %s' % giveup)
    p('s_sub_u32 s%d, s%d, 1' % (S_SPIN, S_SPIN)); p('s_branch %s' % again)

def multi_poll(p, issue, n, regs_of_set, tmp, kind, variant, first_hook=None, pre_issue=None, quads=None):
    if CLASSIC[kind]:
        top = p.newlabel('Lcl'); ok = p.newlabel('Lclok')
        if pre_issue:
            pre_issue(); p('s_waitcnt vmcnt(0)'); first_hook()
        p.label(top)
        issue(0, 0); p('s_waitcnt vmcnt(0)'); check_regs(p, regs_of_set(0), tmp, quads(0) if quads else None); p('s_cbranch_vccz %s' % ok)
        budget(p, ok, top)
        p.label(ok)
        p('s_mov_b32 s%d, 1' % S_RND)
        variant(0)
        return
    V = [p.newlabel('Lv%d' % j) for j in range(4)]; join = p.newlabel('Lvj'); fb = p.newlabel('Lfb'); fbok = p.newlabel('Lfbok')
    dl = p.newlabel('Ldl'); dld = p.newlabel('Ldld')
    p('s_mov_b32 s%d, s%d' % (S_T1, S_DLY))
    p.label(dl); p('s_cmp_eq_u32 s%d, 0' % S_T1); p('s_cbranch_scc1 %s' % dld)
    p('s_sleep 1'); p('s_sub_u32 s%d, s%d, 1' % (S_T1, S_T1)); p('s_branch %s' % dl)
    p.label(dld)
    if pre_issue: pre_issue()
    issue(0, 0); p('s_sleep %d' % PACE[kind]); issue(1, 1); p('s_sleep %d' % PACE[kind]); issue(2, 2)
    p('s_waitcnt vmcnt(%d)' % (2 * n))
    if first_hook: first_hook()
    check_regs(p, regs_of_set(0), tmp); p('s_cbranch_vccz %s' % V[0])
    issue(3, 3)
    p('s_waitcnt vmcnt(%d)' % (2 * n)); check_regs(p, regs_of_set(1), tmp); p('s_cbranch_vccz %s' % V[1])
    p('s_waitcnt vmcnt(%d)' % n); check_regs(p, regs_of_set(2), tmp); p('s_cbranch_vccz %s' % V[2])
    p('s_waitcnt vmcnt(0)'); check_regs(p, regs_of_set(3), tmp); p('s_cbranch_vccz %s' % V[3])
    p.label(fb)
    issue(0, 0); p('s_waitcnt vmcnt(0)'); check_regs(p, regs_of_set(0), tmp); p('s_cbranch_vccz %s' % fbok)
    budget(p, fbok, fb)
    p.label(fbok)
    p('s_mov_b32 s%d, 4' % S_RND)
    lv0 = p.newlabel('Lv0b'); p('s_branch %s' % lv0)
    for j in range(4):
        p.label(V[j]); p('s_mov_b32 s%d, %d' % (S_RND, j))
        if j == 0: p.label(lv0)
        variant(j)
        if j < 3: p('s_branch %s' % join)
    p.label(join)

def rnd_write(p, lds_off, t1, t2):
    p('s_lshl_b32 s%d, s%d, 2' % (S_T1, S_WAVE)); p('s_add_u32 s%d, s%d, %d' % (S_T1, S_T1, lds_off))
    p('v_mov_b32 v%d, s%d' % (t1, S_T1)); p('v_mov_b32 v%d, s%d' % (t2, S_RND)); p('ds_write_b32 v%d, v%d' % (t1, t2))
    if core.PROF: p('s_add_u32 s%d, s%d, s%d' % (S_RSUM, S_RSUM, S_RND))

def dly_update(p, lds_off, t):
    p('v_mov_b32 v%d, %d' % (t + 4, lds_off)); p('ds_read_b128 %s, v%d' % (vr(t, 4), t + 4)); p('s_waitcnt lgkmcnt(0)')
    p('v_max3_u32 v%d, v%d, v%d, v%d' % (t, t, t + 1, t + 2)); p('v_max_u32 v%d, v%d, v%d' % (t, t, t + 3))
    p('v_readfirstlane_b32 s%d, v%d' % (S_RND, t))
    p('s_mov_b32 s%d, %d' % (S_T1, DLY_ADJ[0]))
    for r in range(1, 5):
        p('s_cmp_eq_u32 s%d, %d' % (S_RND, r)); p('s_cselect_b32 s%d, %d, s%d' % (S_T1, DLY_ADJ[r], S_T1))
    p('s_add_i32 s%d, s%d, s%d' % (S_DLY, S_DLY, S_T1)); p('s_max_i32 s%d, s%d, 0' % (S_DLY, S_DLY)); p('s_min_i32 s%d, s%d, 120' % (S_DLY, S_DLY))

def gset(): return 40 if CLASSIC['mem'] else 80
TRACE_ON = False
def gather_and_project(p, lg, ntile, acc0, wres_v, kind, hooks, tail_order=None, wave0_hooks=None):
    def issue(st, cp):
        if cp: p('s_add_u32 s%d, s%d, %d' % (S_T2, S_MEMO, cp * MEM_COPY * BLK))
        for j in range(3):
            p('buffer_load_dwordx4 %s, v%d, s[%d:%d], s%d offen sc1' % (vr(gset() + 12 * st + 4 * j, 4), 4 + j, S_WS, S_WS + 3, S_T2 if cp else S_MEMO))
    def ringreg(tau): return RING + 4 * ((tau - 3) % 3)
    def rd(tau):
        a, off = memfrag_addr(tau)
        p('ds_read_b128 %s, v%d offset:%d' % (vr(ringreg(tau), 4), a, off)); lg.issue(('m', tau))
    base_q = list(lg.q); end_q = []
    def variant(st):
        lg.q = list(base_q)
        pf(p, 1)
        trace(p, 0, TRACE_ON)
        fr = gset() + 12 * st
        for j in range(3):
            p('ds_write_b128 v%d, %s' % (RING + j, vr(fr + 4 * j, 4))); lg.issue(('mw', j))
        for tau in range(3):
            if tau == 2:
                lg.wait(('mw', 2)); p('s_barrier')
                for t in (3, 4, 5): rd(t)
            for tile in range(ntile): smf(p, acc0 + 4 * tile, fr + 4 * tau, tau * ntile + tile, lg, wres_v)
        end_q[:] = list(lg.q)
    multi_poll(p, issue, 3, lambda st: range(gset() + 12 * st, gset() + 12 * st + 12), 7, 'mem', variant, quads=lambda st: [gset() + 12 * st + 4 * j + 3 for j in range(3)])
    lg.q = list(end_q)
    last = 8 if tail_order else 10
    def rest(t0, hk):
        for tau in range(t0, last):
            lg.wait(('m', tau))
            for tile in range(ntile): smf(p, acc0 + 4 * tile, ringreg(tau), tau * ntile + tile, lg, wres_v)
            if tau + 3 < 10: rd(tau + 3)
            if tau in hk: hk[tau]()
        if tail_order: tail_order(ringreg)
    if wave0_hooks is None:
        rest(3, hooks)
    else:
        lo = p.newlabel('Lnw0'); lj = p.newlabel('Lnw0j')
        q0 = list(lg.q)
        p('s_cmp_lg_u32 s%d, 0' % S_WAVE); p('s_cbranch_scc1 %s' % lo)
        rest(3, wave0_hooks); p('s_branch %s' % lj)
        p.label(lo); lg.q = list(q0); rest(3, hooks)
        p.label(lj)

def gen_A2(p, trace_on=False, st=False):
    global TRACE_ON
    TRACE_ON = trace_on
    lg = Cnt(p, 'lgkmcnt', 15); vm = Cnt(p, 'vmcnt', 63)
    h = S_IDX
    srd(p, S_W1, KA['Wq'], 640 * 12288); srd(p, S_W2, KA['Wk'], 640 * 12288)
    common_lane_setup(p)
    p('s_waitcnt lgkmcnt(0)')
    mem_gather_setup(p, A_MEMX)
    p('s_mul_i32 s%d, s%d, 24576' % (S_T0, S_WAVE)); p('s_add_u32 s%d, s%d, 65536' % (S_T0, S_T0)); p('v_add_u32 v15, s%d, v2' % S_T0)
    voffs = [80, 81, 82]
    stage_offsets(p, voffs, 6, 12288, 1, 83, 84)
    p('v_lshrrev_b32 v83, 4, v1'); p('v_lshlrev_b32 v83, 3, v83'); p('v_bfe_u32 v84, v1, 2, 2'); p('v_add_u32 v83, v83, v84')
    p('v_mul_u32_u24 v83, 96, v83'); p('v_and_b32 v84, 3, v1'); p('v_lshlrev_b32 v84, 3, v84'); p('v_add_u32 v85, v83, v84')
    p('s_lshl_b32 s%d, s%d, 14' % (S_T4, S_WAVE)); p('v_add_u32 v85, s%d, v85' % S_T4)
    p('s_mul_i32 s%d, s%d, 384' % (S_T5, h)); p('s_mul_i32 s%d, s%d, 96' % (S_T0, S_WAVE)); p('s_add_u32 s%d, s%d, s%d' % (S_T5, S_T5, S_T0))
    p('s_mul_i32 s%d, s%d, 3' % (S_T6, S_WAVE))
    jobs = []
    for tau in range(10):
        for half in range(2):
            for mat in range(2):
                def soff(dst, tau=tau, half=half):
                    p('s_add_u32 s%d, s%d, %d' % (dst, S_T6, tau))
                    p('s_sub_u32 s%d, s%d, 10' % (S_T2, dst)); p('s_cmp_ge_u32 s%d, 10' % dst); p('s_cselect_b32 s%d, s%d, s%d' % (dst, S_T2, dst))
                    p('s_mul_i32 s%d, s%d, %d' % (dst, dst, 64 * 12288))
                    p('s_add_u32 s%d, s%d, s%d' % (dst, dst, S_T5))
                    if half: p('s_add_u32 s%d, s%d, %d' % (dst, dst, 32 * 12288))
                dests = []
                for x in range(3):
                    kind, n = UM[tau * 6 + mat * 3 + x]
                    if kind == 'reg': dests.append((x * 32, ('reg', unit_reg(n, 4 * half, 2), unit_reg(n, 4 * half + 2, 2))))
                    else: dests.append((x * 32, ('lds', n * 2048 + half * 1024)))
                jobs.append(dict(srd=S_W1 if mat == 0 else S_W2, soff=soff, dests=dests))
    load_weights_type1(p, jobs, 85, 3072, 5, voffs, 3, 96, lg, vm, 15, 88, S_T4)
    p('s_barrier')
    p('v_lshrrev_b32 v80, 5, v1'); p('v_mul_u32_u24 v80, 3072, v80')
    p('v_and_b32 v81, 3, v1'); p('v_lshlrev_b32 v81, 6, v81'); p('v_add_u32 v80, v80, v81')
    p('v_bfe_u32 v81, v1, 2, 2'); p('v_lshlrev_b32 v81, 4, v81'); p('v_add_u32 v80, v80, v81')
    p('v_bfe_u32 v81, v1, 4, 1'); p('v_lshlrev_b32 v81, 3, v81'); p('v_add_u32 v80, v80, v81')
    p('s_mul_i32 s%d, s%d, 768' % (S_T0, S_WAVE)); p('s_add_u32 s%d, s%d, %d' % (S_T0, S_T0, A_QX)); p('v_add_u32 v11, s%d, v80' % S_T0)
    p('v_bfe_u32 v80, v1, 2, 2'); p('v_lshlrev_b32 v80, 6, v80')
    p('v_lshrrev_b32 v81, 4, v1'); p('v_lshlrev_b32 v81, 4, v81'); p('v_add_u32 v80, v80, v81')
    p('v_and_b32 v81, 1, v1'); p('v_lshlrev_b32 v81, 3, v81'); p('v_add_u32 v80, v80, v81'); p('v_add_u32 v12, %d, v80' % A_QX)
    p('v_lshrrev_b32 v80, 5, v1'); p('v_lshlrev_b32 v80, 8, v80')
    p('v_bfe_u32 v81, v1, 4, 1'); p('v_lshlrev_b32 v81, 7, v81'); p('v_add_u32 v80, v80, v81')
    p('v_and_b32 v81, 7, v1'); p('v_lshlrev_b32 v82, 4, v81'); p('v_add_u32 v80, v80, v82')
    p('v_bfe_u32 v83, v1, 3, 1'); p('v_mul_u32_u24 v83, %d, v83' % (P_COPY * BLK)); p('v_add_u32 v80, v80, v83')
    p('s_lshr_b32 s%d, s%d, 4' % (S_T1, h)); p('s_lshl_b32 s%d, s%d, 14' % (S_T1, S_T1)); p('s_and_b32 s%d, s%d, 15' % (S_T0, h)); p('s_lshl_b32 s%d, s%d, 9' % (S_T0, S_T0)); p('s_add_u32 s%d, s%d, s%d' % (S_T0, S_T0, S_T1))
    p('v_add_u32 v13, s%d, v80' % S_T0)
    if CLASSIC['p']: p('v_mov_b32 v82, 0x7ff00000'); p('v_and_b32 v83, 8, v1'); p('v_cmp_eq_u32 vcc, 0, v83'); p('v_cndmask_b32 v13, v82, v13, vcc'); p('v_and_b32 v81, 7, v1'); p('v_lshlrev_b32 v82, 4, v81')
    p('v_bfe_u32 v83, v1, 3, 2'); p('v_mul_u32_u24 v83, %d, v83' % (P_COPY * BLK)); p('v_add_u32 v80, v82, v83')
    p('s_lshl_b32 s%d, s%d, 7' % (S_T0, h)); p('s_add_u32 s%d, s%d, %d' % (S_T0, S_T0, 2 * BLK)); p('v_add_u32 v14, s%d, v80' % S_T0)
    p('v_mov_b32 v82, 0x7ff00000'); p('v_cmp_gt_u32 vcc, %d, v1' % (8 if CLASSIC['p'] else 32)); p('v_cndmask_b32 v14, v82, v14, vcc')
    p('s_mov_b32 s%d, 0' % S_MASK); p('s_mov_b32 s%d, -1' % (S_MASK + 1))
    p('s_mov_b32 s%d, 0x%x' % (S_C, struct.unpack('<I', struct.pack('<f', 192 ** -0.5 * 1.4426950408889634))[0]))
    p('s_mov_b32 s%d, 0' % S_STEP)
    p('s_mul_i32 s%d, s%d, 24576' % (S_QKO, h)); p('s_add_u32 s%d, s%d, %d' % (S_QKO, S_QKO, OFF_QK))
    parity_wait2(p)
    def qk_dma(bufsel_s):
        p('s_mov_b32 s%d, s%d' % (S_T1, S_QKO))
        for j in range(24):
            p('s_add_u32 s%d, s%d, %d' % (S_T0, bufsel_s, j * 1024)); p('s_mov_b32 m0, s%d' % S_T0)
            p('buffer_load_dwordx4 v2, s[%d:%d], s%d offen sc1 lds' % (S_WS, S_WS + 3, S_T1))
            if j < 23: p('s_add_u32 s%d, s%d, 1024' % (S_T1, S_T1))
    def KS(jt, u): return 80 + 4 * (jt * 6 + u)
    def qk_wait(add, sampled=False):
        p('s_add_u32 s%d, s%d, %d' % (S_T3, S_STEP, add))
        lok = p.newlabel('LAok')
        if sampled: p('v_cmp_gt_u32 vcc, s%d, v1' % S_T3); p('s_cbranch_vccz %s' % lok)
        wait_flags(p, 0, F_QK, S_T3, 7)
        p.label(lok)
    p('s_lshl_b32 s%d, s%d, %d' % (S_T0, h, FSH)); p('v_mov_b32 v0, s%d' % S_T0)
    l = p.newlabel('La')
    p('s_cmp_lg_u32 s%d, 3' % S_WAVE); p('s_cbranch_scc1 %s' % l)
    qk_wait(1)
    p('s_mov_b32 s%d, %d' % (S_T3, A_QKB)); qk_dma(S_T3)
    p('s_waitcnt vmcnt(0)')
    p.label(l)
    stamp(p, 1, st)
    pf_init(p); p('s_mov_b32 s%d, %d' % (S_DLY, DLY_INIT['A'])); p('s_mov_b32 s%d, 0' % S_RSUM); p('s_mov_b32 s%d, 1' % S_RND); rnd_write(p, A_QX, 40, 41)
    loop = p.newlabel('LAloop'); p.label(loop)
    lg.reset()
    pf(p, 0)
    for r in range(16, 40): p('v_mov_b32 v%d, 0' % r)
    wst_load(p, 0, 15, lg); wst_load(p, 1, 15, lg)
    offsets2(p, 0, ('mem', 'p')); mem_lds_addr(p)
    p('s_mov_b32 s%d, %d' % (S_T0, F_QK))
    p('buffer_load_dword v1, v0, s[%d:%d], s%d offen sc1' % (S_WS, S_WS + 3, S_T0))
    p('s_waitcnt lgkmcnt(0)'); lg.reset()
    if not CLASSIC['mem']: p('s_barrier'); dly_update(p, A_QX, 40)
    def kread(lst):
        for (jt, u) in lst:
            p('ds_read_b128 %s, v7 offset:%d' % (vr(KS(jt, u), 4), jt * 6144 + u * 1024)); lg.issue(('k', jt, u))
    def h3():
        if not CLASSIC['mem']: p('s_waitcnt vmcnt(0)')
        p('s_and_b32 s%d, s%d, 1' % (S_T0, S_STEP)); p('s_mul_i32 s%d, s%d, 24576' % (S_T0, S_T0)); p('s_add_u32 s%d, s%d, %d' % (S_T0, S_T0, A_QKB + 12288))
        p('v_add_u32 v7, s%d, v2' % S_T0)
        kread([(0, 0), (1, 0)])
    w0hooks = {3: h3, 4: lambda: kread([(0, 1), (1, 1), (0, 2)]), 5: lambda: kread([(1, 2), (0, 3)]), 6: lambda: kread([(1, 3), (0, 4), (1, 4)]), 7: lambda: kread([(0, 5), (1, 5)])}
    hooks = {} if CLASSIC['mem'] else {4: lambda: p('s_waitcnt vmcnt(0)')}
    def exch(x):
        a = 16 + 4 * x; b = 28 + 4 * x
        L = ['v_permlane32_swap_b32 v%d, v%d' % (a + r, b + r) for r in range(4)]
        L += ['v_add_f32 v%d, v%d, v%d' % (a + r, a + r, b + r) for r in range(4)]
        L += ['v_cvt_pk_bf16_f32 v%d, v%d, v%d' % (a, a, a + 1), 'v_cvt_pk_bf16_f32 v%d, v%d, v%d' % (a + 1, a + 2, a + 3)]
        L += ['ds_write_b64 v11, %s offset:%d' % (vr(a, 2), x * 256)]
        return L
    def tail_order(ringreg):
        lg.wait(('m', 8));
        seq = []
        for x in range(3):
            for tau in (8, 9): seq += [(tau, x), (tau, 3 + x)]
        fill = []
        for i, (tau, tile) in enumerate(seq):
            if i == 2: lg.wait(('m', 9))
            smf(p, 16 + 4 * tile, ringreg(tau), tau * 6 + tile, lg, 15)
            if i == 5: fill += exch(0)
            if i == 9: fill += exch(1)
            for _ in range(3):
                if fill:
                    ins = fill.pop(0); p(ins)
                    if ins.startswith('ds_'): lg.issue('qx')
        for ins in fill + exch(2):
            p(ins)
            if ins.startswith('ds_'): lg.issue('qx')
    gather_and_project(p, lg, 6, 16, 15, 'mem', hooks, tail_order, w0hooks)
    pf(p, 2)
    p('s_waitcnt lgkmcnt(0)'); lg.reset()
    p('s_barrier')
    pf(p, 3)
    trace(p, 1, trace_on)
    lw = p.newlabel('LAw'); lend = p.newlabel('LAe'); lw3 = p.newlabel('LAw3')
    QF = 16; KM = 40; SA = 64; SM = 72
    def scores(kind):
        lg.reset()
        if kind == 'seg':
            p('s_and_b32 s%d, s%d, 1' % (S_T0, S_STEP)); p('s_mul_i32 s%d, s%d, 24576' % (S_T0, S_T0)); p('s_add_u32 s%d, s%d, %d' % (S_T0, S_T0, A_QKB))
            p('s_sub_u32 s%d, s%d, 1' % (S_T1, S_WAVE)); p('s_mul_i32 s%d, s%d, 6144' % (S_T1, S_T1)); p('v_add_u32 v7, s%d, v2' % S_T0); p('s_add_u32 s%d, s%d, s%d' % (S_T0, S_T0, S_T1)); p('v_add_u32 v76, s%d, v2' % S_T0)
        for u in range(6):
            if kind == 'seg':
                for jt in range(2):
                    p('ds_read_b128 %s, v7 offset:%d' % (vr(KS(jt, u), 4), 12288 + jt * 6144 + u * 1024)); lg.issue(('q', u))
            if kind == 'mem':
                for z in range(2):
                    p('ds_read_b64_tr_b16 %s, v12 offset:%d' % (vr(QF + 4 * u + 2 * z, 2), (2 * u + z) * 256)); lg.issue(('q', u))
            else:
                p('ds_read_b128 %s, v76 offset:%d' % (vr(QF + 4 * u, 4), u * 1024)); lg.issue(('q', u))
            for z in range(2):
                p('ds_read_b64_tr_b16 %s, v12 offset:%d' % (vr(KM + 4 * u + 2 * z, 2), 3072 + (2 * u + z) * 256)); lg.issue(('q', u))
            if u >= 2:
                uu = u - 2
                lg.wait(('q', uu)); mf(uu)
        for uu in (4, 5): lg.wait(('q', uu)); mf(uu)
        softmax(kind)
    def mf(u):
        for jt in range(2):
            p('v_mfma_f32_16x16x32_bf16 %s, %s, %s, %s' % (vr(SA + 4 * jt, 4), vr(KS(jt, u), 4), vr(QF + 4 * u, 4), '0' if u == 0 else vr(SA + 4 * jt, 4)))
        p('v_mfma_f32_16x16x32_bf16 %s, %s, %s, %s' % (vr(SM, 4), vr(KM + 4 * u, 4), vr(QF + 4 * u, 4), '0' if u == 0 else vr(SM, 4)))
    def softmax(kind):
        vals = list(range(SA, SA + 8)) + list(range(SM, SM + 4))
        p('v_mov_b32 v76, 0xff800000')
        if kind == 'seg':
            p('v_lshrrev_b32 v77, 4, v2'); p('v_and_b32 v78, 15, v77'); p('v_lshrrev_b32 v77, 4, v77'); p('v_lshlrev_b32 v77, 2, v77'); p('v_sub_u32 v77, v78, v77')
            p('s_sub_u32 s%d, s%d, 1' % (S_T1, S_WAVE)); p('s_lshl_b32 s%d, s%d, 4' % (S_T1, S_T1)); p('v_add_u32 v77, s%d, v77' % S_T1)
            for jt in range(2):
                for r in range(4):
                    p('v_cmp_le_i32 vcc, %d, v77' % (16 * jt + r))
                    p('v_cndmask_b32 v%d, v76, v%d, vcc' % (SA + 4 * jt + r, SA + 4 * jt + r))
        p('v_max3_f32 v17, v%d, v%d, v%d' % tuple(vals[0:3]))
        for i in range(3, 7, 2): p('v_max3_f32 v17, v17, v%d, v%d' % (vals[i], vals[i + 1]))
        for r in range(4): p('v_cndmask_b32 v%d, v%d, v76, s[%d:%d]' % (SM + r, SM + r, S_MASK, S_MASK + 1))
        p('v_max3_f32 v17, v17, v%d, v%d' % (vals[7], vals[8])); p('v_max3_f32 v17, v17, v%d, v%d' % (vals[9], vals[10])); p('v_max_f32 v17, v17, v%d' % vals[11])
        p('v_mov_b32 v18, v17'); p('v_permlane16_swap_b32 v17, v18'); p('v_max_f32 v17, v17, v18')
        p('v_mov_b32 v18, v17'); p('v_permlane32_swap_b32 v17, v18'); p('v_max_f32 v17, v17, v18')
        p('v_mul_f32 v17, s%d, v17' % S_C)
        for v in vals: p('v_fma_f32 v%d, v%d, s%d, -v17' % (v, v, S_C))
        for v in vals: p('v_exp_f32 v%d, v%d' % (v, v))
        p('v_add_f32 v18, v%d, v%d' % (vals[0], vals[1])); p('v_add_f32 v19, v%d, v%d' % (vals[2], vals[3]))
        for i in range(4, 12, 2):
            p('v_add_f32 v18, v18, v%d' % vals[i]); p('v_add_f32 v19, v19, v%d' % vals[i + 1])
        p('v_add_f32 v18, v18, v19')
        p('v_mov_b32 v19, v18'); p('v_permlane16_swap_b32 v18, v19'); p('v_add_f32 v18, v18, v19')
        p('v_mov_b32 v19, v18'); p('v_permlane32_swap_b32 v18, v19'); p('v_add_f32 v18, v18, v19')
        p('v_rcp_f32 v18, v18')
        W = 20
        if kind == 'mem':
            for v in vals[:8]: p('v_mul_f32 v%d, v%d, v18' % (v, v))
            p('v_cvt_pk_bf16_f32 v%d, v%d, v%d' % (W + 0, SA + 0, SA + 1)); p('v_cvt_pk_bf16_f32 v%d, v%d, v%d' % (W + 2, SA + 2, SA + 3))
            p('v_cvt_pk_bf16_f32 v%d, v%d, v%d' % (W + 1, SA + 4, SA + 5)); p('v_cvt_pk_bf16_f32 v%d, v%d, v%d' % (W + 3, SA + 6, SA + 7))
            for v in vals[8:]: p('v_mul_f32 v%d, v%d, v18' % (v, v))
            p('v_permlane16_swap_b32 v%d, v%d' % (W + 0, W + 2)); p('v_permlane16_swap_b32 v%d, v%d' % (W + 1, W + 3))
            p('v_cvt_pk_bf16_f32 v%d, v%d, v%d' % (W + 4, SM + 0, SM + 1)); p('v_cvt_pk_bf16_f32 v%d, v%d, v%d' % (W + 6, SM + 2, SM + 3))
            p('s_add_u32 s%d, s%d, %d' % (S_T0, S_PO, 2 * P_COPY * BLK))
            p('buffer_store_dwordx4 %s, v13, s[%d:%d], s%d offen sc1' % (vr(W, 4), S_WS, S_WS + 3, S_PO))
            p('v_mov_b32 v%d, v%d' % (W + 5, W + 4)); p('v_mov_b32 v%d, v%d' % (W + 7, W + 6))
            if not CLASSIC['p']: p('buffer_store_dwordx4 %s, v13, s[%d:%d], s%d offen sc1' % (vr(W, 4), S_WS, S_WS + 3, S_T0))
            p('v_permlane16_swap_b32 v%d, v%d' % (W + 4, W + 5)); p('v_permlane16_swap_b32 v%d, v%d' % (W + 6, W + 7))
            p('buffer_store_dwordx4 %s, v14, s[%d:%d], s%d offen sc1' % (vr(W + 4, 4), S_WS, S_WS + 3, S_PO))
        else:
            for v in vals: p('v_mul_f32 v%d, v%d, v18' % (v, v))
            for k in range(4): p('v_cvt_pk_bf16_f32 v%d, v%d, v%d' % (W + k, SA + 2 * k, SA + 2 * k + 1))
            p('v_cvt_pk_bf16_f32 v%d, v%d, v%d' % (W + 4, SM + 0, SM + 1)); p('v_cvt_pk_bf16_f32 v%d, v%d, v%d' % (W + 5, SM + 2, SM + 3))
            p('s_mul_i32 s%d, s%d, 81920' % (S_T0, S_STEP)); p('s_sub_u32 s%d, s%d, 1' % (S_T1, S_WAVE)); p('s_lshl_b32 s%d, s%d, 15' % (S_T2, S_T1))
            p('s_add_u32 s%d, s%d, s%d' % (S_T2, S_T2, S_T0)); p('s_lshl_b32 s%d, s%d, 10' % (S_T3, h)); p('s_add_u32 s%d, s%d, s%d' % (S_T2, S_T2, S_T3)); p('s_add_u32 s%d, s%d, %d' % (S_T2, S_T2, OFF_PS))
            p('buffer_store_dwordx4 %s, v2, s[%d:%d], s%d offen sc1' % (vr(W, 4), S_WS, S_WS + 3, S_T2))
            p('v_mov_b32 v%d, v%d' % (W + 6, W + 4)); p('v_mov_b32 v%d, v%d' % (W + 7, W + 5))
            p('v_permlane16_swap_b32 v%d, v%d' % (W + 4, W + 6)); p('v_permlane16_swap_b32 v%d, v%d' % (W + 5, W + 7))
            p('s_lshl_b32 s%d, s%d, 13' % (S_T1, S_T1)); p('s_add_u32 s%d, s%d, s%d' % (S_T0, S_T0, S_T1)); p('s_lshl_b32 s%d, s%d, 8' % (S_T3, h)); p('s_add_u32 s%d, s%d, s%d' % (S_T0, S_T0, S_T3))
            p('s_add_u32 s%d, s%d, %d' % (S_T0, S_T0, OFF_PS + 65536))
            p('v_mov_b32 v42, 0x7ff00000'); p('v_cmp_gt_u32 vcc, 256, v2'); p('v_cndmask_b32 v42, v42, v2, vcc')
            p('buffer_store_dwordx4 %s, v42, s[%d:%d], s%d offen sc1' % (vr(W + 4, 4), S_WS, S_WS + 3, S_T0))
    p('s_cmp_lg_u32 s%d, 0' % S_WAVE); p('s_cbranch_scc1 %s' % lw)
    scores('mem')
    pf(p, 4)
    pf_acc(p)
    trace(p, 2, trace_on)
    p('s_barrier')
    p('s_branch %s' % lend)
    p.label(lw)
    p('s_cmp_eq_u32 s%d, 3' % S_WAVE); p('s_cbranch_scc1 %s' % lw3)
    scores('seg')
    p('s_barrier')
    p('s_branch %s' % lend)
    p.label(lw3)
    p('s_add_u32 s%d, s%d, %d' % (S_T0, S_STEP, P_RING - 1)); p('s_and_b32 s%d, s%d, %d' % (S_T0, S_T0, P_RING - 1)); p('s_mul_i32 s%d, s%d, %d' % (S_T0, S_T0, P_SLOT * BLK))
    p('s_add_u32 s%d, s%d, s%d' % (S_T0, S_T0, S_COMM)); p('s_add_u32 s%d, s%d, %d' % (S_T0, S_T0, BLK_P * BLK)); p('s_add_u32 s%d, s%d, %d' % (S_T1, S_T0, 2 * P_COPY * BLK))
    for r in range(16, 20): p('v_mov_b32 v%d, -1' % r)
    def fp_flag():
        p('v_mov_b32 v20, 0x7ff00000'); p('v_cmp_eq_u32 vcc, 0, v2'); p('v_cndmask_b32 v20, v20, v0, vcc')
        p('v_mov_b32 v21, s%d' % S_STEP); p('s_mov_b32 s%d, %d' % (S_T2, F_P))
        p('buffer_store_dword v21, v20, s[%d:%d], s%d offen sc1' % (S_WS, S_WS + 3, S_T2))
    p('s_barrier')
    p('buffer_store_dwordx4 v[16:19], v13, s[%d:%d], s%d offen sc1' % (S_WS, S_WS + 3, S_T0))
    if not CLASSIC['p']: p('buffer_store_dwordx4 v[16:19], v13, s[%d:%d], s%d offen sc1' % (S_WS, S_WS + 3, S_T1))
    p('buffer_store_dwordx4 v[16:19], v14, s[%d:%d], s%d offen sc1' % (S_WS, S_WS + 3, S_T0))
    fp_flag()
    p('s_cmp_ge_u32 s%d, 63' % S_STEP); p('s_cbranch_scc1 %s' % lend)
    p('s_add_u32 s%d, s%d, %d' % (S_QKO, S_QKO, 32 * 24576))
    qk_wait(2, True)
    p('s_add_u32 s%d, s%d, 1' % (S_T3, S_STEP)); p('s_and_b32 s%d, s%d, 1' % (S_T3, S_T3)); p('s_mul_i32 s%d, s%d, 24576' % (S_T3, S_T3)); p('s_add_u32 s%d, s%d, %d' % (S_T3, S_T3, A_QKB))
    qk_dma(S_T3)
    p.label(lend)
    rnd_write(p, A_QX, 40, 41)
    p('s_add_u32 s%d, s%d, 1' % (S_STEP, S_STEP)); p('s_cmp_lt_u32 s%d, s%d' % (S_STEP, S_NST)); p('s_cbranch_scc1 %s' % loop)
    p('s_waitcnt vmcnt(0)'); p('s_barrier')
    l = p.newlabel('LAfin'); p('s_cmp_lg_u32 s%d, 3' % S_WAVE); p('s_cbranch_scc1 %s' % l)
    fp_flag()
    p.label(l)

def gen_B2(p, trace_on=False, st=False):
    lg = Cnt(p, 'lgkmcnt', 15); vm = Cnt(p, 'vmcnt', 63)
    h = S_IDX
    srd(p, S_W1, KA['Wv'], 640 * 12288); srd(p, S_W2, KA['Wo'], 32 * 192 * 1280)
    common_lane_setup(p)
    p('s_waitcnt lgkmcnt(0)')
    mem_gather_setup(p, B_MEMX)
    p('s_mul_i32 s%d, s%d, 24576' % (S_T0, S_WAVE)); p('s_add_u32 s%d, s%d, 65536' % (S_T0, S_T0)); p('v_add_u32 v15, s%d, v2' % S_T0)
    p('s_lshl_b32 s%d, s%d, 14' % (S_T4, S_WAVE))
    voffs = [80, 81, 82]
    stage_offsets(p, voffs, 6, 12288, 1, 83, 84)
    p('v_lshrrev_b32 v83, 4, v1'); p('v_lshlrev_b32 v83, 3, v83'); p('v_bfe_u32 v84, v1, 2, 2'); p('v_add_u32 v83, v83, v84')
    p('v_and_b32 v84, 3, v1'); p('v_lshlrev_b32 v84, 3, v84')
    p('v_mul_u32_u24 v85, 96, v83'); p('v_add_u32 v85, v85, v84'); p('v_add_u32 v85, s%d, v85' % S_T4)
    p('v_mul_u32_u24 v86, 160, v83'); p('v_add_u32 v86, v86, v84'); p('v_add_u32 v86, s%d, v86' % S_T4)
    p('s_mul_i32 s%d, s%d, 384' % (S_T5, h)); p('s_mul_i32 s%d, s%d, 96' % (S_T0, S_WAVE)); p('s_add_u32 s%d, s%d, s%d' % (S_T5, S_T5, S_T0))
    p('s_mul_i32 s%d, s%d, 3' % (S_T6, S_WAVE))
    jobs = []
    for tau in range(10):
        for half in range(2):
            def soff(dst, tau=tau, half=half):
                p('s_add_u32 s%d, s%d, %d' % (dst, S_T6, tau))
                p('s_sub_u32 s%d, s%d, 10' % (S_T2, dst)); p('s_cmp_ge_u32 s%d, 10' % dst); p('s_cselect_b32 s%d, s%d, s%d' % (dst, S_T2, dst))
                p('s_mul_i32 s%d, s%d, %d' % (dst, dst, 64 * 12288))
                p('s_add_u32 s%d, s%d, s%d' % (dst, dst, S_T5))
                if half: p('s_add_u32 s%d, s%d, %d' % (dst, dst, 32 * 12288))
            dests = []
            for x in range(3):
                kind, n = UM[tau * 3 + x]
                if kind == 'reg': dests.append((x * 32, ('reg', unit_reg(n, 4 * half, 2), unit_reg(n, 4 * half + 2, 2))))
                else: dests.append((x * 32, ('lds', n * 2048 + half * 1024)))
            jobs.append(dict(srd=S_W1, soff=soff, dests=dests))
    load_weights_type1(p, jobs, 85, 3072, 5, voffs, 3, 96, lg, vm, 15, 88, S_T4)
    voffs = [100, 101, 102, 103, 104]
    stage_offsets(p, voffs, 10, 1280, 1, 83, 84)
    p('s_mul_i32 s%d, s%d, %d' % (S_T5, h, 192 * 1280)); p('s_mul_i32 s%d, s%d, 320' % (S_T0, S_WAVE)); p('s_add_u32 s%d, s%d, s%d' % (S_T5, S_T5, S_T0))
    jobs = []
    for u in range(6):
        for ch in range(2):
            def soff(dst, u=u, ch=ch): p('s_add_u32 s%d, s%d, %d' % (dst, S_T5, u * 32 * 1280 + ch * 160))
            dests = []
            for x in range(5):
                cc = ch * 5 + x
                kind, n = UM[30 + cc * 3 + (u >> 1)]; half = u & 1
                if kind == 'reg': dests.append((x * 32, ('reg', unit_reg(n, 4 * half, 2), unit_reg(n, 4 * half + 2, 2))))
                else: dests.append((x * 32, ('lds', n * 2048 + half * 1024)))
            jobs.append(dict(srd=S_W2, soff=soff, dests=dests))
    load_weights_type1(p, jobs, 86, 5120, 3, voffs, 5, 160, lg, vm, 15, 88, S_T4)
    p('s_barrier')
    p('v_bfe_u32 v80, v1, 3, 1'); p('v_lshlrev_b32 v80, 9, v80')
    p('v_bfe_u32 v81, v1, 2, 1'); p('v_lshlrev_b32 v81, 6, v81'); p('v_add_u32 v80, v80, v81')
    p('v_and_b32 v81, 1, v1'); p('v_lshlrev_b32 v81, 5, v81'); p('v_add_u32 v80, v80, v81')
    p('v_bfe_u32 v81, v1, 1, 1'); p('v_lshlrev_b32 v81, 4, v81'); p('v_add_u32 v80, v80, v81')
    p('v_bfe_u32 v81, v1, 4, 1'); p('v_lshlrev_b32 v81, 3, v81'); p('v_add_u32 v80, v80, v81')
    def tile_off(dstv, tv):
        p('v_lshrrev_b32 v82, 2, v%d' % tv); p('v_lshlrev_b32 v82, 10, v82')
        p('v_and_b32 v83, 3, v%d' % tv); p('v_lshlrev_b32 v83, 7, v83')
        p('v_add3_u32 v%d, v80, v82, v83' % dstv); p('v_add_u32 v%d, %d, v%d' % (dstv, B_VX, dstv))
    p('s_mul_i32 s%d, s%d, 3' % (S_T0, S_WAVE))
    p('v_lshrrev_b32 v84, 5, v1'); p('v_add_u32 v84, s%d, v84' % S_T0); tile_off(11, 84)
    p('v_mov_b32 v84, s%d' % S_T0); p('v_add_u32 v84, 2, v84'); tile_off(12, 84)
    p('v_lshrrev_b32 v80, 4, v1'); p('v_lshlrev_b32 v80, 7, v80')
    p('v_bfe_u32 v81, v1, 2, 2'); p('v_lshlrev_b32 v81, 5, v81'); p('v_add_u32 v80, v80, v81')
    p('v_and_b32 v81, 3, v1'); p('v_lshlrev_b32 v81, 3, v81'); p('v_add_u32 v80, v80, v81'); p('v_add_u32 v13, %d, v80' % B_VX)
    p('v_lshrrev_b32 v80, 5, v1'); p('v_bfe_u32 v81, v1, 4, 1'); p('v_lshlrev_b32 v81, 1, v81'); p('v_add_u32 v80, v80, v81')
    p('s_mul_i32 s%d, s%d, 10' % (S_T0, S_WAVE)); p('v_add_u32 v80, s%d, v80' % S_T0); p('v_lshlrev_b32 v80, 14, v80')
    p('v_and_b32 v81, 15, v1'); p('v_lshlrev_b32 v81, 4, v81'); p('v_add_u32 v80, v80, v81')
    p('s_lshl_b32 s%d, s%d, 8' % (S_T0, h)); p('v_add_u32 v14, s%d, v80' % S_T0)
    p('v_lshrrev_b32 v80, 5, v1'); p('s_mul_i32 s%d, s%d, 10' % (S_T1, S_WAVE)); p('s_add_u32 s%d, s%d, 8' % (S_T1, S_T1)); p('v_add_u32 v80, s%d, v80' % S_T1); p('v_lshlrev_b32 v80, 14, v80')
    p('v_add_u32 v80, v80, v81'); p('v_add_u32 v0, s%d, v80' % S_T0)
    p('v_mov_b32 v82, 0x7ff00000'); p('v_and_b32 v83, 16, v1'); p('v_cmp_eq_u32 vcc, 0, v83'); p('v_cndmask_b32 v0, v82, v0, vcc')
    p('s_mov_b32 s%d, 0' % S_STEP)
    parity_wait2(p)
    ACC1 = 16; ACC2 = 80; VFR = 40
    stamp(p, 1, st)
    pf_init(p); p('s_mov_b32 s%d, %d' % (S_DLY, DLY_INIT['B'])); p('s_mov_b32 s%d, 0' % S_RSUM); p('s_mov_b32 s%d, 1' % S_RND); rnd_write(p, 16384, 40, 41)
    loop = p.newlabel('LBloop'); p.label(loop)
    lg.reset()
    pf(p, 0)
    for r in range(ACC1, ACC1 + 12): p('v_mov_b32 v%d, 0' % r)
    wst_load(p, 0, 15, lg); wst_load(p, 1, 15, lg)
    offsets2(p, 0, ('mem', 'z')); mem_lds_addr(p)
    p('s_waitcnt lgkmcnt(0)'); lg.reset()
    p('s_barrier')
    if not CLASSIC['mem']: dly_update(p, 16384, 40)
    def z0(lo, hi):
        for r in range(lo, hi): p('v_mov_b32 v%d, 0' % r)
    if CLASSIC['mem']:
        z0(ACC2, ACC2 + 40); hooks = {}
    else:
        def h4(): p('s_waitcnt vmcnt(0)'); z0(ACC2, ACC2 + 8)
        hooks = {4: h4, 5: lambda: z0(ACC2 + 8, ACC2 + 16), 6: lambda: z0(ACC2 + 16, ACC2 + 24), 7: lambda: z0(ACC2 + 24, ACC2 + 32)}
    def tail_order(ringreg):
        lg.wait(('m', 8))
        seq = [(8, 0), (8, 1), (9, 0), (9, 1), (8, 2), (9, 2)]
        for i, (tau, x) in enumerate(seq):
            if i == 2: lg.wait(('m', 9))
            smf(p, ACC1 + 4 * x, ringreg(tau), tau * 3 + x, lg, 15)
            if i >= 4 and not CLASSIC['mem']: z0(ACC2 + 32 + 4 * (i - 4), ACC2 + 36 + 4 * (i - 4))
        half_sum(p, 16, 20)
        p('v_cvt_pk_bf16_f32 v16, v16, v17'); p('v_cvt_pk_bf16_f32 v17, v18, v19')
        for r in range(4): p('v_mov_b32 v%d, v%d' % (28 + r, 24 + r))
        p('ds_write_b64 v11, v[16:17]'); lg.issue('vx')
        half_sum(p, 24, 28)
        p('v_cvt_pk_bf16_f32 v24, v24, v25'); p('v_cvt_pk_bf16_f32 v25, v26, v27')
        p('ds_write_b64 v12, v[24:25]'); lg.issue('vx')
    gather_and_project(p, lg, 3, ACC1, 15, 'mem', hooks, tail_order)
    pf(p, 2)
    lg.wait('vx')
    p('s_barrier')
    pf(p, 3)
    for t in range(3):
        for z in range(2):
            p('ds_read_b64_tr_b16 %s, v13 offset:%d' % (vr(VFR + 4 * t + 2 * z, 2), t * 1024 + z * 512)); lg.issue(('vf', t))
    def hs(pair):
        a = ACC2 + 8 * pair
        L = ['v_permlane32_swap_b32 v%d, v%d' % (a + r, a + 4 + r) for r in range(4)]
        L += ['v_add_f32 v%d, v%d, v%d' % (a + r, a + r, a + 4 + r) for r in range(4)]
        L += ['v_cvt_pk_bf16_f32 v%d, v%d, v%d' % (a, a, a + 1), 'v_cvt_pk_bf16_f32 v%d, v%d, v%d' % (a + 1, a + 2, a + 3)]
        return L
    def fin4(grp):
        a = ACC2 + 16 * grp; b = a + 8
        return ['v_mov_b32 v%d, v%d' % (a + 2, b), 'v_mov_b32 v%d, v%d' % (a + 3, b + 1),
                's_add_u32 s%d, s%d, %d' % (S_T0, S_ZO, grp * 4 * BLK),
                'v_permlane16_swap_b32 v%d, v%d' % (a, a + 2), 'v_permlane16_swap_b32 v%d, v%d' % (a + 1, a + 3),
                'buffer_store_dwordx4 %s, v14, s[%d:%d], s%d offen sc1' % (vr(a, 4), S_WS, S_WS + 3, S_T0)]
    def fin_last():
        a = ACC2 + 32
        return ['v_mov_b32 v%d, v%d' % (a + 2, a), 'v_mov_b32 v%d, v%d' % (a + 3, a + 1), 's_nop 0',
                'v_permlane16_swap_b32 v%d, v%d' % (a, a + 2), 'v_permlane16_swap_b32 v%d, v%d' % (a + 1, a + 3),
                'buffer_store_dwordx4 %s, v0, s[%d:%d], s%d offen sc1' % (vr(a, 4), S_WS, S_WS + 3, S_ZO)]
    fill = []; i = 0
    for pr in range(5):
        for t in range(3):
            for cc in (2 * pr, 2 * pr + 1):
                if pr == 0 and cc == 0: lg.wait(('vf', t))
                smf(p, ACC2 + 4 * cc, VFR + 4 * t, 30 + cc * 3 + t, lg, 15)
                if t == 1 and cc == 2 * pr and pr > 0:
                    fill += hs(pr - 1)
                    if (pr - 1) % 2 == 1: fill += fin4((pr - 1) // 2)
                for _ in range(3):
                    if fill: p(fill.pop(0))
    for ins in fill + hs(4) + fin_last(): p(ins)
    pf(p, 4)
    pf_acc(p)
    trace(p, 2, trace_on)
    rnd_write(p, 16384, 40, 41)
    p('s_add_u32 s%d, s%d, 1' % (S_STEP, S_STEP)); p('s_cmp_lt_u32 s%d, s%d' % (S_STEP, S_NST)); p('s_cbranch_scc1 %s' % loop)

R_RED = 0; R_RED2 = 4096
def gen_R2(p, trace_on=False, st=False):
    c = S_IDX
    srd(p, S_W1, KA['x'], 2048 * 1280)
    common_lane_setup(p)
    p('s_waitcnt lgkmcnt(0)')
    p('v_and_b32 v3, 8, v1'); p('v_cmp_eq_u32 vcc, 0, v3'); p('v_mov_b32 v3, 0xeeeeeeee'); p('v_mov_b32 v7, 0x44444444'); p('v_cndmask_b32 v3, v3, v7, vcc')
    p('s_lshr_b32 s%d, s%d, 1' % (S_T1, S_WAVE)); p('s_lshl_b32 s%d, s%d, 14' % (S_T1, S_T1)); p('s_and_b32 s%d, s%d, 1' % (S_T0, S_WAVE)); p('s_lshl_b32 s%d, s%d, 12' % (S_T0, S_T0))
    p('s_add_u32 s%d, s%d, s%d' % (S_T0, S_T0, S_T1)); p('v_add_u32 v4, s%d, v2' % S_T0)
    p('v_lshrrev_b32 v8, 4, v1'); p('v_lshlrev_b32 v8, 8, v8'); p('v_and_b32 v9, 7, v1'); p('v_lshlrev_b32 v9, 4, v9'); p('v_add_u32 v8, v8, v9')
    p('v_bfe_u32 v9, v1, 3, 1'); p('v_lshlrev_b32 v9, 3, v9'); p('v_add_u32 v8, v8, v9')
    p('s_lshl_b32 s%d, s%d, 10' % (S_T0, S_WAVE)); p('s_add_u32 s%d, s%d, 32768' % (S_T0, S_T0)); p('v_add_u32 v5, s%d, v8' % S_T0)
    p('s_lshl_b32 s%d, s%d, 14' % (S_T0, c)); p('s_lshl_b32 s%d, s%d, 11' % (S_T1, S_WAVE)); p('s_add_u32 s%d, s%d, s%d' % (S_T0, S_T0, S_T1)); p('v_add_u32 v6, s%d, v2' % S_T0)
    p('s_lshl_b32 s%d, s%d, 15' % (S_T0, c)); p('s_lshl_b32 s%d, s%d, 13' % (S_T1, S_WAVE)); p('s_add_u32 s%d, s%d, s%d' % (S_T0, S_T0, S_T1)); p('v_add_u32 v10, s%d, v2' % S_T0)
    p('v_bfe_u32 v8, v1, 1, 1'); p('v_lshlrev_b32 v8, 8, v8')
    p('v_bfe_u32 v9, v1, 4, 1'); p('v_lshlrev_b32 v9, 7, v9'); p('v_add_u32 v8, v8, v9')
    p('v_lshrrev_b32 v9, 5, v1'); p('v_lshlrev_b32 v9, 5, v9'); p('v_add_u32 v8, v8, v9')
    p('v_bfe_u32 v9, v1, 2, 2'); p('v_lshlrev_b32 v9, 3, v9'); p('v_add_u32 v8, v8, v9')
    p('v_and_b32 v9, 1, v1'); p('v_lshlrev_b32 v9, 2, v9'); p('v_add_u32 v8, v8, v9')
    p('s_lshl_b32 s%d, s%d, 9' % (S_T0, S_WAVE)); p('v_add_u32 v11, s%d, v8' % S_T0)
    p('v_lshlrev_b32 v12, 3, v1'); p('v_lshrrev_b32 v13, 2, v1'); p('v_lshlrev_b32 v13, 4, v13'); p('s_lshl_b32 s%d, s%d, 8' % (S_T0, c))
    p('s_add_u32 s%d, s%d, 8192' % (S_T1, S_T0)); p('s_cmp_ge_u32 s%d, 32' % c); p('s_cselect_b32 s%d, s%d, s%d' % (S_T0, S_T1, S_T0))
    p('v_add_u32 v13, s%d, v13' % S_T0); p('v_and_b32 v9, 3, v1'); p('v_cmp_eq_u32 vcc, 0, v9'); p('v_mul_u32_u24 v9, %d, v9' % (MEM_COPY * BLK)); p('v_add_u32 v13, v13, v9')
    if CLASSIC['mem']: p('v_mov_b32 v8, 0x7ff00000'); p('v_cndmask_b32 v13, v8, v13, vcc')
    p('v_lshlrev_b32 v14, 2, v1'); p('s_lshl_b32 s%d, s%d, 8' % (S_T0, c)); p('v_add_u32 v14, s%d, v14' % S_T0)
    p('s_lshl_b32 s%d, s%d, 11' % (S_T0, S_WAVE)); p('s_add_u32 s%d, s%d, %d' % (S_T0, S_T0, R_RED2)); p('v_add_u32 v15, s%d, v2' % S_T0)
    p('v_and_b32 v8, 15, v1'); p('s_and_b32 s%d, s%d, 1' % (S_T0, S_WAVE)); p('s_lshl_b32 s%d, s%d, 4' % (S_T0, S_T0)); p('v_add_u32 v8, s%d, v8' % S_T0); p('v_mul_u32_u24 v8, 1280, v8')
    p('v_lshrrev_b32 v9, 4, v1'); p('v_lshlrev_b32 v9, 3, v9'); p('s_lshl_b32 s%d, s%d, 5' % (S_T0, c)); p('v_add_u32 v9, s%d, v9' % S_T0)
    p('v_add_u32 v28, v8, v9')
    p('s_and_b32 s%d, s%d, 1' % (S_T0, S_WAVE)); p('s_lshl_b32 s%d, s%d, 10' % (S_T0, S_T0)); p('s_add_u32 s%d, s%d, %d' % (S_T0, S_T0, R_RED2)); p('v_add_u32 v29, s%d, v2' % S_T0)
    p('s_mov_b32 s%d, %d' % (S_T0, OFF_MOD + 2 * 1280))
    p('buffer_load_dwordx2 v[30:31], v9, s[%d:%d], s%d offen sc1' % (S_WS, S_WS + 3, S_T0))
    p('s_waitcnt vmcnt(0)')
    p('v_lshlrev_b32 v24, 16, v30'); p('v_and_b32 v25, 0xffff0000, v30'); p('v_lshlrev_b32 v26, 16, v31'); p('v_and_b32 v27, 0xffff0000, v31')
    p('s_lshl_b32 s%d, s%d, %d' % (S_T0, c, FSH)); p('v_mov_b32 v30, s%d' % S_T0); p('v_mov_b32 v8, 0x7ff00000'); p('v_cmp_eq_u32 vcc, 0, v1'); p('v_cndmask_b32 v30, v8, v30, vcc')
    p('v_and_b32 v0, 31, v1'); p('v_lshlrev_b32 v0, %d, v0' % FSH)
    p('v_lshrrev_b32 v31, 5, v1'); p('v_lshlrev_b32 v31, %d, v31' % (FSH + 5)); p('v_add_u32 v31, v31, v0')
    p('s_mov_b32 s%d, 0' % S_MASK); p('s_mov_b32 s%d, -1' % (S_MASK + 1))
    p('s_mov_b32 s%d, 0' % S_STEP); p('s_mov_b32 s%d, %d' % (S_VOO, OFF_VO))
    ZB = 64; ACC = 16; SENT = 96; PF = 160; PS = 128
    def VOa(k, j, n=4): return ar(40 * k + 4 * j, n)
    def Za(k, a): return ar(40 * k + 32 + 4 * a, 4)
    def vo_load(k):
        for j in range(8):
            if j == 4: p('s_add_u32 s%d, s%d, 4096' % (S_T0, S_VOO))
            p('buffer_load_dwordx4 %s, v10, s[%d:%d], s%d offen offset:%d sc1' % (VOa(k, j), S_WS, S_WS + 3, S_VOO if j < 4 else S_T0, (j % 4) * 1024))
    S_SG = S_T6
    def seg_issue(wait):
        if wait: p('s_add_u32 s%d, s%d, 1' % (S_T3, S_SG)); wait_flags(p, 0, F_P, S_T3, 7)
        p('s_mul_i32 s%d, s%d, 81920' % (S_T4, S_SG)); p('s_add_u32 s%d, s%d, %d' % (S_T4, S_T4, OFF_PS))
        for tau in range(2):
            p('s_lshl_b32 s%d, s%d, 13' % (S_T0, S_WAVE)); p('s_add_u32 s%d, s%d, s%d' % (S_T0, S_T0, S_T4)); p('s_add_u32 s%d, s%d, %d' % (S_T0, S_T0, tau * 32768))
            for j in range(8):
                if j == 4: p('s_add_u32 s%d, s%d, 4096' % (S_T0, S_T0))
                p('buffer_load_dwordx4 %s, v2, s[%d:%d], s%d offen offset:%d sc1' % (ar(PF + 40 * tau + 4 * j, 4), S_WS, S_WS + 3, S_T0, (j % 4) * 1024))
            p('s_lshl_b32 s%d, s%d, 11' % (S_T0, S_WAVE)); p('s_add_u32 s%d, s%d, s%d' % (S_T0, S_T0, S_T4)); p('s_add_u32 s%d, s%d, %d' % (S_T0, S_T0, 65536 + tau * 8192))
            for a in range(2):
                p('buffer_load_dwordx4 %s, v2, s[%d:%d], s%d offen offset:%d sc1' % (ar(PF + 40 * tau + 32 + 4 * a, 4), S_WS, S_WS + 3, S_T0, a * 1024))
        p('s_mul_i32 s%d, s%d, %d' % (S_T5, S_SG, 32 * 1280))
        p('buffer_load_dwordx2 v[100:101], v28, s[%d:%d], s%d offen' % (S_W1, S_W1 + 3, S_T5))
    def seg_compute(k, after):
        for tau in range(2):
            p('s_waitcnt vmcnt(%d)' % ((11 if tau == 0 else 1) + after))
            a = 104 + 4 * tau
            for j in range(8):
                p('v_mfma_f32_16x16x32_bf16 %s, %s, %s, %s' % (vr(a, 4), VOa(k, j), ar(PF + 40 * tau + 4 * j, 4), '0' if j == 0 else vr(a, 4)))
            for aa in range(2):
                p('v_mfma_f32_16x16x32_bf16 %s, %s, %s, %s' % (vr(a, 4), Za(k, aa), ar(PF + 40 * tau + 32 + 4 * aa, 4), vr(a, 4)))
        p('ds_write_b128 v15, v[104:107]'); p('ds_write_b128 v15, v[108:111] offset:1024')
        p('s_waitcnt lgkmcnt(0)'); p('s_barrier')
        l = p.newlabel('LRs'); p('s_cmp_ge_u32 s%d, 2' % S_WAVE); p('s_cbranch_scc1 %s' % l)
        for w in range(4): p('ds_read_b128 %s, v29 offset:%d' % (vr(104 + 4 * w, 4), w * 2048))
        p('s_waitcnt vmcnt(%d) lgkmcnt(0)' % after)
        for r in range(4):
            p('v_add_f32 v%d, v%d, v%d' % (104 + r, 104 + r, 108 + r)); p('v_add_f32 v%d, v%d, v%d' % (112 + r, 112 + r, 116 + r)); p('v_add_f32 v%d, v%d, v%d' % (104 + r, 104 + r, 112 + r))
        p('v_lshlrev_b32 v108, 16, v100'); p('v_and_b32 v109, 0xffff0000, v100'); p('v_lshlrev_b32 v110, 16, v101'); p('v_and_b32 v111, 0xffff0000, v101')
        for r in range(4): p('v_fmac_f32 v%d, v%d, v%d' % (108 + r, 24 + r, 104 + r))
        p('v_cvt_pk_bf16_f32 v100, v108, v109'); p('v_cvt_pk_bf16_f32 v101, v110, v111')
        p('s_add_u32 s%d, s%d, %d' % (S_T5, S_T5, OFF_X1))
        p('buffer_store_dwordx2 v[100:101], v28, s[%d:%d], s%d offen sc1' % (S_WS, S_WS + 3, S_T5))
        p.label(l)
    def x1_flag(val_s):
        p('v_mov_b32 v102, s%d' % val_s); p('s_mov_b32 s%d, %d' % (S_T0, F_X1))
        p('buffer_store_dword v102, v30, s[%d:%d], s%d offen sc1' % (S_WS, S_WS + 3, S_T0))
    if not core.FUSED: parity_probe2(p)
    parity_wait2(p)
    p('s_mov_b32 s%d, 1' % S_T3); wait_flags(p, 0, F_VO, S_T3, 7)
    vo_load(0)
    stamp(p, 1, st)
    pf_init(p); p('s_mov_b32 s%d, %d' % (S_DLY, DLY_INIT['R'])); p('s_mov_b32 s%d, 0' % S_RSUM); p('s_mov_b32 s%d, 1' % S_RND); rnd_write(p, 16384, 40, 41)
    for r in range(SENT, SENT + 4): p('v_mov_b32 v%d, -1' % r)
    loop = p.newlabel('LRloop'); p.label(loop)
    for k in range(4):
        pf(p, 0)
        for r in range(ACC, ACC + 4): p('v_mov_b32 v%d, 0' % r)
        offsets2(p, 1)
        p('s_mov_b32 s%d, %d' % (S_T0, F_VO))
        p('buffer_load_dword v103, v31, s[%d:%d], s%d offen sc1' % (S_WS, S_WS + 3, S_T0))
        if not CLASSIC['p']: p('s_waitcnt lgkmcnt(0)'); p('s_barrier'); dly_update(p, 16384, 40)
        def zloads():
            p('buffer_load_dwordx4 %s, v6, s[%d:%d], s%d offen sc1' % (vr(ZB, 4), S_WS, S_WS + 3, S_ZO))
            p('buffer_load_dwordx4 %s, v6, s[%d:%d], s%d offen offset:1024 sc1' % (vr(ZB + 4, 4), S_WS, S_WS + 3, S_ZO))
        def issue(st_, cp):
            if cp: p('s_add_u32 s%d, s%d, %d' % (S_T2, S_PO, cp * P_COPY * BLK))
            so = S_T2 if cp else S_PO; b = PS + 20 * st_
            for z in range(4): p('buffer_load_dwordx4 %s, v4, s[%d:%d], s%d offen offset:%d sc1' % (vr(b + 4 * z, 4), S_WS, S_WS + 3, so, z * 1024))
            for hp in range(2): p('buffer_load_dwordx2 %s, v5, s[%d:%d], s%d offen offset:%d sc1' % (vr(b + 16 + 2 * hp, 2), S_WS, S_WS + 3, so, hp * 128))
        def zcheck():
            ok = p.newlabel('Lzok'); top = p.newlabel('Lzt')
            check_regs(p, range(ZB, ZB + 8), 7, [ZB + 3, ZB + 7]); p('s_cbranch_vccz %s' % ok)
            p.label(top)
            zloads(); p('s_waitcnt vmcnt(0)'); check_regs(p, range(ZB, ZB + 8), 7, [ZB + 3, ZB + 7]); p('s_cbranch_vccz %s' % ok)
            budget(p, ok, top)
            p.label(ok)
        def variant(st_):
            pf(p, 2)
            b = PS + 20 * st_
            p('v_smfmac_f32_16x16x64_bf16 %s, %s, %s, v3' % (vr(ACC, 4), vr(b + 16, 4), vr(ZB, 8)))
            for z in range(4): p('v_smfmac_f32_16x16x64_bf16 %s, %s, %s, v3' % (vr(ACC, 4), vr(b + 4 * z, 4), VOa(k, 2 * z, 8)))
        pf(p, 1)
        multi_poll(p, issue, 6, lambda st_: range(PS + 20 * st_, PS + 20 * st_ + 20), 7, 'p', variant, first_hook=zcheck, pre_issue=zloads,
                   quads=lambda st_: [PS + 20 * st_ + 4 * z + 3 for z in range(4)] + [PS + 20 * st_ + 17, PS + 20 * st_ + 19])
        trace(p, 0, trace_on)
        p('v_permlane32_swap_b32 v%d, v%d' % (ACC, ACC + 1)); p('v_permlane32_swap_b32 v%d, v%d' % (ACC + 2, ACC + 3))
        p('v_add_f32 v%d, v%d, v%d' % (ACC, ACC, ACC + 1)); p('v_add_f32 v%d, v%d, v%d' % (ACC + 2, ACC + 2, ACC + 3))
        p('ds_write2_b32 v11, v%d, v%d offset0:0 offset1:16' % (ACC, ACC + 2))
        p('s_waitcnt lgkmcnt(0)')
        p('s_barrier')
        pf(p, 3)
        l = p.newlabel('LRw'); p('s_cmp_lg_u32 s%d, 0' % S_WAVE); p('s_cbranch_scc1 %s' % l)
        for w in range(4): p('ds_read_b64 %s, v12 offset:%d' % (vr(20 + 2 * w, 2) if w < 2 else vr(32 + 2 * (w - 2), 2), w * 512))
        p('s_waitcnt lgkmcnt(0)')
        p('v_add_f32 v20, v20, v22'); p('v_add_f32 v21, v21, v23'); p('v_add_f32 v32, v32, v34'); p('v_add_f32 v33, v33, v35')
        p('v_add_f32 v20, v20, v32'); p('v_add_f32 v21, v21, v33')
        p('v_cvt_pk_bf16_f32 v32, v20, v21')
        for kk in range(4): p('v_mov_b32_dpp v%d, v32 quad_perm:[%d,%d,%d,%d] row_mask:0xf bank_mask:0xf' % (20 + kk, kk, kk, kk, kk))
        p('buffer_store_dwordx4 v[20:23], v13, s[%d:%d], s%d offen sc1' % (S_WS, S_WS + 3, S_MEMO))
        pf(p, 4)
        pf_acc(p)
        trace(p, 2, trace_on)
        if core.HIST:
            p('s_mul_i32 s%d, s%d, 10240' % (S_T0, S_STEP)); p('s_add_u32 s%d, s%d, %d' % (S_T0, S_T0, OFF_HIST + 10240))
            p('buffer_store_dword v32, v14, s[%d:%d], s%d offen' % (S_WS, S_WS + 3, S_T0))
        p.label(l)
        p('s_barrier')
        l3 = p.newlabel('LRq'); p('s_cmp_lg_u32 s%d, 1' % S_WAVE); p('s_cbranch_scc1 %s' % l3)
        p('s_and_b32 s%d, s%d, %d' % (S_T0, S_STEP, MEM_RING - 1)); p('s_mul_i32 s%d, s%d, %d' % (S_T0, S_T0, MEM_SLOT * BLK)); p('s_add_u32 s%d, s%d, s%d' % (S_T0, S_T0, S_COMM))
        p('buffer_store_dwordx4 %s, v13, s[%d:%d], s%d offen sc1' % (vr(SENT, 4), S_WS, S_WS + 3, S_T0))
        p.label(l3)
        l4 = p.newlabel('LRx'); p('s_cmp_lg_u32 s%d, 2' % S_WAVE); p('s_cbranch_scc1 %s' % l4)
        p('s_cmp_lt_u32 s%d, 3' % S_STEP); p('s_cbranch_scc1 %s' % l4)
        p('s_sub_u32 s%d, s%d, 2' % (S_T1, S_STEP)); x1_flag(S_T1)
        p.label(l4)
        for r in range(8): p('v_accvgpr_write_b32 a%d, v%d' % (40 * k + 32 + r, ZB + r))
        lok = p.newlabel('LRok')
        p('s_add_u32 s%d, s%d, 2' % (S_T1, S_STEP)); p('s_min_u32 s%d, s%d, 64' % (S_T1, S_T1))
        p('s_max_u32 s%d, s%d, 1' % (S_T2, S_STEP)); p('s_sub_u32 s%d, s%d, 1' % (S_T2, S_T2))
        p('v_mov_b32 v102, s%d' % S_T1); p('v_mov_b32 v7, s%d' % S_T2); p('v_cndmask_b32 v102, v102, v7, s[%d:%d]' % (S_MASK, S_MASK + 1))
        p('v_cmp_gt_u32 vcc, v102, v103'); p('s_cbranch_vccz %s' % lok)
        p('s_mov_b32 s%d, s%d' % (S_T3, S_T1)); wait_flags(p, 0, F_VO, S_T3, 7)
        p('s_max_u32 s%d, s%d, 1' % (S_T3, S_STEP)); p('s_sub_u32 s%d, s%d, 1' % (S_T3, S_T3)); wait_flags(p, 0, F_P, S_T3, 7)
        p.label(lok)
        rnd_write(p, 16384, 40, 41)
        p('s_add_u32 s%d, s%d, 1' % (S_STEP, S_STEP))
        lns = p.newlabel('LRns'); ljoin = p.newlabel('LRj')
        def tail_loads():
            p('buffer_store_dwordx4 %s, v6, s[%d:%d], s%d offen sc1' % (vr(SENT, 4), S_WS, S_WS + 3, S_ZO))
            p('buffer_store_dwordx4 %s, v6, s[%d:%d], s%d offen offset:1024 sc1' % (vr(SENT, 4), S_WS, S_WS + 3, S_ZO))
            p('s_add_u32 s%d, s%d, %d' % (S_VOO, S_VOO, 40 * 32 * 1024))
            vo_load((k + 1) & 3)
        p('s_cmp_lt_u32 s%d, 3' % S_STEP); p('s_cbranch_scc1 %s' % lns)
        p('s_sub_u32 s%d, s%d, 3' % (S_SG, S_STEP)); seg_issue(False)
        tail_loads()
        seg_compute((k + 2) & 3, 10)
        p('s_branch %s' % ljoin)
        p.label(lns)
        tail_loads()
        p.label(ljoin)
    p('s_cmp_lt_u32 s%d, s%d' % (S_STEP, S_NST)); p('s_cbranch_scc1 %s' % loop)
    for sg in (62, 63):
        p('s_barrier')
        p('s_mov_b32 s%d, %d' % (S_SG, sg)); seg_issue(True); seg_compute(sg & 3, 0)
    p('s_waitcnt vmcnt(0)'); p('s_barrier')
    l = p.newlabel('LRf'); p('s_cmp_lg_u32 s%d, 2' % S_WAVE); p('s_cbranch_scc1 %s' % l)
    p('s_mov_b32 s%d, 64' % S_T1); x1_flag(S_T1)
    p.label(l)
```

```python
from core import *
import core, core2, pro
from pro import f2u, OOB
S_WK = 45
DBG_PAR = 196; DBG_MODA = 128; DBG_MOD = 132; DBG_PRO = 192

def dbg_inc(p, off):
    dbg_srd(p, 52)
    p('v_mov_b32 v4, 0x7ff00000'); p('v_mov_b32 v5, %d' % off); p('v_cmp_eq_u32 vcc, 0, v0'); p('v_cndmask_b32 v4, v4, v5, vcc')
    p('v_mov_b32 v6, 1')
    p('buffer_atomic_add v6, v4, s[52:55], 0 offen sc1')

def dbg_wait(p, off, need, w0_only=True, nonzero=False, vt=16, sleep=2):
    dbg_srd(p, 52)
    l = p.newlabel('Ldw'); top = p.newlabel('Ldwt'); done = p.newlabel('Ldwd')
    if w0_only: p('s_cmp_lg_u32 s%d, 0' % S_WAVE); p('s_cbranch_scc1 %s' % l)
    p('v_mov_b32 v%d, %d' % (vt, off))
    p.label(top)
    p('buffer_load_dword v%d, v%d, s[52:55], 0 offen sc1' % (vt + 1, vt)); p('s_waitcnt vmcnt(0)')
    p('v_readfirstlane_b32 s50, v%d' % (vt + 1))
    p('s_cmp_ge_u32 s50, %d' % need); p('s_cbranch_scc1 %s' % done)
    p('s_sleep %d' % sleep)
    p('s_cmp_eq_u32 s%d, 0' % S_SPIN); p('s_cbranch_scc1 %s' % done)
    p('s_sub_u32 s%d, s%d, 1' % (S_SPIN, S_SPIN)); p('s_branch %s' % top)
    p.label(done)
    p.label(l)
    if w0_only: p('s_barrier')

def probe4(p):
    l = p.newlabel('Lprs'); p('s_cmp_lg_u32 s%d, 0' % S_WAVE); p('s_cbranch_scc1 %s' % l)
    p('v_mov_b32 v36, 0'); p('v_mov_b32 v37, -1'); p('s_mov_b32 s54, 0')
    for k in range(4): p('s_mov_b32 s%d, -1' % (56 + k))
    top = p.newlabel('Lprb'); p.label(top)
    p('s_and_b32 s55, s54, 2'); p('s_lshl_b32 s%d, s55, 20' % S_T0); p('s_and_b32 s55, s54, 1'); p('s_lshl_b32 s55, s55, 13'); p('s_add_u32 s%d, s%d, s55' % (S_T0, S_T0))
    p('s_lshr_b32 s55, s54, 2'); p('s_lshl_b32 s55, s55, 14'); p('s_add_u32 s%d, s%d, s55' % (S_T0, S_T0))
    p('s_add_u32 s%d, s%d, s%d' % (S_T0, S_T0, S_COMM)); p('s_add_u32 s%d, s%d, %d' % (S_T0, S_T0, BLK_PROBE * BLK))
    p('buffer_store_dword v37, v36, s[%d:%d], s%d offen sc1' % (S_WS, S_WS + 3, S_T0))
    p('s_waitcnt vmcnt(0)')
    p('s_memtime s[50:51]'); p('s_waitcnt lgkmcnt(0)')
    p('buffer_load_dword v38, v36, s[%d:%d], s%d offen sc1' % (S_WS, S_WS + 3, S_T0))
    p('s_waitcnt vmcnt(0)')
    p('s_memtime s[52:53]'); p('s_waitcnt lgkmcnt(0)')
    p('s_sub_u32 s50, s52, s50')
    for k in range(4):
        p('s_and_b32 s55, s54, 3'); p('s_cmp_eq_u32 s55, %d' % k); p('s_cselect_b32 s55, s50, -1'); p('s_min_u32 s%d, s%d, s55' % (56 + k, 56 + k))
    p('s_add_u32 s54, s54, 1'); p('s_cmp_lt_u32 s54, %d' % (4 * PROBE_N)); p('s_cbranch_scc1 %s' % top)
    p('s_cmp_lt_u32 s57, s56'); p('s_cselect_b32 s50, 5, 4'); p('s_cmp_lt_u32 s59, s58'); p('s_cselect_b32 s51, 2, 0'); p('s_add_u32 s50, s50, s51')
    if core.PROF or DEBUG_PROBE:
        for k in range(4): p('v_mov_b32 v%d, s%d' % (40 + k, 56 + k))
    p('v_mov_b32 v37, s50')
    dbg_srd(p, 52)
    p('v_mov_b32 v38, 0x7ff00000'); p('v_mov_b32 v36, %d' % DBG_PAR); p('v_cmp_eq_u32 vcc, 0, v0'); p('v_cndmask_b32 v36, v38, v36, vcc')
    p('buffer_store_dword v37, v36, s[52:55], 0 offen sc1')
    if core.PROF or DEBUG_PROBE:
        p('v_mov_b32 v36, 96'); p('v_cndmask_b32 v36, v38, v36, vcc')
        p('buffer_store_dwordx4 v[40:43], v36, s[52:55], 0 offen sc1')
    p.label(l)

DEBUG_PROBE = False
STAMP = False
PROBE_N = 3
def gen_prologue(p):
    lskip = 'L_pro_skip'
    p('s_cmp_lt_u32 s2, 64'); p('s_cbranch_scc1 %s' % lskip)
    l1 = p.newlabel('Lwk');
    p('s_cmp_lt_u32 s2, 124'); p('s_cbranch_scc0 L_wk_a'); p('s_sub_u32 s%d, s2, 64' % S_WK); p('s_branch L_wk_ok')
    p.label('L_wk_a')
    p('s_cmp_lt_u32 s2, 128'); p('s_cbranch_scc0 L_wk_b'); p('s_sub_u32 s%d, s2, 4' % S_WK); p('s_branch L_wk_ok')
    p.label('L_wk_b')
    p('s_cmp_lt_u32 s2, 192'); p('s_cbranch_scc1 %s' % lskip)
    p('s_cmp_lt_u32 s2, 252'); p('s_cbranch_scc0 L_wk_c'); p('s_sub_u32 s%d, s2, 132' % S_WK); p('s_branch L_wk_ok')
    p.label('L_wk_c')
    p('s_sub_u32 s%d, s2, 128' % S_WK)
    p.label('L_wk_ok')
    wk = S_WK
    srd(p, 8, KA['wmod'], 640 * 7680); srd(p, 12, KA['c'], 1280)
    p('v_lshrrev_b32 v3, 6, v0'); p('v_and_b32 v1, 63, v0'); p('v_readfirstlane_b32 s%d, v3' % S_WAVE); p('s_mov_b32 s%d, %d' % (S_SPIN, SPIN_BUDGET))
    p('s_waitcnt lgkmcnt(0)')
    lnomod = p.newlabel('Lnm')
    p('s_cmp_ge_u32 s%d, 120' % wk); p('s_cbranch_scc1 %s' % lnomod)
    p('v_and_b32 v8, 3, v0'); p('v_lshrrev_b32 v9, 2, v0')
    p('v_mul_u32_u24 v10, 7680, v9'); p('v_lshlrev_b32 v11, 4, v8'); p('v_add_u32 v10, v10, v11')
    p('s_lshl_b32 s20, s%d, 6' % wk); p('v_add_u32 v10, s20, v10'); p('v_lshlrev_b32 v11, 1, v9')
    for i in range(10):
        p('s_mov_b32 s21, %d' % (i * 64 * 7680))
        p('buffer_load_dwordx4 %s, v10, s[8:11], s21 offen' % vr(40 + 4 * i, 4))
        p('buffer_load_ushort v%d, v11, s[12:15], 0 offen offset:%d' % (24 + i, i * 128))
    p.label(lnomod)
    srd(p, 56, KA['x'], 2048 * 1280); p('s_waitcnt lgkmcnt(0)')
    pro.ln_setup(p, 18)
    X0 = 84; D0 = 104; A0 = 144; B0 = 184; T = 224
    p('s_mul_i32 s24, s%d, %d' % (wk, 16 * 1280))
    for k in range(5): p('buffer_load_dwordx4 %s, v18, s[56:59], s24 offen offset:%d' % (vr(X0 + 4 * k, 4), k * 64))
    lmod = p.newlabel('Lmod'); lafter = p.newlabel('Lmodd')
    p('s_cmp_lt_u32 s%d, 120' % wk); p('s_cbranch_scc1 %s' % lmod)
    p('s_cmp_lg_u32 s%d, 120' % wk); p('s_cbranch_scc1 %s' % lafter)
    p('s_waitcnt vmcnt(0)')
    probe4(p)
    p('s_branch %s' % lafter)
    p.label(lmod)
    for r in range(32 + 4, 40): pass
    acc = list(range(228, 236))
    for r in acc: p('v_mov_b32 v%d, 0' % r)
    p('s_waitcnt vmcnt(0)')
    for i in range(10):
        c = 24 + i
        p('v_lshlrev_b32 v%d, 16, v%d' % (c, c))
        p('v_mul_f32 v6, 0xbfb8aa3b, v%d' % c)
        p('v_exp_f32 v6, v6'); p('v_add_f32 v6, 1.0, v6'); p('v_rcp_f32 v6, v6'); p('v_mul_f32 v6, v%d, v6' % c)
        p('v_cvt_pk_bf16_f32 v6, v6, v6'); p('v_and_b32 v6, 0xffff0000, v6')
        for k in range(4):
            w = 40 + 4 * i + k
            p('v_lshlrev_b32 v7, 16, v%d' % w); p('v_fmac_f32 v%d, v6, v7' % acc[2 * k])
            p('v_and_b32 v7, 0xffff0000, v%d' % w); p('v_fmac_f32 v%d, v6, v7' % acc[2 * k + 1])
    p('v_lshlrev_b32 v16, 7, v9'); p('v_lshlrev_b32 v17, 5, v8'); p('v_add_u32 v16, v16, v17')
    p('ds_write_b128 v16, v[228:231]'); p('ds_write_b128 v16, v[232:235] offset:16')
    p('s_waitcnt lgkmcnt(0)'); p('s_barrier')
    p('v_and_b32 v8, 31, v0'); p('v_lshrrev_b32 v9, 5, v0')
    p('v_lshlrev_b32 v10, 10, v9'); p('v_lshlrev_b32 v11, 2, v8'); p('v_add_u32 v10, v10, v11')
    for k in range(8): p('ds_read_b32 v%d, v10 offset:%d' % (228 + k, k * 128))
    p('s_waitcnt lgkmcnt(0)')
    for k in range(1, 8): p('v_add_f32 v228, v228, v%d' % (228 + k))
    p('s_barrier')
    p('v_lshlrev_b32 v10, 7, v9'); p('v_add_u32 v10, v10, v11'); p('ds_write_b32 v10, v228')
    p('s_waitcnt lgkmcnt(0)'); p('s_barrier')
    for k in range(8): p('ds_read_b32 v%d, v11 offset:%d' % (228 + k, k * 128))
    p('s_waitcnt lgkmcnt(0)')
    for k in range(1, 8): p('v_add_f32 v228, v228, v%d' % (228 + k))
    p('v_cvt_pk_bf16_f32 v228, v228, v228'); p('v_and_b32 v228, 0xffff0000, v228')
    p('s_mul_hi_u32 s21, s%d, %d' % (wk, (1 << 32) // 20 + 1))
    la = p.newlabel('Lna'); lb = p.newlabel('Lad')
    p('s_cmp_eq_u32 s21, 1'); p('s_cbranch_scc1 %s' % lb)
    p('s_cmp_eq_u32 s21, 4'); p('s_cbranch_scc0 %s' % la)
    p.label(lb)
    p('v_add_f32 v228, 1.0, v228'); p('v_cvt_pk_bf16_f32 v228, v228, v228'); p('v_and_b32 v228, 0xffff0000, v228')
    p.label(la)
    p('v_lshrrev_b32 v228, 16, v228')
    p('s_lshl_b32 s20, s%d, 6' % wk)
    p('v_lshlrev_b32 v5, 1, v0'); p('v_add_u32 v5, s20, v5')
    p('v_mov_b32 v6, 0x%x' % OOB); p('v_cmp_gt_u32 vcc, 32, v0'); p('v_cndmask_b32 v5, v6, v5, vcc')
    p('s_mov_b32 s22, %d' % OFF_MOD)
    p('buffer_store_short v228, v5, s[%d:%d], s22 offen sc1' % (S_WS, S_WS + 3))
    p('s_waitcnt vmcnt(0)'); p('s_barrier')
    lq = p.newlabel('Lma'); p('s_cmp_ge_u32 s%d, 40' % wk); p('s_cbranch_scc1 %s' % lq)
    dbg_inc(p, DBG_MODA)
    p.label(lq)
    dbg_inc(p, DBG_MOD)
    p.label(lafter)
    def block_task(bs):
        lpk = p.newlabel('Lpk'); ld = p.newlabel('Lpkd')
        p('s_add_u32 s23, s%d, %d' % (bs, 128 - 80)); p('s_cmp_lt_u32 s%d, 80' % bs); p('s_cselect_b32 s23, s%d, s23' % bs)
        p('s_lshl_b32 s23, s23, 14'); p('s_add_u32 s23, s23, s%d' % S_COMM)
        p('s_cmp_lt_u32 s%d, %d' % (bs, MEM_SLOT)); p('s_cbranch_scc1 %s' % lpk)
        p('v_lshlrev_b32 v12, 4, v0')
        for r in range(4, 8): p('v_mov_b32 v%d, -1' % r)
        for j in range(4):
            p('buffer_store_dwordx4 v[4:7], v12, s[%d:%d], s23 offen sc1' % (S_WS, S_WS + 3))
            if j < 3: p('s_add_u32 s23, s23, 4096')
        p('s_branch %s' % ld)
        p.label(lpk)
        srd(p, 16 + 40, KA['mem0'], 10240); p('s_waitcnt lgkmcnt(0)')
        for rep in range(2):
            p('v_add_u32 v13, %d, v3' % (rep * 4))
            p('s_and_b32 s24, s%d, 1' % bs); p('s_lshl_b32 s24, s24, 3'); p('v_add_u32 v14, s24, v13')
            p('v_and_b32 v15, 7, v1'); p('v_mul_u32_u24 v15, 1280, v15')
            p('v_lshlrev_b32 v16, 7, v14'); p('v_add_u32 v15, v15, v16')
            p('v_lshrrev_b32 v16, 4, v1'); p('v_lshlrev_b32 v16, 5, v16'); p('v_add_u32 v15, v15, v16')
            p('v_bfe_u32 v16, v1, 3, 1'); p('v_lshlrev_b32 v16, 2, v16'); p('v_add_u32 v15, v15, v16')
            p('v_mov_b32 v17, 0x%x' % OOB); p('v_cmp_gt_u32 vcc, 10, v14'); p('v_cndmask_b32 v15, v17, v15, vcc')
            for q in range(4): p('buffer_load_dword v%d, v15, s[56:59], 0 offen offset:%d' % (4 + q, q * 8))
            p('v_lshlrev_b32 v12, 10, v13'); p('v_lshlrev_b32 v16, 4, v1'); p('v_add_u32 v12, v12, v16'); p('v_cndmask_b32 v12, v17, v12, vcc')
            p('s_waitcnt vmcnt(0)')
            p('buffer_store_dwordx4 v[4:7], v12, s[%d:%d], s23 offen sc1' % (S_WS, S_WS + 3))
            p('s_add_u32 s24, s23, 8192')
            p('buffer_store_dwordx4 v[4:7], v12, s[%d:%d], s24 offen sc1' % (S_WS, S_WS + 3))
            p('s_waitcnt vmcnt(0)')
        p.label(ld)
    def init_tasks():
        p('s_add_u32 s25, s%d, 8' % wk); p('s_and_b32 s25, s25, 127'); block_task(25)
        l2 = p.newlabel('Lb2'); p('s_cmp_ge_u32 s%d, 32' % wk); p('s_cbranch_scc1 %s' % l2)
        p('s_add_u32 s25, s%d, 128' % wk); block_task(25)
        p.label(l2)
        l3 = p.newlabel('Lb3'); p('s_cmp_lt_u32 s%d, 32' % wk); p('s_cbranch_scc1 %s' % l3); p('s_cmp_ge_u32 s%d, 38' % wk); p('s_cbranch_scc1 %s' % l3)
        p('s_sub_u32 s23, s%d, 32' % wk); p('s_lshl_b32 s23, s23, 12'); p('s_add_u32 s23, s23, %d' % OFF_FLAGS)
        p('v_lshlrev_b32 v12, 4, v0')
        for r in range(4, 8): p('v_mov_b32 v%d, 0' % r)
        p('buffer_store_dwordx4 v[4:7], v12, s[%d:%d], s23 offen sc1' % (S_WS, S_WS + 3))
        p.label(l3)
    le = p.newlabel('Lie'); p('s_cmp_lt_u32 s%d, 120' % wk); p('s_cbranch_scc1 %s' % le)
    init_tasks()
    p.label(le)
    stamp(p, 3, STAMP)
    def between():
        dbg_wait(p, DBG_MODA, 40, vt=34)
        stamp(p, 7, STAMP)
        mod_load_sc1(p, 18, A0, B0, 1, 0, 36)
    p('s_waitcnt vmcnt(0)')
    pro.ln_compute(p, X0, D0, A0, B0, 20, 8192, T, between)
    p('s_mul_i32 s24, s%d, 20480' % wk); p('s_mul_i32 s25, s%d, 5120' % S_WAVE); p('s_add_u32 s24, s24, s25'); p('s_add_u32 s24, s24, %d' % OFF_H)
    p('v_lshlrev_b32 v2, 4, v1')
    for k in range(5):
        if k == 4: p('s_add_u32 s24, s24, 4096')
        p('buffer_store_dwordx4 %s, v2, s[%d:%d], s24 offen offset:%d sc1' % (vr(X0 + 4 * k, 4), S_WS, S_WS + 3, (k % 4) * 1024))
    ll = p.newlabel('Lil'); p('s_cmp_ge_u32 s%d, 120' % wk); p('s_cbranch_scc1 %s' % ll)
    init_tasks()
    p.label(ll)
    p('s_waitcnt vmcnt(0)'); p('s_barrier')
    dbg_inc(p, DBG_PRO)
    p('s_barrier')
    p.label(lskip)

def mod_load_sc1(p, vb, A0, B0, rowA, rowB, tmp):
    for i, row in enumerate((rowA, rowB)):
        p('s_mov_b32 s%d, %d' % (S_T0, OFF_MOD + row * 1280))
        for k in range(5): p('buffer_load_dwordx4 %s, v%d, s[%d:%d], s%d offen offset:%d sc1' % (vr(tmp + 20 * i + 4 * k, 4), vb + 1, S_WS, S_WS + 3, S_T0, k * 64))
    p('s_waitcnt vmcnt(0)')
    for i, dst in enumerate((A0, B0)):
        for k in range(20):
            p('v_lshlrev_b32 v%d, 16, v%d' % (dst + 2 * k, tmp + 20 * i + k)); p('v_and_b32 v%d, 0xffff0000, v%d' % (dst + 2 * k + 1, tmp + 20 * i + k))

def wait_ready(p, parity=False):
    dbg_srd(p, 52)
    l = p.newlabel('Lwr'); top = p.newlabel('Lwrt'); done = p.newlabel('Lwrd'); again = p.newlabel('Lwra')
    p('s_cmp_lg_u32 s%d, 0' % S_WAVE); p('s_cbranch_scc1 %s' % l)
    p('v_mov_b32 v16, %d' % DBG_PRO)
    p.label(top)
    p('buffer_load_dwordx2 v[18:19], v16, s[52:55], 0 offen sc1'); p('s_waitcnt vmcnt(0)')
    p('v_readfirstlane_b32 s50, v18'); p('v_readfirstlane_b32 s51, v19')
    p('s_cmp_lt_u32 s50, 128'); p('s_cbranch_scc1 %s' % again)
    if parity: p('s_cmp_eq_u32 s51, 0'); p('s_cbranch_scc1 %s' % again)
    p('s_branch %s' % done)
    p.label(again)
    p('s_sleep 1')
    p('s_cmp_eq_u32 s%d, 0' % S_SPIN); p('s_cbranch_scc1 %s' % done)
    p('s_sub_u32 s%d, s%d, 1' % (S_SPIN, S_SPIN)); p('s_branch %s' % top)
    p.label(done)
    if parity: p('v_mov_b32 v16, 0'); p('v_mov_b32 v17, s51'); p('ds_write_b32 v16, v17 offset:%d' % parity); p('s_waitcnt lgkmcnt(0)')
    p.label(l)
    p('s_barrier')
    if parity:
        p('v_mov_b32 v16, 0'); p('ds_read_b32 v17, v16 offset:%d' % parity); p('s_waitcnt lgkmcnt(0)'); p('v_readfirstlane_b32 s50, v17')
        p('s_barrier')
```

```python
H, DH, D, M, L, S, F = 32, 192, 640, 8, 32, 64, 1536
off = 0
def _take(n, align=4096):
    global off
    off = (off + align - 1) // align * align
    o = off; off += n
    return o
OFF_FLAGS = _take(65536)
OFF_MOD  = _take(3840 * 4)
OFF_MODL = _take(40 * 128)
OFF_FH   = _take(128 * 128)
OFF_FI   = _take(128 * 128)
OFF_COMM = _take(6 << 20)
OFF_H    = _take(64 * 40960)
OFF_QK   = _take(64 * 32 * 24576)
OFF_VO   = _take(64 * 40 * 32 * 1024)
OFF_PS   = _take(64 * 81920)
OFF_X1   = _take(64 * 40960)
OFF_HM   = _take(64 * 98304)
OFF_H2   = _take(64 * 40960)
OFF_HIST = _take(65 * 10240)
OFF_TRACE = _take(1 << 20)
WS_END = off
assert WS_END <= 268435456
BLK = 16384
NCOPY = 1
MEM_RING = 4; P_RING = 4; Z_RING = 2
BLK_MEM = 0
MEM_SLOT = 2 * NCOPY; MEM_COPY = 2
BLK_P   = BLK_MEM + MEM_SLOT * MEM_RING
P_SLOT = 3 * NCOPY; P_COPY = 3
BLK_XEND = BLK_P + P_SLOT * P_RING
assert BLK_XEND <= 112
BLK_Z   = 0
assert 40 * Z_RING <= 112
BLK_PROBE = 112
NBLK_INIT = BLK_XEND + 40 * Z_RING
def comm_page(ws_ptr):
    base = ws_ptr + OFF_COMM
    return OFF_COMM + ((-base) & ((2 << 20) - 1))
if __name__ == '__main__':
    for k, v in list(globals().items()):
        if k.startswith('OFF_') or k.startswith('BLK') or k in ('WS_END',): print(k, v, hex(v))
```

```python
from core import *
import core, core2, roles2, roles3, pro, fused

NAME = 'adaLN_cond__memory_aug_recurrent_mem_tr__glu_gated_bilinear__prompt_kernel'
DYN_ROLE = True
FUSED = True
FAKE_XCC = 0
ROLES = dict(A=True, B=True, R=True, AP=True, BP=True, L2=True, F1=True, F2=True)

def gen_main(name, nsteps=64, st=False, trace_on=False):
    p = Prog()
    p.raw('.globl %s' % name); p.raw('.p2align 8'); p.raw('.type %s,@function' % name); p.label(name)
    p('s_cmp_ge_u32 s2, 256'); p('s_cbranch_scc1 L_exit')
    srd(p, S_WS, KA['ws'], WS_BYTES)
    p('s_load_dwordx2 s[%d:%d], s[0:1], %d' % (S_DBG, S_DBG + 1, KA['dbg']))
    p('s_mov_b32 s%d, %d' % (S_NST, nsteps))
    p('s_waitcnt lgkmcnt(0)')
    core2.comm_setup2(p)
    if DYN_ROLE:
        dbg_srd(p, 52)
        if FAKE_XCC: p('s_lshr_b32 s20, s2, 6'); p('s_and_b32 s20, s20, 7'); p('s_mul_i32 s20, s20, %d' % FAKE_XCC); p('s_and_b32 s20, s20, 7')
        else: p('s_getreg_b32 s20, hwreg(HW_REG_XCC_ID)'); p('s_and_b32 s20, s20, 7')
        lw = 'L_tk_other'
        p('v_lshrrev_b32 v3, 6, v0'); p('v_readfirstlane_b32 s%d, v3' % S_WAVE)
        p('s_cmp_lg_u32 s%d, 0' % S_WAVE); p('s_cbranch_scc1 %s' % lw)
        p('v_mov_b32 v4, 0x7ff00000'); p('v_mov_b32 v5, 0'); p('v_cmp_eq_u32 vcc, 0, v0'); p('v_cndmask_b32 v4, v4, v5, vcc')
        p('s_lshl_b32 s21, s20, 2'); p('s_add_u32 s21, s21, 32')
        p('v_mov_b32 v6, 1')
        p('buffer_atomic_add v6, v4, s[52:55], s21 offen sc0 sc1'); p('s_waitcnt vmcnt(0)')
        p('v_readfirstlane_b32 s22, v6')
        p('s_cmp_lt_u32 s22, 32'); p('s_cbranch_scc1 L_tk_ok')
        p('v_mov_b32 v6, 1'); p('s_mov_b32 s21, 64')
        p('buffer_atomic_add v6, v4, s[52:55], s21 offen sc0 sc1'); p('s_waitcnt vmcnt(0)')
        p('v_readfirstlane_b32 s23, v6')
        p('v_lshlrev_b32 v7, 2, v0'); p('v_min_u32 v7, 28, v7')
        p('s_mov_b32 s26, %d' % SPIN_BUDGET)
        p.label('L_tk_wait')
        p('buffer_load_dword v8, v7, s[52:55], 0 offen offset:32 sc1'); p('s_waitcnt vmcnt(0)')
        p('s_mov_b32 s24, 0')
        for y in range(8): p('v_readlane_b32 s25, v8, %d' % y); p('s_add_u32 s24, s24, s25')
        p('s_cmp_ge_u32 s24, 256'); p('s_cbranch_scc1 L_tk_all')
        p('s_sleep 8'); p('s_sub_u32 s26, s26, 1'); p('s_cmp_lg_u32 s26, 0'); p('s_cbranch_scc1 L_tk_wait')
        p.label('L_tk_all')
        for y in range(8):
            ln = 'L_tk_n%d' % y
            p('v_readlane_b32 s25, v8, %d' % y); p('s_min_u32 s25, s25, 32'); p('s_sub_u32 s24, 32, s25')
            p('s_cmp_lt_u32 s23, s24'); p('s_cbranch_scc0 %s' % ln)
            p('s_mov_b32 s20, %d' % y); p('s_add_u32 s22, s25, s23'); p('s_branch L_tk_ok')
            p.label(ln)
            p('s_sub_u32 s23, s23, s24')
        p('s_mov_b32 s20, 7'); p('s_mov_b32 s22, 31')
        p.label('L_tk_ok')
        p('s_lshl_b32 s22, s22, 2'); p('s_and_b32 s21, s20, 3'); p('s_add_u32 s22, s22, s21')
        p('s_lshr_b32 s20, s20, 2'); p('s_lshl_b32 s20, s20, 7'); p('s_add_u32 s22, s22, s20')
        p('v_mov_b32 v6, s22'); p('v_mov_b32 v7, 0'); p('ds_write_b32 v7, v6'); p('s_waitcnt lgkmcnt(0)')
        p.label(lw)
        p('s_barrier')
        p('v_mov_b32 v7, 0'); p('ds_read_b32 v6, v7'); p('s_waitcnt lgkmcnt(0)')
        p('v_readfirstlane_b32 s2, v6')
        p('s_barrier')
    else:
        p('s_and_b32 s20, s2, 7'); p('s_lshr_b32 s21, s2, 3'); p('s_lshl_b32 s21, s21, 2'); p('s_and_b32 s22, s20, 3'); p('s_add_u32 s21, s21, s22')
        p('s_lshr_b32 s20, s20, 2'); p('s_lshl_b32 s20, s20, 7'); p('s_add_u32 s2, s21, s20')
    if st:
        p('v_lshrrev_b32 v3, 6, v0'); p('v_readfirstlane_b32 s%d, v3' % S_WAVE); stamp(p, 0, True)
    if FUSED:
        fused.gen_prologue(p)
    table = [('A', 0, 32, lambda: core2.gen_A2(p, trace_on, st)), ('B', 32, 64, lambda: core2.gen_B2(p, trace_on, st)), ('R', 64, 104, lambda: core2.gen_R2(p, trace_on, st)),
             ('AP', 128, 160, lambda: roles2.gen_AP(p, st)), ('BP', 160, 192, lambda: roles2.gen_BP(p, st)),
             ('F2', 104, 124, lambda: roles3.gen_F2(p, st)), ('L2', 124, 128, lambda: roles3.gen_L2(p, st)), ('F1', 192, 240, lambda: roles3.gen_F1(p, st))]
    for nm, lo, hi, fn in table:
        if not ROLES.get(nm): continue
        l = 'L_not' + nm
        p('s_cmp_lt_u32 s2, %d' % lo); p('s_cbranch_scc1 %s' % l)
        p('s_cmp_ge_u32 s2, %d' % hi); p('s_cbranch_scc1 %s' % l)
        p('s_sub_u32 s%d, s2, %d' % (S_IDX, lo))
        p('s_branch L_go' + nm)
        p.label(l)
    p.label('L_exit')
    p('s_endpgm')
    for nm, lo, hi, fn in table:
        if not ROLES.get(nm): continue
        p.label('L_go' + nm); fn(); p('s_branch L_end')
    p.label('L_end')
    stamp(p, 2, st)
    pf_out(p)
    l = p.newlabel('Lok'); p('s_cmp_lg_u32 s%d, 0' % S_SPIN); p('s_cbranch_scc1 %s' % l)
    p('v_mov_b32 v4, 4'); p('v_mov_b32 v5, s2'); p('v_add_u32 v5, 1, v5'); p('global_store_dword v4, v5, s[%d:%d]' % (S_DBG, S_DBG + 1))
    p.label(l)
    p('s_waitcnt vmcnt(0)')
    p('s_endpgm')
    return p.text(), kernel_desc(name), p

def gen_all(st=False, trace_on=False, names=('k0_kernel', 'k1_kernel', 'main_kernel')):
    core.FUSED = FUSED
    t2, d2, p = gen_main(names[2], 64, st, trace_on)
    if FUSED:
        launches = [(names[2], 256, 163840)]
        return '; @launch grid=(256,1,1) block=(256,1,1) lds=163840\n' + HEADER + t2 + d2, launches
    t0, d0 = pro.gen_k0(names[0]); t1, d1 = pro.gen_k1(names[1])
    launches = [(names[0], 377, 8192), (names[1], 128, 1024), (names[2], 256, 163840)]
    head = ''.join('; @launch kernel=%s grid=(%d,1,1) block=(256,1,1) lds=%d\n' % l for l in launches)
    return head + HEADER + t0 + t1 + t2 + d0 + d1 + d2, launches

if __name__ == '__main__':
    txt, _ = gen_all()
    open('all.s', 'w').write(txt); print(len(txt))
```

```python
from asmlib import Prog
from layout import *
from core import srd, vr, KA, WS_BYTES, kernel_desc, S_WS, S_WAVE, S_T0, S_T1, S_T2, S_T3, comm_setup, S_COMM
import core, struct

def f2u(x): return struct.unpack('<I', struct.pack('<f', x))[0]
OOB = 0x7ff00000

def gen_k0(name):
    p = Prog()
    p.raw('.globl %s' % name); p.raw('.p2align 8'); p.raw('.type %s,@function' % name); p.label(name)
    srd(p, S_WS, KA['ws'], WS_BYTES)
    srd(p, 8, KA['wmod'], 640 * 7680); srd(p, 12, KA['c'], 1280); srd(p, 16, KA['mem0'], 10240)
    p('s_waitcnt lgkmcnt(0)')
    lmod, lcomm, lflag, lend = 'K0_mod', 'K0_comm', 'K0_flag', 'K0_end'
    p('s_cmp_lt_u32 s2, 120'); p('s_cbranch_scc1 %s' % lmod)
    p('s_cmp_lt_u32 s2, 376'); p('s_cbranch_scc1 %s' % lcomm)
    p('s_cmp_eq_u32 s2, 376'); p('s_cbranch_scc1 %s' % lflag)
    p('s_endpgm')
    p.label(lflag)
    p('v_lshlrev_b32 v1, 4, v0')
    for r in range(4, 8): p('v_mov_b32 v%d, 0' % r)
    p('s_mov_b32 s20, %d' % OFF_FLAGS)
    for j in range(8):
        p('buffer_store_dwordx4 v[4:7], v1, s[4:7], s20 offen')
        p('s_add_u32 s20, s20, 4096')
    p('s_branch %s' % lend)
    p.label(lcomm)
    p('s_add_u32 s%d, s%d, %d' % (S_T0, S_WS, OFF_COMM)); p('s_sub_u32 s%d, 0, s%d' % (S_T0, S_T0)); p('s_and_b32 s%d, s%d, 0x1fffff' % (S_T0, S_T0)); p('s_add_u32 s%d, s%d, %d' % (S_COMM, S_T0, OFF_COMM))
    p('s_sub_u32 s22, s2, 120')
    p('s_lshl_b32 s23, s22, 14'); p('s_add_u32 s23, s23, s%d' % S_COMM)
    lpk = 'K0_pack'
    p('s_cmp_lt_u32 s22, %d' % MEM_SLOT); p('s_cbranch_scc1 %s' % lpk)
    p('v_lshlrev_b32 v1, 4, v0')
    for r in range(4, 8): p('v_mov_b32 v%d, -1' % r)
    for j in range(4):
        p('buffer_store_dwordx4 v[4:7], v1, s[4:7], s23 offen')
        if j < 3: p('s_add_u32 s23, s23, 4096')
    p('s_branch %s' % lend)
    p.label(lpk)
    for rep in range(2):
        p('v_lshrrev_b32 v2, 6, v0'); p('v_and_b32 v3, 63, v0')
        p('v_add_u32 v2, %d, v2' % (rep * 4))
        p('s_and_b32 s24, s22, 1'); p('s_lshl_b32 s24, s24, 3'); p('v_add_u32 v8, s24, v2')
        p('v_and_b32 v9, 7, v3'); p('v_mul_u32_u24 v9, 1280, v9')
        p('v_lshlrev_b32 v10, 7, v8'); p('v_add_u32 v9, v9, v10')
        p('v_lshrrev_b32 v10, 4, v3'); p('v_lshlrev_b32 v10, 5, v10'); p('v_add_u32 v9, v9, v10')
        p('v_bfe_u32 v10, v3, 3, 1'); p('v_lshlrev_b32 v10, 2, v10'); p('v_add_u32 v9, v9, v10')
        p('v_mov_b32 v11, 0x%x' % OOB); p('v_cmp_gt_u32 vcc, 10, v8'); p('v_cndmask_b32 v9, v11, v9, vcc')
        for q in range(4): p('buffer_load_dword v%d, v9, s[16:19], 0 offen offset:%d' % (4 + q, q * 8))
        p('v_lshlrev_b32 v12, 10, v2'); p('v_lshlrev_b32 v13, 4, v3'); p('v_add_u32 v12, v12, v13'); p('v_cndmask_b32 v12, v11, v12, vcc')
        p('s_waitcnt vmcnt(0)')
        p('buffer_store_dwordx4 v[4:7], v12, s[4:7], s23 offen')
        p('s_add_u32 s24, s23, 8192')
        p('buffer_store_dwordx4 v[4:7], v12, s[4:7], s24 offen')
        p('s_waitcnt vmcnt(0)')
    p('s_branch %s' % lend)
    p.label(lmod)
    p('v_and_b32 v1, 3, v0'); p('v_lshrrev_b32 v2, 2, v0')
    p('v_mul_u32_u24 v3, 7680, v2'); p('v_lshlrev_b32 v4, 4, v1'); p('v_add_u32 v3, v3, v4')
    p('s_lshl_b32 s20, s2, 6'); p('v_add_u32 v3, s20, v3')
    p('v_lshlrev_b32 v5, 1, v2')
    for i in range(10):
        p('s_mov_b32 s21, %d' % (i * 64 * 7680))
        p('buffer_load_dwordx4 %s, v3, s[8:11], s21 offen' % vr(40 + 4 * i, 4))
        p('buffer_load_ushort v%d, v5, s[12:15], 0 offen offset:%d' % (24 + i, i * 128))
    for r in range(8, 16): p('v_mov_b32 v%d, 0' % r)
    p('s_waitcnt vmcnt(0)')
    for i in range(10):
        c = 24 + i
        p('v_lshlrev_b32 v%d, 16, v%d' % (c, c))
        p('v_mul_f32 v6, 0xbfb8aa3b, v%d' % c)
        p('v_exp_f32 v6, v6'); p('v_add_f32 v6, 1.0, v6'); p('v_rcp_f32 v6, v6'); p('v_mul_f32 v6, v%d, v6' % c)
        p('v_cvt_pk_bf16_f32 v6, v6, v6'); p('v_and_b32 v6, 0xffff0000, v6')
        for k in range(4):
            w = 40 + 4 * i + k
            p('v_lshlrev_b32 v7, 16, v%d' % w); p('v_fmac_f32 v%d, v6, v7' % (8 + 2 * k))
            p('v_and_b32 v7, 0xffff0000, v%d' % w); p('v_fmac_f32 v%d, v6, v7' % (9 + 2 * k))
    p('v_lshlrev_b32 v16, 7, v2'); p('v_lshlrev_b32 v17, 5, v1'); p('v_add_u32 v16, v16, v17')
    p('ds_write_b128 v16, v[8:11]'); p('ds_write_b128 v16, v[12:15] offset:16')
    p('s_waitcnt lgkmcnt(0)'); p('s_barrier')
    p('v_and_b32 v1, 31, v0'); p('v_lshrrev_b32 v2, 5, v0')
    p('v_lshlrev_b32 v3, 10, v2'); p('v_lshlrev_b32 v4, 2, v1'); p('v_add_u32 v3, v3, v4')
    for k in range(8): p('ds_read_b32 v%d, v3 offset:%d' % (8 + k, k * 128))
    p('s_waitcnt lgkmcnt(0)')
    for k in range(1, 8): p('v_add_f32 v8, v8, v%d' % (8 + k))
    p('s_barrier')
    p('v_lshlrev_b32 v3, 7, v2'); p('v_add_u32 v3, v3, v4')
    p('ds_write_b32 v3, v8')
    p('s_waitcnt lgkmcnt(0)'); p('s_barrier')
    for k in range(8): p('ds_read_b32 v%d, v4 offset:%d' % (8 + k, k * 128))
    p('s_waitcnt lgkmcnt(0)')
    for k in range(1, 8): p('v_add_f32 v8, v8, v%d' % (8 + k))
    p('v_cvt_pk_bf16_f32 v8, v8, v8'); p('v_and_b32 v8, 0xffff0000, v8')
    p('s_mul_hi_u32 s21, s2, %d' % ((1 << 32) // 20 + 1))
    l1 = 'K0_noadd'; l2 = 'K0_add'
    p('s_cmp_eq_u32 s21, 1'); p('s_cbranch_scc1 %s' % l2)
    p('s_cmp_eq_u32 s21, 4'); p('s_cbranch_scc0 %s' % l1)
    p.label(l2)
    p('v_add_f32 v8, 1.0, v8'); p('v_cvt_pk_bf16_f32 v8, v8, v8'); p('v_and_b32 v8, 0xffff0000, v8')
    p.label(l1)
    p('v_lshrrev_b32 v8, 16, v8')
    p('v_lshlrev_b32 v5, 1, v0'); p('v_add_u32 v5, s20, v5')
    p('v_mov_b32 v6, 0x%x' % OOB); p('v_cmp_gt_u32 vcc, 32, v0'); p('v_cndmask_b32 v5, v6, v5, vcc')
    p('s_mov_b32 s22, %d' % OFF_MOD)
    p('buffer_store_short v8, v5, s[4:7], s22 offen')
    p.label(lend)
    p('s_waitcnt vmcnt(0)')
    p('s_endpgm')
    return p.text(), kernel_desc(name, vgpr=96, accum=96, sgpr=64)

def ln_setup(p, vb):
    p('v_and_b32 v%d, 15, v1' % vb); p('v_mul_u32_u24 v%d, 1280, v%d' % (vb, vb))
    p('v_lshrrev_b32 v%d, 4, v1' % (vb + 1)); p('v_lshlrev_b32 v%d, 4, v%d' % (vb + 1, vb + 1))
    p('s_mul_i32 s%d, s%d, 320' % (S_T0, S_WAVE)); p('v_add_u32 v%d, s%d, v%d' % (vb + 1, S_T0, vb + 1))
    p('v_add_u32 v%d, v%d, v%d' % (vb, vb, vb + 1))
    p('v_and_b32 v%d, 15, v1' % (vb + 2)); p('v_lshlrev_b32 v%d, 2, v%d' % (vb + 2, vb + 2))

def ln_load_mod(p, vb, A0, B0, rowA, rowB, tmp):
    for (dst, row) in ((A0, rowA), (B0, rowB)):
        p('s_mov_b32 s%d, %d' % (S_T0, OFF_MOD + row * 1280))
        for k in range(5): p('buffer_load_dwordx4 %s, v%d, s[%d:%d], s%d offen offset:%d' % (vr(tmp + 4 * k, 4), vb + 1, S_WS, S_WS + 3, S_T0, k * 64))
        p('s_waitcnt vmcnt(0)')
        for k in range(20):
            p('v_lshlrev_b32 v%d, 16, v%d' % (dst + 2 * k, tmp + k)); p('v_and_b32 v%d, 0xffff0000, v%d' % (dst + 2 * k + 1, tmp + k))

def ln_compute(p, X0, D0, A0, B0, vstat, lds_base, t0, between=None):
    for k in range(20):
        p('v_lshlrev_b32 v%d, 16, v%d' % (D0 + 2 * k, X0 + k)); p('v_and_b32 v%d, 0xffff0000, v%d' % (D0 + 2 * k + 1, X0 + k))
    def reduce_all(acc, slot):
        p('v_mov_b32 v%d, v%d' % (t0 + 1, acc)); p('v_permlane16_swap_b32 v%d, v%d' % (acc, t0 + 1)); p('v_add_f32 v%d, v%d, v%d' % (acc, acc, t0 + 1))
        p('v_mov_b32 v%d, v%d' % (t0 + 1, acc)); p('v_permlane32_swap_b32 v%d, v%d' % (acc, t0 + 1)); p('v_add_f32 v%d, v%d, v%d' % (acc, acc, t0 + 1))
        p('s_lshl_b32 s%d, s%d, 6' % (S_T0, S_WAVE)); p('v_add_u32 v%d, s%d, v%d' % (t0 + 1, S_T0, vstat))
        p('ds_write_b32 v%d, v%d offset:%d' % (t0 + 1, acc, lds_base + slot * 256))
        p('s_waitcnt lgkmcnt(0)'); p('s_barrier')
        for w in range(4): p('ds_read_b32 v%d, v%d offset:%d' % (t0 + w, vstat, lds_base + slot * 256 + w * 64))
        p('s_waitcnt lgkmcnt(0)')
        p('v_add_f32 v%d, v%d, v%d' % (t0, t0, t0 + 1)); p('v_add_f32 v%d, v%d, v%d' % (t0 + 2, t0 + 2, t0 + 3)); p('v_add_f32 v%d, v%d, v%d' % (acc, t0, t0 + 2))
    a = t0 + 4; b = t0 + 5
    p('v_add_f32 v%d, v%d, v%d' % (a, D0, D0 + 1)); p('v_add_f32 v%d, v%d, v%d' % (b, D0 + 2, D0 + 3))
    for k in range(4, 40, 2):
        p('v_add_f32 v%d, v%d, v%d' % (a, a, D0 + k)); p('v_add_f32 v%d, v%d, v%d' % (b, b, D0 + k + 1))
    p('v_add_f32 v%d, v%d, v%d' % (a, a, b))
    reduce_all(a, 0)
    p('v_mul_f32 v%d, 0x%x, v%d' % (a, f2u(1.0 / 640), a))
    for k in range(40): p('v_sub_f32 v%d, v%d, v%d' % (D0 + k, D0 + k, a))
    p('v_mul_f32 v%d, v%d, v%d' % (a, D0, D0)); p('v_mul_f32 v%d, v%d, v%d' % (b, D0 + 1, D0 + 1))
    for k in range(2, 40, 2):
        p('v_fmac_f32 v%d, v%d, v%d' % (a, D0 + k, D0 + k)); p('v_fmac_f32 v%d, v%d, v%d' % (b, D0 + k + 1, D0 + k + 1))
    p('v_add_f32 v%d, v%d, v%d' % (a, a, b))
    reduce_all(a, 1)
    p('v_mov_b32 v%d, 0x%x' % (b, f2u(1e-5)))
    p('v_fmac_f32 v%d, 0x%x, v%d' % (b, f2u(1.0 / 640), a))
    p('v_rsq_f32 v%d, v%d' % (b, b))
    if between is None:
        for k in range(40):
            p('v_mul_f32 v%d, v%d, v%d' % (D0 + k, D0 + k, b))
            p('v_fma_f32 v%d, v%d, v%d, v%d' % (D0 + k, D0 + k, A0 + k, B0 + k))
    else:
        for k in range(40): p('v_mul_f32 v%d, v%d, v%d' % (D0 + k, D0 + k, b))
        between()
        for k in range(40): p('v_fma_f32 v%d, v%d, v%d, v%d' % (D0 + k, D0 + k, A0 + k, B0 + k))
    for k in range(20): p('v_cvt_pk_bf16_f32 v%d, v%d, v%d' % (X0 + k, D0 + 2 * k, D0 + 2 * k + 1))

def gen_k1(name):
    p = Prog()
    p.raw('.globl %s' % name); p.raw('.p2align 8'); p.raw('.type %s,@function' % name); p.label(name)
    p('s_cmp_ge_u32 s2, 128'); p('s_cbranch_scc1 K1_exit')
    srd(p, S_WS, KA['ws'], WS_BYTES); srd(p, 8, KA['x'], 2048 * 1280)
    p('v_lshrrev_b32 v3, 6, v0'); p('v_and_b32 v1, 63, v0'); p('v_readfirstlane_b32 s%d, v3' % S_WAVE)
    p('s_waitcnt lgkmcnt(0)')
    ln_setup(p, 4)
    X0 = 8; D0 = 28; A0 = 68; B0 = 108; T = 148
    p('s_mul_i32 s24, s2, %d' % (16 * 1280))
    for k in range(5): p('buffer_load_dwordx4 %s, v4, s[8:11], s24 offen offset:%d' % (vr(X0 + 4 * k, 4), k * 64))
    ln_load_mod(p, 4, A0, B0, 1, 0, D0)
    ln_compute(p, X0, D0, A0, B0, 6, 0, T)
    p('s_mul_i32 s24, s2, 20480'); p('s_mul_i32 s25, s%d, 5120' % S_WAVE); p('s_add_u32 s24, s24, s25'); p('s_add_u32 s24, s24, %d' % OFF_H)
    p('v_lshlrev_b32 v2, 4, v1')
    for k in range(5):
        if k == 4: p('s_add_u32 s24, s24, 4096')
        p('buffer_store_dwordx4 %s, v2, s[4:7], s24 offen offset:%d' % (vr(X0 + 4 * k, 4), (k % 4) * 1024))
    p('s_waitcnt vmcnt(0)')
    p.label('K1_exit')
    p('s_endpgm')
    return p.text(), kernel_desc(name, vgpr=160, accum=160, sgpr=64)

if __name__ == '__main__':
    t0, d0 = gen_k0('k0_kernel'); t1, d1 = gen_k1('k1_kernel')
    txt = '; @launch kernel=k0_kernel grid=(249,1,1) block=(256,1,1) lds=8192\n; @launch kernel=k1_kernel grid=(128,1,1) block=(256,1,1) lds=1024\n' + core.HEADER + t0 + t1 + d0 + d1
    open('pro.s', 'w').write(txt)
    print(len(txt))
```

```python
from core import *
import core
from core2 import ready

def flag_store(p, voff, foff_add_s, val_s, tmpv):
    p('v_mov_b32 v%d, s%d' % (tmpv, val_s))
    p('buffer_store_dword v%d, v%d, s[%d:%d], s%d offen sc1' % (tmpv, voff, S_WS, S_WS + 3, foff_add_s))

def one_lane_off(p, dst, tmp, off_s=None, const=0):
    if off_s is not None: p('v_mov_b32 v%d, s%d' % (dst, off_s))
    else: p('v_mov_b32 v%d, %d' % (dst, const))
    p('v_mov_b32 v%d, 0x7ff00000' % tmp); p('v_cmp_eq_u32 vcc, 0, v0'); p('v_cndmask_b32 v%d, v%d, v%d, vcc' % (dst, tmp, dst))

def tr_base(p, dst, rowbytes, rowmul, stg_s, t1, t2):
    p('v_lshrrev_b32 v%d, 4, v1' % t1); p('v_mul_u32_u24 v%d, %d, v%d' % (t1, rowmul, t1))
    p('v_bfe_u32 v%d, v1, 2, 2' % t2); p('v_add_u32 v%d, v%d, v%d' % (t1, t1, t2))
    p('v_mul_u32_u24 v%d, %d, v%d' % (t1, rowbytes, t1)); p('v_and_b32 v%d, 3, v1' % t2); p('v_lshlrev_b32 v%d, 3, v%d' % (t2, t2))
    p('v_add_u32 v%d, v%d, v%d' % (dst, t1, t2)); p('v_add_u32 v%d, s%d, v%d' % (dst, stg_s, dst))

class WStream:
    def __init__(self, p, lg, wres_v, base):
        self.p = p; self.lg = lg; self.v = wres_v; self.base = base
    def load(self, k):
        b = self.base + 8 * (k & 1)
        self.p('ds_read_b128 %s, v%d offset:%d' % (vr(b, 4), self.v, k * 2048)); self.lg.issue(('w', k))
        self.p('ds_read_b128 %s, v%d offset:%d' % (vr(b + 4, 4), self.v, k * 2048 + 1024)); self.lg.issue(('w', k))
    def operand(self, o, half):
        kind, n = UM[o]
        if kind == 'reg': return unit_reg(n, 4 * half, 4)
        self.lg.wait(('w', n))
        return vr(self.base + 8 * (n & 1) + 4 * half, 4)
    def done(self, o, wrap=True):
        kind, n = UM[o]
        if kind == 'lds':
            if n + 2 < 12: self.load(n + 2)
            elif wrap: self.load(n + 2 - 12)

S_SEG = S_STEP
S_HO = 26; S_LB = 27; S_LB1 = 28; S_LB2 = 29; S_OUT = 30; S_FL = 44; S_VAL = 45

def gen_AP(p, st=False):
    lg = Cnt(p, 'lgkmcnt', 15); vm = Cnt(p, 'vmcnt', 63)
    h = S_IDX
    p('s_load_dwordx2 s[%d:%d], s[0:1], %d' % (S_W1, S_W1 + 1, KA['Wq'])); p('s_load_dwordx2 s[%d:%d], s[0:1], %d' % (S_W2, S_W2 + 1, KA['Wk']))
    common_lane_setup(p)
    p('s_waitcnt lgkmcnt(0)')
    p('s_cmp_ge_u32 s%d, 2' % S_WAVE)
    p('s_cselect_b32 s%d, s%d, s%d' % (S_W1, S_W2, S_W1)); p('s_cselect_b32 s%d, s%d, s%d' % (S_W1 + 1, S_W2 + 1, S_W1 + 1))
    p('s_mov_b32 s%d, 0x%x' % (S_W1 + 2, 640 * 12288)); p('s_mov_b32 s%d, 0x00020000' % (S_W1 + 3))
    one_lane_off(p, 8, 80, off_s=None, const=0); p('s_lshl_b32 s%d, s%d, %d' % (S_T0, h, FSH)); p('s_add_u32 s%d, s%d, %d' % (S_FL, S_T0, F_QK))
    p('s_mul_i32 s%d, s%d, 24576' % (S_T0, S_WAVE)); p('s_add_u32 s%d, s%d, 65536' % (S_T0, S_T0)); p('v_add_u32 v15, s%d, v2' % S_T0)
    p('s_lshl_b32 s%d, s%d, 14' % (S_T4, S_WAVE))
    voffs = [80, 81, 82]
    stage_offsets(p, voffs, 6, 12288, 1, 83, 84)
    tr_base(p, 85, 96, 8, S_T4, 83, 84)
    p('s_mul_i32 s%d, s%d, 384' % (S_T5, h)); p('s_and_b32 s%d, s%d, 1' % (S_T0, S_WAVE)); p('s_mul_i32 s%d, s%d, 192' % (S_T0, S_T0)); p('s_add_u32 s%d, s%d, s%d' % (S_T5, S_T5, S_T0))
    jobs = []
    for u in range(20):
        for ch in range(2):
            def soff(dst, u=u, ch=ch): p('s_add_u32 s%d, s%d, %d' % (dst, S_T5, u * 32 * 12288 + ch * 96))
            dests = []
            for xx in range(3):
                x = ch * 3 + xx
                kind, n = UM[(u >> 1) * 6 + x]; half = u & 1
                if kind == 'reg': dests.append((xx * 32, ('reg', unit_reg(n, 4 * half, 2), unit_reg(n, 4 * half + 2, 2))))
                else: dests.append((xx * 32, ('lds', n * 2048 + half * 1024)))
            jobs.append(dict(srd=S_W1, soff=soff, dests=dests))
    load_weights_type1(p, jobs, 85, 3072, 5, voffs, 3, 96, lg, vm, 15, 88, S_T4)
    p('s_barrier')
    stamp(p, 3, st)
    ready(p)
    stamp(p, 1, st)
    p('s_mul_i32 s%d, s%d, 24576' % (S_OUT, h)); p('s_lshr_b32 s%d, s%d, 1' % (S_T0, S_WAVE)); p('s_mul_i32 s%d, s%d, 12288' % (S_T0, S_T0)); p('s_add_u32 s%d, s%d, s%d' % (S_OUT, S_OUT, S_T0))
    p('s_and_b32 s%d, s%d, 1' % (S_T0, S_WAVE)); p('s_mul_i32 s%d, s%d, 3072' % (S_T0, S_T0)); p('s_add_u32 s%d, s%d, s%d' % (S_OUT, S_OUT, S_T0)); p('s_add_u32 s%d, s%d, %d' % (S_OUT, S_OUT, OFF_QK))
    p('s_lshr_b32 s%d, s%d, 1' % (S_T0, S_WAVE)); p('s_and_b32 s%d, s%d, 1' % (S_T1, S_WAVE)); p('s_mul_i32 s%d, s%d, 5120' % (S_T1, S_T1))
    p('s_mul_i32 s%d, s%d, 20480' % (S_T2, S_T0)); p('s_add_u32 s%d, s%d, s%d' % (S_T5, S_T2, S_T1)); p('s_add_u32 s%d, s%d, %d' % (S_T5, S_T5, OFF_H))
    p('s_mul_i32 s%d, s%d, 10240' % (S_T2, S_T0)); p('s_add_u32 s%d, s%d, s%d' % (S_T6, S_T2, S_T1))
    def dma(slot_s, goff_s):
        for i in range(5):
            p('s_add_u32 s%d, s%d, s%d' % (S_T0, slot_s, S_T6));
            if i: p('s_add_u32 s%d, s%d, %d' % (S_T0, S_T0, i * 1024))
            p('s_mov_b32 m0, s%d' % S_T0)
            p('s_add_u32 s%d, s%d, %d' % (S_T1, goff_s, i * 1024))
            p('buffer_load_dwordx4 v2, s[%d:%d], s%d offen sc1 lds' % (S_WS, S_WS + 3, S_T1))
    p('s_mov_b32 s%d, 0' % S_LB); p('s_mov_b32 s%d, 20480' % S_LB1); p('s_mov_b32 s%d, 40960' % S_LB2)
    p('s_mov_b32 s%d, s%d' % (S_HO, S_T5))
    dma(S_LB, S_HO); p('s_add_u32 s%d, s%d, 10240' % (S_HO, S_HO)); dma(S_LB1, S_HO)
    p('s_add_u32 s%d, s%d, %d' % (S_HO, S_HO, 40960 - 10240))
    ws = WStream(p, lg, 15, 80)
    ACC = 16; HF = 64; OUT = 96
    p('s_mov_b32 s%d, 0' % S_SEG)
    ws.load(0); ws.load(1)
    first = p.newlabel('LAPf')
    p('s_waitcnt vmcnt(5)')
    p('s_branch %s' % first)
    loop = p.newlabel('LAPl'); p.label(loop)
    p('s_waitcnt vmcnt(12)')
    p.label(first)
    lg.q = [('w', 0), ('w', 0), ('w', 1), ('w', 1)]
    for hf in range(2):
        if hf == 1: p('s_waitcnt vmcnt(5)')
        p('s_barrier')
        if hf == 1:
            flag_store(p, 8, S_FL, S_SEG, 9)
        dma(S_LB2, S_HO)
        p('s_add_u32 s%d, s%d, %d' % (S_HO, S_HO, 10240 if hf == 0 else 40960 - 10240))
        p('v_add_u32 v10, s%d, v2' % S_LB)
        def hread(uu):
            b = HF + 8 * (uu & 1)
            for tau in range(2):
                p('ds_read_b128 %s, v10 offset:%d' % (vr(b + 4 * tau, 4), tau * 10240 + uu * 1024)); lg.issue(('h', uu))
        hread(0)
        for uu in range(10):
            u = 10 * hf + uu; t = u >> 1; half = u & 1
            if uu + 1 < 10: hread(uu + 1)
            lg.wait(('h', uu))
            for x in range(6):
                o = t * 6 + x
                wop = ws.operand(o, half)
                for tau in range(2):
                    a = ACC + 8 * x + 4 * tau
                    p('v_mfma_f32_16x16x32_bf16 %s, %s, %s, %s' % (vr(a, 4), wop, vr(HF + 8 * (uu & 1) + 4 * tau, 4), '0' if u == 0 else vr(a, 4)))
                if half == 1: ws.done(o)
        p('s_mov_b32 s%d, s%d' % (S_T0, S_LB)); p('s_mov_b32 s%d, s%d' % (S_LB, S_LB1)); p('s_mov_b32 s%d, s%d' % (S_LB1, S_LB2)); p('s_mov_b32 s%d, s%d' % (S_LB2, S_T0))
    for pr in range(3):
        for tau in range(2):
            o = OUT + 4 * ((pr * 2 + tau) % 6)
            a0 = ACC + 8 * (2 * pr) + 4 * tau; a1 = ACC + 8 * (2 * pr + 1) + 4 * tau
            p('v_cvt_pk_bf16_f32 v%d, v%d, v%d' % (o, a0, a0 + 1)); p('v_cvt_pk_bf16_f32 v%d, v%d, v%d' % (o + 1, a0 + 2, a0 + 3))
            p('v_cvt_pk_bf16_f32 v%d, v%d, v%d' % (o + 2, a1, a1 + 1)); p('v_cvt_pk_bf16_f32 v%d, v%d, v%d' % (o + 3, a1 + 2, a1 + 3))
            p('s_add_u32 s%d, s%d, %d' % (S_T0, S_OUT, tau * 6144 + pr * 1024))
            p('buffer_store_dwordx4 %s, v2, s[%d:%d], s%d offen sc1' % (vr(o, 4), S_WS, S_WS + 3, S_T0))
    p('s_add_u32 s%d, s%d, %d' % (S_OUT, S_OUT, 32 * 24576))
    p('s_add_u32 s%d, s%d, 1' % (S_SEG, S_SEG))
    l0 = p.newlabel('LAP0'); p('s_cmp_lg_u32 s%d, 1' % S_SEG); p('s_cbranch_scc1 %s' % l0)
    p('s_waitcnt vmcnt(0)'); p('s_barrier'); flag_store(p, 8, S_FL, S_SEG, 9)
    p.label(l0)
    p('s_cmp_lt_u32 s%d, s%d' % (S_SEG, S_NST)); p('s_cbranch_scc1 %s' % loop)
    p('s_waitcnt vmcnt(0) lgkmcnt(0)'); p('s_barrier')
    flag_store(p, 8, S_FL, S_SEG, 9)

BP_H = 0; BP_VX = 40960
def gen_BP(p, st=False):
    lg = Cnt(p, 'lgkmcnt', 15); vm = Cnt(p, 'vmcnt', 63)
    h = S_IDX
    srd(p, S_W1, KA['Wv'], 640 * 12288); srd(p, S_W2, KA['Wo'], 32 * 192 * 1280)
    common_lane_setup(p)
    p('s_waitcnt lgkmcnt(0)')
    one_lane_off(p, 8, 80, off_s=None, const=0); p('s_lshl_b32 s%d, s%d, %d' % (S_T0, h, FSH)); p('s_add_u32 s%d, s%d, %d' % (S_FL, S_T0, F_VO))
    p('s_mul_i32 s%d, s%d, 24576' % (S_T0, S_WAVE)); p('s_add_u32 s%d, s%d, 65536' % (S_T0, S_T0)); p('v_add_u32 v15, s%d, v2' % S_T0)
    p('s_lshl_b32 s%d, s%d, 14' % (S_T4, S_WAVE))
    voffs = [80, 81, 82]
    stage_offsets(p, voffs, 6, 12288, 1, 83, 84)
    tr_base(p, 85, 96, 8, S_T4, 83, 84)
    p('s_mul_i32 s%d, s%d, 384' % (S_T5, h)); p('s_mul_i32 s%d, s%d, 96' % (S_T0, S_WAVE)); p('s_add_u32 s%d, s%d, s%d' % (S_T5, S_T5, S_T0))
    jobs = []
    for u in range(20):
        def soff(dst, u=u): p('s_add_u32 s%d, s%d, %d' % (dst, S_T5, u * 32 * 12288))
        dests = []
        for x in range(3):
            kind, n = UM[(u >> 1) * 3 + x]; half = u & 1
            if kind == 'reg': dests.append((x * 32, ('reg', unit_reg(n, 4 * half, 2), unit_reg(n, 4 * half + 2, 2))))
            else: dests.append((x * 32, ('lds', n * 2048 + half * 1024)))
        jobs.append(dict(srd=S_W1, soff=soff, dests=dests))
    load_weights_type1(p, jobs, 85, 3072, 5, voffs, 3, 96, lg, vm, 15, 88, S_T4)
    voffs = [100, 101, 102, 103, 104]
    stage_offsets(p, voffs, 10, 1280, 1, 83, 84)
    tr_base(p, 86, 160, 4, S_T4, 83, 84)
    p('s_mul_i32 s%d, s%d, %d' % (S_T5, h, 192 * 1280)); p('s_mul_i32 s%d, s%d, 320' % (S_T0, S_WAVE)); p('s_add_u32 s%d, s%d, s%d' % (S_T5, S_T5, S_T0))
    jobs = []
    for u in range(6):
        for ch in range(2):
            def soff(dst, u=u, ch=ch): p('s_add_u32 s%d, s%d, %d' % (dst, S_T5, u * 32 * 1280 + ch * 160))
            dests = []
            for x in range(5):
                cc = ch * 5 + x
                kind, n = UM[30 + cc * 3 + (u >> 1)]; half = u & 1
                if kind == 'reg': dests.append((x * 32, ('reg', unit_reg(n, 4 * half, 2), unit_reg(n, 4 * half + 2, 2))))
                else: dests.append((x * 32, ('lds', n * 2048 + half * 1024)))
            jobs.append(dict(srd=S_W2, soff=soff, dests=dests))
    load_weights_type1(p, jobs, 86, 5120, 3, voffs, 5, 160, lg, vm, 15, 88, S_T4, zrows=16)
    p('s_barrier')
    stamp(p, 3, st)
    ready(p)
    stamp(p, 1, st)
    for x in range(3):
        p('s_mul_i32 s%d, s%d, 3' % (S_T0, S_WAVE)); p('s_add_u32 s%d, s%d, %d' % (S_T0, S_T0, x))
        p('s_lshr_b32 s%d, s%d, 1' % (S_T1, S_T0)); p('s_lshl_b32 s%d, s%d, 10' % (S_T1, S_T1))
        p('s_and_b32 s%d, s%d, 1' % (S_T0, S_T0)); p('s_lshl_b32 s%d, s%d, 3' % (S_T0, S_T0)); p('s_add_u32 s%d, s%d, s%d' % (S_T0, S_T0, S_T1)); p('s_add_u32 s%d, s%d, %d' % (S_T0, S_T0, BP_VX))
        p('v_add_u32 v%d, s%d, v2' % (10 + x, S_T0))
    p('v_add_u32 v13, %d, v2' % BP_VX)
    p('s_mul_i32 s%d, s%d, 10240' % (S_T6, S_WAVE)); p('s_add_u32 s%d, s%d, %d' % (S_HO, S_T6, OFF_H))
    def dma():
        for i in range(10):
            p('s_add_u32 s%d, s%d, %d' % (S_T0, S_T6, BP_H + i * 1024)); p('s_mov_b32 m0, s%d' % S_T0)
            p('s_add_u32 s%d, s%d, %d' % (S_T1, S_HO, i * 1024))
            p('buffer_load_dwordx4 v2, s[%d:%d], s%d offen sc1 lds' % (S_WS, S_WS + 3, S_T1))
    dma()
    p('s_mul_i32 s%d, s%d, %d' % (S_OUT, S_WAVE, 10 * 32768)); p('s_lshl_b32 s%d, s%d, 10' % (S_T0, h)); p('s_add_u32 s%d, s%d, s%d' % (S_OUT, S_OUT, S_T0)); p('s_add_u32 s%d, s%d, %d' % (S_OUT, S_OUT, OFF_VO))
    ws = WStream(p, lg, 15, 56)
    ACCV = 16; HF = 40; VF = 72; ACCO = 16; OUT = 32
    p('s_mov_b32 s%d, 0' % S_SEG)
    ws.load(0); ws.load(1)
    first = p.newlabel('LBPf')
    p('s_waitcnt vmcnt(0)'); p('s_branch %s' % first)
    loop = p.newlabel('LBPl'); p.label(loop)
    p('s_waitcnt vmcnt(10)')
    p.label(first)
    lg.q = [('w', 0), ('w', 0), ('w', 1), ('w', 1)]
    p('s_barrier')
    def hread(u):
        b = HF + 8 * (u & 1)
        for tau in range(2):
            p('ds_read_b128 %s, v2 offset:%d' % (vr(b + 4 * tau, 4), BP_H + tau * 20480 + u * 1024)); lg.issue(('h', u))
    hread(0)
    for u in range(20):
        t = u >> 1; half = u & 1
        if u + 1 < 20: hread(u + 1)
        lg.wait(('h', u))
        for x in range(3):
            o = t * 3 + x
            wop = ws.operand(o, half)
            for tau in range(2):
                a = ACCV + 8 * x + 4 * tau
                p('v_mfma_f32_16x16x32_bf16 %s, %s, %s, %s' % (vr(a, 4), wop, vr(HF + 8 * (u & 1) + 4 * tau, 4), '0' if u == 0 else vr(a, 4)))
            if half == 1: ws.done(o)
    for x in range(3):
        for tau in range(2):
            a = ACCV + 8 * x + 4 * tau
            p('v_cvt_pk_bf16_f32 v%d, v%d, v%d' % (a, a, a + 1)); p('v_cvt_pk_bf16_f32 v%d, v%d, v%d' % (a + 1, a + 2, a + 3))
            p('ds_write_b64 v%d, %s offset:%d' % (10 + x, vr(a, 2), tau * 6144)); lg.issue('vx')
    p('s_waitcnt vmcnt(0)')
    lg.wait('vx')
    p('s_barrier')
    flag_store(p, 8, S_FL, S_SEG, 9)
    p('s_add_u32 s%d, s%d, 40960' % (S_HO, S_HO)); dma()
    for tau in range(2):
        for u in range(6):
            p('ds_read_b128 %s, v13 offset:%d' % (vr(VF + 4 * (tau * 6 + u), 4), tau * 6144 + u * 1024)); lg.issue(('v', tau * 6 + u))
    def epi(cc):
        a = ACCO + 8 * (cc & 1); o = OUT + 4 * (cc & 1)
        p('v_cvt_pk_bf16_f32 v%d, v%d, v%d' % (o, a, a + 1)); p('v_cvt_pk_bf16_f32 v%d, v%d, v%d' % (o + 1, a + 2, a + 3))
        p('v_cvt_pk_bf16_f32 v%d, v%d, v%d' % (o + 2, a + 4, a + 5)); p('v_cvt_pk_bf16_f32 v%d, v%d, v%d' % (o + 3, a + 6, a + 7))
        p('s_add_u32 s%d, s%d, %d' % (S_T0, S_OUT, cc * 32768))
        p('buffer_store_dwordx4 %s, v2, s[%d:%d], s%d offen sc1' % (vr(o, 4), S_WS, S_WS + 3, S_T0))
    for cc in range(10):
        for u in range(6):
            o = 30 + cc * 3 + (u >> 1); half = u & 1
            wop = ws.operand(o, half)
            for tau in range(2):
                if cc == 0: lg.wait(('v', tau * 6 + u))
                a = ACCO + 8 * (cc & 1) + 4 * tau
                p('v_mfma_f32_16x16x32_bf16 %s, %s, %s, %s' % (vr(a, 4), vr(VF + 4 * (tau * 6 + u), 4), wop, '0' if u == 0 else vr(a, 4)))
            if half == 1: ws.done(o)
            if u == 2 and cc > 0: epi(cc - 1)
    epi(9)
    p('s_add_u32 s%d, s%d, %d' % (S_OUT, S_OUT, 40 * 32768))
    p('s_add_u32 s%d, s%d, 1' % (S_SEG, S_SEG))
    l0 = p.newlabel('LBP0'); p('s_cmp_lg_u32 s%d, 1' % S_SEG); p('s_cbranch_scc1 %s' % l0)
    p('s_waitcnt vmcnt(0)'); p('s_barrier'); flag_store(p, 8, S_FL, S_SEG, 9)
    p.label(l0)
    p('s_cmp_lt_u32 s%d, s%d' % (S_SEG, S_NST)); p('s_cbranch_scc1 %s' % loop)
    p('s_waitcnt vmcnt(0) lgkmcnt(0)'); p('s_barrier')
    flag_store(p, 8, S_FL, S_SEG, 9)
```

```python
from core import *
import core, pro
from roles2 import flag_store, one_lane_off, tr_base
from core2 import ready, parity_wait2
S_SEG = S_STEP
OUT_FLAG = ''
S_HO = 26; S_OUT = 30; S_FL = 44; S_SET = 45; S_J = 27

def lane_flag_off(p, dst, n, tmp):
    p('v_min_u32 v%d, %d, v1' % (dst, n - 1)); p('v_lshlrev_b32 v%d, %d, v%d' % (dst, FSH, dst))

def gen_L2(p, st=False):
    common_lane_setup(p)
    p('s_and_b32 s%d, s%d, 1' % (S_J, S_IDX)); p('s_lshr_b32 s%d, s%d, 1' % (S_SET, S_IDX))
    one_lane_off(p, 8, 9, const=0)
    p('s_lshl_b32 s%d, s%d, %d' % (S_T0, S_IDX, FSH)); p('s_add_u32 s%d, s%d, %d' % (S_FL, S_T0, F_H2))
    lane_flag_off(p, 0, 40, 9)
    parity_wait2(p, 2048)
    pro.ln_setup(p, 4)
    X0 = 16; D0 = 36; A0 = 76; B0 = 116; T = 156
    import fused
    fused.mod_load_sc1(p, 4, A0, B0, 4, 3, D0)
    stamp(p, 1, st)
    p('s_mov_b32 s%d, s%d' % (S_SEG, S_SET))
    loop = p.newlabel('LL2'); p.label(loop)
    p('s_add_u32 s%d, s%d, 1' % (S_T3, S_SEG)); wait_flags_w0(p, 0, BLK_FX * BLK, S_T3, 7, 1, S_COMM)
    p('s_barrier')
    p('s_lshl_b32 s%d, s%d, 1' % (S_T0, S_SEG)); p('s_add_u32 s%d, s%d, s%d' % (S_T0, S_T0, S_J)); p('s_mul_i32 s%d, s%d, %d' % (S_T1, S_T0, 16 * 1280)); p('s_add_u32 s%d, s%d, %d' % (S_T1, S_T1, OFF_X1))
    for k in range(5): p('buffer_load_dwordx4 %s, v4, s[%d:%d], s%d offen offset:%d sc1' % (vr(X0 + 4 * k, 4), S_WS, S_WS + 3, S_T1, k * 64))
    p('s_mul_i32 s%d, s%d, 20480' % (S_OUT, S_T0)); p('s_mul_i32 s%d, s%d, 5120' % (S_T1, S_WAVE)); p('s_add_u32 s%d, s%d, s%d' % (S_OUT, S_OUT, S_T1)); p('s_add_u32 s%d, s%d, %d' % (S_OUT, S_OUT, OFF_H2))
    p('s_waitcnt vmcnt(0)')
    pro.ln_compute(p, X0, D0, A0, B0, 6, 0, T)
    for k in range(5):
        if k == 4: p('s_add_u32 s%d, s%d, 4096' % (S_OUT, S_OUT))
        p('buffer_store_dwordx4 %s, v2, s[%d:%d], s%d offen offset:%d sc1' % (vr(X0 + 4 * k, 4), S_WS, S_WS + 3, S_OUT, (k % 4) * 1024))
    p('s_waitcnt vmcnt(0)'); p('s_barrier')
    p('s_add_u32 s%d, s%d, 1' % (S_T3, S_SEG)); flag_store(p, 8, S_FL, S_T3, 9)
    p('s_add_u32 s%d, s%d, 2' % (S_SEG, S_SEG)); p('s_cmp_lt_u32 s%d, s%d' % (S_SEG, S_NST)); p('s_cbranch_scc1 %s' % loop)

def gen_F1(p, st=False):
    lg = Cnt(p, 'lgkmcnt', 15); vm = Cnt(p, 'vmcnt', 63)
    srd(p, S_W1, KA['wg'], 640 * 3072); srd(p, S_W2, KA['wu'], 640 * 3072)
    common_lane_setup(p)
    p('s_waitcnt lgkmcnt(0)')
    p('s_cmp_ge_u32 s%d, 24' % S_IDX); p('s_cselect_b32 s%d, 1, 0' % S_SET)
    p('s_mul_i32 s%d, s%d, 24' % (S_T0, S_SET)); p('s_sub_u32 s%d, s%d, s%d' % (S_J, S_IDX, S_T0))
    one_lane_off(p, 8, 9, const=0)
    p('s_lshl_b32 s%d, s%d, %d' % (S_T0, S_IDX, FSH)); p('s_add_u32 s%d, s%d, %d' % (S_FL, S_T0, F_HM))
    p('v_and_b32 v0, 1, v1'); p('s_lshl_b32 s%d, s%d, 1' % (S_T0, S_SET)); p('v_add_u32 v0, s%d, v0' % S_T0); p('v_lshlrev_b32 v0, %d, v0' % FSH)
    p('s_lshl_b32 s%d, s%d, 14' % (S_T4, S_WAVE))
    voffs = [80, 81]
    stage_offsets(p, voffs, 4, 3072, 1, 83, 84)
    tr_base(p, 85, 64, 8, S_T4, 83, 84)
    p('s_lshl_b32 s%d, s%d, 7' % (S_T5, S_J)); p('s_lshr_b32 s%d, s%d, 1' % (S_T0, S_WAVE)); p('s_lshl_b32 s%d, s%d, 6' % (S_T0, S_T0)); p('s_add_u32 s%d, s%d, s%d' % (S_T5, S_T5, S_T0))
    def wreg(mat, x, u, lo=0, n=4):
        f = (u * 4 + mat * 2 + x)
        return ar(4 * f + lo, n) if f < 64 else vr(128 + 4 * (f - 64) + lo, n)
    jobs = []
    for u in range(20):
        for mat in range(2):
            def soff(dst, u=u): p('s_add_u32 s%d, s%d, %d' % (dst, S_T5, u * 32 * 3072))
            dests = [(x * 32, ('reg', wreg(mat, x, u, 0, 2), wreg(mat, x, u, 2, 2))) for x in range(2)]
            jobs.append(dict(srd=S_W1 if mat == 0 else S_W2, soff=soff, dests=dests))
    ready(p)
    p('s_sleep 100')
    load_weights_type1(p, jobs, 85, 2048, 8, voffs, 2, 64, lg, vm, 15, 88, S_T4)
    p('s_barrier')
    stamp(p, 1, st)
    p('s_mul_i32 s%d, s%d, 10240' % (S_T6, S_WAVE))
    p('s_and_b32 s%d, s%d, 1' % (S_T0, S_WAVE)); p('s_mul_i32 s%d, s%d, 20480' % (S_T0, S_T0)); p('v_add_u32 v10, s%d, v2' % S_T0)
    ACC = 16; HF = 32; OUT = 48
    p('s_mov_b32 s%d, s%d' % (S_SEG, S_SET))
    loop = p.newlabel('LF1'); p.label(loop)
    p('s_add_u32 s%d, s%d, 1' % (S_T3, S_SEG)); wait_flags_w0(p, 0, F_H2, S_T3, 7, 1)
    p('s_barrier')
    p('s_mul_i32 s%d, s%d, 40960' % (S_HO, S_SEG)); p('s_add_u32 s%d, s%d, s%d' % (S_HO, S_HO, S_T6)); p('s_add_u32 s%d, s%d, %d' % (S_HO, S_HO, OFF_H2))
    for i in range(10):
        p('s_add_u32 s%d, s%d, %d' % (S_T0, S_T6, i * 1024)); p('s_mov_b32 m0, s%d' % S_T0)
        p('s_add_u32 s%d, s%d, %d' % (S_T1, S_HO, i * 1024))
        p('buffer_load_dwordx4 v2, s[%d:%d], s%d offen sc1 lds' % (S_WS, S_WS + 3, S_T1))
    p('s_waitcnt vmcnt(0)'); p('s_barrier')
    lg.reset()
    def hread(u):
        p('ds_read_b128 %s, v10 offset:%d' % (vr(HF + 4 * (u % 4), 4), u * 1024)); lg.issue(('h', u))
    for u in range(3): hread(u)
    for u in range(20):
        if u + 3 < 20: hread(u + 3)
        lg.wait(('h', u))
        for mat in range(2):
            for x in range(2):
                a = ACC + 8 * mat + 4 * x
                p('v_mfma_f32_16x16x32_bf16 %s, %s, %s, %s' % (vr(a, 4), wreg(mat, x, u), vr(HF + 4 * (u % 4), 4), '0' if u == 0 else vr(a, 4)))
    for k in range(8): p('v_mul_f32 v%d, v%d, v%d' % (ACC + k, ACC + k, ACC + 8 + k))
    for k in range(4): p('v_cvt_pk_bf16_f32 v%d, v%d, v%d' % (OUT + k, ACC + 2 * k, ACC + 2 * k + 1))
    p('s_mul_i32 s%d, s%d, 98304' % (S_OUT, S_SEG)); p('s_and_b32 s%d, s%d, 1' % (S_T0, S_WAVE)); p('s_mul_i32 s%d, s%d, 49152' % (S_T0, S_T0)); p('s_add_u32 s%d, s%d, s%d' % (S_OUT, S_OUT, S_T0))
    p('s_lshl_b32 s%d, s%d, 1' % (S_T0, S_J)); p('s_lshr_b32 s%d, s%d, 1' % (S_T1, S_WAVE)); p('s_add_u32 s%d, s%d, s%d' % (S_T0, S_T0, S_T1)); p('s_lshl_b32 s%d, s%d, 10' % (S_T0, S_T0))
    p('s_add_u32 s%d, s%d, s%d' % (S_OUT, S_OUT, S_T0)); p('s_add_u32 s%d, s%d, %d' % (S_OUT, S_OUT, OFF_HM))
    p('buffer_store_dwordx4 %s, v2, s[%d:%d], s%d offen sc1' % (vr(OUT, 4), S_WS, S_WS + 3, S_OUT))
    p('s_waitcnt vmcnt(0)'); p('s_barrier')
    p('s_add_u32 s%d, s%d, 1' % (S_T3, S_SEG)); flag_store(p, 8, S_FL, S_T3, 9)
    p('s_add_u32 s%d, s%d, 2' % (S_SEG, S_SEG)); p('s_cmp_lt_u32 s%d, s%d' % (S_SEG, S_NST)); p('s_cbranch_scc1 %s' % loop)

def gen_F2(p, st=False):
    lg = Cnt(p, 'lgkmcnt', 15); vm = Cnt(p, 'vmcnt', 63)
    srd(p, S_W1, KA['wd'], 1536 * 1280); srd(p, S_W2, KA['out'], 2048 * 1280)
    common_lane_setup(p)
    p('s_waitcnt lgkmcnt(0)')
    p('s_cmp_ge_u32 s%d, 10' % S_IDX); p('s_cselect_b32 s%d, 1, 0' % S_SET)
    p('s_mul_i32 s%d, s%d, 10' % (S_T0, S_SET)); p('s_sub_u32 s%d, s%d, s%d' % (S_J, S_IDX, S_T0))
    p('v_min_u32 v0, 23, v1'); p('s_mul_i32 s%d, s%d, 24' % (S_T0, S_SET)); p('v_add_u32 v0, s%d, v0' % S_T0); p('v_lshlrev_b32 v0, %d, v0' % FSH)
    p('s_lshl_b32 s%d, s%d, 14' % (S_T4, S_WAVE))
    voffs = [80]
    stage_offsets(p, voffs, 2, 1280, 1, 83, 84)
    tr_base(p, 85, 32, 4, S_T4, 83, 84)
    p('s_lshl_b32 s%d, s%d, 2' % (S_T5, S_J)); p('s_add_u32 s%d, s%d, s%d' % (S_T5, S_T5, S_WAVE)); p('s_lshl_b32 s%d, s%d, 5' % (S_T5, S_T5))
    p('s_mov_b32 s%d, s%d' % (S_T7 + 1, S_T5))
    jobs = []
    for u in range(48):
        def soff(dst, u=u): p('s_add_u32 s%d, s%d, %d' % (dst, S_T5, u * 32 * 1280))
        jobs.append(dict(srd=S_W1, soff=soff, dests=[(0, ('reg', ar(4 * u, 2), ar(4 * u + 2, 2)))]))
    ready(p)
    p('s_sleep 100')
    load_weights_type1(p, jobs, 85, 1024, 16, voffs, 1, 32, lg, vm, 15, 88, S_T4, zrows=16)
    p('s_barrier')
    p('v_lshrrev_b32 v9, 4, v1'); p('v_lshlrev_b32 v9, 3, v9'); p('v_add_u32 v9, s%d, v9' % S_T5)
    p('v_and_b32 v11, 15, v1'); p('v_mul_u32_u24 v11, 1280, v11'); p('v_add_u32 v11, v11, v9')
    p('s_mov_b32 s%d, %d' % (S_T0, OFF_MOD + 5 * 1280))
    p('buffer_load_dwordx2 v[30:31], v9, s[%d:%d], s%d offen sc1' % (S_WS, S_WS + 3, S_T0))
    p('s_waitcnt vmcnt(0)')
    p('v_lshlrev_b32 v24, 16, v30'); p('v_and_b32 v25, 0xffff0000, v30'); p('v_lshlrev_b32 v26, 16, v31'); p('v_and_b32 v27, 0xffff0000, v31')
    stamp(p, 1, st)
    p('s_mul_i32 s%d, s%d, 24576' % (S_T6, S_WAVE))
    ACC = 16; HF = 32; XR = 64
    p('s_mov_b32 s%d, s%d' % (S_SEG, S_SET))
    loop = p.newlabel('LF2'); p.label(loop)
    p('s_add_u32 s%d, s%d, 1' % (S_T3, S_SEG)); wait_flags_w0(p, 0, F_HM, S_T3, 7, 1)
    p('s_barrier')
    p('s_mul_i32 s%d, s%d, 98304' % (S_HO, S_SEG)); p('s_add_u32 s%d, s%d, %d' % (S_HO, S_HO, OFF_HM))
    p('s_and_b32 s%d, s%d, 1' % (S_T0, S_WAVE)); p('s_mul_i32 s%d, s%d, 49152' % (S_T0, S_T0)); p('s_lshr_b32 s%d, s%d, 1' % (S_T1, S_WAVE)); p('s_mul_i32 s%d, s%d, 24576' % (S_T1, S_T1))
    p('s_add_u32 s%d, s%d, s%d' % (S_T6, S_T0, S_T1)); p('s_add_u32 s%d, s%d, s%d' % (S_HO, S_HO, S_T6))
    for i in range(24):
        p('s_add_u32 s%d, s%d, %d' % (S_T0, S_T6, i * 1024)); p('s_mov_b32 m0, s%d' % S_T0)
        p('s_add_u32 s%d, s%d, %d' % (S_T1, S_HO, i * 1024))
        p('buffer_load_dwordx4 v2, s[%d:%d], s%d offen sc1 lds' % (S_WS, S_WS + 3, S_T1))
    p('s_mul_i32 s%d, s%d, %d' % (S_OUT, S_SEG, 32 * 1280)); p('s_add_u32 s%d, s%d, %d' % (S_T1, S_OUT, OFF_X1))
    p('buffer_load_dwordx2 %s, v11, s[%d:%d], s%d offen sc1' % (vr(XR, 2), S_WS, S_WS + 3, S_T1))
    p('s_add_u32 s%d, s%d, %d' % (S_T1, S_T1, 16 * 1280))
    p('buffer_load_dwordx2 %s, v11, s[%d:%d], s%d offen sc1' % (vr(XR + 2, 2), S_WS, S_WS + 3, S_T1))
    p('s_waitcnt vmcnt(0)'); p('s_barrier')
    lg.reset()
    def hread(u):
        for tau in range(2):
            p('ds_read_b128 %s, v12 offset:%d' % (vr(HF + 8 * (u % 4) + 4 * tau, 4), u * 1024) if tau == 0 else
              'ds_read_b128 %s, v13 offset:%d' % (vr(HF + 8 * (u % 4) + 4 * tau, 4), u * 1024))
            lg.issue(('h', u))
    p('v_mov_b32 v12, v2'); p('v_add_u32 v13, 49152, v2')
    for u in range(3): hread(u)
    for u in range(48):
        if u + 3 < 48: hread(u + 3)
        lg.wait(('h', u))
        for tau in range(2):
            a = ACC + 4 * tau
            p('v_mfma_f32_16x16x32_bf16 %s, %s, %s, %s' % (vr(a, 4), ar(4 * u, 4), vr(HF + 8 * (u % 4) + 4 * tau, 4), '0' if u == 0 else vr(a, 4)))
    for tau in range(2):
        a = ACC + 4 * tau; x = XR + 2 * tau; t = 68
        p('v_lshlrev_b32 v%d, 16, v%d' % (t, x)); p('v_and_b32 v%d, 0xffff0000, v%d' % (t + 1, x)); p('v_lshlrev_b32 v%d, 16, v%d' % (t + 2, x + 1)); p('v_and_b32 v%d, 0xffff0000, v%d' % (t + 3, x + 1))
        for r in range(4): p('v_fmac_f32 v%d, v%d, v%d' % (t + r, 24 + r, a + r))
        p('v_cvt_pk_bf16_f32 v%d, v%d, v%d' % (x, t, t + 1)); p('v_cvt_pk_bf16_f32 v%d, v%d, v%d' % (x + 1, t + 2, t + 3))
        if tau: p('s_add_u32 s%d, s%d, %d' % (S_OUT, S_OUT, 16 * 1280))
        p('buffer_store_dwordx2 %s, v11, s[%d:%d], s%d offen%s' % (vr(x, 2), S_W2, S_W2 + 3, S_OUT, OUT_FLAG))
    p('s_add_u32 s%d, s%d, 2' % (S_SEG, S_SEG)); p('s_cmp_lt_u32 s%d, s%d' % (S_SEG, S_NST)); p('s_cbranch_scc1 %s' % loop)
```

```python
from asmlib import Prog
from layout import *

WS_BYTES = 268435456
KA = dict(x=0, mem0=8, Wq=16, Wk=24, Wv=32, Wo=40, wg=64, wu=72, wd=80, c=88, wmod=96, out=104, dbg=112, ws=120)

FS = 128
F_QK = OFF_FLAGS; F_VO = F_QK + 32 * FS; F_P = F_VO + 32 * FS; F_X1 = F_P + 64 * FS; F_H2 = F_X1 + 40 * FS; F_HM = F_H2 + 4 * FS; F_END = F_HM + 48 * FS
FSH = 7
S_WS = 4
S_W1 = 8
S_W2 = 12
S_WAVE = 16; S_IDX = 17; S_STEP = 18; S_SPIN = 19
S_T0 = 20; S_T1 = 21; S_T2 = 22; S_T3 = 23
S_MASK = 24
S_MEMO = 26; S_PO = 27; S_ZO = 28; S_QKO = 29; S_VOO = 30; S_NST = 31
S_DBG = 32
S_T4 = 34; S_T5 = 35; S_T6 = 36; S_T7 = 37
S_C = 38
S_TR0 = 40
S_TRO = 42
S_COMM = 43
S_NONCE = 70
PARITY = 0
DYN_PAR = False
HIST = True
SPIN_BUDGET = 400000

class Cnt:
    def __init__(self, p, name, maxv):
        self.p = p; self.name = name; self.maxv = maxv; self.q = []
    def issue(self, tag): self.q.append(tag)
    def wait(self, tag):
        if tag not in self.q: return
        i = len(self.q) - 1 - self.q[::-1].index(tag)
        n = len(self.q) - 1 - i
        n = min(n, self.maxv)
        self.p('s_waitcnt %s(%d)' % (self.name, n))
        self.q = self.q[len(self.q) - n:] if n else []
    def drain(self):
        self.p('s_waitcnt %s(0)' % self.name); self.q = []
    def reset(self): self.q = []

def srd(p, s, karg, nbytes):
    p('s_load_dwordx2 s[%d:%d], s[0:1], %d' % (s, s + 1, karg))
    p('s_mov_b32 s%d, 0x%x' % (s + 2, nbytes))
    p('s_mov_b32 s%d, 0x00020000' % (s + 3))

def vr(a, n=1): return 'v%d' % a if n == 1 else 'v[%d:%d]' % (a, a + n - 1)
def ar(a, n=1): return 'a%d' % a if n == 1 else 'a[%d:%d]' % (a, a + n - 1)

def unit_reg(rr, lo=0, n=8):
    if rr < 32: return ar(8 * rr + lo, n)
    return vr(128 + 8 * (rr - 32) + lo, n)

def unit_map():
    m = []; rr = 0
    for o in range(60):
        if o % 5 == 4: m.append(('lds', o // 5))
        else: m.append(('reg', rr)); rr += 1
    return m
UM = unit_map()

def poll_check(p, regs, tmp, done, again):
    r = list(regs)
    p('v_max3_u32 v%d, v%d, v%d, v%d' % (tmp, r[0], r[1], r[2])); r = r[3:]
    while len(r) >= 2:
        p('v_max3_u32 v%d, v%d, v%d, v%d' % (tmp, tmp, r[0], r[1])); r = r[2:]
    if r: p('v_max_u32 v%d, v%d, v%d' % (tmp, tmp, r[0]))
    p('v_cmp_eq_u32 vcc, -1, v%d' % tmp)
    p('s_cbranch_vccz %s' % done)
    p('s_cmp_eq_u32 s%d, 0' % S_SPIN)
    p('s_cbranch_scc1 %s' % done)
    p('s_sub_u32 s%d, s%d, 1' % (S_SPIN, S_SPIN))
    p('s_branch %s' % again)

POLL_D = 4
POLL_DK = {}
R_MODE = 0
POLL_SLEEP = {'mem': 1, 'z': 1, 'p': 2}
PRE_SLEEP = {'memA': 0, 'memB': 0, 'z': 0, 'p': 0}
def poll_loop(p, loads, regs, tmp, kind, pre=None):
    top = p.newlabel('Lpl'); done = p.newlabel('Lpld')
    for r in regs: p('v_mov_b32 v%d, -1' % r)
    if pre and PRE_SLEEP[pre]: p('s_sleep %d' % PRE_SLEEP[pre])
    p.label(top)
    n = loads()
    p('s_waitcnt vmcnt(%d)' % (n * (POLL_DK.get(kind, POLL_D) - 1)))
    r = list(regs)
    p('v_max3_u32 v%d, v%d, v%d, v%d' % (tmp, r[0], r[1], r[2])); r = r[3:]
    while len(r) >= 2:
        p('v_max3_u32 v%d, v%d, v%d, v%d' % (tmp, tmp, r[0], r[1])); r = r[2:]
    if r: p('v_max_u32 v%d, v%d, v%d' % (tmp, tmp, r[0]))
    p('v_cmp_eq_u32 vcc, -1, v%d' % tmp)
    p('s_cbranch_vccz %s' % done)
    if POLL_SLEEP[kind]: p('s_sleep %d' % POLL_SLEEP[kind])
    p('s_cmp_eq_u32 s%d, 0' % S_SPIN)
    p('s_cbranch_scc1 %s' % done)
    p('s_sub_u32 s%d, s%d, 1' % (S_SPIN, S_SPIN))
    p('s_branch %s' % top)
    p.label(done)

def step_offsets(p, mem_add=0, want=('mem', 'p', 'z')):
    if 'mem' in want:
        p('s_add_u32 s%d, s%d, %d' % (S_T0, S_STEP, mem_add)); p('s_and_b32 s%d, s%d, %d' % (S_T0, S_T0, MEM_RING - 1))
        p('s_lshl_b32 s%d, s%d, 15' % (S_T0, S_T0)); p('s_add_u32 s%d, s%d, s%d' % (S_MEMO, S_T0, S_COMM))
        if BLK_MEM: p('s_add_u32 s%d, s%d, %d' % (S_MEMO, S_MEMO, BLK_MEM * BLK))
    if 'p' in want:
        p('s_and_b32 s%d, s%d, %d' % (S_T0, S_STEP, P_RING - 1)); p('s_mul_i32 s%d, s%d, %d' % (S_T0, S_T0, 3 * BLK))
        p('s_add_u32 s%d, s%d, s%d' % (S_PO, S_T0, S_COMM)); p('s_add_u32 s%d, s%d, %d' % (S_PO, S_PO, BLK_P * BLK))
    if 'z' in want:
        p('s_and_b32 s%d, s%d, %d' % (S_T0, S_STEP, Z_RING - 1)); p('s_mul_i32 s%d, s%d, %d' % (S_T0, S_T0, 40 * BLK))
        p('s_add_u32 s%d, s%d, s%d' % (S_ZO, S_T0, S_COMM)); p('s_add_u32 s%d, s%d, %d' % (S_ZO, S_ZO, BLK_Z * BLK))

def comm_setup(p):
    p('s_add_u32 s%d, s%d, %d' % (S_T0, S_WS, OFF_COMM))
    p('s_sub_u32 s%d, 0, s%d' % (S_T0, S_T0)); p('s_and_b32 s%d, s%d, 0x1fffff' % (S_T0, S_T0))
    p('s_add_u32 s%d, s%d, %d' % (S_COMM, S_T0, OFF_COMM + (0 if DYN_PAR else PARITY * 8192)))

def wait_flags(p, voff, foff, need_s, tmp, sleep=2):
    top = p.newlabel('Lwf'); done = p.newlabel('Lwfd')
    p('s_mov_b32 s%d, %d' % (S_T2, foff))
    p.label(top)
    p('buffer_load_dword v%d, v%d, s[%d:%d], s%d offen sc1' % (tmp, voff, S_WS, S_WS + 3, S_T2))
    p('s_waitcnt vmcnt(0)')
    p('v_cmp_gt_u32 vcc, s%d, v%d' % (need_s, tmp))
    p('s_cbranch_vccz %s' % done)
    p('s_sleep %d' % sleep)
    p('s_cmp_eq_u32 s%d, 0' % S_SPIN); p('s_cbranch_scc1 %s' % done)
    p('s_sub_u32 s%d, s%d, 1' % (S_SPIN, S_SPIN)); p('s_branch %s' % top)
    p.label(done)

def wait_flags_w0(p, voff, foff, need_s, tmp, sleep=4):
    l = p.newlabel('Lw0'); p('s_cmp_lg_u32 s%d, 0' % S_WAVE); p('s_cbranch_scc1 %s' % l)
    wait_flags(p, voff, foff, need_s, tmp, sleep)
    p.label(l)

def dbg_srd(p, s):
    p('s_mov_b32 s%d, s%d' % (s, S_DBG)); p('s_mov_b32 s%d, s%d' % (s + 1, S_DBG + 1))
    p('s_mov_b32 s%d, 256' % (s + 2)); p('s_mov_b32 s%d, 0x00020000' % (s + 3))

def parity_probe(p):
    if not DYN_PAR: return
    l = p.newlabel('Lpp'); p('s_cmp_lg_u32 s%d, 0' % S_WAVE); p('s_cbranch_scc1 %s' % l)
    p('s_cmp_lg_u32 s%d, 0' % S_IDX); p('s_cbranch_scc1 %s' % l)
    p('v_mov_b32 v16, 0'); p('v_mov_b32 v17, -1')
    p('s_mov_b32 s48, 0'); p('s_mov_b32 s49, 0')
    for i in range(4):
        for par in range(2):
            p('s_add_u32 s%d, s%d, %d' % (S_T0, S_COMM, (112 + i) * BLK + par * 8192 + i * 256))
            p('buffer_store_dword v17, v16, s[%d:%d], s%d offen sc1' % (S_WS, S_WS + 3, S_T0))
            p('s_waitcnt vmcnt(0)')
            p('s_memtime s[50:51]'); p('s_waitcnt lgkmcnt(0)')
            p('buffer_load_dword v18, v16, s[%d:%d], s%d offen sc1' % (S_WS, S_WS + 3, S_T0))
            p('s_waitcnt vmcnt(0)')
            p('s_memtime s[52:53]'); p('s_waitcnt lgkmcnt(0)')
            p('s_sub_u32 s50, s52, s50')
            if i > 0: p('s_add_u32 s%d, s%d, s50' % (48 + par, 48 + par))
    p('s_cmp_lt_u32 s49, s48'); p('s_cselect_b32 s50, 2, 1')
    dbg_srd(p, 52)
    p('v_mov_b32 v17, s50')
    p('v_cmp_eq_u32 vcc, 0, v1'); p('v_mov_b32 v18, 0x7ff00000'); p('v_cndmask_b32 v16, v18, v16, vcc')
    p('buffer_store_dword v17, v16, s[52:55], 0 offen sc1')
    p('s_waitcnt vmcnt(0)')
    p.label(l)

def parity_wait(p):
    if not DYN_PAR: return
    dbg_srd(p, 52)
    top = p.newlabel('Lpw'); done = p.newlabel('Lpwd')
    p('v_mov_b32 v16, 0')
    p.label(top)
    p('buffer_load_dword v17, v16, s[52:55], 0 offen sc1'); p('s_waitcnt vmcnt(0)')
    p('v_readfirstlane_b32 s50, v17')
    p('s_cmp_lg_u32 s50, 0'); p('s_cbranch_scc1 %s' % done)
    p('s_sleep 4')
    p('s_cmp_eq_u32 s%d, 0' % S_SPIN); p('s_cbranch_scc1 %s' % done)
    p('s_sub_u32 s%d, s%d, 1' % (S_SPIN, S_SPIN)); p('s_branch %s' % top)
    p.label(done)
    p('s_lshr_b32 s50, s50, 1'); p('s_lshl_b32 s50, s50, 13'); p('s_add_u32 s%d, s%d, s50' % (S_COMM, S_COMM))

TRV = 58
def trace(p, slot, on):
    if not on: return
    l = p.newlabel('Ltr')
    p('s_cmp_lg_u32 s%d, 0' % S_WAVE)
    p('s_cbranch_scc1 %s' % l)
    p('s_memrealtime s[%d:%d]' % (S_TR0, S_TR0 + 1))
    p('s_lshl_b32 s%d, s%d, 8' % (S_T7, S_STEP))
    p('s_add_u32 s%d, s%d, s2' % (S_T7, S_T7))
    p('s_lshl_b32 s%d, s%d, 4' % (S_T7, S_T7))
    p('s_add_u32 s%d, s%d, %d' % (S_T7, S_T7, OFF_TRACE + slot * 4))
    p('s_waitcnt lgkmcnt(0)')
    p('v_mov_b32 v%d, s%d' % (TRV, S_TR0))
    p('v_mov_b32 v%d, 0' % (TRV + 1))
    p('buffer_store_dword v%d, v%d, s[%d:%d], s%d offen' % (TRV, TRV + 1, S_WS, S_WS + 3, S_T7))
    p.label(l)

PROF = False
ALIGN = 0
def loop_align(p):
    if ALIGN: p.raw('.p2align %d' % ALIGN)
FUSED = False
PSEG = True
USE_FLAGS = True
NOBG = 0
def pf(p, k):
    if PROF: p('s_memtime s[%d:%d]' % (46 + 2 * k, 47 + 2 * k))
def pf_init(p):
    if PROF:
        for k in range(5): p('s_mov_b32 s%d, 0' % (56 + k))
        p('s_mov_b32 s68, 0'); p('s_mov_b32 s69, 0')
def pf_acc(p):
    if PROF:
        p('s_waitcnt lgkmcnt(0)')
        for k in range(4):
            p('s_sub_u32 s61, s%d, s%d' % (48 + 2 * k, 46 + 2 * k))
            p('s_add_u32 s%d, s%d, s61' % (56 + k, 56 + k))
def pf_out(p):
    if PROF:
        l = p.newlabel('Lpf')
        p('s_cmp_lg_u32 s%d, 0' % S_WAVE); p('s_cbranch_scc1 %s' % l)
        p('s_lshl_b32 s%d, s2, 6' % S_T7)
        p('s_add_u32 s%d, s%d, %d' % (S_T7, S_T7, OFF_TRACE + 524288 + 32))
        for k in range(4): p('v_mov_b32 v%d, s%d' % (20 + k, 56 + k))
        p('v_mov_b32 v7, 0')
        p('buffer_store_dwordx4 v[20:23], v7, s[%d:%d], s%d offen' % (S_WS, S_WS + 3, S_T7))
        p('v_mov_b32 v24, s68'); p('v_mov_b32 v25, s69'); p('buffer_store_dwordx2 v[24:25], v7, s[%d:%d], s%d offen offset:16' % (S_WS, S_WS + 3, S_T7))
        p.label(l)

def stamp(p, slot, on):
    if not on: return
    l = p.newlabel('Lst')
    p('s_cmp_lg_u32 s%d, 0' % S_WAVE)
    p('s_cbranch_scc1 %s' % l)
    p('s_memrealtime s[%d:%d]' % (S_TR0, S_TR0 + 1))
    p('s_memtime s[46:47]')
    p('s_lshl_b32 s%d, s2, 6' % S_T7)
    p('s_add_u32 s%d, s%d, %d' % (S_T7, S_T7, OFF_TRACE + 524288 + slot * 8))
    p('s_waitcnt lgkmcnt(0)')
    p('v_mov_b32 v16, s%d' % S_TR0)
    p('v_mov_b32 v17, s46')
    p('v_mov_b32 v7, 0')
    p('buffer_store_dwordx2 v[16:17], v7, s[%d:%d], s%d offen' % (S_WS, S_WS + 3, S_T7))
    p('s_waitcnt vmcnt(0)')
    p.label(l)

DEEP_LOAD = False
def load_weights_type1(p, jobs, stg_base_v, slot_bytes, nslots, voffs, ninstr, rowbytes, lg, vm, wres_v, tmpv, stg_s, zrows=4):
    if DEEP_LOAD and all(len(j['dests']) == ninstr for j in jobs):
        return load_weights_deep(p, jobs, stg_base_v, slot_bytes, nslots, voffs, ninstr, rowbytes, wres_v, stg_s, zrows)
    n = len(jobs)
    def issue(j):
        job = jobs[j]
        job['soff'](S_T0)
        for i in range(ninstr):
            p('s_add_u32 s%d, s%d, %d' % (S_T1, stg_s, (j % nslots) * slot_bytes + i * 1024))
            p('s_mov_b32 m0, s%d' % S_T1)
            p('buffer_load_dwordx4 v%d, s[%d:%d], s%d offen lds' % (voffs[i], job['srd'], job['srd'] + 3, S_T0))
            vm.issue(('w', j))
    depth = nslots - 1
    for j in range(min(depth, n)): issue(j)
    for j in range(n):
        vm.wait(('w', j))
        slot = (j % nslots) * slot_bytes
        pend = []
        for di, (toff, dest) in enumerate(jobs[j]['dests']):
            if dest[0] == 'reg':
                for z in range(2):
                    p('ds_read_b64_tr_b16 %s, v%d offset:%d' % (dest[1 + z], stg_base_v, slot + z * zrows * rowbytes + toff))
            else:
                t = tmpv + 4 * (len(pend) % 3)
                for z in range(2):
                    p('ds_read_b64_tr_b16 %s, v%d offset:%d' % (vr(t + 2 * z, 2), stg_base_v, slot + z * zrows * rowbytes + toff))
                pend.append((t, dest[1]))
        p('s_waitcnt lgkmcnt(0)')
        for (t, off) in pend:
            p('ds_write_b128 v%d, %s offset:%d' % (wres_v, vr(t, 4), off))
        if j + depth < n: issue(j + depth)
    p('s_waitcnt lgkmcnt(0)')

def _quad(op2):
    import re
    m = re.match(r'([va])\[(\d+):', op2); return '%s[%d:%d]' % (m.group(1), int(m.group(2)), int(m.group(2)) + 3)

DEEP_TMP = 16
def load_weights_deep(p, jobs, stg_base_v, slot_bytes, nslots, voffs, ninstr, rowbytes, wres_v, stg_s, zrows):
    n = len(jobs)
    vm = Cnt(p, 'vmcnt', 63); lg = Cnt(p, 'lgkmcnt', 15)
    raw = []; tmpi = 0
    for job in jobs:
        q = []
        for (toff, dest) in job['dests']:
            if dest[0] == 'reg': q.append(_quad(dest[1]))
            else: q.append(vr(DEEP_TMP + 4 * (tmpi % 16), 4)); tmpi += 1
        raw.append(q)
    p('v_add_u32 v127, s%d, v2' % stg_s)
    maxjobs = 60 // ninstr
    def lds_cnt(a, b): return sum(1 for j in range(a, b) for (t, d) in jobs[j]['dests'] if d[0] == 'lds')
    issued = [0]
    def issue_upto(done):
        while issued[0] < n and issued[0] - done < maxjobs and lds_cnt(done, issued[0] + 1) <= 16:
            j = issued[0]; jobs[j]['soff'](S_T0)
            for i in range(ninstr):
                p('buffer_load_dwordx4 %s, v%d, s[%d:%d], s%d offen' % (raw[j][i], voffs[i], jobs[j]['srd'], jobs[j]['srd'] + 3, S_T0)); vm.issue(('w', j))
            issued[0] += 1
    issue_upto(0)
    def wr(j):
        vm.wait(('w', j))
        for i in range(ninstr):
            p('ds_write_b128 v127, %s offset:%d' % (raw[j][i], (j % nslots) * slot_bytes + i * 1024)); lg.issue(('sw', j))
    wr(0)
    for j in range(n):
        if j + 1 < n: wr(j + 1)
        lg.wait(('sw', j))
        slot = (j % nslots) * slot_bytes
        for di, (toff, dest) in enumerate(jobs[j]['dests']):
            ops = (dest[1], dest[2]) if dest[0] == 'reg' else tuple(raw[j][di].replace(']', ']') and x for x in (_half(raw[j][di], 0), _half(raw[j][di], 1)))
            for z in range(2):
                p('ds_read_b64_tr_b16 %s, v%d offset:%d' % (ops[z], stg_base_v, slot + z * zrows * rowbytes + toff)); lg.issue(('tr', j))
        ldsd = [(di, d) for di, (t, d) in enumerate(jobs[j]['dests']) if d[0] == 'lds']
        if ldsd or nslots < 3:
            lg.wait(('tr', j))
        for di, d in ldsd:
            p('ds_write_b128 v%d, %s offset:%d' % (wres_v, raw[j][di], d[1])); lg.issue(('rw', j))
        if ldsd: lg.wait(('rw', j))
        issue_upto(j + 1)
    p('s_waitcnt lgkmcnt(0)')

def _half(q, z):
    import re
    m = re.match(r'([va])\[(\d+):', q); b = int(m.group(2)) + 2 * z
    return '%s[%d:%d]' % (m.group(1), b, b + 1)

def magic_div(p, dst, src, d, tmp_s):
    m = (1 << 20) // d + 1
    for x in range(4096): assert (x * m) >> 20 == x // d
    p('s_mov_b32 s%d, %d' % (tmp_s, m))
    p('v_mul_lo_u32 v%d, v%d, s%d' % (dst, src, tmp_s))
    p('v_lshrrev_b32 v%d, 20, v%d' % (dst, dst))

def stage_offsets(p, voffs, cpr, gstride, vlane, t1, t2):
    for i, vo in enumerate(voffs):
        p('v_add_u32 v%d, %d, v%d' % (t1, i * 64, vlane))
        magic_div(p, t2, t1, cpr, S_T0)
        p('v_mul_u32_u24 v%d, %d, v%d' % (vo, cpr, t2))
        p('v_sub_u32 v%d, v%d, v%d' % (vo, t1, vo))
        p('v_lshlrev_b32 v%d, 4, v%d' % (vo, vo))
        p('s_mov_b32 s%d, %d' % (S_T0, gstride))
        p('v_mul_lo_u32 v%d, v%d, s%d' % (t2, t2, S_T0))
        p('v_add_u32 v%d, v%d, v%d' % (vo, vo, t2))

def common_lane_setup(p):
    p('v_lshrrev_b32 v3, 6, v0')
    p('v_and_b32 v1, 63, v0')
    p('v_readfirstlane_b32 s%d, v3' % S_WAVE)
    p('v_lshlrev_b32 v2, 4, v1')
    p('s_mov_b32 s%d, %d' % (S_SPIN, SPIN_BUDGET))

def mem_gather_setup(p, memx):
    p('s_mul_i32 s%d, s%d, 3' % (S_T0, S_WAVE))
    def tmod(dst, add):
        p('s_add_u32 s%d, s%d, %d' % (dst, S_T0, add))
        p('s_sub_u32 s%d, s%d, 10' % (S_T2, dst))
        p('s_cmp_ge_u32 s%d, 10' % dst)
        p('s_cselect_b32 s%d, s%d, s%d' % (dst, S_T2, dst))
        p('s_lshl_b32 s%d, s%d, 10' % (dst, dst))
    for j in range(3):
        tmod(S_T1, j)
        p('s_add_u32 s%d, s%d, 8192' % (S_T2, S_T1)); p('s_cmp_ge_u32 s%d, 8192' % S_T1); p('s_cselect_b32 s%d, s%d, s%d' % (S_T1, S_T2, S_T1))
        p('v_add_u32 v%d, s%d, v2' % (4 + j, S_T1))
    for (vreg, tau) in ((8, 3), (9, 4), (10, 7)):
        tmod(S_T1, tau)
        p('s_add_u32 s%d, s%d, %d' % (S_T1, S_T1, memx))
        p('v_add_u32 v%d, s%d, v2' % (vreg, S_T1))
    p('v_and_b32 v3, 1, v1')
    p('v_cmp_eq_u32 vcc, 0, v3')
    p('v_mov_b32 v3, 0xeeeeeeee')
    p('v_mov_b32 v7, 0x44444444')
    p('v_cndmask_b32 v3, v3, v7, vcc')

def memfrag_addr(tau, memx_unused=None):
    if tau == 3: return (8, 0)
    if tau <= 6: return (9, (tau - 4) * 1024)
    return (10, (tau - 7) * 1024)

P0 = 40; RING = 52; WST = 64

def emit_poll_mem(p, memx, lg, pre):
    def loads():
        for j in range(3):
            p('buffer_load_dwordx4 %s, v%d, s[%d:%d], s%d offen sc1' % (vr(P0 + 4 * j, 4), 4 + j, S_WS, S_WS + 3, S_MEMO))
        return 3
    poll_loop(p, loads, range(P0, P0 + 12), 7, 'mem', pre)
    for j in range(3):
        p('ds_write_b128 v%d, %s' % (RING + j, vr(P0 + 4 * j, 4)))
        lg.issue(('mw', j))

def mem_lds_addr(p):
    for j in range(3):
        p('v_lshrrev_b32 v7, 1, v%d' % (4 + j)); p('v_and_b32 v7, 0x2000, v7')
        p('v_and_b32 v%d, 0x1fff, v%d' % (RING + j, 4 + j)); p('v_or_b32 v%d, v7, v%d' % (RING + j, RING + j))

def wst_load(p, k, wres_v, lg):
    b = WST + 8 * (k & 1)
    p('ds_read_b128 %s, v%d offset:%d' % (vr(b, 4), wres_v, k * 2048)); lg.issue(('w', k))
    p('ds_read_b128 %s, v%d offset:%d' % (vr(b + 4, 4), wres_v, k * 2048 + 1024)); lg.issue(('w', k))

def smf(p, acc, afrag, o, lg, wres_v, idxv=3, nlds=12):
    kind, n = UM[o]
    if kind == 'reg':
        p('v_smfmac_f32_16x16x64_bf16 %s, %s, %s, v%d' % (vr(acc, 4), vr(afrag, 4), unit_reg(n), idxv))
    else:
        lg.wait(('w', n))
        p('v_smfmac_f32_16x16x64_bf16 %s, %s, %s, v%d' % (vr(acc, 4), vr(afrag, 4), vr(WST + 8 * (n & 1), 8), idxv))
        if n + 2 < nlds: wst_load(p, n + 2, wres_v, lg)

def proj_phase(p, lg, ntile, acc0, obase, wres_v, extra=None):
    def frag(tau): return P0 + 4 * tau if tau < 3 else RING + 4 * ((tau - 3) % 3)
    def rd(tau):
        a, off = memfrag_addr(tau)
        p('ds_read_b128 %s, v%d offset:%d' % (vr(frag(tau), 4), a, off)); lg.issue(('m', tau))
    for tau in range(10):
        if tau == 2:
            lg.wait(('mw', 2))
            p('s_barrier')
            for t in (3, 4, 5): rd(t)
        if tau >= 3: lg.wait(('m', tau))
        for tile in range(ntile):
            smf(p, acc0 + 4 * tile, frag(tau), obase + tau * ntile + tile, lg, wres_v)
        if tau >= 3 and tau + 3 < 10: rd(tau + 3)
        if extra: extra(tau)

def half_sum(p, X, Y):
    for r in range(4): p('v_permlane32_swap_b32 v%d, v%d' % (X + r, Y + r))
    for r in range(4): p('v_add_f32 v%d, v%d, v%d' % (X + r, X + r, Y + r))

A_MEMX = 0; A_QX = 10240; A_QKB = 16384; A_WRES = 65536
def gen_A(p, trace_on=False, st=False):
    lg = Cnt(p, 'lgkmcnt', 15); vm = Cnt(p, 'vmcnt', 63)
    h = S_IDX
    srd(p, S_W1, KA['Wq'], 640 * 12288); srd(p, S_W2, KA['Wk'], 640 * 12288)
    common_lane_setup(p)
    p('s_waitcnt lgkmcnt(0)')
    mem_gather_setup(p, A_MEMX)
    p('s_mul_i32 s%d, s%d, 24576' % (S_T0, S_WAVE)); p('s_add_u32 s%d, s%d, 65536' % (S_T0, S_T0)); p('v_add_u32 v15, s%d, v2' % S_T0)
    STG = A_MEMX
    voffs = [80, 81, 82]
    stage_offsets(p, voffs, 6, 12288, 1, 83, 84)
    p('v_lshrrev_b32 v83, 4, v1'); p('v_lshlrev_b32 v83, 3, v83')
    p('v_bfe_u32 v84, v1, 2, 2'); p('v_add_u32 v83, v83, v84')
    p('v_mul_u32_u24 v83, 96, v83'); p('v_and_b32 v84, 3, v1'); p('v_lshlrev_b32 v84, 3, v84')
    p('v_add_u32 v85, v83, v84')
    p('s_lshl_b32 s%d, s%d, 14' % (S_T4, S_WAVE)); p('s_add_u32 s%d, s%d, %d' % (S_T4, S_T4, STG))
    p('v_add_u32 v85, s%d, v85' % S_T4)
    p('s_mul_i32 s%d, s%d, 384' % (S_T5, h)); p('s_mul_i32 s%d, s%d, 96' % (S_T0, S_WAVE)); p('s_add_u32 s%d, s%d, s%d' % (S_T5, S_T5, S_T0))
    p('s_mul_i32 s%d, s%d, 3' % (S_T6, S_WAVE))
    jobs = []
    for tau in range(10):
        for half in range(2):
            for mat in range(2):
                def soff(dst, tau=tau, half=half):
                    p('s_add_u32 s%d, s%d, %d' % (dst, S_T6, tau))
                    p('s_sub_u32 s%d, s%d, 10' % (S_T2, dst)); p('s_cmp_ge_u32 s%d, 10' % dst); p('s_cselect_b32 s%d, s%d, s%d' % (dst, S_T2, dst))
                    p('s_mul_i32 s%d, s%d, %d' % (dst, dst, 64 * 12288))
                    p('s_add_u32 s%d, s%d, s%d' % (dst, dst, S_T5))
                    if half: p('s_add_u32 s%d, s%d, %d' % (dst, dst, 32 * 12288))
                dests = []
                for x in range(3):
                    kind, n = UM[tau * 6 + mat * 3 + x]
                    if kind == 'reg': dests.append((x * 32, ('reg', unit_reg(n, 4 * half, 2), unit_reg(n, 4 * half + 2, 2))))
                    else: dests.append((x * 32, ('lds', n * 2048 + half * 1024)))
                jobs.append(dict(srd=S_W1 if mat == 0 else S_W2, soff=soff, dests=dests))
    load_weights_type1(p, jobs, 85, 3072, 5, voffs, 3, 96, lg, vm, 15, 88, S_T4)
    p('s_barrier')
    p('v_lshrrev_b32 v80, 5, v1'); p('v_mul_u32_u24 v80, 3072, v80')
    p('v_and_b32 v81, 3, v1'); p('v_lshlrev_b32 v81, 6, v81'); p('v_add_u32 v80, v80, v81')
    p('v_bfe_u32 v81, v1, 2, 2'); p('v_lshlrev_b32 v81, 4, v81'); p('v_add_u32 v80, v80, v81')
    p('v_bfe_u32 v81, v1, 4, 1'); p('v_lshlrev_b32 v81, 3, v81'); p('v_add_u32 v80, v80, v81')
    p('s_mul_i32 s%d, s%d, 768' % (S_T0, S_WAVE)); p('s_add_u32 s%d, s%d, %d' % (S_T0, S_T0, A_QX))
    p('v_add_u32 v11, s%d, v80' % S_T0)
    p('v_bfe_u32 v80, v1, 2, 2'); p('v_lshlrev_b32 v80, 6, v80')
    p('v_lshrrev_b32 v81, 4, v1'); p('v_lshlrev_b32 v81, 4, v81'); p('v_add_u32 v80, v80, v81')
    p('v_and_b32 v81, 1, v1'); p('v_lshlrev_b32 v81, 3, v81'); p('v_add_u32 v80, v80, v81')
    p('v_add_u32 v12, %d, v80' % A_QX)
    p('v_lshrrev_b32 v80, 5, v1'); p('v_lshlrev_b32 v80, 8, v80')
    p('v_bfe_u32 v81, v1, 4, 1'); p('v_lshlrev_b32 v81, 7, v81'); p('v_add_u32 v80, v80, v81')
    p('v_and_b32 v81, 7, v1'); p('v_lshlrev_b32 v82, 4, v81'); p('v_add_u32 v80, v80, v82')
    p('s_lshr_b32 s%d, s%d, 4' % (S_T1, h)); p('s_lshl_b32 s%d, s%d, 14' % (S_T1, S_T1)); p('s_and_b32 s%d, s%d, 15' % (S_T0, h)); p('s_lshl_b32 s%d, s%d, 9' % (S_T0, S_T0)); p('s_add_u32 s%d, s%d, s%d' % (S_T0, S_T0, S_T1))
    p('v_add_u32 v13, s%d, v80' % S_T0)
    p('v_mov_b32 v82, 0x7ff00000'); p('v_and_b32 v83, 8, v1'); p('v_cmp_eq_u32 vcc, 0, v83'); p('v_cndmask_b32 v13, v82, v13, vcc')
    p('v_lshlrev_b32 v80, 4, v1')
    p('s_lshl_b32 s%d, s%d, 7' % (S_T0, h)); p('s_add_u32 s%d, s%d, 32768' % (S_T0, S_T0)); p('v_add_u32 v14, s%d, v80' % S_T0)
    p('v_cmp_gt_u32 vcc, 8, v1'); p('v_cndmask_b32 v14, v82, v14, vcc')
    p('s_mov_b32 s%d, 0' % S_MASK); p('s_mov_b32 s%d, -1' % (S_MASK + 1))
    p('s_mov_b32 s%d, 0x%x' % (S_C, __import__('struct').unpack('<I', __import__('struct').pack('<f', 192 ** -0.5 * 1.4426950408889634))[0]))
    p('s_mov_b32 s%d, 0' % S_STEP)
    p('s_mul_i32 s%d, s%d, 24576' % (S_QKO, h)); p('s_add_u32 s%d, s%d, %d' % (S_QKO, S_QKO, OFF_QK))
    parity_wait(p)
    def qk_dma(bufsel_s):
        p('s_mov_b32 s%d, s%d' % (S_T1, S_QKO))
        for j in range(24):
            p('s_add_u32 s%d, s%d, %d' % (S_T0, bufsel_s, j * 1024))
            p('s_mov_b32 m0, s%d' % S_T0)
            p('buffer_load_dwordx4 v2, s[%d:%d], s%d offen sc1 lds' % (S_WS, S_WS + 3, S_T1))
            if j < 23: p('s_add_u32 s%d, s%d, 1024' % (S_T1, S_T1))
    def KS(jt, u): return 80 + 4 * (jt * 6 + u)
    def k_direct():
        for j in range(12):
            if j % 4 == 0: p('s_add_u32 s%d, s%d, %d' % (S_T0, S_QKO, 12288 + j * 1024))
            p('buffer_load_dwordx4 %s, v2, s[%d:%d], s%d offen offset:%d sc1' % (vr(80 + 4 * j, 4), S_WS, S_WS + 3, S_T0, (j % 4) * 1024))
    def qk_wait(add, sampled=False):
        if USE_FLAGS:
            p('s_add_u32 s%d, s%d, %d' % (S_T3, S_STEP, add))
            lok = p.newlabel('LAok')
            if sampled:
                p('v_cmp_gt_u32 vcc, s%d, v1' % S_T3); p('s_cbranch_vccz %s' % lok)
            wait_flags(p, 0, F_QK, S_T3, 7)
            p.label(lok)
    p('s_lshl_b32 s%d, s%d, %d' % (S_T0, h, FSH)); p('v_mov_b32 v0, s%d' % S_T0)
    l = p.newlabel('La')
    p('s_cmp_lg_u32 s%d, 3' % S_WAVE); p('s_cbranch_scc1 %s' % l)
    qk_wait(1)
    p('s_mov_b32 s%d, %d' % (S_T3, A_QKB)); qk_dma(S_T3)
    p.label(l)
    l = p.newlabel('La')
    p('s_cmp_lg_u32 s%d, 0' % S_WAVE); p('s_cbranch_scc1 %s' % l)
    qk_wait(1)
    k_direct()
    p.label(l)
    stamp(p, 1, st)
    pf_init(p)
    loop = p.newlabel('LAloop'); p.label(loop)
    lg.reset(); vm.reset()
    pf(p, 0)
    for r in range(16, 40): p('v_mov_b32 v%d, 0' % r)
    wst_load(p, 0, 15, lg); wst_load(p, 1, 15, lg)
    step_offsets(p, 0, ('mem', 'p')); mem_lds_addr(p)
    p('s_mov_b32 s%d, %d' % (S_T0, F_QK))
    p('buffer_load_dword v1, v0, s[%d:%d], s%d offen sc1' % (S_WS, S_WS + 3, S_T0))
    p('s_waitcnt lgkmcnt(0)'); lg.reset()
    emit_poll_mem(p, A_MEMX, lg, 'memA')
    pf(p, 1)
    trace(p, 0, trace_on)
    proj_phase(p, lg, 6, 16, 0, 15)
    for x in range(3): half_sum(p, 16 + 4 * x, 28 + 4 * x)
    for x in range(3):
        a = 16 + 4 * x
        p('v_cvt_pk_bf16_f32 v%d, v%d, v%d' % (a, a, a + 1)); p('v_cvt_pk_bf16_f32 v%d, v%d, v%d' % (a + 1, a + 2, a + 3))
        p('ds_write_b64 v11, %s offset:%d' % (vr(a, 2), x * 256))
    pf(p, 2)
    p('s_waitcnt vmcnt(0) lgkmcnt(0)'); lg.reset()
    p('s_barrier')
    pf(p, 3)
    trace(p, 1, trace_on)
    lw = p.newlabel('LAw'); lend = p.newlabel('LAe'); lw3 = p.newlabel('LAw3')
    QF = 16; KM = 40; SA = 64
    def scores(kind):
        lg.reset()
        if kind == 'mem':
            for u in range(6):
                for z in range(2):
                    p('ds_read_b64_tr_b16 %s, v12 offset:%d' % (vr(QF + 4 * u + 2 * z, 2), (2 * u + z) * 256)); lg.issue(('q', u))
        else:
            p('s_and_b32 s%d, s%d, 1' % (S_T0, S_STEP)); p('s_mul_i32 s%d, s%d, 24576' % (S_T0, S_T0)); p('s_add_u32 s%d, s%d, %d' % (S_T0, S_T0, A_QKB))
            p('v_add_u32 v7, s%d, v2' % S_T0)
            p('s_sub_u32 s%d, s%d, 1' % (S_T1, S_WAVE)); p('s_mul_i32 s%d, s%d, 6144' % (S_T1, S_T1)); p('v_add_u32 v76, s%d, v7' % S_T1)
            for u in range(6):
                p('ds_read_b128 %s, v76 offset:%d' % (vr(QF + 4 * u, 4), u * 1024)); lg.issue(('q', u))
                for jt in range(2):
                    p('ds_read_b128 %s, v7 offset:%d' % (vr(KS(jt, u), 4), 12288 + jt * 6144 + u * 1024)); lg.issue(('q', u))
        for u in range(6):
            lg.wait(('q', u))
            for jt in range(2):
                p('v_mfma_f32_16x16x32_bf16 %s, %s, %s, %s' % (vr(SA + 4 * jt, 4), vr(KS(jt, u), 4), vr(QF + 4 * u, 4), '0' if u == 0 else vr(SA + 4 * jt, 4)))
            if u == 0:
                for uu in range(6):
                    for z in range(2):
                        p('ds_read_b64_tr_b16 %s, v12 offset:%d' % (vr(KM + 4 * uu + 2 * z, 2), 3072 + (2 * uu + z) * 256)); lg.issue(('km', uu))
        SM = 72
        for u in range(6):
            lg.wait(('km', u))
            p('v_mfma_f32_16x16x32_bf16 %s, %s, %s, %s' % (vr(SM, 4), vr(KM + 4 * u, 4), vr(QF + 4 * u, 4), '0' if u == 0 else vr(SM, 4)))
        vals = list(range(SA, SA + 8)) + list(range(SM, SM + 4))
        p('v_mov_b32 v40, 0xff800000')
        if kind == 'seg':
            p('v_lshrrev_b32 v41, 4, v2'); p('v_and_b32 v42, 15, v41'); p('v_lshrrev_b32 v41, 4, v41'); p('v_lshlrev_b32 v41, 2, v41'); p('v_sub_u32 v41, v42, v41')
            p('s_sub_u32 s%d, s%d, 1' % (S_T1, S_WAVE)); p('s_lshl_b32 s%d, s%d, 4' % (S_T1, S_T1)); p('v_add_u32 v41, s%d, v41' % S_T1)
            for jt in range(2):
                for r in range(4):
                    p('v_cmp_le_i32 vcc, %d, v41' % (16 * jt + r))
                    p('v_cndmask_b32 v%d, v40, v%d, vcc' % (SA + 4 * jt + r, SA + 4 * jt + r))
        for r in range(4): p('v_cndmask_b32 v%d, v%d, v40, s[%d:%d]' % (SM + r, SM + r, S_MASK, S_MASK + 1))
        p('v_max3_f32 v17, v%d, v%d, v%d' % tuple(vals[0:3]))
        for i in range(3, 11, 2): p('v_max3_f32 v17, v17, v%d, v%d' % (vals[i], vals[i + 1]))
        p('v_max_f32 v17, v17, v%d' % vals[11])
        p('v_mov_b32 v18, v17'); p('v_permlane16_swap_b32 v17, v18'); p('v_max_f32 v17, v17, v18')
        p('v_mov_b32 v18, v17'); p('v_permlane32_swap_b32 v17, v18'); p('v_max_f32 v17, v17, v18')
        p('v_mul_f32 v17, s%d, v17' % S_C)
        for v in vals: p('v_fma_f32 v%d, v%d, s%d, -v17' % (v, v, S_C))
        for v in vals: p('v_exp_f32 v%d, v%d' % (v, v))
        p('v_add_f32 v18, v%d, v%d' % (vals[0], vals[1])); p('v_add_f32 v19, v%d, v%d' % (vals[2], vals[3]))
        for i in range(4, 12, 2):
            p('v_add_f32 v18, v18, v%d' % vals[i]); p('v_add_f32 v19, v19, v%d' % vals[i + 1])
        p('v_add_f32 v18, v18, v19')
        p('v_mov_b32 v19, v18'); p('v_permlane16_swap_b32 v18, v19'); p('v_add_f32 v18, v18, v19')
        p('v_mov_b32 v19, v18'); p('v_permlane32_swap_b32 v18, v19'); p('v_add_f32 v18, v18, v19')
        p('v_rcp_f32 v18, v18')
        for v in vals: p('v_mul_f32 v%d, v%d, v18' % (v, v))
        W = 20
        if kind == 'mem':
            p('v_cvt_pk_bf16_f32 v%d, v%d, v%d' % (W + 0, SA + 0, SA + 1)); p('v_cvt_pk_bf16_f32 v%d, v%d, v%d' % (W + 2, SA + 2, SA + 3))
            p('v_cvt_pk_bf16_f32 v%d, v%d, v%d' % (W + 1, SA + 4, SA + 5)); p('v_cvt_pk_bf16_f32 v%d, v%d, v%d' % (W + 3, SA + 6, SA + 7))
            p('v_cvt_pk_bf16_f32 v%d, v%d, v%d' % (W + 4, SM + 0, SM + 1)); p('v_cvt_pk_bf16_f32 v%d, v%d, v%d' % (W + 6, SM + 2, SM + 3))
            p('v_permlane16_swap_b32 v%d, v%d' % (W + 0, W + 2)); p('v_permlane16_swap_b32 v%d, v%d' % (W + 1, W + 3))
            p('buffer_store_dwordx4 %s, v13, s[%d:%d], s%d offen sc1' % (vr(W, 4), S_WS, S_WS + 3, S_PO))
            p('v_mov_b32 v%d, v%d' % (W + 5, W + 4)); p('v_mov_b32 v%d, v%d' % (W + 7, W + 6))
            p('v_permlane16_swap_b32 v%d, v%d' % (W + 4, W + 5)); p('v_permlane16_swap_b32 v%d, v%d' % (W + 6, W + 7))
            p('buffer_store_dwordx4 %s, v14, s[%d:%d], s%d offen sc1' % (vr(W + 4, 4), S_WS, S_WS + 3, S_PO))
        else:
            for k in range(4): p('v_cvt_pk_bf16_f32 v%d, v%d, v%d' % (W + k, SA + 2 * k, SA + 2 * k + 1))
            p('v_cvt_pk_bf16_f32 v%d, v%d, v%d' % (W + 4, SM + 0, SM + 1)); p('v_cvt_pk_bf16_f32 v%d, v%d, v%d' % (W + 5, SM + 2, SM + 3))
            p('s_mul_i32 s%d, s%d, 81920' % (S_T0, S_STEP)); p('s_sub_u32 s%d, s%d, 1' % (S_T1, S_WAVE)); p('s_lshl_b32 s%d, s%d, 15' % (S_T2, S_T1))
            p('s_add_u32 s%d, s%d, s%d' % (S_T2, S_T2, S_T0)); p('s_lshl_b32 s%d, s%d, 10' % (S_T3, h)); p('s_add_u32 s%d, s%d, s%d' % (S_T2, S_T2, S_T3)); p('s_add_u32 s%d, s%d, %d' % (S_T2, S_T2, OFF_PS))
            p('buffer_store_dwordx4 %s, v2, s[%d:%d], s%d offen sc1' % (vr(W, 4), S_WS, S_WS + 3, S_T2))
            p('v_mov_b32 v%d, v%d' % (W + 6, W + 4)); p('v_mov_b32 v%d, v%d' % (W + 7, W + 5))
            p('v_permlane16_swap_b32 v%d, v%d' % (W + 4, W + 6)); p('v_permlane16_swap_b32 v%d, v%d' % (W + 5, W + 7))
            p('s_lshl_b32 s%d, s%d, 13' % (S_T1, S_T1)); p('s_add_u32 s%d, s%d, s%d' % (S_T0, S_T0, S_T1)); p('s_lshl_b32 s%d, s%d, 8' % (S_T3, h)); p('s_add_u32 s%d, s%d, s%d' % (S_T0, S_T0, S_T3))
            p('s_add_u32 s%d, s%d, %d' % (S_T0, S_T0, OFF_PS + 65536))
            p('v_mov_b32 v42, 0x7ff00000'); p('v_cmp_gt_u32 vcc, 256, v2'); p('v_cndmask_b32 v42, v42, v2, vcc')
            p('buffer_store_dwordx4 %s, v42, s[%d:%d], s%d offen sc1' % (vr(W + 4, 4), S_WS, S_WS + 3, S_T0))
    p('s_cmp_lg_u32 s%d, 0' % S_WAVE); p('s_cbranch_scc1 %s' % lw)
    scores('mem')
    pf(p, 4)
    pf_acc(p)
    trace(p, 2, trace_on)
    p('s_barrier')
    p('s_cmp_ge_u32 s%d, 63' % S_STEP); p('s_cbranch_scc1 %s' % lend)
    p('s_add_u32 s%d, s%d, %d' % (S_QKO, S_QKO, 32 * 24576))
    qk_wait(2, True)
    if not NOBG & 1: k_direct()
    p('s_branch %s' % lend)
    p.label(lw)
    p('s_cmp_eq_u32 s%d, 3' % S_WAVE); p('s_cbranch_scc1 %s' % lw3)
    if PSEG: scores('seg')
    p('s_barrier')
    p('s_branch %s' % lend)
    p.label(lw3)
    p('s_add_u32 s%d, s%d, %d' % (S_T0, S_STEP, P_RING - 1)); p('s_and_b32 s%d, s%d, %d' % (S_T0, S_T0, P_RING - 1)); p('s_mul_i32 s%d, s%d, %d' % (S_T0, S_T0, 3 * BLK))
    p('s_add_u32 s%d, s%d, s%d' % (S_T0, S_T0, S_COMM)); p('s_add_u32 s%d, s%d, %d' % (S_T0, S_T0, BLK_P * BLK))
    for r in range(16, 20): p('v_mov_b32 v%d, -1' % r)
    p('buffer_store_dwordx4 v[16:19], v13, s[%d:%d], s%d offen sc1' % (S_WS, S_WS + 3, S_T0))
    p('buffer_store_dwordx4 v[16:19], v14, s[%d:%d], s%d offen sc1' % (S_WS, S_WS + 3, S_T0))
    def fp_flag():
        p('v_mov_b32 v20, 0x7ff00000'); p('v_cmp_eq_u32 vcc, 0, v2'); p('v_cndmask_b32 v20, v20, v0, vcc')
        p('v_mov_b32 v21, s%d' % S_STEP); p('s_mov_b32 s%d, %d' % (S_T0, F_P))
        p('buffer_store_dword v21, v20, s[%d:%d], s%d offen sc1' % (S_WS, S_WS + 3, S_T0))
    fp_flag()
    p('s_barrier')
    p('s_cmp_ge_u32 s%d, 63' % S_STEP); p('s_cbranch_scc1 %s' % lend)
    p('s_add_u32 s%d, s%d, %d' % (S_QKO, S_QKO, 32 * 24576))
    qk_wait(2, True)
    p('s_add_u32 s%d, s%d, 1' % (S_T3, S_STEP)); p('s_and_b32 s%d, s%d, 1' % (S_T3, S_T3)); p('s_mul_i32 s%d, s%d, 24576' % (S_T3, S_T3)); p('s_add_u32 s%d, s%d, %d' % (S_T3, S_T3, A_QKB))
    if not NOBG & 2: qk_dma(S_T3)
    p.label(lend)
    p('s_add_u32 s%d, s%d, 1' % (S_STEP, S_STEP)); p('s_cmp_lt_u32 s%d, s%d' % (S_STEP, S_NST)); p('s_cbranch_scc1 %s' % loop)
    p('s_waitcnt vmcnt(0)'); p('s_barrier')
    l = p.newlabel('LAfin'); p('s_cmp_lg_u32 s%d, 3' % S_WAVE); p('s_cbranch_scc1 %s' % l)
    fp_flag()
    p.label(l)

B_MEMX = 0; B_VX = 10240; B_WRES = 65536
def gen_B(p, trace_on=False, st=False):
    lg = Cnt(p, 'lgkmcnt', 15); vm = Cnt(p, 'vmcnt', 63)
    h = S_IDX
    srd(p, S_W1, KA['Wv'], 640 * 12288); srd(p, S_W2, KA['Wo'], 32 * 192 * 1280)
    common_lane_setup(p)
    p('s_waitcnt lgkmcnt(0)')
    mem_gather_setup(p, B_MEMX)
    p('s_mul_i32 s%d, s%d, 24576' % (S_T0, S_WAVE)); p('s_add_u32 s%d, s%d, 65536' % (S_T0, S_T0)); p('v_add_u32 v15, s%d, v2' % S_T0)
    STG = B_MEMX
    p('s_lshl_b32 s%d, s%d, 14' % (S_T4, S_WAVE)); p('s_add_u32 s%d, s%d, %d' % (S_T4, S_T4, STG))
    voffs = [80, 81, 82]
    stage_offsets(p, voffs, 6, 12288, 1, 83, 84)
    p('v_lshrrev_b32 v83, 4, v1'); p('v_lshlrev_b32 v83, 3, v83'); p('v_bfe_u32 v84, v1, 2, 2'); p('v_add_u32 v83, v83, v84')
    p('v_and_b32 v84, 3, v1'); p('v_lshlrev_b32 v84, 3, v84')
    p('v_mul_u32_u24 v85, 96, v83'); p('v_add_u32 v85, v85, v84'); p('v_add_u32 v85, s%d, v85' % S_T4)
    p('v_mul_u32_u24 v86, 160, v83'); p('v_add_u32 v86, v86, v84'); p('v_add_u32 v86, s%d, v86' % S_T4)
    p('s_mul_i32 s%d, s%d, 384' % (S_T5, h)); p('s_mul_i32 s%d, s%d, 96' % (S_T0, S_WAVE)); p('s_add_u32 s%d, s%d, s%d' % (S_T5, S_T5, S_T0))
    p('s_mul_i32 s%d, s%d, 3' % (S_T6, S_WAVE))
    jobs = []
    for tau in range(10):
        for half in range(2):
            def soff(dst, tau=tau, half=half):
                p('s_add_u32 s%d, s%d, %d' % (dst, S_T6, tau))
                p('s_sub_u32 s%d, s%d, 10' % (S_T2, dst)); p('s_cmp_ge_u32 s%d, 10' % dst); p('s_cselect_b32 s%d, s%d, s%d' % (dst, S_T2, dst))
                p('s_mul_i32 s%d, s%d, %d' % (dst, dst, 64 * 12288))
                p('s_add_u32 s%d, s%d, s%d' % (dst, dst, S_T5))
                if half: p('s_add_u32 s%d, s%d, %d' % (dst, dst, 32 * 12288))
            dests = []
            for x in range(3):
                kind, n = UM[tau * 3 + x]
                if kind == 'reg': dests.append((x * 32, ('reg', unit_reg(n, 4 * half, 2), unit_reg(n, 4 * half + 2, 2))))
                else: dests.append((x * 32, ('lds', n * 2048 + half * 1024)))
            jobs.append(dict(srd=S_W1, soff=soff, dests=dests))
    load_weights_type1(p, jobs, 85, 3072, 5, voffs, 3, 96, lg, vm, 15, 88, S_T4)
    voffs = [100, 101, 102, 103, 104]
    stage_offsets(p, voffs, 10, 1280, 1, 83, 84)
    p('s_mul_i32 s%d, s%d, %d' % (S_T5, h, 192 * 1280)); p('s_mul_i32 s%d, s%d, 320' % (S_T0, S_WAVE)); p('s_add_u32 s%d, s%d, s%d' % (S_T5, S_T5, S_T0))
    jobs = []
    for u in range(6):
        for ch in range(2):
            def soff(dst, u=u, ch=ch): p('s_add_u32 s%d, s%d, %d' % (dst, S_T5, u * 32 * 1280 + ch * 160))
            dests = []
            for x in range(5):
                cc = ch * 5 + x
                kind, n = UM[30 + cc * 3 + (u >> 1)]
                half = u & 1
                if kind == 'reg': dests.append((x * 32, ('reg', unit_reg(n, 4 * half, 2), unit_reg(n, 4 * half + 2, 2))))
                else: dests.append((x * 32, ('lds', n * 2048 + half * 1024)))
            jobs.append(dict(srd=S_W2, soff=soff, dests=dests))
    load_weights_type1(p, jobs, 86, 5120, 3, voffs, 5, 160, lg, vm, 15, 88, S_T4)
    p('s_barrier')
    p('v_bfe_u32 v80, v1, 3, 1'); p('v_lshlrev_b32 v80, 9, v80')
    p('v_bfe_u32 v81, v1, 2, 1'); p('v_lshlrev_b32 v81, 6, v81'); p('v_add_u32 v80, v80, v81')
    p('v_and_b32 v81, 1, v1'); p('v_lshlrev_b32 v81, 5, v81'); p('v_add_u32 v80, v80, v81')
    p('v_bfe_u32 v81, v1, 1, 1'); p('v_lshlrev_b32 v81, 4, v81'); p('v_add_u32 v80, v80, v81')
    p('v_bfe_u32 v81, v1, 4, 1'); p('v_lshlrev_b32 v81, 3, v81'); p('v_add_u32 v80, v80, v81')
    def tile_off(dstv, tv):
        p('v_lshrrev_b32 v82, 2, v%d' % tv); p('v_lshlrev_b32 v82, 10, v82')
        p('v_and_b32 v83, 3, v%d' % tv); p('v_lshlrev_b32 v83, 7, v83')
        p('v_add3_u32 v%d, v80, v82, v83' % dstv); p('v_add_u32 v%d, %d, v%d' % (dstv, B_VX, dstv))
    p('s_mul_i32 s%d, s%d, 3' % (S_T0, S_WAVE))
    p('v_lshrrev_b32 v84, 5, v1'); p('v_add_u32 v84, s%d, v84' % S_T0); tile_off(11, 84)
    p('v_mov_b32 v84, s%d' % S_T0); p('v_add_u32 v84, 2, v84'); tile_off(12, 84)
    p('v_lshrrev_b32 v80, 4, v1'); p('v_lshlrev_b32 v80, 7, v80')
    p('v_bfe_u32 v81, v1, 2, 2'); p('v_lshlrev_b32 v81, 5, v81'); p('v_add_u32 v80, v80, v81')
    p('v_and_b32 v81, 3, v1'); p('v_lshlrev_b32 v81, 3, v81'); p('v_add_u32 v80, v80, v81')
    p('v_add_u32 v13, %d, v80' % B_VX)
    p('v_lshrrev_b32 v80, 5, v1'); p('v_bfe_u32 v81, v1, 4, 1'); p('v_lshlrev_b32 v81, 1, v81'); p('v_add_u32 v80, v80, v81')
    p('s_mul_i32 s%d, s%d, 10' % (S_T0, S_WAVE)); p('v_add_u32 v80, s%d, v80' % S_T0); p('v_lshlrev_b32 v80, 14, v80')
    p('v_and_b32 v81, 15, v1'); p('v_lshlrev_b32 v81, 4, v81'); p('v_add_u32 v80, v80, v81')
    p('s_lshl_b32 s%d, s%d, 8' % (S_T0, h)); p('v_add_u32 v14, s%d, v80' % S_T0)
    p('v_lshrrev_b32 v80, 5, v1'); p('s_mul_i32 s%d, s%d, 10' % (S_T1, S_WAVE)); p('s_add_u32 s%d, s%d, 8' % (S_T1, S_T1)); p('v_add_u32 v80, s%d, v80' % S_T1); p('v_lshlrev_b32 v80, 14, v80')
    p('v_add_u32 v80, v80, v81'); p('v_add_u32 v120, s%d, v80' % S_T0)
    p('v_mov_b32 v82, 0x7ff00000'); p('v_and_b32 v83, 16, v1'); p('v_cmp_eq_u32 vcc, 0, v83'); p('v_cndmask_b32 v120, v82, v120, vcc')
    p('s_mov_b32 s%d, 0' % S_STEP)
    parity_wait(p)
    ACC1 = 16; VF = 28; ACC2 = 80
    stamp(p, 1, st)
    pf_init(p)
    loop = p.newlabel('LBloop'); p.label(loop)
    lg.reset(); vm.reset()
    pf(p, 0)
    for r in range(ACC1, ACC1 + 12): p('v_mov_b32 v%d, 0' % r)
    for r in range(ACC2, ACC2 + 40): p('v_mov_b32 v%d, 0' % r)
    wst_load(p, 0, 15, lg); wst_load(p, 1, 15, lg)
    step_offsets(p, 0, ('mem', 'z')); mem_lds_addr(p)
    p('s_waitcnt lgkmcnt(0)'); lg.reset()
    emit_poll_mem(p, B_MEMX, lg, 'memB')
    pf(p, 1)
    trace(p, 0, trace_on)
    proj_phase(p, lg, 3, ACC1, 0, 15)
    half_sum(p, 16, 20)
    for r in range(4): p('v_mov_b32 v%d, v%d' % (28 + r, 24 + r))
    half_sum(p, 24, 28)
    for a, addr in ((16, 11), (24, 12)):
        p('v_cvt_pk_bf16_f32 v%d, v%d, v%d' % (a, a, a + 1)); p('v_cvt_pk_bf16_f32 v%d, v%d, v%d' % (a + 1, a + 2, a + 3))
        p('ds_write_b64 v%d, %s' % (addr, vr(a, 2))); lg.issue('vx')
    pf(p, 2)
    p('s_waitcnt vmcnt(0)')
    lg.wait('vx')
    p('s_barrier')
    pf(p, 3)
    VFR = 40
    for t in range(3):
        for z in range(2):
            p('ds_read_b64_tr_b16 %s, v13 offset:%d' % (vr(VFR + 4 * t + 2 * z, 2), t * 1024 + z * 512)); lg.issue(('vf', t))
    def hs(pair):
        a = ACC2 + 8 * pair
        half_sum(p, a, a + 4)
        p('v_cvt_pk_bf16_f32 v%d, v%d, v%d' % (a, a, a + 1)); p('v_cvt_pk_bf16_f32 v%d, v%d, v%d' % (a + 1, a + 2, a + 3))
    def fin4(grp):
        a = ACC2 + 16 * grp; b = a + 8
        p('v_mov_b32 v%d, v%d' % (a + 2, b)); p('v_mov_b32 v%d, v%d' % (a + 3, b + 1))
        p('v_permlane16_swap_b32 v%d, v%d' % (a, a + 2)); p('v_permlane16_swap_b32 v%d, v%d' % (a + 1, a + 3))
        p('s_add_u32 s%d, s%d, %d' % (S_T0, S_ZO, grp * 4 * BLK))
        p('buffer_store_dwordx4 %s, v14, s[%d:%d], s%d offen sc1' % (vr(a, 4), S_WS, S_WS + 3, S_T0))
    def fin_last():
        a = ACC2 + 32
        p('v_mov_b32 v%d, v%d' % (a + 2, a)); p('v_mov_b32 v%d, v%d' % (a + 3, a + 1))
        p('v_permlane16_swap_b32 v%d, v%d' % (a, a + 2)); p('v_permlane16_swap_b32 v%d, v%d' % (a + 1, a + 3))
        p('buffer_store_dwordx4 %s, v120, s[%d:%d], s%d offen sc1' % (vr(a, 4), S_WS, S_WS + 3, S_ZO))
    for cc in range(10):
        for t in range(3):
            if cc == 0: lg.wait(('vf', t))
            smf(p, ACC2 + 4 * cc, VFR + 4 * t, 30 + cc * 3 + t, lg, 15)
        if cc >= 3 and cc % 2 == 1:
            pr = (cc - 3) // 2
            hs(pr)
            if pr % 2 == 1: fin4(pr // 2)
    hs(4); fin_last()
    p('s_barrier')
    pf(p, 4)
    pf_acc(p)
    trace(p, 2, trace_on)
    p('s_add_u32 s%d, s%d, 1' % (S_STEP, S_STEP)); p('s_cmp_lt_u32 s%d, s%d' % (S_STEP, S_NST)); p('s_cbranch_scc1 %s' % loop)

R_RED = 0; R_RED2 = 4096
SEGROWS = True
def gen_R(p, trace_on=False, st=False):
    c = S_IDX
    srd(p, S_W1, KA['x'], 2048 * 1280)
    common_lane_setup(p)
    p('s_waitcnt lgkmcnt(0)')
    p('v_and_b32 v3, 8, v1'); p('v_cmp_eq_u32 vcc, 0, v3'); p('v_mov_b32 v3, 0xeeeeeeee'); p('v_mov_b32 v7, 0x44444444'); p('v_cndmask_b32 v3, v3, v7, vcc')
    p('s_lshr_b32 s%d, s%d, 1' % (S_T1, S_WAVE)); p('s_lshl_b32 s%d, s%d, 14' % (S_T1, S_T1)); p('s_and_b32 s%d, s%d, 1' % (S_T0, S_WAVE)); p('s_lshl_b32 s%d, s%d, 12' % (S_T0, S_T0))
    p('s_add_u32 s%d, s%d, s%d' % (S_T0, S_T0, S_T1)); p('v_add_u32 v4, s%d, v2' % S_T0)
    p('v_lshrrev_b32 v8, 4, v1'); p('v_lshlrev_b32 v8, 8, v8'); p('v_and_b32 v9, 7, v1'); p('v_lshlrev_b32 v9, 4, v9'); p('v_add_u32 v8, v8, v9')
    p('v_bfe_u32 v9, v1, 3, 1'); p('v_lshlrev_b32 v9, 3, v9'); p('v_add_u32 v8, v8, v9')
    p('s_lshl_b32 s%d, s%d, 10' % (S_T0, S_WAVE)); p('s_add_u32 s%d, s%d, 32768' % (S_T0, S_T0)); p('v_add_u32 v5, s%d, v8' % S_T0)
    p('s_lshl_b32 s%d, s%d, 14' % (S_T0, c)); p('s_lshl_b32 s%d, s%d, 11' % (S_T1, S_WAVE)); p('s_add_u32 s%d, s%d, s%d' % (S_T0, S_T0, S_T1)); p('v_add_u32 v6, s%d, v2' % S_T0)
    p('s_lshl_b32 s%d, s%d, 15' % (S_T0, c)); p('s_lshl_b32 s%d, s%d, 13' % (S_T1, S_WAVE)); p('s_add_u32 s%d, s%d, s%d' % (S_T0, S_T0, S_T1)); p('v_add_u32 v10, s%d, v2' % S_T0)
    p('v_bfe_u32 v8, v1, 1, 1'); p('v_lshlrev_b32 v8, 8, v8')
    p('v_bfe_u32 v9, v1, 4, 1'); p('v_lshlrev_b32 v9, 7, v9'); p('v_add_u32 v8, v8, v9')
    p('v_lshrrev_b32 v9, 5, v1'); p('v_lshlrev_b32 v9, 5, v9'); p('v_add_u32 v8, v8, v9')
    p('v_bfe_u32 v9, v1, 2, 2'); p('v_lshlrev_b32 v9, 3, v9'); p('v_add_u32 v8, v8, v9')
    p('v_and_b32 v9, 1, v1'); p('v_lshlrev_b32 v9, 2, v9'); p('v_add_u32 v8, v8, v9')
    p('s_lshl_b32 s%d, s%d, 9' % (S_T0, S_WAVE)); p('v_add_u32 v11, s%d, v8' % S_T0)
    p('v_lshlrev_b32 v12, 3, v1'); p('v_lshlrev_b32 v13, 2, v1'); p('s_lshl_b32 s%d, s%d, 8' % (S_T0, c))
    p('s_add_u32 s%d, s%d, 8192' % (S_T1, S_T0)); p('s_cmp_ge_u32 s%d, 32' % c); p('s_cselect_b32 s%d, s%d, s%d' % (S_T0, S_T1, S_T0))
    p('v_add_u32 v13, s%d, v13' % S_T0)
    p('v_lshlrev_b32 v14, 2, v1'); p('s_lshl_b32 s%d, s%d, 8' % (S_T0, c)); p('v_add_u32 v14, s%d, v14' % S_T0)
    p('v_mov_b32 v8, 0x7ff00000'); p('v_and_b32 v9, 3, v1'); p('v_cmp_eq_u32 vcc, 0, v9'); p('v_cndmask_b32 v13, v8, v13, vcc')
    p('s_lshl_b32 s%d, s%d, 11' % (S_T0, S_WAVE)); p('s_add_u32 s%d, s%d, %d' % (S_T0, S_T0, R_RED2)); p('v_add_u32 v15, s%d, v2' % S_T0)
    p('v_and_b32 v8, 15, v1'); p('s_and_b32 s%d, s%d, 1' % (S_T0, S_WAVE)); p('s_lshl_b32 s%d, s%d, 4' % (S_T0, S_T0)); p('v_add_u32 v8, s%d, v8' % S_T0); p('v_mul_u32_u24 v8, 1280, v8')
    p('v_lshrrev_b32 v9, 4, v1'); p('v_lshlrev_b32 v9, 3, v9'); p('s_lshl_b32 s%d, s%d, 5' % (S_T0, c)); p('v_add_u32 v9, s%d, v9' % S_T0)
    p('v_add_u32 v28, v8, v9')
    p('s_and_b32 s%d, s%d, 1' % (S_T0, S_WAVE)); p('s_lshl_b32 s%d, s%d, 10' % (S_T0, S_T0)); p('s_add_u32 s%d, s%d, %d' % (S_T0, S_T0, R_RED2)); p('v_add_u32 v29, s%d, v2' % S_T0)
    p('s_mov_b32 s%d, %d' % (S_T0, OFF_MOD + 2 * 1280))
    p('buffer_load_dwordx2 v[30:31], v9, s[%d:%d], s%d offen' % (S_WS, S_WS + 3, S_T0))
    p('s_waitcnt vmcnt(0)')
    p('v_lshlrev_b32 v24, 16, v30'); p('v_and_b32 v25, 0xffff0000, v30'); p('v_lshlrev_b32 v26, 16, v31'); p('v_and_b32 v27, 0xffff0000, v31')
    p('s_lshl_b32 s%d, s%d, %d' % (S_T0, c, FSH)); p('v_mov_b32 v30, s%d' % S_T0); p('v_mov_b32 v8, 0x7ff00000'); p('v_cmp_eq_u32 vcc, 0, v1'); p('v_cndmask_b32 v30, v8, v30, vcc')
    p('v_and_b32 v0, 31, v1'); p('v_lshlrev_b32 v0, %d, v0' % FSH)
    p('s_mov_b32 s%d, 0' % S_MASK); p('s_mov_b32 s%d, -1' % (S_MASK + 1))
    p('s_mov_b32 s%d, 0' % S_STEP)
    p('s_mov_b32 s%d, %d' % (S_VOO, OFF_VO))
    ZB = 64; PA = 72; PM = 88; ACC = 16; SENT = 96; PF = 128
    def VOa(k, j, n=4): return ar(40 * k + 4 * j, n)
    def Za(k, a): return ar(40 * k + 32 + 4 * a, 4)
    def vo_load(k):
        for j in range(8):
            if j == 4: p('s_add_u32 s%d, s%d, 4096' % (S_T0, S_VOO))
            p('buffer_load_dwordx4 %s, v10, s[%d:%d], s%d offen offset:%d sc1' % (VOa(k, j), S_WS, S_WS + 3, S_VOO if j < 4 else S_T0, (j % 4) * 1024))
    def vo_wait(add):
        if USE_FLAGS:
            p('s_add_u32 s%d, s%d, %d' % (S_T3, S_STEP, add)); wait_flags(p, 0, F_VO, S_T3, 7)
    S_SG = S_T6
    def seg_issue(wait):
        if wait and USE_FLAGS:
            p('s_add_u32 s%d, s%d, 1' % (S_T3, S_SG)); wait_flags(p, 0, F_P, S_T3, 7)
        p('s_mul_i32 s%d, s%d, 81920' % (S_T4, S_SG)); p('s_add_u32 s%d, s%d, %d' % (S_T4, S_T4, OFF_PS))
        for tau in range(2):
            p('s_lshl_b32 s%d, s%d, 13' % (S_T0, S_WAVE)); p('s_add_u32 s%d, s%d, s%d' % (S_T0, S_T0, S_T4)); p('s_add_u32 s%d, s%d, %d' % (S_T0, S_T0, tau * 32768))
            for j in range(8):
                if j == 4: p('s_add_u32 s%d, s%d, 4096' % (S_T0, S_T0))
                p('buffer_load_dwordx4 %s, v2, s[%d:%d], s%d offen offset:%d sc1' % (vr(PF + 40 * tau + 4 * j, 4), S_WS, S_WS + 3, S_T0, (j % 4) * 1024))
            p('s_lshl_b32 s%d, s%d, 11' % (S_T0, S_WAVE)); p('s_add_u32 s%d, s%d, s%d' % (S_T0, S_T0, S_T4)); p('s_add_u32 s%d, s%d, %d' % (S_T0, S_T0, 65536 + tau * 8192))
            for a in range(2):
                p('buffer_load_dwordx4 %s, v2, s[%d:%d], s%d offen offset:%d sc1' % (vr(PF + 40 * tau + 32 + 4 * a, 4), S_WS, S_WS + 3, S_T0, a * 1024))
        p('s_mul_i32 s%d, s%d, %d' % (S_T5, S_SG, 32 * 1280))
        p('buffer_load_dwordx2 v[100:101], v28, s[%d:%d], s%d offen' % (S_W1, S_W1 + 3, S_T5))
    def seg_compute(k, after):
        for tau in range(2):
            p('s_waitcnt vmcnt(%d)' % ((11 if tau == 0 else 1) + after))
            a = 104 + 4 * tau
            for j in range(8):
                p('v_mfma_f32_16x16x32_bf16 %s, %s, %s, %s' % (vr(a, 4), VOa(k, j), vr(PF + 40 * tau + 4 * j, 4), '0' if j == 0 else vr(a, 4)))
            for aa in range(2):
                p('v_mfma_f32_16x16x32_bf16 %s, %s, %s, %s' % (vr(a, 4), Za(k, aa), vr(PF + 40 * tau + 32 + 4 * aa, 4), vr(a, 4)))
        p('ds_write_b128 v15, v[104:107]'); p('ds_write_b128 v15, v[108:111] offset:1024')
        p('s_waitcnt lgkmcnt(0)'); p('s_barrier')
        l = p.newlabel('LRs'); p('s_cmp_ge_u32 s%d, 2' % S_WAVE); p('s_cbranch_scc1 %s' % l)
        for w in range(4): p('ds_read_b128 %s, v29 offset:%d' % (vr(104 + 4 * w, 4), w * 2048))
        p('s_waitcnt vmcnt(%d) lgkmcnt(0)' % after)
        for r in range(4):
            p('v_add_f32 v%d, v%d, v%d' % (104 + r, 104 + r, 108 + r)); p('v_add_f32 v%d, v%d, v%d' % (112 + r, 112 + r, 116 + r)); p('v_add_f32 v%d, v%d, v%d' % (104 + r, 104 + r, 112 + r))
        p('v_lshlrev_b32 v108, 16, v100'); p('v_and_b32 v109, 0xffff0000, v100'); p('v_lshlrev_b32 v110, 16, v101'); p('v_and_b32 v111, 0xffff0000, v101')
        for r in range(4): p('v_fmac_f32 v%d, v%d, v%d' % (108 + r, 24 + r, 104 + r))
        p('v_cvt_pk_bf16_f32 v100, v108, v109'); p('v_cvt_pk_bf16_f32 v101, v110, v111')
        p('s_add_u32 s%d, s%d, %d' % (S_T5, S_T5, OFF_X1))
        p('buffer_store_dwordx2 v[100:101], v28, s[%d:%d], s%d offen sc1' % (S_WS, S_WS + 3, S_T5))
        p.label(l)
    def x1_flag(val_s):
        p('v_mov_b32 v102, s%d' % val_s); p('s_mov_b32 s%d, %d' % (S_T0, F_X1))
        p('buffer_store_dword v102, v30, s[%d:%d], s%d offen sc1' % (S_WS, S_WS + 3, S_T0))
    parity_probe(p); parity_wait(p)
    vo_wait(1)
    vo_load(0)
    stamp(p, 1, st)
    pf_init(p)
    for r in range(SENT, SENT + 4): p('v_mov_b32 v%d, -1' % r)
    p('v_lshrrev_b32 v31, 5, v1'); p('v_lshlrev_b32 v31, %d, v31' % (FSH + 5)); p('v_add_u32 v31, v31, v0')
    loop = p.newlabel('LRloop'); p.label(loop)
    for k in range(4):
        pf(p, 0)
        for r in range(ACC, ACC + 4): p('v_mov_b32 v%d, 0' % r)
        step_offsets(p, 1)
        p('s_mov_b32 s%d, %d' % (S_T0, F_VO))
        p('buffer_load_dword v103, v31, s[%d:%d], s%d offen sc1' % (S_WS, S_WS + 3, S_T0))
        def ploads():
            for z in range(4): p('buffer_load_dwordx4 %s, v4, s[%d:%d], s%d offen offset:%d sc1' % (vr(PA + 4 * z, 4), S_WS, S_WS + 3, S_PO, z * 1024))
            for hp in range(2): p('buffer_load_dwordx2 %s, v5, s[%d:%d], s%d offen offset:%d sc1' % (vr(PM + 2 * hp, 2), S_WS, S_WS + 3, S_PO, hp * 128))
            return 6
        def zloads():
            p('buffer_load_dwordx4 %s, v6, s[%d:%d], s%d offen sc1' % (vr(ZB, 4), S_WS, S_WS + 3, S_ZO))
            p('buffer_load_dwordx4 %s, v6, s[%d:%d], s%d offen offset:1024 sc1' % (vr(ZB + 4, 4), S_WS, S_WS + 3, S_ZO))
            return 2
        if R_MODE == 0:
            pf(p, 1)
            poll_loop(p, lambda: ploads() + zloads(), list(range(PA, PA + 20)) + list(range(ZB, ZB + 8)), 7, 'p', 'p')
        elif R_MODE == 1:
            poll_loop(p, zloads, list(range(ZB, ZB + 8)), 7, 'z', 'z')
            pf(p, 1)
            poll_loop(p, ploads, list(range(PA, PA + 20)), 7, 'p', 'p')
        else:
            poll_loop(p, ploads, list(range(PA, PA + 20)), 7, 'p', 'p')
            pf(p, 1)
            poll_loop(p, zloads, list(range(ZB, ZB + 8)), 7, 'z', 'z')
        pf(p, 2)
        trace(p, 0, trace_on)
        p('v_smfmac_f32_16x16x64_bf16 %s, %s, %s, v3' % (vr(ACC, 4), vr(PM, 4), vr(ZB, 8)))
        for z in range(4): p('v_smfmac_f32_16x16x64_bf16 %s, %s, %s, v3' % (vr(ACC, 4), vr(PA + 4 * z, 4), VOa(k, 2 * z, 8)))
        p('v_permlane32_swap_b32 v%d, v%d' % (ACC, ACC + 1)); p('v_permlane32_swap_b32 v%d, v%d' % (ACC + 2, ACC + 3))
        p('v_add_f32 v%d, v%d, v%d' % (ACC, ACC, ACC + 1)); p('v_add_f32 v%d, v%d, v%d' % (ACC + 2, ACC + 2, ACC + 3))
        p('ds_write2_b32 v11, v%d, v%d offset0:0 offset1:16' % (ACC, ACC + 2))
        p('s_waitcnt lgkmcnt(0)')
        p('s_barrier')
        pf(p, 3)
        l = p.newlabel('LRw'); p('s_cmp_lg_u32 s%d, 0' % S_WAVE); p('s_cbranch_scc1 %s' % l)
        for w in range(4): p('ds_read_b64 %s, v12 offset:%d' % (vr(20 + 2 * w, 2) if w < 2 else vr(32 + 2 * (w - 2), 2), w * 512))
        p('s_waitcnt lgkmcnt(0)')
        p('v_add_f32 v20, v20, v22'); p('v_add_f32 v21, v21, v23'); p('v_add_f32 v32, v32, v34'); p('v_add_f32 v33, v33, v35')
        p('v_add_f32 v20, v20, v32'); p('v_add_f32 v21, v21, v33')
        p('v_cvt_pk_bf16_f32 v20, v20, v21')
        if HIST: p('v_mov_b32 v32, v20')
        for kk in (1, 2, 3): p('v_mov_b32_dpp v%d, v20 quad_perm:[%d,%d,%d,%d] row_mask:0xf bank_mask:0xf' % (20 + kk, kk, kk, kk, kk))
        p('buffer_store_dwordx4 v[20:23], v13, s[%d:%d], s%d offen sc1' % (S_WS, S_WS + 3, S_MEMO))
        pf(p, 4)
        pf_acc(p)
        trace(p, 2, trace_on)
        if HIST:
            p('s_mul_i32 s%d, s%d, 10240' % (S_T0, S_STEP)); p('s_add_u32 s%d, s%d, %d' % (S_T0, S_T0, OFF_HIST + 10240))
            p('buffer_store_dword v32, v14, s[%d:%d], s%d offen' % (S_WS, S_WS + 3, S_T0))
        p.label(l)
        l3 = p.newlabel('LRq'); p('s_cmp_lg_u32 s%d, 1' % S_WAVE); p('s_cbranch_scc1 %s' % l3)
        p('s_and_b32 s%d, s%d, %d' % (S_T0, S_STEP, MEM_RING - 1)); p('s_lshl_b32 s%d, s%d, 15' % (S_T0, S_T0)); p('s_add_u32 s%d, s%d, s%d' % (S_T0, S_T0, S_COMM))
        p('buffer_store_dwordx4 %s, v13, s[%d:%d], s%d offen sc1' % (vr(SENT, 4), S_WS, S_WS + 3, S_T0))
        p.label(l3)
        if SEGROWS:
            l4 = p.newlabel('LRx'); p('s_cmp_lg_u32 s%d, 2' % S_WAVE); p('s_cbranch_scc1 %s' % l4)
            p('s_cmp_lt_u32 s%d, 3' % S_STEP); p('s_cbranch_scc1 %s' % l4)
            p('s_sub_u32 s%d, s%d, 2' % (S_T1, S_STEP)); x1_flag(S_T1)
            p.label(l4)
        p('s_barrier')
        lok = p.newlabel('LRok')
        if USE_FLAGS:
            p('s_add_u32 s%d, s%d, 2' % (S_T1, S_STEP)); p('s_min_u32 s%d, s%d, 64' % (S_T1, S_T1))
            p('s_max_u32 s%d, s%d, 1' % (S_T2, S_STEP)); p('s_sub_u32 s%d, s%d, 1' % (S_T2, S_T2))
            p('v_mov_b32 v102, s%d' % S_T1); p('v_mov_b32 v7, s%d' % S_T2); p('v_cndmask_b32 v102, v102, v7, s[%d:%d]' % (S_MASK, S_MASK + 1))
            p('v_cmp_gt_u32 vcc, v102, v103'); p('s_cbranch_vccz %s' % lok)
            p('s_mov_b32 s%d, s%d' % (S_T3, S_T1)); wait_flags(p, 0, F_VO, S_T3, 7)
            p('s_max_u32 s%d, s%d, 1' % (S_T3, S_STEP)); p('s_sub_u32 s%d, s%d, 1' % (S_T3, S_T3)); wait_flags(p, 0, F_P, S_T3, 7)
        p.label(lok)
        for r in range(8): p('v_accvgpr_write_b32 a%d, v%d' % (40 * k + 32 + r, ZB + r))
        p('s_add_u32 s%d, s%d, 1' % (S_STEP, S_STEP))
        lns = p.newlabel('LRns'); ljoin = p.newlabel('LRj')
        def tail_loads():
            p('buffer_store_dwordx4 %s, v6, s[%d:%d], s%d offen sc1' % (vr(SENT, 4), S_WS, S_WS + 3, S_ZO))
            p('buffer_store_dwordx4 %s, v6, s[%d:%d], s%d offen offset:1024 sc1' % (vr(SENT, 4), S_WS, S_WS + 3, S_ZO))
            p('s_add_u32 s%d, s%d, %d' % (S_VOO, S_VOO, 40 * 32 * 1024))
            vo_load((k + 1) & 3)
        if SEGROWS:
            p('s_cmp_lt_u32 s%d, 3' % S_STEP); p('s_cbranch_scc1 %s' % lns)
            p('s_sub_u32 s%d, s%d, 3' % (S_SG, S_STEP)); seg_issue(False)
            tail_loads()
            seg_compute((k + 2) & 3, 10)
            p('s_branch %s' % ljoin)
        p.label(lns)
        tail_loads()
        p.label(ljoin)
    p('s_cmp_lt_u32 s%d, s%d' % (S_STEP, S_NST)); p('s_cbranch_scc1 %s' % loop)
    if SEGROWS:
        for sg in (62, 63):
            p('s_barrier')
            p('s_mov_b32 s%d, %d' % (S_SG, sg)); seg_issue(True); seg_compute(sg & 3, 0)
        p('s_waitcnt vmcnt(0)'); p('s_barrier')
        l = p.newlabel('LRf'); p('s_cmp_lg_u32 s%d, 2' % S_WAVE); p('s_cbranch_scc1 %s' % l)
        p('s_mov_b32 s%d, 64' % S_T1); x1_flag(S_T1)
        p.label(l)

HEADER = '''.amdgcn_target "amdgcn-amd-amdhsa--gfx950"
.text
'''
def kernel_desc(name, vgpr=512, accum=256, sgpr=96):
    return '''.section .rodata,"a"
.p2align 6
.amdhsa_kernel %s
  .amdhsa_next_free_vgpr %d
  .amdhsa_next_free_sgpr %d
  .amdhsa_accum_offset %d
  .amdhsa_group_segment_fixed_size 0
  .amdhsa_kernarg_size 128
  .amdhsa_user_sgpr_count 2
  .amdhsa_user_sgpr_kernarg_segment_ptr 1
  .amdhsa_system_sgpr_workgroup_id_x 1
.end_amdhsa_kernel
''' % (name, vgpr, sgpr, accum)

PLACE = 0
def gen_core_test(nsteps=64, trace_on=False, st=False):
    p = Prog()
    name = 'core_kernel'
    p.raw('.globl %s' % name); p.raw('.p2align 8'); p.raw('.type %s,@function' % name); p.label(name)
    srd(p, S_WS, KA['ws'], WS_BYTES)
    p('s_load_dwordx2 s[%d:%d], s[0:1], %d' % (S_DBG, S_DBG + 1, KA['dbg']))
    p('s_mov_b32 s%d, %d' % (S_NST, nsteps))
    p('s_waitcnt lgkmcnt(0)')
    comm_setup(p)
    lA, lB, lR, lend = 'L_roleA', 'L_roleB', 'L_roleR', 'L_end'
    if PLACE == 1:
        p('s_and_b32 s20, s2, 7'); p('s_cmp_ge_u32 s20, 4'); p('s_cbranch_scc1 L_exit')
        p('s_lshr_b32 s21, s2, 3'); p('s_lshl_b32 s21, s21, 2'); p('s_add_u32 s2, s21, s20')
    elif PLACE == 2:
        p('s_and_b32 s20, s2, 7'); p('s_cmp_ge_u32 s20, 4'); p('s_cbranch_scc1 L_exit')
        p('s_lshr_b32 s21, s2, 3')
        l0 = p.newlabel('Lpl'); l1 = p.newlabel('Lpl')
        p('s_cmp_ge_u32 s20, 2'); p('s_cbranch_scc1 %s' % l0)
        p('s_lshl_b32 s20, s20, 5'); p('s_add_u32 s2, s20, s21'); p('s_branch %s' % l1)
        p.label(l0)
        p('s_cmp_ge_u32 s21, 20'); p('s_cbranch_scc1 L_exit')
        p('s_sub_u32 s20, s20, 2'); p('s_mul_i32 s20, s20, 20'); p('s_add_u32 s2, s20, s21'); p('s_add_u32 s2, s2, 64')
        p.label(l1)
    elif PLACE == 3:
        p('s_and_b32 s20, s2, 7'); p('s_cmp_ge_u32 s20, 4'); p('s_cbranch_scc1 L_exit')
        p('s_lshr_b32 s21, s2, 3')
        l0 = p.newlabel('Lpl'); l1 = p.newlabel('Lpl')
        p('s_cmp_ge_u32 s20, 2'); p('s_cbranch_scc1 %s' % l0)
        p('s_lshr_b32 s22, s21, 1'); p('s_lshl_b32 s23, s20, 4'); p('s_add_u32 s22, s22, s23'); p('s_and_b32 s21, s21, 1'); p('s_lshl_b32 s21, s21, 5'); p('s_add_u32 s2, s22, s21'); p('s_branch %s' % l1)
        p.label(l0)
        p('s_cmp_ge_u32 s21, 20'); p('s_cbranch_scc1 L_exit')
        p('s_sub_u32 s20, s20, 2'); p('s_mul_i32 s20, s20, 20'); p('s_add_u32 s2, s20, s21'); p('s_add_u32 s2, s2, 64')
        p.label(l1)
    if st:
        p('v_lshrrev_b32 v3, 6, v0'); p('v_readfirstlane_b32 s%d, v3' % S_WAVE); p('v_mov_b32 v20, v0'); stamp(p, 0, True); p('v_mov_b32 v0, v20')
    p('s_cmp_lt_u32 s2, 32'); p('s_cbranch_scc1 %s' % lA)
    p('s_cmp_lt_u32 s2, 64'); p('s_cbranch_scc1 %s' % lB)
    p('s_cmp_lt_u32 s2, 104'); p('s_cbranch_scc1 %s' % lR)
    p.label('L_exit')
    p('s_endpgm')
    p.label(lA); p('s_mov_b32 s%d, s2' % S_IDX); gen_A(p, trace_on, st); p('s_branch %s' % lend)
    p.label(lB); p('s_sub_u32 s%d, s2, 32' % S_IDX); gen_B(p, trace_on, st); p('s_branch %s' % lend)
    p.label(lR); p('s_sub_u32 s%d, s2, 64' % S_IDX); gen_R(p, trace_on, st)
    p.label(lend)
    stamp(p, 2, st)
    pf_out(p)
    l = p.newlabel('Lok'); p('s_cmp_lg_u32 s%d, 0' % S_SPIN); p('s_cbranch_scc1 %s' % l)
    p('v_mov_b32 v4, 0'); p('v_mov_b32 v5, s2'); p('v_add_u32 v5, 1, v5'); p('global_store_dword v4, v5, s[%d:%d]' % (S_DBG, S_DBG + 1))
    p.label(l)
    p('s_waitcnt vmcnt(0)')
    p('s_endpgm')
    body = p.text()
    return '; @launch grid=(256,1,1) block=(256,1,1) lds=163840\n' + HEADER + body + kernel_desc(name), p

if __name__ == '__main__':
    t, p = gen_core_test()
    open('core.s', 'w').write(t)
    print(len(t), 'bytes', p.nops, 'nops')
```

```python
from core import *
import core, struct

S_COMZ = 39
FAST_SM = True
RTRACE = False
CLASSIC = {'mem': True, 'p': True}
CHECK1 = True
S_DLY = 62; S_RND = 63; S_RSUM = 60
PACE = {'mem': 2, 'p': 4}
DLY_INIT = {'A': 0, 'B': 0, 'R': 0}
DLY_ADJ = [-3, 0, 2, 4, 8]

def comm_setup2(p):
    p('s_add_u32 s%d, s%d, %d' % (S_T0, S_WS, OFF_COMM))
    p('s_sub_u32 s%d, 0, s%d' % (S_T0, S_T0)); p('s_and_b32 s%d, s%d, 0x1fffff' % (S_T0, S_T0))
    if core.DYN_PAR:
        p('s_add_u32 s%d, s%d, %d' % (S_COMM, S_T0, OFF_COMM)); p('s_add_u32 s%d, s%d, %d' % (S_COMZ, S_COMM, 2 << 20))
    else:
        p('s_add_u32 s%d, s%d, %d' % (S_COMM, S_T0, OFF_COMM + (core.PARITY & 1) * 8192))
        p('s_add_u32 s%d, s%d, %d' % (S_COMZ, S_T0, OFF_COMM + (2 << 20) + ((core.PARITY >> 1) & 1) * 8192))

def parity_probe2(p):
    if not core.DYN_PAR: return
    l = p.newlabel('Lpp'); p('s_cmp_lg_u32 s%d, 0' % S_WAVE); p('s_cbranch_scc1 %s' % l)
    p('s_cmp_lg_u32 s%d, 0' % S_IDX); p('s_cbranch_scc1 %s' % l)
    p('v_mov_b32 v16, 0'); p('v_mov_b32 v17, -1')
    p('s_mov_b32 s54, 4')
    for pg, base in ((0, S_COMM), (1, S_COMZ)):
        p('s_mov_b32 s48, 0'); p('s_mov_b32 s49, 0')
        for i in range(4):
            for par in range(2):
                p('s_add_u32 s%d, s%d, %d' % (S_T0, base, (BLK_PROBE + i) * BLK + par * 8192 + i * 256))
                p('buffer_store_dword v17, v16, s[%d:%d], s%d offen sc1' % (S_WS, S_WS + 3, S_T0))
                p('s_waitcnt vmcnt(0)')
                p('s_memtime s[50:51]'); p('s_waitcnt lgkmcnt(0)')
                p('buffer_load_dword v18, v16, s[%d:%d], s%d offen sc1' % (S_WS, S_WS + 3, S_T0))
                p('s_waitcnt vmcnt(0)')
                p('s_memtime s[52:53]'); p('s_waitcnt lgkmcnt(0)')
                p('s_sub_u32 s50, s52, s50')
                if i > 0: p('s_add_u32 s%d, s%d, s50' % (48 + par, 48 + par))
        p('s_cmp_lt_u32 s49, s48'); p('s_cselect_b32 s50, %d, 0' % (1 << pg)); p('s_add_u32 s54, s54, s50')
    p('v_mov_b32 v17, s54')
    dbg_srd(p, 52)
    p('v_cmp_eq_u32 vcc, 0, v1'); p('v_mov_b32 v18, 0x7ff00000'); p('v_cndmask_b32 v16, v18, v16, vcc')
    p('buffer_store_dword v17, v16, s[52:55], 0 offen sc1')
    p('s_waitcnt vmcnt(0)')
    p.label(l)

def ready(p):
    if core.FUSED:
        import fused
        fused.wait_ready(p)

def parity_wait2(p, lds_off=10240):
    if core.FUSED and core.DYN_PAR:
        import fused
        fused.wait_ready(p, parity=lds_off)
    else:
        ready(p)
        if not core.DYN_PAR: return
        dbg_srd(p, 52)
        top = p.newlabel('Lpw'); done = p.newlabel('Lpwd')
        p('v_mov_b32 v16, 0')
        p.label(top)
        p('buffer_load_dword v17, v16, s[52:55], 0 offen sc1'); p('s_waitcnt vmcnt(0)')
        p('v_readfirstlane_b32 s50, v17')
        p('s_cmp_lg_u32 s50, 0'); p('s_cbranch_scc1 %s' % done)
        p('s_sleep 4')
        p('s_cmp_eq_u32 s%d, 0' % S_SPIN); p('s_cbranch_scc1 %s' % done)
        p('s_sub_u32 s%d, s%d, 1' % (S_SPIN, S_SPIN)); p('s_branch %s' % top)
        p.label(done)
    p('s_and_b32 s51, s50, 1'); p('s_lshl_b32 s51, s51, 13'); p('s_add_u32 s%d, s%d, s51' % (S_COMM, S_COMM))
    p('s_and_b32 s51, s50, 2'); p('s_lshl_b32 s51, s51, 12'); p('s_add_u32 s%d, s%d, s51' % (S_COMZ, S_COMZ))

def offsets2(p, mem_add=0, want=('mem', 'p', 'z')):
    if 'mem' in want:
        p('s_add_u32 s%d, s%d, %d' % (S_T0, S_STEP, mem_add)); p('s_and_b32 s%d, s%d, %d' % (S_T0, S_T0, MEM_RING - 1))
        p('s_mul_i32 s%d, s%d, %d' % (S_T0, S_T0, MEM_SLOT * BLK)); p('s_add_u32 s%d, s%d, s%d' % (S_MEMO, S_T0, S_COMM))
        if BLK_MEM: p('s_add_u32 s%d, s%d, %d' % (S_MEMO, S_MEMO, BLK_MEM * BLK))
    if 'p' in want:
        p('s_and_b32 s%d, s%d, %d' % (S_T0, S_STEP, P_RING - 1)); p('s_mul_i32 s%d, s%d, %d' % (S_T0, S_T0, P_SLOT * BLK))
        p('s_add_u32 s%d, s%d, s%d' % (S_PO, S_T0, S_COMM)); p('s_add_u32 s%d, s%d, %d' % (S_PO, S_PO, BLK_P * BLK))
    if 'z' in want:
        p('s_and_b32 s%d, s%d, %d' % (S_T0, S_STEP, Z_RING - 1)); p('s_mul_i32 s%d, s%d, %d' % (S_T0, S_T0, 40 * BLK))
        p('s_add_u32 s%d, s%d, s%d' % (S_ZO, S_T0, S_COMZ))

def check_regs(p, regs, tmp, quads=None):
    r = list(regs)
    if CHECK1 and quads: r = list(quads)
    if len(r) < 3: r = r + [r[0]] * (3 - len(r))
    p('v_max3_u32 v%d, v%d, v%d, v%d' % (tmp, r[0], r[1], r[2])); r = r[3:]
    while len(r) >= 2:
        p('v_max3_u32 v%d, v%d, v%d, v%d' % (tmp, tmp, r[0], r[1])); r = r[2:]
    if r: p('v_max_u32 v%d, v%d, v%d' % (tmp, tmp, r[0]))
    p('v_cmp_eq_u32 vcc, -1, v%d' % tmp)

def budget(p, giveup, again):
    p('s_cmp_eq_u32 s%d, 0' % S_SPIN); p('s_cbranch_scc1 %s' % giveup)
    p('s_sub_u32 s%d, s%d, 1' % (S_SPIN, S_SPIN)); p('s_branch %s' % again)

def multi_poll(p, issue, n, regs_of_set, tmp, kind, variant, first_hook=None, pre_issue=None, quads=None):
    if CLASSIC[kind]:
        top = p.newlabel('Lcl'); ok = p.newlabel('Lclok')
        if pre_issue:
            pre_issue(); p('s_waitcnt vmcnt(0)'); first_hook()
        p.label(top)
        if core.PROF: p('s_memtime s[64:65]'); p('s_add_u32 s68, s68, 1')
        issue(0, 0); p('s_waitcnt vmcnt(0)'); check_regs(p, regs_of_set(0), tmp, quads(0) if quads else None); p('s_cbranch_vccz %s' % ok)
        budget(p, ok, top)
        p.label(ok)
        if core.PROF:
            p('s_memtime s[66:67]'); p('s_waitcnt lgkmcnt(0)'); p('s_sub_u32 s64, s66, s64'); p('s_add_u32 s69, s69, s64')
        p('s_mov_b32 s%d, 1' % S_RND)
        variant(0)
        return
    V = [p.newlabel('Lv%d' % j) for j in range(4)]; join = p.newlabel('Lvj'); fb = p.newlabel('Lfb'); fbok = p.newlabel('Lfbok')
    dl = p.newlabel('Ldl'); dld = p.newlabel('Ldld')
    p('s_mov_b32 s%d, s%d' % (S_T1, S_DLY))
    p.label(dl); p('s_cmp_eq_u32 s%d, 0' % S_T1); p('s_cbranch_scc1 %s' % dld)
    p('s_sleep 1'); p('s_sub_u32 s%d, s%d, 1' % (S_T1, S_T1)); p('s_branch %s' % dl)
    p.label(dld)
    if pre_issue: pre_issue()
    issue(0, 0); p('s_sleep %d' % PACE[kind]); issue(1, 1); p('s_sleep %d' % PACE[kind]); issue(2, 2)
    p('s_waitcnt vmcnt(%d)' % (2 * n))
    if first_hook: first_hook()
    check_regs(p, regs_of_set(0), tmp); p('s_cbranch_vccz %s' % V[0])
    issue(3, 3)
    p('s_waitcnt vmcnt(%d)' % (2 * n)); check_regs(p, regs_of_set(1), tmp); p('s_cbranch_vccz %s' % V[1])
    p('s_waitcnt vmcnt(%d)' % n); check_regs(p, regs_of_set(2), tmp); p('s_cbranch_vccz %s' % V[2])
    p('s_waitcnt vmcnt(0)'); check_regs(p, regs_of_set(3), tmp); p('s_cbranch_vccz %s' % V[3])
    p.label(fb)
    issue(0, 0); p('s_waitcnt vmcnt(0)'); check_regs(p, regs_of_set(0), tmp); p('s_cbranch_vccz %s' % fbok)
    budget(p, fbok, fb)
    p.label(fbok)
    p('s_mov_b32 s%d, 4' % S_RND)
    lv0 = p.newlabel('Lv0b'); p('s_branch %s' % lv0)
    for j in range(4):
        p.label(V[j]); p('s_mov_b32 s%d, %d' % (S_RND, j))
        if j == 0: p.label(lv0)
        variant(j)
        if j < 3: p('s_branch %s' % join)
    p.label(join)

def rnd_write(p, lds_off, t1, t2):
    p('s_lshl_b32 s%d, s%d, 2' % (S_T1, S_WAVE)); p('s_add_u32 s%d, s%d, %d' % (S_T1, S_T1, lds_off))
    p('v_mov_b32 v%d, s%d' % (t1, S_T1)); p('v_mov_b32 v%d, s%d' % (t2, S_RND)); p('ds_write_b32 v%d, v%d' % (t1, t2))
    if core.PROF: p('s_add_u32 s%d, s%d, s%d' % (S_RSUM, S_RSUM, S_RND))

def dly_update(p, lds_off, t):
    p('v_mov_b32 v%d, %d' % (t + 4, lds_off)); p('ds_read_b128 %s, v%d' % (vr(t, 4), t + 4)); p('s_waitcnt lgkmcnt(0)')
    p('v_max3_u32 v%d, v%d, v%d, v%d' % (t, t, t + 1, t + 2)); p('v_max_u32 v%d, v%d, v%d' % (t, t, t + 3))
    p('v_readfirstlane_b32 s%d, v%d' % (S_RND, t))
    p('s_mov_b32 s%d, %d' % (S_T1, DLY_ADJ[0]))
    for r in range(1, 5):
        p('s_cmp_eq_u32 s%d, %d' % (S_RND, r)); p('s_cselect_b32 s%d, %d, s%d' % (S_T1, DLY_ADJ[r], S_T1))
    p('s_add_i32 s%d, s%d, s%d' % (S_DLY, S_DLY, S_T1)); p('s_max_i32 s%d, s%d, 0' % (S_DLY, S_DLY)); p('s_min_i32 s%d, s%d, 120' % (S_DLY, S_DLY))
    if RTRACE:
        l = p.newlabel('Lrt'); p('s_cmp_lg_u32 s%d, 0' % S_WAVE); p('s_cbranch_scc1 %s' % l)
        p('s_lshl_b32 s%d, s%d, 8' % (S_T7, S_STEP)); p('s_add_u32 s%d, s%d, s2' % (S_T7, S_T7)); p('s_lshl_b32 s%d, s%d, 4' % (S_T7, S_T7)); p('s_add_u32 s%d, s%d, %d' % (S_T7, S_T7, OFF_TRACE + 12))
        p('s_lshl_b32 s%d, s%d, 8' % (S_T1, S_DLY)); p('s_or_b32 s%d, s%d, s%d' % (S_T1, S_T1, S_RND))
        p('v_mov_b32 v%d, s%d' % (t, S_T1)); p('v_mov_b32 v%d, 0' % (t + 1))
        p('buffer_store_dword v%d, v%d, s[%d:%d], s%d offen' % (t, t + 1, S_WS, S_WS + 3, S_T7))
        p.label(l)

def gset(): return 40 if CLASSIC['mem'] else 80
TRACE_ON = False
def gather_and_project(p, lg, ntile, acc0, wres_v, kind, hooks, tail_order=None, wave0_hooks=None):
    def issue(st, cp):
        if cp: p('s_add_u32 s%d, s%d, %d' % (S_T2, S_MEMO, cp * MEM_COPY * BLK))
        for j in range(3):
            p('buffer_load_dwordx4 %s, v%d, s[%d:%d], s%d offen sc1' % (vr(gset() + 12 * st + 4 * j, 4), 4 + j, S_WS, S_WS + 3, S_T2 if cp else S_MEMO))
    def ringreg(tau): return RING + 4 * ((tau - 3) % 3)
    def rd(tau):
        a, off = memfrag_addr(tau)
        p('ds_read_b128 %s, v%d offset:%d' % (vr(ringreg(tau), 4), a, off)); lg.issue(('m', tau))
    base_q = list(lg.q); end_q = []
    def variant(st):
        lg.q = list(base_q)
        pf(p, 1)
        trace(p, 0, TRACE_ON)
        fr = gset() + 12 * st
        for j in range(3):
            p('ds_write_b128 v%d, %s' % (RING + j, vr(fr + 4 * j, 4))); lg.issue(('mw', j))
        for tau in range(3):
            if tau == 2:
                lg.wait(('mw', 2)); p('s_barrier')
                for t in (3, 4, 5): rd(t)
            for tile in range(ntile): smf(p, acc0 + 4 * tile, fr + 4 * tau, tau * ntile + tile, lg, wres_v)
        end_q[:] = list(lg.q)
    multi_poll(p, issue, 3, lambda st: range(gset() + 12 * st, gset() + 12 * st + 12), 7, 'mem', variant, quads=lambda st: [gset() + 12 * st + 4 * j + 3 for j in range(3)])
    lg.q = list(end_q)
    last = 8 if tail_order else 10
    def rest(t0, hk):
        for tau in range(t0, last):
            lg.wait(('m', tau))
            for tile in range(ntile): smf(p, acc0 + 4 * tile, ringreg(tau), tau * ntile + tile, lg, wres_v)
            if tau + 3 < 10: rd(tau + 3)
            if tau in hk: hk[tau]()
        if tail_order: tail_order(ringreg)
    if wave0_hooks is None:
        rest(3, hooks)
    else:
        lo = p.newlabel('Lnw0'); lj = p.newlabel('Lnw0j')
        q0 = list(lg.q)
        p('s_cmp_lg_u32 s%d, 0' % S_WAVE); p('s_cbranch_scc1 %s' % lo)
        rest(3, wave0_hooks); p('s_branch %s' % lj)
        p.label(lo); lg.q = list(q0); rest(3, hooks)
        p.label(lj)

def gen_A2(p, trace_on=False, st=False):
    global TRACE_ON
    TRACE_ON = trace_on
    lg = Cnt(p, 'lgkmcnt', 15); vm = Cnt(p, 'vmcnt', 63)
    h = S_IDX
    srd(p, S_W1, KA['Wq'], 640 * 12288); srd(p, S_W2, KA['Wk'], 640 * 12288)
    common_lane_setup(p)
    p('s_waitcnt lgkmcnt(0)')
    mem_gather_setup(p, A_MEMX)
    p('s_mul_i32 s%d, s%d, 24576' % (S_T0, S_WAVE)); p('s_add_u32 s%d, s%d, 65536' % (S_T0, S_T0)); p('v_add_u32 v15, s%d, v2' % S_T0)
    voffs = [80, 81, 82]
    stage_offsets(p, voffs, 6, 12288, 1, 83, 84)
    p('v_lshrrev_b32 v83, 4, v1'); p('v_lshlrev_b32 v83, 3, v83'); p('v_bfe_u32 v84, v1, 2, 2'); p('v_add_u32 v83, v83, v84')
    p('v_mul_u32_u24 v83, 96, v83'); p('v_and_b32 v84, 3, v1'); p('v_lshlrev_b32 v84, 3, v84'); p('v_add_u32 v85, v83, v84')
    p('s_lshl_b32 s%d, s%d, 14' % (S_T4, S_WAVE)); p('v_add_u32 v85, s%d, v85' % S_T4)
    p('s_mul_i32 s%d, s%d, 384' % (S_T5, h)); p('s_mul_i32 s%d, s%d, 96' % (S_T0, S_WAVE)); p('s_add_u32 s%d, s%d, s%d' % (S_T5, S_T5, S_T0))
    p('s_mul_i32 s%d, s%d, 3' % (S_T6, S_WAVE))
    jobs = []
    for tau in range(10):
        for half in range(2):
            for mat in range(2):
                def soff(dst, tau=tau, half=half):
                    p('s_add_u32 s%d, s%d, %d' % (dst, S_T6, tau))
                    p('s_sub_u32 s%d, s%d, 10' % (S_T2, dst)); p('s_cmp_ge_u32 s%d, 10' % dst); p('s_cselect_b32 s%d, s%d, s%d' % (dst, S_T2, dst))
                    p('s_mul_i32 s%d, s%d, %d' % (dst, dst, 64 * 12288))
                    p('s_add_u32 s%d, s%d, s%d' % (dst, dst, S_T5))
                    if half: p('s_add_u32 s%d, s%d, %d' % (dst, dst, 32 * 12288))
                dests = []
                for x in range(3):
                    kind, n = UM[tau * 6 + mat * 3 + x]
                    if kind == 'reg': dests.append((x * 32, ('reg', unit_reg(n, 4 * half, 2), unit_reg(n, 4 * half + 2, 2))))
                    else: dests.append((x * 32, ('lds', n * 2048 + half * 1024)))
                jobs.append(dict(srd=S_W1 if mat == 0 else S_W2, soff=soff, dests=dests))
    load_weights_type1(p, jobs, 85, 3072, 5, voffs, 3, 96, lg, vm, 15, 88, S_T4)
    p('s_barrier')
    p('v_and_b32 v81, 3, v1'); p('v_lshlrev_b32 v80, 6, v81')
    p('v_bfe_u32 v81, v1, 2, 2'); p('v_lshlrev_b32 v81, 4, v81'); p('v_add_u32 v80, v80, v81')
    p('v_lshrrev_b32 v81, 4, v1'); p('v_lshlrev_b32 v81, 2, v81'); p('v_add_u32 v80, v80, v81')
    p('s_mul_i32 s%d, s%d, 768' % (S_T0, S_WAVE)); p('s_add_u32 s%d, s%d, %d' % (S_T0, S_T0, A_QX)); p('v_add_u32 v11, s%d, v80' % S_T0)
    p('v_bfe_u32 v80, v1, 2, 2'); p('v_lshlrev_b32 v80, 6, v80')
    p('v_lshrrev_b32 v81, 4, v1'); p('v_lshlrev_b32 v81, 4, v81'); p('v_add_u32 v80, v80, v81')
    p('v_and_b32 v81, 1, v1'); p('v_lshlrev_b32 v81, 3, v81'); p('v_add_u32 v80, v80, v81'); p('v_add_u32 v12, %d, v80' % A_QX)
    p('v_lshrrev_b32 v80, 5, v1'); p('v_lshlrev_b32 v80, 8, v80')
    p('v_bfe_u32 v81, v1, 4, 1'); p('v_lshlrev_b32 v81, 4, v81'); p('v_add_u32 v80, v80, v81')
    p('v_and_b32 v81, 7, v1'); p('v_lshlrev_b32 v82, 5, v81'); p('v_add_u32 v80, v80, v82'); p('v_lshlrev_b32 v82, 4, v81')
    p('v_bfe_u32 v83, v1, 3, 1'); p('v_mul_u32_u24 v83, %d, v83' % (P_COPY * BLK)); p('v_add_u32 v80, v80, v83')
    p('s_lshr_b32 s%d, s%d, 4' % (S_T1, h)); p('s_lshl_b32 s%d, s%d, 14' % (S_T1, S_T1)); p('s_and_b32 s%d, s%d, 15' % (S_T0, h)); p('s_lshl_b32 s%d, s%d, 9' % (S_T0, S_T0)); p('s_add_u32 s%d, s%d, s%d' % (S_T0, S_T0, S_T1))
    p('v_add_u32 v13, s%d, v80' % S_T0)
    if CLASSIC['p']: p('v_mov_b32 v82, 0x7ff00000'); p('v_and_b32 v83, 8, v1'); p('v_cmp_eq_u32 vcc, 0, v83'); p('v_cndmask_b32 v13, v82, v13, vcc'); p('v_and_b32 v81, 7, v1'); p('v_lshlrev_b32 v82, 4, v81')
    p('v_bfe_u32 v83, v1, 3, 2'); p('v_mul_u32_u24 v83, %d, v83' % (P_COPY * BLK)); p('v_add_u32 v80, v82, v83')
    p('s_lshl_b32 s%d, s%d, 7' % (S_T0, h)); p('s_add_u32 s%d, s%d, %d' % (S_T0, S_T0, 2 * BLK)); p('v_add_u32 v14, s%d, v80' % S_T0)
    p('v_mov_b32 v82, 0x7ff00000'); p('v_cmp_gt_u32 vcc, %d, v1' % (8 if CLASSIC['p'] else 32)); p('v_cndmask_b32 v14, v82, v14, vcc')
    p('s_mov_b32 s%d, 0' % S_MASK); p('s_mov_b32 s%d, -1' % (S_MASK + 1))
    p('s_mov_b32 s74, 0xff00ff00'); p('s_mov_b32 s75, 0xff00ff00')
    p('s_mov_b32 s%d, 0x%x' % (S_C, struct.unpack('<I', struct.pack('<f', 192 ** -0.5 * 1.4426950408889634))[0]))
    p('s_mov_b32 s%d, 0' % S_STEP)
    p('s_mul_i32 s%d, s%d, 24576' % (S_QKO, h)); p('s_add_u32 s%d, s%d, %d' % (S_QKO, S_QKO, OFF_QK))
    stamp(p, 3, st)
    parity_wait2(p)
    def qk_dma(bufsel_s):
        p('s_mov_b32 s%d, s%d' % (S_T1, S_QKO))
        for j in range(24):
            p('s_add_u32 s%d, s%d, %d' % (S_T0, bufsel_s, j * 1024)); p('s_mov_b32 m0, s%d' % S_T0)
            p('buffer_load_dwordx4 v2, s[%d:%d], s%d offen sc1 lds' % (S_WS, S_WS + 3, S_T1))
            if j < 23: p('s_add_u32 s%d, s%d, 1024' % (S_T1, S_T1))
    def KS(jt, u): return 80 + 4 * (jt * 6 + u)
    def qk_wait(add, sampled=False):
        p('s_add_u32 s%d, s%d, %d' % (S_T3, S_STEP, add))
        lok = p.newlabel('LAok')
        if sampled: p('v_cmp_gt_u32 vcc, s%d, v1' % S_T3); p('s_cbranch_vccz %s' % lok)
        wait_flags(p, 0, F_QK, S_T3, 7)
        p.label(lok)
    p('s_lshl_b32 s%d, s%d, %d' % (S_T0, h, FSH)); p('v_mov_b32 v0, s%d' % S_T0)
    l = p.newlabel('La')
    p('s_cmp_lg_u32 s%d, 3' % S_WAVE); p('s_cbranch_scc1 %s' % l)
    qk_wait(1)
    p('s_mov_b32 s%d, %d' % (S_T3, A_QKB)); qk_dma(S_T3)
    p('s_waitcnt vmcnt(0)')
    p.label(l)
    stamp(p, 1, st)
    pf_init(p); p('s_mov_b32 s%d, %d' % (S_DLY, DLY_INIT['A'])); p('s_mov_b32 s%d, 0' % S_RSUM); p('s_mov_b32 s%d, 1' % S_RND); rnd_write(p, A_QX, 40, 41)
    loop = p.newlabel('LAloop'); p.label(loop)
    lg.reset()
    pf(p, 0)
    for r in range(16, 40): p('v_mov_b32 v%d, 0' % r)
    wst_load(p, 0, 15, lg); wst_load(p, 1, 15, lg)
    offsets2(p, 0, ('mem', 'p')); mem_lds_addr(p)
    p('s_mov_b32 s%d, %d' % (S_T0, F_QK))
    p('buffer_load_dword v1, v0, s[%d:%d], s%d offen sc1' % (S_WS, S_WS + 3, S_T0))
    p('s_waitcnt lgkmcnt(0)'); lg.reset()
    if not CLASSIC['mem']: p('s_barrier'); dly_update(p, A_QX, 40)
    def kread(lst):
        for (jt, u) in lst:
            p('ds_read_b128 %s, v7 offset:%d' % (vr(KS(jt, u), 4), jt * 6144 + u * 1024)); lg.issue(('k', jt, u))
    def h3():
        if not CLASSIC['mem']: p('s_waitcnt vmcnt(0)')
        p('s_and_b32 s%d, s%d, 1' % (S_T0, S_STEP)); p('s_mul_i32 s%d, s%d, 24576' % (S_T0, S_T0)); p('s_add_u32 s%d, s%d, %d' % (S_T0, S_T0, A_QKB + 12288))
        p('v_add_u32 v7, s%d, v2' % S_T0)
        kread([(0, 0), (1, 0)])
    w0hooks = {3: h3, 4: lambda: kread([(0, 1), (1, 1), (0, 2)]), 5: lambda: kread([(1, 2), (0, 3)]), 6: lambda: kread([(1, 3), (0, 4), (1, 4)]), 7: lambda: kread([(0, 5), (1, 5)])}
    hooks = {} if CLASSIC['mem'] else {4: lambda: p('s_waitcnt vmcnt(0)')}
    def exch(x):
        L = []
        for a, off in ((16 + 4 * x, x * 256), (28 + 4 * x, 3072 + x * 256)):
            L += ['v_add_f32 v%d, v%d, v%d' % (a, a, a + 1), 'v_add_f32 v%d, v%d, v%d' % (a + 2, a + 2, a + 3),
                  'v_cvt_pk_bf16_f32 v%d, v%d, v%d' % (a, a, a + 2), 'ds_write_b32 v11, v%d offset:%d' % (a, off)]
        return L
    def tail_order(ringreg):
        lg.wait(('m', 8));
        seq = []
        for x in range(3):
            for tau in (8, 9): seq += [(tau, x), (tau, 3 + x)]
        fill = []
        for i, (tau, tile) in enumerate(seq):
            if i == 2: lg.wait(('m', 9))
            smf(p, 16 + 4 * tile, ringreg(tau), tau * 6 + tile, lg, 15)
            if i == 5: fill += exch(0)
            if i == 9: fill += exch(1)
            for _ in range(3):
                if fill:
                    ins = fill.pop(0); p(ins)
                    if ins.startswith('ds_'): lg.issue('qx')
        for ins in fill + exch(2):
            p(ins)
            if ins.startswith('ds_'): lg.issue('qx')
    gather_and_project(p, lg, 6, 16, 15, 'mem', hooks, tail_order, w0hooks)
    pf(p, 2)
    p('s_waitcnt lgkmcnt(0)'); lg.reset()
    p('s_barrier')
    pf(p, 3)
    trace(p, 1, trace_on)
    lw = p.newlabel('LAw'); lend = p.newlabel('LAe'); lw3 = p.newlabel('LAw3')
    QF = 16; KM = 40; SA = 64; SM = 72
    def scores(kind):
        lg.reset()
        if kind == 'seg':
            p('s_and_b32 s%d, s%d, 1' % (S_T0, S_STEP)); p('s_mul_i32 s%d, s%d, 24576' % (S_T0, S_T0)); p('s_add_u32 s%d, s%d, %d' % (S_T0, S_T0, A_QKB))
            p('s_sub_u32 s%d, s%d, 1' % (S_T1, S_WAVE)); p('s_mul_i32 s%d, s%d, 6144' % (S_T1, S_T1)); p('v_add_u32 v7, s%d, v2' % S_T0); p('s_add_u32 s%d, s%d, s%d' % (S_T0, S_T0, S_T1)); p('v_add_u32 v76, s%d, v2' % S_T0)
        for u in range(6):
            if kind == 'seg':
                for jt in range(2):
                    p('ds_read_b128 %s, v7 offset:%d' % (vr(KS(jt, u), 4), 12288 + jt * 6144 + u * 1024)); lg.issue(('q', u))
            if kind == 'mem':
                for z in range(2):
                    p('ds_read_b64_tr_b16 %s, v12 offset:%d' % (vr(QF + 4 * u + 2 * z, 2), (2 * u + z) * 256)); lg.issue(('q', u))
            else:
                p('ds_read_b128 %s, v76 offset:%d' % (vr(QF + 4 * u, 4), u * 1024)); lg.issue(('q', u))
            for z in range(2):
                p('ds_read_b64_tr_b16 %s, v12 offset:%d' % (vr(KM + 4 * u + 2 * z, 2), 3072 + (2 * u + z) * 256)); lg.issue(('q', u))
            if u >= 2:
                uu = u - 2
                lg.wait(('q', uu)); mf(uu)
        for uu in (4, 5): lg.wait(('q', uu)); mf(uu)
        softmax(kind)
    def mf(u):
        for jt in range(2):
            p('v_mfma_f32_16x16x32_bf16 %s, %s, %s, %s' % (vr(SA + 4 * jt, 4), vr(KS(jt, u), 4), vr(QF + 4 * u, 4), '0' if u == 0 else vr(SA + 4 * jt, 4)))
        p('v_mfma_f32_16x16x32_bf16 %s, %s, %s, %s' % (vr(SM, 4), vr(KM + 4 * u, 4), vr(QF + 4 * u, 4), '0' if u == 0 else vr(SM, 4)))
    def softmax_mem():
        DUP = 72 + 0
        X = [76, 77, 78, 79]; Y = [40, 41]
        p('v_mov_b32 v42, 0xff800000')
        for r in range(4): p('v_cndmask_b32 v%d, v%d, v%d, s[74:75]' % (X[r], SA + r, SA + 4 + r))
        for r in range(2):
            p('v_cndmask_b32 v%d, v%d, v%d, s[74:75]' % (Y[r], SM + r, SM + 2 + r))
            p('v_cndmask_b32 v%d, v%d, v42, s[%d:%d]' % (Y[r], Y[r], S_MASK, S_MASK + 1))
        vals = X + Y
        p('v_max3_f32 v17, v%d, v%d, v%d' % tuple(X[0:3])); p('v_max3_f32 v17, v17, v%d, v%d' % (X[3], Y[0])); p('v_max_f32 v17, v17, v%d' % Y[1])
        p('v_max_f32_dpp v17, v17, v17 row_ror:8 row_mask:0xf bank_mask:0xf')
        p('v_mov_b32 v18, v17'); p('v_permlane16_swap_b32 v17, v18'); p('v_max_f32 v17, v17, v18')
        p('v_mov_b32 v18, v17'); p('v_permlane32_swap_b32 v17, v18'); p('v_max_f32 v17, v17, v18')
        p('v_mul_f32 v17, s%d, v17' % S_C)
        for v in vals: p('v_fma_f32 v%d, v%d, s%d, -v17' % (v, v, S_C))
        for v in vals: p('v_exp_f32 v%d, v%d' % (v, v))
        p('v_add_f32 v18, v%d, v%d' % (X[0], X[1])); p('v_add_f32 v19, v%d, v%d' % (X[2], X[3])); p('v_add_f32 v43, v%d, v%d' % (Y[0], Y[1]))
        p('v_add_f32 v18, v18, v19'); p('v_add_f32 v18, v18, v43')
        p('v_add_f32_dpp v18, v18, v18 row_ror:8 row_mask:0xf bank_mask:0xf')
        p('v_mov_b32 v19, v18'); p('v_permlane16_swap_b32 v18, v19'); p('v_add_f32 v18, v18, v19')
        p('v_mov_b32 v19, v18'); p('v_permlane32_swap_b32 v18, v19'); p('v_add_f32 v18, v18, v19')
        p('v_rcp_f32 v18, v18')
        W = 20
        for v in X: p('v_mul_f32 v%d, v%d, v18' % (v, v))
        p('v_cvt_pk_bf16_f32 v%d, v%d, v%d' % (W + 0, X[0], X[1])); p('v_cvt_pk_bf16_f32 v%d, v%d, v%d' % (W + 2, X[2], X[3]))
        for v in Y: p('v_mul_f32 v%d, v%d, v18' % (v, v))
        p('v_permlane16_swap_b32 v%d, v%d' % (W + 0, W + 2))
        p('v_cvt_pk_bf16_f32 v%d, v%d, v%d' % (W + 4, Y[0], Y[1]))
        p('v_mov_b32_dpp v%d, v%d row_ror:8 row_mask:0xf bank_mask:0xf' % (W + 1, W + 0)); p('v_mov_b32_dpp v%d, v%d row_ror:8 row_mask:0xf bank_mask:0xf' % (W + 3, W + 2))
        p('v_mov_b32 v%d, v%d' % (W + 5, W + 4))
        p('buffer_store_dwordx4 %s, v13, s[%d:%d], s%d offen sc1' % (vr(W, 4), S_WS, S_WS + 3, S_PO))
        p('v_permlane16_swap_b32 v%d, v%d' % (W + 4, W + 5))
        p('v_mov_b32_dpp v%d, v%d row_ror:8 row_mask:0xf bank_mask:0xf' % (W + 6, W + 4)); p('v_mov_b32_dpp v%d, v%d row_ror:8 row_mask:0xf bank_mask:0xf' % (W + 7, W + 5))
        p('buffer_store_dwordx4 %s, v14, s[%d:%d], s%d offen sc1' % (vr(W + 4, 4), S_WS, S_WS + 3, S_PO))
    def softmax(kind):
        if kind == 'mem' and CLASSIC['p'] and FAST_SM: return softmax_mem()
        vals = list(range(SA, SA + 8)) + list(range(SM, SM + 4))
        p('v_mov_b32 v76, 0xff800000')
        if kind == 'seg':
            p('v_lshrrev_b32 v77, 4, v2'); p('v_and_b32 v78, 15, v77'); p('v_lshrrev_b32 v77, 4, v77'); p('v_lshlrev_b32 v77, 2, v77'); p('v_sub_u32 v77, v78, v77')
            p('s_sub_u32 s%d, s%d, 1' % (S_T1, S_WAVE)); p('s_lshl_b32 s%d, s%d, 4' % (S_T1, S_T1)); p('v_add_u32 v77, s%d, v77' % S_T1)
            for jt in range(2):
                for r in range(4):
                    p('v_cmp_le_i32 vcc, %d, v77' % (16 * jt + r))
                    p('v_cndmask_b32 v%d, v76, v%d, vcc' % (SA + 4 * jt + r, SA + 4 * jt + r))
        p('v_max3_f32 v17, v%d, v%d, v%d' % tuple(vals[0:3]))
        for i in range(3, 7, 2): p('v_max3_f32 v17, v17, v%d, v%d' % (vals[i], vals[i + 1]))
        for r in range(4): p('v_cndmask_b32 v%d, v%d, v76, s[%d:%d]' % (SM + r, SM + r, S_MASK, S_MASK + 1))
        p('v_max3_f32 v17, v17, v%d, v%d' % (vals[7], vals[8])); p('v_max3_f32 v17, v17, v%d, v%d' % (vals[9], vals[10])); p('v_max_f32 v17, v17, v%d' % vals[11])
        p('v_mov_b32 v18, v17'); p('v_permlane16_swap_b32 v17, v18'); p('v_max_f32 v17, v17, v18')
        p('v_mov_b32 v18, v17'); p('v_permlane32_swap_b32 v17, v18'); p('v_max_f32 v17, v17, v18')
        p('v_mul_f32 v17, s%d, v17' % S_C)
        for v in vals: p('v_fma_f32 v%d, v%d, s%d, -v17' % (v, v, S_C))
        for v in vals: p('v_exp_f32 v%d, v%d' % (v, v))
        p('v_add_f32 v18, v%d, v%d' % (vals[0], vals[1])); p('v_add_f32 v19, v%d, v%d' % (vals[2], vals[3]))
        for i in range(4, 12, 2):
            p('v_add_f32 v18, v18, v%d' % vals[i]); p('v_add_f32 v19, v19, v%d' % vals[i + 1])
        p('v_add_f32 v18, v18, v19')
        p('v_mov_b32 v19, v18'); p('v_permlane16_swap_b32 v18, v19'); p('v_add_f32 v18, v18, v19')
        p('v_mov_b32 v19, v18'); p('v_permlane32_swap_b32 v18, v19'); p('v_add_f32 v18, v18, v19')
        p('v_rcp_f32 v18, v18')
        W = 20
        if kind == 'mem':
            for v in vals[:8]: p('v_mul_f32 v%d, v%d, v18' % (v, v))
            p('v_cvt_pk_bf16_f32 v%d, v%d, v%d' % (W + 0, SA + 0, SA + 1)); p('v_cvt_pk_bf16_f32 v%d, v%d, v%d' % (W + 2, SA + 2, SA + 3))
            p('v_cvt_pk_bf16_f32 v%d, v%d, v%d' % (W + 1, SA + 4, SA + 5)); p('v_cvt_pk_bf16_f32 v%d, v%d, v%d' % (W + 3, SA + 6, SA + 7))
            for v in vals[8:]: p('v_mul_f32 v%d, v%d, v18' % (v, v))
            p('v_permlane16_swap_b32 v%d, v%d' % (W + 0, W + 2)); p('v_permlane16_swap_b32 v%d, v%d' % (W + 1, W + 3))
            p('v_cvt_pk_bf16_f32 v%d, v%d, v%d' % (W + 4, SM + 0, SM + 1)); p('v_cvt_pk_bf16_f32 v%d, v%d, v%d' % (W + 6, SM + 2, SM + 3))
            p('s_add_u32 s%d, s%d, %d' % (S_T0, S_PO, 2 * P_COPY * BLK))
            p('buffer_store_dwordx4 %s, v13, s[%d:%d], s%d offen sc1' % (vr(W, 4), S_WS, S_WS + 3, S_PO))
            p('v_mov_b32 v%d, v%d' % (W + 5, W + 4)); p('v_mov_b32 v%d, v%d' % (W + 7, W + 6))
            if not CLASSIC['p']: p('buffer_store_dwordx4 %s, v13, s[%d:%d], s%d offen sc1' % (vr(W, 4), S_WS, S_WS + 3, S_T0))
            p('v_permlane16_swap_b32 v%d, v%d' % (W + 4, W + 5)); p('v_permlane16_swap_b32 v%d, v%d' % (W + 6, W + 7))
            p('buffer_store_dwordx4 %s, v14, s[%d:%d], s%d offen sc1' % (vr(W + 4, 4), S_WS, S_WS + 3, S_PO))
        else:
            for v in vals: p('v_mul_f32 v%d, v%d, v18' % (v, v))
            for k in range(4): p('v_cvt_pk_bf16_f32 v%d, v%d, v%d' % (W + k, SA + 2 * k, SA + 2 * k + 1))
            p('v_cvt_pk_bf16_f32 v%d, v%d, v%d' % (W + 4, SM + 0, SM + 1)); p('v_cvt_pk_bf16_f32 v%d, v%d, v%d' % (W + 5, SM + 2, SM + 3))
            p('s_mul_i32 s%d, s%d, 81920' % (S_T0, S_STEP)); p('s_sub_u32 s%d, s%d, 1' % (S_T1, S_WAVE)); p('s_lshl_b32 s%d, s%d, 15' % (S_T2, S_T1))
            p('s_add_u32 s%d, s%d, s%d' % (S_T2, S_T2, S_T0)); p('s_lshl_b32 s%d, s%d, 10' % (S_T3, h)); p('s_add_u32 s%d, s%d, s%d' % (S_T2, S_T2, S_T3)); p('s_add_u32 s%d, s%d, %d' % (S_T2, S_T2, OFF_PS))
            p('buffer_store_dwordx4 %s, v2, s[%d:%d], s%d offen sc1' % (vr(W, 4), S_WS, S_WS + 3, S_T2))
            p('v_mov_b32 v%d, v%d' % (W + 6, W + 4)); p('v_mov_b32 v%d, v%d' % (W + 7, W + 5))
            p('v_permlane16_swap_b32 v%d, v%d' % (W + 4, W + 6)); p('v_permlane16_swap_b32 v%d, v%d' % (W + 5, W + 7))
            p('s_lshl_b32 s%d, s%d, 13' % (S_T1, S_T1)); p('s_add_u32 s%d, s%d, s%d' % (S_T0, S_T0, S_T1)); p('s_lshl_b32 s%d, s%d, 8' % (S_T3, h)); p('s_add_u32 s%d, s%d, s%d' % (S_T0, S_T0, S_T3))
            p('s_add_u32 s%d, s%d, %d' % (S_T0, S_T0, OFF_PS + 65536))
            p('v_mov_b32 v42, 0x7ff00000'); p('v_cmp_gt_u32 vcc, 256, v2'); p('v_cndmask_b32 v42, v42, v2, vcc')
            p('buffer_store_dwordx4 %s, v42, s[%d:%d], s%d offen sc1' % (vr(W + 4, 4), S_WS, S_WS + 3, S_T0))
    p('s_cmp_lg_u32 s%d, 0' % S_WAVE); p('s_cbranch_scc1 %s' % lw)
    scores('mem')
    pf(p, 4)
    pf_acc(p)
    trace(p, 2, trace_on)
    p('s_barrier')
    p('s_branch %s' % lend)
    p.label(lw)
    p('s_cmp_eq_u32 s%d, 3' % S_WAVE); p('s_cbranch_scc1 %s' % lw3)
    scores('seg')
    p('s_barrier')
    p('s_branch %s' % lend)
    p.label(lw3)
    p('s_add_u32 s%d, s%d, %d' % (S_T0, S_STEP, P_RING - 1)); p('s_and_b32 s%d, s%d, %d' % (S_T0, S_T0, P_RING - 1)); p('s_mul_i32 s%d, s%d, %d' % (S_T0, S_T0, P_SLOT * BLK))
    p('s_add_u32 s%d, s%d, s%d' % (S_T0, S_T0, S_COMM)); p('s_add_u32 s%d, s%d, %d' % (S_T0, S_T0, BLK_P * BLK)); p('s_add_u32 s%d, s%d, %d' % (S_T1, S_T0, 2 * P_COPY * BLK))
    for r in range(16, 20): p('v_mov_b32 v%d, -1' % r)
    def fp_flag():
        p('v_mov_b32 v20, 0x7ff00000'); p('v_cmp_eq_u32 vcc, 0, v2'); p('v_cndmask_b32 v20, v20, v0, vcc')
        p('v_mov_b32 v21, s%d' % S_STEP); p('s_mov_b32 s%d, %d' % (S_T2, F_P))
        p('buffer_store_dword v21, v20, s[%d:%d], s%d offen sc1' % (S_WS, S_WS + 3, S_T2))
    p('s_barrier')
    p('buffer_store_dwordx4 v[16:19], v13, s[%d:%d], s%d offen sc1' % (S_WS, S_WS + 3, S_T0))
    if not CLASSIC['p']: p('buffer_store_dwordx4 v[16:19], v13, s[%d:%d], s%d offen sc1' % (S_WS, S_WS + 3, S_T1))
    p('buffer_store_dwordx4 v[16:19], v14, s[%d:%d], s%d offen sc1' % (S_WS, S_WS + 3, S_T0))
    fp_flag()
    p('s_cmp_ge_u32 s%d, 63' % S_STEP); p('s_cbranch_scc1 %s' % lend)
    p('s_add_u32 s%d, s%d, %d' % (S_QKO, S_QKO, 32 * 24576))
    qk_wait(2, True)
    p('s_add_u32 s%d, s%d, 1' % (S_T3, S_STEP)); p('s_and_b32 s%d, s%d, 1' % (S_T3, S_T3)); p('s_mul_i32 s%d, s%d, 24576' % (S_T3, S_T3)); p('s_add_u32 s%d, s%d, %d' % (S_T3, S_T3, A_QKB))
    qk_dma(S_T3)
    p.label(lend)
    rnd_write(p, A_QX, 40, 41)
    p('s_add_u32 s%d, s%d, 1' % (S_STEP, S_STEP)); p('s_cmp_lt_u32 s%d, s%d' % (S_STEP, S_NST)); p('s_cbranch_scc1 %s' % loop)
    p('s_waitcnt vmcnt(0)'); p('s_barrier')
    l = p.newlabel('LAfin'); p('s_cmp_lg_u32 s%d, 3' % S_WAVE); p('s_cbranch_scc1 %s' % l)
    fp_flag()
    p.label(l)

def gen_B2(p, trace_on=False, st=False):
    lg = Cnt(p, 'lgkmcnt', 15); vm = Cnt(p, 'vmcnt', 63)
    h = S_IDX
    srd(p, S_W1, KA['Wv'], 640 * 12288); srd(p, S_W2, KA['Wo'], 32 * 192 * 1280)
    common_lane_setup(p)
    p('s_waitcnt lgkmcnt(0)')
    mem_gather_setup(p, B_MEMX)
    p('s_mul_i32 s%d, s%d, 24576' % (S_T0, S_WAVE)); p('s_add_u32 s%d, s%d, 65536' % (S_T0, S_T0)); p('v_add_u32 v15, s%d, v2' % S_T0)
    p('s_lshl_b32 s%d, s%d, 14' % (S_T4, S_WAVE))
    voffs = [80, 81, 82]
    stage_offsets(p, voffs, 6, 12288, 1, 83, 84)
    p('v_lshrrev_b32 v83, 4, v1'); p('v_lshlrev_b32 v83, 3, v83'); p('v_bfe_u32 v84, v1, 2, 2'); p('v_add_u32 v83, v83, v84')
    p('v_and_b32 v84, 3, v1'); p('v_lshlrev_b32 v84, 3, v84')
    p('v_mul_u32_u24 v85, 96, v83'); p('v_add_u32 v85, v85, v84'); p('v_add_u32 v85, s%d, v85' % S_T4)
    p('v_mul_u32_u24 v86, 160, v83'); p('v_add_u32 v86, v86, v84'); p('v_add_u32 v86, s%d, v86' % S_T4)
    p('s_mul_i32 s%d, s%d, 384' % (S_T5, h)); p('s_mul_i32 s%d, s%d, 96' % (S_T0, S_WAVE)); p('s_add_u32 s%d, s%d, s%d' % (S_T5, S_T5, S_T0))
    p('s_mul_i32 s%d, s%d, 3' % (S_T6, S_WAVE))
    jobs = []
    for tau in range(10):
        for half in range(2):
            def soff(dst, tau=tau, half=half):
                p('s_add_u32 s%d, s%d, %d' % (dst, S_T6, tau))
                p('s_sub_u32 s%d, s%d, 10' % (S_T2, dst)); p('s_cmp_ge_u32 s%d, 10' % dst); p('s_cselect_b32 s%d, s%d, s%d' % (dst, S_T2, dst))
                p('s_mul_i32 s%d, s%d, %d' % (dst, dst, 64 * 12288))
                p('s_add_u32 s%d, s%d, s%d' % (dst, dst, S_T5))
                if half: p('s_add_u32 s%d, s%d, %d' % (dst, dst, 32 * 12288))
            dests = []
            for x in range(3):
                kind, n = UM[tau * 3 + x]
                if kind == 'reg': dests.append((x * 32, ('reg', unit_reg(n, 4 * half, 2), unit_reg(n, 4 * half + 2, 2))))
                else: dests.append((x * 32, ('lds', n * 2048 + half * 1024)))
            jobs.append(dict(srd=S_W1, soff=soff, dests=dests))
    load_weights_type1(p, jobs, 85, 3072, 5, voffs, 3, 96, lg, vm, 15, 88, S_T4)
    voffs = [100, 101, 102, 103, 104]
    stage_offsets(p, voffs, 10, 1280, 1, 83, 84)
    p('s_mul_i32 s%d, s%d, %d' % (S_T5, h, 192 * 1280)); p('s_mul_i32 s%d, s%d, 320' % (S_T0, S_WAVE)); p('s_add_u32 s%d, s%d, s%d' % (S_T5, S_T5, S_T0))
    jobs = []
    for u in range(6):
        for ch in range(2):
            def soff(dst, u=u, ch=ch): p('s_add_u32 s%d, s%d, %d' % (dst, S_T5, u * 32 * 1280 + ch * 160))
            dests = []
            for x in range(5):
                cc = ch * 5 + x
                kind, n = UM[30 + cc * 3 + (u >> 1)]; half = u & 1
                if kind == 'reg': dests.append((x * 32, ('reg', unit_reg(n, 4 * half, 2), unit_reg(n, 4 * half + 2, 2))))
                else: dests.append((x * 32, ('lds', n * 2048 + half * 1024)))
            jobs.append(dict(srd=S_W2, soff=soff, dests=dests))
    load_weights_type1(p, jobs, 86, 5120, 3, voffs, 5, 160, lg, vm, 15, 88, S_T4)
    p('s_barrier')
    p('v_bfe_u32 v80, v1, 3, 1'); p('v_lshlrev_b32 v80, 9, v80')
    p('v_bfe_u32 v81, v1, 2, 1'); p('v_lshlrev_b32 v81, 6, v81'); p('v_add_u32 v80, v80, v81')
    p('v_and_b32 v81, 1, v1'); p('v_lshlrev_b32 v81, 5, v81'); p('v_add_u32 v80, v80, v81')
    p('v_bfe_u32 v81, v1, 1, 1'); p('v_lshlrev_b32 v81, 2, v81'); p('v_add_u32 v80, v80, v81')
    p('v_lshrrev_b32 v81, 4, v1'); p('v_lshlrev_b32 v81, 3, v81'); p('v_add_u32 v80, v80, v81')
    for x, dst in enumerate((11, 12, 29)):
        p('s_mul_i32 s%d, s%d, 3' % (S_T0, S_WAVE)); p('s_add_u32 s%d, s%d, %d' % (S_T0, S_T0, x))
        p('s_lshr_b32 s%d, s%d, 2' % (S_T1, S_T0)); p('s_lshl_b32 s%d, s%d, 10' % (S_T1, S_T1)); p('s_and_b32 s%d, s%d, 3' % (S_T0, S_T0)); p('s_lshl_b32 s%d, s%d, 7' % (S_T0, S_T0))
        p('s_add_u32 s%d, s%d, s%d' % (S_T0, S_T0, S_T1)); p('s_add_u32 s%d, s%d, %d' % (S_T0, S_T0, B_VX)); p('v_add_u32 v%d, s%d, v80' % (dst, S_T0))
    p('v_mov_b32 v28, 0x05040100'); p('v_mov_b32 v82, 0x03020706'); p('v_and_b32 v83, 2, v1'); p('v_cmp_eq_u32 vcc, 0, v83'); p('v_cndmask_b32 v28, v82, v28, vcc')
    p('v_lshrrev_b32 v80, 4, v1'); p('v_lshlrev_b32 v80, 7, v80')
    p('v_bfe_u32 v81, v1, 2, 2'); p('v_lshlrev_b32 v81, 5, v81'); p('v_add_u32 v80, v80, v81')
    p('v_and_b32 v81, 3, v1'); p('v_lshlrev_b32 v81, 3, v81'); p('v_add_u32 v80, v80, v81'); p('v_add_u32 v13, %d, v80' % B_VX)
    p('v_lshrrev_b32 v80, 4, v1'); p('s_mul_i32 s%d, s%d, 10' % (S_T0, S_WAVE)); p('v_add_u32 v80, s%d, v80' % S_T0); p('v_lshlrev_b32 v80, 14, v80')
    p('v_and_b32 v81, 15, v1'); p('v_lshlrev_b32 v81, 4, v81'); p('v_add_u32 v80, v80, v81')
    p('s_lshl_b32 s%d, s%d, 8' % (S_T0, h)); p('v_add_u32 v14, s%d, v80' % S_T0)
    p('v_add_u32 v0, %d, v14' % (8 * BLK))
    p('v_mov_b32 v82, 0x7ff00000'); p('v_cmp_gt_u32 vcc, 32, v1'); p('v_cndmask_b32 v0, v82, v0, vcc')
    p('s_mov_b32 s%d, 0' % S_STEP)
    stamp(p, 3, st)
    parity_wait2(p)
    ACC1 = 16; ACC2 = 80; VFR = 40
    stamp(p, 1, st)
    pf_init(p); p('s_mov_b32 s%d, %d' % (S_DLY, DLY_INIT['B'])); p('s_mov_b32 s%d, 0' % S_RSUM); p('s_mov_b32 s%d, 1' % S_RND); rnd_write(p, 16384, 40, 41)
    loop = p.newlabel('LBloop'); p.label(loop)
    lg.reset()
    pf(p, 0)
    for r in range(ACC1, ACC1 + 12): p('v_mov_b32 v%d, 0' % r)
    wst_load(p, 0, 15, lg); wst_load(p, 1, 15, lg)
    offsets2(p, 0, ('mem', 'z')); mem_lds_addr(p)
    p('s_waitcnt lgkmcnt(0)'); lg.reset()
    p('s_barrier')
    if not CLASSIC['mem']: dly_update(p, 16384, 40)
    def z0(lo, hi):
        for r in range(lo, hi): p('v_mov_b32 v%d, 0' % r)
    if CLASSIC['mem']:
        z0(ACC2, ACC2 + 40); hooks = {}
    else:
        def h4(): p('s_waitcnt vmcnt(0)'); z0(ACC2, ACC2 + 8)
        hooks = {4: h4, 5: lambda: z0(ACC2 + 8, ACC2 + 16), 6: lambda: z0(ACC2 + 16, ACC2 + 24), 7: lambda: z0(ACC2 + 24, ACC2 + 32)}
    def tail_order(ringreg):
        lg.wait(('m', 8))
        seq = [(8, 0), (8, 1), (9, 0), (9, 1), (8, 2), (9, 2)]
        for i, (tau, x) in enumerate(seq):
            if i == 2: lg.wait(('m', 9))
            smf(p, ACC1 + 4 * x, ringreg(tau), tau * 3 + x, lg, 15)
            if i >= 4 and not CLASSIC['mem']: z0(ACC2 + 32 + 4 * (i - 4), ACC2 + 36 + 4 * (i - 4))
        for x, addr in enumerate((11, 12, 29)):
            a = ACC1 + 4 * x
            p('v_add_f32 v%d, v%d, v%d' % (a, a, a + 1)); p('v_add_f32 v%d, v%d, v%d' % (a + 2, a + 2, a + 3))
            p('v_cvt_pk_bf16_f32 v%d, v%d, v%d' % (a, a, a + 2))
            p('v_mov_b32_dpp v%d, v%d quad_perm:[2,3,0,1] row_mask:0xf bank_mask:0xf' % (a + 1, a))
            p('v_perm_b32 v%d, v%d, v%d, v28' % (a, a + 1, a))
            p('ds_write_b32 v%d, v%d' % (addr, a)); lg.issue('vx')
    gather_and_project(p, lg, 3, ACC1, 15, 'mem', hooks, tail_order)
    pf(p, 2)
    lg.wait('vx')
    p('s_barrier')
    pf(p, 3)
    for t in range(3):
        for z in range(2):
            p('ds_read_b64_tr_b16 %s, v13 offset:%d' % (vr(VFR + 4 * t + 2 * z, 2), t * 1024 + z * 512)); lg.issue(('vf', t))
    def red(cc, dst):
        a = ACC2 + 4 * cc
        return ['v_add_f32 v%d, v%d, v%d' % (a, a, a + 1), 'v_add_f32 v%d, v%d, v%d' % (a + 2, a + 2, a + 3), 'v_cvt_pk_bf16_f32 v%d, v%d, v%d' % (dst, a, a + 2)]
    def fin(q, voff, soff_add):
        L = ['v_permlane32_swap_b32 v%d, v%d' % (q, q + 2), 'v_permlane32_swap_b32 v%d, v%d' % (q + 1, q + 3)]
        if soff_add: L += ['s_add_u32 s%d, s%d, %d' % (S_T0, S_ZO, soff_add)]
        L += ['v_permlane16_swap_b32 v%d, v%d' % (q, q + 1), 'v_permlane16_swap_b32 v%d, v%d' % (q + 2, q + 3),
              'buffer_store_dwordx4 %s, v%d, s[%d:%d], s%d offen sc1' % (vr(q, 4), voff, S_WS, S_WS + 3, S_T0 if soff_add else S_ZO)]
        return L
    fill = []
    for pr in range(5):
        for t in range(3):
            for cc in (2 * pr, 2 * pr + 1):
                if pr == 0 and cc == 0: lg.wait(('vf', t))
                smf(p, ACC2 + 4 * cc, VFR + 4 * t, 30 + cc * 3 + t, lg, 15)
                if t == 1 and cc == 2 * pr and pr > 0:
                    a0 = 2 * (pr - 1); q = 16 + 4 * (a0 // 4)
                    fill += red(a0, q + (a0 % 4)) + red(a0 + 1, q + (a0 % 4) + 1)
                    if a0 % 4 == 2: fill += fin(q, 14, (a0 // 4) * 4 * BLK)
                for _ in range(2):
                    if fill: p(fill.pop(0))
    last = red(8, 24) + red(9, 25) + ['v_mov_b32 v26, v24', 'v_mov_b32 v27, v25'] + fin(24, 0, 0)
    for ins in fill + last: p(ins)
    pf(p, 4)
    pf_acc(p)
    trace(p, 2, trace_on)
    rnd_write(p, 16384, 40, 41)
    p('s_add_u32 s%d, s%d, 1' % (S_STEP, S_STEP)); p('s_cmp_lt_u32 s%d, s%d' % (S_STEP, S_NST)); p('s_cbranch_scc1 %s' % loop)

R_RED = 0; R_RED2 = 4096
def gen_R2(p, trace_on=False, st=False):
    c = S_IDX
    srd(p, S_W1, KA['x'], 2048 * 1280)
    common_lane_setup(p)
    p('s_waitcnt lgkmcnt(0)')
    p('v_and_b32 v3, 1, v1'); p('v_cmp_eq_u32 vcc, 0, v3'); p('v_mov_b32 v3, 0xeeeeeeee'); p('v_mov_b32 v7, 0x44444444'); p('v_cndmask_b32 v3, v3, v7, vcc')
    p('s_lshr_b32 s%d, s%d, 1' % (S_T1, S_WAVE)); p('s_lshl_b32 s%d, s%d, 14' % (S_T1, S_T1)); p('s_and_b32 s%d, s%d, 1' % (S_T0, S_WAVE)); p('s_lshl_b32 s%d, s%d, 12' % (S_T0, S_T0))
    p('s_add_u32 s%d, s%d, s%d' % (S_T0, S_T0, S_T1)); p('v_add_u32 v4, s%d, v2' % S_T0)
    p('v_lshrrev_b32 v8, 4, v1'); p('v_lshlrev_b32 v8, 8, v8'); p('v_and_b32 v9, 15, v1'); p('v_lshlrev_b32 v9, 3, v9'); p('v_add_u32 v8, v8, v9')
    p('s_lshl_b32 s%d, s%d, 10' % (S_T0, S_WAVE)); p('s_add_u32 s%d, s%d, 32768' % (S_T0, S_T0)); p('v_add_u32 v5, s%d, v8' % S_T0)
    p('s_lshl_b32 s%d, s%d, 14' % (S_T0, c)); p('s_lshl_b32 s%d, s%d, 11' % (S_T1, S_WAVE)); p('s_add_u32 s%d, s%d, s%d' % (S_T0, S_T0, S_T1)); p('v_add_u32 v6, s%d, v2' % S_T0)
    p('s_lshl_b32 s%d, s%d, 15' % (S_T0, c)); p('s_lshl_b32 s%d, s%d, 13' % (S_T1, S_WAVE)); p('s_add_u32 s%d, s%d, s%d' % (S_T0, S_T0, S_T1)); p('v_add_u32 v10, s%d, v2' % S_T0)
    p('v_lshrrev_b32 v8, 4, v1'); p('v_lshlrev_b32 v8, 7, v8')
    p('v_bfe_u32 v9, v1, 1, 1'); p('v_lshlrev_b32 v9, 5, v9'); p('v_add_u32 v8, v8, v9')
    p('v_bfe_u32 v9, v1, 2, 2'); p('v_lshlrev_b32 v9, 3, v9'); p('v_add_u32 v8, v8, v9')
    p('v_and_b32 v9, 1, v1'); p('v_lshlrev_b32 v9, 2, v9'); p('v_add_u32 v8, v8, v9')
    p('s_lshl_b32 s%d, s%d, 9' % (S_T0, S_WAVE)); p('v_add_u32 v11, s%d, v8' % S_T0)
    p('v_lshlrev_b32 v12, 3, v1'); p('v_lshrrev_b32 v13, 2, v1'); p('v_lshlrev_b32 v13, 4, v13'); p('s_lshl_b32 s%d, s%d, 8' % (S_T0, c))
    p('s_add_u32 s%d, s%d, 8192' % (S_T1, S_T0)); p('s_cmp_ge_u32 s%d, 32' % c); p('s_cselect_b32 s%d, s%d, s%d' % (S_T0, S_T1, S_T0))
    p('v_add_u32 v13, s%d, v13' % S_T0); p('v_and_b32 v9, 3, v1'); p('v_cmp_eq_u32 vcc, 0, v9'); p('v_mul_u32_u24 v9, %d, v9' % (MEM_COPY * BLK)); p('v_add_u32 v13, v13, v9')
    if CLASSIC['mem']: p('v_mov_b32 v8, 0x7ff00000'); p('v_cndmask_b32 v13, v8, v13, vcc')
    p('v_lshlrev_b32 v14, 2, v1'); p('s_lshl_b32 s%d, s%d, 8' % (S_T0, c)); p('v_add_u32 v14, s%d, v14' % S_T0)
    p('s_lshl_b32 s%d, s%d, 11' % (S_T0, S_WAVE)); p('s_add_u32 s%d, s%d, %d' % (S_T0, S_T0, R_RED2)); p('v_add_u32 v15, s%d, v2' % S_T0)
    p('v_and_b32 v8, 15, v1'); p('s_and_b32 s%d, s%d, 1' % (S_T0, S_WAVE)); p('s_lshl_b32 s%d, s%d, 4' % (S_T0, S_T0)); p('v_add_u32 v8, s%d, v8' % S_T0); p('v_mul_u32_u24 v8, 1280, v8')
    p('v_lshrrev_b32 v9, 4, v1'); p('v_lshlrev_b32 v9, 3, v9'); p('s_lshl_b32 s%d, s%d, 5' % (S_T0, c)); p('v_add_u32 v9, s%d, v9' % S_T0)
    p('v_add_u32 v28, v8, v9')
    p('s_and_b32 s%d, s%d, 1' % (S_T0, S_WAVE)); p('s_lshl_b32 s%d, s%d, 10' % (S_T0, S_T0)); p('s_add_u32 s%d, s%d, %d' % (S_T0, S_T0, R_RED2)); p('v_add_u32 v29, s%d, v2' % S_T0)
    p('v_mov_b32 v33, v9')
    p('s_lshl_b32 s%d, s%d, %d' % (S_T0, c, FSH)); p('v_mov_b32 v30, s%d' % S_T0); p('v_mov_b32 v8, 0x7ff00000'); p('v_cmp_eq_u32 vcc, 0, v1'); p('v_cndmask_b32 v30, v8, v30, vcc')
    p('v_and_b32 v0, 31, v1'); p('v_lshlrev_b32 v0, %d, v0' % FSH)
    p('v_lshrrev_b32 v31, 5, v1'); p('v_lshlrev_b32 v31, %d, v31' % (FSH + 5)); p('v_add_u32 v31, v31, v0')
    p('s_mov_b32 s%d, 0' % S_MASK); p('s_mov_b32 s%d, -1' % (S_MASK + 1))
    p('s_mov_b32 s%d, 0' % S_STEP); p('s_mov_b32 s%d, %d' % (S_VOO, OFF_VO))
    ZB = 64; ACC = 16; SENT = 96; PF = 160; PS = 128
    def VOa(k, j, n=4): return ar(40 * k + 4 * j, n)
    def Za(k, a): return ar(40 * k + 32 + 4 * a, 4)
    def vo_load(k):
        for j in range(8):
            if j == 4: p('s_add_u32 s%d, s%d, 4096' % (S_T0, S_VOO))
            p('buffer_load_dwordx4 %s, v10, s[%d:%d], s%d offen offset:%d sc1' % (VOa(k, j), S_WS, S_WS + 3, S_VOO if j < 4 else S_T0, (j % 4) * 1024))
    S_SG = S_T6
    def seg_issue(wait):
        if wait: p('s_add_u32 s%d, s%d, 1' % (S_T3, S_SG)); wait_flags(p, 0, F_P, S_T3, 7)
        p('s_mul_i32 s%d, s%d, 81920' % (S_T4, S_SG)); p('s_add_u32 s%d, s%d, %d' % (S_T4, S_T4, OFF_PS))
        for tau in range(2):
            p('s_lshl_b32 s%d, s%d, 13' % (S_T0, S_WAVE)); p('s_add_u32 s%d, s%d, s%d' % (S_T0, S_T0, S_T4)); p('s_add_u32 s%d, s%d, %d' % (S_T0, S_T0, tau * 32768))
            for j in range(8):
                if j == 4: p('s_add_u32 s%d, s%d, 4096' % (S_T0, S_T0))
                p('buffer_load_dwordx4 %s, v2, s[%d:%d], s%d offen offset:%d sc1' % (ar(PF + 40 * tau + 4 * j, 4), S_WS, S_WS + 3, S_T0, (j % 4) * 1024))
            p('s_lshl_b32 s%d, s%d, 11' % (S_T0, S_WAVE)); p('s_add_u32 s%d, s%d, s%d' % (S_T0, S_T0, S_T4)); p('s_add_u32 s%d, s%d, %d' % (S_T0, S_T0, 65536 + tau * 8192))
            for a in range(2):
                p('buffer_load_dwordx4 %s, v2, s[%d:%d], s%d offen offset:%d sc1' % (ar(PF + 40 * tau + 32 + 4 * a, 4), S_WS, S_WS + 3, S_T0, a * 1024))
        p('s_mul_i32 s%d, s%d, %d' % (S_T5, S_SG, 32 * 1280))
        p('buffer_load_dwordx2 v[100:101], v28, s[%d:%d], s%d offen' % (S_W1, S_W1 + 3, S_T5))
    def seg_compute(k, after):
        for tau in range(2):
            if after is not None: p('s_waitcnt vmcnt(%d)' % ((11 if tau == 0 else 1) + after))
            a = 104 + 4 * tau
            for j in range(8):
                p('v_mfma_f32_16x16x32_bf16 %s, %s, %s, %s' % (vr(a, 4), VOa(k, j), ar(PF + 40 * tau + 4 * j, 4), '0' if j == 0 else vr(a, 4)))
            for aa in range(2):
                p('v_mfma_f32_16x16x32_bf16 %s, %s, %s, %s' % (vr(a, 4), Za(k, aa), ar(PF + 40 * tau + 32 + 4 * aa, 4), vr(a, 4)))
        p('ds_write_b128 v15, v[104:107]'); p('ds_write_b128 v15, v[108:111] offset:1024')
        p('s_waitcnt lgkmcnt(0)'); p('s_barrier')
        l = p.newlabel('LRs'); p('s_cmp_ge_u32 s%d, 2' % S_WAVE); p('s_cbranch_scc1 %s' % l)
        for w in range(4): p('ds_read_b128 %s, v29 offset:%d' % (vr(104 + 4 * w, 4), w * 2048))
        p('s_waitcnt vmcnt(%d) lgkmcnt(0)' % after if after is not None else 's_waitcnt lgkmcnt(0)')
        for r in range(4):
            p('v_add_f32 v%d, v%d, v%d' % (104 + r, 104 + r, 108 + r)); p('v_add_f32 v%d, v%d, v%d' % (112 + r, 112 + r, 116 + r)); p('v_add_f32 v%d, v%d, v%d' % (104 + r, 104 + r, 112 + r))
        p('v_lshlrev_b32 v108, 16, v100'); p('v_and_b32 v109, 0xffff0000, v100'); p('v_lshlrev_b32 v110, 16, v101'); p('v_and_b32 v111, 0xffff0000, v101')
        for r in range(4): p('v_fmac_f32 v%d, v%d, v%d' % (108 + r, 24 + r, 104 + r))
        p('v_cvt_pk_bf16_f32 v100, v108, v109'); p('v_cvt_pk_bf16_f32 v101, v110, v111')
        p('s_mul_i32 s%d, s%d, %d' % (S_T5, S_SG, 32 * 1280)); p('s_add_u32 s%d, s%d, %d' % (S_T5, S_T5, OFF_X1))
        p('buffer_store_dwordx2 v[100:101], v28, s[%d:%d], s%d offen sc1' % (S_WS, S_WS + 3, S_T5))
        p.label(l)
    def x1_flag(val_s):
        p('v_mov_b32 v102, s%d' % val_s); p('s_mov_b32 s%d, %d' % (S_T0, F_X1))
        p('buffer_store_dword v102, v30, s[%d:%d], s%d offen sc1' % (S_WS, S_WS + 3, S_T0))
    if not core.FUSED: parity_probe2(p)
    parity_wait2(p)
    p('s_mov_b32 s%d, %d' % (S_T0, OFF_MOD + 2 * 1280))
    p('buffer_load_dwordx2 v[34:35], v33, s[%d:%d], s%d offen sc1' % (S_WS, S_WS + 3, S_T0))
    p('s_waitcnt vmcnt(0)')
    p('v_lshlrev_b32 v24, 16, v34'); p('v_and_b32 v25, 0xffff0000, v34'); p('v_lshlrev_b32 v26, 16, v35'); p('v_and_b32 v27, 0xffff0000, v35')
    p('s_mov_b32 s%d, 1' % S_T3); wait_flags(p, 0, F_VO, S_T3, 7)
    vo_load(0)
    stamp(p, 1, st)
    pf_init(p); p('s_mov_b32 s%d, %d' % (S_DLY, DLY_INIT['R'])); p('s_mov_b32 s%d, 0' % S_RSUM); p('s_mov_b32 s%d, 1' % S_RND); rnd_write(p, 16384, 40, 41)
    for r in range(SENT, SENT + 4): p('v_mov_b32 v%d, -1' % r)
    def flags_sample():
        p('s_mov_b32 s%d, %d' % (S_T0, F_VO))
        p('buffer_load_dword v103, v31, s[%d:%d], s%d offen sc1' % (S_WS, S_WS + 3, S_T0))
    def flags_check(vo_add, p_add):
        lok = p.newlabel('LRok')
        p('s_add_u32 s%d, s%d, %d' % (S_T1, S_STEP, vo_add)); p('s_min_u32 s%d, s%d, 64' % (S_T1, S_T1))
        p('s_add_i32 s%d, s%d, %d' % (S_T2, S_STEP, p_add)); p('s_max_i32 s%d, s%d, 0' % (S_T2, S_T2))
        p('v_mov_b32 v102, s%d' % S_T1); p('v_mov_b32 v7, s%d' % S_T2); p('v_cndmask_b32 v102, v102, v7, s[%d:%d]' % (S_MASK, S_MASK + 1))
        p('v_cmp_gt_u32 vcc, v102, v103'); p('s_cbranch_vccz %s' % lok)
        p('s_mov_b32 s%d, s%d' % (S_T3, S_T1)); wait_flags(p, 0, F_VO, S_T3, 7)
        p('s_add_i32 s%d, s%d, %d' % (S_T3, S_STEP, p_add)); p('s_max_i32 s%d, s%d, 0' % (S_T3, S_T3)); wait_flags(p, 0, F_P, S_T3, 7)
        p.label(lok)
    loop = p.newlabel('LRloop'); p.label(loop)
    for k in range(4):
        pf(p, 0)
        for r in range(ACC, ACC + 4): p('v_mov_b32 v%d, 0' % r)
        offsets2(p, 1)
        lns0 = p.newlabel('LRn0'); p('s_cmp_lt_u32 s%d, 2' % S_STEP); p('s_cbranch_scc1 %s' % lns0)
        p('s_sub_u32 s%d, s%d, 2' % (S_SG, S_STEP)); seg_issue(False)
        p.label(lns0)
        if k == 3: p('s_cmp_eq_u32 s%d, 63' % S_STEP); p('s_cbranch_scc1 LR_last')
        if not CLASSIC['p']: p('s_waitcnt lgkmcnt(0)'); p('s_barrier'); dly_update(p, 16384, 40)
        def zloads():
            p('buffer_load_dwordx4 %s, v6, s[%d:%d], s%d offen sc1' % (vr(ZB, 4), S_WS, S_WS + 3, S_ZO))
            p('buffer_load_dwordx4 %s, v6, s[%d:%d], s%d offen offset:1024 sc1' % (vr(ZB + 4, 4), S_WS, S_WS + 3, S_ZO))
        def issue(st_, cp):
            if cp: p('s_add_u32 s%d, s%d, %d' % (S_T2, S_PO, cp * P_COPY * BLK))
            so = S_T2 if cp else S_PO; b = PS + 20 * st_
            for z in range(4): p('buffer_load_dwordx4 %s, v4, s[%d:%d], s%d offen offset:%d sc1' % (vr(b + 4 * z, 4), S_WS, S_WS + 3, so, z * 1024))
            for hp in range(2): p('buffer_load_dwordx2 %s, v5, s[%d:%d], s%d offen offset:%d sc1' % (vr(b + 16 + 2 * hp, 2), S_WS, S_WS + 3, so, hp * 128))
        def zcheck():
            ok = p.newlabel('Lzok'); top = p.newlabel('Lzt')
            check_regs(p, range(ZB, ZB + 8), 7, [ZB + 3, ZB + 7]); p('s_cbranch_vccz %s' % ok)
            p.label(top)
            zloads(); p('s_waitcnt vmcnt(0)'); check_regs(p, range(ZB, ZB + 8), 7, [ZB + 3, ZB + 7]); p('s_cbranch_vccz %s' % ok)
            budget(p, ok, top)
            p.label(ok)
        def variant(st_):
            pf(p, 2)
            b = PS + 20 * st_
            p('v_smfmac_f32_16x16x64_bf16 %s, %s, %s, v3' % (vr(ACC, 4), vr(b + 16, 4), vr(ZB, 8)))
            for z in range(4): p('v_smfmac_f32_16x16x64_bf16 %s, %s, %s, v3' % (vr(ACC, 4), vr(b + 4 * z, 4), VOa(k, 2 * z, 8)))
        pf(p, 1)
        multi_poll(p, issue, 6, lambda st_: range(PS + 20 * st_, PS + 20 * st_ + 20), 7, 'p', variant, first_hook=zcheck, pre_issue=zloads,
                   quads=lambda st_: [PS + 20 * st_ + 4 * z + 3 for z in range(4)] + [PS + 20 * st_ + 17, PS + 20 * st_ + 19])
        trace(p, 0, trace_on)
        flags_sample()
        p('v_add_f32 v%d, v%d, v%d' % (ACC, ACC, ACC + 1)); p('v_add_f32 v%d, v%d, v%d' % (ACC + 2, ACC + 2, ACC + 3))
        p('ds_write2_b32 v11, v%d, v%d offset0:0 offset1:16' % (ACC, ACC + 2))
        p('s_waitcnt lgkmcnt(0)')
        p('s_barrier')
        pf(p, 3)
        l = p.newlabel('LRw'); p('s_cmp_lg_u32 s%d, 0' % S_WAVE); p('s_cbranch_scc1 %s' % l)
        for w in range(4): p('ds_read_b64 %s, v12 offset:%d' % (vr(20 + 2 * w, 2) if w < 2 else vr(32 + 2 * (w - 2), 2), w * 512))
        p('s_waitcnt lgkmcnt(0)')
        p('v_add_f32 v20, v20, v22'); p('v_add_f32 v21, v21, v23'); p('v_add_f32 v32, v32, v34'); p('v_add_f32 v33, v33, v35')
        p('v_add_f32 v20, v20, v32'); p('v_add_f32 v21, v21, v33')
        p('v_cvt_pk_bf16_f32 v32, v20, v21')
        for kk in range(4): p('v_mov_b32_dpp v%d, v32 quad_perm:[%d,%d,%d,%d] row_mask:0xf bank_mask:0xf' % (20 + kk, kk, kk, kk, kk))
        p('buffer_store_dwordx4 v[20:23], v13, s[%d:%d], s%d offen sc1' % (S_WS, S_WS + 3, S_MEMO))
        pf(p, 4)
        pf_acc(p)
        trace(p, 2, trace_on)
        if core.HIST:
            p('s_mul_i32 s%d, s%d, 10240' % (S_T0, S_STEP)); p('s_add_u32 s%d, s%d, %d' % (S_T0, S_T0, OFF_HIST + 10240))
            p('buffer_store_dword v32, v14, s[%d:%d], s%d offen' % (S_WS, S_WS + 3, S_T0))
        p.label(l)
        p('s_barrier')
        for r in range(8): p('v_accvgpr_write_b32 a%d, v%d' % (40 * k + 32 + r, ZB + r))
        lq0 = p.newlabel('LRv'); lq1 = p.newlabel('LRv1')
        p('s_cmp_lg_u32 s%d, 0' % S_WAVE); p('s_cbranch_scc1 %s' % lq0)
        p('s_waitcnt vmcnt(%d)' % (2 if core.HIST else 1)); p('s_branch %s' % lq1)
        p.label(lq0); p('s_waitcnt vmcnt(0)'); p.label(lq1)
        flags_check(2, 0)
        l3 = p.newlabel('LRq'); p('s_cmp_lg_u32 s%d, 1' % S_WAVE); p('s_cbranch_scc1 %s' % l3)
        p('s_and_b32 s%d, s%d, %d' % (S_T0, S_STEP, MEM_RING - 1)); p('s_mul_i32 s%d, s%d, %d' % (S_T0, S_T0, MEM_SLOT * BLK)); p('s_add_u32 s%d, s%d, s%d' % (S_T0, S_T0, S_COMM))
        p('buffer_store_dwordx4 %s, v13, s[%d:%d], s%d offen sc1' % (vr(SENT, 4), S_WS, S_WS + 3, S_T0))
        p.label(l3)
        l4 = p.newlabel('LRx'); p('s_cmp_lg_u32 s%d, 2' % S_WAVE); p('s_cbranch_scc1 %s' % l4)
        p('s_cmp_lt_u32 s%d, 3' % S_STEP); p('s_cbranch_scc1 %s' % l4)
        p('s_sub_u32 s%d, s%d, 2' % (S_T1, S_STEP)); x1_flag(S_T1)
        p.label(l4)
        p('buffer_store_dwordx4 %s, v6, s[%d:%d], s%d offen sc1' % (vr(SENT, 4), S_WS, S_WS + 3, S_ZO))
        p('buffer_store_dwordx4 %s, v6, s[%d:%d], s%d offen offset:1024 sc1' % (vr(SENT, 4), S_WS, S_WS + 3, S_ZO))
        p('s_add_u32 s%d, s%d, %d' % (S_VOO, S_VOO, 40 * 32 * 1024))
        vo_load((k + 1) & 3)
        rnd_write(p, 16384, 40, 41)
        lns = p.newlabel('LRns')
        p('s_cmp_lt_u32 s%d, 2' % S_STEP); p('s_cbranch_scc1 %s' % lns)
        seg_compute((k + 2) & 3, None)
        p.label(lns)
        p('s_add_u32 s%d, s%d, 1' % (S_STEP, S_STEP))
    p('s_branch %s' % loop)
    p.label('LR_last')
    p('s_waitcnt vmcnt(0)')
    seg_compute(1, None)
    p('s_waitcnt vmcnt(0)'); p('s_barrier')
    l = p.newlabel('LRf1'); p('s_cmp_lg_u32 s%d, 2' % S_WAVE); p('s_cbranch_scc1 %s' % l)
    p('s_mov_b32 s%d, 62' % S_T1); x1_flag(S_T1)
    p.label(l)
    p('s_mov_b32 s%d, 62' % S_SG); seg_issue(True); seg_compute(2, 0)
    top = p.newlabel('Lzl'); ok = p.newlabel('Lzlok')
    p.label(top)
    p('buffer_load_dwordx4 %s, v6, s[%d:%d], s%d offen sc1' % (vr(ZB, 4), S_WS, S_WS + 3, S_ZO))
    p('buffer_load_dwordx4 %s, v6, s[%d:%d], s%d offen offset:1024 sc1' % (vr(ZB + 4, 4), S_WS, S_WS + 3, S_ZO))
    p('s_waitcnt vmcnt(0)'); check_regs(p, range(ZB, ZB + 8), 7, [ZB + 3, ZB + 7]); p('s_cbranch_vccz %s' % ok)
    budget(p, ok, top)
    p.label(ok)
    for r in range(8): p('v_accvgpr_write_b32 a%d, v%d' % (40 * 3 + 32 + r, ZB + r))
    p('s_barrier')
    l = p.newlabel('LRf2'); p('s_cmp_lg_u32 s%d, 2' % S_WAVE); p('s_cbranch_scc1 %s' % l)
    p('s_mov_b32 s%d, 63' % S_T1); x1_flag(S_T1)
    p.label(l)
    p('s_mov_b32 s%d, 63' % S_SG); seg_issue(True); seg_compute(3, 0)
    p('s_waitcnt vmcnt(0)'); p('s_barrier')
    l = p.newlabel('LRf'); p('s_cmp_lg_u32 s%d, 2' % S_WAVE); p('s_cbranch_scc1 %s' % l)
    p('s_mov_b32 s%d, 64' % S_T1); x1_flag(S_T1)
    p.label(l)
```

```python
from core import *
import core, core2, pro
from pro import f2u, OOB
S_WK = 45
DBG_PAR = 196; DBG_MODA = 128; DBG_MOD = 132; DBG_PRO = 192

def dbg_inc(p, off):
    dbg_srd(p, 52)
    p('v_mov_b32 v4, 0x7ff00000'); p('v_mov_b32 v5, %d' % off); p('v_cmp_eq_u32 vcc, 0, v0'); p('v_cndmask_b32 v4, v4, v5, vcc')
    p('v_mov_b32 v6, 1')
    p('buffer_atomic_add v6, v4, s[52:55], 0 offen sc1')

def dbg_wait(p, off, need, w0_only=True, nonzero=False, vt=16, sleep=2):
    dbg_srd(p, 52)
    l = p.newlabel('Ldw'); top = p.newlabel('Ldwt'); done = p.newlabel('Ldwd')
    if w0_only: p('s_cmp_lg_u32 s%d, 0' % S_WAVE); p('s_cbranch_scc1 %s' % l)
    p('v_mov_b32 v%d, %d' % (vt, off))
    p.label(top)
    p('buffer_load_dword v%d, v%d, s[52:55], 0 offen sc1' % (vt + 1, vt)); p('s_waitcnt vmcnt(0)')
    p('v_readfirstlane_b32 s50, v%d' % (vt + 1))
    p('s_cmp_ge_u32 s50, %d' % need); p('s_cbranch_scc1 %s' % done)
    p('s_sleep %d' % sleep)
    p('s_cmp_eq_u32 s%d, 0' % S_SPIN); p('s_cbranch_scc1 %s' % done)
    p('s_sub_u32 s%d, s%d, 1' % (S_SPIN, S_SPIN)); p('s_branch %s' % top)
    p.label(done)
    p.label(l)
    if w0_only: p('s_barrier')

def probe4(p):
    l = p.newlabel('Lprs'); p('s_cmp_lg_u32 s%d, 0' % S_WAVE); p('s_cbranch_scc1 %s' % l)
    p('v_mov_b32 v36, 0'); p('v_mov_b32 v37, -1'); p('s_mov_b32 s54, 0')
    for k in range(4): p('s_mov_b32 s%d, -1' % (56 + k))
    top = p.newlabel('Lprb'); p.label(top)
    p('s_and_b32 s55, s54, 2'); p('s_lshl_b32 s%d, s55, 20' % S_T0); p('s_and_b32 s55, s54, 1'); p('s_lshl_b32 s55, s55, 13'); p('s_add_u32 s%d, s%d, s55' % (S_T0, S_T0))
    p('s_lshr_b32 s55, s54, 2'); p('s_lshl_b32 s55, s55, 14'); p('s_add_u32 s%d, s%d, s55' % (S_T0, S_T0))
    p('s_add_u32 s%d, s%d, s%d' % (S_T0, S_T0, S_COMM)); p('s_add_u32 s%d, s%d, %d' % (S_T0, S_T0, BLK_PROBE * BLK))
    p('buffer_store_dword v37, v36, s[%d:%d], s%d offen sc1' % (S_WS, S_WS + 3, S_T0))
    p('s_waitcnt vmcnt(0)')
    p('s_memtime s[50:51]'); p('s_waitcnt lgkmcnt(0)')
    p('buffer_load_dword v38, v36, s[%d:%d], s%d offen sc1' % (S_WS, S_WS + 3, S_T0))
    p('s_waitcnt vmcnt(0)')
    p('s_memtime s[52:53]'); p('s_waitcnt lgkmcnt(0)')
    p('s_sub_u32 s50, s52, s50')
    for k in range(4):
        p('s_and_b32 s55, s54, 3'); p('s_cmp_eq_u32 s55, %d' % k); p('s_cselect_b32 s55, s50, -1'); p('s_min_u32 s%d, s%d, s55' % (56 + k, 56 + k))
    p('s_add_u32 s54, s54, 1'); p('s_cmp_lt_u32 s54, %d' % (4 * PROBE_N)); p('s_cbranch_scc1 %s' % top)
    p('s_cmp_lt_u32 s57, s56'); p('s_cselect_b32 s50, 5, 4'); p('s_cmp_lt_u32 s59, s58'); p('s_cselect_b32 s51, 2, 0'); p('s_add_u32 s50, s50, s51')
    if core.PROF or DEBUG_PROBE:
        for k in range(4): p('v_mov_b32 v%d, s%d' % (40 + k, 56 + k))
    p('v_mov_b32 v37, s50')
    dbg_srd(p, 52)
    p('v_mov_b32 v38, 0x7ff00000'); p('v_mov_b32 v36, %d' % DBG_PAR); p('v_cmp_eq_u32 vcc, 0, v0'); p('v_cndmask_b32 v36, v38, v36, vcc')
    p('buffer_store_dword v37, v36, s[52:55], 0 offen sc1')
    if core.PROF or DEBUG_PROBE:
        p('v_mov_b32 v36, 96'); p('v_cndmask_b32 v36, v38, v36, vcc')
        p('buffer_store_dwordx4 v[40:43], v36, s[52:55], 0 offen sc1')
    p.label(l)

DEBUG_PROBE = False
STAMP = False
PROBE_N = 3
def gen_prologue(p):
    lskip = 'L_pro_skip'
    p('s_cmp_lt_u32 s2, 64'); p('s_cbranch_scc1 %s' % lskip)
    l1 = p.newlabel('Lwk');
    p('s_cmp_lt_u32 s2, 124'); p('s_cbranch_scc0 L_wk_a'); p('s_sub_u32 s%d, s2, 64' % S_WK); p('s_branch L_wk_ok')
    p.label('L_wk_a')
    p('s_cmp_lt_u32 s2, 128'); p('s_cbranch_scc0 L_wk_b'); p('s_sub_u32 s%d, s2, 4' % S_WK); p('s_branch L_wk_ok')
    p.label('L_wk_b')
    p('s_cmp_lt_u32 s2, 192'); p('s_cbranch_scc1 %s' % lskip)
    p('s_cmp_lt_u32 s2, 252'); p('s_cbranch_scc0 L_wk_c'); p('s_sub_u32 s%d, s2, 132' % S_WK); p('s_branch L_wk_ok')
    p.label('L_wk_c')
    p('s_sub_u32 s%d, s2, 128' % S_WK)
    p.label('L_wk_ok')
    wk = S_WK
    srd(p, 8, KA['wmod'], 640 * 7680); srd(p, 12, KA['c'], 1280)
    p('v_lshrrev_b32 v3, 6, v0'); p('v_and_b32 v1, 63, v0'); p('v_readfirstlane_b32 s%d, v3' % S_WAVE); p('s_mov_b32 s%d, %d' % (S_SPIN, SPIN_BUDGET))
    p('s_waitcnt lgkmcnt(0)')
    lnomod = p.newlabel('Lnm')
    p('s_cmp_ge_u32 s%d, 120' % wk); p('s_cbranch_scc1 %s' % lnomod)
    p('v_and_b32 v8, 3, v0'); p('v_lshrrev_b32 v9, 2, v0')
    p('v_mul_u32_u24 v10, 7680, v9'); p('v_lshlrev_b32 v11, 4, v8'); p('v_add_u32 v10, v10, v11')
    p('s_lshl_b32 s20, s%d, 6' % wk); p('v_add_u32 v10, s20, v10'); p('v_lshlrev_b32 v11, 1, v9')
    for i in range(10):
        p('s_mov_b32 s21, %d' % (i * 64 * 7680))
        p('buffer_load_dwordx4 %s, v10, s[8:11], s21 offen' % vr(40 + 4 * i, 4))
        p('buffer_load_ushort v%d, v11, s[12:15], 0 offen offset:%d' % (24 + i, i * 128))
    p.label(lnomod)
    srd(p, 56, KA['x'], 2048 * 1280); p('s_waitcnt lgkmcnt(0)')
    pro.ln_setup(p, 18)
    X0 = 84; D0 = 104; A0 = 144; B0 = 184; T = 224
    p('s_mul_i32 s24, s%d, %d' % (wk, 16 * 1280))
    for k in range(5): p('buffer_load_dwordx4 %s, v18, s[56:59], s24 offen offset:%d' % (vr(X0 + 4 * k, 4), k * 64))
    lmod = p.newlabel('Lmod'); lafter = p.newlabel('Lmodd')
    p('s_cmp_lt_u32 s%d, 120' % wk); p('s_cbranch_scc1 %s' % lmod)
    p('s_cmp_lg_u32 s%d, 120' % wk); p('s_cbranch_scc1 %s' % lafter)
    p('s_waitcnt vmcnt(0)')
    probe4(p)
    p('s_branch %s' % lafter)
    p.label(lmod)
    for r in range(32 + 4, 40): pass
    acc = list(range(228, 236))
    for r in acc: p('v_mov_b32 v%d, 0' % r)
    p('s_waitcnt vmcnt(0)')
    for i in range(10):
        c = 24 + i
        p('v_lshlrev_b32 v%d, 16, v%d' % (c, c))
        p('v_mul_f32 v6, 0xbfb8aa3b, v%d' % c)
        p('v_exp_f32 v6, v6'); p('v_add_f32 v6, 1.0, v6'); p('v_rcp_f32 v6, v6'); p('v_mul_f32 v6, v%d, v6' % c)
        p('v_cvt_pk_bf16_f32 v6, v6, v6'); p('v_and_b32 v6, 0xffff0000, v6')
        for k in range(4):
            w = 40 + 4 * i + k
            p('v_lshlrev_b32 v7, 16, v%d' % w); p('v_fmac_f32 v%d, v6, v7' % acc[2 * k])
            p('v_and_b32 v7, 0xffff0000, v%d' % w); p('v_fmac_f32 v%d, v6, v7' % acc[2 * k + 1])
    p('v_lshlrev_b32 v16, 7, v9'); p('v_lshlrev_b32 v17, 5, v8'); p('v_add_u32 v16, v16, v17')
    p('ds_write_b128 v16, v[228:231]'); p('ds_write_b128 v16, v[232:235] offset:16')
    p('s_waitcnt lgkmcnt(0)'); p('s_barrier')
    p('v_and_b32 v8, 31, v0'); p('v_lshrrev_b32 v9, 5, v0')
    p('v_lshlrev_b32 v10, 10, v9'); p('v_lshlrev_b32 v11, 2, v8'); p('v_add_u32 v10, v10, v11')
    for k in range(8): p('ds_read_b32 v%d, v10 offset:%d' % (228 + k, k * 128))
    p('s_waitcnt lgkmcnt(0)')
    for k in range(1, 8): p('v_add_f32 v228, v228, v%d' % (228 + k))
    p('s_barrier')
    p('v_lshlrev_b32 v10, 7, v9'); p('v_add_u32 v10, v10, v11'); p('ds_write_b32 v10, v228')
    p('s_waitcnt lgkmcnt(0)'); p('s_barrier')
    for k in range(8): p('ds_read_b32 v%d, v11 offset:%d' % (228 + k, k * 128))
    p('s_waitcnt lgkmcnt(0)')
    for k in range(1, 8): p('v_add_f32 v228, v228, v%d' % (228 + k))
    p('v_cvt_pk_bf16_f32 v228, v228, v228'); p('v_and_b32 v228, 0xffff0000, v228')
    p('s_mul_hi_u32 s21, s%d, %d' % (wk, (1 << 32) // 20 + 1))
    la = p.newlabel('Lna'); lb = p.newlabel('Lad')
    p('s_cmp_eq_u32 s21, 1'); p('s_cbranch_scc1 %s' % lb)
    p('s_cmp_eq_u32 s21, 4'); p('s_cbranch_scc0 %s' % la)
    p.label(lb)
    p('v_add_f32 v228, 1.0, v228'); p('v_cvt_pk_bf16_f32 v228, v228, v228'); p('v_and_b32 v228, 0xffff0000, v228')
    p.label(la)
    p('v_lshrrev_b32 v228, 16, v228')
    lplain = p.newlabel('Lmp'); ldone = p.newlabel('Lmpd')
    p('s_cmp_ge_u32 s%d, 40' % wk); p('s_cbranch_scc1 %s' % lplain)
    p('v_mov_b32_dpp v229, v228 quad_perm:[1,0,3,2] row_mask:0xf bank_mask:0xf')
    p('v_lshlrev_b32 v229, 16, v229'); p('v_or_b32 v229, v228, v229')
    p('v_lshrrev_b32 v5, 1, v0'); p('v_lshlrev_b32 v5, 2, v5')
    p('v_mov_b32 v6, 0x%x' % OOB); p('v_and_b32 v7, 1, v0'); p('v_cmp_eq_u32 vcc, 0, v7'); p('v_cndmask_b32 v5, v6, v5, vcc')
    p('v_cmp_gt_u32 vcc, 32, v0'); p('v_cndmask_b32 v5, v6, v5, vcc')
    p('v_mov_b32 v7, 64'); p('v_mov_b32 v230, s%d' % S_NONCE); p('v_cmp_eq_u32 vcc, 1, v0'); p('v_cndmask_b32 v5, v5, v7, vcc'); p('v_cndmask_b32 v229, v229, v230, vcc')
    p('s_lshl_b32 s22, s%d, 7' % wk); p('s_add_u32 s22, s22, %d' % OFF_MODL)
    p('buffer_store_dword v229, v5, s[%d:%d], s22 offen sc1' % (S_WS, S_WS + 3))
    p('s_branch %s' % ldone)
    p.label(lplain)
    p('s_lshl_b32 s20, s%d, 6' % wk)
    p('v_lshlrev_b32 v5, 1, v0'); p('v_add_u32 v5, s20, v5')
    p('v_mov_b32 v6, 0x%x' % OOB); p('v_cmp_gt_u32 vcc, 32, v0'); p('v_cndmask_b32 v5, v6, v5, vcc')
    p('s_mov_b32 s22, %d' % OFF_MOD)
    p('buffer_store_short v228, v5, s[%d:%d], s22 offen sc1' % (S_WS, S_WS + 3))
    p.label(ldone)
    p.label(lafter)
    def block_task(bs):
        lpk = p.newlabel('Lpk'); ld = p.newlabel('Lpkd')
        p('s_add_u32 s23, s%d, %d' % (bs, 128 - 80)); p('s_cmp_lt_u32 s%d, 80' % bs); p('s_cselect_b32 s23, s%d, s23' % bs)
        p('s_lshl_b32 s23, s23, 14'); p('s_add_u32 s23, s23, s%d' % S_COMM)
        p('s_cmp_lt_u32 s%d, %d' % (bs, MEM_SLOT)); p('s_cbranch_scc1 %s' % lpk)
        p('v_lshlrev_b32 v12, 4, v0')
        for r in range(4, 8): p('v_mov_b32 v%d, -1' % r)
        for j in range(4):
            p('buffer_store_dwordx4 v[4:7], v12, s[%d:%d], s23 offen sc1' % (S_WS, S_WS + 3))
            if j < 3: p('s_add_u32 s23, s23, 4096')
        p('s_branch %s' % ld)
        p.label(lpk)
        srd(p, 16 + 40, KA['mem0'], 10240); p('s_waitcnt lgkmcnt(0)')
        for rep in range(2):
            p('v_add_u32 v13, %d, v3' % (rep * 4))
            p('s_and_b32 s24, s%d, 1' % bs); p('s_lshl_b32 s24, s24, 3'); p('v_add_u32 v14, s24, v13')
            p('v_bfe_u32 v15, v1, 1, 3'); p('v_mul_u32_u24 v15, 1280, v15')
            p('v_lshlrev_b32 v16, 7, v14'); p('v_add_u32 v15, v15, v16')
            p('v_lshrrev_b32 v16, 4, v1'); p('v_lshlrev_b32 v16, 5, v16'); p('v_add_u32 v15, v15, v16')
            p('v_and_b32 v16, 1, v1'); p('v_lshlrev_b32 v16, 2, v16'); p('v_add_u32 v15, v15, v16')
            p('v_mov_b32 v17, 0x%x' % OOB); p('v_cmp_gt_u32 vcc, 10, v14'); p('v_cndmask_b32 v15, v17, v15, vcc')
            for q in range(4): p('buffer_load_dword v%d, v15, s[56:59], 0 offen offset:%d' % (4 + q, q * 8))
            p('v_lshlrev_b32 v12, 10, v13'); p('v_lshlrev_b32 v16, 4, v1'); p('v_add_u32 v12, v12, v16'); p('v_cndmask_b32 v12, v17, v12, vcc')
            p('s_waitcnt vmcnt(0)')
            p('buffer_store_dwordx4 v[4:7], v12, s[%d:%d], s23 offen sc1' % (S_WS, S_WS + 3))
            p('s_add_u32 s24, s23, 8192')
            p('buffer_store_dwordx4 v[4:7], v12, s[%d:%d], s24 offen sc1' % (S_WS, S_WS + 3))
            p('s_waitcnt vmcnt(0)')
        p.label(ld)
    def init_tasks():
        p('s_add_u32 s25, s%d, 8' % wk); p('s_and_b32 s25, s25, 127'); block_task(25)
        l2 = p.newlabel('Lb2'); p('s_cmp_ge_u32 s%d, 32' % wk); p('s_cbranch_scc1 %s' % l2)
        p('s_add_u32 s25, s%d, 128' % wk); block_task(25)
        p.label(l2)
        l3 = p.newlabel('Lb3'); p('s_cmp_lt_u32 s%d, 32' % wk); p('s_cbranch_scc1 %s' % l3); p('s_cmp_ge_u32 s%d, 39' % wk); p('s_cbranch_scc1 %s' % l3)
        p('s_sub_u32 s23, s%d, 32' % wk); p('s_lshl_b32 s23, s23, 12'); p('s_add_u32 s23, s23, %d' % OFF_FLAGS)
        p('v_lshlrev_b32 v12, 4, v0')
        for r in range(4, 8): p('v_mov_b32 v%d, 0' % r)
        p('buffer_store_dwordx4 v[4:7], v12, s[%d:%d], s23 offen sc1' % (S_WS, S_WS + 3))
        p.label(l3)
    le = p.newlabel('Lie'); p('s_cmp_lt_u32 s%d, 120' % wk); p('s_cbranch_scc1 %s' % le)
    init_tasks()
    p.label(le)
    stamp(p, 3, STAMP)
    def between():
        tmp = 36
        p('s_mul_i32 s%d, s%d, 640' % (S_T0, S_WAVE)); p('v_lshrrev_b32 v21, 4, v1'); p('v_lshlrev_b32 v21, 4, v21'); p('v_add_u32 v21, s%d, v21' % S_T0)
        p('v_min_u32 v22, 9, v1'); p('v_cmp_le_u32 vcc, 5, v22'); p('v_add_u32 v23, 15, v22'); p('v_cndmask_b32 v22, v22, v23, vcc')
        p('v_lshlrev_b32 v22, 7, v22'); p('v_add_u32 v22, s%d, v22' % S_T0); p('v_add_u32 v22, 64, v22')
        top = p.newlabel('Lml'); ok = p.newlabel('Lmlok')
        p('s_mov_b32 s%d, %d' % (S_T1, OFF_MODL))
        p.label(top)
        p('buffer_load_dword v23, v22, s[%d:%d], s%d offen sc1' % (S_WS, S_WS + 3, S_T1))
        for i, row in enumerate((1, 0)):
            p('s_add_u32 s%d, s%d, %d' % (S_T2, S_T1, row * 20 * 128))
            for k in range(5): p('buffer_load_dwordx4 %s, v21, s[%d:%d], s%d offen offset:%d sc1' % (vr(tmp + 20 * i + 4 * k, 4), S_WS, S_WS + 3, S_T2, k * 128))
        p('s_waitcnt vmcnt(0)')
        p('v_cmp_ne_u32 vcc, s%d, v23' % S_NONCE); p('s_cbranch_vccz %s' % ok)
        p('s_sleep 1')
        p('s_cmp_eq_u32 s%d, 0' % S_SPIN); p('s_cbranch_scc1 %s' % ok)
        p('s_sub_u32 s%d, s%d, 1' % (S_SPIN, S_SPIN)); p('s_branch %s' % top)
        p.label(ok)
        stamp(p, 7, STAMP)
        for i, dst in enumerate((A0, B0)):
            for k in range(20):
                p('v_lshlrev_b32 v%d, 16, v%d' % (dst + 2 * k, tmp + 20 * i + k)); p('v_and_b32 v%d, 0xffff0000, v%d' % (dst + 2 * k + 1, tmp + 20 * i + k))
    p('s_waitcnt vmcnt(0)')
    pro.ln_compute(p, X0, D0, A0, B0, 20, 8192, T, between)
    p('s_mul_i32 s24, s%d, 20480' % wk); p('s_mul_i32 s25, s%d, 5120' % S_WAVE); p('s_add_u32 s24, s24, s25'); p('s_add_u32 s24, s24, %d' % OFF_H)
    p('v_lshlrev_b32 v2, 4, v1')
    for k in range(5):
        if k == 4: p('s_add_u32 s24, s24, 4096')
        p('buffer_store_dwordx4 %s, v2, s[%d:%d], s24 offen offset:%d sc1' % (vr(X0 + 4 * k, 4), S_WS, S_WS + 3, (k % 4) * 1024))
    ll = p.newlabel('Lil'); p('s_cmp_ge_u32 s%d, 120' % wk); p('s_cbranch_scc1 %s' % ll)
    init_tasks()
    p.label(ll)
    p('s_waitcnt vmcnt(0)'); p('s_barrier')
    p('v_mov_b32 v4, 0x%x' % OOB); p('v_mov_b32 v5, 0'); p('v_cmp_eq_u32 vcc, 0, v0'); p('v_cndmask_b32 v4, v4, v5, vcc')
    p('v_mov_b32 v6, s%d' % S_NONCE); p('s_lshl_b32 s24, s%d, 7' % wk); p('s_add_u32 s24, s24, %d' % OFF_FH)
    p('buffer_store_dword v6, v4, s[%d:%d], s24 offen sc1' % (S_WS, S_WS + 3))
    p('s_barrier')
    p.label(lskip)

def mod_load_sc1(p, vb, A0, B0, rowA, rowB, tmp):
    for i, row in enumerate((rowA, rowB)):
        p('s_mov_b32 s%d, %d' % (S_T0, OFF_MOD + row * 1280))
        for k in range(5): p('buffer_load_dwordx4 %s, v%d, s[%d:%d], s%d offen offset:%d sc1' % (vr(tmp + 20 * i + 4 * k, 4), vb + 1, S_WS, S_WS + 3, S_T0, k * 64))
    p('s_waitcnt vmcnt(0)')
    for i, dst in enumerate((A0, B0)):
        for k in range(20):
            p('v_lshlrev_b32 v%d, 16, v%d' % (dst + 2 * k, tmp + 20 * i + k)); p('v_and_b32 v%d, 0xffff0000, v%d' % (dst + 2 * k + 1, tmp + 20 * i + k))

def wait_ready(p, parity=False):
    dbg_srd(p, 52)
    l = p.newlabel('Lwr'); top = p.newlabel('Lwrt'); done = p.newlabel('Lwrd'); again = p.newlabel('Lwra')
    p('s_cmp_lg_u32 s%d, 0' % S_WAVE); p('s_cbranch_scc1 %s' % l)
    p('v_lshrrev_b32 v16, 4, v2'); p('v_lshlrev_b32 v16, 7, v16'); p('v_mov_b32 v17, %d' % DBG_PAR); p('s_mov_b32 s51, %d' % OFF_FH); p('s_mov_b32 s50, %d' % (OFF_FH + 8192))
    p.label(top)
    p('buffer_load_dword v18, v16, s[%d:%d], s51 offen sc1' % (S_WS, S_WS + 3))
    p('buffer_load_dword v19, v16, s[%d:%d], s50 offen sc1' % (S_WS, S_WS + 3))
    if parity: p('buffer_load_dword v20, v17, s[52:55], 0 offen sc1')
    p('s_waitcnt vmcnt(0)')
    p('v_cmp_ne_u32 vcc, s%d, v18' % S_NONCE); p('s_cbranch_vccnz %s' % again)
    p('v_cmp_ne_u32 vcc, s%d, v19' % S_NONCE); p('s_cbranch_vccnz %s' % again)
    if parity: p('v_cmp_eq_u32 vcc, 0, v20'); p('s_cbranch_vccnz %s' % again)
    p('s_branch %s' % done)
    p.label(again)
    p('s_sleep 2')
    p('s_cmp_eq_u32 s%d, 0' % S_SPIN); p('s_cbranch_scc1 %s' % done)
    p('s_sub_u32 s%d, s%d, 1' % (S_SPIN, S_SPIN)); p('s_branch %s' % top)
    p.label(done)
    if parity: p('v_mov_b32 v16, 0'); p('ds_write_b32 v16, v20 offset:%d' % parity); p('s_waitcnt lgkmcnt(0)')
    p.label(l)
    p('s_barrier')
    if parity:
        p('v_mov_b32 v16, 0'); p('ds_read_b32 v17, v16 offset:%d' % parity); p('s_waitcnt lgkmcnt(0)'); p('v_readfirstlane_b32 s50, v17')
        p('s_barrier')
```

```python
from core import *
import core, core2, roles2, roles3, pro, fused

NAME = 'adaLN_cond__memory_aug_recurrent_mem_tr__glu_gated_bilinear__prompt_kernel'
DYN_ROLE = True
SHIFT = 0
FUSED = True
FAKE_XCC = 0
ROLES = dict(A=True, B=True, R=True, AP=True, BP=True, L2=True, F1=True, F2=True)

def gen_main(name, nsteps=64, st=False, trace_on=False):
    p = Prog()
    p.raw('.globl %s' % name); p.raw('.p2align 8'); p.raw('.type %s,@function' % name); p.label(name)
    p('s_cmp_ge_u32 s2, 256'); p('s_cbranch_scc1 L_exit')
    for _ in range(SHIFT): p('s_nop 0')
    srd(p, S_WS, KA['ws'], WS_BYTES)
    p('s_load_dwordx2 s[%d:%d], s[0:1], %d' % (S_DBG, S_DBG + 1, KA['dbg']))
    p('s_mov_b32 s%d, %d' % (S_NST, nsteps))
    p('s_waitcnt lgkmcnt(0)')
    core2.comm_setup2(p)
    if DYN_ROLE:
        dbg_srd(p, 52)
        if FAKE_XCC: p('s_lshr_b32 s20, s2, 6'); p('s_and_b32 s20, s20, 7'); p('s_mul_i32 s20, s20, %d' % FAKE_XCC); p('s_and_b32 s20, s20, 7')
        else: p('s_getreg_b32 s20, hwreg(HW_REG_XCC_ID)'); p('s_and_b32 s20, s20, 7')
        lw = 'L_tk_other'
        p('v_lshrrev_b32 v3, 6, v0'); p('v_readfirstlane_b32 s%d, v3' % S_WAVE)
        p('s_cmp_lg_u32 s%d, 0' % S_WAVE); p('s_cbranch_scc1 %s' % lw)
        p('v_mov_b32 v4, 0x7ff00000'); p('v_mov_b32 v5, 0'); p('v_cmp_eq_u32 vcc, 0, v0'); p('v_cndmask_b32 v4, v4, v5, vcc')
        p('s_lshl_b32 s21, s20, 2'); p('s_add_u32 s21, s21, 32')
        p('v_mov_b32 v6, 1')
        p('buffer_atomic_add v6, v4, s[52:55], s21 offen sc0 sc1')
        p('v_mov_b32 v9, 128'); p('v_cndmask_b32 v9, 0x7ff00000, v9, vcc') if False else None
        p('s_cmp_lg_u32 s2, 0'); p('s_cbranch_scc1 L_nonce_rd')
        p('s_memrealtime s[%d:%d]' % (S_NONCE, S_NONCE + 1)); p('s_waitcnt lgkmcnt(0)'); p('s_or_b32 s%d, s%d, 1' % (S_NONCE, S_NONCE))
        p('v_mov_b32 v8, s%d' % S_NONCE); p('s_movk_i32 s23, 128')
        p('buffer_store_dword v8, v4, s[52:55], s23 offen sc1')
        p.label('L_nonce_rd')
        p('v_mov_b32 v9, 128'); p('s_mov_b32 s26, %d' % SPIN_BUDGET)
        p.label('L_nonce_poll')
        p('buffer_load_dword v8, v9, s[52:55], 0 offen sc1')
        p('s_waitcnt vmcnt(0)')
        p('v_readfirstlane_b32 s%d, v8' % S_NONCE)
        p('s_cmp_lg_u32 s%d, 0' % S_NONCE); p('s_cbranch_scc1 L_nonce_ok')
        p('s_sub_u32 s26, s26, 1'); p('s_cmp_lg_u32 s26, 0'); p('s_cbranch_scc1 L_nonce_poll')
        p.label('L_nonce_ok')
        p('v_readfirstlane_b32 s22, v6')
        p('s_cmp_lt_u32 s22, 32'); p('s_cbranch_scc1 L_tk_ok')
        p('v_mov_b32 v6, 1'); p('s_mov_b32 s21, 64')
        p('buffer_atomic_add v6, v4, s[52:55], s21 offen sc0 sc1'); p('s_waitcnt vmcnt(0)')
        p('v_readfirstlane_b32 s23, v6')
        p('v_lshlrev_b32 v7, 2, v0'); p('v_min_u32 v7, 28, v7')
        p('s_mov_b32 s26, %d' % SPIN_BUDGET)
        p.label('L_tk_wait')
        p('buffer_load_dword v8, v7, s[52:55], 0 offen offset:32 sc1'); p('s_waitcnt vmcnt(0)')
        p('s_mov_b32 s24, 0')
        for y in range(8): p('v_readlane_b32 s25, v8, %d' % y); p('s_add_u32 s24, s24, s25')
        p('s_cmp_ge_u32 s24, 256'); p('s_cbranch_scc1 L_tk_all')
        p('s_sleep 8'); p('s_sub_u32 s26, s26, 1'); p('s_cmp_lg_u32 s26, 0'); p('s_cbranch_scc1 L_tk_wait')
        p.label('L_tk_all')
        for y in range(8):
            ln = 'L_tk_n%d' % y
            p('v_readlane_b32 s25, v8, %d' % y); p('s_min_u32 s25, s25, 32'); p('s_sub_u32 s24, 32, s25')
            p('s_cmp_lt_u32 s23, s24'); p('s_cbranch_scc0 %s' % ln)
            p('s_mov_b32 s20, %d' % y); p('s_add_u32 s22, s25, s23'); p('s_branch L_tk_ok')
            p.label(ln)
            p('s_sub_u32 s23, s23, s24')
        p('s_mov_b32 s20, 16'); p('s_mov_b32 s22, 0')
        p.label('L_tk_ok')
        p('s_lshl_b32 s22, s22, 2'); p('s_and_b32 s21, s20, 3'); p('s_add_u32 s22, s22, s21')
        p('s_lshr_b32 s20, s20, 2'); p('s_lshl_b32 s20, s20, 7'); p('s_add_u32 s22, s22, s20')
        p('v_mov_b32 v6, s22'); p('v_mov_b32 v7, s%d' % S_NONCE); p('v_mov_b32 v8, 0'); p('ds_write_b64 v8, v[6:7]'); p('s_waitcnt lgkmcnt(0)')
        p.label(lw)
        p('s_barrier')
        p('v_mov_b32 v8, 0'); p('ds_read_b64 v[6:7], v8'); p('s_waitcnt lgkmcnt(0)')
        p('v_readfirstlane_b32 s2, v6'); p('v_readfirstlane_b32 s%d, v7' % S_NONCE)
        p('s_barrier')
        p('s_cmp_ge_u32 s2, 256'); p('s_cbranch_scc1 L_exit')
    else:
        p('s_and_b32 s20, s2, 7'); p('s_lshr_b32 s21, s2, 3'); p('s_lshl_b32 s21, s21, 2'); p('s_and_b32 s22, s20, 3'); p('s_add_u32 s21, s21, s22')
        p('s_lshr_b32 s20, s20, 2'); p('s_lshl_b32 s20, s20, 7'); p('s_add_u32 s2, s21, s20')
    if st:
        p('v_lshrrev_b32 v3, 6, v0'); p('v_readfirstlane_b32 s%d, v3' % S_WAVE); stamp(p, 0, True)
    if FUSED:
        fused.gen_prologue(p)
    table = [('A', 0, 32, lambda: core2.gen_A2(p, trace_on, st)), ('B', 32, 64, lambda: core2.gen_B2(p, trace_on, st)), ('R', 64, 104, lambda: core2.gen_R2(p, trace_on, st)),
             ('AP', 128, 160, lambda: roles2.gen_AP(p, st)), ('BP', 160, 192, lambda: roles2.gen_BP(p, st)),
             ('F2', 104, 124, lambda: roles3.gen_F2(p, st)), ('L2', 124, 128, lambda: roles3.gen_L2(p, st)), ('F1', 192, 240, lambda: roles3.gen_F1(p, st))]
    for nm, lo, hi, fn in table:
        if not ROLES.get(nm): continue
        l = 'L_not' + nm
        p('s_cmp_lt_u32 s2, %d' % lo); p('s_cbranch_scc1 %s' % l)
        p('s_cmp_ge_u32 s2, %d' % hi); p('s_cbranch_scc1 %s' % l)
        p('s_sub_u32 s%d, s2, %d' % (S_IDX, lo))
        p('s_branch L_go' + nm)
        p.label(l)
    p.label('L_exit')
    p('s_endpgm')
    for nm, lo, hi, fn in table:
        if not ROLES.get(nm): continue
        p.label('L_go' + nm); fn(); p('s_branch L_end')
    p.label('L_end')
    stamp(p, 2, st)
    pf_out(p)
    l = p.newlabel('Lok'); p('s_cmp_lg_u32 s%d, 0' % S_SPIN); p('s_cbranch_scc1 %s' % l)
    p('v_mov_b32 v4, 4'); p('v_mov_b32 v5, s2'); p('v_add_u32 v5, 1, v5'); p('global_store_dword v4, v5, s[%d:%d]' % (S_DBG, S_DBG + 1))
    p.label(l)
    p('s_waitcnt vmcnt(0)')
    p('s_endpgm')
    return p.text(), kernel_desc(name), p

def gen_all(st=False, trace_on=False, names=('k0_kernel', 'k1_kernel', 'main_kernel')):
    core.FUSED = FUSED
    t2, d2, p = gen_main(names[2], 64, st, trace_on)
    if FUSED:
        launches = [(names[2], 256, 163840)]
        return '; @launch grid=(256,1,1) block=(256,1,1) lds=163840\n' + HEADER + t2 + d2, launches
    t0, d0 = pro.gen_k0(names[0]); t1, d1 = pro.gen_k1(names[1])
    launches = [(names[0], 377, 8192), (names[1], 128, 1024), (names[2], 256, 163840)]
    head = ''.join('; @launch kernel=%s grid=(%d,1,1) block=(256,1,1) lds=%d\n' % l for l in launches)
    return head + HEADER + t0 + t1 + t2 + d0 + d1 + d2, launches

if __name__ == '__main__':
    txt, _ = gen_all()
    open('all.s', 'w').write(txt); print(len(txt))
```

```python
from core import *
import core, struct

S_COMZ = 39
A_SYNC = True
ZP_GAP = 0
CSLEEP = {'mem': 0, 'z': 0, 'p': 0}
CPRE = {'A': 22, 'B': 38, 'R': 2}
CUR_ROLE = 'A'
POLL2 = {'mem': False, 'z': True, 'p': False}
FAST_SM = True
RTRACE = False
CLASSIC = {'mem': True, 'p': True}
CHECK1 = True
BAR_TAU = {'A': 1, 'B': 1}
S_DLY = 62; S_RND = 63; S_RSUM = 60
PACE = {'mem': 2, 'p': 4}
DLY_INIT = {'A': 0, 'B': 0, 'R': 0}
DLY_ADJ = [-3, 0, 2, 4, 8]

def comm_setup2(p):
    p('s_add_u32 s%d, s%d, %d' % (S_T0, S_WS, OFF_COMM))
    p('s_sub_u32 s%d, 0, s%d' % (S_T0, S_T0)); p('s_and_b32 s%d, s%d, 0x1fffff' % (S_T0, S_T0))
    if core.DYN_PAR:
        p('s_add_u32 s%d, s%d, %d' % (S_COMM, S_T0, OFF_COMM)); p('s_add_u32 s%d, s%d, %d' % (S_COMZ, S_COMM, 2 << 20))
    else:
        p('s_add_u32 s%d, s%d, %d' % (S_COMM, S_T0, OFF_COMM + (core.PARITY & 1) * 8192))
        p('s_add_u32 s%d, s%d, %d' % (S_COMZ, S_T0, OFF_COMM + (2 << 20) + ((core.PARITY >> 1) & 1) * 8192))

def parity_probe2(p):
    if not core.DYN_PAR: return
    l = p.newlabel('Lpp'); p('s_cmp_lg_u32 s%d, 0' % S_WAVE); p('s_cbranch_scc1 %s' % l)
    p('s_cmp_lg_u32 s%d, 0' % S_IDX); p('s_cbranch_scc1 %s' % l)
    p('v_mov_b32 v16, 0'); p('v_mov_b32 v17, -1')
    p('s_mov_b32 s54, 4')
    for pg, base in ((0, S_COMM), (1, S_COMZ)):
        p('s_mov_b32 s48, 0'); p('s_mov_b32 s49, 0')
        for i in range(4):
            for par in range(2):
                p('s_add_u32 s%d, s%d, %d' % (S_T0, base, (BLK_PROBE + i) * BLK + par * 8192 + i * 256))
                p('buffer_store_dword v17, v16, s[%d:%d], s%d offen sc1' % (S_WS, S_WS + 3, S_T0))
                p('s_waitcnt vmcnt(0)')
                p('s_memtime s[50:51]'); p('s_waitcnt lgkmcnt(0)')
                p('buffer_load_dword v18, v16, s[%d:%d], s%d offen sc1' % (S_WS, S_WS + 3, S_T0))
                p('s_waitcnt vmcnt(0)')
                p('s_memtime s[52:53]'); p('s_waitcnt lgkmcnt(0)')
                p('s_sub_u32 s50, s52, s50')
                if i > 0: p('s_add_u32 s%d, s%d, s50' % (48 + par, 48 + par))
        p('s_cmp_lt_u32 s49, s48'); p('s_cselect_b32 s50, %d, 0' % (1 << pg)); p('s_add_u32 s54, s54, s50')
    p('v_mov_b32 v17, s54')
    dbg_srd(p, 52)
    p('v_cmp_eq_u32 vcc, 0, v1'); p('v_mov_b32 v18, 0x7ff00000'); p('v_cndmask_b32 v16, v18, v16, vcc')
    p('buffer_store_dword v17, v16, s[52:55], 0 offen sc1')
    p('s_waitcnt vmcnt(0)')
    p.label(l)

def ready(p, h_only=False, half=None):
    if core.FUSED:
        import fused
        fused.wait_ready(p, off=OFF_FH if h_only else OFF_FI, half=half)

def parity_wait2(p, lds_off=10240):
    if core.FUSED and core.DYN_PAR:
        import fused
        fused.wait_ready(p, parity=lds_off)
    else:
        ready(p)
        if not core.DYN_PAR: return
        dbg_srd(p, 52)
        top = p.newlabel('Lpw'); done = p.newlabel('Lpwd')
        p('v_mov_b32 v16, 0')
        p.label(top)
        p('buffer_load_dword v17, v16, s[52:55], 0 offen sc1'); p('s_waitcnt vmcnt(0)')
        p('v_readfirstlane_b32 s50, v17')
        p('s_cmp_lg_u32 s50, 0'); p('s_cbranch_scc1 %s' % done)
        p('s_sleep 4')
        p('s_cmp_eq_u32 s%d, 0' % S_SPIN); p('s_cbranch_scc1 %s' % done)
        p('s_sub_u32 s%d, s%d, 1' % (S_SPIN, S_SPIN)); p('s_branch %s' % top)
        p.label(done)
    p('s_and_b32 s51, s50, 1'); p('s_lshl_b32 s51, s51, 13'); p('s_add_u32 s%d, s%d, s51' % (S_COMM, S_COMM))
    p('s_and_b32 s51, s50, 2'); p('s_lshl_b32 s51, s51, 12'); p('s_add_u32 s%d, s%d, s51' % (S_COMZ, S_COMZ))

def offsets2(p, mem_add=0, want=('mem', 'p', 'z')):
    if 'mem' in want:
        p('s_add_u32 s%d, s%d, %d' % (S_T0, S_STEP, mem_add)); p('s_and_b32 s%d, s%d, %d' % (S_T0, S_T0, MEM_RING - 1))
        p('s_mul_i32 s%d, s%d, %d' % (S_T0, S_T0, MEM_SLOT * BLK)); p('s_add_u32 s%d, s%d, s%d' % (S_MEMO, S_T0, S_COMM))
        if BLK_MEM: p('s_add_u32 s%d, s%d, %d' % (S_MEMO, S_MEMO, BLK_MEM * BLK))
    if 'p' in want:
        p('s_and_b32 s%d, s%d, %d' % (S_T0, S_STEP, P_RING - 1)); p('s_mul_i32 s%d, s%d, %d' % (S_T0, S_T0, P_SLOT * BLK))
        p('s_add_u32 s%d, s%d, s%d' % (S_PO, S_T0, S_COMM)); p('s_add_u32 s%d, s%d, %d' % (S_PO, S_PO, BLK_P * BLK))
    if 'z' in want:
        p('s_and_b32 s%d, s%d, %d' % (S_T0, S_STEP, Z_RING - 1)); p('s_mul_i32 s%d, s%d, %d' % (S_T0, S_T0, 40 * BLK))
        p('s_add_u32 s%d, s%d, s%d' % (S_ZO, S_T0, S_COMZ))

def check_regs(p, regs, tmp, quads=None):
    r = list(regs)
    if CHECK1 and quads: r = list(quads)
    if len(r) < 3: r = r + [r[0]] * (3 - len(r))
    p('v_max3_u32 v%d, v%d, v%d, v%d' % (tmp, r[0], r[1], r[2])); r = r[3:]
    while len(r) >= 2:
        p('v_max3_u32 v%d, v%d, v%d, v%d' % (tmp, tmp, r[0], r[1])); r = r[2:]
    if r: p('v_max_u32 v%d, v%d, v%d' % (tmp, tmp, r[0]))
    p('v_cmp_eq_u32 vcc, -1, v%d' % tmp)

def budget(p, giveup, again):
    p('s_cmp_eq_u32 s%d, 0' % S_SPIN); p('s_cbranch_scc1 %s' % giveup)
    p('s_sub_u32 s%d, s%d, 1' % (S_SPIN, S_SPIN)); p('s_branch %s' % again)

def multi_poll(p, issue, n, regs_of_set, tmp, kind, variant, first_hook=None, pre_issue=None, quads=None):
    if CLASSIC[kind]:
        top = p.newlabel('Lcl'); ok = p.newlabel('Lclok')
        if CPRE[CUR_ROLE]: p('s_sleep %d' % CPRE[CUR_ROLE])
        if pre_issue:
            pre_issue(); p('s_waitcnt vmcnt(0)'); first_hook()
            if ZP_GAP: p('s_sleep %d' % ZP_GAP)
        if POLL2[kind]: issue(0, 0)
        p.label(top)
        if core.PROF: p('s_memtime s[64:65]'); p('s_add_u32 s68, s68, 1')
        issue(0, 0); p('s_waitcnt vmcnt(%d)' % (n if POLL2[kind] else 0)); check_regs(p, regs_of_set(0), tmp, quads(0) if (quads and not POLL2[kind]) else None); p('s_cbranch_vccz %s' % ok)
        if CSLEEP[kind]: p('s_sleep %d' % CSLEEP[kind])
        budget(p, ok, top)
        p.label(ok)
        if core.PROF:
            p('s_memtime s[66:67]'); p('s_waitcnt lgkmcnt(0)'); p('s_sub_u32 s64, s66, s64'); p('s_add_u32 s69, s69, s64')
        p('s_mov_b32 s%d, 1' % S_RND)
        variant(0)
        return
    V = [p.newlabel('Lv%d' % j) for j in range(4)]; join = p.newlabel('Lvj'); fb = p.newlabel('Lfb'); fbok = p.newlabel('Lfbok')
    dl = p.newlabel('Ldl'); dld = p.newlabel('Ldld')
    p('s_mov_b32 s%d, s%d' % (S_T1, S_DLY))
    p.label(dl); p('s_cmp_eq_u32 s%d, 0' % S_T1); p('s_cbranch_scc1 %s' % dld)
    p('s_sleep 1'); p('s_sub_u32 s%d, s%d, 1' % (S_T1, S_T1)); p('s_branch %s' % dl)
    p.label(dld)
    if pre_issue: pre_issue()
    issue(0, 0); p('s_sleep %d' % PACE[kind]); issue(1, 1); p('s_sleep %d' % PACE[kind]); issue(2, 2)
    p('s_waitcnt vmcnt(%d)' % (2 * n))
    if first_hook: first_hook()
    check_regs(p, regs_of_set(0), tmp); p('s_cbranch_vccz %s' % V[0])
    issue(3, 3)
    p('s_waitcnt vmcnt(%d)' % (2 * n)); check_regs(p, regs_of_set(1), tmp); p('s_cbranch_vccz %s' % V[1])
    p('s_waitcnt vmcnt(%d)' % n); check_regs(p, regs_of_set(2), tmp); p('s_cbranch_vccz %s' % V[2])
    p('s_waitcnt vmcnt(0)'); check_regs(p, regs_of_set(3), tmp); p('s_cbranch_vccz %s' % V[3])
    p.label(fb)
    issue(0, 0); p('s_waitcnt vmcnt(0)'); check_regs(p, regs_of_set(0), tmp); p('s_cbranch_vccz %s' % fbok)
    budget(p, fbok, fb)
    p.label(fbok)
    p('s_mov_b32 s%d, 4' % S_RND)
    lv0 = p.newlabel('Lv0b'); p('s_branch %s' % lv0)
    for j in range(4):
        p.label(V[j]); p('s_mov_b32 s%d, %d' % (S_RND, j))
        if j == 0: p.label(lv0)
        variant(j)
        if j < 3: p('s_branch %s' % join)
    p.label(join)

def rnd_write(p, lds_off, t1, t2):
    p('s_lshl_b32 s%d, s%d, 2' % (S_T1, S_WAVE)); p('s_add_u32 s%d, s%d, %d' % (S_T1, S_T1, lds_off))
    p('v_mov_b32 v%d, s%d' % (t1, S_T1)); p('v_mov_b32 v%d, s%d' % (t2, S_RND)); p('ds_write_b32 v%d, v%d' % (t1, t2))
    if core.PROF: p('s_add_u32 s%d, s%d, s%d' % (S_RSUM, S_RSUM, S_RND))

def dly_update(p, lds_off, t):
    p('v_mov_b32 v%d, %d' % (t + 4, lds_off)); p('ds_read_b128 %s, v%d' % (vr(t, 4), t + 4)); p('s_waitcnt lgkmcnt(0)')
    p('v_max3_u32 v%d, v%d, v%d, v%d' % (t, t, t + 1, t + 2)); p('v_max_u32 v%d, v%d, v%d' % (t, t, t + 3))
    p('v_readfirstlane_b32 s%d, v%d' % (S_RND, t))
    p('s_mov_b32 s%d, %d' % (S_T1, DLY_ADJ[0]))
    for r in range(1, 5):
        p('s_cmp_eq_u32 s%d, %d' % (S_RND, r)); p('s_cselect_b32 s%d, %d, s%d' % (S_T1, DLY_ADJ[r], S_T1))
    p('s_add_i32 s%d, s%d, s%d' % (S_DLY, S_DLY, S_T1)); p('s_max_i32 s%d, s%d, 0' % (S_DLY, S_DLY)); p('s_min_i32 s%d, s%d, 120' % (S_DLY, S_DLY))
    if RTRACE:
        l = p.newlabel('Lrt'); p('s_cmp_lg_u32 s%d, 0' % S_WAVE); p('s_cbranch_scc1 %s' % l)
        p('s_lshl_b32 s%d, s%d, 8' % (S_T7, S_STEP)); p('s_add_u32 s%d, s%d, s2' % (S_T7, S_T7)); p('s_lshl_b32 s%d, s%d, 4' % (S_T7, S_T7)); p('s_add_u32 s%d, s%d, %d' % (S_T7, S_T7, OFF_TRACE + 12))
        p('s_lshl_b32 s%d, s%d, 8' % (S_T1, S_DLY)); p('s_or_b32 s%d, s%d, s%d' % (S_T1, S_T1, S_RND))
        p('v_mov_b32 v%d, s%d' % (t, S_T1)); p('v_mov_b32 v%d, 0' % (t + 1))
        p('buffer_store_dword v%d, v%d, s[%d:%d], s%d offen' % (t, t + 1, S_WS, S_WS + 3, S_T7))
        p.label(l)

def gset(): return 40 if CLASSIC['mem'] else 80
TRACE_ON = False
def gather_and_project(p, lg, ntile, acc0, wres_v, kind, hooks, tail_order=None, wave0_hooks=None):
    def issue(st, cp):
        if cp: p('s_add_u32 s%d, s%d, %d' % (S_T2, S_MEMO, cp * MEM_COPY * BLK))
        for j in range(3):
            p('buffer_load_dwordx4 %s, v%d, s[%d:%d], s%d offen sc1' % (vr(gset() + 12 * st + 4 * j, 4), 4 + j, S_WS, S_WS + 3, S_T2 if cp else S_MEMO))
    def ringreg(tau): return RING + 4 * ((tau - 3) % 3)
    def rd(tau):
        a, off = memfrag_addr(tau)
        p('ds_read_b128 %s, v%d offset:%d' % (vr(ringreg(tau), 4), a, off)); lg.issue(('m', tau))
    base_q = list(lg.q); end_q = []
    def variant(st):
        lg.q = list(base_q)
        pf(p, 1)
        trace(p, 0, TRACE_ON)
        fr = gset() + 12 * st
        for j in range(3):
            p('ds_write_b128 v%d, %s' % (RING + j, vr(fr + 4 * j, 4))); lg.issue(('mw', j))
        for tau in range(3):
            if tau == BAR_TAU[CUR_ROLE]:
                lg.wait(('mw', 2)); p('s_barrier')
                for t in (3, 4, 5): rd(t)
            for tile in range(ntile): smf(p, acc0 + 4 * tile, fr + 4 * tau, tau * ntile + tile, lg, wres_v)
        end_q[:] = list(lg.q)
    multi_poll(p, issue, 3, lambda st: range(gset() + 12 * st, gset() + 12 * st + 12), 7, 'mem', variant, quads=lambda st: [gset() + 12 * st + 4 * j + 3 for j in range(3)])
    lg.q = list(end_q)
    last = 8 if tail_order else 10
    def rest(t0, hk):
        for tau in range(t0, last):
            lg.wait(('m', tau))
            for tile in range(ntile): smf(p, acc0 + 4 * tile, ringreg(tau), tau * ntile + tile, lg, wres_v)
            if tau + 3 < 10: rd(tau + 3)
            if tau in hk: hk[tau]()
        if tail_order: tail_order(ringreg)
    if wave0_hooks is None:
        rest(3, hooks)
    else:
        lo = p.newlabel('Lnw0'); lj = p.newlabel('Lnw0j')
        q0 = list(lg.q)
        p('s_cmp_lg_u32 s%d, 0' % S_WAVE); p('s_cbranch_scc1 %s' % lo)
        rest(3, wave0_hooks); p('s_branch %s' % lj)
        p.label(lo); lg.q = list(q0); rest(3, hooks)
        p.label(lj)

def gen_A2(p, trace_on=False, st=False):
    global TRACE_ON, CUR_ROLE
    TRACE_ON = trace_on; CUR_ROLE = 'A'
    lg = Cnt(p, 'lgkmcnt', 15); vm = Cnt(p, 'vmcnt', 63)
    h = S_IDX
    srd(p, S_W1, KA['Wq'], 640 * 12288); srd(p, S_W2, KA['Wk'], 640 * 12288)
    common_lane_setup(p)
    p('s_waitcnt lgkmcnt(0)')
    mem_gather_setup(p, A_MEMX)
    p('s_mul_i32 s%d, s%d, 24576' % (S_T0, S_WAVE)); p('s_add_u32 s%d, s%d, 65536' % (S_T0, S_T0)); p('v_add_u32 v15, s%d, v2' % S_T0)
    voffs = [80, 81, 82]
    stage_offsets(p, voffs, 6, 12288, 1, 83, 84)
    p('v_lshrrev_b32 v83, 4, v1'); p('v_lshlrev_b32 v83, 3, v83'); p('v_bfe_u32 v84, v1, 2, 2'); p('v_add_u32 v83, v83, v84')
    p('v_mul_u32_u24 v83, 96, v83'); p('v_and_b32 v84, 3, v1'); p('v_lshlrev_b32 v84, 3, v84'); p('v_add_u32 v85, v83, v84')
    p('s_lshl_b32 s%d, s%d, 14' % (S_T4, S_WAVE)); p('v_add_u32 v85, s%d, v85' % S_T4)
    p('s_mul_i32 s%d, s%d, 384' % (S_T5, h)); p('s_mul_i32 s%d, s%d, 96' % (S_T0, S_WAVE)); p('s_add_u32 s%d, s%d, s%d' % (S_T5, S_T5, S_T0))
    p('s_mul_i32 s%d, s%d, 3' % (S_T6, S_WAVE))
    jobs = []
    for tau in range(10):
        for half in range(2):
            for mat in range(2):
                def soff(dst, tau=tau, half=half):
                    p('s_add_u32 s%d, s%d, %d' % (dst, S_T6, tau))
                    p('s_sub_u32 s%d, s%d, 10' % (S_T2, dst)); p('s_cmp_ge_u32 s%d, 10' % dst); p('s_cselect_b32 s%d, s%d, s%d' % (dst, S_T2, dst))
                    p('s_mul_i32 s%d, s%d, %d' % (dst, dst, 64 * 12288))
                    p('s_add_u32 s%d, s%d, s%d' % (dst, dst, S_T5))
                    if half: p('s_add_u32 s%d, s%d, %d' % (dst, dst, 32 * 12288))
                dests = []
                for x in range(3):
                    kind, n = UM[tau * 6 + mat * 3 + x]
                    if kind == 'reg': dests.append((x * 32, ('reg', unit_reg(n, 4 * half, 2), unit_reg(n, 4 * half + 2, 2))))
                    else: dests.append((x * 32, ('lds', n * 2048 + half * 1024)))
                jobs.append(dict(srd=S_W1 if mat == 0 else S_W2, soff=soff, dests=dests))
    load_weights_type1(p, jobs, 85, 3072, 5, voffs, 3, 96, lg, vm, 15, 88, S_T4)
    p('s_barrier')
    p('v_and_b32 v81, 3, v1'); p('v_lshlrev_b32 v80, 6, v81')
    p('v_bfe_u32 v81, v1, 2, 2'); p('v_lshlrev_b32 v81, 4, v81'); p('v_add_u32 v80, v80, v81')
    p('v_lshrrev_b32 v81, 4, v1'); p('v_lshlrev_b32 v81, 2, v81'); p('v_add_u32 v80, v80, v81')
    p('s_mul_i32 s%d, s%d, 768' % (S_T0, S_WAVE)); p('s_add_u32 s%d, s%d, %d' % (S_T0, S_T0, A_QX)); p('v_add_u32 v11, s%d, v80' % S_T0)
    p('v_bfe_u32 v80, v1, 2, 2'); p('v_lshlrev_b32 v80, 6, v80')
    p('v_lshrrev_b32 v81, 4, v1'); p('v_lshlrev_b32 v81, 4, v81'); p('v_add_u32 v80, v80, v81')
    p('v_and_b32 v81, 1, v1'); p('v_lshlrev_b32 v81, 3, v81'); p('v_add_u32 v80, v80, v81'); p('v_add_u32 v12, %d, v80' % A_QX)
    p('v_lshrrev_b32 v80, 5, v1'); p('v_lshlrev_b32 v80, 8, v80')
    p('v_bfe_u32 v81, v1, 4, 1'); p('v_lshlrev_b32 v81, 4, v81'); p('v_add_u32 v80, v80, v81')
    p('v_and_b32 v81, 7, v1'); p('v_lshlrev_b32 v82, 5, v81'); p('v_add_u32 v80, v80, v82'); p('v_lshlrev_b32 v82, 4, v81')
    p('v_bfe_u32 v83, v1, 3, 1'); p('v_mul_u32_u24 v83, %d, v83' % (P_COPY * BLK)); p('v_add_u32 v80, v80, v83')
    p('s_lshr_b32 s%d, s%d, 4' % (S_T1, h)); p('s_lshl_b32 s%d, s%d, 14' % (S_T1, S_T1)); p('s_and_b32 s%d, s%d, 15' % (S_T0, h)); p('s_lshl_b32 s%d, s%d, 9' % (S_T0, S_T0)); p('s_add_u32 s%d, s%d, s%d' % (S_T0, S_T0, S_T1))
    p('v_add_u32 v13, s%d, v80' % S_T0)
    if CLASSIC['p']: p('v_mov_b32 v82, 0x7ff00000'); p('v_and_b32 v83, 8, v1'); p('v_cmp_eq_u32 vcc, 0, v83'); p('v_cndmask_b32 v13, v82, v13, vcc'); p('v_and_b32 v81, 7, v1'); p('v_lshlrev_b32 v82, 4, v81')
    p('v_bfe_u32 v83, v1, 3, 2'); p('v_mul_u32_u24 v83, %d, v83' % (P_COPY * BLK)); p('v_add_u32 v80, v82, v83')
    p('s_lshl_b32 s%d, s%d, 7' % (S_T0, h)); p('s_add_u32 s%d, s%d, %d' % (S_T0, S_T0, 2 * BLK)); p('v_add_u32 v14, s%d, v80' % S_T0)
    p('v_mov_b32 v82, 0x7ff00000'); p('v_cmp_gt_u32 vcc, %d, v1' % (8 if CLASSIC['p'] else 32)); p('v_cndmask_b32 v14, v82, v14, vcc')
    p('s_mov_b32 s%d, 0' % S_MASK); p('s_mov_b32 s%d, -1' % (S_MASK + 1))
    p('s_mov_b32 s74, 0xff00ff00'); p('s_mov_b32 s75, 0xff00ff00')
    p('s_mov_b32 s%d, 0x%x' % (S_C, struct.unpack('<I', struct.pack('<f', 192 ** -0.5 * 1.4426950408889634))[0]))
    p('s_mov_b32 s%d, 0' % S_STEP)
    p('s_mul_i32 s%d, s%d, 24576' % (S_QKO, h)); p('s_add_u32 s%d, s%d, %d' % (S_QKO, S_QKO, OFF_QK))
    stamp(p, 3, st)
    parity_wait2(p)
    def qk_dma(bufsel_s):
        p('s_mov_b32 s%d, s%d' % (S_T1, S_QKO))
        for j in range(24):
            p('s_add_u32 s%d, s%d, %d' % (S_T0, bufsel_s, j * 1024)); p('s_mov_b32 m0, s%d' % S_T0)
            p('buffer_load_dwordx4 v2, s[%d:%d], s%d offen sc1 lds' % (S_WS, S_WS + 3, S_T1))
            if j < 23: p('s_add_u32 s%d, s%d, 1024' % (S_T1, S_T1))
    def KS(jt, u): return 80 + 4 * (jt * 6 + u)
    def qk_wait(add, sampled=False):
        p('s_add_u32 s%d, s%d, %d' % (S_T3, S_STEP, add))
        lok = p.newlabel('LAok')
        if sampled: p('v_cmp_gt_u32 vcc, s%d, v1' % S_T3); p('s_cbranch_vccz %s' % lok)
        wait_flags(p, 0, F_QK, S_T3, 7)
        p.label(lok)
    p('s_lshl_b32 s%d, s%d, %d' % (S_T0, h, FSH)); p('v_mov_b32 v0, s%d' % S_T0)
    l = p.newlabel('La')
    p('s_cmp_lg_u32 s%d, 3' % S_WAVE); p('s_cbranch_scc1 %s' % l)
    qk_wait(1)
    p('s_mov_b32 s%d, %d' % (S_T3, A_QKB)); qk_dma(S_T3)
    p('s_waitcnt vmcnt(0)')
    p.label(l)
    stamp(p, 1, st)
    pf_init(p); p('s_mov_b32 s%d, %d' % (S_DLY, DLY_INIT['A'])); p('s_mov_b32 s%d, 0' % S_RSUM); p('s_mov_b32 s%d, 1' % S_RND); rnd_write(p, A_QX, 40, 41)
    loop = p.newlabel('LAloop'); core.loop_align(p); p.label(loop)
    lg.reset()
    pf(p, 0)
    for r in range(16, 40): p('v_mov_b32 v%d, 0' % r)
    wst_load(p, 0, 15, lg); wst_load(p, 1, 15, lg)
    offsets2(p, 0, ('mem', 'p')); mem_lds_addr(p)
    p('s_mov_b32 s%d, %d' % (S_T0, F_QK))
    p('buffer_load_dword v1, v0, s[%d:%d], s%d offen sc1' % (S_WS, S_WS + 3, S_T0))
    p('s_waitcnt lgkmcnt(0)'); lg.reset()
    if not CLASSIC['mem']: p('s_barrier'); dly_update(p, A_QX, 40)
    elif A_SYNC: p('s_barrier')
    def kread(lst):
        for (jt, u) in lst:
            p('ds_read_b128 %s, v7 offset:%d' % (vr(KS(jt, u), 4), jt * 6144 + u * 1024)); lg.issue(('k', jt, u))
    def h3():
        if not CLASSIC['mem']: p('s_waitcnt vmcnt(0)')
        p('s_and_b32 s%d, s%d, 1' % (S_T0, S_STEP)); p('s_mul_i32 s%d, s%d, 24576' % (S_T0, S_T0)); p('s_add_u32 s%d, s%d, %d' % (S_T0, S_T0, A_QKB + 12288))
        p('v_add_u32 v7, s%d, v2' % S_T0)
        kread([(0, 0), (1, 0)])
    w0hooks = {3: h3, 4: lambda: kread([(0, 1), (1, 1), (0, 2)]), 5: lambda: kread([(1, 2), (0, 3)]), 6: lambda: kread([(1, 3), (0, 4), (1, 4)]), 7: lambda: kread([(0, 5), (1, 5)])}
    hooks = {} if CLASSIC['mem'] else {4: lambda: p('s_waitcnt vmcnt(0)')}
    def exch(x):
        L = []
        for a, off in ((16 + 4 * x, x * 256), (28 + 4 * x, 3072 + x * 256)):
            L += ['v_add_f32 v%d, v%d, v%d' % (a, a, a + 1), 'v_add_f32 v%d, v%d, v%d' % (a + 2, a + 2, a + 3),
                  'v_cvt_pk_bf16_f32 v%d, v%d, v%d' % (a, a, a + 2), 'ds_write_b32 v11, v%d offset:%d' % (a, off)]
        return L
    def tail_order(ringreg):
        lg.wait(('m', 8));
        seq = []
        for x in range(3):
            for tau in (8, 9): seq += [(tau, x), (tau, 3 + x)]
        fill = []
        for i, (tau, tile) in enumerate(seq):
            if i == 2: lg.wait(('m', 9))
            smf(p, 16 + 4 * tile, ringreg(tau), tau * 6 + tile, lg, 15)
            if i == 5: fill += exch(0)
            if i == 9: fill += exch(1)
            for _ in range(3):
                if fill:
                    ins = fill.pop(0); p(ins)
                    if ins.startswith('ds_'): lg.issue('qx')
        for ins in fill + exch(2):
            p(ins)
            if ins.startswith('ds_'): lg.issue('qx')
    gather_and_project(p, lg, 6, 16, 15, 'mem', hooks, tail_order, w0hooks)
    pf(p, 2)
    p('s_waitcnt vmcnt(0) lgkmcnt(0)' if POLL2['mem'] else 's_waitcnt lgkmcnt(0)'); lg.reset()
    p('s_barrier')
    pf(p, 3)
    trace(p, 1, trace_on)
    lw = p.newlabel('LAw'); lend = p.newlabel('LAe'); lw3 = p.newlabel('LAw3')
    QF = 16; KM = 40; SA = 64; SM = 72
    def scores(kind):
        lg.reset()
        if kind == 'seg':
            p('s_and_b32 s%d, s%d, 1' % (S_T0, S_STEP)); p('s_mul_i32 s%d, s%d, 24576' % (S_T0, S_T0)); p('s_add_u32 s%d, s%d, %d' % (S_T0, S_T0, A_QKB))
            p('s_sub_u32 s%d, s%d, 1' % (S_T1, S_WAVE)); p('s_mul_i32 s%d, s%d, 6144' % (S_T1, S_T1)); p('v_add_u32 v7, s%d, v2' % S_T0); p('s_add_u32 s%d, s%d, s%d' % (S_T0, S_T0, S_T1)); p('v_add_u32 v76, s%d, v2' % S_T0)
        for u in range(6):
            if kind == 'seg':
                for jt in range(2):
                    p('ds_read_b128 %s, v7 offset:%d' % (vr(KS(jt, u), 4), 12288 + jt * 6144 + u * 1024)); lg.issue(('q', u))
            if kind == 'mem':
                for z in range(2):
                    p('ds_read_b64_tr_b16 %s, v12 offset:%d' % (vr(QF + 4 * u + 2 * z, 2), (2 * u + z) * 256)); lg.issue(('q', u))
            else:
                p('ds_read_b128 %s, v76 offset:%d' % (vr(QF + 4 * u, 4), u * 1024)); lg.issue(('q', u))
            for z in range(2):
                p('ds_read_b64_tr_b16 %s, v12 offset:%d' % (vr(KM + 4 * u + 2 * z, 2), 3072 + (2 * u + z) * 256)); lg.issue(('q', u))
            if u >= 2:
                uu = u - 2
                lg.wait(('q', uu)); mf(uu)
        for uu in (4, 5): lg.wait(('q', uu)); mf(uu)
        softmax(kind)
    def mf(u):
        for jt in range(2):
            p('v_mfma_f32_16x16x32_bf16 %s, %s, %s, %s' % (vr(SA + 4 * jt, 4), vr(KS(jt, u), 4), vr(QF + 4 * u, 4), '0' if u == 0 else vr(SA + 4 * jt, 4)))
        p('v_mfma_f32_16x16x32_bf16 %s, %s, %s, %s' % (vr(SM, 4), vr(KM + 4 * u, 4), vr(QF + 4 * u, 4), '0' if u == 0 else vr(SM, 4)))
    def softmax_mem():
        DUP = 72 + 0
        X = [76, 77, 78, 79]; Y = [40, 41]
        p('v_mov_b32 v42, 0xff800000')
        for r in range(4): p('v_cndmask_b32 v%d, v%d, v%d, s[74:75]' % (X[r], SA + r, SA + 4 + r))
        for r in range(2):
            p('v_cndmask_b32 v%d, v%d, v%d, s[74:75]' % (Y[r], SM + r, SM + 2 + r))
            p('v_cndmask_b32 v%d, v%d, v42, s[%d:%d]' % (Y[r], Y[r], S_MASK, S_MASK + 1))
        vals = X + Y
        p('v_max3_f32 v17, v%d, v%d, v%d' % tuple(X[0:3])); p('v_max3_f32 v17, v17, v%d, v%d' % (X[3], Y[0])); p('v_max_f32 v17, v17, v%d' % Y[1])
        p('v_max_f32_dpp v17, v17, v17 row_ror:8 row_mask:0xf bank_mask:0xf')
        p('v_mov_b32 v18, v17'); p('v_permlane16_swap_b32 v17, v18'); p('v_max_f32 v17, v17, v18')
        p('v_mov_b32 v18, v17'); p('v_permlane32_swap_b32 v17, v18'); p('v_max_f32 v17, v17, v18')
        p('v_mul_f32 v17, s%d, v17' % S_C)
        for v in vals: p('v_fma_f32 v%d, v%d, s%d, -v17' % (v, v, S_C))
        for v in vals: p('v_exp_f32 v%d, v%d' % (v, v))
        p('v_add_f32 v18, v%d, v%d' % (X[0], X[1])); p('v_add_f32 v19, v%d, v%d' % (X[2], X[3])); p('v_add_f32 v43, v%d, v%d' % (Y[0], Y[1]))
        p('v_add_f32 v18, v18, v19'); p('v_add_f32 v18, v18, v43')
        p('v_add_f32_dpp v18, v18, v18 row_ror:8 row_mask:0xf bank_mask:0xf')
        p('v_mov_b32 v19, v18'); p('v_permlane16_swap_b32 v18, v19'); p('v_add_f32 v18, v18, v19')
        p('v_mov_b32 v19, v18'); p('v_permlane32_swap_b32 v18, v19'); p('v_add_f32 v18, v18, v19')
        p('v_rcp_f32 v18, v18')
        W = 20
        for v in X: p('v_mul_f32 v%d, v%d, v18' % (v, v))
        p('v_cvt_pk_bf16_f32 v%d, v%d, v%d' % (W + 0, X[0], X[1])); p('v_cvt_pk_bf16_f32 v%d, v%d, v%d' % (W + 2, X[2], X[3]))
        for v in Y: p('v_mul_f32 v%d, v%d, v18' % (v, v))
        p('v_permlane16_swap_b32 v%d, v%d' % (W + 0, W + 2))
        p('v_cvt_pk_bf16_f32 v%d, v%d, v%d' % (W + 4, Y[0], Y[1]))
        p('v_mov_b32_dpp v%d, v%d row_ror:8 row_mask:0xf bank_mask:0xf' % (W + 1, W + 0)); p('v_mov_b32_dpp v%d, v%d row_ror:8 row_mask:0xf bank_mask:0xf' % (W + 3, W + 2))
        p('v_mov_b32 v%d, v%d' % (W + 5, W + 4))
        p('buffer_store_dwordx4 %s, v13, s[%d:%d], s%d offen sc1' % (vr(W, 4), S_WS, S_WS + 3, S_PO))
        p('v_permlane16_swap_b32 v%d, v%d' % (W + 4, W + 5))
        p('v_mov_b32_dpp v%d, v%d row_ror:8 row_mask:0xf bank_mask:0xf' % (W + 6, W + 4)); p('v_mov_b32_dpp v%d, v%d row_ror:8 row_mask:0xf bank_mask:0xf' % (W + 7, W + 5))
        p('buffer_store_dwordx4 %s, v14, s[%d:%d], s%d offen sc1' % (vr(W + 4, 4), S_WS, S_WS + 3, S_PO))
    def softmax(kind):
        if kind == 'mem' and CLASSIC['p'] and FAST_SM: return softmax_mem()
        vals = list(range(SA, SA + 8)) + list(range(SM, SM + 4))
        p('v_mov_b32 v76, 0xff800000')
        if kind == 'seg':
            p('v_lshrrev_b32 v77, 4, v2'); p('v_and_b32 v78, 15, v77'); p('v_lshrrev_b32 v77, 4, v77'); p('v_lshlrev_b32 v77, 2, v77'); p('v_sub_u32 v77, v78, v77')
            p('s_sub_u32 s%d, s%d, 1' % (S_T1, S_WAVE)); p('s_lshl_b32 s%d, s%d, 4' % (S_T1, S_T1)); p('v_add_u32 v77, s%d, v77' % S_T1)
            for jt in range(2):
                for r in range(4):
                    p('v_cmp_le_i32 vcc, %d, v77' % (16 * jt + r))
                    p('v_cndmask_b32 v%d, v76, v%d, vcc' % (SA + 4 * jt + r, SA + 4 * jt + r))
        p('v_max3_f32 v17, v%d, v%d, v%d' % tuple(vals[0:3]))
        for i in range(3, 7, 2): p('v_max3_f32 v17, v17, v%d, v%d' % (vals[i], vals[i + 1]))
        for r in range(4): p('v_cndmask_b32 v%d, v%d, v76, s[%d:%d]' % (SM + r, SM + r, S_MASK, S_MASK + 1))
        p('v_max3_f32 v17, v17, v%d, v%d' % (vals[7], vals[8])); p('v_max3_f32 v17, v17, v%d, v%d' % (vals[9], vals[10])); p('v_max_f32 v17, v17, v%d' % vals[11])
        p('v_mov_b32 v18, v17'); p('v_permlane16_swap_b32 v17, v18'); p('v_max_f32 v17, v17, v18')
        p('v_mov_b32 v18, v17'); p('v_permlane32_swap_b32 v17, v18'); p('v_max_f32 v17, v17, v18')
        p('v_mul_f32 v17, s%d, v17' % S_C)
        for v in vals: p('v_fma_f32 v%d, v%d, s%d, -v17' % (v, v, S_C))
        for v in vals: p('v_exp_f32 v%d, v%d' % (v, v))
        p('v_add_f32 v18, v%d, v%d' % (vals[0], vals[1])); p('v_add_f32 v19, v%d, v%d' % (vals[2], vals[3]))
        for i in range(4, 12, 2):
            p('v_add_f32 v18, v18, v%d' % vals[i]); p('v_add_f32 v19, v19, v%d' % vals[i + 1])
        p('v_add_f32 v18, v18, v19')
        p('v_mov_b32 v19, v18'); p('v_permlane16_swap_b32 v18, v19'); p('v_add_f32 v18, v18, v19')
        p('v_mov_b32 v19, v18'); p('v_permlane32_swap_b32 v18, v19'); p('v_add_f32 v18, v18, v19')
        p('v_rcp_f32 v18, v18')
        W = 20
        if kind == 'mem':
            for v in vals[:8]: p('v_mul_f32 v%d, v%d, v18' % (v, v))
            p('v_cvt_pk_bf16_f32 v%d, v%d, v%d' % (W + 0, SA + 0, SA + 1)); p('v_cvt_pk_bf16_f32 v%d, v%d, v%d' % (W + 2, SA + 2, SA + 3))
            p('v_cvt_pk_bf16_f32 v%d, v%d, v%d' % (W + 1, SA + 4, SA + 5)); p('v_cvt_pk_bf16_f32 v%d, v%d, v%d' % (W + 3, SA + 6, SA + 7))
            for v in vals[8:]: p('v_mul_f32 v%d, v%d, v18' % (v, v))
            p('v_permlane16_swap_b32 v%d, v%d' % (W + 0, W + 2)); p('v_permlane16_swap_b32 v%d, v%d' % (W + 1, W + 3))
            p('v_cvt_pk_bf16_f32 v%d, v%d, v%d' % (W + 4, SM + 0, SM + 1)); p('v_cvt_pk_bf16_f32 v%d, v%d, v%d' % (W + 6, SM + 2, SM + 3))
            p('s_add_u32 s%d, s%d, %d' % (S_T0, S_PO, 2 * P_COPY * BLK))
            p('buffer_store_dwordx4 %s, v13, s[%d:%d], s%d offen sc1' % (vr(W, 4), S_WS, S_WS + 3, S_PO))
            p('v_mov_b32 v%d, v%d' % (W + 5, W + 4)); p('v_mov_b32 v%d, v%d' % (W + 7, W + 6))
            if not CLASSIC['p']: p('buffer_store_dwordx4 %s, v13, s[%d:%d], s%d offen sc1' % (vr(W, 4), S_WS, S_WS + 3, S_T0))
            p('v_permlane16_swap_b32 v%d, v%d' % (W + 4, W + 5)); p('v_permlane16_swap_b32 v%d, v%d' % (W + 6, W + 7))
            p('buffer_store_dwordx4 %s, v14, s[%d:%d], s%d offen sc1' % (vr(W + 4, 4), S_WS, S_WS + 3, S_PO))
        else:
            for v in vals: p('v_mul_f32 v%d, v%d, v18' % (v, v))
            for k in range(4): p('v_cvt_pk_bf16_f32 v%d, v%d, v%d' % (W + k, SA + 2 * k, SA + 2 * k + 1))
            p('v_cvt_pk_bf16_f32 v%d, v%d, v%d' % (W + 4, SM + 0, SM + 1)); p('v_cvt_pk_bf16_f32 v%d, v%d, v%d' % (W + 5, SM + 2, SM + 3))
            p('s_mul_i32 s%d, s%d, 81920' % (S_T0, S_STEP)); p('s_sub_u32 s%d, s%d, 1' % (S_T1, S_WAVE)); p('s_lshl_b32 s%d, s%d, 15' % (S_T2, S_T1))
            p('s_add_u32 s%d, s%d, s%d' % (S_T2, S_T2, S_T0)); p('s_lshl_b32 s%d, s%d, 10' % (S_T3, h)); p('s_add_u32 s%d, s%d, s%d' % (S_T2, S_T2, S_T3)); p('s_add_u32 s%d, s%d, %d' % (S_T2, S_T2, OFF_PS))
            p('buffer_store_dwordx4 %s, v2, s[%d:%d], s%d offen sc1' % (vr(W, 4), S_WS, S_WS + 3, S_T2))
            p('v_mov_b32 v%d, v%d' % (W + 6, W + 4)); p('v_mov_b32 v%d, v%d' % (W + 7, W + 5))
            p('v_permlane16_swap_b32 v%d, v%d' % (W + 4, W + 6)); p('v_permlane16_swap_b32 v%d, v%d' % (W + 5, W + 7))
            p('s_lshl_b32 s%d, s%d, 13' % (S_T1, S_T1)); p('s_add_u32 s%d, s%d, s%d' % (S_T0, S_T0, S_T1)); p('s_lshl_b32 s%d, s%d, 8' % (S_T3, h)); p('s_add_u32 s%d, s%d, s%d' % (S_T0, S_T0, S_T3))
            p('s_add_u32 s%d, s%d, %d' % (S_T0, S_T0, OFF_PS + 65536))
            p('v_mov_b32 v42, 0x7ff00000'); p('v_cmp_gt_u32 vcc, 256, v2'); p('v_cndmask_b32 v42, v42, v2, vcc')
            p('buffer_store_dwordx4 %s, v42, s[%d:%d], s%d offen sc1' % (vr(W + 4, 4), S_WS, S_WS + 3, S_T0))
    p('s_cmp_lg_u32 s%d, 0' % S_WAVE); p('s_cbranch_scc1 %s' % lw)
    scores('mem')
    pf(p, 4)
    pf_acc(p)
    trace(p, 2, trace_on)
    p('s_barrier')
    p('s_branch %s' % lend)
    p.label(lw)
    p('s_cmp_eq_u32 s%d, 3' % S_WAVE); p('s_cbranch_scc1 %s' % lw3)
    scores('seg')
    p('s_barrier')
    p('s_waitcnt vmcnt(0)')
    p('v_mov_b32 v20, 0x7ff00000'); p('v_mov_b32 v22, 0'); p('v_cmp_eq_u32 vcc, 0, v2'); p('v_cndmask_b32 v20, v20, v22, vcc')
    p('s_add_u32 s%d, s%d, 1' % (S_T0, S_STEP)); p('v_mov_b32 v21, s%d' % S_T0)
    p('s_lshl_b32 s%d, s%d, 1' % (S_T1, h)); p('s_add_u32 s%d, s%d, s%d' % (S_T1, S_T1, S_WAVE)); p('s_sub_u32 s%d, s%d, 1' % (S_T1, S_T1)); p('s_lshl_b32 s%d, s%d, %d' % (S_T1, S_T1, FSH)); p('s_add_u32 s%d, s%d, %d' % (S_T1, S_T1, F_P))
    p('buffer_store_dword v21, v20, s[%d:%d], s%d offen sc1' % (S_WS, S_WS + 3, S_T1))
    p('s_branch %s' % lend)
    p.label(lw3)
    p('s_add_u32 s%d, s%d, %d' % (S_T0, S_STEP, P_RING - 1)); p('s_and_b32 s%d, s%d, %d' % (S_T0, S_T0, P_RING - 1)); p('s_mul_i32 s%d, s%d, %d' % (S_T0, S_T0, P_SLOT * BLK))
    p('s_add_u32 s%d, s%d, s%d' % (S_T0, S_T0, S_COMM)); p('s_add_u32 s%d, s%d, %d' % (S_T0, S_T0, BLK_P * BLK)); p('s_add_u32 s%d, s%d, %d' % (S_T1, S_T0, 2 * P_COPY * BLK))
    for r in range(16, 20): p('v_mov_b32 v%d, -1' % r)
    def fp_flag():
        p('v_mov_b32 v20, 0x7ff00000'); p('v_cmp_eq_u32 vcc, 0, v2'); p('v_cndmask_b32 v20, v20, v0, vcc')
        p('v_mov_b32 v21, s%d' % S_STEP); p('s_mov_b32 s%d, %d' % (S_T2, F_P))
        p('buffer_store_dword v21, v20, s[%d:%d], s%d offen sc1' % (S_WS, S_WS + 3, S_T2))
    p('s_barrier')
    p('buffer_store_dwordx4 v[16:19], v13, s[%d:%d], s%d offen sc1' % (S_WS, S_WS + 3, S_T0))
    if not CLASSIC['p']: p('buffer_store_dwordx4 v[16:19], v13, s[%d:%d], s%d offen sc1' % (S_WS, S_WS + 3, S_T1))
    p('buffer_store_dwordx4 v[16:19], v14, s[%d:%d], s%d offen sc1' % (S_WS, S_WS + 3, S_T0))
    p('s_cmp_ge_u32 s%d, 63' % S_STEP); p('s_cbranch_scc1 %s' % lend)
    p('s_add_u32 s%d, s%d, %d' % (S_QKO, S_QKO, 32 * 24576))
    qk_wait(2, True)
    p('s_add_u32 s%d, s%d, 1' % (S_T3, S_STEP)); p('s_and_b32 s%d, s%d, 1' % (S_T3, S_T3)); p('s_mul_i32 s%d, s%d, 24576' % (S_T3, S_T3)); p('s_add_u32 s%d, s%d, %d' % (S_T3, S_T3, A_QKB))
    qk_dma(S_T3)
    p.label(lend)
    rnd_write(p, A_QX, 40, 41)
    p('s_add_u32 s%d, s%d, 1' % (S_STEP, S_STEP)); p('s_cmp_lt_u32 s%d, s%d' % (S_STEP, S_NST)); p('s_cbranch_scc1 %s' % loop)

def gen_B2(p, trace_on=False, st=False):
    global CUR_ROLE
    CUR_ROLE = 'B'
    lg = Cnt(p, 'lgkmcnt', 15); vm = Cnt(p, 'vmcnt', 63)
    h = S_IDX
    srd(p, S_W1, KA['Wv'], 640 * 12288); srd(p, S_W2, KA['Wo'], 32 * 192 * 1280)
    common_lane_setup(p)
    p('s_waitcnt lgkmcnt(0)')
    mem_gather_setup(p, B_MEMX)
    p('s_mul_i32 s%d, s%d, 24576' % (S_T0, S_WAVE)); p('s_add_u32 s%d, s%d, 65536' % (S_T0, S_T0)); p('v_add_u32 v15, s%d, v2' % S_T0)
    p('s_lshl_b32 s%d, s%d, 14' % (S_T4, S_WAVE))
    voffs = [80, 81, 82]
    stage_offsets(p, voffs, 6, 12288, 1, 83, 84)
    p('v_lshrrev_b32 v83, 4, v1'); p('v_lshlrev_b32 v83, 3, v83'); p('v_bfe_u32 v84, v1, 2, 2'); p('v_add_u32 v83, v83, v84')
    p('v_and_b32 v84, 3, v1'); p('v_lshlrev_b32 v84, 3, v84')
    p('v_mul_u32_u24 v85, 96, v83'); p('v_add_u32 v85, v85, v84'); p('v_add_u32 v85, s%d, v85' % S_T4)
    p('v_mul_u32_u24 v86, 160, v83'); p('v_add_u32 v86, v86, v84'); p('v_add_u32 v86, s%d, v86' % S_T4)
    p('s_mul_i32 s%d, s%d, 384' % (S_T5, h)); p('s_mul_i32 s%d, s%d, 96' % (S_T0, S_WAVE)); p('s_add_u32 s%d, s%d, s%d' % (S_T5, S_T5, S_T0))
    p('s_mul_i32 s%d, s%d, 3' % (S_T6, S_WAVE))
    jobs = []
    for tau in range(10):
        for half in range(2):
            def soff(dst, tau=tau, half=half):
                p('s_add_u32 s%d, s%d, %d' % (dst, S_T6, tau))
                p('s_sub_u32 s%d, s%d, 10' % (S_T2, dst)); p('s_cmp_ge_u32 s%d, 10' % dst); p('s_cselect_b32 s%d, s%d, s%d' % (dst, S_T2, dst))
                p('s_mul_i32 s%d, s%d, %d' % (dst, dst, 64 * 12288))
                p('s_add_u32 s%d, s%d, s%d' % (dst, dst, S_T5))
                if half: p('s_add_u32 s%d, s%d, %d' % (dst, dst, 32 * 12288))
            dests = []
            for x in range(3):
                kind, n = UM[tau * 3 + x]
                if kind == 'reg': dests.append((x * 32, ('reg', unit_reg(n, 4 * half, 2), unit_reg(n, 4 * half + 2, 2))))
                else: dests.append((x * 32, ('lds', n * 2048 + half * 1024)))
            jobs.append(dict(srd=S_W1, soff=soff, dests=dests))
    load_weights_type1(p, jobs, 85, 3072, 5, voffs, 3, 96, lg, vm, 15, 88, S_T4)
    voffs = [100, 101, 102, 103, 104]
    stage_offsets(p, voffs, 10, 1280, 1, 83, 84)
    p('s_mul_i32 s%d, s%d, %d' % (S_T5, h, 192 * 1280)); p('s_mul_i32 s%d, s%d, 320' % (S_T0, S_WAVE)); p('s_add_u32 s%d, s%d, s%d' % (S_T5, S_T5, S_T0))
    jobs = []
    for u in range(6):
        for ch in range(2):
            def soff(dst, u=u, ch=ch): p('s_add_u32 s%d, s%d, %d' % (dst, S_T5, u * 32 * 1280 + ch * 160))
            dests = []
            for x in range(5):
                cc = ch * 5 + x
                kind, n = UM[30 + cc * 3 + (u >> 1)]; half = u & 1
                if kind == 'reg': dests.append((x * 32, ('reg', unit_reg(n, 4 * half, 2), unit_reg(n, 4 * half + 2, 2))))
                else: dests.append((x * 32, ('lds', n * 2048 + half * 1024)))
            jobs.append(dict(srd=S_W2, soff=soff, dests=dests))
    load_weights_type1(p, jobs, 86, 5120, 3, voffs, 5, 160, lg, vm, 15, 88, S_T4)
    p('s_barrier')
    p('v_bfe_u32 v80, v1, 3, 1'); p('v_lshlrev_b32 v80, 9, v80')
    p('v_bfe_u32 v81, v1, 2, 1'); p('v_lshlrev_b32 v81, 6, v81'); p('v_add_u32 v80, v80, v81')
    p('v_and_b32 v81, 1, v1'); p('v_lshlrev_b32 v81, 5, v81'); p('v_add_u32 v80, v80, v81')
    p('v_bfe_u32 v81, v1, 1, 1'); p('v_lshlrev_b32 v81, 2, v81'); p('v_add_u32 v80, v80, v81')
    p('v_lshrrev_b32 v81, 4, v1'); p('v_lshlrev_b32 v81, 3, v81'); p('v_add_u32 v80, v80, v81')
    for x, dst in enumerate((11, 12, 29)):
        p('s_mul_i32 s%d, s%d, 3' % (S_T0, S_WAVE)); p('s_add_u32 s%d, s%d, %d' % (S_T0, S_T0, x))
        p('s_lshr_b32 s%d, s%d, 2' % (S_T1, S_T0)); p('s_lshl_b32 s%d, s%d, 10' % (S_T1, S_T1)); p('s_and_b32 s%d, s%d, 3' % (S_T0, S_T0)); p('s_lshl_b32 s%d, s%d, 7' % (S_T0, S_T0))
        p('s_add_u32 s%d, s%d, s%d' % (S_T0, S_T0, S_T1)); p('s_add_u32 s%d, s%d, %d' % (S_T0, S_T0, B_VX)); p('v_add_u32 v%d, s%d, v80' % (dst, S_T0))
    p('v_mov_b32 v28, 0x05040100'); p('v_mov_b32 v82, 0x03020706'); p('v_and_b32 v83, 2, v1'); p('v_cmp_eq_u32 vcc, 0, v83'); p('v_cndmask_b32 v28, v82, v28, vcc')
    p('v_lshrrev_b32 v80, 4, v1'); p('v_lshlrev_b32 v80, 7, v80')
    p('v_bfe_u32 v81, v1, 2, 2'); p('v_lshlrev_b32 v81, 5, v81'); p('v_add_u32 v80, v80, v81')
    p('v_and_b32 v81, 3, v1'); p('v_lshlrev_b32 v81, 3, v81'); p('v_add_u32 v80, v80, v81'); p('v_add_u32 v13, %d, v80' % B_VX)
    p('v_lshrrev_b32 v80, 4, v1'); p('s_mul_i32 s%d, s%d, 10' % (S_T0, S_WAVE)); p('v_add_u32 v80, s%d, v80' % S_T0); p('v_lshlrev_b32 v80, 14, v80')
    p('v_and_b32 v81, 15, v1'); p('v_lshlrev_b32 v81, 4, v81'); p('v_add_u32 v80, v80, v81')
    p('s_lshl_b32 s%d, s%d, 8' % (S_T0, h)); p('v_add_u32 v14, s%d, v80' % S_T0)
    p('v_add_u32 v0, %d, v14' % (8 * BLK))
    p('v_mov_b32 v82, 0x7ff00000'); p('v_cmp_gt_u32 vcc, 32, v1'); p('v_cndmask_b32 v0, v82, v0, vcc')
    p('s_mov_b32 s%d, 0' % S_STEP)
    stamp(p, 3, st)
    parity_wait2(p)
    ACC1 = 16; ACC2 = 80; VFR = 40
    stamp(p, 1, st)
    pf_init(p); p('s_mov_b32 s%d, %d' % (S_DLY, DLY_INIT['B'])); p('s_mov_b32 s%d, 0' % S_RSUM); p('s_mov_b32 s%d, 1' % S_RND); rnd_write(p, 16384, 40, 41)
    loop = p.newlabel('LBloop'); core.loop_align(p); p.label(loop)
    lg.reset()
    pf(p, 0)
    for r in range(ACC1, ACC1 + 12): p('v_mov_b32 v%d, 0' % r)
    wst_load(p, 0, 15, lg); wst_load(p, 1, 15, lg)
    offsets2(p, 0, ('mem', 'z')); mem_lds_addr(p)
    p('s_waitcnt lgkmcnt(0)'); lg.reset()
    p('s_barrier')
    if not CLASSIC['mem']: dly_update(p, 16384, 40)
    def z0(lo, hi):
        for r in range(lo, hi): p('v_mov_b32 v%d, 0' % r)
    if CLASSIC['mem']:
        z0(ACC2, ACC2 + 40); hooks = {}
    else:
        def h4(): p('s_waitcnt vmcnt(0)'); z0(ACC2, ACC2 + 8)
        hooks = {4: h4, 5: lambda: z0(ACC2 + 8, ACC2 + 16), 6: lambda: z0(ACC2 + 16, ACC2 + 24), 7: lambda: z0(ACC2 + 24, ACC2 + 32)}
    def tail_order(ringreg):
        lg.wait(('m', 8))
        seq = [(8, 0), (8, 1), (9, 0), (9, 1), (8, 2), (9, 2)]
        for i, (tau, x) in enumerate(seq):
            if i == 2: lg.wait(('m', 9))
            smf(p, ACC1 + 4 * x, ringreg(tau), tau * 3 + x, lg, 15)
            if i >= 4 and not CLASSIC['mem']: z0(ACC2 + 32 + 4 * (i - 4), ACC2 + 36 + 4 * (i - 4))
        for x, addr in enumerate((11, 12, 29)):
            a = ACC1 + 4 * x
            p('v_add_f32 v%d, v%d, v%d' % (a, a, a + 1)); p('v_add_f32 v%d, v%d, v%d' % (a + 2, a + 2, a + 3))
            p('v_cvt_pk_bf16_f32 v%d, v%d, v%d' % (a, a, a + 2))
            p('v_mov_b32_dpp v%d, v%d quad_perm:[2,3,0,1] row_mask:0xf bank_mask:0xf' % (a + 1, a))
            p('v_perm_b32 v%d, v%d, v%d, v28' % (a, a + 1, a))
            p('ds_write_b32 v%d, v%d' % (addr, a)); lg.issue('vx')
    gather_and_project(p, lg, 3, ACC1, 15, 'mem', hooks, tail_order)
    pf(p, 2)
    if POLL2['mem']: p('s_waitcnt vmcnt(0)')
    lg.wait('vx')
    p('s_barrier')
    pf(p, 3)
    for t in range(3):
        for z in range(2):
            p('ds_read_b64_tr_b16 %s, v13 offset:%d' % (vr(VFR + 4 * t + 2 * z, 2), t * 1024 + z * 512)); lg.issue(('vf', t))
    def red(cc, dst):
        a = ACC2 + 4 * cc
        return ['v_add_f32 v%d, v%d, v%d' % (a, a, a + 1), 'v_add_f32 v%d, v%d, v%d' % (a + 2, a + 2, a + 3), 'v_cvt_pk_bf16_f32 v%d, v%d, v%d' % (dst, a, a + 2)]
    def fin(q, voff, soff_add):
        L = ['v_permlane32_swap_b32 v%d, v%d' % (q, q + 2), 'v_permlane32_swap_b32 v%d, v%d' % (q + 1, q + 3)]
        if soff_add: L += ['s_add_u32 s%d, s%d, %d' % (S_T0, S_ZO, soff_add)]
        L += ['v_permlane16_swap_b32 v%d, v%d' % (q, q + 1), 'v_permlane16_swap_b32 v%d, v%d' % (q + 2, q + 3),
              'buffer_store_dwordx4 %s, v%d, s[%d:%d], s%d offen sc1' % (vr(q, 4), voff, S_WS, S_WS + 3, S_T0 if soff_add else S_ZO)]
        return L
    fill = []
    for pr in range(5):
        for t in range(3):
            for cc in (2 * pr, 2 * pr + 1):
                if pr == 0 and cc == 0: lg.wait(('vf', t))
                smf(p, ACC2 + 4 * cc, VFR + 4 * t, 30 + cc * 3 + t, lg, 15)
                if t == 1 and cc == 2 * pr and pr > 0:
                    a0 = 2 * (pr - 1); q = 16 + 4 * (a0 // 4)
                    fill += red(a0, q + (a0 % 4)) + red(a0 + 1, q + (a0 % 4) + 1)
                    if a0 % 4 == 2: fill += fin(q, 14, (a0 // 4) * 4 * BLK)
                for _ in range(2):
                    if fill: p(fill.pop(0))
    last = red(8, 24) + red(9, 25) + ['v_mov_b32 v26, v24', 'v_mov_b32 v27, v25'] + fin(24, 0, 0)
    for ins in fill + last: p(ins)
    pf(p, 4)
    pf_acc(p)
    trace(p, 2, trace_on)
    rnd_write(p, 16384, 40, 41)
    p('s_add_u32 s%d, s%d, 1' % (S_STEP, S_STEP)); p('s_cmp_lt_u32 s%d, s%d' % (S_STEP, S_NST)); p('s_cbranch_scc1 %s' % loop)

R_RED = 0; R_RED2 = 4096
def gen_R2(p, trace_on=False, st=False):
    global CUR_ROLE
    CUR_ROLE = 'R'
    c = S_IDX
    srd(p, S_W1, KA['x'], 2048 * 1280)
    common_lane_setup(p)
    p('s_waitcnt lgkmcnt(0)')
    p('v_and_b32 v3, 1, v1'); p('v_cmp_eq_u32 vcc, 0, v3'); p('v_mov_b32 v3, 0xeeeeeeee'); p('v_mov_b32 v7, 0x44444444'); p('v_cndmask_b32 v3, v3, v7, vcc')
    p('s_lshr_b32 s%d, s%d, 1' % (S_T1, S_WAVE)); p('s_lshl_b32 s%d, s%d, 14' % (S_T1, S_T1)); p('s_and_b32 s%d, s%d, 1' % (S_T0, S_WAVE)); p('s_lshl_b32 s%d, s%d, 12' % (S_T0, S_T0))
    p('s_add_u32 s%d, s%d, s%d' % (S_T0, S_T0, S_T1)); p('v_add_u32 v4, s%d, v2' % S_T0)
    p('v_lshrrev_b32 v8, 4, v1'); p('v_lshlrev_b32 v8, 8, v8'); p('v_and_b32 v9, 15, v1'); p('v_lshlrev_b32 v9, 3, v9'); p('v_add_u32 v8, v8, v9')
    p('s_lshl_b32 s%d, s%d, 10' % (S_T0, S_WAVE)); p('s_add_u32 s%d, s%d, 32768' % (S_T0, S_T0)); p('v_add_u32 v5, s%d, v8' % S_T0)
    p('s_lshl_b32 s%d, s%d, 14' % (S_T0, c)); p('s_lshl_b32 s%d, s%d, 11' % (S_T1, S_WAVE)); p('s_add_u32 s%d, s%d, s%d' % (S_T0, S_T0, S_T1)); p('v_add_u32 v6, s%d, v2' % S_T0)
    p('s_lshl_b32 s%d, s%d, 15' % (S_T0, c)); p('s_lshl_b32 s%d, s%d, 13' % (S_T1, S_WAVE)); p('s_add_u32 s%d, s%d, s%d' % (S_T0, S_T0, S_T1)); p('v_add_u32 v10, s%d, v2' % S_T0)
    p('v_lshrrev_b32 v8, 4, v1'); p('v_lshlrev_b32 v8, 7, v8')
    p('v_bfe_u32 v9, v1, 1, 1'); p('v_lshlrev_b32 v9, 5, v9'); p('v_add_u32 v8, v8, v9')
    p('v_bfe_u32 v9, v1, 2, 2'); p('v_lshlrev_b32 v9, 3, v9'); p('v_add_u32 v8, v8, v9')
    p('v_and_b32 v9, 1, v1'); p('v_lshlrev_b32 v9, 2, v9'); p('v_add_u32 v8, v8, v9')
    p('s_lshl_b32 s%d, s%d, 9' % (S_T0, S_WAVE)); p('v_add_u32 v11, s%d, v8' % S_T0)
    p('v_lshlrev_b32 v12, 3, v1'); p('v_lshrrev_b32 v13, 2, v1'); p('v_lshlrev_b32 v13, 4, v13'); p('s_lshl_b32 s%d, s%d, 8' % (S_T0, c))
    p('s_add_u32 s%d, s%d, 8192' % (S_T1, S_T0)); p('s_cmp_ge_u32 s%d, 32' % c); p('s_cselect_b32 s%d, s%d, s%d' % (S_T0, S_T1, S_T0))
    p('v_add_u32 v13, s%d, v13' % S_T0); p('v_and_b32 v9, 3, v1'); p('v_cmp_eq_u32 vcc, 0, v9'); p('v_mul_u32_u24 v9, %d, v9' % (MEM_COPY * BLK)); p('v_add_u32 v13, v13, v9')
    if CLASSIC['mem']: p('v_mov_b32 v8, 0x7ff00000'); p('v_cndmask_b32 v13, v8, v13, vcc')
    p('v_lshlrev_b32 v14, 2, v1'); p('s_lshl_b32 s%d, s%d, 8' % (S_T0, c)); p('v_add_u32 v14, s%d, v14' % S_T0)
    p('s_lshl_b32 s%d, s%d, 11' % (S_T0, S_WAVE)); p('s_add_u32 s%d, s%d, %d' % (S_T0, S_T0, R_RED2)); p('v_add_u32 v15, s%d, v2' % S_T0)
    p('v_and_b32 v8, 15, v1'); p('s_and_b32 s%d, s%d, 1' % (S_T0, S_WAVE)); p('s_lshl_b32 s%d, s%d, 4' % (S_T0, S_T0)); p('v_add_u32 v8, s%d, v8' % S_T0); p('v_mul_u32_u24 v8, 1280, v8')
    p('v_lshrrev_b32 v9, 4, v1'); p('v_lshlrev_b32 v9, 3, v9'); p('s_lshl_b32 s%d, s%d, 5' % (S_T0, c)); p('v_add_u32 v9, s%d, v9' % S_T0)
    p('v_add_u32 v28, v8, v9')
    p('s_and_b32 s%d, s%d, 1' % (S_T0, S_WAVE)); p('s_lshl_b32 s%d, s%d, 10' % (S_T0, S_T0)); p('s_add_u32 s%d, s%d, %d' % (S_T0, S_T0, R_RED2)); p('v_add_u32 v29, s%d, v2' % S_T0)
    p('v_mov_b32 v33, v9')
    p('s_lshl_b32 s%d, s%d, %d' % (S_T0, c, FSH)); p('v_mov_b32 v30, s%d' % S_T0); p('v_mov_b32 v8, 0x7ff00000'); p('v_cmp_eq_u32 vcc, 0, v1'); p('v_cndmask_b32 v30, v8, v30, vcc')
    p('v_and_b32 v0, 31, v1'); p('v_lshlrev_b32 v0, %d, v0' % FSH)
    p('v_lshlrev_b32 v31, %d, v1' % FSH)
    p('s_mov_b32 s%d, 0' % S_MASK); p('s_mov_b32 s%d, -1' % (S_MASK + 1))
    p('s_mov_b32 s%d, 0' % S_STEP); p('s_mov_b32 s%d, %d' % (S_VOO, OFF_VO))
    ZB = 64; ACC = 16; SENT = 92; PF = 160; PS = 128
    def VOa(k, j, n=4): return ar(40 * k + 4 * j, n)
    def Za(k, a): return ar(40 * k + 32 + 4 * a, 4)
    def vo_load(k):
        for j in range(8):
            if j == 4: p('s_add_u32 s%d, s%d, 4096' % (S_T0, S_VOO))
            p('buffer_load_dwordx4 %s, v10, s[%d:%d], s%d offen offset:%d sc1' % (VOa(k, j), S_WS, S_WS + 3, S_VOO if j < 4 else S_T0, (j % 4) * 1024))
    S_SG = S_T6
    def seg_issue(wait):
        if wait: p('s_add_u32 s%d, s%d, 1' % (S_T3, S_SG)); wait_flags(p, 31, F_P, S_T3, 7, 1)
        p('s_mul_i32 s%d, s%d, 81920' % (S_T4, S_SG)); p('s_add_u32 s%d, s%d, %d' % (S_T4, S_T4, OFF_PS))
        for tau in range(2):
            p('s_lshl_b32 s%d, s%d, 13' % (S_T0, S_WAVE)); p('s_add_u32 s%d, s%d, s%d' % (S_T0, S_T0, S_T4)); p('s_add_u32 s%d, s%d, %d' % (S_T0, S_T0, tau * 32768))
            for j in range(8):
                if j == 4: p('s_add_u32 s%d, s%d, 4096' % (S_T0, S_T0))
                p('buffer_load_dwordx4 %s, v2, s[%d:%d], s%d offen offset:%d sc1' % (ar(PF + 40 * tau + 4 * j, 4), S_WS, S_WS + 3, S_T0, (j % 4) * 1024))
            p('s_lshl_b32 s%d, s%d, 11' % (S_T0, S_WAVE)); p('s_add_u32 s%d, s%d, s%d' % (S_T0, S_T0, S_T4)); p('s_add_u32 s%d, s%d, %d' % (S_T0, S_T0, 65536 + tau * 8192))
            for a in range(2):
                p('buffer_load_dwordx4 %s, v2, s[%d:%d], s%d offen offset:%d sc1' % (ar(PF + 40 * tau + 32 + 4 * a, 4), S_WS, S_WS + 3, S_T0, a * 1024))
        p('s_mul_i32 s%d, s%d, %d' % (S_T5, S_SG, 32 * 1280))
        p('buffer_load_dwordx2 v[100:101], v28, s[%d:%d], s%d offen' % (S_W1, S_W1 + 3, S_T5))
    def seg_compute(k, after):
        for tau in range(2):
            if after is not None: p('s_waitcnt vmcnt(%d)' % ((11 if tau == 0 else 1) + after))
            a = 104 + 4 * tau
            for j in range(8):
                p('v_mfma_f32_16x16x32_bf16 %s, %s, %s, %s' % (vr(a, 4), VOa(k, j), ar(PF + 40 * tau + 4 * j, 4), '0' if j == 0 else vr(a, 4)))
            for aa in range(2):
                p('v_mfma_f32_16x16x32_bf16 %s, %s, %s, %s' % (vr(a, 4), Za(k, aa), ar(PF + 40 * tau + 32 + 4 * aa, 4), vr(a, 4)))
        p('ds_write_b128 v15, v[104:107]'); p('ds_write_b128 v15, v[108:111] offset:1024')
        p('s_waitcnt lgkmcnt(0)'); p('s_barrier')
        l = p.newlabel('LRs'); p('s_cmp_ge_u32 s%d, 2' % S_WAVE); p('s_cbranch_scc1 %s' % l)
        for w in range(4): p('ds_read_b128 %s, v29 offset:%d' % (vr(104 + 4 * w, 4), w * 2048))
        p('s_waitcnt vmcnt(%d) lgkmcnt(0)' % after if after is not None else 's_waitcnt lgkmcnt(0)')
        for r in range(4):
            p('v_add_f32 v%d, v%d, v%d' % (104 + r, 104 + r, 108 + r)); p('v_add_f32 v%d, v%d, v%d' % (112 + r, 112 + r, 116 + r)); p('v_add_f32 v%d, v%d, v%d' % (104 + r, 104 + r, 112 + r))
        p('v_lshlrev_b32 v108, 16, v100'); p('v_and_b32 v109, 0xffff0000, v100'); p('v_lshlrev_b32 v110, 16, v101'); p('v_and_b32 v111, 0xffff0000, v101')
        for r in range(4): p('v_fmac_f32 v%d, v%d, v%d' % (108 + r, 24 + r, 104 + r))
        p('v_cvt_pk_bf16_f32 v100, v108, v109'); p('v_cvt_pk_bf16_f32 v101, v110, v111')
        p('s_mul_i32 s%d, s%d, %d' % (S_T5, S_SG, 32 * 1280)); p('s_add_u32 s%d, s%d, %d' % (S_T5, S_T5, OFF_X1))
        p('buffer_store_dwordx2 v[100:101], v28, s[%d:%d], s%d offen sc1' % (S_WS, S_WS + 3, S_T5))
        p.label(l)
    def x1_flag(val_s):
        p('v_mov_b32 v102, s%d' % val_s); p('s_mov_b32 s%d, %d' % (S_T0, F_X1))
        p('buffer_store_dword v102, v30, s[%d:%d], s%d offen sc1' % (S_WS, S_WS + 3, S_T0))
    if not core.FUSED: parity_probe2(p)
    parity_wait2(p)
    p('s_mov_b32 s%d, %d' % (S_T0, OFF_MOD + 2 * 1280))
    p('buffer_load_dwordx2 v[34:35], v33, s[%d:%d], s%d offen sc1' % (S_WS, S_WS + 3, S_T0))
    p('s_waitcnt vmcnt(0)')
    p('v_lshlrev_b32 v24, 16, v34'); p('v_and_b32 v25, 0xffff0000, v34'); p('v_lshlrev_b32 v26, 16, v35'); p('v_and_b32 v27, 0xffff0000, v35')
    p('s_mov_b32 s%d, 1' % S_T3); wait_flags(p, 0, F_VO, S_T3, 7)
    vo_load(0)
    stamp(p, 1, st)
    pf_init(p); p('s_mov_b32 s%d, %d' % (S_DLY, DLY_INIT['R'])); p('s_mov_b32 s%d, 0' % S_RSUM); p('s_mov_b32 s%d, 1' % S_RND); rnd_write(p, 16384, 40, 41)
    for r in range(SENT, SENT + 4): p('v_mov_b32 v%d, -1' % r)
    p('v_mov_b32 v99, 0'); p('v_mov_b32 v103, 0')
    def flags_sample():
        p('s_mov_b32 s%d, %d' % (S_T0, F_VO))
        p('buffer_load_dword v103, v0, s[%d:%d], s%d offen sc1' % (S_WS, S_WS + 3, S_T0))
    def flags_check(vo_add):
        lok = p.newlabel('LRok')
        p('s_add_u32 s%d, s%d, %d' % (S_T3, S_STEP, vo_add)); p('s_min_u32 s%d, s%d, 64' % (S_T3, S_T3))
        p('v_cmp_gt_u32 vcc, s%d, v103' % S_T3); p('s_cbranch_vccz %s' % lok)
        wait_flags(p, 0, F_VO, S_T3, 7)
        p.label(lok)
    loop = p.newlabel('LRloop'); core.loop_align(p); p.label(loop)
    for k in range(4):
        pf(p, 0)
        for r in range(ACC, ACC + 4): p('v_mov_b32 v%d, 0' % r)
        offsets2(p, 1)
        lns0 = p.newlabel('LRn0'); p('s_cmp_lt_u32 s%d, 1' % S_STEP); p('s_cbranch_scc1 %s' % lns0)
        p('s_sub_u32 s%d, s%d, 1' % (S_SG, S_STEP))
        lfp = p.newlabel('LRfp')
        p('s_waitcnt vmcnt(10)')
        p('v_cmp_gt_u32 vcc, s%d, v99' % S_STEP); p('s_cbranch_vccz %s' % lfp)
        p('s_mov_b32 s%d, s%d' % (S_T3, S_STEP)); wait_flags(p, 31, F_P, S_T3, 7, 1)
        p.label(lfp)
        seg_issue(False)
        p.label(lns0)
        if k == 3: p('s_cmp_eq_u32 s%d, 63' % S_STEP); p('s_cbranch_scc1 LR_last')
        if not CLASSIC['p']: p('s_waitcnt lgkmcnt(0)'); p('s_barrier'); dly_update(p, 16384, 40)
        def zloads():
            p('buffer_load_dwordx4 %s, v6, s[%d:%d], s%d offen sc1' % (vr(ZB, 4), S_WS, S_WS + 3, S_ZO))
            p('buffer_load_dwordx4 %s, v6, s[%d:%d], s%d offen offset:1024 sc1' % (vr(ZB + 4, 4), S_WS, S_WS + 3, S_ZO))
        def issue(st_, cp):
            if cp: p('s_add_u32 s%d, s%d, %d' % (S_T2, S_PO, cp * P_COPY * BLK))
            so = S_T2 if cp else S_PO; b = PS + 20 * st_
            for z in range(4): p('buffer_load_dwordx4 %s, v4, s[%d:%d], s%d offen offset:%d sc1' % (vr(b + 4 * z, 4), S_WS, S_WS + 3, so, z * 1024))
            for hp in range(2): p('buffer_load_dwordx2 %s, v5, s[%d:%d], s%d offen offset:%d sc1' % (vr(b + 16 + 2 * hp, 2), S_WS, S_WS + 3, so, hp * 128))
        def zcheck():
            ok = p.newlabel('Lzok'); top = p.newlabel('Lzt')
            check_regs(p, range(ZB, ZB + 8), 7, [ZB + 3, ZB + 7]); p('s_cbranch_vccz %s' % ok)
            if POLL2['z']: zloads()
            p.label(top)
            zloads(); p('s_waitcnt vmcnt(%d)' % (2 if POLL2['z'] else 0)); check_regs(p, range(ZB, ZB + 8), 7, None if POLL2['z'] else [ZB + 3, ZB + 7]); p('s_cbranch_vccz %s' % ok)
            if CSLEEP['z']: p('s_sleep %d' % CSLEEP['z'])
            budget(p, ok, top)
            p.label(ok)
        def variant(st_):
            pf(p, 2)
            b = PS + 20 * st_
            p('v_smfmac_f32_16x16x64_bf16 %s, %s, %s, v3' % (vr(ACC, 4), vr(b + 16, 4), vr(ZB, 8)))
            for z in range(4): p('v_smfmac_f32_16x16x64_bf16 %s, %s, %s, v3' % (vr(ACC, 4), vr(b + 4 * z, 4), VOa(k, 2 * z, 8)))
        pf(p, 1)
        multi_poll(p, issue, 6, lambda st_: range(PS + 20 * st_, PS + 20 * st_ + 20), 7, 'p', variant, first_hook=zcheck, pre_issue=zloads,
                   quads=lambda st_: [PS + 20 * st_ + 4 * z + 3 for z in range(4)] + [PS + 20 * st_ + 17, PS + 20 * st_ + 19])
        trace(p, 0, trace_on)
        flags_sample()
        p('v_add_f32 v%d, v%d, v%d' % (ACC, ACC, ACC + 1)); p('v_add_f32 v%d, v%d, v%d' % (ACC + 2, ACC + 2, ACC + 3))
        p('ds_write2_b32 v11, v%d, v%d offset0:0 offset1:16' % (ACC, ACC + 2))
        p('s_waitcnt lgkmcnt(0)')
        p('s_barrier')
        pf(p, 3)
        l = p.newlabel('LRw'); p('s_cmp_lg_u32 s%d, 0' % S_WAVE); p('s_cbranch_scc1 %s' % l)
        for w in range(4): p('ds_read_b64 %s, v12 offset:%d' % (vr(20 + 2 * w, 2) if w < 2 else vr(32 + 2 * (w - 2), 2), w * 512))
        p('s_waitcnt lgkmcnt(0)')
        p('v_add_f32 v20, v20, v22'); p('v_add_f32 v21, v21, v23'); p('v_add_f32 v32, v32, v34'); p('v_add_f32 v33, v33, v35')
        p('v_add_f32 v20, v20, v32'); p('v_add_f32 v21, v21, v33')
        p('v_cvt_pk_bf16_f32 v32, v20, v21')
        for kk in range(4): p('v_mov_b32_dpp v%d, v32 quad_perm:[%d,%d,%d,%d] row_mask:0xf bank_mask:0xf' % (20 + kk, kk, kk, kk, kk))
        p('buffer_store_dwordx4 v[20:23], v13, s[%d:%d], s%d offen sc1' % (S_WS, S_WS + 3, S_MEMO))
        pf(p, 4)
        pf_acc(p)
        trace(p, 2, trace_on)
        if core.HIST:
            p('s_mul_i32 s%d, s%d, 10240' % (S_T0, S_STEP)); p('s_add_u32 s%d, s%d, %d' % (S_T0, S_T0, OFF_HIST + 10240))
            p('buffer_store_dword v32, v14, s[%d:%d], s%d offen' % (S_WS, S_WS + 3, S_T0))
        p.label(l)
        p('s_barrier')
        for r in range(8): p('v_accvgpr_write_b32 a%d, v%d' % (40 * k + 32 + r, ZB + r))
        lq0 = p.newlabel('LRv'); lq1 = p.newlabel('LRv1')
        p('s_cmp_lg_u32 s%d, 0' % S_WAVE); p('s_cbranch_scc1 %s' % lq0)
        p('s_waitcnt vmcnt(%d)' % (2 if core.HIST else 1)); p('s_branch %s' % lq1)
        p.label(lq0); p('s_waitcnt vmcnt(0)'); p.label(lq1)
        flags_check(2)
        p('s_mov_b32 s%d, %d' % (S_T0, F_P))
        p('buffer_load_dword v99, v31, s[%d:%d], s%d offen sc1' % (S_WS, S_WS + 3, S_T0))
        l3 = p.newlabel('LRq'); p('s_cmp_lg_u32 s%d, 1' % S_WAVE); p('s_cbranch_scc1 %s' % l3)
        p('s_and_b32 s%d, s%d, %d' % (S_T0, S_STEP, MEM_RING - 1)); p('s_mul_i32 s%d, s%d, %d' % (S_T0, S_T0, MEM_SLOT * BLK)); p('s_add_u32 s%d, s%d, s%d' % (S_T0, S_T0, S_COMM))
        p('buffer_store_dwordx4 %s, v13, s[%d:%d], s%d offen sc1' % (vr(SENT, 4), S_WS, S_WS + 3, S_T0))
        p.label(l3)
        l4 = p.newlabel('LRx'); p('s_cmp_lg_u32 s%d, 2' % S_WAVE); p('s_cbranch_scc1 %s' % l4)
        p('s_cmp_lt_u32 s%d, 2' % S_STEP); p('s_cbranch_scc1 %s' % l4)
        p('s_sub_u32 s%d, s%d, 1' % (S_T1, S_STEP)); x1_flag(S_T1)
        p.label(l4)
        p('buffer_store_dwordx4 %s, v6, s[%d:%d], s%d offen sc1' % (vr(SENT, 4), S_WS, S_WS + 3, S_ZO))
        p('buffer_store_dwordx4 %s, v6, s[%d:%d], s%d offen offset:1024 sc1' % (vr(SENT, 4), S_WS, S_WS + 3, S_ZO))
        p('s_add_u32 s%d, s%d, %d' % (S_VOO, S_VOO, 40 * 32 * 1024))
        vo_load((k + 1) & 3)
        rnd_write(p, 16384, 40, 41)
        lns = p.newlabel('LRns')
        p('s_cmp_lt_u32 s%d, 1' % S_STEP); p('s_cbranch_scc1 %s' % lns)
        seg_compute((k + 3) & 3, None)
        p.label(lns)
        p('s_add_u32 s%d, s%d, 1' % (S_STEP, S_STEP))
    p('s_branch %s' % loop)
    p.label('LR_last')
    p('s_waitcnt vmcnt(0)'); p('s_barrier')
    l = p.newlabel('LRf1'); p('s_cmp_lg_u32 s%d, 2' % S_WAVE); p('s_cbranch_scc1 %s' % l)
    p('s_mov_b32 s%d, 62' % S_T1); x1_flag(S_T1)
    p.label(l)
    seg_compute(2, None)
    top = p.newlabel('Lzl'); ok = p.newlabel('Lzlok')
    p.label(top)
    p('buffer_load_dwordx4 %s, v6, s[%d:%d], s%d offen sc1' % (vr(ZB, 4), S_WS, S_WS + 3, S_ZO))
    p('buffer_load_dwordx4 %s, v6, s[%d:%d], s%d offen offset:1024 sc1' % (vr(ZB + 4, 4), S_WS, S_WS + 3, S_ZO))
    p('s_waitcnt vmcnt(0)'); check_regs(p, range(ZB, ZB + 8), 7, [ZB + 3, ZB + 7]); p('s_cbranch_vccz %s' % ok)
    budget(p, ok, top)
    p.label(ok)
    for r in range(8): p('v_accvgpr_write_b32 a%d, v%d' % (40 * 3 + 32 + r, ZB + r))
    p('s_barrier')
    l = p.newlabel('LRf2'); p('s_cmp_lg_u32 s%d, 2' % S_WAVE); p('s_cbranch_scc1 %s' % l)
    p('s_mov_b32 s%d, 63' % S_T1); x1_flag(S_T1)
    p.label(l)
    p('s_mov_b32 s%d, 63' % S_SG); seg_issue(True); seg_compute(3, 0)
    p('s_waitcnt vmcnt(0)'); p('s_barrier')
    l = p.newlabel('LRf'); p('s_cmp_lg_u32 s%d, 2' % S_WAVE); p('s_cbranch_scc1 %s' % l)
    p('s_mov_b32 s%d, 64' % S_T1); x1_flag(S_T1)
    p.label(l)
```

```python
from core import *
import core, core2, pro
from pro import f2u, OOB
S_WK = 45
DBG_PAR = 196; DBG_MODA = 128; DBG_MOD = 132; DBG_PRO = 192

def dbg_inc(p, off):
    dbg_srd(p, 52)
    p('v_mov_b32 v4, 0x7ff00000'); p('v_mov_b32 v5, %d' % off); p('v_cmp_eq_u32 vcc, 0, v0'); p('v_cndmask_b32 v4, v4, v5, vcc')
    p('v_mov_b32 v6, 1')
    p('buffer_atomic_add v6, v4, s[52:55], 0 offen sc1')

def dbg_wait(p, off, need, w0_only=True, nonzero=False, vt=16, sleep=2):
    dbg_srd(p, 52)
    l = p.newlabel('Ldw'); top = p.newlabel('Ldwt'); done = p.newlabel('Ldwd')
    if w0_only: p('s_cmp_lg_u32 s%d, 0' % S_WAVE); p('s_cbranch_scc1 %s' % l)
    p('v_mov_b32 v%d, %d' % (vt, off))
    p.label(top)
    p('buffer_load_dword v%d, v%d, s[52:55], 0 offen sc1' % (vt + 1, vt)); p('s_waitcnt vmcnt(0)')
    p('v_readfirstlane_b32 s50, v%d' % (vt + 1))
    p('s_cmp_ge_u32 s50, %d' % need); p('s_cbranch_scc1 %s' % done)
    p('s_sleep %d' % sleep)
    p('s_cmp_eq_u32 s%d, 0' % S_SPIN); p('s_cbranch_scc1 %s' % done)
    p('s_sub_u32 s%d, s%d, 1' % (S_SPIN, S_SPIN)); p('s_branch %s' % top)
    p.label(done)
    p.label(l)
    if w0_only: p('s_barrier')

def probe4(p):
    l = p.newlabel('Lprs'); p('s_cmp_lg_u32 s%d, 0' % S_WAVE); p('s_cbranch_scc1 %s' % l)
    p('v_mov_b32 v36, 0'); p('v_mov_b32 v37, -1'); p('s_mov_b32 s54, 0')
    for k in range(4): p('s_mov_b32 s%d, -1' % (56 + k))
    top = p.newlabel('Lprb'); p.label(top)
    p('s_and_b32 s55, s54, 2'); p('s_lshl_b32 s%d, s55, 20' % S_T0); p('s_and_b32 s55, s54, 1'); p('s_lshl_b32 s55, s55, 13'); p('s_add_u32 s%d, s%d, s55' % (S_T0, S_T0))
    p('s_lshr_b32 s55, s54, 2'); p('s_lshl_b32 s55, s55, 14'); p('s_add_u32 s%d, s%d, s55' % (S_T0, S_T0))
    p('s_add_u32 s%d, s%d, s%d' % (S_T0, S_T0, S_COMM)); p('s_add_u32 s%d, s%d, %d' % (S_T0, S_T0, BLK_PROBE * BLK))
    p('buffer_store_dword v37, v36, s[%d:%d], s%d offen sc1' % (S_WS, S_WS + 3, S_T0))
    p('s_waitcnt vmcnt(0)')
    p('s_memtime s[50:51]'); p('s_waitcnt lgkmcnt(0)')
    p('buffer_load_dword v38, v36, s[%d:%d], s%d offen sc1' % (S_WS, S_WS + 3, S_T0))
    p('s_waitcnt vmcnt(0)')
    p('s_memtime s[52:53]'); p('s_waitcnt lgkmcnt(0)')
    p('s_sub_u32 s50, s52, s50')
    for k in range(4):
        p('s_and_b32 s55, s54, 3'); p('s_cmp_eq_u32 s55, %d' % k); p('s_cselect_b32 s55, s50, -1'); p('s_min_u32 s%d, s%d, s55' % (56 + k, 56 + k))
    p('s_add_u32 s54, s54, 1'); p('s_cmp_lt_u32 s54, %d' % (4 * PROBE_N)); p('s_cbranch_scc1 %s' % top)
    p('s_cmp_lt_u32 s57, s56'); p('s_cselect_b32 s50, 5, 4'); p('s_cmp_lt_u32 s59, s58'); p('s_cselect_b32 s51, 2, 0'); p('s_add_u32 s50, s50, s51')
    if core.PROF or DEBUG_PROBE:
        for k in range(4): p('v_mov_b32 v%d, s%d' % (40 + k, 56 + k))
    p('v_mov_b32 v37, s50')
    dbg_srd(p, 52)
    p('v_mov_b32 v38, 0x7ff00000'); p('v_mov_b32 v36, %d' % DBG_PAR); p('v_cmp_eq_u32 vcc, 0, v0'); p('v_cndmask_b32 v36, v38, v36, vcc')
    p('buffer_store_dword v37, v36, s[52:55], 0 offen sc1')
    if core.PROF or DEBUG_PROBE:
        p('v_mov_b32 v36, 96'); p('v_cndmask_b32 v36, v38, v36, vcc')
        p('buffer_store_dwordx4 v[40:43], v36, s[52:55], 0 offen sc1')
    p.label(l)

DEBUG_PROBE = False
STAMP = False
PROBE_N = 3
def gen_prologue(p):
    lskip = 'L_pro_skip'
    p('s_cmp_lt_u32 s2, 64'); p('s_cbranch_scc1 %s' % lskip)
    l1 = p.newlabel('Lwk');
    p('s_cmp_lt_u32 s2, 124'); p('s_cbranch_scc0 L_wk_a'); p('s_sub_u32 s%d, s2, 64' % S_WK); p('s_branch L_wk_ok')
    p.label('L_wk_a')
    p('s_cmp_lt_u32 s2, 128'); p('s_cbranch_scc0 L_wk_b'); p('s_sub_u32 s%d, s2, 4' % S_WK); p('s_branch L_wk_ok')
    p.label('L_wk_b')
    p('s_cmp_lt_u32 s2, 192'); p('s_cbranch_scc1 %s' % lskip)
    p('s_cmp_lt_u32 s2, 252'); p('s_cbranch_scc0 L_wk_c'); p('s_sub_u32 s%d, s2, 132' % S_WK); p('s_branch L_wk_ok')
    p.label('L_wk_c')
    p('s_sub_u32 s%d, s2, 128' % S_WK)
    p.label('L_wk_ok')
    wk = S_WK
    srd(p, 8, KA['wmod'], 640 * 7680); srd(p, 12, KA['c'], 1280)
    p('v_lshrrev_b32 v3, 6, v0'); p('v_and_b32 v1, 63, v0'); p('v_readfirstlane_b32 s%d, v3' % S_WAVE); p('s_mov_b32 s%d, %d' % (S_SPIN, SPIN_BUDGET))
    p('s_waitcnt lgkmcnt(0)')
    lnomod = p.newlabel('Lnm')
    p('s_cmp_ge_u32 s%d, 120' % wk); p('s_cbranch_scc1 %s' % lnomod)
    p('v_and_b32 v8, 3, v0'); p('v_lshrrev_b32 v9, 2, v0')
    p('v_mul_u32_u24 v10, 7680, v9'); p('v_lshlrev_b32 v11, 4, v8'); p('v_add_u32 v10, v10, v11')
    p('s_lshl_b32 s20, s%d, 6' % wk); p('v_add_u32 v10, s20, v10'); p('v_lshlrev_b32 v11, 1, v9')
    for i in range(10):
        p('s_mov_b32 s21, %d' % (i * 64 * 7680))
        p('buffer_load_dwordx4 %s, v10, s[8:11], s21 offen' % vr(40 + 4 * i, 4))
        p('buffer_load_ushort v%d, v11, s[12:15], 0 offen offset:%d' % (24 + i, i * 128))
    p.label(lnomod)
    srd(p, 56, KA['x'], 2048 * 1280); p('s_waitcnt lgkmcnt(0)')
    pro.ln_setup(p, 18)
    X0 = 84; D0 = 104; A0 = 144; B0 = 184; T = 224
    p('s_mul_i32 s24, s%d, %d' % (wk, 16 * 1280))
    for k in range(5): p('buffer_load_dwordx4 %s, v18, s[56:59], s24 offen offset:%d' % (vr(X0 + 4 * k, 4), k * 64))
    lmod = p.newlabel('Lmod'); lafter = p.newlabel('Lmodd')
    p('s_cmp_lt_u32 s%d, 120' % wk); p('s_cbranch_scc1 %s' % lmod)
    p('s_cmp_lg_u32 s%d, 120' % wk); p('s_cbranch_scc1 %s' % lafter)
    p('s_waitcnt vmcnt(0)')
    probe4(p)
    p('s_branch %s' % lafter)
    p.label(lmod)
    for r in range(32 + 4, 40): pass
    acc = list(range(228, 236))
    for r in acc: p('v_mov_b32 v%d, 0' % r)
    p('s_waitcnt vmcnt(0)')
    for i in range(10):
        c = 24 + i
        p('v_lshlrev_b32 v%d, 16, v%d' % (c, c))
        p('v_mul_f32 v6, 0xbfb8aa3b, v%d' % c)
        p('v_exp_f32 v6, v6'); p('v_add_f32 v6, 1.0, v6'); p('v_rcp_f32 v6, v6'); p('v_mul_f32 v6, v%d, v6' % c)
        p('v_cvt_pk_bf16_f32 v6, v6, v6'); p('v_and_b32 v6, 0xffff0000, v6')
        for k in range(4):
            w = 40 + 4 * i + k
            p('v_lshlrev_b32 v7, 16, v%d' % w); p('v_fmac_f32 v%d, v6, v7' % acc[2 * k])
            p('v_and_b32 v7, 0xffff0000, v%d' % w); p('v_fmac_f32 v%d, v6, v7' % acc[2 * k + 1])
    p('v_lshlrev_b32 v16, 7, v9'); p('v_lshlrev_b32 v17, 5, v8'); p('v_add_u32 v16, v16, v17')
    p('ds_write_b128 v16, v[228:231]'); p('ds_write_b128 v16, v[232:235] offset:16')
    p('s_waitcnt lgkmcnt(0)'); p('s_barrier')
    p('v_and_b32 v8, 31, v0'); p('v_lshrrev_b32 v9, 5, v0')
    p('v_lshlrev_b32 v10, 10, v9'); p('v_lshlrev_b32 v11, 2, v8'); p('v_add_u32 v10, v10, v11')
    for k in range(8): p('ds_read_b32 v%d, v10 offset:%d' % (228 + k, k * 128))
    p('s_waitcnt lgkmcnt(0)')
    for k in range(1, 8): p('v_add_f32 v228, v228, v%d' % (228 + k))
    p('s_barrier')
    p('v_lshlrev_b32 v10, 7, v9'); p('v_add_u32 v10, v10, v11'); p('ds_write_b32 v10, v228')
    p('s_waitcnt lgkmcnt(0)'); p('s_barrier')
    for k in range(8): p('ds_read_b32 v%d, v11 offset:%d' % (228 + k, k * 128))
    p('s_waitcnt lgkmcnt(0)')
    for k in range(1, 8): p('v_add_f32 v228, v228, v%d' % (228 + k))
    p('v_cvt_pk_bf16_f32 v228, v228, v228'); p('v_and_b32 v228, 0xffff0000, v228')
    p('s_mul_hi_u32 s21, s%d, %d' % (wk, (1 << 32) // 20 + 1))
    la = p.newlabel('Lna'); lb = p.newlabel('Lad')
    p('s_cmp_eq_u32 s21, 1'); p('s_cbranch_scc1 %s' % lb)
    p('s_cmp_eq_u32 s21, 4'); p('s_cbranch_scc0 %s' % la)
    p.label(lb)
    p('v_add_f32 v228, 1.0, v228'); p('v_cvt_pk_bf16_f32 v228, v228, v228'); p('v_and_b32 v228, 0xffff0000, v228')
    p.label(la)
    p('v_lshrrev_b32 v228, 16, v228')
    lplain = p.newlabel('Lmp'); ldone = p.newlabel('Lmpd')
    p('s_cmp_ge_u32 s%d, 40' % wk); p('s_cbranch_scc1 %s' % lplain)
    p('v_mov_b32_dpp v229, v228 quad_perm:[1,0,3,2] row_mask:0xf bank_mask:0xf')
    p('v_lshlrev_b32 v229, 16, v229'); p('v_or_b32 v229, v228, v229')
    p('v_lshrrev_b32 v5, 1, v0'); p('v_lshlrev_b32 v5, 2, v5')
    p('v_mov_b32 v6, 0x%x' % OOB); p('v_and_b32 v7, 1, v0'); p('v_cmp_eq_u32 vcc, 0, v7'); p('v_cndmask_b32 v5, v6, v5, vcc')
    p('v_cmp_gt_u32 vcc, 32, v0'); p('v_cndmask_b32 v5, v6, v5, vcc')
    p('v_mov_b32 v7, 64'); p('v_mov_b32 v230, s%d' % S_NONCE); p('v_cmp_eq_u32 vcc, 1, v0'); p('v_cndmask_b32 v5, v5, v7, vcc'); p('v_cndmask_b32 v229, v229, v230, vcc')
    p('s_lshl_b32 s22, s%d, 7' % wk); p('s_add_u32 s22, s22, %d' % OFF_MODL)
    p('buffer_store_dword v229, v5, s[%d:%d], s22 offen sc1' % (S_WS, S_WS + 3))
    p('s_branch %s' % ldone)
    p.label(lplain)
    p('s_lshl_b32 s20, s%d, 6' % wk)
    p('v_lshlrev_b32 v5, 1, v0'); p('v_add_u32 v5, s20, v5')
    p('v_mov_b32 v6, 0x%x' % OOB); p('v_cmp_gt_u32 vcc, 32, v0'); p('v_cndmask_b32 v5, v6, v5, vcc')
    p('s_mov_b32 s22, %d' % OFF_MOD)
    p('buffer_store_short v228, v5, s[%d:%d], s22 offen sc1' % (S_WS, S_WS + 3))
    p.label(ldone)
    p.label(lafter)
    def block_task(bs):
        lpk = p.newlabel('Lpk'); ld = p.newlabel('Lpkd')
        p('s_add_u32 s23, s%d, %d' % (bs, 128 - BLK_XEND)); p('s_cmp_lt_u32 s%d, %d' % (bs, BLK_XEND)); p('s_cselect_b32 s23, s%d, s23' % bs)
        p('s_lshl_b32 s23, s23, 14'); p('s_add_u32 s23, s23, s%d' % S_COMM)
        p('s_cmp_lt_u32 s%d, %d' % (bs, MEM_SLOT)); p('s_cbranch_scc1 %s' % lpk)
        p('v_lshlrev_b32 v12, 4, v0')
        for r in range(4, 8): p('v_mov_b32 v%d, -1' % r)
        for j in range(4):
            p('buffer_store_dwordx4 v[4:7], v12, s[%d:%d], s23 offen sc1' % (S_WS, S_WS + 3))
            if j < 3: p('s_add_u32 s23, s23, 4096')
        p('s_branch %s' % ld)
        p.label(lpk)
        srd(p, 16 + 40, KA['mem0'], 10240); p('s_waitcnt lgkmcnt(0)')
        for rep in range(2):
            p('v_add_u32 v13, %d, v3' % (rep * 4))
            p('s_and_b32 s24, s%d, 1' % bs); p('s_lshl_b32 s24, s24, 3'); p('v_add_u32 v14, s24, v13')
            p('v_bfe_u32 v15, v1, 1, 3'); p('v_mul_u32_u24 v15, 1280, v15')
            p('v_lshlrev_b32 v16, 7, v14'); p('v_add_u32 v15, v15, v16')
            p('v_lshrrev_b32 v16, 4, v1'); p('v_lshlrev_b32 v16, 5, v16'); p('v_add_u32 v15, v15, v16')
            p('v_and_b32 v16, 1, v1'); p('v_lshlrev_b32 v16, 2, v16'); p('v_add_u32 v15, v15, v16')
            p('v_mov_b32 v17, 0x%x' % OOB); p('v_cmp_gt_u32 vcc, 10, v14'); p('v_cndmask_b32 v15, v17, v15, vcc')
            for q in range(4): p('buffer_load_dword v%d, v15, s[56:59], 0 offen offset:%d' % (4 + q, q * 8))
            p('v_lshlrev_b32 v12, 10, v13'); p('v_lshlrev_b32 v16, 4, v1'); p('v_add_u32 v12, v12, v16'); p('v_cndmask_b32 v12, v17, v12, vcc')
            p('s_waitcnt vmcnt(0)')
            p('buffer_store_dwordx4 v[4:7], v12, s[%d:%d], s23 offen sc1' % (S_WS, S_WS + 3))
            p('s_add_u32 s24, s23, 8192')
            p('buffer_store_dwordx4 v[4:7], v12, s[%d:%d], s24 offen sc1' % (S_WS, S_WS + 3))
            p('s_waitcnt vmcnt(0)')
        p.label(ld)
    def init_tasks(early):
        if early:
            l1 = p.newlabel('Lb1'); p('s_sub_u32 s25, s%d, 120' % wk); p('s_cmp_ge_u32 s25, %d' % MEM_SLOT); p('s_cbranch_scc1 %s' % l1)
            block_task(25)
            p.label(l1)
            return
        l2 = p.newlabel('Lb2'); p('s_add_u32 s25, s%d, %d' % (wk, MEM_SLOT)); p('s_cmp_ge_u32 s25, %d' % NBLK_INIT); p('s_cbranch_scc1 %s' % l2)
        block_task(25)
        p.label(l2)
        l3 = p.newlabel('Lb3'); p('s_cmp_lt_u32 s%d, 104' % wk); p('s_cbranch_scc1 %s' % l3); p('s_cmp_ge_u32 s%d, 111' % wk); p('s_cbranch_scc1 %s' % l3)
        p('s_sub_u32 s23, s%d, 104' % wk); p('s_lshl_b32 s23, s23, 12'); p('s_add_u32 s23, s23, %d' % OFF_FLAGS)
        p('v_lshlrev_b32 v12, 4, v0')
        for r in range(4, 8): p('v_mov_b32 v%d, 0' % r)
        p('buffer_store_dwordx4 v[4:7], v12, s[%d:%d], s23 offen sc1' % (S_WS, S_WS + 3))
        p.label(l3)
    le = p.newlabel('Lie'); p('s_cmp_lt_u32 s%d, 120' % wk); p('s_cbranch_scc1 %s' % le)
    init_tasks(True)
    p.label(le)
    stamp(p, 3, STAMP)
    def between():
        tmp = 36
        p('s_mul_i32 s%d, s%d, 640' % (S_T0, S_WAVE)); p('v_lshrrev_b32 v21, 4, v1'); p('v_lshlrev_b32 v21, 4, v21'); p('v_add_u32 v21, s%d, v21' % S_T0)
        p('v_min_u32 v22, 9, v1'); p('v_cmp_le_u32 vcc, 5, v22'); p('v_add_u32 v23, 15, v22'); p('v_cndmask_b32 v22, v22, v23, vcc')
        p('v_lshlrev_b32 v22, 7, v22'); p('v_add_u32 v22, s%d, v22' % S_T0); p('v_add_u32 v22, 64, v22')
        top = p.newlabel('Lml'); ok = p.newlabel('Lmlok')
        p('s_mov_b32 s%d, %d' % (S_T1, OFF_MODL))
        p.label(top)
        p('buffer_load_dword v23, v22, s[%d:%d], s%d offen sc1' % (S_WS, S_WS + 3, S_T1))
        for i, row in enumerate((1, 0)):
            p('s_add_u32 s%d, s%d, %d' % (S_T2, S_T1, row * 20 * 128))
            for k in range(5): p('buffer_load_dwordx4 %s, v21, s[%d:%d], s%d offen offset:%d sc1' % (vr(tmp + 20 * i + 4 * k, 4), S_WS, S_WS + 3, S_T2, k * 128))
        p('s_waitcnt vmcnt(0)')
        p('v_cmp_ne_u32 vcc, s%d, v23' % S_NONCE); p('s_cbranch_vccz %s' % ok)
        p('s_sleep 1')
        p('s_cmp_eq_u32 s%d, 0' % S_SPIN); p('s_cbranch_scc1 %s' % ok)
        p('s_sub_u32 s%d, s%d, 1' % (S_SPIN, S_SPIN)); p('s_branch %s' % top)
        p.label(ok)
        stamp(p, 7, STAMP)
        for i, dst in enumerate((A0, B0)):
            for k in range(20):
                p('v_lshlrev_b32 v%d, 16, v%d' % (dst + 2 * k, tmp + 20 * i + k)); p('v_and_b32 v%d, 0xffff0000, v%d' % (dst + 2 * k + 1, tmp + 20 * i + k))
    p('s_waitcnt vmcnt(0)')
    pro.ln_compute(p, X0, D0, A0, B0, 20, 8192, T, between)
    p('s_mul_i32 s24, s%d, 20480' % wk); p('s_mul_i32 s25, s%d, 5120' % S_WAVE); p('s_add_u32 s24, s24, s25'); p('s_add_u32 s24, s24, %d' % OFF_H)
    p('v_lshlrev_b32 v2, 4, v1')
    for k in range(5):
        if k == 4: p('s_add_u32 s24, s24, 4096')
        p('buffer_store_dwordx4 %s, v2, s[%d:%d], s24 offen offset:%d sc1' % (vr(X0 + 4 * k, 4), S_WS, S_WS + 3, (k % 4) * 1024))
    def tag_flag(off):
        p('v_mov_b32 v4, 0x%x' % OOB); p('v_mov_b32 v5, 0'); p('v_cmp_eq_u32 vcc, 0, v0'); p('v_cndmask_b32 v4, v4, v5, vcc')
        p('v_mov_b32 v6, s%d' % S_NONCE); p('s_lshl_b32 s24, s%d, 7' % wk); p('s_add_u32 s24, s24, %d' % off)
        p('buffer_store_dword v6, v4, s[%d:%d], s24 offen sc1' % (S_WS, S_WS + 3))
    p('s_waitcnt vmcnt(0)'); p('s_barrier')
    tag_flag(OFF_FH)
    init_tasks(False)
    p('s_waitcnt vmcnt(0)'); p('s_barrier')
    tag_flag(OFF_FI)
    p('s_barrier')
    p.label(lskip)

def mod_load_sc1(p, vb, A0, B0, rowA, rowB, tmp):
    for i, row in enumerate((rowA, rowB)):
        p('s_mov_b32 s%d, %d' % (S_T0, OFF_MOD + row * 1280))
        for k in range(5): p('buffer_load_dwordx4 %s, v%d, s[%d:%d], s%d offen offset:%d sc1' % (vr(tmp + 20 * i + 4 * k, 4), vb + 1, S_WS, S_WS + 3, S_T0, k * 64))
    p('s_waitcnt vmcnt(0)')
    for i, dst in enumerate((A0, B0)):
        for k in range(20):
            p('v_lshlrev_b32 v%d, 16, v%d' % (dst + 2 * k, tmp + 20 * i + k)); p('v_and_b32 v%d, 0xffff0000, v%d' % (dst + 2 * k + 1, tmp + 20 * i + k))

def wait_ready(p, parity=False, off=None, half=None):
    dbg_srd(p, 52)
    l = p.newlabel('Lwr'); top = p.newlabel('Lwrt'); done = p.newlabel('Lwrd'); again = p.newlabel('Lwra')
    p('s_cmp_lg_u32 s%d, 0' % S_WAVE); p('s_cbranch_scc1 %s' % l)
    p('v_lshrrev_b32 v16, 4, v2'); p('v_lshlrev_b32 v16, 7, v16'); p('v_mov_b32 v17, %d' % DBG_PAR); p('s_mov_b32 s51, %d' % ((off or OFF_FI) + (half or 0) * 8192)); p('s_mov_b32 s50, %d' % ((off or OFF_FI) + 8192))
    p.label(top)
    p('buffer_load_dword v18, v16, s[%d:%d], s51 offen sc1' % (S_WS, S_WS + 3))
    if half is None: p('buffer_load_dword v19, v16, s[%d:%d], s50 offen sc1' % (S_WS, S_WS + 3))
    if parity: p('buffer_load_dword v20, v17, s[52:55], 0 offen sc1')
    p('s_waitcnt vmcnt(0)')
    p('v_cmp_ne_u32 vcc, s%d, v18' % S_NONCE); p('s_cbranch_vccnz %s' % again)
    if half is None: p('v_cmp_ne_u32 vcc, s%d, v19' % S_NONCE); p('s_cbranch_vccnz %s' % again)
    if parity: p('v_cmp_eq_u32 vcc, 0, v20'); p('s_cbranch_vccnz %s' % again)
    p('s_branch %s' % done)
    p.label(again)
    p('s_sleep 2')
    p('s_cmp_eq_u32 s%d, 0' % S_SPIN); p('s_cbranch_scc1 %s' % done)
    p('s_sub_u32 s%d, s%d, 1' % (S_SPIN, S_SPIN)); p('s_branch %s' % top)
    p.label(done)
    if parity: p('v_mov_b32 v16, 0'); p('ds_write_b32 v16, v20 offset:%d' % parity); p('s_waitcnt lgkmcnt(0)')
    p.label(l)
    p('s_barrier')
    if parity:
        p('v_mov_b32 v16, 0'); p('ds_read_b32 v17, v16 offset:%d' % parity); p('s_waitcnt lgkmcnt(0)'); p('v_readfirstlane_b32 s50, v17')
        p('s_barrier')
```

```python
from core import *
import core
from core2 import ready

def flag_store(p, voff, foff_add_s, val_s, tmpv):
    p('v_mov_b32 v%d, s%d' % (tmpv, val_s))
    p('buffer_store_dword v%d, v%d, s[%d:%d], s%d offen sc1' % (tmpv, voff, S_WS, S_WS + 3, foff_add_s))

def one_lane_off(p, dst, tmp, off_s=None, const=0):
    if off_s is not None: p('v_mov_b32 v%d, s%d' % (dst, off_s))
    else: p('v_mov_b32 v%d, %d' % (dst, const))
    p('v_mov_b32 v%d, 0x7ff00000' % tmp); p('v_cmp_eq_u32 vcc, 0, v0'); p('v_cndmask_b32 v%d, v%d, v%d, vcc' % (dst, tmp, dst))

def tr_base(p, dst, rowbytes, rowmul, stg_s, t1, t2):
    p('v_lshrrev_b32 v%d, 4, v1' % t1); p('v_mul_u32_u24 v%d, %d, v%d' % (t1, rowmul, t1))
    p('v_bfe_u32 v%d, v1, 2, 2' % t2); p('v_add_u32 v%d, v%d, v%d' % (t1, t1, t2))
    p('v_mul_u32_u24 v%d, %d, v%d' % (t1, rowbytes, t1)); p('v_and_b32 v%d, 3, v1' % t2); p('v_lshlrev_b32 v%d, 3, v%d' % (t2, t2))
    p('v_add_u32 v%d, v%d, v%d' % (dst, t1, t2)); p('v_add_u32 v%d, s%d, v%d' % (dst, stg_s, dst))

class WStream:
    def __init__(self, p, lg, wres_v, base):
        self.p = p; self.lg = lg; self.v = wres_v; self.base = base
    def load(self, k):
        b = self.base + 8 * (k & 1)
        self.p('ds_read_b128 %s, v%d offset:%d' % (vr(b, 4), self.v, k * 2048)); self.lg.issue(('w', k))
        self.p('ds_read_b128 %s, v%d offset:%d' % (vr(b + 4, 4), self.v, k * 2048 + 1024)); self.lg.issue(('w', k))
    def operand(self, o, half):
        kind, n = UM[o]
        if kind == 'reg': return unit_reg(n, 4 * half, 4)
        self.lg.wait(('w', n))
        return vr(self.base + 8 * (n & 1) + 4 * half, 4)
    def done(self, o, wrap=True):
        kind, n = UM[o]
        if kind == 'lds':
            if n + 2 < 12: self.load(n + 2)
            elif wrap: self.load(n + 2 - 12)

S_SEG = S_STEP
S_HO = 26; S_LB = 27; S_LB1 = 28; S_LB2 = 29; S_OUT = 30; S_FL = 44; S_VAL = 45

def gen_AP(p, st=False):
    lg = Cnt(p, 'lgkmcnt', 15); vm = Cnt(p, 'vmcnt', 63)
    h = S_IDX
    p('s_load_dwordx2 s[%d:%d], s[0:1], %d' % (S_W1, S_W1 + 1, KA['Wq'])); p('s_load_dwordx2 s[%d:%d], s[0:1], %d' % (S_W2, S_W2 + 1, KA['Wk']))
    common_lane_setup(p)
    p('s_waitcnt lgkmcnt(0)')
    p('s_cmp_ge_u32 s%d, 2' % S_WAVE)
    p('s_cselect_b32 s%d, s%d, s%d' % (S_W1, S_W2, S_W1)); p('s_cselect_b32 s%d, s%d, s%d' % (S_W1 + 1, S_W2 + 1, S_W1 + 1))
    p('s_mov_b32 s%d, 0x%x' % (S_W1 + 2, 640 * 12288)); p('s_mov_b32 s%d, 0x00020000' % (S_W1 + 3))
    one_lane_off(p, 8, 80, off_s=None, const=0); p('s_lshl_b32 s%d, s%d, %d' % (S_T0, h, FSH)); p('s_add_u32 s%d, s%d, %d' % (S_FL, S_T0, F_QK))
    p('s_mul_i32 s%d, s%d, 24576' % (S_T0, S_WAVE)); p('s_add_u32 s%d, s%d, 65536' % (S_T0, S_T0)); p('v_add_u32 v15, s%d, v2' % S_T0)
    p('s_lshl_b32 s%d, s%d, 14' % (S_T4, S_WAVE))
    voffs = [80, 81, 82]
    stage_offsets(p, voffs, 6, 12288, 1, 83, 84)
    tr_base(p, 85, 96, 8, S_T4, 83, 84)
    p('s_mul_i32 s%d, s%d, 384' % (S_T5, h)); p('s_and_b32 s%d, s%d, 1' % (S_T0, S_WAVE)); p('s_mul_i32 s%d, s%d, 192' % (S_T0, S_T0)); p('s_add_u32 s%d, s%d, s%d' % (S_T5, S_T5, S_T0))
    jobs = []
    for u in range(20):
        for ch in range(2):
            def soff(dst, u=u, ch=ch): p('s_add_u32 s%d, s%d, %d' % (dst, S_T5, u * 32 * 12288 + ch * 96))
            dests = []
            for xx in range(3):
                x = ch * 3 + xx
                kind, n = UM[(u >> 1) * 6 + x]; half = u & 1
                if kind == 'reg': dests.append((xx * 32, ('reg', unit_reg(n, 4 * half, 2), unit_reg(n, 4 * half + 2, 2))))
                else: dests.append((xx * 32, ('lds', n * 2048 + half * 1024)))
            jobs.append(dict(srd=S_W1, soff=soff, dests=dests))
    load_weights_type1(p, jobs, 85, 3072, 5, voffs, 3, 96, lg, vm, 15, 88, S_T4)
    p('s_barrier')
    stamp(p, 3, st)
    ready(p, True, 0)
    stamp(p, 1, st)
    p('s_mul_i32 s%d, s%d, 24576' % (S_OUT, h)); p('s_lshr_b32 s%d, s%d, 1' % (S_T0, S_WAVE)); p('s_mul_i32 s%d, s%d, 12288' % (S_T0, S_T0)); p('s_add_u32 s%d, s%d, s%d' % (S_OUT, S_OUT, S_T0))
    p('s_and_b32 s%d, s%d, 1' % (S_T0, S_WAVE)); p('s_mul_i32 s%d, s%d, 3072' % (S_T0, S_T0)); p('s_add_u32 s%d, s%d, s%d' % (S_OUT, S_OUT, S_T0)); p('s_add_u32 s%d, s%d, %d' % (S_OUT, S_OUT, OFF_QK))
    p('s_lshr_b32 s%d, s%d, 1' % (S_T0, S_WAVE)); p('s_and_b32 s%d, s%d, 1' % (S_T1, S_WAVE)); p('s_mul_i32 s%d, s%d, 5120' % (S_T1, S_T1))
    p('s_mul_i32 s%d, s%d, 20480' % (S_T2, S_T0)); p('s_add_u32 s%d, s%d, s%d' % (S_T5, S_T2, S_T1)); p('s_add_u32 s%d, s%d, %d' % (S_T5, S_T5, OFF_H))
    p('s_mul_i32 s%d, s%d, 10240' % (S_T2, S_T0)); p('s_add_u32 s%d, s%d, s%d' % (S_T6, S_T2, S_T1))
    def dma(slot_s, goff_s):
        for i in range(5):
            p('s_add_u32 s%d, s%d, s%d' % (S_T0, slot_s, S_T6));
            if i: p('s_add_u32 s%d, s%d, %d' % (S_T0, S_T0, i * 1024))
            p('s_mov_b32 m0, s%d' % S_T0)
            p('s_add_u32 s%d, s%d, %d' % (S_T1, goff_s, i * 1024))
            p('buffer_load_dwordx4 v2, s[%d:%d], s%d offen sc1 lds' % (S_WS, S_WS + 3, S_T1))
    p('s_mov_b32 s%d, 0' % S_LB); p('s_mov_b32 s%d, 20480' % S_LB1); p('s_mov_b32 s%d, 40960' % S_LB2)
    p('s_mov_b32 s%d, s%d' % (S_HO, S_T5))
    dma(S_LB, S_HO); p('s_add_u32 s%d, s%d, 10240' % (S_HO, S_HO)); dma(S_LB1, S_HO)
    p('s_add_u32 s%d, s%d, %d' % (S_HO, S_HO, 40960 - 10240))
    ws = WStream(p, lg, 15, 80)
    ACC = 16; HF = 64; OUT = 96
    p('s_mov_b32 s%d, 0' % S_SEG)
    ws.load(0); ws.load(1)
    first = p.newlabel('LAPf')
    p('s_waitcnt vmcnt(5)')
    p('s_branch %s' % first)
    loop = p.newlabel('LAPl'); core.loop_align(p); p.label(loop)
    lh = p.newlabel('LAPh'); p('s_cmp_lg_u32 s%d, 16' % S_SEG); p('s_cbranch_scc1 %s' % lh)
    ready(p, True, 1)
    p.label(lh)
    p('s_waitcnt vmcnt(12)')
    p.label(first)
    lg.q = [('w', 0), ('w', 0), ('w', 1), ('w', 1)]
    for hf in range(2):
        if hf == 1: p('s_waitcnt vmcnt(0)')
        p('s_barrier')
        if hf == 1:
            flag_store(p, 8, S_FL, S_SEG, 9)
        dma(S_LB2, S_HO)
        p('s_add_u32 s%d, s%d, %d' % (S_HO, S_HO, 10240 if hf == 0 else 40960 - 10240))
        p('v_add_u32 v10, s%d, v2' % S_LB)
        def hread(uu):
            b = HF + 8 * (uu & 1)
            for tau in range(2):
                p('ds_read_b128 %s, v10 offset:%d' % (vr(b + 4 * tau, 4), tau * 10240 + uu * 1024)); lg.issue(('h', uu))
        hread(0)
        for uu in range(10):
            u = 10 * hf + uu; t = u >> 1; half = u & 1
            if uu + 1 < 10: hread(uu + 1)
            lg.wait(('h', uu))
            for x in range(6):
                o = t * 6 + x
                wop = ws.operand(o, half)
                for tau in range(2):
                    a = ACC + 8 * x + 4 * tau
                    p('v_mfma_f32_16x16x32_bf16 %s, %s, %s, %s' % (vr(a, 4), wop, vr(HF + 8 * (uu & 1) + 4 * tau, 4), '0' if u == 0 else vr(a, 4)))
                if half == 1: ws.done(o)
        p('s_mov_b32 s%d, s%d' % (S_T0, S_LB)); p('s_mov_b32 s%d, s%d' % (S_LB, S_LB1)); p('s_mov_b32 s%d, s%d' % (S_LB1, S_LB2)); p('s_mov_b32 s%d, s%d' % (S_LB2, S_T0))
    for pr in range(3):
        for tau in range(2):
            o = OUT + 4 * ((pr * 2 + tau) % 6)
            a0 = ACC + 8 * (2 * pr) + 4 * tau; a1 = ACC + 8 * (2 * pr + 1) + 4 * tau
            p('v_cvt_pk_bf16_f32 v%d, v%d, v%d' % (o, a0, a0 + 1)); p('v_cvt_pk_bf16_f32 v%d, v%d, v%d' % (o + 1, a0 + 2, a0 + 3))
            p('v_cvt_pk_bf16_f32 v%d, v%d, v%d' % (o + 2, a1, a1 + 1)); p('v_cvt_pk_bf16_f32 v%d, v%d, v%d' % (o + 3, a1 + 2, a1 + 3))
            p('s_add_u32 s%d, s%d, %d' % (S_T0, S_OUT, tau * 6144 + pr * 1024))
            p('buffer_store_dwordx4 %s, v2, s[%d:%d], s%d offen sc1' % (vr(o, 4), S_WS, S_WS + 3, S_T0))
    p('s_add_u32 s%d, s%d, %d' % (S_OUT, S_OUT, 32 * 24576))
    p('s_add_u32 s%d, s%d, 1' % (S_SEG, S_SEG))
    l0 = p.newlabel('LAP0'); p('s_cmp_lg_u32 s%d, 1' % S_SEG); p('s_cbranch_scc1 %s' % l0)
    p('s_waitcnt vmcnt(0)'); ready(p); flag_store(p, 8, S_FL, S_SEG, 9)
    p.label(l0)
    p('s_cmp_lt_u32 s%d, s%d' % (S_SEG, S_NST)); p('s_cbranch_scc1 %s' % loop)
    p('s_waitcnt vmcnt(0) lgkmcnt(0)'); p('s_barrier')
    flag_store(p, 8, S_FL, S_SEG, 9)

BP_H = 0; BP_VX = 40960
def gen_BP(p, st=False):
    lg = Cnt(p, 'lgkmcnt', 15); vm = Cnt(p, 'vmcnt', 63)
    h = S_IDX
    srd(p, S_W1, KA['Wv'], 640 * 12288); srd(p, S_W2, KA['Wo'], 32 * 192 * 1280)
    common_lane_setup(p)
    p('s_waitcnt lgkmcnt(0)')
    one_lane_off(p, 8, 80, off_s=None, const=0); p('s_lshl_b32 s%d, s%d, %d' % (S_T0, h, FSH)); p('s_add_u32 s%d, s%d, %d' % (S_FL, S_T0, F_VO))
    p('s_mul_i32 s%d, s%d, 24576' % (S_T0, S_WAVE)); p('s_add_u32 s%d, s%d, 65536' % (S_T0, S_T0)); p('v_add_u32 v15, s%d, v2' % S_T0)
    p('s_lshl_b32 s%d, s%d, 14' % (S_T4, S_WAVE))
    voffs = [80, 81, 82]
    stage_offsets(p, voffs, 6, 12288, 1, 83, 84)
    tr_base(p, 85, 96, 8, S_T4, 83, 84)
    p('s_mul_i32 s%d, s%d, 384' % (S_T5, h)); p('s_mul_i32 s%d, s%d, 96' % (S_T0, S_WAVE)); p('s_add_u32 s%d, s%d, s%d' % (S_T5, S_T5, S_T0))
    jobs = []
    for u in range(20):
        def soff(dst, u=u): p('s_add_u32 s%d, s%d, %d' % (dst, S_T5, u * 32 * 12288))
        dests = []
        for x in range(3):
            kind, n = UM[(u >> 1) * 3 + x]; half = u & 1
            if kind == 'reg': dests.append((x * 32, ('reg', unit_reg(n, 4 * half, 2), unit_reg(n, 4 * half + 2, 2))))
            else: dests.append((x * 32, ('lds', n * 2048 + half * 1024)))
        jobs.append(dict(srd=S_W1, soff=soff, dests=dests))
    load_weights_type1(p, jobs, 85, 3072, 5, voffs, 3, 96, lg, vm, 15, 88, S_T4)
    voffs = [100, 101, 102, 103, 104]
    stage_offsets(p, voffs, 10, 1280, 1, 83, 84)
    tr_base(p, 86, 160, 4, S_T4, 83, 84)
    p('s_mul_i32 s%d, s%d, %d' % (S_T5, h, 192 * 1280)); p('s_mul_i32 s%d, s%d, 320' % (S_T0, S_WAVE)); p('s_add_u32 s%d, s%d, s%d' % (S_T5, S_T5, S_T0))
    jobs = []
    for u in range(6):
        for ch in range(2):
            def soff(dst, u=u, ch=ch): p('s_add_u32 s%d, s%d, %d' % (dst, S_T5, u * 32 * 1280 + ch * 160))
            dests = []
            for x in range(5):
                cc = ch * 5 + x
                kind, n = UM[30 + cc * 3 + (u >> 1)]; half = u & 1
                if kind == 'reg': dests.append((x * 32, ('reg', unit_reg(n, 4 * half, 2), unit_reg(n, 4 * half + 2, 2))))
                else: dests.append((x * 32, ('lds', n * 2048 + half * 1024)))
            jobs.append(dict(srd=S_W2, soff=soff, dests=dests))
    load_weights_type1(p, jobs, 86, 5120, 3, voffs, 5, 160, lg, vm, 15, 88, S_T4, zrows=16)
    p('s_barrier')
    stamp(p, 3, st)
    ready(p, True, 0)
    stamp(p, 1, st)
    for x in range(3):
        p('s_mul_i32 s%d, s%d, 3' % (S_T0, S_WAVE)); p('s_add_u32 s%d, s%d, %d' % (S_T0, S_T0, x))
        p('s_lshr_b32 s%d, s%d, 1' % (S_T1, S_T0)); p('s_lshl_b32 s%d, s%d, 10' % (S_T1, S_T1))
        p('s_and_b32 s%d, s%d, 1' % (S_T0, S_T0)); p('s_lshl_b32 s%d, s%d, 3' % (S_T0, S_T0)); p('s_add_u32 s%d, s%d, s%d' % (S_T0, S_T0, S_T1)); p('s_add_u32 s%d, s%d, %d' % (S_T0, S_T0, BP_VX))
        p('v_add_u32 v%d, s%d, v2' % (10 + x, S_T0))
    p('v_add_u32 v13, %d, v2' % BP_VX)
    p('s_mul_i32 s%d, s%d, 10240' % (S_T6, S_WAVE)); p('s_add_u32 s%d, s%d, %d' % (S_HO, S_T6, OFF_H))
    def dma():
        for i in range(10):
            p('s_add_u32 s%d, s%d, %d' % (S_T0, S_T6, BP_H + i * 1024)); p('s_mov_b32 m0, s%d' % S_T0)
            p('s_add_u32 s%d, s%d, %d' % (S_T1, S_HO, i * 1024))
            p('buffer_load_dwordx4 v2, s[%d:%d], s%d offen sc1 lds' % (S_WS, S_WS + 3, S_T1))
    dma()
    p('s_mul_i32 s%d, s%d, %d' % (S_OUT, S_WAVE, 10 * 32768)); p('s_lshl_b32 s%d, s%d, 10' % (S_T0, h)); p('s_add_u32 s%d, s%d, s%d' % (S_OUT, S_OUT, S_T0)); p('s_add_u32 s%d, s%d, %d' % (S_OUT, S_OUT, OFF_VO))
    ws = WStream(p, lg, 15, 56)
    ACCV = 16; HF = 40; VF = 72; ACCO = 16; OUT = 32
    p('s_mov_b32 s%d, 0' % S_SEG)
    ws.load(0); ws.load(1)
    first = p.newlabel('LBPf')
    p('s_waitcnt vmcnt(0)'); p('s_branch %s' % first)
    loop = p.newlabel('LBPl'); core.loop_align(p); p.label(loop)
    lh = p.newlabel('LBPh'); p('s_cmp_lg_u32 s%d, 16' % S_SEG); p('s_cbranch_scc1 %s' % lh)
    ready(p, True, 1)
    p.label(lh)
    p('s_waitcnt vmcnt(10)')
    p.label(first)
    lg.q = [('w', 0), ('w', 0), ('w', 1), ('w', 1)]
    p('s_barrier')
    def hread(u):
        b = HF + 8 * (u & 1)
        for tau in range(2):
            p('ds_read_b128 %s, v2 offset:%d' % (vr(b + 4 * tau, 4), BP_H + tau * 20480 + u * 1024)); lg.issue(('h', u))
    hread(0)
    for u in range(20):
        t = u >> 1; half = u & 1
        if u + 1 < 20: hread(u + 1)
        lg.wait(('h', u))
        for x in range(3):
            o = t * 3 + x
            wop = ws.operand(o, half)
            for tau in range(2):
                a = ACCV + 8 * x + 4 * tau
                p('v_mfma_f32_16x16x32_bf16 %s, %s, %s, %s' % (vr(a, 4), wop, vr(HF + 8 * (u & 1) + 4 * tau, 4), '0' if u == 0 else vr(a, 4)))
            if half == 1: ws.done(o)
    for x in range(3):
        for tau in range(2):
            a = ACCV + 8 * x + 4 * tau
            p('v_cvt_pk_bf16_f32 v%d, v%d, v%d' % (a, a, a + 1)); p('v_cvt_pk_bf16_f32 v%d, v%d, v%d' % (a + 1, a + 2, a + 3))
            p('ds_write_b64 v%d, %s offset:%d' % (10 + x, vr(a, 2), tau * 6144)); lg.issue('vx')
    p('s_waitcnt vmcnt(0)')
    lg.wait('vx')
    p('s_barrier')
    flag_store(p, 8, S_FL, S_SEG, 9)
    p('s_add_u32 s%d, s%d, 40960' % (S_HO, S_HO)); dma()
    for tau in range(2):
        for u in range(6):
            p('ds_read_b128 %s, v13 offset:%d' % (vr(VF + 4 * (tau * 6 + u), 4), tau * 6144 + u * 1024)); lg.issue(('v', tau * 6 + u))
    def epi(cc):
        a = ACCO + 8 * (cc & 1); o = OUT + 4 * (cc & 1)
        p('v_cvt_pk_bf16_f32 v%d, v%d, v%d' % (o, a, a + 1)); p('v_cvt_pk_bf16_f32 v%d, v%d, v%d' % (o + 1, a + 2, a + 3))
        p('v_cvt_pk_bf16_f32 v%d, v%d, v%d' % (o + 2, a + 4, a + 5)); p('v_cvt_pk_bf16_f32 v%d, v%d, v%d' % (o + 3, a + 6, a + 7))
        p('s_add_u32 s%d, s%d, %d' % (S_T0, S_OUT, cc * 32768))
        p('buffer_store_dwordx4 %s, v2, s[%d:%d], s%d offen sc1' % (vr(o, 4), S_WS, S_WS + 3, S_T0))
    for cc in range(10):
        for u in range(6):
            o = 30 + cc * 3 + (u >> 1); half = u & 1
            wop = ws.operand(o, half)
            for tau in range(2):
                if cc == 0: lg.wait(('v', tau * 6 + u))
                a = ACCO + 8 * (cc & 1) + 4 * tau
                p('v_mfma_f32_16x16x32_bf16 %s, %s, %s, %s' % (vr(a, 4), vr(VF + 4 * (tau * 6 + u), 4), wop, '0' if u == 0 else vr(a, 4)))
            if half == 1: ws.done(o)
            if u == 2 and cc > 0: epi(cc - 1)
    epi(9)
    p('s_add_u32 s%d, s%d, %d' % (S_OUT, S_OUT, 40 * 32768))
    p('s_add_u32 s%d, s%d, 1' % (S_SEG, S_SEG))
    l0 = p.newlabel('LBP0'); p('s_cmp_lg_u32 s%d, 1' % S_SEG); p('s_cbranch_scc1 %s' % l0)
    p('s_waitcnt vmcnt(0)'); ready(p); flag_store(p, 8, S_FL, S_SEG, 9)
    p.label(l0)
    p('s_cmp_lt_u32 s%d, s%d' % (S_SEG, S_NST)); p('s_cbranch_scc1 %s' % loop)
    p('s_waitcnt vmcnt(0) lgkmcnt(0)'); p('s_barrier')
    flag_store(p, 8, S_FL, S_SEG, 9)
```

```python
from core import *
import core, core2, pro
from pro import f2u, OOB
S_WK = 45
DBG_PAR = 196; DBG_MODA = 128; DBG_MOD = 132; DBG_PRO = 192

def dbg_inc(p, off):
    dbg_srd(p, 52)
    p('v_mov_b32 v4, 0x7ff00000'); p('v_mov_b32 v5, %d' % off); p('v_cmp_eq_u32 vcc, 0, v0'); p('v_cndmask_b32 v4, v4, v5, vcc')
    p('v_mov_b32 v6, 1')
    p('buffer_atomic_add v6, v4, s[52:55], 0 offen sc1')

def dbg_wait(p, off, need, w0_only=True, nonzero=False, vt=16, sleep=2):
    dbg_srd(p, 52)
    l = p.newlabel('Ldw'); top = p.newlabel('Ldwt'); done = p.newlabel('Ldwd')
    if w0_only: p('s_cmp_lg_u32 s%d, 0' % S_WAVE); p('s_cbranch_scc1 %s' % l)
    p('v_mov_b32 v%d, %d' % (vt, off))
    p.label(top)
    p('buffer_load_dword v%d, v%d, s[52:55], 0 offen sc1' % (vt + 1, vt)); p('s_waitcnt vmcnt(0)')
    p('v_readfirstlane_b32 s50, v%d' % (vt + 1))
    p('s_cmp_ge_u32 s50, %d' % need); p('s_cbranch_scc1 %s' % done)
    p('s_sleep %d' % sleep)
    p('s_cmp_eq_u32 s%d, 0' % S_SPIN); p('s_cbranch_scc1 %s' % done)
    p('s_sub_u32 s%d, s%d, 1' % (S_SPIN, S_SPIN)); p('s_branch %s' % top)
    p.label(done)
    p.label(l)
    if w0_only: p('s_barrier')

def probe4(p):
    l = p.newlabel('Lprs'); p('s_cmp_lg_u32 s%d, 0' % S_WAVE); p('s_cbranch_scc1 %s' % l)
    p('v_mov_b32 v36, 0'); p('v_mov_b32 v37, -1'); p('s_mov_b32 s54, 0')
    for k in range(4): p('s_mov_b32 s%d, -1' % (56 + k))
    top = p.newlabel('Lprb'); p.label(top)
    p('s_and_b32 s55, s54, 2'); p('s_lshl_b32 s%d, s55, 20' % S_T0); p('s_and_b32 s55, s54, 1'); p('s_lshl_b32 s55, s55, 13'); p('s_add_u32 s%d, s%d, s55' % (S_T0, S_T0))
    p('s_lshr_b32 s55, s54, 2'); p('s_lshl_b32 s55, s55, 14'); p('s_add_u32 s%d, s%d, s55' % (S_T0, S_T0))
    p('s_add_u32 s%d, s%d, s%d' % (S_T0, S_T0, S_COMM)); p('s_add_u32 s%d, s%d, %d' % (S_T0, S_T0, BLK_PROBE * BLK))
    p('buffer_store_dword v37, v36, s[%d:%d], s%d offen sc1' % (S_WS, S_WS + 3, S_T0))
    p('s_waitcnt vmcnt(0)')
    p('s_memtime s[50:51]'); p('s_waitcnt lgkmcnt(0)')
    p('buffer_load_dword v38, v36, s[%d:%d], s%d offen sc1' % (S_WS, S_WS + 3, S_T0))
    p('s_waitcnt vmcnt(0)')
    p('s_memtime s[52:53]'); p('s_waitcnt lgkmcnt(0)')
    p('s_sub_u32 s50, s52, s50')
    for k in range(4):
        p('s_and_b32 s55, s54, 3'); p('s_cmp_eq_u32 s55, %d' % k); p('s_cselect_b32 s55, s50, -1'); p('s_min_u32 s%d, s%d, s55' % (56 + k, 56 + k))
    p('s_add_u32 s54, s54, 1'); p('s_cmp_lt_u32 s54, %d' % (4 * PROBE_N)); p('s_cbranch_scc1 %s' % top)
    p('s_cmp_lt_u32 s57, s56'); p('s_cselect_b32 s50, 5, 4'); p('s_cmp_lt_u32 s59, s58'); p('s_cselect_b32 s51, 2, 0'); p('s_add_u32 s50, s50, s51')
    if core.PROF or DEBUG_PROBE:
        for k in range(4): p('v_mov_b32 v%d, s%d' % (40 + k, 56 + k))
    p('v_mov_b32 v37, s50')
    dbg_srd(p, 52)
    p('v_mov_b32 v38, 0x7ff00000'); p('v_mov_b32 v36, %d' % DBG_PAR); p('v_cmp_eq_u32 vcc, 0, v0'); p('v_cndmask_b32 v36, v38, v36, vcc')
    p('buffer_store_dword v37, v36, s[52:55], 0 offen sc1')
    if core.PROF or DEBUG_PROBE:
        p('v_mov_b32 v36, 96'); p('v_cndmask_b32 v36, v38, v36, vcc')
        p('buffer_store_dwordx4 v[40:43], v36, s[52:55], 0 offen sc1')
    p.label(l)

DEBUG_PROBE = False
STAMP = False
PROBE_N = 3
def gen_prologue(p):
    lskip = 'L_pro_skip'
    p('s_cmp_lt_u32 s2, 64'); p('s_cbranch_scc1 %s' % lskip)
    l1 = p.newlabel('Lwk');
    p('s_cmp_lt_u32 s2, 124'); p('s_cbranch_scc0 L_wk_a'); p('s_sub_u32 s%d, s2, 64' % S_WK); p('s_branch L_wk_ok')
    p.label('L_wk_a')
    p('s_cmp_lt_u32 s2, 128'); p('s_cbranch_scc0 L_wk_b'); p('s_sub_u32 s%d, s2, 4' % S_WK); p('s_branch L_wk_ok')
    p.label('L_wk_b')
    p('s_cmp_lt_u32 s2, 192'); p('s_cbranch_scc1 %s' % lskip)
    p('s_cmp_lt_u32 s2, 252'); p('s_cbranch_scc0 L_wk_c'); p('s_sub_u32 s%d, s2, 132' % S_WK); p('s_branch L_wk_ok')
    p.label('L_wk_c')
    p('s_sub_u32 s%d, s2, 128' % S_WK)
    p.label('L_wk_ok')
    wk = S_WK
    srd(p, 8, KA['wmod'], 640 * 7680); srd(p, 12, KA['c'], 1280)
    p('v_lshrrev_b32 v3, 6, v0'); p('v_and_b32 v1, 63, v0'); p('v_readfirstlane_b32 s%d, v3' % S_WAVE); p('s_mov_b32 s%d, %d' % (S_SPIN, SPIN_BUDGET))
    p('s_waitcnt lgkmcnt(0)')
    lnomod = p.newlabel('Lnm')
    p('s_cmp_ge_u32 s%d, 120' % wk); p('s_cbranch_scc1 %s' % lnomod)
    p('v_and_b32 v8, 3, v0'); p('v_lshrrev_b32 v9, 2, v0')
    p('v_mul_u32_u24 v10, 7680, v9'); p('v_lshlrev_b32 v11, 4, v8'); p('v_add_u32 v10, v10, v11')
    p('s_lshl_b32 s20, s%d, 6' % wk); p('v_add_u32 v10, s20, v10'); p('v_lshlrev_b32 v11, 1, v9')
    for i in range(10):
        p('s_mov_b32 s21, %d' % (i * 64 * 7680))
        p('buffer_load_dwordx4 %s, v10, s[8:11], s21 offen' % vr(40 + 4 * i, 4))
        p('buffer_load_ushort v%d, v11, s[12:15], 0 offen offset:%d' % (24 + i, i * 128))
    p.label(lnomod)
    srd(p, 56, KA['x'], 2048 * 1280); p('s_waitcnt lgkmcnt(0)')
    pro.ln_setup(p, 18)
    X0 = 84; D0 = 104; A0 = 144; B0 = 184; T = 224
    p('s_mul_i32 s24, s%d, %d' % (wk, 16 * 1280))
    for k in range(5): p('buffer_load_dwordx4 %s, v18, s[56:59], s24 offen offset:%d' % (vr(X0 + 4 * k, 4), k * 64))
    lmod = p.newlabel('Lmod'); lafter = p.newlabel('Lmodd')
    p('s_cmp_lt_u32 s%d, 120' % wk); p('s_cbranch_scc1 %s' % lmod)
    p('s_cmp_lg_u32 s%d, 120' % wk); p('s_cbranch_scc1 %s' % lafter)
    p('s_waitcnt vmcnt(0)')
    probe4(p)
    p('s_branch %s' % lafter)
    p.label(lmod)
    for r in range(32 + 4, 40): pass
    acc = list(range(228, 236))
    for r in acc: p('v_mov_b32 v%d, 0' % r)
    p('s_waitcnt vmcnt(0)')
    for i in range(10):
        c = 24 + i
        p('v_lshlrev_b32 v%d, 16, v%d' % (c, c))
        p('v_mul_f32 v6, 0xbfb8aa3b, v%d' % c)
        p('v_exp_f32 v6, v6'); p('v_add_f32 v6, 1.0, v6'); p('v_rcp_f32 v6, v6'); p('v_mul_f32 v6, v%d, v6' % c)
        p('v_cvt_pk_bf16_f32 v6, v6, v6'); p('v_and_b32 v6, 0xffff0000, v6')
        for k in range(4):
            w = 40 + 4 * i + k
            p('v_lshlrev_b32 v7, 16, v%d' % w); p('v_fmac_f32 v%d, v6, v7' % acc[2 * k])
            p('v_and_b32 v7, 0xffff0000, v%d' % w); p('v_fmac_f32 v%d, v6, v7' % acc[2 * k + 1])
    p('v_lshlrev_b32 v16, 7, v9'); p('v_lshlrev_b32 v17, 5, v8'); p('v_add_u32 v16, v16, v17')
    p('ds_write_b128 v16, v[228:231]'); p('ds_write_b128 v16, v[232:235] offset:16')
    p('s_waitcnt lgkmcnt(0)'); p('s_barrier')
    p('v_and_b32 v8, 31, v0'); p('v_lshrrev_b32 v9, 5, v0')
    p('v_lshlrev_b32 v10, 10, v9'); p('v_lshlrev_b32 v11, 2, v8'); p('v_add_u32 v10, v10, v11')
    for k in range(8): p('ds_read_b32 v%d, v10 offset:%d' % (228 + k, k * 128))
    p('s_waitcnt lgkmcnt(0)')
    for k in range(1, 8): p('v_add_f32 v228, v228, v%d' % (228 + k))
    p('s_barrier')
    p('v_lshlrev_b32 v10, 7, v9'); p('v_add_u32 v10, v10, v11'); p('ds_write_b32 v10, v228')
    p('s_waitcnt lgkmcnt(0)'); p('s_barrier')
    for k in range(8): p('ds_read_b32 v%d, v11 offset:%d' % (228 + k, k * 128))
    p('s_waitcnt lgkmcnt(0)')
    for k in range(1, 8): p('v_add_f32 v228, v228, v%d' % (228 + k))
    p('v_cvt_pk_bf16_f32 v228, v228, v228'); p('v_and_b32 v228, 0xffff0000, v228')
    p('s_mul_hi_u32 s21, s%d, %d' % (wk, (1 << 32) // 20 + 1))
    la = p.newlabel('Lna'); lb = p.newlabel('Lad')
    p('s_cmp_eq_u32 s21, 1'); p('s_cbranch_scc1 %s' % lb)
    p('s_cmp_eq_u32 s21, 4'); p('s_cbranch_scc0 %s' % la)
    p.label(lb)
    p('v_add_f32 v228, 1.0, v228'); p('v_cvt_pk_bf16_f32 v228, v228, v228'); p('v_and_b32 v228, 0xffff0000, v228')
    p.label(la)
    p('v_lshrrev_b32 v228, 16, v228')
    lplain = p.newlabel('Lmp'); ldone = p.newlabel('Lmpd')
    p('s_cmp_ge_u32 s%d, 40' % wk); p('s_cbranch_scc1 %s' % lplain)
    p('v_mov_b32_dpp v229, v228 quad_perm:[1,0,3,2] row_mask:0xf bank_mask:0xf')
    p('v_lshlrev_b32 v229, 16, v229'); p('v_or_b32 v229, v228, v229')
    p('v_lshrrev_b32 v5, 1, v0'); p('v_lshlrev_b32 v5, 2, v5')
    p('v_mov_b32 v6, 0x%x' % OOB); p('v_and_b32 v7, 1, v0'); p('v_cmp_eq_u32 vcc, 0, v7'); p('v_cndmask_b32 v5, v6, v5, vcc')
    p('v_cmp_gt_u32 vcc, 32, v0'); p('v_cndmask_b32 v5, v6, v5, vcc')
    p('s_lshl_b32 s22, s%d, 7' % wk); p('s_add_u32 s22, s22, %d' % OFF_MODL)
    p('buffer_store_dword v229, v5, s[%d:%d], s22 offen sc1' % (S_WS, S_WS + 3))
    p('s_waitcnt vmcnt(0)')
    p('v_mov_b32 v7, 64'); p('v_mov_b32 v230, s%d' % S_NONCE); p('v_cmp_eq_u32 vcc, 0, v0'); p('v_cndmask_b32 v5, v6, v7, vcc')
    p('buffer_store_dword v230, v5, s[%d:%d], s22 offen sc1' % (S_WS, S_WS + 3))
    p('s_branch %s' % ldone)
    p.label(lplain)
    p('s_lshl_b32 s20, s%d, 6' % wk)
    p('v_lshlrev_b32 v5, 1, v0'); p('v_add_u32 v5, s20, v5')
    p('v_mov_b32 v6, 0x%x' % OOB); p('v_cmp_gt_u32 vcc, 32, v0'); p('v_cndmask_b32 v5, v6, v5, vcc')
    p('s_mov_b32 s22, %d' % OFF_MOD)
    p('buffer_store_short v228, v5, s[%d:%d], s22 offen sc1' % (S_WS, S_WS + 3))
    p.label(ldone)
    p.label(lafter)
    def block_task(bs):
        lpk = p.newlabel('Lpk'); ld = p.newlabel('Lpkd')
        p('s_add_u32 s23, s%d, %d' % (bs, 128 - BLK_XEND)); p('s_cmp_lt_u32 s%d, %d' % (bs, BLK_XEND)); p('s_cselect_b32 s23, s%d, s23' % bs)
        p('s_lshl_b32 s23, s23, 14'); p('s_add_u32 s23, s23, s%d' % S_COMM)
        p('s_cmp_lt_u32 s%d, %d' % (bs, MEM_SLOT)); p('s_cbranch_scc1 %s' % lpk)
        p('v_lshlrev_b32 v12, 4, v0')
        p('s_sub_u32 s24, s%d, %d' % (bs, BLK_FP)); p('s_cmp_lt_u32 s24, 3'); p('s_cselect_b32 s24, 0, -1')
        for r in range(4, 8): p('v_mov_b32 v%d, s24' % r)
        for j in range(4):
            p('buffer_store_dwordx4 v[4:7], v12, s[%d:%d], s23 offen sc1' % (S_WS, S_WS + 3))
            if j < 3: p('s_add_u32 s23, s23, 4096')
        p('s_branch %s' % ld)
        p.label(lpk)
        srd(p, 16 + 40, KA['mem0'], 10240); p('s_waitcnt lgkmcnt(0)')
        for rep in range(2):
            p('v_add_u32 v13, %d, v3' % (rep * 4))
            p('s_and_b32 s24, s%d, 1' % bs); p('s_lshl_b32 s24, s24, 3'); p('v_add_u32 v14, s24, v13')
            p('v_bfe_u32 v15, v1, 1, 3'); p('v_mul_u32_u24 v15, 1280, v15')
            p('v_lshlrev_b32 v16, 7, v14'); p('v_add_u32 v15, v15, v16')
            p('v_lshrrev_b32 v16, 4, v1'); p('v_lshlrev_b32 v16, 5, v16'); p('v_add_u32 v15, v15, v16')
            p('v_and_b32 v16, 1, v1'); p('v_lshlrev_b32 v16, 2, v16'); p('v_add_u32 v15, v15, v16')
            p('v_mov_b32 v17, 0x%x' % OOB); p('v_cmp_gt_u32 vcc, 10, v14'); p('v_cndmask_b32 v15, v17, v15, vcc')
            for q in range(4): p('buffer_load_dword v%d, v15, s[56:59], 0 offen offset:%d' % (4 + q, q * 8))
            p('v_lshlrev_b32 v12, 10, v13'); p('v_lshlrev_b32 v16, 4, v1'); p('v_add_u32 v12, v12, v16'); p('v_cndmask_b32 v12, v17, v12, vcc')
            p('s_waitcnt vmcnt(0)')
            p('buffer_store_dwordx4 v[4:7], v12, s[%d:%d], s23 offen sc1' % (S_WS, S_WS + 3))
            p('s_add_u32 s24, s23, 8192')
            p('buffer_store_dwordx4 v[4:7], v12, s[%d:%d], s24 offen sc1' % (S_WS, S_WS + 3))
            p('s_waitcnt vmcnt(0)')
        p.label(ld)
    def init_tasks(early):
        if early:
            l1 = p.newlabel('Lb1'); p('s_sub_u32 s25, s%d, 120' % wk); p('s_cmp_ge_u32 s25, %d' % MEM_SLOT); p('s_cbranch_scc1 %s' % l1)
            block_task(25)
            p.label(l1)
            return
        l2 = p.newlabel('Lb2'); p('s_add_u32 s25, s%d, %d' % (wk, MEM_SLOT)); p('s_cmp_ge_u32 s25, %d' % NBLK_INIT); p('s_cbranch_scc1 %s' % l2)
        block_task(25)
        p.label(l2)
        l3 = p.newlabel('Lb3'); p('s_cmp_lt_u32 s%d, 104' % wk); p('s_cbranch_scc1 %s' % l3); p('s_cmp_ge_u32 s%d, 111' % wk); p('s_cbranch_scc1 %s' % l3)
        p('s_sub_u32 s23, s%d, 104' % wk); p('s_lshl_b32 s23, s23, 12'); p('s_add_u32 s23, s23, %d' % OFF_FLAGS)
        p('v_lshlrev_b32 v12, 4, v0')
        for r in range(4, 8): p('v_mov_b32 v%d, 0' % r)
        p('buffer_store_dwordx4 v[4:7], v12, s[%d:%d], s23 offen sc1' % (S_WS, S_WS + 3))
        p.label(l3)
    le = p.newlabel('Lie'); p('s_cmp_lt_u32 s%d, 120' % wk); p('s_cbranch_scc1 %s' % le)
    init_tasks(True)
    p.label(le)
    stamp(p, 3, STAMP)
    def between():
        tmp = 36
        p('s_mul_i32 s%d, s%d, 640' % (S_T0, S_WAVE)); p('v_lshrrev_b32 v21, 4, v1'); p('v_lshlrev_b32 v21, 4, v21'); p('v_add_u32 v21, s%d, v21' % S_T0)
        p('v_min_u32 v22, 9, v1'); p('v_cmp_le_u32 vcc, 5, v22'); p('v_add_u32 v23, 15, v22'); p('v_cndmask_b32 v22, v22, v23, vcc')
        p('v_lshlrev_b32 v22, 7, v22'); p('v_add_u32 v22, s%d, v22' % S_T0); p('v_add_u32 v22, 64, v22')
        top = p.newlabel('Lml'); ok = p.newlabel('Lmlok')
        p('s_mov_b32 s%d, %d' % (S_T1, OFF_MODL))
        p.label(top)
        p('buffer_load_dword v23, v22, s[%d:%d], s%d offen sc1' % (S_WS, S_WS + 3, S_T1))
        p('s_waitcnt vmcnt(0)')
        p('v_cmp_ne_u32 vcc, s%d, v23' % S_NONCE); p('s_cbranch_vccz %s' % ok)
        p('s_sleep 1')
        p('s_cmp_eq_u32 s%d, 0' % S_SPIN); p('s_cbranch_scc1 %s' % ok)
        p('s_sub_u32 s%d, s%d, 1' % (S_SPIN, S_SPIN)); p('s_branch %s' % top)
        p.label(ok)
        for i, row in enumerate((1, 0)):
            p('s_add_u32 s%d, s%d, %d' % (S_T2, S_T1, row * 20 * 128))
            for k in range(5): p('buffer_load_dwordx4 %s, v21, s[%d:%d], s%d offen offset:%d sc1' % (vr(tmp + 20 * i + 4 * k, 4), S_WS, S_WS + 3, S_T2, k * 128))
        p('s_waitcnt vmcnt(0)')
        stamp(p, 7, STAMP)
        for i, dst in enumerate((A0, B0)):
            for k in range(20):
                p('v_lshlrev_b32 v%d, 16, v%d' % (dst + 2 * k, tmp + 20 * i + k)); p('v_and_b32 v%d, 0xffff0000, v%d' % (dst + 2 * k + 1, tmp + 20 * i + k))
    p('s_waitcnt vmcnt(0)')
    pro.ln_compute(p, X0, D0, A0, B0, 20, 8192, T, between)
    p('s_mul_i32 s24, s%d, 20480' % wk); p('s_mul_i32 s25, s%d, 5120' % S_WAVE); p('s_add_u32 s24, s24, s25'); p('s_add_u32 s24, s24, %d' % OFF_H)
    p('v_lshlrev_b32 v2, 4, v1')
    for k in range(5):
        if k == 4: p('s_add_u32 s24, s24, 4096')
        p('buffer_store_dwordx4 %s, v2, s[%d:%d], s24 offen offset:%d sc1' % (vr(X0 + 4 * k, 4), S_WS, S_WS + 3, (k % 4) * 1024))
    def tag_flag(off):
        p('v_mov_b32 v4, 0x%x' % OOB); p('v_mov_b32 v5, 0'); p('v_cmp_eq_u32 vcc, 0, v0'); p('v_cndmask_b32 v4, v4, v5, vcc')
        p('v_mov_b32 v6, s%d' % S_NONCE); p('s_lshl_b32 s24, s%d, 7' % wk); p('s_add_u32 s24, s24, %d' % off)
        p('buffer_store_dword v6, v4, s[%d:%d], s24 offen sc1' % (S_WS, S_WS + 3))
    p('s_waitcnt vmcnt(0)'); p('s_barrier')
    tag_flag(OFF_FH)
    init_tasks(False)
    p('s_waitcnt vmcnt(0)'); p('s_barrier')
    tag_flag(OFF_FI)
    p('s_barrier')
    p.label(lskip)

def mod_load_sc1(p, vb, A0, B0, rowA, rowB, tmp):
    for i, row in enumerate((rowA, rowB)):
        p('s_mov_b32 s%d, %d' % (S_T0, OFF_MOD + row * 1280))
        for k in range(5): p('buffer_load_dwordx4 %s, v%d, s[%d:%d], s%d offen offset:%d sc1' % (vr(tmp + 20 * i + 4 * k, 4), vb + 1, S_WS, S_WS + 3, S_T0, k * 64))
    p('s_waitcnt vmcnt(0)')
    for i, dst in enumerate((A0, B0)):
        for k in range(20):
            p('v_lshlrev_b32 v%d, 16, v%d' % (dst + 2 * k, tmp + 20 * i + k)); p('v_and_b32 v%d, 0xffff0000, v%d' % (dst + 2 * k + 1, tmp + 20 * i + k))

def wait_ready(p, parity=False, off=None, half=None):
    dbg_srd(p, 52)
    l = p.newlabel('Lwr'); top = p.newlabel('Lwrt'); done = p.newlabel('Lwrd'); again = p.newlabel('Lwra')
    p('s_cmp_lg_u32 s%d, 0' % S_WAVE); p('s_cbranch_scc1 %s' % l)
    p('v_lshrrev_b32 v16, 4, v2'); p('v_lshlrev_b32 v16, 7, v16'); p('v_mov_b32 v17, %d' % DBG_PAR); p('s_mov_b32 s51, %d' % ((off or OFF_FI) + (half or 0) * 8192)); p('s_mov_b32 s50, %d' % ((off or OFF_FI) + 8192))
    p.label(top)
    p('buffer_load_dword v18, v16, s[%d:%d], s51 offen sc1' % (S_WS, S_WS + 3))
    if half is None: p('buffer_load_dword v19, v16, s[%d:%d], s50 offen sc1' % (S_WS, S_WS + 3))
    if parity: p('buffer_load_dword v20, v17, s[52:55], 0 offen sc1')
    p('s_waitcnt vmcnt(0)')
    p('v_cmp_ne_u32 vcc, s%d, v18' % S_NONCE); p('s_cbranch_vccnz %s' % again)
    if half is None: p('v_cmp_ne_u32 vcc, s%d, v19' % S_NONCE); p('s_cbranch_vccnz %s' % again)
    if parity: p('v_cmp_eq_u32 vcc, 0, v20'); p('s_cbranch_vccnz %s' % again)
    p('s_branch %s' % done)
    p.label(again)
    p('s_sleep 2')
    p('s_cmp_eq_u32 s%d, 0' % S_SPIN); p('s_cbranch_scc1 %s' % done)
    p('s_sub_u32 s%d, s%d, 1' % (S_SPIN, S_SPIN)); p('s_branch %s' % top)
    p.label(done)
    if parity: p('v_mov_b32 v16, 0'); p('ds_write_b32 v16, v20 offset:%d' % parity); p('s_waitcnt lgkmcnt(0)')
    p.label(l)
    p('s_barrier')
    if parity:
        p('v_mov_b32 v16, 0'); p('ds_read_b32 v17, v16 offset:%d' % parity); p('s_waitcnt lgkmcnt(0)'); p('v_readfirstlane_b32 s50, v17')
        p('s_barrier')
```

```python
import sys
sys.path.insert(0, 'gen')
import core, core2, main, roles3, roles2, fused
core.HIST = False; core.PROF = False; core.DYN_PAR = True
name = sys.argv[1]
for kv in sys.argv[2:]:
    k, v = kv.split('=')
    mod, attr = k.split('.')
    setattr({'core': core, 'core2': core2, 'main': main, 'roles3': roles3, 'roles2': roles2, 'fused': fused}[mod], attr, eval(v))
txt, launches = main.gen_all(names=('pro0_kernel', 'pro1_kernel', main.NAME))
hdr = open('adaLN_cond__memory_aug_recurrent_mem_tr__glu_gated_bilinear__prompt.s.ref').read().split('; Override launch geometry')[0]
out = 'cdna_kernels/%s.s' % name
open(out, 'w').write(hdr + txt); print('wrote', out)
```

```python
from asmlib import Prog
from layout import *

WS_BYTES = 268435456
KA = dict(x=0, mem0=8, Wq=16, Wk=24, Wv=32, Wo=40, wg=64, wu=72, wd=80, c=88, wmod=96, out=104, dbg=112, ws=120)

FS = 128
F_QK = OFF_FLAGS; F_VO = F_QK + 32 * FS; F_P = F_VO + 32 * FS; F_X1 = F_P + 64 * FS; F_H2 = F_X1 + 40 * FS; F_HM = F_H2 + 4 * FS; F_END = F_HM + 48 * FS
FSH = 7
S_WS = 4
S_W1 = 8
S_W2 = 12
S_WAVE = 16; S_IDX = 17; S_STEP = 18; S_SPIN = 19
S_T0 = 20; S_T1 = 21; S_T2 = 22; S_T3 = 23
S_MASK = 24
S_MEMO = 26; S_PO = 27; S_ZO = 28; S_QKO = 29; S_VOO = 30; S_NST = 31
S_DBG = 32
S_T4 = 34; S_T5 = 35; S_T6 = 36; S_T7 = 37
S_C = 38
S_TR0 = 40
S_TRO = 42
S_COMM = 43
S_NONCE = 70
PARITY = 0
DYN_PAR = False
HIST = True
SPIN_BUDGET = 400000

class Cnt:
    def __init__(self, p, name, maxv):
        self.p = p; self.name = name; self.maxv = maxv; self.q = []
    def issue(self, tag): self.q.append(tag)
    def wait(self, tag):
        if tag not in self.q: return
        i = len(self.q) - 1 - self.q[::-1].index(tag)
        n = len(self.q) - 1 - i
        n = min(n, self.maxv)
        self.p('s_waitcnt %s(%d)' % (self.name, n))
        self.q = self.q[len(self.q) - n:] if n else []
    def drain(self):
        self.p('s_waitcnt %s(0)' % self.name); self.q = []
    def reset(self): self.q = []

def srd(p, s, karg, nbytes):
    p('s_load_dwordx2 s[%d:%d], s[0:1], %d' % (s, s + 1, karg))
    p('s_mov_b32 s%d, 0x%x' % (s + 2, nbytes))
    p('s_mov_b32 s%d, 0x00020000' % (s + 3))

def vr(a, n=1): return 'v%d' % a if n == 1 else 'v[%d:%d]' % (a, a + n - 1)
def ar(a, n=1): return 'a%d' % a if n == 1 else 'a[%d:%d]' % (a, a + n - 1)

def unit_reg(rr, lo=0, n=8):
    if rr < 32: return ar(8 * rr + lo, n)
    return vr(128 + 8 * (rr - 32) + lo, n)

def unit_map():
    m = []; rr = 0
    for o in range(60):
        if o % 5 == 4: m.append(('lds', o // 5))
        else: m.append(('reg', rr)); rr += 1
    return m
UM = unit_map()

def poll_check(p, regs, tmp, done, again):
    r = list(regs)
    p('v_max3_u32 v%d, v%d, v%d, v%d' % (tmp, r[0], r[1], r[2])); r = r[3:]
    while len(r) >= 2:
        p('v_max3_u32 v%d, v%d, v%d, v%d' % (tmp, tmp, r[0], r[1])); r = r[2:]
    if r: p('v_max_u32 v%d, v%d, v%d' % (tmp, tmp, r[0]))
    p('v_cmp_eq_u32 vcc, -1, v%d' % tmp)
    p('s_cbranch_vccz %s' % done)
    p('s_cmp_eq_u32 s%d, 0' % S_SPIN)
    p('s_cbranch_scc1 %s' % done)
    p('s_sub_u32 s%d, s%d, 1' % (S_SPIN, S_SPIN))
    p('s_branch %s' % again)

POLL_D = 4
POLL_DK = {}
R_MODE = 0
POLL_SLEEP = {'mem': 1, 'z': 1, 'p': 2}
PRE_SLEEP = {'memA': 0, 'memB': 0, 'z': 0, 'p': 0}
def poll_loop(p, loads, regs, tmp, kind, pre=None):
    top = p.newlabel('Lpl'); done = p.newlabel('Lpld')
    for r in regs: p('v_mov_b32 v%d, -1' % r)
    if pre and PRE_SLEEP[pre]: p('s_sleep %d' % PRE_SLEEP[pre])
    p.label(top)
    n = loads()
    p('s_waitcnt vmcnt(%d)' % (n * (POLL_DK.get(kind, POLL_D) - 1)))
    r = list(regs)
    p('v_max3_u32 v%d, v%d, v%d, v%d' % (tmp, r[0], r[1], r[2])); r = r[3:]
    while len(r) >= 2:
        p('v_max3_u32 v%d, v%d, v%d, v%d' % (tmp, tmp, r[0], r[1])); r = r[2:]
    if r: p('v_max_u32 v%d, v%d, v%d' % (tmp, tmp, r[0]))
    p('v_cmp_eq_u32 vcc, -1, v%d' % tmp)
    p('s_cbranch_vccz %s' % done)
    if POLL_SLEEP[kind]: p('s_sleep %d' % POLL_SLEEP[kind])
    p('s_cmp_eq_u32 s%d, 0' % S_SPIN)
    p('s_cbranch_scc1 %s' % done)
    p('s_sub_u32 s%d, s%d, 1' % (S_SPIN, S_SPIN))
    p('s_branch %s' % top)
    p.label(done)

def step_offsets(p, mem_add=0, want=('mem', 'p', 'z')):
    if 'mem' in want:
        p('s_add_u32 s%d, s%d, %d' % (S_T0, S_STEP, mem_add)); p('s_and_b32 s%d, s%d, %d' % (S_T0, S_T0, MEM_RING - 1))
        p('s_lshl_b32 s%d, s%d, 15' % (S_T0, S_T0)); p('s_add_u32 s%d, s%d, s%d' % (S_MEMO, S_T0, S_COMM))
        if BLK_MEM: p('s_add_u32 s%d, s%d, %d' % (S_MEMO, S_MEMO, BLK_MEM * BLK))
    if 'p' in want:
        p('s_and_b32 s%d, s%d, %d' % (S_T0, S_STEP, P_RING - 1)); p('s_mul_i32 s%d, s%d, %d' % (S_T0, S_T0, 3 * BLK))
        p('s_add_u32 s%d, s%d, s%d' % (S_PO, S_T0, S_COMM)); p('s_add_u32 s%d, s%d, %d' % (S_PO, S_PO, BLK_P * BLK))
    if 'z' in want:
        p('s_and_b32 s%d, s%d, %d' % (S_T0, S_STEP, Z_RING - 1)); p('s_mul_i32 s%d, s%d, %d' % (S_T0, S_T0, 40 * BLK))
        p('s_add_u32 s%d, s%d, s%d' % (S_ZO, S_T0, S_COMM)); p('s_add_u32 s%d, s%d, %d' % (S_ZO, S_ZO, BLK_Z * BLK))

def comm_setup(p):
    p('s_add_u32 s%d, s%d, %d' % (S_T0, S_WS, OFF_COMM))
    p('s_sub_u32 s%d, 0, s%d' % (S_T0, S_T0)); p('s_and_b32 s%d, s%d, 0x1fffff' % (S_T0, S_T0))
    p('s_add_u32 s%d, s%d, %d' % (S_COMM, S_T0, OFF_COMM + (0 if DYN_PAR else PARITY * 8192)))

def wait_flags(p, voff, foff, need_s, tmp, sleep=2):
    top = p.newlabel('Lwf'); done = p.newlabel('Lwfd')
    p('s_mov_b32 s%d, %d' % (S_T2, foff))
    p.label(top)
    p('buffer_load_dword v%d, v%d, s[%d:%d], s%d offen sc1' % (tmp, voff, S_WS, S_WS + 3, S_T2))
    p('s_waitcnt vmcnt(0)')
    p('v_cmp_gt_u32 vcc, s%d, v%d' % (need_s, tmp))
    p('s_cbranch_vccz %s' % done)
    p('s_sleep %d' % sleep)
    p('s_cmp_eq_u32 s%d, 0' % S_SPIN); p('s_cbranch_scc1 %s' % done)
    p('s_sub_u32 s%d, s%d, 1' % (S_SPIN, S_SPIN)); p('s_branch %s' % top)
    p.label(done)

def wait_flags_w0(p, voff, foff, need_s, tmp, sleep=4):
    l = p.newlabel('Lw0'); p('s_cmp_lg_u32 s%d, 0' % S_WAVE); p('s_cbranch_scc1 %s' % l)
    wait_flags(p, voff, foff, need_s, tmp, sleep)
    p.label(l)

def dbg_srd(p, s):
    p('s_mov_b32 s%d, s%d' % (s, S_DBG)); p('s_mov_b32 s%d, s%d' % (s + 1, S_DBG + 1))
    p('s_mov_b32 s%d, 256' % (s + 2)); p('s_mov_b32 s%d, 0x00020000' % (s + 3))

def parity_probe(p):
    if not DYN_PAR: return
    l = p.newlabel('Lpp'); p('s_cmp_lg_u32 s%d, 0' % S_WAVE); p('s_cbranch_scc1 %s' % l)
    p('s_cmp_lg_u32 s%d, 0' % S_IDX); p('s_cbranch_scc1 %s' % l)
    p('v_mov_b32 v16, 0'); p('v_mov_b32 v17, -1')
    p('s_mov_b32 s48, 0'); p('s_mov_b32 s49, 0')
    for i in range(4):
        for par in range(2):
            p('s_add_u32 s%d, s%d, %d' % (S_T0, S_COMM, (112 + i) * BLK + par * 8192 + i * 256))
            p('buffer_store_dword v17, v16, s[%d:%d], s%d offen sc1' % (S_WS, S_WS + 3, S_T0))
            p('s_waitcnt vmcnt(0)')
            p('s_memtime s[50:51]'); p('s_waitcnt lgkmcnt(0)')
            p('buffer_load_dword v18, v16, s[%d:%d], s%d offen sc1' % (S_WS, S_WS + 3, S_T0))
            p('s_waitcnt vmcnt(0)')
            p('s_memtime s[52:53]'); p('s_waitcnt lgkmcnt(0)')
            p('s_sub_u32 s50, s52, s50')
            if i > 0: p('s_add_u32 s%d, s%d, s50' % (48 + par, 48 + par))
    p('s_cmp_lt_u32 s49, s48'); p('s_cselect_b32 s50, 2, 1')
    dbg_srd(p, 52)
    p('v_mov_b32 v17, s50')
    p('v_cmp_eq_u32 vcc, 0, v1'); p('v_mov_b32 v18, 0x7ff00000'); p('v_cndmask_b32 v16, v18, v16, vcc')
    p('buffer_store_dword v17, v16, s[52:55], 0 offen sc1')
    p('s_waitcnt vmcnt(0)')
    p.label(l)

def parity_wait(p):
    if not DYN_PAR: return
    dbg_srd(p, 52)
    top = p.newlabel('Lpw'); done = p.newlabel('Lpwd')
    p('v_mov_b32 v16, 0')
    p.label(top)
    p('buffer_load_dword v17, v16, s[52:55], 0 offen sc1'); p('s_waitcnt vmcnt(0)')
    p('v_readfirstlane_b32 s50, v17')
    p('s_cmp_lg_u32 s50, 0'); p('s_cbranch_scc1 %s' % done)
    p('s_sleep 4')
    p('s_cmp_eq_u32 s%d, 0' % S_SPIN); p('s_cbranch_scc1 %s' % done)
    p('s_sub_u32 s%d, s%d, 1' % (S_SPIN, S_SPIN)); p('s_branch %s' % top)
    p.label(done)
    p('s_lshr_b32 s50, s50, 1'); p('s_lshl_b32 s50, s50, 13'); p('s_add_u32 s%d, s%d, s50' % (S_COMM, S_COMM))

TRV = 58
TLB_WARM = False
def tlb_warm(p, srd_s, base, nbytes, vt, vlane=1):
    if not TLB_WARM: return
    p('v_min_u32 v%d, %d, v%d' % (vt, (nbytes - 1) >> 21, vlane)); p('v_lshlrev_b32 v%d, 21, v%d' % (vt, vt))
    p('s_mov_b32 s%d, %d' % (S_T0, base))
    p('buffer_load_dword v%d, v%d, s[%d:%d], s%d offen' % (vt + 1, vt, srd_s, srd_s + 3, S_T0))

def trace(p, slot, on):
    if not on: return
    l = p.newlabel('Ltr')
    p('s_cmp_lg_u32 s%d, 0' % S_WAVE)
    p('s_cbranch_scc1 %s' % l)
    p('s_memrealtime s[%d:%d]' % (S_TR0, S_TR0 + 1))
    p('s_lshl_b32 s%d, s%d, 8' % (S_T7, S_STEP))
    p('s_add_u32 s%d, s%d, s2' % (S_T7, S_T7))
    p('s_lshl_b32 s%d, s%d, 4' % (S_T7, S_T7))
    p('s_add_u32 s%d, s%d, %d' % (S_T7, S_T7, OFF_TRACE + slot * 4))
    p('s_waitcnt lgkmcnt(0)')
    p('v_mov_b32 v%d, s%d' % (TRV, S_TR0))
    p('v_mov_b32 v%d, 0' % (TRV + 1))
    p('buffer_store_dword v%d, v%d, s[%d:%d], s%d offen' % (TRV, TRV + 1, S_WS, S_WS + 3, S_T7))
    p.label(l)

PROF = False
ALIGN = 0
def loop_align(p):
    if ALIGN: p.raw('.p2align %d' % ALIGN)
FUSED = False
PSEG = True
USE_FLAGS = True
NOBG = 0
def pf(p, k):
    if PROF: p('s_memtime s[%d:%d]' % (46 + 2 * k, 47 + 2 * k))
def pf_init(p):
    if PROF:
        for k in range(5): p('s_mov_b32 s%d, 0' % (56 + k))
        p('s_mov_b32 s68, 0'); p('s_mov_b32 s69, 0')
def pf_acc(p):
    if PROF:
        p('s_waitcnt lgkmcnt(0)')
        for k in range(4):
            p('s_sub_u32 s61, s%d, s%d' % (48 + 2 * k, 46 + 2 * k))
            p('s_add_u32 s%d, s%d, s61' % (56 + k, 56 + k))
def pf_out(p):
    if PROF:
        l = p.newlabel('Lpf')
        p('s_cmp_lg_u32 s%d, 0' % S_WAVE); p('s_cbranch_scc1 %s' % l)
        p('s_lshl_b32 s%d, s2, 6' % S_T7)
        p('s_add_u32 s%d, s%d, %d' % (S_T7, S_T7, OFF_TRACE + 524288 + 32))
        for k in range(4): p('v_mov_b32 v%d, s%d' % (20 + k, 56 + k))
        p('v_mov_b32 v7, 0')
        p('buffer_store_dwordx4 v[20:23], v7, s[%d:%d], s%d offen' % (S_WS, S_WS + 3, S_T7))
        p('v_mov_b32 v24, s68'); p('v_mov_b32 v25, s69'); p('buffer_store_dwordx2 v[24:25], v7, s[%d:%d], s%d offen offset:16' % (S_WS, S_WS + 3, S_T7))
        p.label(l)

def stamp(p, slot, on):
    if not on: return
    l = p.newlabel('Lst')
    p('s_cmp_lg_u32 s%d, 0' % S_WAVE)
    p('s_cbranch_scc1 %s' % l)
    p('s_memrealtime s[%d:%d]' % (S_TR0, S_TR0 + 1))
    p('s_memtime s[46:47]')
    p('s_lshl_b32 s%d, s2, 6' % S_T7)
    p('s_add_u32 s%d, s%d, %d' % (S_T7, S_T7, OFF_TRACE + 524288 + slot * 8))
    p('s_waitcnt lgkmcnt(0)')
    p('v_mov_b32 v16, s%d' % S_TR0)
    p('v_mov_b32 v17, s46')
    p('v_mov_b32 v7, 0')
    p('buffer_store_dwordx2 v[16:17], v7, s[%d:%d], s%d offen' % (S_WS, S_WS + 3, S_T7))
    p('s_waitcnt vmcnt(0)')
    p.label(l)

DEEP_LOAD = False
def load_weights_type1(p, jobs, stg_base_v, slot_bytes, nslots, voffs, ninstr, rowbytes, lg, vm, wres_v, tmpv, stg_s, zrows=4):
    if DEEP_LOAD and all(len(j['dests']) == ninstr for j in jobs):
        return load_weights_deep(p, jobs, stg_base_v, slot_bytes, nslots, voffs, ninstr, rowbytes, wres_v, stg_s, zrows)
    n = len(jobs)
    def issue(j):
        job = jobs[j]
        job['soff'](S_T0)
        for i in range(ninstr):
            p('s_add_u32 s%d, s%d, %d' % (S_T1, stg_s, (j % nslots) * slot_bytes + i * 1024))
            p('s_mov_b32 m0, s%d' % S_T1)
            p('buffer_load_dwordx4 v%d, s[%d:%d], s%d offen lds' % (voffs[i], job['srd'], job['srd'] + 3, S_T0))
            vm.issue(('w', j))
    depth = nslots - 1
    for j in range(min(depth, n)): issue(j)
    for j in range(n):
        vm.wait(('w', j))
        slot = (j % nslots) * slot_bytes
        pend = []
        for di, (toff, dest) in enumerate(jobs[j]['dests']):
            if dest[0] == 'reg':
                for z in range(2):
                    p('ds_read_b64_tr_b16 %s, v%d offset:%d' % (dest[1 + z], stg_base_v, slot + z * zrows * rowbytes + toff))
            else:
                t = tmpv + 4 * (len(pend) % 3)
                for z in range(2):
                    p('ds_read_b64_tr_b16 %s, v%d offset:%d' % (vr(t + 2 * z, 2), stg_base_v, slot + z * zrows * rowbytes + toff))
                pend.append((t, dest[1]))
        p('s_waitcnt lgkmcnt(0)')
        for (t, off) in pend:
            p('ds_write_b128 v%d, %s offset:%d' % (wres_v, vr(t, 4), off))
        if j + depth < n: issue(j + depth)
    p('s_waitcnt lgkmcnt(0)')

def _quad(op2):
    import re
    m = re.match(r'([va])\[(\d+):', op2); return '%s[%d:%d]' % (m.group(1), int(m.group(2)), int(m.group(2)) + 3)

DEEP_TMP = 16
def load_weights_deep(p, jobs, stg_base_v, slot_bytes, nslots, voffs, ninstr, rowbytes, wres_v, stg_s, zrows):
    n = len(jobs)
    vm = Cnt(p, 'vmcnt', 63); lg = Cnt(p, 'lgkmcnt', 15)
    raw = []; tmpi = 0
    for job in jobs:
        q = []
        for (toff, dest) in job['dests']:
            if dest[0] == 'reg': q.append(_quad(dest[1]))
            else: q.append(vr(DEEP_TMP + 4 * (tmpi % 16), 4)); tmpi += 1
        raw.append(q)
    p('v_add_u32 v127, s%d, v2' % stg_s)
    maxjobs = 60 // ninstr
    def lds_cnt(a, b): return sum(1 for j in range(a, b) for (t, d) in jobs[j]['dests'] if d[0] == 'lds')
    issued = [0]
    def issue_upto(done):
        while issued[0] < n and issued[0] - done < maxjobs and lds_cnt(done, issued[0] + 1) <= 16:
            j = issued[0]; jobs[j]['soff'](S_T0)
            for i in range(ninstr):
                p('buffer_load_dwordx4 %s, v%d, s[%d:%d], s%d offen' % (raw[j][i], voffs[i], jobs[j]['srd'], jobs[j]['srd'] + 3, S_T0)); vm.issue(('w', j))
            issued[0] += 1
    issue_upto(0)
    def wr(j):
        vm.wait(('w', j))
        for i in range(ninstr):
            p('ds_write_b128 v127, %s offset:%d' % (raw[j][i], (j % nslots) * slot_bytes + i * 1024)); lg.issue(('sw', j))
    wr(0)
    for j in range(n):
        if j + 1 < n: wr(j + 1)
        lg.wait(('sw', j))
        slot = (j % nslots) * slot_bytes
        for di, (toff, dest) in enumerate(jobs[j]['dests']):
            ops = (dest[1], dest[2]) if dest[0] == 'reg' else tuple(raw[j][di].replace(']', ']') and x for x in (_half(raw[j][di], 0), _half(raw[j][di], 1)))
            for z in range(2):
                p('ds_read_b64_tr_b16 %s, v%d offset:%d' % (ops[z], stg_base_v, slot + z * zrows * rowbytes + toff)); lg.issue(('tr', j))
        ldsd = [(di, d) for di, (t, d) in enumerate(jobs[j]['dests']) if d[0] == 'lds']
        if ldsd or nslots < 3:
            lg.wait(('tr', j))
        for di, d in ldsd:
            p('ds_write_b128 v%d, %s offset:%d' % (wres_v, raw[j][di], d[1])); lg.issue(('rw', j))
        if ldsd: lg.wait(('rw', j))
        issue_upto(j + 1)
    p('s_waitcnt lgkmcnt(0)')

def _half(q, z):
    import re
    m = re.match(r'([va])\[(\d+):', q); b = int(m.group(2)) + 2 * z
    return '%s[%d:%d]' % (m.group(1), b, b + 1)

def magic_div(p, dst, src, d, tmp_s):
    m = (1 << 20) // d + 1
    for x in range(4096): assert (x * m) >> 20 == x // d
    p('s_mov_b32 s%d, %d' % (tmp_s, m))
    p('v_mul_lo_u32 v%d, v%d, s%d' % (dst, src, tmp_s))
    p('v_lshrrev_b32 v%d, 20, v%d' % (dst, dst))

def stage_offsets(p, voffs, cpr, gstride, vlane, t1, t2):
    for i, vo in enumerate(voffs):
        p('v_add_u32 v%d, %d, v%d' % (t1, i * 64, vlane))
        magic_div(p, t2, t1, cpr, S_T0)
        p('v_mul_u32_u24 v%d, %d, v%d' % (vo, cpr, t2))
        p('v_sub_u32 v%d, v%d, v%d' % (vo, t1, vo))
        p('v_lshlrev_b32 v%d, 4, v%d' % (vo, vo))
        p('s_mov_b32 s%d, %d' % (S_T0, gstride))
        p('v_mul_lo_u32 v%d, v%d, s%d' % (t2, t2, S_T0))
        p('v_add_u32 v%d, v%d, v%d' % (vo, vo, t2))

def common_lane_setup(p):
    p('v_lshrrev_b32 v3, 6, v0')
    p('v_and_b32 v1, 63, v0')
    p('v_readfirstlane_b32 s%d, v3' % S_WAVE)
    p('v_lshlrev_b32 v2, 4, v1')
    p('s_mov_b32 s%d, %d' % (S_SPIN, SPIN_BUDGET))

def mem_gather_setup(p, memx):
    p('s_mul_i32 s%d, s%d, 3' % (S_T0, S_WAVE))
    def tmod(dst, add):
        p('s_add_u32 s%d, s%d, %d' % (dst, S_T0, add))
        p('s_sub_u32 s%d, s%d, 10' % (S_T2, dst))
        p('s_cmp_ge_u32 s%d, 10' % dst)
        p('s_cselect_b32 s%d, s%d, s%d' % (dst, S_T2, dst))
        p('s_lshl_b32 s%d, s%d, 10' % (dst, dst))
    for j in range(3):
        tmod(S_T1, j)
        p('s_add_u32 s%d, s%d, 8192' % (S_T2, S_T1)); p('s_cmp_ge_u32 s%d, 8192' % S_T1); p('s_cselect_b32 s%d, s%d, s%d' % (S_T1, S_T2, S_T1))
        p('v_add_u32 v%d, s%d, v2' % (4 + j, S_T1))
    for (vreg, tau) in ((8, 3), (9, 4), (10, 7)):
        tmod(S_T1, tau)
        p('s_add_u32 s%d, s%d, %d' % (S_T1, S_T1, memx))
        p('v_add_u32 v%d, s%d, v2' % (vreg, S_T1))
    p('v_and_b32 v3, 1, v1')
    p('v_cmp_eq_u32 vcc, 0, v3')
    p('v_mov_b32 v3, 0xeeeeeeee')
    p('v_mov_b32 v7, 0x44444444')
    p('v_cndmask_b32 v3, v3, v7, vcc')

def memfrag_addr(tau, memx_unused=None):
    if tau == 3: return (8, 0)
    if tau <= 6: return (9, (tau - 4) * 1024)
    return (10, (tau - 7) * 1024)

P0 = 40; RING = 52; WST = 64

def emit_poll_mem(p, memx, lg, pre):
    def loads():
        for j in range(3):
            p('buffer_load_dwordx4 %s, v%d, s[%d:%d], s%d offen sc1' % (vr(P0 + 4 * j, 4), 4 + j, S_WS, S_WS + 3, S_MEMO))
        return 3
    poll_loop(p, loads, range(P0, P0 + 12), 7, 'mem', pre)
    for j in range(3):
        p('ds_write_b128 v%d, %s' % (RING + j, vr(P0 + 4 * j, 4)))
        lg.issue(('mw', j))

def mem_lds_addr(p):
    for j in range(3):
        p('v_lshrrev_b32 v7, 1, v%d' % (4 + j)); p('v_and_b32 v7, 0x2000, v7')
        p('v_and_b32 v%d, 0x1fff, v%d' % (RING + j, 4 + j)); p('v_or_b32 v%d, v7, v%d' % (RING + j, RING + j))

def wst_load(p, k, wres_v, lg):
    b = WST + 8 * (k & 1)
    p('ds_read_b128 %s, v%d offset:%d' % (vr(b, 4), wres_v, k * 2048)); lg.issue(('w', k))
    p('ds_read_b128 %s, v%d offset:%d' % (vr(b + 4, 4), wres_v, k * 2048 + 1024)); lg.issue(('w', k))

def smf(p, acc, afrag, o, lg, wres_v, idxv=3, nlds=12):
    kind, n = UM[o]
    if kind == 'reg':
        p('v_smfmac_f32_16x16x64_bf16 %s, %s, %s, v%d' % (vr(acc, 4), vr(afrag, 4), unit_reg(n), idxv))
    else:
        lg.wait(('w', n))
        p('v_smfmac_f32_16x16x64_bf16 %s, %s, %s, v%d' % (vr(acc, 4), vr(afrag, 4), vr(WST + 8 * (n & 1), 8), idxv))
        if n + 2 < nlds: wst_load(p, n + 2, wres_v, lg)

def proj_phase(p, lg, ntile, acc0, obase, wres_v, extra=None):
    def frag(tau): return P0 + 4 * tau if tau < 3 else RING + 4 * ((tau - 3) % 3)
    def rd(tau):
        a, off = memfrag_addr(tau)
        p('ds_read_b128 %s, v%d offset:%d' % (vr(frag(tau), 4), a, off)); lg.issue(('m', tau))
    for tau in range(10):
        if tau == 2:
            lg.wait(('mw', 2))
            p('s_barrier')
            for t in (3, 4, 5): rd(t)
        if tau >= 3: lg.wait(('m', tau))
        for tile in range(ntile):
            smf(p, acc0 + 4 * tile, frag(tau), obase + tau * ntile + tile, lg, wres_v)
        if tau >= 3 and tau + 3 < 10: rd(tau + 3)
        if extra: extra(tau)

def half_sum(p, X, Y):
    for r in range(4): p('v_permlane32_swap_b32 v%d, v%d' % (X + r, Y + r))
    for r in range(4): p('v_add_f32 v%d, v%d, v%d' % (X + r, X + r, Y + r))

A_MEMX = 0; A_QX = 10240; A_QKB = 16384; A_WRES = 65536
def gen_A(p, trace_on=False, st=False):
    lg = Cnt(p, 'lgkmcnt', 15); vm = Cnt(p, 'vmcnt', 63)
    h = S_IDX
    srd(p, S_W1, KA['Wq'], 640 * 12288); srd(p, S_W2, KA['Wk'], 640 * 12288)
    common_lane_setup(p)
    p('s_waitcnt lgkmcnt(0)')
    mem_gather_setup(p, A_MEMX)
    p('s_mul_i32 s%d, s%d, 24576' % (S_T0, S_WAVE)); p('s_add_u32 s%d, s%d, 65536' % (S_T0, S_T0)); p('v_add_u32 v15, s%d, v2' % S_T0)
    STG = A_MEMX
    voffs = [80, 81, 82]
    stage_offsets(p, voffs, 6, 12288, 1, 83, 84)
    p('v_lshrrev_b32 v83, 4, v1'); p('v_lshlrev_b32 v83, 3, v83')
    p('v_bfe_u32 v84, v1, 2, 2'); p('v_add_u32 v83, v83, v84')
    p('v_mul_u32_u24 v83, 96, v83'); p('v_and_b32 v84, 3, v1'); p('v_lshlrev_b32 v84, 3, v84')
    p('v_add_u32 v85, v83, v84')
    p('s_lshl_b32 s%d, s%d, 14' % (S_T4, S_WAVE)); p('s_add_u32 s%d, s%d, %d' % (S_T4, S_T4, STG))
    p('v_add_u32 v85, s%d, v85' % S_T4)
    p('s_mul_i32 s%d, s%d, 384' % (S_T5, h)); p('s_mul_i32 s%d, s%d, 96' % (S_T0, S_WAVE)); p('s_add_u32 s%d, s%d, s%d' % (S_T5, S_T5, S_T0))
    p('s_mul_i32 s%d, s%d, 3' % (S_T6, S_WAVE))
    jobs = []
    for tau in range(10):
        for half in range(2):
            for mat in range(2):
                def soff(dst, tau=tau, half=half):
                    p('s_add_u32 s%d, s%d, %d' % (dst, S_T6, tau))
                    p('s_sub_u32 s%d, s%d, 10' % (S_T2, dst)); p('s_cmp_ge_u32 s%d, 10' % dst); p('s_cselect_b32 s%d, s%d, s%d' % (dst, S_T2, dst))
                    p('s_mul_i32 s%d, s%d, %d' % (dst, dst, 64 * 12288))
                    p('s_add_u32 s%d, s%d, s%d' % (dst, dst, S_T5))
                    if half: p('s_add_u32 s%d, s%d, %d' % (dst, dst, 32 * 12288))
                dests = []
                for x in range(3):
                    kind, n = UM[tau * 6 + mat * 3 + x]
                    if kind == 'reg': dests.append((x * 32, ('reg', unit_reg(n, 4 * half, 2), unit_reg(n, 4 * half + 2, 2))))
                    else: dests.append((x * 32, ('lds', n * 2048 + half * 1024)))
                jobs.append(dict(srd=S_W1 if mat == 0 else S_W2, soff=soff, dests=dests))
    load_weights_type1(p, jobs, 85, 3072, 5, voffs, 3, 96, lg, vm, 15, 88, S_T4)
    p('s_barrier')
    p('v_lshrrev_b32 v80, 5, v1'); p('v_mul_u32_u24 v80, 3072, v80')
    p('v_and_b32 v81, 3, v1'); p('v_lshlrev_b32 v81, 6, v81'); p('v_add_u32 v80, v80, v81')
    p('v_bfe_u32 v81, v1, 2, 2'); p('v_lshlrev_b32 v81, 4, v81'); p('v_add_u32 v80, v80, v81')
    p('v_bfe_u32 v81, v1, 4, 1'); p('v_lshlrev_b32 v81, 3, v81'); p('v_add_u32 v80, v80, v81')
    p('s_mul_i32 s%d, s%d, 768' % (S_T0, S_WAVE)); p('s_add_u32 s%d, s%d, %d' % (S_T0, S_T0, A_QX))
    p('v_add_u32 v11, s%d, v80' % S_T0)
    p('v_bfe_u32 v80, v1, 2, 2'); p('v_lshlrev_b32 v80, 6, v80')
    p('v_lshrrev_b32 v81, 4, v1'); p('v_lshlrev_b32 v81, 4, v81'); p('v_add_u32 v80, v80, v81')
    p('v_and_b32 v81, 1, v1'); p('v_lshlrev_b32 v81, 3, v81'); p('v_add_u32 v80, v80, v81')
    p('v_add_u32 v12, %d, v80' % A_QX)
    p('v_lshrrev_b32 v80, 5, v1'); p('v_lshlrev_b32 v80, 8, v80')
    p('v_bfe_u32 v81, v1, 4, 1'); p('v_lshlrev_b32 v81, 7, v81'); p('v_add_u32 v80, v80, v81')
    p('v_and_b32 v81, 7, v1'); p('v_lshlrev_b32 v82, 4, v81'); p('v_add_u32 v80, v80, v82')
    p('s_lshr_b32 s%d, s%d, 4' % (S_T1, h)); p('s_lshl_b32 s%d, s%d, 14' % (S_T1, S_T1)); p('s_and_b32 s%d, s%d, 15' % (S_T0, h)); p('s_lshl_b32 s%d, s%d, 9' % (S_T0, S_T0)); p('s_add_u32 s%d, s%d, s%d' % (S_T0, S_T0, S_T1))
    p('v_add_u32 v13, s%d, v80' % S_T0)
    p('v_mov_b32 v82, 0x7ff00000'); p('v_and_b32 v83, 8, v1'); p('v_cmp_eq_u32 vcc, 0, v83'); p('v_cndmask_b32 v13, v82, v13, vcc')
    p('v_lshlrev_b32 v80, 4, v1')
    p('s_lshl_b32 s%d, s%d, 7' % (S_T0, h)); p('s_add_u32 s%d, s%d, 32768' % (S_T0, S_T0)); p('v_add_u32 v14, s%d, v80' % S_T0)
    p('v_cmp_gt_u32 vcc, 8, v1'); p('v_cndmask_b32 v14, v82, v14, vcc')
    p('s_mov_b32 s%d, 0' % S_MASK); p('s_mov_b32 s%d, -1' % (S_MASK + 1))
    p('s_mov_b32 s%d, 0x%x' % (S_C, __import__('struct').unpack('<I', __import__('struct').pack('<f', 192 ** -0.5 * 1.4426950408889634))[0]))
    p('s_mov_b32 s%d, 0' % S_STEP)
    p('s_mul_i32 s%d, s%d, 24576' % (S_QKO, h)); p('s_add_u32 s%d, s%d, %d' % (S_QKO, S_QKO, OFF_QK))
    parity_wait(p)
    def qk_dma(bufsel_s):
        p('s_mov_b32 s%d, s%d' % (S_T1, S_QKO))
        for j in range(24):
            p('s_add_u32 s%d, s%d, %d' % (S_T0, bufsel_s, j * 1024))
            p('s_mov_b32 m0, s%d' % S_T0)
            p('buffer_load_dwordx4 v2, s[%d:%d], s%d offen sc1 lds' % (S_WS, S_WS + 3, S_T1))
            if j < 23: p('s_add_u32 s%d, s%d, 1024' % (S_T1, S_T1))
    def KS(jt, u): return 80 + 4 * (jt * 6 + u)
    def k_direct():
        for j in range(12):
            if j % 4 == 0: p('s_add_u32 s%d, s%d, %d' % (S_T0, S_QKO, 12288 + j * 1024))
            p('buffer_load_dwordx4 %s, v2, s[%d:%d], s%d offen offset:%d sc1' % (vr(80 + 4 * j, 4), S_WS, S_WS + 3, S_T0, (j % 4) * 1024))
    def qk_wait(add, sampled=False):
        if USE_FLAGS:
            p('s_add_u32 s%d, s%d, %d' % (S_T3, S_STEP, add))
            lok = p.newlabel('LAok')
            if sampled:
                p('v_cmp_gt_u32 vcc, s%d, v1' % S_T3); p('s_cbranch_vccz %s' % lok)
            wait_flags(p, 0, F_QK, S_T3, 7)
            p.label(lok)
    p('s_lshl_b32 s%d, s%d, %d' % (S_T0, h, FSH)); p('v_mov_b32 v0, s%d' % S_T0)
    l = p.newlabel('La')
    p('s_cmp_lg_u32 s%d, 3' % S_WAVE); p('s_cbranch_scc1 %s' % l)
    qk_wait(1)
    p('s_mov_b32 s%d, %d' % (S_T3, A_QKB)); qk_dma(S_T3)
    p.label(l)
    l = p.newlabel('La')
    p('s_cmp_lg_u32 s%d, 0' % S_WAVE); p('s_cbranch_scc1 %s' % l)
    qk_wait(1)
    k_direct()
    p.label(l)
    stamp(p, 1, st)
    pf_init(p)
    loop = p.newlabel('LAloop'); p.label(loop)
    lg.reset(); vm.reset()
    pf(p, 0)
    for r in range(16, 40): p('v_mov_b32 v%d, 0' % r)
    wst_load(p, 0, 15, lg); wst_load(p, 1, 15, lg)
    step_offsets(p, 0, ('mem', 'p')); mem_lds_addr(p)
    p('s_mov_b32 s%d, %d' % (S_T0, F_QK))
    p('buffer_load_dword v1, v0, s[%d:%d], s%d offen sc1' % (S_WS, S_WS + 3, S_T0))
    p('s_waitcnt lgkmcnt(0)'); lg.reset()
    emit_poll_mem(p, A_MEMX, lg, 'memA')
    pf(p, 1)
    trace(p, 0, trace_on)
    proj_phase(p, lg, 6, 16, 0, 15)
    for x in range(3): half_sum(p, 16 + 4 * x, 28 + 4 * x)
    for x in range(3):
        a = 16 + 4 * x
        p('v_cvt_pk_bf16_f32 v%d, v%d, v%d' % (a, a, a + 1)); p('v_cvt_pk_bf16_f32 v%d, v%d, v%d' % (a + 1, a + 2, a + 3))
        p('ds_write_b64 v11, %s offset:%d' % (vr(a, 2), x * 256))
    pf(p, 2)
    p('s_waitcnt vmcnt(0) lgkmcnt(0)'); lg.reset()
    p('s_barrier')
    pf(p, 3)
    trace(p, 1, trace_on)
    lw = p.newlabel('LAw'); lend = p.newlabel('LAe'); lw3 = p.newlabel('LAw3')
    QF = 16; KM = 40; SA = 64
    def scores(kind):
        lg.reset()
        if kind == 'mem':
            for u in range(6):
                for z in range(2):
                    p('ds_read_b64_tr_b16 %s, v12 offset:%d' % (vr(QF + 4 * u + 2 * z, 2), (2 * u + z) * 256)); lg.issue(('q', u))
        else:
            p('s_and_b32 s%d, s%d, 1' % (S_T0, S_STEP)); p('s_mul_i32 s%d, s%d, 24576' % (S_T0, S_T0)); p('s_add_u32 s%d, s%d, %d' % (S_T0, S_T0, A_QKB))
            p('v_add_u32 v7, s%d, v2' % S_T0)
            p('s_sub_u32 s%d, s%d, 1' % (S_T1, S_WAVE)); p('s_mul_i32 s%d, s%d, 6144' % (S_T1, S_T1)); p('v_add_u32 v76, s%d, v7' % S_T1)
            for u in range(6):
                p('ds_read_b128 %s, v76 offset:%d' % (vr(QF + 4 * u, 4), u * 1024)); lg.issue(('q', u))
                for jt in range(2):
                    p('ds_read_b128 %s, v7 offset:%d' % (vr(KS(jt, u), 4), 12288 + jt * 6144 + u * 1024)); lg.issue(('q', u))
        for u in range(6):
            lg.wait(('q', u))
            for jt in range(2):
                p('v_mfma_f32_16x16x32_bf16 %s, %s, %s, %s' % (vr(SA + 4 * jt, 4), vr(KS(jt, u), 4), vr(QF + 4 * u, 4), '0' if u == 0 else vr(SA + 4 * jt, 4)))
            if u == 0:
                for uu in range(6):
                    for z in range(2):
                        p('ds_read_b64_tr_b16 %s, v12 offset:%d' % (vr(KM + 4 * uu + 2 * z, 2), 3072 + (2 * uu + z) * 256)); lg.issue(('km', uu))
        SM = 72
        for u in range(6):
            lg.wait(('km', u))
            p('v_mfma_f32_16x16x32_bf16 %s, %s, %s, %s' % (vr(SM, 4), vr(KM + 4 * u, 4), vr(QF + 4 * u, 4), '0' if u == 0 else vr(SM, 4)))
        vals = list(range(SA, SA + 8)) + list(range(SM, SM + 4))
        p('v_mov_b32 v40, 0xff800000')
        if kind == 'seg':
            p('v_lshrrev_b32 v41, 4, v2'); p('v_and_b32 v42, 15, v41'); p('v_lshrrev_b32 v41, 4, v41'); p('v_lshlrev_b32 v41, 2, v41'); p('v_sub_u32 v41, v42, v41')
            p('s_sub_u32 s%d, s%d, 1' % (S_T1, S_WAVE)); p('s_lshl_b32 s%d, s%d, 4' % (S_T1, S_T1)); p('v_add_u32 v41, s%d, v41' % S_T1)
            for jt in range(2):
                for r in range(4):
                    p('v_cmp_le_i32 vcc, %d, v41' % (16 * jt + r))
                    p('v_cndmask_b32 v%d, v40, v%d, vcc' % (SA + 4 * jt + r, SA + 4 * jt + r))
        for r in range(4): p('v_cndmask_b32 v%d, v%d, v40, s[%d:%d]' % (SM + r, SM + r, S_MASK, S_MASK + 1))
        p('v_max3_f32 v17, v%d, v%d, v%d' % tuple(vals[0:3]))
        for i in range(3, 11, 2): p('v_max3_f32 v17, v17, v%d, v%d' % (vals[i], vals[i + 1]))
        p('v_max_f32 v17, v17, v%d' % vals[11])
        p('v_mov_b32 v18, v17'); p('v_permlane16_swap_b32 v17, v18'); p('v_max_f32 v17, v17, v18')
        p('v_mov_b32 v18, v17'); p('v_permlane32_swap_b32 v17, v18'); p('v_max_f32 v17, v17, v18')
        p('v_mul_f32 v17, s%d, v17' % S_C)
        for v in vals: p('v_fma_f32 v%d, v%d, s%d, -v17' % (v, v, S_C))
        for v in vals: p('v_exp_f32 v%d, v%d' % (v, v))
        p('v_add_f32 v18, v%d, v%d' % (vals[0], vals[1])); p('v_add_f32 v19, v%d, v%d' % (vals[2], vals[3]))
        for i in range(4, 12, 2):
            p('v_add_f32 v18, v18, v%d' % vals[i]); p('v_add_f32 v19, v19, v%d' % vals[i + 1])
        p('v_add_f32 v18, v18, v19')
        p('v_mov_b32 v19, v18'); p('v_permlane16_swap_b32 v18, v19'); p('v_add_f32 v18, v18, v19')
        p('v_mov_b32 v19, v18'); p('v_permlane32_swap_b32 v18, v19'); p('v_add_f32 v18, v18, v19')
        p('v_rcp_f32 v18, v18')
        for v in vals: p('v_mul_f32 v%d, v%d, v18' % (v, v))
        W = 20
        if kind == 'mem':
            p('v_cvt_pk_bf16_f32 v%d, v%d, v%d' % (W + 0, SA + 0, SA + 1)); p('v_cvt_pk_bf16_f32 v%d, v%d, v%d' % (W + 2, SA + 2, SA + 3))
            p('v_cvt_pk_bf16_f32 v%d, v%d, v%d' % (W + 1, SA + 4, SA + 5)); p('v_cvt_pk_bf16_f32 v%d, v%d, v%d' % (W + 3, SA + 6, SA + 7))
            p('v_cvt_pk_bf16_f32 v%d, v%d, v%d' % (W + 4, SM + 0, SM + 1)); p('v_cvt_pk_bf16_f32 v%d, v%d, v%d' % (W + 6, SM + 2, SM + 3))
            p('v_permlane16_swap_b32 v%d, v%d' % (W + 0, W + 2)); p('v_permlane16_swap_b32 v%d, v%d' % (W + 1, W + 3))
            p('buffer_store_dwordx4 %s, v13, s[%d:%d], s%d offen sc1' % (vr(W, 4), S_WS, S_WS + 3, S_PO))
            p('v_mov_b32 v%d, v%d' % (W + 5, W + 4)); p('v_mov_b32 v%d, v%d' % (W + 7, W + 6))
            p('v_permlane16_swap_b32 v%d, v%d' % (W + 4, W + 5)); p('v_permlane16_swap_b32 v%d, v%d' % (W + 6, W + 7))
            p('buffer_store_dwordx4 %s, v14, s[%d:%d], s%d offen sc1' % (vr(W + 4, 4), S_WS, S_WS + 3, S_PO))
        else:
            for k in range(4): p('v_cvt_pk_bf16_f32 v%d, v%d, v%d' % (W + k, SA + 2 * k, SA + 2 * k + 1))
            p('v_cvt_pk_bf16_f32 v%d, v%d, v%d' % (W + 4, SM + 0, SM + 1)); p('v_cvt_pk_bf16_f32 v%d, v%d, v%d' % (W + 5, SM + 2, SM + 3))
            p('s_mul_i32 s%d, s%d, 81920' % (S_T0, S_STEP)); p('s_sub_u32 s%d, s%d, 1' % (S_T1, S_WAVE)); p('s_lshl_b32 s%d, s%d, 15' % (S_T2, S_T1))
            p('s_add_u32 s%d, s%d, s%d' % (S_T2, S_T2, S_T0)); p('s_lshl_b32 s%d, s%d, 10' % (S_T3, h)); p('s_add_u32 s%d, s%d, s%d' % (S_T2, S_T2, S_T3)); p('s_add_u32 s%d, s%d, %d' % (S_T2, S_T2, OFF_PS))
            p('buffer_store_dwordx4 %s, v2, s[%d:%d], s%d offen sc1' % (vr(W, 4), S_WS, S_WS + 3, S_T2))
            p('v_mov_b32 v%d, v%d' % (W + 6, W + 4)); p('v_mov_b32 v%d, v%d' % (W + 7, W + 5))
            p('v_permlane16_swap_b32 v%d, v%d' % (W + 4, W + 6)); p('v_permlane16_swap_b32 v%d, v%d' % (W + 5, W + 7))
            p('s_lshl_b32 s%d, s%d, 13' % (S_T1, S_T1)); p('s_add_u32 s%d, s%d, s%d' % (S_T0, S_T0, S_T1)); p('s_lshl_b32 s%d, s%d, 8' % (S_T3, h)); p('s_add_u32 s%d, s%d, s%d' % (S_T0, S_T0, S_T3))
            p('s_add_u32 s%d, s%d, %d' % (S_T0, S_T0, OFF_PS + 65536))
            p('v_mov_b32 v42, 0x7ff00000'); p('v_cmp_gt_u32 vcc, 256, v2'); p('v_cndmask_b32 v42, v42, v2, vcc')
            p('buffer_store_dwordx4 %s, v42, s[%d:%d], s%d offen sc1' % (vr(W + 4, 4), S_WS, S_WS + 3, S_T0))
    p('s_cmp_lg_u32 s%d, 0' % S_WAVE); p('s_cbranch_scc1 %s' % lw)
    scores('mem')
    pf(p, 4)
    pf_acc(p)
    trace(p, 2, trace_on)
    p('s_barrier')
    p('s_cmp_ge_u32 s%d, 63' % S_STEP); p('s_cbranch_scc1 %s' % lend)
    p('s_add_u32 s%d, s%d, %d' % (S_QKO, S_QKO, 32 * 24576))
    qk_wait(2, True)
    if not NOBG & 1: k_direct()
    p('s_branch %s' % lend)
    p.label(lw)
    p('s_cmp_eq_u32 s%d, 3' % S_WAVE); p('s_cbranch_scc1 %s' % lw3)
    if PSEG: scores('seg')
    p('s_barrier')
    p('s_branch %s' % lend)
    p.label(lw3)
    p('s_add_u32 s%d, s%d, %d' % (S_T0, S_STEP, P_RING - 1)); p('s_and_b32 s%d, s%d, %d' % (S_T0, S_T0, P_RING - 1)); p('s_mul_i32 s%d, s%d, %d' % (S_T0, S_T0, 3 * BLK))
    p('s_add_u32 s%d, s%d, s%d' % (S_T0, S_T0, S_COMM)); p('s_add_u32 s%d, s%d, %d' % (S_T0, S_T0, BLK_P * BLK))
    for r in range(16, 20): p('v_mov_b32 v%d, -1' % r)
    p('buffer_store_dwordx4 v[16:19], v13, s[%d:%d], s%d offen sc1' % (S_WS, S_WS + 3, S_T0))
    p('buffer_store_dwordx4 v[16:19], v14, s[%d:%d], s%d offen sc1' % (S_WS, S_WS + 3, S_T0))
    def fp_flag():
        p('v_mov_b32 v20, 0x7ff00000'); p('v_cmp_eq_u32 vcc, 0, v2'); p('v_cndmask_b32 v20, v20, v0, vcc')
        p('v_mov_b32 v21, s%d' % S_STEP); p('s_mov_b32 s%d, %d' % (S_T0, F_P))
        p('buffer_store_dword v21, v20, s[%d:%d], s%d offen sc1' % (S_WS, S_WS + 3, S_T0))
    fp_flag()
    p('s_barrier')
    p('s_cmp_ge_u32 s%d, 63' % S_STEP); p('s_cbranch_scc1 %s' % lend)
    p('s_add_u32 s%d, s%d, %d' % (S_QKO, S_QKO, 32 * 24576))
    qk_wait(2, True)
    p('s_add_u32 s%d, s%d, 1' % (S_T3, S_STEP)); p('s_and_b32 s%d, s%d, 1' % (S_T3, S_T3)); p('s_mul_i32 s%d, s%d, 24576' % (S_T3, S_T3)); p('s_add_u32 s%d, s%d, %d' % (S_T3, S_T3, A_QKB))
    if not NOBG & 2: qk_dma(S_T3)
    p.label(lend)
    p('s_add_u32 s%d, s%d, 1' % (S_STEP, S_STEP)); p('s_cmp_lt_u32 s%d, s%d' % (S_STEP, S_NST)); p('s_cbranch_scc1 %s' % loop)
    p('s_waitcnt vmcnt(0)'); p('s_barrier')
    l = p.newlabel('LAfin'); p('s_cmp_lg_u32 s%d, 3' % S_WAVE); p('s_cbranch_scc1 %s' % l)
    fp_flag()
    p.label(l)

B_MEMX = 0; B_VX = 10240; B_WRES = 65536
def gen_B(p, trace_on=False, st=False):
    lg = Cnt(p, 'lgkmcnt', 15); vm = Cnt(p, 'vmcnt', 63)
    h = S_IDX
    srd(p, S_W1, KA['Wv'], 640 * 12288); srd(p, S_W2, KA['Wo'], 32 * 192 * 1280)
    common_lane_setup(p)
    p('s_waitcnt lgkmcnt(0)')
    mem_gather_setup(p, B_MEMX)
    p('s_mul_i32 s%d, s%d, 24576' % (S_T0, S_WAVE)); p('s_add_u32 s%d, s%d, 65536' % (S_T0, S_T0)); p('v_add_u32 v15, s%d, v2' % S_T0)
    STG = B_MEMX
    p('s_lshl_b32 s%d, s%d, 14' % (S_T4, S_WAVE)); p('s_add_u32 s%d, s%d, %d' % (S_T4, S_T4, STG))
    voffs = [80, 81, 82]
    stage_offsets(p, voffs, 6, 12288, 1, 83, 84)
    p('v_lshrrev_b32 v83, 4, v1'); p('v_lshlrev_b32 v83, 3, v83'); p('v_bfe_u32 v84, v1, 2, 2'); p('v_add_u32 v83, v83, v84')
    p('v_and_b32 v84, 3, v1'); p('v_lshlrev_b32 v84, 3, v84')
    p('v_mul_u32_u24 v85, 96, v83'); p('v_add_u32 v85, v85, v84'); p('v_add_u32 v85, s%d, v85' % S_T4)
    p('v_mul_u32_u24 v86, 160, v83'); p('v_add_u32 v86, v86, v84'); p('v_add_u32 v86, s%d, v86' % S_T4)
    p('s_mul_i32 s%d, s%d, 384' % (S_T5, h)); p('s_mul_i32 s%d, s%d, 96' % (S_T0, S_WAVE)); p('s_add_u32 s%d, s%d, s%d' % (S_T5, S_T5, S_T0))
    p('s_mul_i32 s%d, s%d, 3' % (S_T6, S_WAVE))
    jobs = []
    for tau in range(10):
        for half in range(2):
            def soff(dst, tau=tau, half=half):
                p('s_add_u32 s%d, s%d, %d' % (dst, S_T6, tau))
                p('s_sub_u32 s%d, s%d, 10' % (S_T2, dst)); p('s_cmp_ge_u32 s%d, 10' % dst); p('s_cselect_b32 s%d, s%d, s%d' % (dst, S_T2, dst))
                p('s_mul_i32 s%d, s%d, %d' % (dst, dst, 64 * 12288))
                p('s_add_u32 s%d, s%d, s%d' % (dst, dst, S_T5))
                if half: p('s_add_u32 s%d, s%d, %d' % (dst, dst, 32 * 12288))
            dests = []
            for x in range(3):
                kind, n = UM[tau * 3 + x]
                if kind == 'reg': dests.append((x * 32, ('reg', unit_reg(n, 4 * half, 2), unit_reg(n, 4 * half + 2, 2))))
                else: dests.append((x * 32, ('lds', n * 2048 + half * 1024)))
            jobs.append(dict(srd=S_W1, soff=soff, dests=dests))
    load_weights_type1(p, jobs, 85, 3072, 5, voffs, 3, 96, lg, vm, 15, 88, S_T4)
    voffs = [100, 101, 102, 103, 104]
    stage_offsets(p, voffs, 10, 1280, 1, 83, 84)
    p('s_mul_i32 s%d, s%d, %d' % (S_T5, h, 192 * 1280)); p('s_mul_i32 s%d, s%d, 320' % (S_T0, S_WAVE)); p('s_add_u32 s%d, s%d, s%d' % (S_T5, S_T5, S_T0))
    jobs = []
    for u in range(6):
        for ch in range(2):
            def soff(dst, u=u, ch=ch): p('s_add_u32 s%d, s%d, %d' % (dst, S_T5, u * 32 * 1280 + ch * 160))
            dests = []
            for x in range(5):
                cc = ch * 5 + x
                kind, n = UM[30 + cc * 3 + (u >> 1)]
                half = u & 1
                if kind == 'reg': dests.append((x * 32, ('reg', unit_reg(n, 4 * half, 2), unit_reg(n, 4 * half + 2, 2))))
                else: dests.append((x * 32, ('lds', n * 2048 + half * 1024)))
            jobs.append(dict(srd=S_W2, soff=soff, dests=dests))
    load_weights_type1(p, jobs, 86, 5120, 3, voffs, 5, 160, lg, vm, 15, 88, S_T4)
    p('s_barrier')
    p('v_bfe_u32 v80, v1, 3, 1'); p('v_lshlrev_b32 v80, 9, v80')
    p('v_bfe_u32 v81, v1, 2, 1'); p('v_lshlrev_b32 v81, 6, v81'); p('v_add_u32 v80, v80, v81')
    p('v_and_b32 v81, 1, v1'); p('v_lshlrev_b32 v81, 5, v81'); p('v_add_u32 v80, v80, v81')
    p('v_bfe_u32 v81, v1, 1, 1'); p('v_lshlrev_b32 v81, 4, v81'); p('v_add_u32 v80, v80, v81')
    p('v_bfe_u32 v81, v1, 4, 1'); p('v_lshlrev_b32 v81, 3, v81'); p('v_add_u32 v80, v80, v81')
    def tile_off(dstv, tv):
        p('v_lshrrev_b32 v82, 2, v%d' % tv); p('v_lshlrev_b32 v82, 10, v82')
        p('v_and_b32 v83, 3, v%d' % tv); p('v_lshlrev_b32 v83, 7, v83')
        p('v_add3_u32 v%d, v80, v82, v83' % dstv); p('v_add_u32 v%d, %d, v%d' % (dstv, B_VX, dstv))
    p('s_mul_i32 s%d, s%d, 3' % (S_T0, S_WAVE))
    p('v_lshrrev_b32 v84, 5, v1'); p('v_add_u32 v84, s%d, v84' % S_T0); tile_off(11, 84)
    p('v_mov_b32 v84, s%d' % S_T0); p('v_add_u32 v84, 2, v84'); tile_off(12, 84)
    p('v_lshrrev_b32 v80, 4, v1'); p('v_lshlrev_b32 v80, 7, v80')
    p('v_bfe_u32 v81, v1, 2, 2'); p('v_lshlrev_b32 v81, 5, v81'); p('v_add_u32 v80, v80, v81')
    p('v_and_b32 v81, 3, v1'); p('v_lshlrev_b32 v81, 3, v81'); p('v_add_u32 v80, v80, v81')
    p('v_add_u32 v13, %d, v80' % B_VX)
    p('v_lshrrev_b32 v80, 5, v1'); p('v_bfe_u32 v81, v1, 4, 1'); p('v_lshlrev_b32 v81, 1, v81'); p('v_add_u32 v80, v80, v81')
    p('s_mul_i32 s%d, s%d, 10' % (S_T0, S_WAVE)); p('v_add_u32 v80, s%d, v80' % S_T0); p('v_lshlrev_b32 v80, 14, v80')
    p('v_and_b32 v81, 15, v1'); p('v_lshlrev_b32 v81, 4, v81'); p('v_add_u32 v80, v80, v81')
    p('s_lshl_b32 s%d, s%d, 8' % (S_T0, h)); p('v_add_u32 v14, s%d, v80' % S_T0)
    p('v_lshrrev_b32 v80, 5, v1'); p('s_mul_i32 s%d, s%d, 10' % (S_T1, S_WAVE)); p('s_add_u32 s%d, s%d, 8' % (S_T1, S_T1)); p('v_add_u32 v80, s%d, v80' % S_T1); p('v_lshlrev_b32 v80, 14, v80')
    p('v_add_u32 v80, v80, v81'); p('v_add_u32 v120, s%d, v80' % S_T0)
    p('v_mov_b32 v82, 0x7ff00000'); p('v_and_b32 v83, 16, v1'); p('v_cmp_eq_u32 vcc, 0, v83'); p('v_cndmask_b32 v120, v82, v120, vcc')
    p('s_mov_b32 s%d, 0' % S_STEP)
    parity_wait(p)
    ACC1 = 16; VF = 28; ACC2 = 80
    stamp(p, 1, st)
    pf_init(p)
    loop = p.newlabel('LBloop'); p.label(loop)
    lg.reset(); vm.reset()
    pf(p, 0)
    for r in range(ACC1, ACC1 + 12): p('v_mov_b32 v%d, 0' % r)
    for r in range(ACC2, ACC2 + 40): p('v_mov_b32 v%d, 0' % r)
    wst_load(p, 0, 15, lg); wst_load(p, 1, 15, lg)
    step_offsets(p, 0, ('mem', 'z')); mem_lds_addr(p)
    p('s_waitcnt lgkmcnt(0)'); lg.reset()
    emit_poll_mem(p, B_MEMX, lg, 'memB')
    pf(p, 1)
    trace(p, 0, trace_on)
    proj_phase(p, lg, 3, ACC1, 0, 15)
    half_sum(p, 16, 20)
    for r in range(4): p('v_mov_b32 v%d, v%d' % (28 + r, 24 + r))
    half_sum(p, 24, 28)
    for a, addr in ((16, 11), (24, 12)):
        p('v_cvt_pk_bf16_f32 v%d, v%d, v%d' % (a, a, a + 1)); p('v_cvt_pk_bf16_f32 v%d, v%d, v%d' % (a + 1, a + 2, a + 3))
        p('ds_write_b64 v%d, %s' % (addr, vr(a, 2))); lg.issue('vx')
    pf(p, 2)
    p('s_waitcnt vmcnt(0)')
    lg.wait('vx')
    p('s_barrier')
    pf(p, 3)
    VFR = 40
    for t in range(3):
        for z in range(2):
            p('ds_read_b64_tr_b16 %s, v13 offset:%d' % (vr(VFR + 4 * t + 2 * z, 2), t * 1024 + z * 512)); lg.issue(('vf', t))
    def hs(pair):
        a = ACC2 + 8 * pair
        half_sum(p, a, a + 4)
        p('v_cvt_pk_bf16_f32 v%d, v%d, v%d' % (a, a, a + 1)); p('v_cvt_pk_bf16_f32 v%d, v%d, v%d' % (a + 1, a + 2, a + 3))
    def fin4(grp):
        a = ACC2 + 16 * grp; b = a + 8
        p('v_mov_b32 v%d, v%d' % (a + 2, b)); p('v_mov_b32 v%d, v%d' % (a + 3, b + 1))
        p('v_permlane16_swap_b32 v%d, v%d' % (a, a + 2)); p('v_permlane16_swap_b32 v%d, v%d' % (a + 1, a + 3))
        p('s_add_u32 s%d, s%d, %d' % (S_T0, S_ZO, grp * 4 * BLK))
        p('buffer_store_dwordx4 %s, v14, s[%d:%d], s%d offen sc1' % (vr(a, 4), S_WS, S_WS + 3, S_T0))
    def fin_last():
        a = ACC2 + 32
        p('v_mov_b32 v%d, v%d' % (a + 2, a)); p('v_mov_b32 v%d, v%d' % (a + 3, a + 1))
        p('v_permlane16_swap_b32 v%d, v%d' % (a, a + 2)); p('v_permlane16_swap_b32 v%d, v%d' % (a + 1, a + 3))
        p('buffer_store_dwordx4 %s, v120, s[%d:%d], s%d offen sc1' % (vr(a, 4), S_WS, S_WS + 3, S_ZO))
    for cc in range(10):
        for t in range(3):
            if cc == 0: lg.wait(('vf', t))
            smf(p, ACC2 + 4 * cc, VFR + 4 * t, 30 + cc * 3 + t, lg, 15)
        if cc >= 3 and cc % 2 == 1:
            pr = (cc - 3) // 2
            hs(pr)
            if pr % 2 == 1: fin4(pr // 2)
    hs(4); fin_last()
    p('s_barrier')
    pf(p, 4)
    pf_acc(p)
    trace(p, 2, trace_on)
    p('s_add_u32 s%d, s%d, 1' % (S_STEP, S_STEP)); p('s_cmp_lt_u32 s%d, s%d' % (S_STEP, S_NST)); p('s_cbranch_scc1 %s' % loop)

R_RED = 0; R_RED2 = 4096
SEGROWS = True
def gen_R(p, trace_on=False, st=False):
    c = S_IDX
    srd(p, S_W1, KA['x'], 2048 * 1280)
    common_lane_setup(p)
    p('s_waitcnt lgkmcnt(0)')
    p('v_and_b32 v3, 8, v1'); p('v_cmp_eq_u32 vcc, 0, v3'); p('v_mov_b32 v3, 0xeeeeeeee'); p('v_mov_b32 v7, 0x44444444'); p('v_cndmask_b32 v3, v3, v7, vcc')
    p('s_lshr_b32 s%d, s%d, 1' % (S_T1, S_WAVE)); p('s_lshl_b32 s%d, s%d, 14' % (S_T1, S_T1)); p('s_and_b32 s%d, s%d, 1' % (S_T0, S_WAVE)); p('s_lshl_b32 s%d, s%d, 12' % (S_T0, S_T0))
    p('s_add_u32 s%d, s%d, s%d' % (S_T0, S_T0, S_T1)); p('v_add_u32 v4, s%d, v2' % S_T0)
    p('v_lshrrev_b32 v8, 4, v1'); p('v_lshlrev_b32 v8, 8, v8'); p('v_and_b32 v9, 7, v1'); p('v_lshlrev_b32 v9, 4, v9'); p('v_add_u32 v8, v8, v9')
    p('v_bfe_u32 v9, v1, 3, 1'); p('v_lshlrev_b32 v9, 3, v9'); p('v_add_u32 v8, v8, v9')
    p('s_lshl_b32 s%d, s%d, 10' % (S_T0, S_WAVE)); p('s_add_u32 s%d, s%d, 32768' % (S_T0, S_T0)); p('v_add_u32 v5, s%d, v8' % S_T0)
    p('s_lshl_b32 s%d, s%d, 14' % (S_T0, c)); p('s_lshl_b32 s%d, s%d, 11' % (S_T1, S_WAVE)); p('s_add_u32 s%d, s%d, s%d' % (S_T0, S_T0, S_T1)); p('v_add_u32 v6, s%d, v2' % S_T0)
    p('s_lshl_b32 s%d, s%d, 15' % (S_T0, c)); p('s_lshl_b32 s%d, s%d, 13' % (S_T1, S_WAVE)); p('s_add_u32 s%d, s%d, s%d' % (S_T0, S_T0, S_T1)); p('v_add_u32 v10, s%d, v2' % S_T0)
    p('v_bfe_u32 v8, v1, 1, 1'); p('v_lshlrev_b32 v8, 8, v8')
    p('v_bfe_u32 v9, v1, 4, 1'); p('v_lshlrev_b32 v9, 7, v9'); p('v_add_u32 v8, v8, v9')
    p('v_lshrrev_b32 v9, 5, v1'); p('v_lshlrev_b32 v9, 5, v9'); p('v_add_u32 v8, v8, v9')
    p('v_bfe_u32 v9, v1, 2, 2'); p('v_lshlrev_b32 v9, 3, v9'); p('v_add_u32 v8, v8, v9')
    p('v_and_b32 v9, 1, v1'); p('v_lshlrev_b32 v9, 2, v9'); p('v_add_u32 v8, v8, v9')
    p('s_lshl_b32 s%d, s%d, 9' % (S_T0, S_WAVE)); p('v_add_u32 v11, s%d, v8' % S_T0)
    p('v_lshlrev_b32 v12, 3, v1'); p('v_lshlrev_b32 v13, 2, v1'); p('s_lshl_b32 s%d, s%d, 8' % (S_T0, c))
    p('s_add_u32 s%d, s%d, 8192' % (S_T1, S_T0)); p('s_cmp_ge_u32 s%d, 32' % c); p('s_cselect_b32 s%d, s%d, s%d' % (S_T0, S_T1, S_T0))
    p('v_add_u32 v13, s%d, v13' % S_T0)
    p('v_lshlrev_b32 v14, 2, v1'); p('s_lshl_b32 s%d, s%d, 8' % (S_T0, c)); p('v_add_u32 v14, s%d, v14' % S_T0)
    p('v_mov_b32 v8, 0x7ff00000'); p('v_and_b32 v9, 3, v1'); p('v_cmp_eq_u32 vcc, 0, v9'); p('v_cndmask_b32 v13, v8, v13, vcc')
    p('s_lshl_b32 s%d, s%d, 11' % (S_T0, S_WAVE)); p('s_add_u32 s%d, s%d, %d' % (S_T0, S_T0, R_RED2)); p('v_add_u32 v15, s%d, v2' % S_T0)
    p('v_and_b32 v8, 15, v1'); p('s_and_b32 s%d, s%d, 1' % (S_T0, S_WAVE)); p('s_lshl_b32 s%d, s%d, 4' % (S_T0, S_T0)); p('v_add_u32 v8, s%d, v8' % S_T0); p('v_mul_u32_u24 v8, 1280, v8')
    p('v_lshrrev_b32 v9, 4, v1'); p('v_lshlrev_b32 v9, 3, v9'); p('s_lshl_b32 s%d, s%d, 5' % (S_T0, c)); p('v_add_u32 v9, s%d, v9' % S_T0)
    p('v_add_u32 v28, v8, v9')
    p('s_and_b32 s%d, s%d, 1' % (S_T0, S_WAVE)); p('s_lshl_b32 s%d, s%d, 10' % (S_T0, S_T0)); p('s_add_u32 s%d, s%d, %d' % (S_T0, S_T0, R_RED2)); p('v_add_u32 v29, s%d, v2' % S_T0)
    p('s_mov_b32 s%d, %d' % (S_T0, OFF_MOD + 2 * 1280))
    p('buffer_load_dwordx2 v[30:31], v9, s[%d:%d], s%d offen' % (S_WS, S_WS + 3, S_T0))
    p('s_waitcnt vmcnt(0)')
    p('v_lshlrev_b32 v24, 16, v30'); p('v_and_b32 v25, 0xffff0000, v30'); p('v_lshlrev_b32 v26, 16, v31'); p('v_and_b32 v27, 0xffff0000, v31')
    p('s_lshl_b32 s%d, s%d, %d' % (S_T0, c, FSH)); p('v_mov_b32 v30, s%d' % S_T0); p('v_mov_b32 v8, 0x7ff00000'); p('v_cmp_eq_u32 vcc, 0, v1'); p('v_cndmask_b32 v30, v8, v30, vcc')
    p('v_and_b32 v0, 31, v1'); p('v_lshlrev_b32 v0, %d, v0' % FSH)
    p('s_mov_b32 s%d, 0' % S_MASK); p('s_mov_b32 s%d, -1' % (S_MASK + 1))
    p('s_mov_b32 s%d, 0' % S_STEP)
    p('s_mov_b32 s%d, %d' % (S_VOO, OFF_VO))
    ZB = 64; PA = 72; PM = 88; ACC = 16; SENT = 96; PF = 128
    def VOa(k, j, n=4): return ar(40 * k + 4 * j, n)
    def Za(k, a): return ar(40 * k + 32 + 4 * a, 4)
    def vo_load(k):
        for j in range(8):
            if j == 4: p('s_add_u32 s%d, s%d, 4096' % (S_T0, S_VOO))
            p('buffer_load_dwordx4 %s, v10, s[%d:%d], s%d offen offset:%d sc1' % (VOa(k, j), S_WS, S_WS + 3, S_VOO if j < 4 else S_T0, (j % 4) * 1024))
    def vo_wait(add):
        if USE_FLAGS:
            p('s_add_u32 s%d, s%d, %d' % (S_T3, S_STEP, add)); wait_flags(p, 0, F_VO, S_T3, 7)
    S_SG = S_T6
    def seg_issue(wait):
        if wait and USE_FLAGS:
            p('s_add_u32 s%d, s%d, 1' % (S_T3, S_SG)); wait_flags(p, 0, F_P, S_T3, 7)
        p('s_mul_i32 s%d, s%d, 81920' % (S_T4, S_SG)); p('s_add_u32 s%d, s%d, %d' % (S_T4, S_T4, OFF_PS))
        for tau in range(2):
            p('s_lshl_b32 s%d, s%d, 13' % (S_T0, S_WAVE)); p('s_add_u32 s%d, s%d, s%d' % (S_T0, S_T0, S_T4)); p('s_add_u32 s%d, s%d, %d' % (S_T0, S_T0, tau * 32768))
            for j in range(8):
                if j == 4: p('s_add_u32 s%d, s%d, 4096' % (S_T0, S_T0))
                p('buffer_load_dwordx4 %s, v2, s[%d:%d], s%d offen offset:%d sc1' % (vr(PF + 40 * tau + 4 * j, 4), S_WS, S_WS + 3, S_T0, (j % 4) * 1024))
            p('s_lshl_b32 s%d, s%d, 11' % (S_T0, S_WAVE)); p('s_add_u32 s%d, s%d, s%d' % (S_T0, S_T0, S_T4)); p('s_add_u32 s%d, s%d, %d' % (S_T0, S_T0, 65536 + tau * 8192))
            for a in range(2):
                p('buffer_load_dwordx4 %s, v2, s[%d:%d], s%d offen offset:%d sc1' % (vr(PF + 40 * tau + 32 + 4 * a, 4), S_WS, S_WS + 3, S_T0, a * 1024))
        p('s_mul_i32 s%d, s%d, %d' % (S_T5, S_SG, 32 * 1280))
        p('buffer_load_dwordx2 v[100:101], v28, s[%d:%d], s%d offen' % (S_W1, S_W1 + 3, S_T5))
    def seg_compute(k, after):
        for tau in range(2):
            p('s_waitcnt vmcnt(%d)' % ((11 if tau == 0 else 1) + after))
            a = 104 + 4 * tau
            for j in range(8):
                p('v_mfma_f32_16x16x32_bf16 %s, %s, %s, %s' % (vr(a, 4), VOa(k, j), vr(PF + 40 * tau + 4 * j, 4), '0' if j == 0 else vr(a, 4)))
            for aa in range(2):
                p('v_mfma_f32_16x16x32_bf16 %s, %s, %s, %s' % (vr(a, 4), Za(k, aa), vr(PF + 40 * tau + 32 + 4 * aa, 4), vr(a, 4)))
        p('ds_write_b128 v15, v[104:107]'); p('ds_write_b128 v15, v[108:111] offset:1024')
        p('s_waitcnt lgkmcnt(0)'); p('s_barrier')
        l = p.newlabel('LRs'); p('s_cmp_ge_u32 s%d, 2' % S_WAVE); p('s_cbranch_scc1 %s' % l)
        for w in range(4): p('ds_read_b128 %s, v29 offset:%d' % (vr(104 + 4 * w, 4), w * 2048))
        p('s_waitcnt vmcnt(%d) lgkmcnt(0)' % after)
        for r in range(4):
            p('v_add_f32 v%d, v%d, v%d' % (104 + r, 104 + r, 108 + r)); p('v_add_f32 v%d, v%d, v%d' % (112 + r, 112 + r, 116 + r)); p('v_add_f32 v%d, v%d, v%d' % (104 + r, 104 + r, 112 + r))
        p('v_lshlrev_b32 v108, 16, v100'); p('v_and_b32 v109, 0xffff0000, v100'); p('v_lshlrev_b32 v110, 16, v101'); p('v_and_b32 v111, 0xffff0000, v101')
        for r in range(4): p('v_fmac_f32 v%d, v%d, v%d' % (108 + r, 24 + r, 104 + r))
        p('v_cvt_pk_bf16_f32 v100, v108, v109'); p('v_cvt_pk_bf16_f32 v101, v110, v111')
        p('s_add_u32 s%d, s%d, %d' % (S_T5, S_T5, OFF_X1))
        p('buffer_store_dwordx2 v[100:101], v28, s[%d:%d], s%d offen sc1' % (S_WS, S_WS + 3, S_T5))
        p.label(l)
    def x1_flag(val_s):
        p('v_mov_b32 v102, s%d' % val_s); p('s_mov_b32 s%d, %d' % (S_T0, F_X1))
        p('buffer_store_dword v102, v30, s[%d:%d], s%d offen sc1' % (S_WS, S_WS + 3, S_T0))
    parity_probe(p); parity_wait(p)
    vo_wait(1)
    vo_load(0)
    stamp(p, 1, st)
    pf_init(p)
    for r in range(SENT, SENT + 4): p('v_mov_b32 v%d, -1' % r)
    p('v_lshrrev_b32 v31, 5, v1'); p('v_lshlrev_b32 v31, %d, v31' % (FSH + 5)); p('v_add_u32 v31, v31, v0')
    loop = p.newlabel('LRloop'); p.label(loop)
    for k in range(4):
        pf(p, 0)
        for r in range(ACC, ACC + 4): p('v_mov_b32 v%d, 0' % r)
        step_offsets(p, 1)
        p('s_mov_b32 s%d, %d' % (S_T0, F_VO))
        p('buffer_load_dword v103, v31, s[%d:%d], s%d offen sc1' % (S_WS, S_WS + 3, S_T0))
        def ploads():
            for z in range(4): p('buffer_load_dwordx4 %s, v4, s[%d:%d], s%d offen offset:%d sc1' % (vr(PA + 4 * z, 4), S_WS, S_WS + 3, S_PO, z * 1024))
            for hp in range(2): p('buffer_load_dwordx2 %s, v5, s[%d:%d], s%d offen offset:%d sc1' % (vr(PM + 2 * hp, 2), S_WS, S_WS + 3, S_PO, hp * 128))
            return 6
        def zloads():
            p('buffer_load_dwordx4 %s, v6, s[%d:%d], s%d offen sc1' % (vr(ZB, 4), S_WS, S_WS + 3, S_ZO))
            p('buffer_load_dwordx4 %s, v6, s[%d:%d], s%d offen offset:1024 sc1' % (vr(ZB + 4, 4), S_WS, S_WS + 3, S_ZO))
            return 2
        if R_MODE == 0:
            pf(p, 1)
            poll_loop(p, lambda: ploads() + zloads(), list(range(PA, PA + 20)) + list(range(ZB, ZB + 8)), 7, 'p', 'p')
        elif R_MODE == 1:
            poll_loop(p, zloads, list(range(ZB, ZB + 8)), 7, 'z', 'z')
            pf(p, 1)
            poll_loop(p, ploads, list(range(PA, PA + 20)), 7, 'p', 'p')
        else:
            poll_loop(p, ploads, list(range(PA, PA + 20)), 7, 'p', 'p')
            pf(p, 1)
            poll_loop(p, zloads, list(range(ZB, ZB + 8)), 7, 'z', 'z')
        pf(p, 2)
        trace(p, 0, trace_on)
        p('v_smfmac_f32_16x16x64_bf16 %s, %s, %s, v3' % (vr(ACC, 4), vr(PM, 4), vr(ZB, 8)))
        for z in range(4): p('v_smfmac_f32_16x16x64_bf16 %s, %s, %s, v3' % (vr(ACC, 4), vr(PA + 4 * z, 4), VOa(k, 2 * z, 8)))
        p('v_permlane32_swap_b32 v%d, v%d' % (ACC, ACC + 1)); p('v_permlane32_swap_b32 v%d, v%d' % (ACC + 2, ACC + 3))
        p('v_add_f32 v%d, v%d, v%d' % (ACC, ACC, ACC + 1)); p('v_add_f32 v%d, v%d, v%d' % (ACC + 2, ACC + 2, ACC + 3))
        p('ds_write2_b32 v11, v%d, v%d offset0:0 offset1:16' % (ACC, ACC + 2))
        p('s_waitcnt lgkmcnt(0)')
        p('s_barrier')
        pf(p, 3)
        l = p.newlabel('LRw'); p('s_cmp_lg_u32 s%d, 0' % S_WAVE); p('s_cbranch_scc1 %s' % l)
        for w in range(4): p('ds_read_b64 %s, v12 offset:%d' % (vr(20 + 2 * w, 2) if w < 2 else vr(32 + 2 * (w - 2), 2), w * 512))
        p('s_waitcnt lgkmcnt(0)')
        p('v_add_f32 v20, v20, v22'); p('v_add_f32 v21, v21, v23'); p('v_add_f32 v32, v32, v34'); p('v_add_f32 v33, v33, v35')
        p('v_add_f32 v20, v20, v32'); p('v_add_f32 v21, v21, v33')
        p('v_cvt_pk_bf16_f32 v20, v20, v21')
        if HIST: p('v_mov_b32 v32, v20')
        for kk in (1, 2, 3): p('v_mov_b32_dpp v%d, v20 quad_perm:[%d,%d,%d,%d] row_mask:0xf bank_mask:0xf' % (20 + kk, kk, kk, kk, kk))
        p('buffer_store_dwordx4 v[20:23], v13, s[%d:%d], s%d offen sc1' % (S_WS, S_WS + 3, S_MEMO))
        pf(p, 4)
        pf_acc(p)
        trace(p, 2, trace_on)
        if HIST:
            p('s_mul_i32 s%d, s%d, 10240' % (S_T0, S_STEP)); p('s_add_u32 s%d, s%d, %d' % (S_T0, S_T0, OFF_HIST + 10240))
            p('buffer_store_dword v32, v14, s[%d:%d], s%d offen' % (S_WS, S_WS + 3, S_T0))
        p.label(l)
        l3 = p.newlabel('LRq'); p('s_cmp_lg_u32 s%d, 1' % S_WAVE); p('s_cbranch_scc1 %s' % l3)
        p('s_and_b32 s%d, s%d, %d' % (S_T0, S_STEP, MEM_RING - 1)); p('s_lshl_b32 s%d, s%d, 15' % (S_T0, S_T0)); p('s_add_u32 s%d, s%d, s%d' % (S_T0, S_T0, S_COMM))
        p('buffer_store_dwordx4 %s, v13, s[%d:%d], s%d offen sc1' % (vr(SENT, 4), S_WS, S_WS + 3, S_T0))
        p.label(l3)
        if SEGROWS:
            l4 = p.newlabel('LRx'); p('s_cmp_lg_u32 s%d, 2' % S_WAVE); p('s_cbranch_scc1 %s' % l4)
            p('s_cmp_lt_u32 s%d, 3' % S_STEP); p('s_cbranch_scc1 %s' % l4)
            p('s_sub_u32 s%d, s%d, 2' % (S_T1, S_STEP)); x1_flag(S_T1)
            p.label(l4)
        p('s_barrier')
        lok = p.newlabel('LRok')
        if USE_FLAGS:
            p('s_add_u32 s%d, s%d, 2' % (S_T1, S_STEP)); p('s_min_u32 s%d, s%d, 64' % (S_T1, S_T1))
            p('s_max_u32 s%d, s%d, 1' % (S_T2, S_STEP)); p('s_sub_u32 s%d, s%d, 1' % (S_T2, S_T2))
            p('v_mov_b32 v102, s%d' % S_T1); p('v_mov_b32 v7, s%d' % S_T2); p('v_cndmask_b32 v102, v102, v7, s[%d:%d]' % (S_MASK, S_MASK + 1))
            p('v_cmp_gt_u32 vcc, v102, v103'); p('s_cbranch_vccz %s' % lok)
            p('s_mov_b32 s%d, s%d' % (S_T3, S_T1)); wait_flags(p, 0, F_VO, S_T3, 7)
            p('s_max_u32 s%d, s%d, 1' % (S_T3, S_STEP)); p('s_sub_u32 s%d, s%d, 1' % (S_T3, S_T3)); wait_flags(p, 0, F_P, S_T3, 7)
        p.label(lok)
        for r in range(8): p('v_accvgpr_write_b32 a%d, v%d' % (40 * k + 32 + r, ZB + r))
        p('s_add_u32 s%d, s%d, 1' % (S_STEP, S_STEP))
        lns = p.newlabel('LRns'); ljoin = p.newlabel('LRj')
        def tail_loads():
            p('buffer_store_dwordx4 %s, v6, s[%d:%d], s%d offen sc1' % (vr(SENT, 4), S_WS, S_WS + 3, S_ZO))
            p('buffer_store_dwordx4 %s, v6, s[%d:%d], s%d offen offset:1024 sc1' % (vr(SENT, 4), S_WS, S_WS + 3, S_ZO))
            p('s_add_u32 s%d, s%d, %d' % (S_VOO, S_VOO, 40 * 32 * 1024))
            vo_load((k + 1) & 3)
        if SEGROWS:
            p('s_cmp_lt_u32 s%d, 3' % S_STEP); p('s_cbranch_scc1 %s' % lns)
            p('s_sub_u32 s%d, s%d, 3' % (S_SG, S_STEP)); seg_issue(False)
            tail_loads()
            seg_compute((k + 2) & 3, 10)
            p('s_branch %s' % ljoin)
        p.label(lns)
        tail_loads()
        p.label(ljoin)
    p('s_cmp_lt_u32 s%d, s%d' % (S_STEP, S_NST)); p('s_cbranch_scc1 %s' % loop)
    if SEGROWS:
        for sg in (62, 63):
            p('s_barrier')
            p('s_mov_b32 s%d, %d' % (S_SG, sg)); seg_issue(True); seg_compute(sg & 3, 0)
        p('s_waitcnt vmcnt(0)'); p('s_barrier')
        l = p.newlabel('LRf'); p('s_cmp_lg_u32 s%d, 2' % S_WAVE); p('s_cbranch_scc1 %s' % l)
        p('s_mov_b32 s%d, 64' % S_T1); x1_flag(S_T1)
        p.label(l)

HEADER = '''.amdgcn_target "amdgcn-amd-amdhsa--gfx950"
.text
'''
def kernel_desc(name, vgpr=512, accum=256, sgpr=96):
    return '''.section .rodata,"a"
.p2align 6
.amdhsa_kernel %s
  .amdhsa_next_free_vgpr %d
  .amdhsa_next_free_sgpr %d
  .amdhsa_accum_offset %d
  .amdhsa_group_segment_fixed_size 0
  .amdhsa_kernarg_size 128
  .amdhsa_user_sgpr_count 2
  .amdhsa_user_sgpr_kernarg_segment_ptr 1
  .amdhsa_system_sgpr_workgroup_id_x 1
.end_amdhsa_kernel
''' % (name, vgpr, sgpr, accum)

PLACE = 0
def gen_core_test(nsteps=64, trace_on=False, st=False):
    p = Prog()
    name = 'core_kernel'
    p.raw('.globl %s' % name); p.raw('.p2align 8'); p.raw('.type %s,@function' % name); p.label(name)
    srd(p, S_WS, KA['ws'], WS_BYTES)
    p('s_load_dwordx2 s[%d:%d], s[0:1], %d' % (S_DBG, S_DBG + 1, KA['dbg']))
    p('s_mov_b32 s%d, %d' % (S_NST, nsteps))
    p('s_waitcnt lgkmcnt(0)')
    comm_setup(p)
    lA, lB, lR, lend = 'L_roleA', 'L_roleB', 'L_roleR', 'L_end'
    if PLACE == 1:
        p('s_and_b32 s20, s2, 7'); p('s_cmp_ge_u32 s20, 4'); p('s_cbranch_scc1 L_exit')
        p('s_lshr_b32 s21, s2, 3'); p('s_lshl_b32 s21, s21, 2'); p('s_add_u32 s2, s21, s20')
    elif PLACE == 2:
        p('s_and_b32 s20, s2, 7'); p('s_cmp_ge_u32 s20, 4'); p('s_cbranch_scc1 L_exit')
        p('s_lshr_b32 s21, s2, 3')
        l0 = p.newlabel('Lpl'); l1 = p.newlabel('Lpl')
        p('s_cmp_ge_u32 s20, 2'); p('s_cbranch_scc1 %s' % l0)
        p('s_lshl_b32 s20, s20, 5'); p('s_add_u32 s2, s20, s21'); p('s_branch %s' % l1)
        p.label(l0)
        p('s_cmp_ge_u32 s21, 20'); p('s_cbranch_scc1 L_exit')
        p('s_sub_u32 s20, s20, 2'); p('s_mul_i32 s20, s20, 20'); p('s_add_u32 s2, s20, s21'); p('s_add_u32 s2, s2, 64')
        p.label(l1)
    elif PLACE == 3:
        p('s_and_b32 s20, s2, 7'); p('s_cmp_ge_u32 s20, 4'); p('s_cbranch_scc1 L_exit')
        p('s_lshr_b32 s21, s2, 3')
        l0 = p.newlabel('Lpl'); l1 = p.newlabel('Lpl')
        p('s_cmp_ge_u32 s20, 2'); p('s_cbranch_scc1 %s' % l0)
        p('s_lshr_b32 s22, s21, 1'); p('s_lshl_b32 s23, s20, 4'); p('s_add_u32 s22, s22, s23'); p('s_and_b32 s21, s21, 1'); p('s_lshl_b32 s21, s21, 5'); p('s_add_u32 s2, s22, s21'); p('s_branch %s' % l1)
        p.label(l0)
        p('s_cmp_ge_u32 s21, 20'); p('s_cbranch_scc1 L_exit')
        p('s_sub_u32 s20, s20, 2'); p('s_mul_i32 s20, s20, 20'); p('s_add_u32 s2, s20, s21'); p('s_add_u32 s2, s2, 64')
        p.label(l1)
    if st:
        p('v_lshrrev_b32 v3, 6, v0'); p('v_readfirstlane_b32 s%d, v3' % S_WAVE); p('v_mov_b32 v20, v0'); stamp(p, 0, True); p('v_mov_b32 v0, v20')
    p('s_cmp_lt_u32 s2, 32'); p('s_cbranch_scc1 %s' % lA)
    p('s_cmp_lt_u32 s2, 64'); p('s_cbranch_scc1 %s' % lB)
    p('s_cmp_lt_u32 s2, 104'); p('s_cbranch_scc1 %s' % lR)
    p.label('L_exit')
    p('s_endpgm')
    p.label(lA); p('s_mov_b32 s%d, s2' % S_IDX); gen_A(p, trace_on, st); p('s_branch %s' % lend)
    p.label(lB); p('s_sub_u32 s%d, s2, 32' % S_IDX); gen_B(p, trace_on, st); p('s_branch %s' % lend)
    p.label(lR); p('s_sub_u32 s%d, s2, 64' % S_IDX); gen_R(p, trace_on, st)
    p.label(lend)
    stamp(p, 2, st)
    pf_out(p)
    l = p.newlabel('Lok'); p('s_cmp_lg_u32 s%d, 0' % S_SPIN); p('s_cbranch_scc1 %s' % l)
    p('v_mov_b32 v4, 0'); p('v_mov_b32 v5, s2'); p('v_add_u32 v5, 1, v5'); p('global_store_dword v4, v5, s[%d:%d]' % (S_DBG, S_DBG + 1))
    p.label(l)
    p('s_waitcnt vmcnt(0)')
    p('s_endpgm')
    body = p.text()
    return '; @launch grid=(256,1,1) block=(256,1,1) lds=163840\n' + HEADER + body + kernel_desc(name), p

if __name__ == '__main__':
    t, p = gen_core_test()
    open('core.s', 'w').write(t)
    print(len(t), 'bytes', p.nops, 'nops')
```

```python
from core import *
import core, struct

S_COMZ = 39
B_DELAY = 100
A_SYNC = True
ZP_GAP = 0
CSLEEP = {'mem': 0, 'z': 0, 'p': 0}
CPRE = {'A': 22, 'B': 38, 'R': 2}
CUR_ROLE = 'A'
POLL2 = {'mem': False, 'z': True, 'p': False}
FAST_SM = True
RTRACE = False
CLASSIC = {'mem': True, 'p': True}
CHECK1 = True
BAR_TAU = {'A': 1, 'B': 1}
S_DLY = 62; S_RND = 63; S_RSUM = 60
PACE = {'mem': 2, 'p': 4}
DLY_INIT = {'A': 0, 'B': 0, 'R': 0}
DLY_ADJ = [-3, 0, 2, 4, 8]

def comm_setup2(p):
    p('s_add_u32 s%d, s%d, %d' % (S_T0, S_WS, OFF_COMM))
    p('s_sub_u32 s%d, 0, s%d' % (S_T0, S_T0)); p('s_and_b32 s%d, s%d, 0x1fffff' % (S_T0, S_T0))
    if core.DYN_PAR:
        p('s_add_u32 s%d, s%d, %d' % (S_COMM, S_T0, OFF_COMM)); p('s_add_u32 s%d, s%d, %d' % (S_COMZ, S_COMM, 2 << 20))
    else:
        p('s_add_u32 s%d, s%d, %d' % (S_COMM, S_T0, OFF_COMM + (core.PARITY & 1) * 8192))
        p('s_add_u32 s%d, s%d, %d' % (S_COMZ, S_T0, OFF_COMM + (2 << 20) + ((core.PARITY >> 1) & 1) * 8192))

def parity_probe2(p):
    if not core.DYN_PAR: return
    l = p.newlabel('Lpp'); p('s_cmp_lg_u32 s%d, 0' % S_WAVE); p('s_cbranch_scc1 %s' % l)
    p('s_cmp_lg_u32 s%d, 0' % S_IDX); p('s_cbranch_scc1 %s' % l)
    p('v_mov_b32 v16, 0'); p('v_mov_b32 v17, -1')
    p('s_mov_b32 s54, 4')
    for pg, base in ((0, S_COMM), (1, S_COMZ)):
        p('s_mov_b32 s48, 0'); p('s_mov_b32 s49, 0')
        for i in range(4):
            for par in range(2):
                p('s_add_u32 s%d, s%d, %d' % (S_T0, base, (BLK_PROBE + i) * BLK + par * 8192 + i * 256))
                p('buffer_store_dword v17, v16, s[%d:%d], s%d offen sc1' % (S_WS, S_WS + 3, S_T0))
                p('s_waitcnt vmcnt(0)')
                p('s_memtime s[50:51]'); p('s_waitcnt lgkmcnt(0)')
                p('buffer_load_dword v18, v16, s[%d:%d], s%d offen sc1' % (S_WS, S_WS + 3, S_T0))
                p('s_waitcnt vmcnt(0)')
                p('s_memtime s[52:53]'); p('s_waitcnt lgkmcnt(0)')
                p('s_sub_u32 s50, s52, s50')
                if i > 0: p('s_add_u32 s%d, s%d, s50' % (48 + par, 48 + par))
        p('s_cmp_lt_u32 s49, s48'); p('s_cselect_b32 s50, %d, 0' % (1 << pg)); p('s_add_u32 s54, s54, s50')
    p('v_mov_b32 v17, s54')
    dbg_srd(p, 52)
    p('v_cmp_eq_u32 vcc, 0, v1'); p('v_mov_b32 v18, 0x7ff00000'); p('v_cndmask_b32 v16, v18, v16, vcc')
    p('buffer_store_dword v17, v16, s[52:55], 0 offen sc1')
    p('s_waitcnt vmcnt(0)')
    p.label(l)

def ready(p, h_only=False, half=None):
    if core.FUSED:
        import fused
        fused.wait_ready(p, off=OFF_FH if h_only else OFF_FI, half=half)

def parity_wait2(p, lds_off=10240):
    if core.FUSED and core.DYN_PAR:
        import fused
        fused.wait_ready(p, parity=lds_off)
    else:
        ready(p)
        if not core.DYN_PAR: return
        dbg_srd(p, 52)
        top = p.newlabel('Lpw'); done = p.newlabel('Lpwd')
        p('v_mov_b32 v16, 0')
        p.label(top)
        p('buffer_load_dword v17, v16, s[52:55], 0 offen sc1'); p('s_waitcnt vmcnt(0)')
        p('v_readfirstlane_b32 s50, v17')
        p('s_cmp_lg_u32 s50, 0'); p('s_cbranch_scc1 %s' % done)
        p('s_sleep 4')
        p('s_cmp_eq_u32 s%d, 0' % S_SPIN); p('s_cbranch_scc1 %s' % done)
        p('s_sub_u32 s%d, s%d, 1' % (S_SPIN, S_SPIN)); p('s_branch %s' % top)
        p.label(done)
    p('s_and_b32 s51, s50, 1'); p('s_lshl_b32 s51, s51, 13'); p('s_add_u32 s%d, s%d, s51' % (S_COMM, S_COMM))
    p('s_and_b32 s51, s50, 2'); p('s_lshl_b32 s51, s51, 12'); p('s_add_u32 s%d, s%d, s51' % (S_COMZ, S_COMZ))

def offsets2(p, mem_add=0, want=('mem', 'p', 'z')):
    if 'mem' in want:
        p('s_add_u32 s%d, s%d, %d' % (S_T0, S_STEP, mem_add)); p('s_and_b32 s%d, s%d, %d' % (S_T0, S_T0, MEM_RING - 1))
        p('s_mul_i32 s%d, s%d, %d' % (S_T0, S_T0, MEM_SLOT * BLK)); p('s_add_u32 s%d, s%d, s%d' % (S_MEMO, S_T0, S_COMM))
        if BLK_MEM: p('s_add_u32 s%d, s%d, %d' % (S_MEMO, S_MEMO, BLK_MEM * BLK))
    if 'p' in want:
        p('s_and_b32 s%d, s%d, %d' % (S_T0, S_STEP, P_RING - 1)); p('s_mul_i32 s%d, s%d, %d' % (S_T0, S_T0, P_SLOT * BLK))
        p('s_add_u32 s%d, s%d, s%d' % (S_PO, S_T0, S_COMM)); p('s_add_u32 s%d, s%d, %d' % (S_PO, S_PO, BLK_P * BLK))
    if 'z' in want:
        p('s_and_b32 s%d, s%d, %d' % (S_T0, S_STEP, Z_RING - 1)); p('s_mul_i32 s%d, s%d, %d' % (S_T0, S_T0, 40 * BLK))
        p('s_add_u32 s%d, s%d, s%d' % (S_ZO, S_T0, S_COMZ))

def check_regs(p, regs, tmp, quads=None):
    r = list(regs)
    if CHECK1 and quads: r = list(quads)
    if len(r) < 3: r = r + [r[0]] * (3 - len(r))
    p('v_max3_u32 v%d, v%d, v%d, v%d' % (tmp, r[0], r[1], r[2])); r = r[3:]
    while len(r) >= 2:
        p('v_max3_u32 v%d, v%d, v%d, v%d' % (tmp, tmp, r[0], r[1])); r = r[2:]
    if r: p('v_max_u32 v%d, v%d, v%d' % (tmp, tmp, r[0]))
    p('v_cmp_eq_u32 vcc, -1, v%d' % tmp)

def budget(p, giveup, again):
    p('s_cmp_eq_u32 s%d, 0' % S_SPIN); p('s_cbranch_scc1 %s' % giveup)
    p('s_sub_u32 s%d, s%d, 1' % (S_SPIN, S_SPIN)); p('s_branch %s' % again)

def multi_poll(p, issue, n, regs_of_set, tmp, kind, variant, first_hook=None, pre_issue=None, quads=None):
    if CLASSIC[kind]:
        top = p.newlabel('Lcl'); ok = p.newlabel('Lclok')
        if CPRE[CUR_ROLE]: p('s_sleep %d' % CPRE[CUR_ROLE])
        if pre_issue:
            pre_issue(); p('s_waitcnt vmcnt(0)'); first_hook()
            if ZP_GAP: p('s_sleep %d' % ZP_GAP)
        if POLL2[kind]: issue(0, 0)
        p.label(top)
        if core.PROF: p('s_memtime s[64:65]'); p('s_add_u32 s68, s68, 1')
        issue(0, 0); p('s_waitcnt vmcnt(%d)' % (n if POLL2[kind] else 0)); check_regs(p, regs_of_set(0), tmp, quads(0) if (quads and not POLL2[kind]) else None); p('s_cbranch_vccz %s' % ok)
        if CSLEEP[kind]: p('s_sleep %d' % CSLEEP[kind])
        budget(p, ok, top)
        p.label(ok)
        if core.PROF:
            p('s_memtime s[66:67]'); p('s_waitcnt lgkmcnt(0)'); p('s_sub_u32 s64, s66, s64'); p('s_add_u32 s69, s69, s64')
        p('s_mov_b32 s%d, 1' % S_RND)
        variant(0)
        return
    V = [p.newlabel('Lv%d' % j) for j in range(4)]; join = p.newlabel('Lvj'); fb = p.newlabel('Lfb'); fbok = p.newlabel('Lfbok')
    dl = p.newlabel('Ldl'); dld = p.newlabel('Ldld')
    p('s_mov_b32 s%d, s%d' % (S_T1, S_DLY))
    p.label(dl); p('s_cmp_eq_u32 s%d, 0' % S_T1); p('s_cbranch_scc1 %s' % dld)
    p('s_sleep 1'); p('s_sub_u32 s%d, s%d, 1' % (S_T1, S_T1)); p('s_branch %s' % dl)
    p.label(dld)
    if pre_issue: pre_issue()
    issue(0, 0); p('s_sleep %d' % PACE[kind]); issue(1, 1); p('s_sleep %d' % PACE[kind]); issue(2, 2)
    p('s_waitcnt vmcnt(%d)' % (2 * n))
    if first_hook: first_hook()
    check_regs(p, regs_of_set(0), tmp); p('s_cbranch_vccz %s' % V[0])
    issue(3, 3)
    p('s_waitcnt vmcnt(%d)' % (2 * n)); check_regs(p, regs_of_set(1), tmp); p('s_cbranch_vccz %s' % V[1])
    p('s_waitcnt vmcnt(%d)' % n); check_regs(p, regs_of_set(2), tmp); p('s_cbranch_vccz %s' % V[2])
    p('s_waitcnt vmcnt(0)'); check_regs(p, regs_of_set(3), tmp); p('s_cbranch_vccz %s' % V[3])
    p.label(fb)
    issue(0, 0); p('s_waitcnt vmcnt(0)'); check_regs(p, regs_of_set(0), tmp); p('s_cbranch_vccz %s' % fbok)
    budget(p, fbok, fb)
    p.label(fbok)
    p('s_mov_b32 s%d, 4' % S_RND)
    lv0 = p.newlabel('Lv0b'); p('s_branch %s' % lv0)
    for j in range(4):
        p.label(V[j]); p('s_mov_b32 s%d, %d' % (S_RND, j))
        if j == 0: p.label(lv0)
        variant(j)
        if j < 3: p('s_branch %s' % join)
    p.label(join)

def rnd_write(p, lds_off, t1, t2):
    p('s_lshl_b32 s%d, s%d, 2' % (S_T1, S_WAVE)); p('s_add_u32 s%d, s%d, %d' % (S_T1, S_T1, lds_off))
    p('v_mov_b32 v%d, s%d' % (t1, S_T1)); p('v_mov_b32 v%d, s%d' % (t2, S_RND)); p('ds_write_b32 v%d, v%d' % (t1, t2))
    if core.PROF: p('s_add_u32 s%d, s%d, s%d' % (S_RSUM, S_RSUM, S_RND))

def dly_update(p, lds_off, t):
    p('v_mov_b32 v%d, %d' % (t + 4, lds_off)); p('ds_read_b128 %s, v%d' % (vr(t, 4), t + 4)); p('s_waitcnt lgkmcnt(0)')
    p('v_max3_u32 v%d, v%d, v%d, v%d' % (t, t, t + 1, t + 2)); p('v_max_u32 v%d, v%d, v%d' % (t, t, t + 3))
    p('v_readfirstlane_b32 s%d, v%d' % (S_RND, t))
    p('s_mov_b32 s%d, %d' % (S_T1, DLY_ADJ[0]))
    for r in range(1, 5):
        p('s_cmp_eq_u32 s%d, %d' % (S_RND, r)); p('s_cselect_b32 s%d, %d, s%d' % (S_T1, DLY_ADJ[r], S_T1))
    p('s_add_i32 s%d, s%d, s%d' % (S_DLY, S_DLY, S_T1)); p('s_max_i32 s%d, s%d, 0' % (S_DLY, S_DLY)); p('s_min_i32 s%d, s%d, 120' % (S_DLY, S_DLY))
    if RTRACE:
        l = p.newlabel('Lrt'); p('s_cmp_lg_u32 s%d, 0' % S_WAVE); p('s_cbranch_scc1 %s' % l)
        p('s_lshl_b32 s%d, s%d, 8' % (S_T7, S_STEP)); p('s_add_u32 s%d, s%d, s2' % (S_T7, S_T7)); p('s_lshl_b32 s%d, s%d, 4' % (S_T7, S_T7)); p('s_add_u32 s%d, s%d, %d' % (S_T7, S_T7, OFF_TRACE + 12))
        p('s_lshl_b32 s%d, s%d, 8' % (S_T1, S_DLY)); p('s_or_b32 s%d, s%d, s%d' % (S_T1, S_T1, S_RND))
        p('v_mov_b32 v%d, s%d' % (t, S_T1)); p('v_mov_b32 v%d, 0' % (t + 1))
        p('buffer_store_dword v%d, v%d, s[%d:%d], s%d offen' % (t, t + 1, S_WS, S_WS + 3, S_T7))
        p.label(l)

def gset(): return 40 if CLASSIC['mem'] else 80
TRACE_ON = False
def gather_and_project(p, lg, ntile, acc0, wres_v, kind, hooks, tail_order=None, wave0_hooks=None):
    def issue(st, cp):
        if cp: p('s_add_u32 s%d, s%d, %d' % (S_T2, S_MEMO, cp * MEM_COPY * BLK))
        for j in range(3):
            p('buffer_load_dwordx4 %s, v%d, s[%d:%d], s%d offen sc1' % (vr(gset() + 12 * st + 4 * j, 4), 4 + j, S_WS, S_WS + 3, S_T2 if cp else S_MEMO))
    def ringreg(tau): return RING + 4 * ((tau - 3) % 3)
    def rd(tau):
        a, off = memfrag_addr(tau)
        p('ds_read_b128 %s, v%d offset:%d' % (vr(ringreg(tau), 4), a, off)); lg.issue(('m', tau))
    base_q = list(lg.q); end_q = []
    def variant(st):
        lg.q = list(base_q)
        pf(p, 1)
        trace(p, 0, TRACE_ON)
        fr = gset() + 12 * st
        for j in range(3):
            p('ds_write_b128 v%d, %s' % (RING + j, vr(fr + 4 * j, 4))); lg.issue(('mw', j))
        for tau in range(3):
            if tau == BAR_TAU[CUR_ROLE]:
                lg.wait(('mw', 2)); p('s_barrier')
                for t in (3, 4, 5): rd(t)
            for tile in range(ntile): smf(p, acc0 + 4 * tile, fr + 4 * tau, tau * ntile + tile, lg, wres_v)
        end_q[:] = list(lg.q)
    multi_poll(p, issue, 3, lambda st: range(gset() + 12 * st, gset() + 12 * st + 12), 7, 'mem', variant, quads=lambda st: [gset() + 12 * st + 4 * j + 3 for j in range(3)])
    lg.q = list(end_q)
    last = 8 if tail_order else 10
    def rest(t0, hk):
        for tau in range(t0, last):
            lg.wait(('m', tau))
            for tile in range(ntile): smf(p, acc0 + 4 * tile, ringreg(tau), tau * ntile + tile, lg, wres_v)
            if tau + 3 < 10: rd(tau + 3)
            if tau in hk: hk[tau]()
        if tail_order: tail_order(ringreg)
    if wave0_hooks is None:
        rest(3, hooks)
    else:
        lo = p.newlabel('Lnw0'); lj = p.newlabel('Lnw0j')
        q0 = list(lg.q)
        p('s_cmp_lg_u32 s%d, 0' % S_WAVE); p('s_cbranch_scc1 %s' % lo)
        rest(3, wave0_hooks); p('s_branch %s' % lj)
        p.label(lo); lg.q = list(q0); rest(3, hooks)
        p.label(lj)

def gen_A2(p, trace_on=False, st=False):
    global TRACE_ON, CUR_ROLE
    TRACE_ON = trace_on; CUR_ROLE = 'A'
    lg = Cnt(p, 'lgkmcnt', 15); vm = Cnt(p, 'vmcnt', 63)
    h = S_IDX
    srd(p, S_W1, KA['Wq'], 640 * 12288); srd(p, S_W2, KA['Wk'], 640 * 12288)
    common_lane_setup(p)
    p('s_waitcnt lgkmcnt(0)')
    mem_gather_setup(p, A_MEMX)
    p('s_mul_i32 s%d, s%d, 24576' % (S_T0, S_WAVE)); p('s_add_u32 s%d, s%d, 65536' % (S_T0, S_T0)); p('v_add_u32 v15, s%d, v2' % S_T0)
    voffs = [80, 81, 82]
    stage_offsets(p, voffs, 6, 12288, 1, 83, 84)
    p('v_lshrrev_b32 v83, 4, v1'); p('v_lshlrev_b32 v83, 3, v83'); p('v_bfe_u32 v84, v1, 2, 2'); p('v_add_u32 v83, v83, v84')
    p('v_mul_u32_u24 v83, 96, v83'); p('v_and_b32 v84, 3, v1'); p('v_lshlrev_b32 v84, 3, v84'); p('v_add_u32 v85, v83, v84')
    p('s_lshl_b32 s%d, s%d, 14' % (S_T4, S_WAVE)); p('v_add_u32 v85, s%d, v85' % S_T4)
    p('s_mul_i32 s%d, s%d, 384' % (S_T5, h)); p('s_mul_i32 s%d, s%d, 96' % (S_T0, S_WAVE)); p('s_add_u32 s%d, s%d, s%d' % (S_T5, S_T5, S_T0))
    p('s_mul_i32 s%d, s%d, 3' % (S_T6, S_WAVE))
    jobs = []
    for tau in range(10):
        for half in range(2):
            for mat in range(2):
                def soff(dst, tau=tau, half=half):
                    p('s_add_u32 s%d, s%d, %d' % (dst, S_T6, tau))
                    p('s_sub_u32 s%d, s%d, 10' % (S_T2, dst)); p('s_cmp_ge_u32 s%d, 10' % dst); p('s_cselect_b32 s%d, s%d, s%d' % (dst, S_T2, dst))
                    p('s_mul_i32 s%d, s%d, %d' % (dst, dst, 64 * 12288))
                    p('s_add_u32 s%d, s%d, s%d' % (dst, dst, S_T5))
                    if half: p('s_add_u32 s%d, s%d, %d' % (dst, dst, 32 * 12288))
                dests = []
                for x in range(3):
                    kind, n = UM[tau * 6 + mat * 3 + x]
                    if kind == 'reg': dests.append((x * 32, ('reg', unit_reg(n, 4 * half, 2), unit_reg(n, 4 * half + 2, 2))))
                    else: dests.append((x * 32, ('lds', n * 2048 + half * 1024)))
                jobs.append(dict(srd=S_W1 if mat == 0 else S_W2, soff=soff, dests=dests))
    load_weights_type1(p, jobs, 85, 3072, 5, voffs, 3, 96, lg, vm, 15, 88, S_T4)
    p('s_barrier')
    p('v_and_b32 v81, 3, v1'); p('v_lshlrev_b32 v80, 6, v81')
    p('v_bfe_u32 v81, v1, 2, 2'); p('v_lshlrev_b32 v81, 4, v81'); p('v_add_u32 v80, v80, v81')
    p('v_lshrrev_b32 v81, 4, v1'); p('v_lshlrev_b32 v81, 2, v81'); p('v_add_u32 v80, v80, v81')
    p('s_mul_i32 s%d, s%d, 768' % (S_T0, S_WAVE)); p('s_add_u32 s%d, s%d, %d' % (S_T0, S_T0, A_QX)); p('v_add_u32 v11, s%d, v80' % S_T0)
    p('v_bfe_u32 v80, v1, 2, 2'); p('v_lshlrev_b32 v80, 6, v80')
    p('v_lshrrev_b32 v81, 4, v1'); p('v_lshlrev_b32 v81, 4, v81'); p('v_add_u32 v80, v80, v81')
    p('v_and_b32 v81, 1, v1'); p('v_lshlrev_b32 v81, 3, v81'); p('v_add_u32 v80, v80, v81'); p('v_add_u32 v12, %d, v80' % A_QX)
    p('v_lshrrev_b32 v80, 5, v1'); p('v_lshlrev_b32 v80, 8, v80')
    p('v_bfe_u32 v81, v1, 4, 1'); p('v_lshlrev_b32 v81, 4, v81'); p('v_add_u32 v80, v80, v81')
    p('v_and_b32 v81, 7, v1'); p('v_lshlrev_b32 v82, 5, v81'); p('v_add_u32 v80, v80, v82'); p('v_lshlrev_b32 v82, 4, v81')
    p('v_bfe_u32 v83, v1, 3, 1'); p('v_mul_u32_u24 v83, %d, v83' % (P_COPY * BLK)); p('v_add_u32 v80, v80, v83')
    p('s_lshr_b32 s%d, s%d, 4' % (S_T1, h)); p('s_lshl_b32 s%d, s%d, 14' % (S_T1, S_T1)); p('s_and_b32 s%d, s%d, 15' % (S_T0, h)); p('s_lshl_b32 s%d, s%d, 9' % (S_T0, S_T0)); p('s_add_u32 s%d, s%d, s%d' % (S_T0, S_T0, S_T1))
    p('v_add_u32 v13, s%d, v80' % S_T0)
    if CLASSIC['p']: p('v_mov_b32 v82, 0x7ff00000'); p('v_and_b32 v83, 8, v1'); p('v_cmp_eq_u32 vcc, 0, v83'); p('v_cndmask_b32 v13, v82, v13, vcc'); p('v_and_b32 v81, 7, v1'); p('v_lshlrev_b32 v82, 4, v81')
    p('v_bfe_u32 v83, v1, 3, 2'); p('v_mul_u32_u24 v83, %d, v83' % (P_COPY * BLK)); p('v_add_u32 v80, v82, v83')
    p('s_lshl_b32 s%d, s%d, 7' % (S_T0, h)); p('s_add_u32 s%d, s%d, %d' % (S_T0, S_T0, 2 * BLK)); p('v_add_u32 v14, s%d, v80' % S_T0)
    p('v_mov_b32 v82, 0x7ff00000'); p('v_cmp_gt_u32 vcc, %d, v1' % (8 if CLASSIC['p'] else 32)); p('v_cndmask_b32 v14, v82, v14, vcc')
    p('s_mov_b32 s%d, 0' % S_MASK); p('s_mov_b32 s%d, -1' % (S_MASK + 1))
    p('s_mov_b32 s74, 0xff00ff00'); p('s_mov_b32 s75, 0xff00ff00')
    p('s_mov_b32 s%d, 0x%x' % (S_C, struct.unpack('<I', struct.pack('<f', 192 ** -0.5 * 1.4426950408889634))[0]))
    p('s_mov_b32 s%d, 0' % S_STEP)
    p('s_mul_i32 s%d, s%d, 24576' % (S_QKO, h)); p('s_add_u32 s%d, s%d, %d' % (S_QKO, S_QKO, OFF_QK))
    stamp(p, 3, st)
    parity_wait2(p)
    def qk_dma(bufsel_s):
        p('s_mov_b32 s%d, s%d' % (S_T1, S_QKO))
        for j in range(24):
            p('s_add_u32 s%d, s%d, %d' % (S_T0, bufsel_s, j * 1024)); p('s_mov_b32 m0, s%d' % S_T0)
            p('buffer_load_dwordx4 v2, s[%d:%d], s%d offen sc1 lds' % (S_WS, S_WS + 3, S_T1))
            if j < 23: p('s_add_u32 s%d, s%d, 1024' % (S_T1, S_T1))
    def KS(jt, u): return 80 + 4 * (jt * 6 + u)
    def qk_wait(add, sampled=False):
        p('s_add_u32 s%d, s%d, %d' % (S_T3, S_STEP, add))
        lok = p.newlabel('LAok')
        if sampled: p('v_cmp_gt_u32 vcc, s%d, v1' % S_T3); p('s_cbranch_vccz %s' % lok)
        wait_flags(p, 0, F_QK, S_T3, 7)
        p.label(lok)
    tlb_warm(p, S_WS, OFF_QK, 64 * 32 * 24576, 36); tlb_warm(p, S_WS, OFF_PS, 64 * 81920 + (2 << 20), 38); p('s_waitcnt vmcnt(0)')
    p('s_lshl_b32 s%d, s%d, %d' % (S_T0, h, FSH)); p('v_mov_b32 v0, s%d' % S_T0)
    l = p.newlabel('La')
    p('s_cmp_lg_u32 s%d, 3' % S_WAVE); p('s_cbranch_scc1 %s' % l)
    qk_wait(1)
    p('s_mov_b32 s%d, %d' % (S_T3, A_QKB)); qk_dma(S_T3)
    p('s_waitcnt vmcnt(0)')
    p.label(l)
    stamp(p, 1, st)
    pf_init(p); p('s_mov_b32 s%d, %d' % (S_DLY, DLY_INIT['A'])); p('s_mov_b32 s%d, 0' % S_RSUM); p('s_mov_b32 s%d, 1' % S_RND); rnd_write(p, A_QX, 40, 41)
    loop = p.newlabel('LAloop'); core.loop_align(p); p.label(loop)
    lg.reset()
    pf(p, 0)
    for r in range(16, 40): p('v_mov_b32 v%d, 0' % r)
    wst_load(p, 0, 15, lg); wst_load(p, 1, 15, lg)
    offsets2(p, 0, ('mem', 'p')); mem_lds_addr(p)
    p('s_mov_b32 s%d, %d' % (S_T0, F_QK))
    p('buffer_load_dword v1, v0, s[%d:%d], s%d offen sc1' % (S_WS, S_WS + 3, S_T0))
    p('s_waitcnt lgkmcnt(0)'); lg.reset()
    if not CLASSIC['mem']: p('s_barrier'); dly_update(p, A_QX, 40)
    elif A_SYNC: p('s_barrier')
    def kread(lst):
        for (jt, u) in lst:
            p('ds_read_b128 %s, v7 offset:%d' % (vr(KS(jt, u), 4), jt * 6144 + u * 1024)); lg.issue(('k', jt, u))
    def h3():
        if not CLASSIC['mem']: p('s_waitcnt vmcnt(0)')
        p('s_and_b32 s%d, s%d, 1' % (S_T0, S_STEP)); p('s_mul_i32 s%d, s%d, 24576' % (S_T0, S_T0)); p('s_add_u32 s%d, s%d, %d' % (S_T0, S_T0, A_QKB + 12288))
        p('v_add_u32 v7, s%d, v2' % S_T0)
        kread([(0, 0), (1, 0)])
    w0hooks = {3: h3, 4: lambda: kread([(0, 1), (1, 1), (0, 2)]), 5: lambda: kread([(1, 2), (0, 3)]), 6: lambda: kread([(1, 3), (0, 4), (1, 4)]), 7: lambda: kread([(0, 5), (1, 5)])}
    hooks = {} if CLASSIC['mem'] else {4: lambda: p('s_waitcnt vmcnt(0)')}
    def exch(x):
        L = []
        for a, off in ((16 + 4 * x, x * 256), (28 + 4 * x, 3072 + x * 256)):
            L += ['v_add_f32 v%d, v%d, v%d' % (a, a, a + 1), 'v_add_f32 v%d, v%d, v%d' % (a + 2, a + 2, a + 3),
                  'v_cvt_pk_bf16_f32 v%d, v%d, v%d' % (a, a, a + 2), 'ds_write_b32 v11, v%d offset:%d' % (a, off)]
        return L
    def tail_order(ringreg):
        lg.wait(('m', 8));
        seq = []
        for x in range(3):
            for tau in (8, 9): seq += [(tau, x), (tau, 3 + x)]
        fill = []
        for i, (tau, tile) in enumerate(seq):
            if i == 2: lg.wait(('m', 9))
            smf(p, 16 + 4 * tile, ringreg(tau), tau * 6 + tile, lg, 15)
            if i == 5: fill += exch(0)
            if i == 9: fill += exch(1)
            for _ in range(3):
                if fill:
                    ins = fill.pop(0); p(ins)
                    if ins.startswith('ds_'): lg.issue('qx')
        for ins in fill + exch(2):
            p(ins)
            if ins.startswith('ds_'): lg.issue('qx')
    gather_and_project(p, lg, 6, 16, 15, 'mem', hooks, tail_order, w0hooks)
    pf(p, 2)
    p('s_waitcnt vmcnt(0) lgkmcnt(0)' if POLL2['mem'] else 's_waitcnt lgkmcnt(0)'); lg.reset()
    p('s_barrier')
    pf(p, 3)
    trace(p, 1, trace_on)
    lw = p.newlabel('LAw'); lend = p.newlabel('LAe'); lw3 = p.newlabel('LAw3')
    QF = 16; KM = 40; SA = 64; SM = 72
    def scores(kind):
        lg.reset()
        if kind == 'seg':
            p('s_and_b32 s%d, s%d, 1' % (S_T0, S_STEP)); p('s_mul_i32 s%d, s%d, 24576' % (S_T0, S_T0)); p('s_add_u32 s%d, s%d, %d' % (S_T0, S_T0, A_QKB))
            p('s_sub_u32 s%d, s%d, 1' % (S_T1, S_WAVE)); p('s_mul_i32 s%d, s%d, 6144' % (S_T1, S_T1)); p('v_add_u32 v7, s%d, v2' % S_T0); p('s_add_u32 s%d, s%d, s%d' % (S_T0, S_T0, S_T1)); p('v_add_u32 v76, s%d, v2' % S_T0)
        for u in range(6):
            if kind == 'seg':
                for jt in range(2):
                    p('ds_read_b128 %s, v7 offset:%d' % (vr(KS(jt, u), 4), 12288 + jt * 6144 + u * 1024)); lg.issue(('q', u))
            if kind == 'mem':
                for z in range(2):
                    p('ds_read_b64_tr_b16 %s, v12 offset:%d' % (vr(QF + 4 * u + 2 * z, 2), (2 * u + z) * 256)); lg.issue(('q', u))
            else:
                p('ds_read_b128 %s, v76 offset:%d' % (vr(QF + 4 * u, 4), u * 1024)); lg.issue(('q', u))
            for z in range(2):
                p('ds_read_b64_tr_b16 %s, v12 offset:%d' % (vr(KM + 4 * u + 2 * z, 2), 3072 + (2 * u + z) * 256)); lg.issue(('q', u))
            if u >= 2:
                uu = u - 2
                lg.wait(('q', uu)); mf(uu)
        for uu in (4, 5): lg.wait(('q', uu)); mf(uu)
        softmax(kind)
    def mf(u):
        for jt in range(2):
            p('v_mfma_f32_16x16x32_bf16 %s, %s, %s, %s' % (vr(SA + 4 * jt, 4), vr(KS(jt, u), 4), vr(QF + 4 * u, 4), '0' if u == 0 else vr(SA + 4 * jt, 4)))
        p('v_mfma_f32_16x16x32_bf16 %s, %s, %s, %s' % (vr(SM, 4), vr(KM + 4 * u, 4), vr(QF + 4 * u, 4), '0' if u == 0 else vr(SM, 4)))
    def softmax_mem():
        DUP = 72 + 0
        X = [76, 77, 78, 79]; Y = [40, 41]
        p('v_mov_b32 v42, 0xff800000')
        for r in range(4): p('v_cndmask_b32 v%d, v%d, v%d, s[74:75]' % (X[r], SA + r, SA + 4 + r))
        for r in range(2):
            p('v_cndmask_b32 v%d, v%d, v%d, s[74:75]' % (Y[r], SM + r, SM + 2 + r))
            p('v_cndmask_b32 v%d, v%d, v42, s[%d:%d]' % (Y[r], Y[r], S_MASK, S_MASK + 1))
        vals = X + Y
        p('v_max3_f32 v17, v%d, v%d, v%d' % tuple(X[0:3])); p('v_max3_f32 v17, v17, v%d, v%d' % (X[3], Y[0])); p('v_max_f32 v17, v17, v%d' % Y[1])
        p('v_max_f32_dpp v17, v17, v17 row_ror:8 row_mask:0xf bank_mask:0xf')
        p('v_mov_b32 v18, v17'); p('v_permlane16_swap_b32 v17, v18'); p('v_max_f32 v17, v17, v18')
        p('v_mov_b32 v18, v17'); p('v_permlane32_swap_b32 v17, v18'); p('v_max_f32 v17, v17, v18')
        p('v_mul_f32 v17, s%d, v17' % S_C)
        for v in vals: p('v_fma_f32 v%d, v%d, s%d, -v17' % (v, v, S_C))
        for v in vals: p('v_exp_f32 v%d, v%d' % (v, v))
        p('v_add_f32 v18, v%d, v%d' % (X[0], X[1])); p('v_add_f32 v19, v%d, v%d' % (X[2], X[3])); p('v_add_f32 v43, v%d, v%d' % (Y[0], Y[1]))
        p('v_add_f32 v18, v18, v19'); p('v_add_f32 v18, v18, v43')
        p('v_add_f32_dpp v18, v18, v18 row_ror:8 row_mask:0xf bank_mask:0xf')
        p('v_mov_b32 v19, v18'); p('v_permlane16_swap_b32 v18, v19'); p('v_add_f32 v18, v18, v19')
        p('v_mov_b32 v19, v18'); p('v_permlane32_swap_b32 v18, v19'); p('v_add_f32 v18, v18, v19')
        p('v_rcp_f32 v18, v18')
        W = 20
        for v in X: p('v_mul_f32 v%d, v%d, v18' % (v, v))
        p('v_cvt_pk_bf16_f32 v%d, v%d, v%d' % (W + 0, X[0], X[1])); p('v_cvt_pk_bf16_f32 v%d, v%d, v%d' % (W + 2, X[2], X[3]))
        for v in Y: p('v_mul_f32 v%d, v%d, v18' % (v, v))
        p('v_permlane16_swap_b32 v%d, v%d' % (W + 0, W + 2))
        p('v_cvt_pk_bf16_f32 v%d, v%d, v%d' % (W + 4, Y[0], Y[1]))
        p('v_mov_b32_dpp v%d, v%d row_ror:8 row_mask:0xf bank_mask:0xf' % (W + 1, W + 0)); p('v_mov_b32_dpp v%d, v%d row_ror:8 row_mask:0xf bank_mask:0xf' % (W + 3, W + 2))
        p('v_mov_b32 v%d, v%d' % (W + 5, W + 4))
        p('buffer_store_dwordx4 %s, v13, s[%d:%d], s%d offen sc1' % (vr(W, 4), S_WS, S_WS + 3, S_PO))
        p('v_permlane16_swap_b32 v%d, v%d' % (W + 4, W + 5))
        p('v_mov_b32_dpp v%d, v%d row_ror:8 row_mask:0xf bank_mask:0xf' % (W + 6, W + 4)); p('v_mov_b32_dpp v%d, v%d row_ror:8 row_mask:0xf bank_mask:0xf' % (W + 7, W + 5))
        p('buffer_store_dwordx4 %s, v14, s[%d:%d], s%d offen sc1' % (vr(W + 4, 4), S_WS, S_WS + 3, S_PO))
    def softmax(kind):
        if kind == 'mem' and CLASSIC['p'] and FAST_SM: return softmax_mem()
        vals = list(range(SA, SA + 8)) + list(range(SM, SM + 4))
        p('v_mov_b32 v76, 0xff800000')
        if kind == 'seg':
            p('v_lshrrev_b32 v77, 4, v2'); p('v_and_b32 v78, 15, v77'); p('v_lshrrev_b32 v77, 4, v77'); p('v_lshlrev_b32 v77, 2, v77'); p('v_sub_u32 v77, v78, v77')
            p('s_sub_u32 s%d, s%d, 1' % (S_T1, S_WAVE)); p('s_lshl_b32 s%d, s%d, 4' % (S_T1, S_T1)); p('v_add_u32 v77, s%d, v77' % S_T1)
            for jt in range(2):
                for r in range(4):
                    p('v_cmp_le_i32 vcc, %d, v77' % (16 * jt + r))
                    p('v_cndmask_b32 v%d, v76, v%d, vcc' % (SA + 4 * jt + r, SA + 4 * jt + r))
        p('v_max3_f32 v17, v%d, v%d, v%d' % tuple(vals[0:3]))
        for i in range(3, 7, 2): p('v_max3_f32 v17, v17, v%d, v%d' % (vals[i], vals[i + 1]))
        for r in range(4): p('v_cndmask_b32 v%d, v%d, v76, s[%d:%d]' % (SM + r, SM + r, S_MASK, S_MASK + 1))
        p('v_max3_f32 v17, v17, v%d, v%d' % (vals[7], vals[8])); p('v_max3_f32 v17, v17, v%d, v%d' % (vals[9], vals[10])); p('v_max_f32 v17, v17, v%d' % vals[11])
        p('v_mov_b32 v18, v17'); p('v_permlane16_swap_b32 v17, v18'); p('v_max_f32 v17, v17, v18')
        p('v_mov_b32 v18, v17'); p('v_permlane32_swap_b32 v17, v18'); p('v_max_f32 v17, v17, v18')
        p('v_mul_f32 v17, s%d, v17' % S_C)
        for v in vals: p('v_fma_f32 v%d, v%d, s%d, -v17' % (v, v, S_C))
        for v in vals: p('v_exp_f32 v%d, v%d' % (v, v))
        p('v_add_f32 v18, v%d, v%d' % (vals[0], vals[1])); p('v_add_f32 v19, v%d, v%d' % (vals[2], vals[3]))
        for i in range(4, 12, 2):
            p('v_add_f32 v18, v18, v%d' % vals[i]); p('v_add_f32 v19, v19, v%d' % vals[i + 1])
        p('v_add_f32 v18, v18, v19')
        p('v_mov_b32 v19, v18'); p('v_permlane16_swap_b32 v18, v19'); p('v_add_f32 v18, v18, v19')
        p('v_mov_b32 v19, v18'); p('v_permlane32_swap_b32 v18, v19'); p('v_add_f32 v18, v18, v19')
        p('v_rcp_f32 v18, v18')
        W = 20
        if kind == 'mem':
            for v in vals[:8]: p('v_mul_f32 v%d, v%d, v18' % (v, v))
            p('v_cvt_pk_bf16_f32 v%d, v%d, v%d' % (W + 0, SA + 0, SA + 1)); p('v_cvt_pk_bf16_f32 v%d, v%d, v%d' % (W + 2, SA + 2, SA + 3))
            p('v_cvt_pk_bf16_f32 v%d, v%d, v%d' % (W + 1, SA + 4, SA + 5)); p('v_cvt_pk_bf16_f32 v%d, v%d, v%d' % (W + 3, SA + 6, SA + 7))
            for v in vals[8:]: p('v_mul_f32 v%d, v%d, v18' % (v, v))
            p('v_permlane16_swap_b32 v%d, v%d' % (W + 0, W + 2)); p('v_permlane16_swap_b32 v%d, v%d' % (W + 1, W + 3))
            p('v_cvt_pk_bf16_f32 v%d, v%d, v%d' % (W + 4, SM + 0, SM + 1)); p('v_cvt_pk_bf16_f32 v%d, v%d, v%d' % (W + 6, SM + 2, SM + 3))
            p('s_add_u32 s%d, s%d, %d' % (S_T0, S_PO, 2 * P_COPY * BLK))
            p('buffer_store_dwordx4 %s, v13, s[%d:%d], s%d offen sc1' % (vr(W, 4), S_WS, S_WS + 3, S_PO))
            p('v_mov_b32 v%d, v%d' % (W + 5, W + 4)); p('v_mov_b32 v%d, v%d' % (W + 7, W + 6))
            if not CLASSIC['p']: p('buffer_store_dwordx4 %s, v13, s[%d:%d], s%d offen sc1' % (vr(W, 4), S_WS, S_WS + 3, S_T0))
            p('v_permlane16_swap_b32 v%d, v%d' % (W + 4, W + 5)); p('v_permlane16_swap_b32 v%d, v%d' % (W + 6, W + 7))
            p('buffer_store_dwordx4 %s, v14, s[%d:%d], s%d offen sc1' % (vr(W + 4, 4), S_WS, S_WS + 3, S_PO))
        else:
            for v in vals: p('v_mul_f32 v%d, v%d, v18' % (v, v))
            for k in range(4): p('v_cvt_pk_bf16_f32 v%d, v%d, v%d' % (W + k, SA + 2 * k, SA + 2 * k + 1))
            p('v_cvt_pk_bf16_f32 v%d, v%d, v%d' % (W + 4, SM + 0, SM + 1)); p('v_cvt_pk_bf16_f32 v%d, v%d, v%d' % (W + 5, SM + 2, SM + 3))
            p('s_mul_i32 s%d, s%d, 81920' % (S_T0, S_STEP)); p('s_sub_u32 s%d, s%d, 1' % (S_T1, S_WAVE)); p('s_lshl_b32 s%d, s%d, 15' % (S_T2, S_T1))
            p('s_add_u32 s%d, s%d, s%d' % (S_T2, S_T2, S_T0)); p('s_lshl_b32 s%d, s%d, 10' % (S_T3, h)); p('s_add_u32 s%d, s%d, s%d' % (S_T2, S_T2, S_T3)); p('s_add_u32 s%d, s%d, %d' % (S_T2, S_T2, OFF_PS))
            p('buffer_store_dwordx4 %s, v2, s[%d:%d], s%d offen sc1' % (vr(W, 4), S_WS, S_WS + 3, S_T2))
            p('v_mov_b32 v%d, v%d' % (W + 6, W + 4)); p('v_mov_b32 v%d, v%d' % (W + 7, W + 5))
            p('v_permlane16_swap_b32 v%d, v%d' % (W + 4, W + 6)); p('v_permlane16_swap_b32 v%d, v%d' % (W + 5, W + 7))
            p('s_lshl_b32 s%d, s%d, 13' % (S_T1, S_T1)); p('s_add_u32 s%d, s%d, s%d' % (S_T0, S_T0, S_T1)); p('s_lshl_b32 s%d, s%d, 8' % (S_T3, h)); p('s_add_u32 s%d, s%d, s%d' % (S_T0, S_T0, S_T3))
            p('s_add_u32 s%d, s%d, %d' % (S_T0, S_T0, OFF_PS + 65536))
            p('v_mov_b32 v42, 0x7ff00000'); p('v_cmp_gt_u32 vcc, 256, v2'); p('v_cndmask_b32 v42, v42, v2, vcc')
            p('buffer_store_dwordx4 %s, v42, s[%d:%d], s%d offen sc1' % (vr(W + 4, 4), S_WS, S_WS + 3, S_T0))
    p('s_cmp_lg_u32 s%d, 0' % S_WAVE); p('s_cbranch_scc1 %s' % lw)
    scores('mem')
    pf(p, 4)
    pf_acc(p)
    trace(p, 2, trace_on)
    p('s_barrier')
    p('s_branch %s' % lend)
    p.label(lw)
    p('s_cmp_eq_u32 s%d, 3' % S_WAVE); p('s_cbranch_scc1 %s' % lw3)
    scores('seg')
    p('s_barrier')
    p('s_waitcnt vmcnt(0)')
    p('v_mov_b32 v20, 0x7ff00000'); p('v_mov_b32 v22, 0'); p('v_cmp_eq_u32 vcc, 0, v2'); p('v_cndmask_b32 v20, v20, v22, vcc')
    p('s_add_u32 s%d, s%d, 1' % (S_T0, S_STEP)); p('v_mov_b32 v21, s%d' % S_T0)
    p('s_lshl_b32 s%d, s%d, 1' % (S_T1, h)); p('s_add_u32 s%d, s%d, s%d' % (S_T1, S_T1, S_WAVE)); p('s_sub_u32 s%d, s%d, 1' % (S_T1, S_T1)); p('s_lshl_b32 s%d, s%d, %d' % (S_T1, S_T1, FSH)); p('s_add_u32 s%d, s%d, %d' % (S_T1, S_T1, F_P))
    p('buffer_store_dword v21, v20, s[%d:%d], s%d offen sc1' % (S_WS, S_WS + 3, S_T1))
    p('s_branch %s' % lend)
    p.label(lw3)
    p('s_add_u32 s%d, s%d, %d' % (S_T0, S_STEP, P_RING - 1)); p('s_and_b32 s%d, s%d, %d' % (S_T0, S_T0, P_RING - 1)); p('s_mul_i32 s%d, s%d, %d' % (S_T0, S_T0, P_SLOT * BLK))
    p('s_add_u32 s%d, s%d, s%d' % (S_T0, S_T0, S_COMM)); p('s_add_u32 s%d, s%d, %d' % (S_T0, S_T0, BLK_P * BLK)); p('s_add_u32 s%d, s%d, %d' % (S_T1, S_T0, 2 * P_COPY * BLK))
    for r in range(16, 20): p('v_mov_b32 v%d, -1' % r)
    def fp_flag():
        p('v_mov_b32 v20, 0x7ff00000'); p('v_cmp_eq_u32 vcc, 0, v2'); p('v_cndmask_b32 v20, v20, v0, vcc')
        p('v_mov_b32 v21, s%d' % S_STEP); p('s_mov_b32 s%d, %d' % (S_T2, F_P))
        p('buffer_store_dword v21, v20, s[%d:%d], s%d offen sc1' % (S_WS, S_WS + 3, S_T2))
    p('s_barrier')
    p('buffer_store_dwordx4 v[16:19], v13, s[%d:%d], s%d offen sc1' % (S_WS, S_WS + 3, S_T0))
    if not CLASSIC['p']: p('buffer_store_dwordx4 v[16:19], v13, s[%d:%d], s%d offen sc1' % (S_WS, S_WS + 3, S_T1))
    p('buffer_store_dwordx4 v[16:19], v14, s[%d:%d], s%d offen sc1' % (S_WS, S_WS + 3, S_T0))
    p('s_cmp_ge_u32 s%d, 63' % S_STEP); p('s_cbranch_scc1 %s' % lend)
    p('s_add_u32 s%d, s%d, %d' % (S_QKO, S_QKO, 32 * 24576))
    qk_wait(2, True)
    p('s_add_u32 s%d, s%d, 1' % (S_T3, S_STEP)); p('s_and_b32 s%d, s%d, 1' % (S_T3, S_T3)); p('s_mul_i32 s%d, s%d, 24576' % (S_T3, S_T3)); p('s_add_u32 s%d, s%d, %d' % (S_T3, S_T3, A_QKB))
    qk_dma(S_T3)
    p.label(lend)
    rnd_write(p, A_QX, 40, 41)
    p('s_add_u32 s%d, s%d, 1' % (S_STEP, S_STEP)); p('s_cmp_lt_u32 s%d, s%d' % (S_STEP, S_NST)); p('s_cbranch_scc1 %s' % loop)

def gen_B2(p, trace_on=False, st=False):
    global CUR_ROLE
    CUR_ROLE = 'B'
    lg = Cnt(p, 'lgkmcnt', 15); vm = Cnt(p, 'vmcnt', 63)
    h = S_IDX
    srd(p, S_W1, KA['Wv'], 640 * 12288); srd(p, S_W2, KA['Wo'], 32 * 192 * 1280)
    common_lane_setup(p)
    p('s_waitcnt lgkmcnt(0)')
    mem_gather_setup(p, B_MEMX)
    p('s_mul_i32 s%d, s%d, 24576' % (S_T0, S_WAVE)); p('s_add_u32 s%d, s%d, 65536' % (S_T0, S_T0)); p('v_add_u32 v15, s%d, v2' % S_T0)
    p('s_lshl_b32 s%d, s%d, 14' % (S_T4, S_WAVE))
    voffs = [80, 81, 82]
    stage_offsets(p, voffs, 6, 12288, 1, 83, 84)
    p('v_lshrrev_b32 v83, 4, v1'); p('v_lshlrev_b32 v83, 3, v83'); p('v_bfe_u32 v84, v1, 2, 2'); p('v_add_u32 v83, v83, v84')
    p('v_and_b32 v84, 3, v1'); p('v_lshlrev_b32 v84, 3, v84')
    p('v_mul_u32_u24 v85, 96, v83'); p('v_add_u32 v85, v85, v84'); p('v_add_u32 v85, s%d, v85' % S_T4)
    p('v_mul_u32_u24 v86, 160, v83'); p('v_add_u32 v86, v86, v84'); p('v_add_u32 v86, s%d, v86' % S_T4)
    p('s_mul_i32 s%d, s%d, 384' % (S_T5, h)); p('s_mul_i32 s%d, s%d, 96' % (S_T0, S_WAVE)); p('s_add_u32 s%d, s%d, s%d' % (S_T5, S_T5, S_T0))
    p('s_mul_i32 s%d, s%d, 3' % (S_T6, S_WAVE))
    sleep_units(p, B_DELAY)
    jobs = []
    for tau in range(10):
        for half in range(2):
            def soff(dst, tau=tau, half=half):
                p('s_add_u32 s%d, s%d, %d' % (dst, S_T6, tau))
                p('s_sub_u32 s%d, s%d, 10' % (S_T2, dst)); p('s_cmp_ge_u32 s%d, 10' % dst); p('s_cselect_b32 s%d, s%d, s%d' % (dst, S_T2, dst))
                p('s_mul_i32 s%d, s%d, %d' % (dst, dst, 64 * 12288))
                p('s_add_u32 s%d, s%d, s%d' % (dst, dst, S_T5))
                if half: p('s_add_u32 s%d, s%d, %d' % (dst, dst, 32 * 12288))
            dests = []
            for x in range(3):
                kind, n = UM[tau * 3 + x]
                if kind == 'reg': dests.append((x * 32, ('reg', unit_reg(n, 4 * half, 2), unit_reg(n, 4 * half + 2, 2))))
                else: dests.append((x * 32, ('lds', n * 2048 + half * 1024)))
            jobs.append(dict(srd=S_W1, soff=soff, dests=dests))
    load_weights_type1(p, jobs, 85, 3072, 5, voffs, 3, 96, lg, vm, 15, 88, S_T4)
    voffs = [100, 101, 102, 103, 104]
    stage_offsets(p, voffs, 10, 1280, 1, 83, 84)
    p('s_mul_i32 s%d, s%d, %d' % (S_T5, h, 192 * 1280)); p('s_mul_i32 s%d, s%d, 320' % (S_T0, S_WAVE)); p('s_add_u32 s%d, s%d, s%d' % (S_T5, S_T5, S_T0))
    jobs = []
    for u in range(6):
        for ch in range(2):
            def soff(dst, u=u, ch=ch): p('s_add_u32 s%d, s%d, %d' % (dst, S_T5, u * 32 * 1280 + ch * 160))
            dests = []
            for x in range(5):
                cc = ch * 5 + x
                kind, n = UM[30 + cc * 3 + (u >> 1)]; half = u & 1
                if kind == 'reg': dests.append((x * 32, ('reg', unit_reg(n, 4 * half, 2), unit_reg(n, 4 * half + 2, 2))))
                else: dests.append((x * 32, ('lds', n * 2048 + half * 1024)))
            jobs.append(dict(srd=S_W2, soff=soff, dests=dests))
    load_weights_type1(p, jobs, 86, 5120, 3, voffs, 5, 160, lg, vm, 15, 88, S_T4)
    p('s_barrier')
    p('v_bfe_u32 v80, v1, 3, 1'); p('v_lshlrev_b32 v80, 9, v80')
    p('v_bfe_u32 v81, v1, 2, 1'); p('v_lshlrev_b32 v81, 6, v81'); p('v_add_u32 v80, v80, v81')
    p('v_and_b32 v81, 1, v1'); p('v_lshlrev_b32 v81, 5, v81'); p('v_add_u32 v80, v80, v81')
    p('v_bfe_u32 v81, v1, 1, 1'); p('v_lshlrev_b32 v81, 2, v81'); p('v_add_u32 v80, v80, v81')
    p('v_lshrrev_b32 v81, 4, v1'); p('v_lshlrev_b32 v81, 3, v81'); p('v_add_u32 v80, v80, v81')
    for x, dst in enumerate((11, 12, 29)):
        p('s_mul_i32 s%d, s%d, 3' % (S_T0, S_WAVE)); p('s_add_u32 s%d, s%d, %d' % (S_T0, S_T0, x))
        p('s_lshr_b32 s%d, s%d, 2' % (S_T1, S_T0)); p('s_lshl_b32 s%d, s%d, 10' % (S_T1, S_T1)); p('s_and_b32 s%d, s%d, 3' % (S_T0, S_T0)); p('s_lshl_b32 s%d, s%d, 7' % (S_T0, S_T0))
        p('s_add_u32 s%d, s%d, s%d' % (S_T0, S_T0, S_T1)); p('s_add_u32 s%d, s%d, %d' % (S_T0, S_T0, B_VX)); p('v_add_u32 v%d, s%d, v80' % (dst, S_T0))
    p('v_mov_b32 v28, 0x05040100'); p('v_mov_b32 v82, 0x03020706'); p('v_and_b32 v83, 2, v1'); p('v_cmp_eq_u32 vcc, 0, v83'); p('v_cndmask_b32 v28, v82, v28, vcc')
    p('v_lshrrev_b32 v80, 4, v1'); p('v_lshlrev_b32 v80, 7, v80')
    p('v_bfe_u32 v81, v1, 2, 2'); p('v_lshlrev_b32 v81, 5, v81'); p('v_add_u32 v80, v80, v81')
    p('v_and_b32 v81, 3, v1'); p('v_lshlrev_b32 v81, 3, v81'); p('v_add_u32 v80, v80, v81'); p('v_add_u32 v13, %d, v80' % B_VX)
    p('v_lshrrev_b32 v80, 4, v1'); p('s_mul_i32 s%d, s%d, 10' % (S_T0, S_WAVE)); p('v_add_u32 v80, s%d, v80' % S_T0); p('v_lshlrev_b32 v80, 14, v80')
    p('v_and_b32 v81, 15, v1'); p('v_lshlrev_b32 v81, 4, v81'); p('v_add_u32 v80, v80, v81')
    p('s_lshl_b32 s%d, s%d, 8' % (S_T0, h)); p('v_add_u32 v14, s%d, v80' % S_T0)
    p('v_add_u32 v0, %d, v14' % (8 * BLK))
    p('v_mov_b32 v82, 0x7ff00000'); p('v_cmp_gt_u32 vcc, 32, v1'); p('v_cndmask_b32 v0, v82, v0, vcc')
    p('s_mov_b32 s%d, 0' % S_STEP)
    stamp(p, 3, st)
    parity_wait2(p)
    ACC1 = 16; ACC2 = 80; VFR = 40
    stamp(p, 1, st)
    pf_init(p); p('s_mov_b32 s%d, %d' % (S_DLY, DLY_INIT['B'])); p('s_mov_b32 s%d, 0' % S_RSUM); p('s_mov_b32 s%d, 1' % S_RND); rnd_write(p, 16384, 40, 41)
    loop = p.newlabel('LBloop'); core.loop_align(p); p.label(loop)
    lg.reset()
    pf(p, 0)
    for r in range(ACC1, ACC1 + 12): p('v_mov_b32 v%d, 0' % r)
    wst_load(p, 0, 15, lg); wst_load(p, 1, 15, lg)
    offsets2(p, 0, ('mem', 'z')); mem_lds_addr(p)
    p('s_waitcnt lgkmcnt(0)'); lg.reset()
    p('s_barrier')
    if not CLASSIC['mem']: dly_update(p, 16384, 40)
    def z0(lo, hi):
        for r in range(lo, hi): p('v_mov_b32 v%d, 0' % r)
    if CLASSIC['mem']:
        z0(ACC2, ACC2 + 40); hooks = {}
    else:
        def h4(): p('s_waitcnt vmcnt(0)'); z0(ACC2, ACC2 + 8)
        hooks = {4: h4, 5: lambda: z0(ACC2 + 8, ACC2 + 16), 6: lambda: z0(ACC2 + 16, ACC2 + 24), 7: lambda: z0(ACC2 + 24, ACC2 + 32)}
    def tail_order(ringreg):
        lg.wait(('m', 8))
        seq = [(8, 0), (8, 1), (9, 0), (9, 1), (8, 2), (9, 2)]
        for i, (tau, x) in enumerate(seq):
            if i == 2: lg.wait(('m', 9))
            smf(p, ACC1 + 4 * x, ringreg(tau), tau * 3 + x, lg, 15)
            if i >= 4 and not CLASSIC['mem']: z0(ACC2 + 32 + 4 * (i - 4), ACC2 + 36 + 4 * (i - 4))
        for x, addr in enumerate((11, 12, 29)):
            a = ACC1 + 4 * x
            p('v_add_f32 v%d, v%d, v%d' % (a, a, a + 1)); p('v_add_f32 v%d, v%d, v%d' % (a + 2, a + 2, a + 3))
            p('v_cvt_pk_bf16_f32 v%d, v%d, v%d' % (a, a, a + 2))
            p('v_mov_b32_dpp v%d, v%d quad_perm:[2,3,0,1] row_mask:0xf bank_mask:0xf' % (a + 1, a))
            p('v_perm_b32 v%d, v%d, v%d, v28' % (a, a + 1, a))
            p('ds_write_b32 v%d, v%d' % (addr, a)); lg.issue('vx')
    gather_and_project(p, lg, 3, ACC1, 15, 'mem', hooks, tail_order)
    pf(p, 2)
    if POLL2['mem']: p('s_waitcnt vmcnt(0)')
    lg.wait('vx')
    p('s_barrier')
    pf(p, 3)
    for t in range(3):
        for z in range(2):
            p('ds_read_b64_tr_b16 %s, v13 offset:%d' % (vr(VFR + 4 * t + 2 * z, 2), t * 1024 + z * 512)); lg.issue(('vf', t))
    def red(cc, dst):
        a = ACC2 + 4 * cc
        return ['v_add_f32 v%d, v%d, v%d' % (a, a, a + 1), 'v_add_f32 v%d, v%d, v%d' % (a + 2, a + 2, a + 3), 'v_cvt_pk_bf16_f32 v%d, v%d, v%d' % (dst, a, a + 2)]
    def fin(q, voff, soff_add):
        L = ['v_permlane32_swap_b32 v%d, v%d' % (q, q + 2), 'v_permlane32_swap_b32 v%d, v%d' % (q + 1, q + 3)]
        if soff_add: L += ['s_add_u32 s%d, s%d, %d' % (S_T0, S_ZO, soff_add)]
        L += ['v_permlane16_swap_b32 v%d, v%d' % (q, q + 1), 'v_permlane16_swap_b32 v%d, v%d' % (q + 2, q + 3),
              'buffer_store_dwordx4 %s, v%d, s[%d:%d], s%d offen sc1' % (vr(q, 4), voff, S_WS, S_WS + 3, S_T0 if soff_add else S_ZO)]
        return L
    fill = []
    for pr in range(5):
        for t in range(3):
            for cc in (2 * pr, 2 * pr + 1):
                if pr == 0 and cc == 0: lg.wait(('vf', t))
                smf(p, ACC2 + 4 * cc, VFR + 4 * t, 30 + cc * 3 + t, lg, 15)
                if t == 1 and cc == 2 * pr and pr > 0:
                    a0 = 2 * (pr - 1); q = 16 + 4 * (a0 // 4)
                    fill += red(a0, q + (a0 % 4)) + red(a0 + 1, q + (a0 % 4) + 1)
                    if a0 % 4 == 2: fill += fin(q, 14, (a0 // 4) * 4 * BLK)
                for _ in range(2):
                    if fill: p(fill.pop(0))
    last = red(8, 24) + red(9, 25) + ['v_mov_b32 v26, v24', 'v_mov_b32 v27, v25'] + fin(24, 0, 0)
    for ins in fill + last: p(ins)
    pf(p, 4)
    pf_acc(p)
    trace(p, 2, trace_on)
    rnd_write(p, 16384, 40, 41)
    p('s_add_u32 s%d, s%d, 1' % (S_STEP, S_STEP)); p('s_cmp_lt_u32 s%d, s%d' % (S_STEP, S_NST)); p('s_cbranch_scc1 %s' % loop)

R_RED = 0; R_RED2 = 4096
def gen_R2(p, trace_on=False, st=False):
    global CUR_ROLE
    CUR_ROLE = 'R'
    c = S_IDX
    srd(p, S_W1, KA['x'], 2048 * 1280)
    common_lane_setup(p)
    p('s_waitcnt lgkmcnt(0)')
    p('v_and_b32 v3, 1, v1'); p('v_cmp_eq_u32 vcc, 0, v3'); p('v_mov_b32 v3, 0xeeeeeeee'); p('v_mov_b32 v7, 0x44444444'); p('v_cndmask_b32 v3, v3, v7, vcc')
    p('s_lshr_b32 s%d, s%d, 1' % (S_T1, S_WAVE)); p('s_lshl_b32 s%d, s%d, 14' % (S_T1, S_T1)); p('s_and_b32 s%d, s%d, 1' % (S_T0, S_WAVE)); p('s_lshl_b32 s%d, s%d, 12' % (S_T0, S_T0))
    p('s_add_u32 s%d, s%d, s%d' % (S_T0, S_T0, S_T1)); p('v_add_u32 v4, s%d, v2' % S_T0)
    p('v_lshrrev_b32 v8, 4, v1'); p('v_lshlrev_b32 v8, 8, v8'); p('v_and_b32 v9, 15, v1'); p('v_lshlrev_b32 v9, 3, v9'); p('v_add_u32 v8, v8, v9')
    p('s_lshl_b32 s%d, s%d, 10' % (S_T0, S_WAVE)); p('s_add_u32 s%d, s%d, 32768' % (S_T0, S_T0)); p('v_add_u32 v5, s%d, v8' % S_T0)
    p('s_lshl_b32 s%d, s%d, 14' % (S_T0, c)); p('s_lshl_b32 s%d, s%d, 11' % (S_T1, S_WAVE)); p('s_add_u32 s%d, s%d, s%d' % (S_T0, S_T0, S_T1)); p('v_add_u32 v6, s%d, v2' % S_T0)
    p('s_lshl_b32 s%d, s%d, 15' % (S_T0, c)); p('s_lshl_b32 s%d, s%d, 13' % (S_T1, S_WAVE)); p('s_add_u32 s%d, s%d, s%d' % (S_T0, S_T0, S_T1)); p('v_add_u32 v10, s%d, v2' % S_T0)
    p('v_lshrrev_b32 v8, 4, v1'); p('v_lshlrev_b32 v8, 7, v8')
    p('v_bfe_u32 v9, v1, 1, 1'); p('v_lshlrev_b32 v9, 5, v9'); p('v_add_u32 v8, v8, v9')
    p('v_bfe_u32 v9, v1, 2, 2'); p('v_lshlrev_b32 v9, 3, v9'); p('v_add_u32 v8, v8, v9')
    p('v_and_b32 v9, 1, v1'); p('v_lshlrev_b32 v9, 2, v9'); p('v_add_u32 v8, v8, v9')
    p('s_lshl_b32 s%d, s%d, 9' % (S_T0, S_WAVE)); p('v_add_u32 v11, s%d, v8' % S_T0)
    p('v_lshlrev_b32 v12, 3, v1'); p('v_lshrrev_b32 v13, 2, v1'); p('v_lshlrev_b32 v13, 4, v13'); p('s_lshl_b32 s%d, s%d, 8' % (S_T0, c))
    p('s_add_u32 s%d, s%d, 8192' % (S_T1, S_T0)); p('s_cmp_ge_u32 s%d, 32' % c); p('s_cselect_b32 s%d, s%d, s%d' % (S_T0, S_T1, S_T0))
    p('v_add_u32 v13, s%d, v13' % S_T0); p('v_and_b32 v9, 3, v1'); p('v_cmp_eq_u32 vcc, 0, v9'); p('v_mul_u32_u24 v9, %d, v9' % (MEM_COPY * BLK)); p('v_add_u32 v13, v13, v9')
    if CLASSIC['mem']: p('v_mov_b32 v8, 0x7ff00000'); p('v_cndmask_b32 v13, v8, v13, vcc')
    p('v_lshlrev_b32 v14, 2, v1'); p('s_lshl_b32 s%d, s%d, 8' % (S_T0, c)); p('v_add_u32 v14, s%d, v14' % S_T0)
    p('s_lshl_b32 s%d, s%d, 11' % (S_T0, S_WAVE)); p('s_add_u32 s%d, s%d, %d' % (S_T0, S_T0, R_RED2)); p('v_add_u32 v15, s%d, v2' % S_T0)
    p('v_and_b32 v8, 15, v1'); p('s_and_b32 s%d, s%d, 1' % (S_T0, S_WAVE)); p('s_lshl_b32 s%d, s%d, 4' % (S_T0, S_T0)); p('v_add_u32 v8, s%d, v8' % S_T0); p('v_mul_u32_u24 v8, 1280, v8')
    p('v_lshrrev_b32 v9, 4, v1'); p('v_lshlrev_b32 v9, 3, v9'); p('s_lshl_b32 s%d, s%d, 5' % (S_T0, c)); p('v_add_u32 v9, s%d, v9' % S_T0)
    p('v_add_u32 v28, v8, v9')
    p('s_and_b32 s%d, s%d, 1' % (S_T0, S_WAVE)); p('s_lshl_b32 s%d, s%d, 10' % (S_T0, S_T0)); p('s_add_u32 s%d, s%d, %d' % (S_T0, S_T0, R_RED2)); p('v_add_u32 v29, s%d, v2' % S_T0)
    p('v_mov_b32 v33, v9')
    p('s_lshl_b32 s%d, s%d, %d' % (S_T0, c, FSH)); p('v_mov_b32 v30, s%d' % S_T0); p('v_mov_b32 v8, 0x7ff00000'); p('v_cmp_eq_u32 vcc, 0, v1'); p('v_cndmask_b32 v30, v8, v30, vcc')
    p('v_and_b32 v0, 31, v1'); p('v_lshlrev_b32 v0, %d, v0' % FSH)
    p('v_lshlrev_b32 v31, %d, v1' % FSH)
    p('s_mov_b32 s%d, 0' % S_MASK); p('s_mov_b32 s%d, -1' % (S_MASK + 1))
    p('s_mov_b32 s%d, 0' % S_STEP); p('s_mov_b32 s%d, %d' % (S_VOO, OFF_VO))
    ZB = 64; ACC = 16; SENT = 92; PF = 160; PS = 128
    def VOa(k, j, n=4): return ar(40 * k + 4 * j, n)
    def Za(k, a): return ar(40 * k + 32 + 4 * a, 4)
    def vo_load(k):
        for j in range(8):
            if j == 4: p('s_add_u32 s%d, s%d, 4096' % (S_T0, S_VOO))
            p('buffer_load_dwordx4 %s, v10, s[%d:%d], s%d offen offset:%d sc1' % (VOa(k, j), S_WS, S_WS + 3, S_VOO if j < 4 else S_T0, (j % 4) * 1024))
    S_SG = S_T6
    def seg_issue(wait):
        if wait: p('s_add_u32 s%d, s%d, 1' % (S_T3, S_SG)); wait_flags(p, 31, F_P, S_T3, 7, 1)
        p('s_mul_i32 s%d, s%d, 81920' % (S_T4, S_SG)); p('s_add_u32 s%d, s%d, %d' % (S_T4, S_T4, OFF_PS))
        for tau in range(2):
            p('s_lshl_b32 s%d, s%d, 13' % (S_T0, S_WAVE)); p('s_add_u32 s%d, s%d, s%d' % (S_T0, S_T0, S_T4)); p('s_add_u32 s%d, s%d, %d' % (S_T0, S_T0, tau * 32768))
            for j in range(8):
                if j == 4: p('s_add_u32 s%d, s%d, 4096' % (S_T0, S_T0))
                p('buffer_load_dwordx4 %s, v2, s[%d:%d], s%d offen offset:%d sc1' % (ar(PF + 40 * tau + 4 * j, 4), S_WS, S_WS + 3, S_T0, (j % 4) * 1024))
            p('s_lshl_b32 s%d, s%d, 11' % (S_T0, S_WAVE)); p('s_add_u32 s%d, s%d, s%d' % (S_T0, S_T0, S_T4)); p('s_add_u32 s%d, s%d, %d' % (S_T0, S_T0, 65536 + tau * 8192))
            for a in range(2):
                p('buffer_load_dwordx4 %s, v2, s[%d:%d], s%d offen offset:%d sc1' % (ar(PF + 40 * tau + 32 + 4 * a, 4), S_WS, S_WS + 3, S_T0, a * 1024))
        p('s_mul_i32 s%d, s%d, %d' % (S_T5, S_SG, 32 * 1280))
        p('buffer_load_dwordx2 v[100:101], v28, s[%d:%d], s%d offen' % (S_W1, S_W1 + 3, S_T5))
    def seg_compute(k, after):
        for tau in range(2):
            if after is not None: p('s_waitcnt vmcnt(%d)' % ((11 if tau == 0 else 1) + after))
            a = 104 + 4 * tau
            for j in range(8):
                p('v_mfma_f32_16x16x32_bf16 %s, %s, %s, %s' % (vr(a, 4), VOa(k, j), ar(PF + 40 * tau + 4 * j, 4), '0' if j == 0 else vr(a, 4)))
            for aa in range(2):
                p('v_mfma_f32_16x16x32_bf16 %s, %s, %s, %s' % (vr(a, 4), Za(k, aa), ar(PF + 40 * tau + 32 + 4 * aa, 4), vr(a, 4)))
        p('ds_write_b128 v15, v[104:107]'); p('ds_write_b128 v15, v[108:111] offset:1024')
        p('s_waitcnt lgkmcnt(0)'); p('s_barrier')
        l = p.newlabel('LRs'); p('s_cmp_ge_u32 s%d, 2' % S_WAVE); p('s_cbranch_scc1 %s' % l)
        for w in range(4): p('ds_read_b128 %s, v29 offset:%d' % (vr(104 + 4 * w, 4), w * 2048))
        p('s_waitcnt vmcnt(%d) lgkmcnt(0)' % after if after is not None else 's_waitcnt lgkmcnt(0)')
        for r in range(4):
            p('v_add_f32 v%d, v%d, v%d' % (104 + r, 104 + r, 108 + r)); p('v_add_f32 v%d, v%d, v%d' % (112 + r, 112 + r, 116 + r)); p('v_add_f32 v%d, v%d, v%d' % (104 + r, 104 + r, 112 + r))
        p('v_lshlrev_b32 v108, 16, v100'); p('v_and_b32 v109, 0xffff0000, v100'); p('v_lshlrev_b32 v110, 16, v101'); p('v_and_b32 v111, 0xffff0000, v101')
        for r in range(4): p('v_fmac_f32 v%d, v%d, v%d' % (108 + r, 24 + r, 104 + r))
        p('v_cvt_pk_bf16_f32 v100, v108, v109'); p('v_cvt_pk_bf16_f32 v101, v110, v111')
        p('s_mul_i32 s%d, s%d, %d' % (S_T5, S_SG, 32 * 1280)); p('s_add_u32 s%d, s%d, %d' % (S_T5, S_T5, OFF_X1))
        p('buffer_store_dwordx2 v[100:101], v28, s[%d:%d], s%d offen sc1' % (S_WS, S_WS + 3, S_T5))
        p.label(l)
    def x1_flag(val_s):
        p('v_mov_b32 v102, s%d' % val_s); p('s_mov_b32 s%d, %d' % (S_T0, F_X1))
        p('buffer_store_dword v102, v30, s[%d:%d], s%d offen sc1' % (S_WS, S_WS + 3, S_T0))
    if not core.FUSED: parity_probe2(p)
    parity_wait2(p)
    p('s_mov_b32 s%d, %d' % (S_T0, OFF_MOD + 2 * 1280))
    p('buffer_load_dwordx2 v[34:35], v33, s[%d:%d], s%d offen sc1' % (S_WS, S_WS + 3, S_T0))
    p('s_waitcnt vmcnt(0)')
    p('v_lshlrev_b32 v24, 16, v34'); p('v_and_b32 v25, 0xffff0000, v34'); p('v_lshlrev_b32 v26, 16, v35'); p('v_and_b32 v27, 0xffff0000, v35')
    tlb_warm(p, S_WS, OFF_VO, 64 * 40 * 32 * 1024, 36); tlb_warm(p, S_WS, OFF_PS, 64 * 81920 + (2 << 20), 38); tlb_warm(p, S_WS, OFF_X1, 64 * 40960 + (2 << 20), 40); tlb_warm(p, S_W1, 0, 2048 * 1280, 42)
    p('s_mov_b32 s%d, 1' % S_T3); wait_flags(p, 0, F_VO, S_T3, 7)
    vo_load(0)
    stamp(p, 1, st)
    pf_init(p); p('s_mov_b32 s%d, %d' % (S_DLY, DLY_INIT['R'])); p('s_mov_b32 s%d, 0' % S_RSUM); p('s_mov_b32 s%d, 1' % S_RND); rnd_write(p, 16384, 40, 41)
    for r in range(SENT, SENT + 4): p('v_mov_b32 v%d, -1' % r)
    p('v_mov_b32 v99, 0'); p('v_mov_b32 v103, 0')
    def flags_sample():
        p('s_mov_b32 s%d, %d' % (S_T0, F_VO))
        p('buffer_load_dword v103, v0, s[%d:%d], s%d offen sc1' % (S_WS, S_WS + 3, S_T0))
    def flags_check(vo_add):
        lok = p.newlabel('LRok')
        p('s_add_u32 s%d, s%d, %d' % (S_T3, S_STEP, vo_add)); p('s_min_u32 s%d, s%d, 64' % (S_T3, S_T3))
        p('v_cmp_gt_u32 vcc, s%d, v103' % S_T3); p('s_cbranch_vccz %s' % lok)
        wait_flags(p, 0, F_VO, S_T3, 7)
        p.label(lok)
    loop = p.newlabel('LRloop'); core.loop_align(p); p.label(loop)
    for k in range(4):
        pf(p, 0)
        for r in range(ACC, ACC + 4): p('v_mov_b32 v%d, 0' % r)
        offsets2(p, 1)
        lns0 = p.newlabel('LRn0'); p('s_cmp_lt_u32 s%d, 1' % S_STEP); p('s_cbranch_scc1 %s' % lns0)
        p('s_sub_u32 s%d, s%d, 1' % (S_SG, S_STEP))
        lfp = p.newlabel('LRfp')
        p('s_waitcnt vmcnt(10)')
        p('v_cmp_gt_u32 vcc, s%d, v99' % S_STEP); p('s_cbranch_vccz %s' % lfp)
        p('s_mov_b32 s%d, s%d' % (S_T3, S_STEP)); wait_flags(p, 31, F_P, S_T3, 7, 1)
        p.label(lfp)
        seg_issue(False)
        p.label(lns0)
        if k == 3: p('s_cmp_eq_u32 s%d, 63' % S_STEP); p('s_cbranch_scc1 LR_last')
        if not CLASSIC['p']: p('s_waitcnt lgkmcnt(0)'); p('s_barrier'); dly_update(p, 16384, 40)
        def zloads():
            p('buffer_load_dwordx4 %s, v6, s[%d:%d], s%d offen sc1' % (vr(ZB, 4), S_WS, S_WS + 3, S_ZO))
            p('buffer_load_dwordx4 %s, v6, s[%d:%d], s%d offen offset:1024 sc1' % (vr(ZB + 4, 4), S_WS, S_WS + 3, S_ZO))
        def issue(st_, cp):
            if cp: p('s_add_u32 s%d, s%d, %d' % (S_T2, S_PO, cp * P_COPY * BLK))
            so = S_T2 if cp else S_PO; b = PS + 20 * st_
            for z in range(4): p('buffer_load_dwordx4 %s, v4, s[%d:%d], s%d offen offset:%d sc1' % (vr(b + 4 * z, 4), S_WS, S_WS + 3, so, z * 1024))
            for hp in range(2): p('buffer_load_dwordx2 %s, v5, s[%d:%d], s%d offen offset:%d sc1' % (vr(b + 16 + 2 * hp, 2), S_WS, S_WS + 3, so, hp * 128))
        def zcheck():
            ok = p.newlabel('Lzok'); top = p.newlabel('Lzt')
            check_regs(p, range(ZB, ZB + 8), 7, [ZB + 3, ZB + 7]); p('s_cbranch_vccz %s' % ok)
            if POLL2['z']: zloads()
            p.label(top)
            zloads(); p('s_waitcnt vmcnt(%d)' % (2 if POLL2['z'] else 0)); check_regs(p, range(ZB, ZB + 8), 7, None if POLL2['z'] else [ZB + 3, ZB + 7]); p('s_cbranch_vccz %s' % ok)
            if CSLEEP['z']: p('s_sleep %d' % CSLEEP['z'])
            budget(p, ok, top)
            p.label(ok)
        def variant(st_):
            pf(p, 2)
            b = PS + 20 * st_
            p('v_smfmac_f32_16x16x64_bf16 %s, %s, %s, v3' % (vr(ACC, 4), vr(b + 16, 4), vr(ZB, 8)))
            for z in range(4): p('v_smfmac_f32_16x16x64_bf16 %s, %s, %s, v3' % (vr(ACC, 4), vr(b + 4 * z, 4), VOa(k, 2 * z, 8)))
        pf(p, 1)
        multi_poll(p, issue, 6, lambda st_: range(PS + 20 * st_, PS + 20 * st_ + 20), 7, 'p', variant, first_hook=zcheck, pre_issue=zloads,
                   quads=lambda st_: [PS + 20 * st_ + 4 * z + 3 for z in range(4)] + [PS + 20 * st_ + 17, PS + 20 * st_ + 19])
        trace(p, 0, trace_on)
        flags_sample()
        p('v_add_f32 v%d, v%d, v%d' % (ACC, ACC, ACC + 1)); p('v_add_f32 v%d, v%d, v%d' % (ACC + 2, ACC + 2, ACC + 3))
        p('ds_write2_b32 v11, v%d, v%d offset0:0 offset1:16' % (ACC, ACC + 2))
        p('s_waitcnt lgkmcnt(0)')
        p('s_barrier')
        pf(p, 3)
        l = p.newlabel('LRw'); p('s_cmp_lg_u32 s%d, 0' % S_WAVE); p('s_cbranch_scc1 %s' % l)
        for w in range(4): p('ds_read_b64 %s, v12 offset:%d' % (vr(20 + 2 * w, 2) if w < 2 else vr(32 + 2 * (w - 2), 2), w * 512))
        p('s_waitcnt lgkmcnt(0)')
        p('v_add_f32 v20, v20, v22'); p('v_add_f32 v21, v21, v23'); p('v_add_f32 v32, v32, v34'); p('v_add_f32 v33, v33, v35')
        p('v_add_f32 v20, v20, v32'); p('v_add_f32 v21, v21, v33')
        p('v_cvt_pk_bf16_f32 v32, v20, v21')
        for kk in range(4): p('v_mov_b32_dpp v%d, v32 quad_perm:[%d,%d,%d,%d] row_mask:0xf bank_mask:0xf' % (20 + kk, kk, kk, kk, kk))
        p('buffer_store_dwordx4 v[20:23], v13, s[%d:%d], s%d offen sc1' % (S_WS, S_WS + 3, S_MEMO))
        pf(p, 4)
        pf_acc(p)
        trace(p, 2, trace_on)
        if core.HIST:
            p('s_mul_i32 s%d, s%d, 10240' % (S_T0, S_STEP)); p('s_add_u32 s%d, s%d, %d' % (S_T0, S_T0, OFF_HIST + 10240))
            p('buffer_store_dword v32, v14, s[%d:%d], s%d offen' % (S_WS, S_WS + 3, S_T0))
        p.label(l)
        p('s_barrier')
        for r in range(8): p('v_accvgpr_write_b32 a%d, v%d' % (40 * k + 32 + r, ZB + r))
        lq0 = p.newlabel('LRv'); lq1 = p.newlabel('LRv1')
        p('s_cmp_lg_u32 s%d, 0' % S_WAVE); p('s_cbranch_scc1 %s' % lq0)
        p('s_waitcnt vmcnt(%d)' % (2 if core.HIST else 1)); p('s_branch %s' % lq1)
        p.label(lq0); p('s_waitcnt vmcnt(0)'); p.label(lq1)
        flags_check(2)
        p('s_mov_b32 s%d, %d' % (S_T0, F_P))
        p('buffer_load_dword v99, v31, s[%d:%d], s%d offen sc1' % (S_WS, S_WS + 3, S_T0))
        l3 = p.newlabel('LRq'); p('s_cmp_lg_u32 s%d, 1' % S_WAVE); p('s_cbranch_scc1 %s' % l3)
        p('s_and_b32 s%d, s%d, %d' % (S_T0, S_STEP, MEM_RING - 1)); p('s_mul_i32 s%d, s%d, %d' % (S_T0, S_T0, MEM_SLOT * BLK)); p('s_add_u32 s%d, s%d, s%d' % (S_T0, S_T0, S_COMM))
        p('buffer_store_dwordx4 %s, v13, s[%d:%d], s%d offen sc1' % (vr(SENT, 4), S_WS, S_WS + 3, S_T0))
        p.label(l3)
        l4 = p.newlabel('LRx'); p('s_cmp_lg_u32 s%d, 2' % S_WAVE); p('s_cbranch_scc1 %s' % l4)
        p('s_cmp_lt_u32 s%d, 2' % S_STEP); p('s_cbranch_scc1 %s' % l4)
        p('s_sub_u32 s%d, s%d, 1' % (S_T1, S_STEP)); x1_flag(S_T1)
        p.label(l4)
        p('buffer_store_dwordx4 %s, v6, s[%d:%d], s%d offen sc1' % (vr(SENT, 4), S_WS, S_WS + 3, S_ZO))
        p('buffer_store_dwordx4 %s, v6, s[%d:%d], s%d offen offset:1024 sc1' % (vr(SENT, 4), S_WS, S_WS + 3, S_ZO))
        p('s_add_u32 s%d, s%d, %d' % (S_VOO, S_VOO, 40 * 32 * 1024))
        vo_load((k + 1) & 3)
        rnd_write(p, 16384, 40, 41)
        lns = p.newlabel('LRns')
        p('s_cmp_lt_u32 s%d, 1' % S_STEP); p('s_cbranch_scc1 %s' % lns)
        seg_compute((k + 3) & 3, None)
        p.label(lns)
        p('s_add_u32 s%d, s%d, 1' % (S_STEP, S_STEP))
    p('s_branch %s' % loop)
    p.label('LR_last')
    p('s_waitcnt vmcnt(0)'); p('s_barrier')
    l = p.newlabel('LRf1'); p('s_cmp_lg_u32 s%d, 2' % S_WAVE); p('s_cbranch_scc1 %s' % l)
    p('s_mov_b32 s%d, 62' % S_T1); x1_flag(S_T1)
    p.label(l)
    seg_compute(2, None)
    top = p.newlabel('Lzl'); ok = p.newlabel('Lzlok')
    p.label(top)
    p('buffer_load_dwordx4 %s, v6, s[%d:%d], s%d offen sc1' % (vr(ZB, 4), S_WS, S_WS + 3, S_ZO))
    p('buffer_load_dwordx4 %s, v6, s[%d:%d], s%d offen offset:1024 sc1' % (vr(ZB + 4, 4), S_WS, S_WS + 3, S_ZO))
    p('s_waitcnt vmcnt(0)'); check_regs(p, range(ZB, ZB + 8), 7, [ZB + 3, ZB + 7]); p('s_cbranch_vccz %s' % ok)
    budget(p, ok, top)
    p.label(ok)
    for r in range(8): p('v_accvgpr_write_b32 a%d, v%d' % (40 * 3 + 32 + r, ZB + r))
    p('s_barrier')
    l = p.newlabel('LRf2'); p('s_cmp_lg_u32 s%d, 2' % S_WAVE); p('s_cbranch_scc1 %s' % l)
    p('s_mov_b32 s%d, 63' % S_T1); x1_flag(S_T1)
    p.label(l)
    p('s_mov_b32 s%d, 63' % S_SG); seg_issue(True); seg_compute(3, 0)
    p('s_waitcnt vmcnt(0)'); p('s_barrier')
    l = p.newlabel('LRf'); p('s_cmp_lg_u32 s%d, 2' % S_WAVE); p('s_cbranch_scc1 %s' % l)
    p('s_mov_b32 s%d, 64' % S_T1); x1_flag(S_T1)
    p.label(l)
```

```python
from core import *
import core
from core2 import ready

def flag_store(p, voff, foff_add_s, val_s, tmpv):
    p('v_mov_b32 v%d, s%d' % (tmpv, val_s))
    p('buffer_store_dword v%d, v%d, s[%d:%d], s%d offen sc1' % (tmpv, voff, S_WS, S_WS + 3, foff_add_s))

def one_lane_off(p, dst, tmp, off_s=None, const=0):
    if off_s is not None: p('v_mov_b32 v%d, s%d' % (dst, off_s))
    else: p('v_mov_b32 v%d, %d' % (dst, const))
    p('v_mov_b32 v%d, 0x7ff00000' % tmp); p('v_cmp_eq_u32 vcc, 0, v0'); p('v_cndmask_b32 v%d, v%d, v%d, vcc' % (dst, tmp, dst))

def tr_base(p, dst, rowbytes, rowmul, stg_s, t1, t2):
    p('v_lshrrev_b32 v%d, 4, v1' % t1); p('v_mul_u32_u24 v%d, %d, v%d' % (t1, rowmul, t1))
    p('v_bfe_u32 v%d, v1, 2, 2' % t2); p('v_add_u32 v%d, v%d, v%d' % (t1, t1, t2))
    p('v_mul_u32_u24 v%d, %d, v%d' % (t1, rowbytes, t1)); p('v_and_b32 v%d, 3, v1' % t2); p('v_lshlrev_b32 v%d, 3, v%d' % (t2, t2))
    p('v_add_u32 v%d, v%d, v%d' % (dst, t1, t2)); p('v_add_u32 v%d, s%d, v%d' % (dst, stg_s, dst))

class WStream:
    def __init__(self, p, lg, wres_v, base):
        self.p = p; self.lg = lg; self.v = wres_v; self.base = base
    def load(self, k):
        b = self.base + 8 * (k & 1)
        self.p('ds_read_b128 %s, v%d offset:%d' % (vr(b, 4), self.v, k * 2048)); self.lg.issue(('w', k))
        self.p('ds_read_b128 %s, v%d offset:%d' % (vr(b + 4, 4), self.v, k * 2048 + 1024)); self.lg.issue(('w', k))
    def operand(self, o, half):
        kind, n = UM[o]
        if kind == 'reg': return unit_reg(n, 4 * half, 4)
        self.lg.wait(('w', n))
        return vr(self.base + 8 * (n & 1) + 4 * half, 4)
    def done(self, o, wrap=True):
        kind, n = UM[o]
        if kind == 'lds':
            if n + 2 < 12: self.load(n + 2)
            elif wrap: self.load(n + 2 - 12)

S_SEG = S_STEP
BP_DELAY = 80
S_HO = 26; S_LB = 27; S_LB1 = 28; S_LB2 = 29; S_OUT = 30; S_FL = 44; S_VAL = 45

def gen_AP(p, st=False):
    lg = Cnt(p, 'lgkmcnt', 15); vm = Cnt(p, 'vmcnt', 63)
    h = S_IDX
    p('s_load_dwordx2 s[%d:%d], s[0:1], %d' % (S_W1, S_W1 + 1, KA['Wq'])); p('s_load_dwordx2 s[%d:%d], s[0:1], %d' % (S_W2, S_W2 + 1, KA['Wk']))
    common_lane_setup(p)
    p('s_waitcnt lgkmcnt(0)')
    p('s_cmp_ge_u32 s%d, 2' % S_WAVE)
    p('s_cselect_b32 s%d, s%d, s%d' % (S_W1, S_W2, S_W1)); p('s_cselect_b32 s%d, s%d, s%d' % (S_W1 + 1, S_W2 + 1, S_W1 + 1))
    p('s_mov_b32 s%d, 0x%x' % (S_W1 + 2, 640 * 12288)); p('s_mov_b32 s%d, 0x00020000' % (S_W1 + 3))
    one_lane_off(p, 8, 80, off_s=None, const=0); p('s_lshl_b32 s%d, s%d, %d' % (S_T0, h, FSH)); p('s_add_u32 s%d, s%d, %d' % (S_FL, S_T0, F_QK))
    p('s_mul_i32 s%d, s%d, 24576' % (S_T0, S_WAVE)); p('s_add_u32 s%d, s%d, 65536' % (S_T0, S_T0)); p('v_add_u32 v15, s%d, v2' % S_T0)
    p('s_lshl_b32 s%d, s%d, 14' % (S_T4, S_WAVE))
    voffs = [80, 81, 82]
    stage_offsets(p, voffs, 6, 12288, 1, 83, 84)
    tr_base(p, 85, 96, 8, S_T4, 83, 84)
    p('s_mul_i32 s%d, s%d, 384' % (S_T5, h)); p('s_and_b32 s%d, s%d, 1' % (S_T0, S_WAVE)); p('s_mul_i32 s%d, s%d, 192' % (S_T0, S_T0)); p('s_add_u32 s%d, s%d, s%d' % (S_T5, S_T5, S_T0))
    jobs = []
    for u in range(20):
        for ch in range(2):
            def soff(dst, u=u, ch=ch): p('s_add_u32 s%d, s%d, %d' % (dst, S_T5, u * 32 * 12288 + ch * 96))
            dests = []
            for xx in range(3):
                x = ch * 3 + xx
                kind, n = UM[(u >> 1) * 6 + x]; half = u & 1
                if kind == 'reg': dests.append((xx * 32, ('reg', unit_reg(n, 4 * half, 2), unit_reg(n, 4 * half + 2, 2))))
                else: dests.append((xx * 32, ('lds', n * 2048 + half * 1024)))
            jobs.append(dict(srd=S_W1, soff=soff, dests=dests))
    load_weights_type1(p, jobs, 85, 3072, 5, voffs, 3, 96, lg, vm, 15, 88, S_T4)
    p('s_barrier')
    stamp(p, 3, st)
    tlb_warm(p, S_WS, OFF_QK, 64 * 32 * 24576, 36); tlb_warm(p, S_WS, OFF_H, 64 * 40960 + (2 << 20), 38)
    ready(p, True, 0)
    stamp(p, 1, st)
    p('s_mul_i32 s%d, s%d, 24576' % (S_OUT, h)); p('s_lshr_b32 s%d, s%d, 1' % (S_T0, S_WAVE)); p('s_mul_i32 s%d, s%d, 12288' % (S_T0, S_T0)); p('s_add_u32 s%d, s%d, s%d' % (S_OUT, S_OUT, S_T0))
    p('s_and_b32 s%d, s%d, 1' % (S_T0, S_WAVE)); p('s_mul_i32 s%d, s%d, 3072' % (S_T0, S_T0)); p('s_add_u32 s%d, s%d, s%d' % (S_OUT, S_OUT, S_T0)); p('s_add_u32 s%d, s%d, %d' % (S_OUT, S_OUT, OFF_QK))
    p('s_lshr_b32 s%d, s%d, 1' % (S_T0, S_WAVE)); p('s_and_b32 s%d, s%d, 1' % (S_T1, S_WAVE)); p('s_mul_i32 s%d, s%d, 5120' % (S_T1, S_T1))
    p('s_mul_i32 s%d, s%d, 20480' % (S_T2, S_T0)); p('s_add_u32 s%d, s%d, s%d' % (S_T5, S_T2, S_T1)); p('s_add_u32 s%d, s%d, %d' % (S_T5, S_T5, OFF_H))
    p('s_mul_i32 s%d, s%d, 10240' % (S_T2, S_T0)); p('s_add_u32 s%d, s%d, s%d' % (S_T6, S_T2, S_T1))
    def dma(slot_s, goff_s):
        for i in range(5):
            p('s_add_u32 s%d, s%d, s%d' % (S_T0, slot_s, S_T6));
            if i: p('s_add_u32 s%d, s%d, %d' % (S_T0, S_T0, i * 1024))
            p('s_mov_b32 m0, s%d' % S_T0)
            p('s_add_u32 s%d, s%d, %d' % (S_T1, goff_s, i * 1024))
            p('buffer_load_dwordx4 v2, s[%d:%d], s%d offen sc1 lds' % (S_WS, S_WS + 3, S_T1))
    p('s_mov_b32 s%d, 0' % S_LB); p('s_mov_b32 s%d, 20480' % S_LB1); p('s_mov_b32 s%d, 40960' % S_LB2)
    p('s_mov_b32 s%d, s%d' % (S_HO, S_T5))
    dma(S_LB, S_HO); p('s_add_u32 s%d, s%d, 10240' % (S_HO, S_HO)); dma(S_LB1, S_HO)
    p('s_add_u32 s%d, s%d, %d' % (S_HO, S_HO, 40960 - 10240))
    ws = WStream(p, lg, 15, 80)
    ACC = 16; HF = 64; OUT = 96
    p('s_mov_b32 s%d, 0' % S_SEG)
    ws.load(0); ws.load(1)
    first = p.newlabel('LAPf')
    p('s_waitcnt vmcnt(5)')
    p('s_branch %s' % first)
    loop = p.newlabel('LAPl'); core.loop_align(p); p.label(loop)
    lh = p.newlabel('LAPh'); p('s_cmp_lg_u32 s%d, 16' % S_SEG); p('s_cbranch_scc1 %s' % lh)
    ready(p, True, 1)
    p.label(lh)
    p('s_waitcnt vmcnt(12)')
    p.label(first)
    lg.q = [('w', 0), ('w', 0), ('w', 1), ('w', 1)]
    for hf in range(2):
        if hf == 1: p('s_waitcnt vmcnt(0)')
        p('s_barrier')
        if hf == 1:
            flag_store(p, 8, S_FL, S_SEG, 9)
        dma(S_LB2, S_HO)
        p('s_add_u32 s%d, s%d, %d' % (S_HO, S_HO, 10240 if hf == 0 else 40960 - 10240))
        p('v_add_u32 v10, s%d, v2' % S_LB)
        def hread(uu):
            b = HF + 8 * (uu & 1)
            for tau in range(2):
                p('ds_read_b128 %s, v10 offset:%d' % (vr(b + 4 * tau, 4), tau * 10240 + uu * 1024)); lg.issue(('h', uu))
        hread(0)
        for uu in range(10):
            u = 10 * hf + uu; t = u >> 1; half = u & 1
            if uu + 1 < 10: hread(uu + 1)
            lg.wait(('h', uu))
            for x in range(6):
                o = t * 6 + x
                wop = ws.operand(o, half)
                for tau in range(2):
                    a = ACC + 8 * x + 4 * tau
                    p('v_mfma_f32_16x16x32_bf16 %s, %s, %s, %s' % (vr(a, 4), wop, vr(HF + 8 * (uu & 1) + 4 * tau, 4), '0' if u == 0 else vr(a, 4)))
                if half == 1: ws.done(o)
        p('s_mov_b32 s%d, s%d' % (S_T0, S_LB)); p('s_mov_b32 s%d, s%d' % (S_LB, S_LB1)); p('s_mov_b32 s%d, s%d' % (S_LB1, S_LB2)); p('s_mov_b32 s%d, s%d' % (S_LB2, S_T0))
    for pr in range(3):
        for tau in range(2):
            o = OUT + 4 * ((pr * 2 + tau) % 6)
            a0 = ACC + 8 * (2 * pr) + 4 * tau; a1 = ACC + 8 * (2 * pr + 1) + 4 * tau
            p('v_cvt_pk_bf16_f32 v%d, v%d, v%d' % (o, a0, a0 + 1)); p('v_cvt_pk_bf16_f32 v%d, v%d, v%d' % (o + 1, a0 + 2, a0 + 3))
            p('v_cvt_pk_bf16_f32 v%d, v%d, v%d' % (o + 2, a1, a1 + 1)); p('v_cvt_pk_bf16_f32 v%d, v%d, v%d' % (o + 3, a1 + 2, a1 + 3))
            p('s_add_u32 s%d, s%d, %d' % (S_T0, S_OUT, tau * 6144 + pr * 1024))
            p('buffer_store_dwordx4 %s, v2, s[%d:%d], s%d offen sc1' % (vr(o, 4), S_WS, S_WS + 3, S_T0))
    p('s_add_u32 s%d, s%d, %d' % (S_OUT, S_OUT, 32 * 24576))
    p('s_add_u32 s%d, s%d, 1' % (S_SEG, S_SEG))
    l0 = p.newlabel('LAP0'); p('s_cmp_lg_u32 s%d, 1' % S_SEG); p('s_cbranch_scc1 %s' % l0)
    p('s_waitcnt vmcnt(0)'); ready(p); flag_store(p, 8, S_FL, S_SEG, 9)
    p.label(l0)
    p('s_cmp_lt_u32 s%d, s%d' % (S_SEG, S_NST)); p('s_cbranch_scc1 %s' % loop)
    p('s_waitcnt vmcnt(0) lgkmcnt(0)'); p('s_barrier')
    flag_store(p, 8, S_FL, S_SEG, 9)

BP_H = 0; BP_VX = 40960
def gen_BP(p, st=False):
    lg = Cnt(p, 'lgkmcnt', 15); vm = Cnt(p, 'vmcnt', 63)
    h = S_IDX
    srd(p, S_W1, KA['Wv'], 640 * 12288); srd(p, S_W2, KA['Wo'], 32 * 192 * 1280)
    common_lane_setup(p)
    p('s_waitcnt lgkmcnt(0)')
    p('v_lshlrev_b32 v8, 13, v0'); p('v_mov_b32 v80, 0x7ff00000'); p('v_cmp_gt_u32 vcc, 2, v0'); p('v_cndmask_b32 v8, v80, v8, vcc')
    p('s_lshl_b32 s%d, s%d, %d' % (S_T0, h, FSH)); p('s_add_u32 s%d, s%d, %d' % (S_FL, S_T0, OFF_COMM + BLK_FV * BLK))
    p('s_mul_i32 s%d, s%d, 24576' % (S_T0, S_WAVE)); p('s_add_u32 s%d, s%d, 65536' % (S_T0, S_T0)); p('v_add_u32 v15, s%d, v2' % S_T0)
    p('s_lshl_b32 s%d, s%d, 14' % (S_T4, S_WAVE))
    voffs = [80, 81, 82]
    stage_offsets(p, voffs, 6, 12288, 1, 83, 84)
    tr_base(p, 85, 96, 8, S_T4, 83, 84)
    p('s_mul_i32 s%d, s%d, 384' % (S_T5, h)); p('s_mul_i32 s%d, s%d, 96' % (S_T0, S_WAVE)); p('s_add_u32 s%d, s%d, s%d' % (S_T5, S_T5, S_T0))
    sleep_units(p, BP_DELAY)
    jobs = []
    for u in range(20):
        def soff(dst, u=u): p('s_add_u32 s%d, s%d, %d' % (dst, S_T5, u * 32 * 12288))
        dests = []
        for x in range(3):
            kind, n = UM[(u >> 1) * 3 + x]; half = u & 1
            if kind == 'reg': dests.append((x * 32, ('reg', unit_reg(n, 4 * half, 2), unit_reg(n, 4 * half + 2, 2))))
            else: dests.append((x * 32, ('lds', n * 2048 + half * 1024)))
        jobs.append(dict(srd=S_W1, soff=soff, dests=dests))
    load_weights_type1(p, jobs, 85, 3072, 5, voffs, 3, 96, lg, vm, 15, 88, S_T4)
    voffs = [100, 101, 102, 103, 104]
    stage_offsets(p, voffs, 10, 1280, 1, 83, 84)
    tr_base(p, 86, 160, 4, S_T4, 83, 84)
    p('s_mul_i32 s%d, s%d, %d' % (S_T5, h, 192 * 1280)); p('s_mul_i32 s%d, s%d, 320' % (S_T0, S_WAVE)); p('s_add_u32 s%d, s%d, s%d' % (S_T5, S_T5, S_T0))
    jobs = []
    for u in range(6):
        for ch in range(2):
            def soff(dst, u=u, ch=ch): p('s_add_u32 s%d, s%d, %d' % (dst, S_T5, u * 32 * 1280 + ch * 160))
            dests = []
            for x in range(5):
                cc = ch * 5 + x
                kind, n = UM[30 + cc * 3 + (u >> 1)]; half = u & 1
                if kind == 'reg': dests.append((x * 32, ('reg', unit_reg(n, 4 * half, 2), unit_reg(n, 4 * half + 2, 2))))
                else: dests.append((x * 32, ('lds', n * 2048 + half * 1024)))
            jobs.append(dict(srd=S_W2, soff=soff, dests=dests))
    load_weights_type1(p, jobs, 86, 5120, 3, voffs, 5, 160, lg, vm, 15, 88, S_T4, zrows=16)
    p('s_barrier')
    stamp(p, 3, st)
    tlb_warm(p, S_WS, OFF_VO, 64 * 40 * 32 * 1024, 36); tlb_warm(p, S_WS, OFF_H, 64 * 40960 + (2 << 20), 38)
    ready(p, True, 0)
    stamp(p, 1, st)
    for x in range(3):
        p('s_mul_i32 s%d, s%d, 3' % (S_T0, S_WAVE)); p('s_add_u32 s%d, s%d, %d' % (S_T0, S_T0, x))
        p('s_lshr_b32 s%d, s%d, 1' % (S_T1, S_T0)); p('s_lshl_b32 s%d, s%d, 10' % (S_T1, S_T1))
        p('s_and_b32 s%d, s%d, 1' % (S_T0, S_T0)); p('s_lshl_b32 s%d, s%d, 3' % (S_T0, S_T0)); p('s_add_u32 s%d, s%d, s%d' % (S_T0, S_T0, S_T1)); p('s_add_u32 s%d, s%d, %d' % (S_T0, S_T0, BP_VX))
        p('v_add_u32 v%d, s%d, v2' % (10 + x, S_T0))
    p('v_add_u32 v13, %d, v2' % BP_VX)
    p('s_mul_i32 s%d, s%d, 10240' % (S_T6, S_WAVE)); p('s_add_u32 s%d, s%d, %d' % (S_HO, S_T6, OFF_H))
    def dma():
        for i in range(10):
            p('s_add_u32 s%d, s%d, %d' % (S_T0, S_T6, BP_H + i * 1024)); p('s_mov_b32 m0, s%d' % S_T0)
            p('s_add_u32 s%d, s%d, %d' % (S_T1, S_HO, i * 1024))
            p('buffer_load_dwordx4 v2, s[%d:%d], s%d offen sc1 lds' % (S_WS, S_WS + 3, S_T1))
    dma()
    p('s_mul_i32 s%d, s%d, %d' % (S_OUT, S_WAVE, 10 * 32768)); p('s_lshl_b32 s%d, s%d, 10' % (S_T0, h)); p('s_add_u32 s%d, s%d, s%d' % (S_OUT, S_OUT, S_T0)); p('s_add_u32 s%d, s%d, %d' % (S_OUT, S_OUT, OFF_VO))
    ws = WStream(p, lg, 15, 56)
    ACCV = 16; HF = 40; VF = 72; ACCO = 16; OUT = 32
    p('s_mov_b32 s%d, 0' % S_SEG)
    ws.load(0); ws.load(1)
    first = p.newlabel('LBPf')
    p('s_waitcnt vmcnt(0)'); p('s_branch %s' % first)
    loop = p.newlabel('LBPl'); core.loop_align(p); p.label(loop)
    lh = p.newlabel('LBPh'); p('s_cmp_lg_u32 s%d, 16' % S_SEG); p('s_cbranch_scc1 %s' % lh)
    ready(p, True, 1)
    p.label(lh)
    p('s_waitcnt vmcnt(10)')
    p.label(first)
    lg.q = [('w', 0), ('w', 0), ('w', 1), ('w', 1)]
    p('s_barrier')
    def hread(u):
        b = HF + 8 * (u & 1)
        for tau in range(2):
            p('ds_read_b128 %s, v2 offset:%d' % (vr(b + 4 * tau, 4), BP_H + tau * 20480 + u * 1024)); lg.issue(('h', u))
    hread(0)
    for u in range(20):
        t = u >> 1; half = u & 1
        if u + 1 < 20: hread(u + 1)
        lg.wait(('h', u))
        for x in range(3):
            o = t * 3 + x
            wop = ws.operand(o, half)
            for tau in range(2):
                a = ACCV + 8 * x + 4 * tau
                p('v_mfma_f32_16x16x32_bf16 %s, %s, %s, %s' % (vr(a, 4), wop, vr(HF + 8 * (u & 1) + 4 * tau, 4), '0' if u == 0 else vr(a, 4)))
            if half == 1: ws.done(o)
    for x in range(3):
        for tau in range(2):
            a = ACCV + 8 * x + 4 * tau
            p('v_cvt_pk_bf16_f32 v%d, v%d, v%d' % (a, a, a + 1)); p('v_cvt_pk_bf16_f32 v%d, v%d, v%d' % (a + 1, a + 2, a + 3))
            p('ds_write_b64 v%d, %s offset:%d' % (10 + x, vr(a, 2), tau * 6144)); lg.issue('vx')
    p('s_waitcnt vmcnt(0)')
    lg.wait('vx')
    p('s_barrier')
    flag_store(p, 8, S_FL, S_SEG, 9)
    p('s_add_u32 s%d, s%d, 40960' % (S_HO, S_HO)); dma()
    for tau in range(2):
        for u in range(6):
            p('ds_read_b128 %s, v13 offset:%d' % (vr(VF + 4 * (tau * 6 + u), 4), tau * 6144 + u * 1024)); lg.issue(('v', tau * 6 + u))
    def epi(cc):
        a = ACCO + 8 * (cc & 1); o = OUT + 4 * (cc & 1)
        p('v_cvt_pk_bf16_f32 v%d, v%d, v%d' % (o, a, a + 1)); p('v_cvt_pk_bf16_f32 v%d, v%d, v%d' % (o + 1, a + 2, a + 3))
        p('v_cvt_pk_bf16_f32 v%d, v%d, v%d' % (o + 2, a + 4, a + 5)); p('v_cvt_pk_bf16_f32 v%d, v%d, v%d' % (o + 3, a + 6, a + 7))
        p('s_add_u32 s%d, s%d, %d' % (S_T0, S_OUT, cc * 32768))
        p('buffer_store_dwordx4 %s, v2, s[%d:%d], s%d offen sc1' % (vr(o, 4), S_WS, S_WS + 3, S_T0))
    for cc in range(10):
        for u in range(6):
            o = 30 + cc * 3 + (u >> 1); half = u & 1
            wop = ws.operand(o, half)
            for tau in range(2):
                if cc == 0: lg.wait(('v', tau * 6 + u))
                a = ACCO + 8 * (cc & 1) + 4 * tau
                p('v_mfma_f32_16x16x32_bf16 %s, %s, %s, %s' % (vr(a, 4), vr(VF + 4 * (tau * 6 + u), 4), wop, '0' if u == 0 else vr(a, 4)))
            if half == 1: ws.done(o)
            if u == 2 and cc > 0: epi(cc - 1)
    epi(9)
    p('s_add_u32 s%d, s%d, %d' % (S_OUT, S_OUT, 40 * 32768))
    p('s_add_u32 s%d, s%d, 1' % (S_SEG, S_SEG))
    l0 = p.newlabel('LBP0'); p('s_cmp_lg_u32 s%d, 1' % S_SEG); p('s_cbranch_scc1 %s' % l0)
    p('s_waitcnt vmcnt(0)'); ready(p); flag_store(p, 8, S_FL, S_SEG, 9)
    p.label(l0)
    p('s_cmp_lt_u32 s%d, s%d' % (S_SEG, S_NST)); p('s_cbranch_scc1 %s' % loop)
    p('s_waitcnt vmcnt(0) lgkmcnt(0)'); p('s_barrier')
    flag_store(p, 8, S_FL, S_SEG, 9)
```

```python
from asmlib import Prog
from layout import *

WS_BYTES = 268435456
KA = dict(x=0, mem0=8, Wq=16, Wk=24, Wv=32, Wo=40, wg=64, wu=72, wd=80, c=88, wmod=96, out=104, dbg=112, ws=120)

FS = 128
F_QK = OFF_FLAGS; F_VO = F_QK + 32 * FS; F_P = F_VO + 32 * FS; F_X1 = F_P + 64 * FS; F_H2 = F_X1 + 40 * FS; F_HM = F_H2 + 4 * FS; F_END = F_HM + 48 * FS
FSH = 7
S_WS = 4
S_W1 = 8
S_W2 = 12
S_WAVE = 16; S_IDX = 17; S_STEP = 18; S_SPIN = 19
S_T0 = 20; S_T1 = 21; S_T2 = 22; S_T3 = 23
S_MASK = 24
S_MEMO = 26; S_PO = 27; S_ZO = 28; S_QKO = 29; S_VOO = 30; S_NST = 31
S_DBG = 32
S_T4 = 34; S_T5 = 35; S_T6 = 36; S_T7 = 37
S_C = 38
S_TR0 = 40
S_TRO = 42
S_COMM = 43
S_NONCE = 70
PARITY = 0
DYN_PAR = False
HIST = True
SPIN_BUDGET = 400000

class Cnt:
    def __init__(self, p, name, maxv):
        self.p = p; self.name = name; self.maxv = maxv; self.q = []
    def issue(self, tag): self.q.append(tag)
    def wait(self, tag):
        if tag not in self.q: return
        i = len(self.q) - 1 - self.q[::-1].index(tag)
        n = len(self.q) - 1 - i
        n = min(n, self.maxv)
        self.p('s_waitcnt %s(%d)' % (self.name, n))
        self.q = self.q[len(self.q) - n:] if n else []
    def drain(self):
        self.p('s_waitcnt %s(0)' % self.name); self.q = []
    def reset(self): self.q = []

def srd(p, s, karg, nbytes):
    p('s_load_dwordx2 s[%d:%d], s[0:1], %d' % (s, s + 1, karg))
    p('s_mov_b32 s%d, 0x%x' % (s + 2, nbytes))
    p('s_mov_b32 s%d, 0x00020000' % (s + 3))

def vr(a, n=1): return 'v%d' % a if n == 1 else 'v[%d:%d]' % (a, a + n - 1)
def ar(a, n=1): return 'a%d' % a if n == 1 else 'a[%d:%d]' % (a, a + n - 1)

def unit_reg(rr, lo=0, n=8):
    if rr < 32: return ar(8 * rr + lo, n)
    return vr(128 + 8 * (rr - 32) + lo, n)

def unit_map():
    m = []; rr = 0
    for o in range(60):
        if o % 5 == 4: m.append(('lds', o // 5))
        else: m.append(('reg', rr)); rr += 1
    return m
UM = unit_map()

def poll_check(p, regs, tmp, done, again):
    r = list(regs)
    p('v_max3_u32 v%d, v%d, v%d, v%d' % (tmp, r[0], r[1], r[2])); r = r[3:]
    while len(r) >= 2:
        p('v_max3_u32 v%d, v%d, v%d, v%d' % (tmp, tmp, r[0], r[1])); r = r[2:]
    if r: p('v_max_u32 v%d, v%d, v%d' % (tmp, tmp, r[0]))
    p('v_cmp_eq_u32 vcc, -1, v%d' % tmp)
    p('s_cbranch_vccz %s' % done)
    p('s_cmp_eq_u32 s%d, 0' % S_SPIN)
    p('s_cbranch_scc1 %s' % done)
    p('s_sub_u32 s%d, s%d, 1' % (S_SPIN, S_SPIN))
    p('s_branch %s' % again)

POLL_D = 4
POLL_DK = {}
R_MODE = 0
POLL_SLEEP = {'mem': 1, 'z': 1, 'p': 2}
PRE_SLEEP = {'memA': 0, 'memB': 0, 'z': 0, 'p': 0}
def poll_loop(p, loads, regs, tmp, kind, pre=None):
    top = p.newlabel('Lpl'); done = p.newlabel('Lpld')
    for r in regs: p('v_mov_b32 v%d, -1' % r)
    if pre and PRE_SLEEP[pre]: p('s_sleep %d' % PRE_SLEEP[pre])
    p.label(top)
    n = loads()
    p('s_waitcnt vmcnt(%d)' % (n * (POLL_DK.get(kind, POLL_D) - 1)))
    r = list(regs)
    p('v_max3_u32 v%d, v%d, v%d, v%d' % (tmp, r[0], r[1], r[2])); r = r[3:]
    while len(r) >= 2:
        p('v_max3_u32 v%d, v%d, v%d, v%d' % (tmp, tmp, r[0], r[1])); r = r[2:]
    if r: p('v_max_u32 v%d, v%d, v%d' % (tmp, tmp, r[0]))
    p('v_cmp_eq_u32 vcc, -1, v%d' % tmp)
    p('s_cbranch_vccz %s' % done)
    if POLL_SLEEP[kind]: p('s_sleep %d' % POLL_SLEEP[kind])
    p('s_cmp_eq_u32 s%d, 0' % S_SPIN)
    p('s_cbranch_scc1 %s' % done)
    p('s_sub_u32 s%d, s%d, 1' % (S_SPIN, S_SPIN))
    p('s_branch %s' % top)
    p.label(done)

def step_offsets(p, mem_add=0, want=('mem', 'p', 'z')):
    if 'mem' in want:
        p('s_add_u32 s%d, s%d, %d' % (S_T0, S_STEP, mem_add)); p('s_and_b32 s%d, s%d, %d' % (S_T0, S_T0, MEM_RING - 1))
        p('s_lshl_b32 s%d, s%d, 15' % (S_T0, S_T0)); p('s_add_u32 s%d, s%d, s%d' % (S_MEMO, S_T0, S_COMM))
        if BLK_MEM: p('s_add_u32 s%d, s%d, %d' % (S_MEMO, S_MEMO, BLK_MEM * BLK))
    if 'p' in want:
        p('s_and_b32 s%d, s%d, %d' % (S_T0, S_STEP, P_RING - 1)); p('s_mul_i32 s%d, s%d, %d' % (S_T0, S_T0, 3 * BLK))
        p('s_add_u32 s%d, s%d, s%d' % (S_PO, S_T0, S_COMM)); p('s_add_u32 s%d, s%d, %d' % (S_PO, S_PO, BLK_P * BLK))
    if 'z' in want:
        p('s_and_b32 s%d, s%d, %d' % (S_T0, S_STEP, Z_RING - 1)); p('s_mul_i32 s%d, s%d, %d' % (S_T0, S_T0, 40 * BLK))
        p('s_add_u32 s%d, s%d, s%d' % (S_ZO, S_T0, S_COMM)); p('s_add_u32 s%d, s%d, %d' % (S_ZO, S_ZO, BLK_Z * BLK))

def comm_setup(p):
    p('s_add_u32 s%d, s%d, %d' % (S_T0, S_WS, OFF_COMM))
    p('s_sub_u32 s%d, 0, s%d' % (S_T0, S_T0)); p('s_and_b32 s%d, s%d, 0x1fffff' % (S_T0, S_T0))
    p('s_add_u32 s%d, s%d, %d' % (S_COMM, S_T0, OFF_COMM + (0 if DYN_PAR else PARITY * 8192)))

def wait_flags(p, voff, foff, need_s, tmp, sleep=2):
    top = p.newlabel('Lwf'); done = p.newlabel('Lwfd')
    p('s_mov_b32 s%d, %d' % (S_T2, foff))
    p.label(top)
    p('buffer_load_dword v%d, v%d, s[%d:%d], s%d offen sc1' % (tmp, voff, S_WS, S_WS + 3, S_T2))
    p('s_waitcnt vmcnt(0)')
    p('v_cmp_gt_u32 vcc, s%d, v%d' % (need_s, tmp))
    p('s_cbranch_vccz %s' % done)
    p('s_sleep %d' % sleep)
    p('s_cmp_eq_u32 s%d, 0' % S_SPIN); p('s_cbranch_scc1 %s' % done)
    p('s_sub_u32 s%d, s%d, 1' % (S_SPIN, S_SPIN)); p('s_branch %s' % top)
    p.label(done)

def wait_flags_w0(p, voff, foff, need_s, tmp, sleep=4):
    l = p.newlabel('Lw0'); p('s_cmp_lg_u32 s%d, 0' % S_WAVE); p('s_cbranch_scc1 %s' % l)
    wait_flags(p, voff, foff, need_s, tmp, sleep)
    p.label(l)

def dbg_srd(p, s):
    p('s_mov_b32 s%d, s%d' % (s, S_DBG)); p('s_mov_b32 s%d, s%d' % (s + 1, S_DBG + 1))
    p('s_mov_b32 s%d, 256' % (s + 2)); p('s_mov_b32 s%d, 0x00020000' % (s + 3))

def parity_probe(p):
    if not DYN_PAR: return
    l = p.newlabel('Lpp'); p('s_cmp_lg_u32 s%d, 0' % S_WAVE); p('s_cbranch_scc1 %s' % l)
    p('s_cmp_lg_u32 s%d, 0' % S_IDX); p('s_cbranch_scc1 %s' % l)
    p('v_mov_b32 v16, 0'); p('v_mov_b32 v17, -1')
    p('s_mov_b32 s48, 0'); p('s_mov_b32 s49, 0')
    for i in range(4):
        for par in range(2):
            p('s_add_u32 s%d, s%d, %d' % (S_T0, S_COMM, (112 + i) * BLK + par * 8192 + i * 256))
            p('buffer_store_dword v17, v16, s[%d:%d], s%d offen sc1' % (S_WS, S_WS + 3, S_T0))
            p('s_waitcnt vmcnt(0)')
            p('s_memtime s[50:51]'); p('s_waitcnt lgkmcnt(0)')
            p('buffer_load_dword v18, v16, s[%d:%d], s%d offen sc1' % (S_WS, S_WS + 3, S_T0))
            p('s_waitcnt vmcnt(0)')
            p('s_memtime s[52:53]'); p('s_waitcnt lgkmcnt(0)')
            p('s_sub_u32 s50, s52, s50')
            if i > 0: p('s_add_u32 s%d, s%d, s50' % (48 + par, 48 + par))
    p('s_cmp_lt_u32 s49, s48'); p('s_cselect_b32 s50, 2, 1')
    dbg_srd(p, 52)
    p('v_mov_b32 v17, s50')
    p('v_cmp_eq_u32 vcc, 0, v1'); p('v_mov_b32 v18, 0x7ff00000'); p('v_cndmask_b32 v16, v18, v16, vcc')
    p('buffer_store_dword v17, v16, s[52:55], 0 offen sc1')
    p('s_waitcnt vmcnt(0)')
    p.label(l)

def parity_wait(p):
    if not DYN_PAR: return
    dbg_srd(p, 52)
    top = p.newlabel('Lpw'); done = p.newlabel('Lpwd')
    p('v_mov_b32 v16, 0')
    p.label(top)
    p('buffer_load_dword v17, v16, s[52:55], 0 offen sc1'); p('s_waitcnt vmcnt(0)')
    p('v_readfirstlane_b32 s50, v17')
    p('s_cmp_lg_u32 s50, 0'); p('s_cbranch_scc1 %s' % done)
    p('s_sleep 4')
    p('s_cmp_eq_u32 s%d, 0' % S_SPIN); p('s_cbranch_scc1 %s' % done)
    p('s_sub_u32 s%d, s%d, 1' % (S_SPIN, S_SPIN)); p('s_branch %s' % top)
    p.label(done)
    p('s_lshr_b32 s50, s50, 1'); p('s_lshl_b32 s50, s50, 13'); p('s_add_u32 s%d, s%d, s50' % (S_COMM, S_COMM))

TRV = 58
TLB_WARM = False
def tlb_warm(p, srd_s, base, nbytes, vt, vlane=1):
    if not TLB_WARM: return
    p('v_min_u32 v%d, %d, v%d' % (vt, (nbytes - 1) >> 21, vlane)); p('v_lshlrev_b32 v%d, 21, v%d' % (vt, vt))
    p('s_mov_b32 s%d, %d' % (S_T0, base))
    p('buffer_load_dword v%d, v%d, s[%d:%d], s%d offen' % (vt + 1, vt, srd_s, srd_s + 3, S_T0))

def sleep_units(p, n):
    while n > 0:
        k = min(n, 127); p('s_sleep %d' % k); n -= k

def trace(p, slot, on):
    if not on: return
    l = p.newlabel('Ltr')
    p('s_cmp_lg_u32 s%d, 0' % S_WAVE)
    p('s_cbranch_scc1 %s' % l)
    p('s_memrealtime s[%d:%d]' % (S_TR0, S_TR0 + 1))
    p('s_lshl_b32 s%d, s%d, 8' % (S_T7, S_STEP))
    p('s_add_u32 s%d, s%d, s2' % (S_T7, S_T7))
    p('s_lshl_b32 s%d, s%d, 4' % (S_T7, S_T7))
    p('s_add_u32 s%d, s%d, %d' % (S_T7, S_T7, OFF_TRACE + slot * 4))
    p('s_waitcnt lgkmcnt(0)')
    p('v_mov_b32 v%d, s%d' % (TRV, S_TR0))
    p('v_mov_b32 v%d, 0' % (TRV + 1))
    p('buffer_store_dword v%d, v%d, s[%d:%d], s%d offen' % (TRV, TRV + 1, S_WS, S_WS + 3, S_T7))
    p.label(l)

PROF = False
ALIGN = 0
def loop_align(p):
    if ALIGN: p.raw('.p2align %d' % ALIGN)
FUSED = False
PSEG = True
USE_FLAGS = True
NOBG = 0
def pf(p, k):
    if PROF: p('s_memtime s[%d:%d]' % (46 + 2 * k, 47 + 2 * k))
def pf_init(p):
    if PROF:
        for k in range(5): p('s_mov_b32 s%d, 0' % (56 + k))
        p('s_mov_b32 s68, 0'); p('s_mov_b32 s69, 0')
def pf_acc(p):
    if PROF:
        p('s_waitcnt lgkmcnt(0)')
        for k in range(4):
            p('s_sub_u32 s61, s%d, s%d' % (48 + 2 * k, 46 + 2 * k))
            p('s_add_u32 s%d, s%d, s61' % (56 + k, 56 + k))
def pf_out(p):
    if PROF:
        l = p.newlabel('Lpf')
        p('s_cmp_lg_u32 s%d, 0' % S_WAVE); p('s_cbranch_scc1 %s' % l)
        p('s_lshl_b32 s%d, s2, 6' % S_T7)
        p('s_add_u32 s%d, s%d, %d' % (S_T7, S_T7, OFF_TRACE + 524288 + 32))
        for k in range(4): p('v_mov_b32 v%d, s%d' % (20 + k, 56 + k))
        p('v_mov_b32 v7, 0')
        p('buffer_store_dwordx4 v[20:23], v7, s[%d:%d], s%d offen' % (S_WS, S_WS + 3, S_T7))
        p('v_mov_b32 v24, s68'); p('v_mov_b32 v25, s69'); p('buffer_store_dwordx2 v[24:25], v7, s[%d:%d], s%d offen offset:16' % (S_WS, S_WS + 3, S_T7))
        p.label(l)

def stamp(p, slot, on):
    if not on: return
    l = p.newlabel('Lst')
    p('s_cmp_lg_u32 s%d, 0' % S_WAVE)
    p('s_cbranch_scc1 %s' % l)
    p('s_memrealtime s[%d:%d]' % (S_TR0, S_TR0 + 1))
    p('s_memtime s[46:47]')
    p('s_lshl_b32 s%d, s2, 6' % S_T7)
    p('s_add_u32 s%d, s%d, %d' % (S_T7, S_T7, OFF_TRACE + 524288 + slot * 8))
    p('s_waitcnt lgkmcnt(0)')
    p('v_mov_b32 v16, s%d' % S_TR0)
    p('v_mov_b32 v17, s46')
    p('v_mov_b32 v7, 0')
    p('buffer_store_dwordx2 v[16:17], v7, s[%d:%d], s%d offen' % (S_WS, S_WS + 3, S_T7))
    p('s_waitcnt vmcnt(0)')
    p.label(l)

DEEP_LOAD = False
def load_weights_type1(p, jobs, stg_base_v, slot_bytes, nslots, voffs, ninstr, rowbytes, lg, vm, wres_v, tmpv, stg_s, zrows=4):
    if DEEP_LOAD and all(len(j['dests']) == ninstr for j in jobs):
        return load_weights_deep(p, jobs, stg_base_v, slot_bytes, nslots, voffs, ninstr, rowbytes, wres_v, stg_s, zrows)
    n = len(jobs)
    def issue(j):
        job = jobs[j]
        job['soff'](S_T0)
        for i in range(ninstr):
            p('s_add_u32 s%d, s%d, %d' % (S_T1, stg_s, (j % nslots) * slot_bytes + i * 1024))
            p('s_mov_b32 m0, s%d' % S_T1)
            p('buffer_load_dwordx4 v%d, s[%d:%d], s%d offen lds' % (voffs[i], job['srd'], job['srd'] + 3, S_T0))
            vm.issue(('w', j))
    depth = nslots - 1
    for j in range(min(depth, n)): issue(j)
    for j in range(n):
        vm.wait(('w', j))
        slot = (j % nslots) * slot_bytes
        pend = []
        for di, (toff, dest) in enumerate(jobs[j]['dests']):
            if dest[0] == 'reg':
                for z in range(2):
                    p('ds_read_b64_tr_b16 %s, v%d offset:%d' % (dest[1 + z], stg_base_v, slot + z * zrows * rowbytes + toff))
            else:
                t = tmpv + 4 * (len(pend) % 3)
                for z in range(2):
                    p('ds_read_b64_tr_b16 %s, v%d offset:%d' % (vr(t + 2 * z, 2), stg_base_v, slot + z * zrows * rowbytes + toff))
                pend.append((t, dest[1]))
        p('s_waitcnt lgkmcnt(0)')
        for (t, off) in pend:
            p('ds_write_b128 v%d, %s offset:%d' % (wres_v, vr(t, 4), off))
        if j + depth < n: issue(j + depth)
    p('s_waitcnt lgkmcnt(0)')

def _quad(op2):
    import re
    m = re.match(r'([va])\[(\d+):', op2); return '%s[%d:%d]' % (m.group(1), int(m.group(2)), int(m.group(2)) + 3)

DEEP_TMP = 16
def load_weights_deep(p, jobs, stg_base_v, slot_bytes, nslots, voffs, ninstr, rowbytes, wres_v, stg_s, zrows):
    n = len(jobs)
    vm = Cnt(p, 'vmcnt', 63); lg = Cnt(p, 'lgkmcnt', 15)
    raw = []; tmpi = 0
    for job in jobs:
        q = []
        for (toff, dest) in job['dests']:
            if dest[0] == 'reg': q.append(_quad(dest[1]))
            else: q.append(vr(DEEP_TMP + 4 * (tmpi % 16), 4)); tmpi += 1
        raw.append(q)
    p('v_add_u32 v127, s%d, v2' % stg_s)
    maxjobs = 60 // ninstr
    def lds_cnt(a, b): return sum(1 for j in range(a, b) for (t, d) in jobs[j]['dests'] if d[0] == 'lds')
    issued = [0]
    def issue_upto(done):
        while issued[0] < n and issued[0] - done < maxjobs and lds_cnt(done, issued[0] + 1) <= 16:
            j = issued[0]; jobs[j]['soff'](S_T0)
            for i in range(ninstr):
                p('buffer_load_dwordx4 %s, v%d, s[%d:%d], s%d offen' % (raw[j][i], voffs[i], jobs[j]['srd'], jobs[j]['srd'] + 3, S_T0)); vm.issue(('w', j))
            issued[0] += 1
    issue_upto(0)
    def wr(j):
        vm.wait(('w', j))
        for i in range(ninstr):
            p('ds_write_b128 v127, %s offset:%d' % (raw[j][i], (j % nslots) * slot_bytes + i * 1024)); lg.issue(('sw', j))
    wr(0)
    for j in range(n):
        if j + 1 < n: wr(j + 1)
        lg.wait(('sw', j))
        slot = (j % nslots) * slot_bytes
        for di, (toff, dest) in enumerate(jobs[j]['dests']):
            ops = (dest[1], dest[2]) if dest[0] == 'reg' else tuple(raw[j][di].replace(']', ']') and x for x in (_half(raw[j][di], 0), _half(raw[j][di], 1)))
            for z in range(2):
                p('ds_read_b64_tr_b16 %s, v%d offset:%d' % (ops[z], stg_base_v, slot + z * zrows * rowbytes + toff)); lg.issue(('tr', j))
        ldsd = [(di, d) for di, (t, d) in enumerate(jobs[j]['dests']) if d[0] == 'lds']
        if ldsd or nslots < 3:
            lg.wait(('tr', j))
        for di, d in ldsd:
            p('ds_write_b128 v%d, %s offset:%d' % (wres_v, raw[j][di], d[1])); lg.issue(('rw', j))
        if ldsd: lg.wait(('rw', j))
        issue_upto(j + 1)
    p('s_waitcnt lgkmcnt(0)')

def _half(q, z):
    import re
    m = re.match(r'([va])\[(\d+):', q); b = int(m.group(2)) + 2 * z
    return '%s[%d:%d]' % (m.group(1), b, b + 1)

def magic_div(p, dst, src, d, tmp_s):
    m = (1 << 20) // d + 1
    for x in range(4096): assert (x * m) >> 20 == x // d
    p('s_mov_b32 s%d, %d' % (tmp_s, m))
    p('v_mul_lo_u32 v%d, v%d, s%d' % (dst, src, tmp_s))
    p('v_lshrrev_b32 v%d, 20, v%d' % (dst, dst))

def stage_offsets(p, voffs, cpr, gstride, vlane, t1, t2):
    for i, vo in enumerate(voffs):
        p('v_add_u32 v%d, %d, v%d' % (t1, i * 64, vlane))
        magic_div(p, t2, t1, cpr, S_T0)
        p('v_mul_u32_u24 v%d, %d, v%d' % (vo, cpr, t2))
        p('v_sub_u32 v%d, v%d, v%d' % (vo, t1, vo))
        p('v_lshlrev_b32 v%d, 4, v%d' % (vo, vo))
        p('s_mov_b32 s%d, %d' % (S_T0, gstride))
        p('v_mul_lo_u32 v%d, v%d, s%d' % (t2, t2, S_T0))
        p('v_add_u32 v%d, v%d, v%d' % (vo, vo, t2))

def common_lane_setup(p):
    p('v_lshrrev_b32 v3, 6, v0')
    p('v_and_b32 v1, 63, v0')
    p('v_readfirstlane_b32 s%d, v3' % S_WAVE)
    p('v_lshlrev_b32 v2, 4, v1')
    p('s_mov_b32 s%d, %d' % (S_SPIN, SPIN_BUDGET))

def mem_gather_setup(p, memx):
    p('s_mul_i32 s%d, s%d, 3' % (S_T0, S_WAVE))
    def tmod(dst, add):
        p('s_add_u32 s%d, s%d, %d' % (dst, S_T0, add))
        p('s_sub_u32 s%d, s%d, 10' % (S_T2, dst))
        p('s_cmp_ge_u32 s%d, 10' % dst)
        p('s_cselect_b32 s%d, s%d, s%d' % (dst, S_T2, dst))
        p('s_lshl_b32 s%d, s%d, 10' % (dst, dst))
    for j in range(3):
        tmod(S_T1, j)
        p('s_add_u32 s%d, s%d, 8192' % (S_T2, S_T1)); p('s_cmp_ge_u32 s%d, 8192' % S_T1); p('s_cselect_b32 s%d, s%d, s%d' % (S_T1, S_T2, S_T1))
        p('v_add_u32 v%d, s%d, v2' % (4 + j, S_T1))
    for (vreg, tau) in ((8, 3), (9, 4), (10, 7)):
        tmod(S_T1, tau)
        p('s_add_u32 s%d, s%d, %d' % (S_T1, S_T1, memx))
        p('v_add_u32 v%d, s%d, v2' % (vreg, S_T1))
    p('v_and_b32 v3, 1, v1')
    p('v_cmp_eq_u32 vcc, 0, v3')
    p('v_mov_b32 v3, 0xeeeeeeee')
    p('v_mov_b32 v7, 0x44444444')
    p('v_cndmask_b32 v3, v3, v7, vcc')

def memfrag_addr(tau, memx_unused=None):
    if tau == 3: return (8, 0)
    if tau <= 6: return (9, (tau - 4) * 1024)
    return (10, (tau - 7) * 1024)

P0 = 40; RING = 52; WST = 64

def emit_poll_mem(p, memx, lg, pre):
    def loads():
        for j in range(3):
            p('buffer_load_dwordx4 %s, v%d, s[%d:%d], s%d offen sc1' % (vr(P0 + 4 * j, 4), 4 + j, S_WS, S_WS + 3, S_MEMO))
        return 3
    poll_loop(p, loads, range(P0, P0 + 12), 7, 'mem', pre)
    for j in range(3):
        p('ds_write_b128 v%d, %s' % (RING + j, vr(P0 + 4 * j, 4)))
        lg.issue(('mw', j))

def mem_lds_addr(p):
    for j in range(3):
        p('v_lshrrev_b32 v7, 1, v%d' % (4 + j)); p('v_and_b32 v7, 0x2000, v7')
        p('v_and_b32 v%d, 0x1fff, v%d' % (RING + j, 4 + j)); p('v_or_b32 v%d, v7, v%d' % (RING + j, RING + j))

def wst_load(p, k, wres_v, lg):
    b = WST + 8 * (k & 1)
    p('ds_read_b128 %s, v%d offset:%d' % (vr(b, 4), wres_v, k * 2048)); lg.issue(('w', k))
    p('ds_read_b128 %s, v%d offset:%d' % (vr(b + 4, 4), wres_v, k * 2048 + 1024)); lg.issue(('w', k))

def smf(p, acc, afrag, o, lg, wres_v, idxv=3, nlds=12):
    kind, n = UM[o]
    if kind == 'reg':
        p('v_smfmac_f32_16x16x64_bf16 %s, %s, %s, v%d' % (vr(acc, 4), vr(afrag, 4), unit_reg(n), idxv))
    else:
        lg.wait(('w', n))
        p('v_smfmac_f32_16x16x64_bf16 %s, %s, %s, v%d' % (vr(acc, 4), vr(afrag, 4), vr(WST + 8 * (n & 1), 8), idxv))
        if n + 2 < nlds: wst_load(p, n + 2, wres_v, lg)

def proj_phase(p, lg, ntile, acc0, obase, wres_v, extra=None):
    def frag(tau): return P0 + 4 * tau if tau < 3 else RING + 4 * ((tau - 3) % 3)
    def rd(tau):
        a, off = memfrag_addr(tau)
        p('ds_read_b128 %s, v%d offset:%d' % (vr(frag(tau), 4), a, off)); lg.issue(('m', tau))
    for tau in range(10):
        if tau == 2:
            lg.wait(('mw', 2))
            p('s_barrier')
            for t in (3, 4, 5): rd(t)
        if tau >= 3: lg.wait(('m', tau))
        for tile in range(ntile):
            smf(p, acc0 + 4 * tile, frag(tau), obase + tau * ntile + tile, lg, wres_v)
        if tau >= 3 and tau + 3 < 10: rd(tau + 3)
        if extra: extra(tau)

def half_sum(p, X, Y):
    for r in range(4): p('v_permlane32_swap_b32 v%d, v%d' % (X + r, Y + r))
    for r in range(4): p('v_add_f32 v%d, v%d, v%d' % (X + r, X + r, Y + r))

A_MEMX = 0; A_QX = 10240; A_QKB = 16384; A_WRES = 65536
def gen_A(p, trace_on=False, st=False):
    lg = Cnt(p, 'lgkmcnt', 15); vm = Cnt(p, 'vmcnt', 63)
    h = S_IDX
    srd(p, S_W1, KA['Wq'], 640 * 12288); srd(p, S_W2, KA['Wk'], 640 * 12288)
    common_lane_setup(p)
    p('s_waitcnt lgkmcnt(0)')
    mem_gather_setup(p, A_MEMX)
    p('s_mul_i32 s%d, s%d, 24576' % (S_T0, S_WAVE)); p('s_add_u32 s%d, s%d, 65536' % (S_T0, S_T0)); p('v_add_u32 v15, s%d, v2' % S_T0)
    STG = A_MEMX
    voffs = [80, 81, 82]
    stage_offsets(p, voffs, 6, 12288, 1, 83, 84)
    p('v_lshrrev_b32 v83, 4, v1'); p('v_lshlrev_b32 v83, 3, v83')
    p('v_bfe_u32 v84, v1, 2, 2'); p('v_add_u32 v83, v83, v84')
    p('v_mul_u32_u24 v83, 96, v83'); p('v_and_b32 v84, 3, v1'); p('v_lshlrev_b32 v84, 3, v84')
    p('v_add_u32 v85, v83, v84')
    p('s_lshl_b32 s%d, s%d, 14' % (S_T4, S_WAVE)); p('s_add_u32 s%d, s%d, %d' % (S_T4, S_T4, STG))
    p('v_add_u32 v85, s%d, v85' % S_T4)
    p('s_mul_i32 s%d, s%d, 384' % (S_T5, h)); p('s_mul_i32 s%d, s%d, 96' % (S_T0, S_WAVE)); p('s_add_u32 s%d, s%d, s%d' % (S_T5, S_T5, S_T0))
    p('s_mul_i32 s%d, s%d, 3' % (S_T6, S_WAVE))
    jobs = []
    for tau in range(10):
        for half in range(2):
            for mat in range(2):
                def soff(dst, tau=tau, half=half):
                    p('s_add_u32 s%d, s%d, %d' % (dst, S_T6, tau))
                    p('s_sub_u32 s%d, s%d, 10' % (S_T2, dst)); p('s_cmp_ge_u32 s%d, 10' % dst); p('s_cselect_b32 s%d, s%d, s%d' % (dst, S_T2, dst))
                    p('s_mul_i32 s%d, s%d, %d' % (dst, dst, 64 * 12288))
                    p('s_add_u32 s%d, s%d, s%d' % (dst, dst, S_T5))
                    if half: p('s_add_u32 s%d, s%d, %d' % (dst, dst, 32 * 12288))
                dests = []
                for x in range(3):
                    kind, n = UM[tau * 6 + mat * 3 + x]
                    if kind == 'reg': dests.append((x * 32, ('reg', unit_reg(n, 4 * half, 2), unit_reg(n, 4 * half + 2, 2))))
                    else: dests.append((x * 32, ('lds', n * 2048 + half * 1024)))
                jobs.append(dict(srd=S_W1 if mat == 0 else S_W2, soff=soff, dests=dests))
    load_weights_type1(p, jobs, 85, 3072, 5, voffs, 3, 96, lg, vm, 15, 88, S_T4)
    p('s_barrier')
    p('v_lshrrev_b32 v80, 5, v1'); p('v_mul_u32_u24 v80, 3072, v80')
    p('v_and_b32 v81, 3, v1'); p('v_lshlrev_b32 v81, 6, v81'); p('v_add_u32 v80, v80, v81')
    p('v_bfe_u32 v81, v1, 2, 2'); p('v_lshlrev_b32 v81, 4, v81'); p('v_add_u32 v80, v80, v81')
    p('v_bfe_u32 v81, v1, 4, 1'); p('v_lshlrev_b32 v81, 3, v81'); p('v_add_u32 v80, v80, v81')
    p('s_mul_i32 s%d, s%d, 768' % (S_T0, S_WAVE)); p('s_add_u32 s%d, s%d, %d' % (S_T0, S_T0, A_QX))
    p('v_add_u32 v11, s%d, v80' % S_T0)
    p('v_bfe_u32 v80, v1, 2, 2'); p('v_lshlrev_b32 v80, 6, v80')
    p('v_lshrrev_b32 v81, 4, v1'); p('v_lshlrev_b32 v81, 4, v81'); p('v_add_u32 v80, v80, v81')
    p('v_and_b32 v81, 1, v1'); p('v_lshlrev_b32 v81, 3, v81'); p('v_add_u32 v80, v80, v81')
    p('v_add_u32 v12, %d, v80' % A_QX)
    p('v_lshrrev_b32 v80, 5, v1'); p('v_lshlrev_b32 v80, 8, v80')
    p('v_bfe_u32 v81, v1, 4, 1'); p('v_lshlrev_b32 v81, 7, v81'); p('v_add_u32 v80, v80, v81')
    p('v_and_b32 v81, 7, v1'); p('v_lshlrev_b32 v82, 4, v81'); p('v_add_u32 v80, v80, v82')
    p('s_lshr_b32 s%d, s%d, 4' % (S_T1, h)); p('s_lshl_b32 s%d, s%d, 14' % (S_T1, S_T1)); p('s_and_b32 s%d, s%d, 15' % (S_T0, h)); p('s_lshl_b32 s%d, s%d, 9' % (S_T0, S_T0)); p('s_add_u32 s%d, s%d, s%d' % (S_T0, S_T0, S_T1))
    p('v_add_u32 v13, s%d, v80' % S_T0)
    p('v_mov_b32 v82, 0x7ff00000'); p('v_and_b32 v83, 8, v1'); p('v_cmp_eq_u32 vcc, 0, v83'); p('v_cndmask_b32 v13, v82, v13, vcc')
    p('v_lshlrev_b32 v80, 4, v1')
    p('s_lshl_b32 s%d, s%d, 7' % (S_T0, h)); p('s_add_u32 s%d, s%d, 32768' % (S_T0, S_T0)); p('v_add_u32 v14, s%d, v80' % S_T0)
    p('v_cmp_gt_u32 vcc, 8, v1'); p('v_cndmask_b32 v14, v82, v14, vcc')
    p('s_mov_b32 s%d, 0' % S_MASK); p('s_mov_b32 s%d, -1' % (S_MASK + 1))
    p('s_mov_b32 s%d, 0x%x' % (S_C, __import__('struct').unpack('<I', __import__('struct').pack('<f', 192 ** -0.5 * 1.4426950408889634))[0]))
    p('s_mov_b32 s%d, 0' % S_STEP)
    p('s_mul_i32 s%d, s%d, 24576' % (S_QKO, h)); p('s_add_u32 s%d, s%d, %d' % (S_QKO, S_QKO, OFF_QK))
    parity_wait(p)
    def qk_dma(bufsel_s):
        p('s_mov_b32 s%d, s%d' % (S_T1, S_QKO))
        for j in range(24):
            p('s_add_u32 s%d, s%d, %d' % (S_T0, bufsel_s, j * 1024))
            p('s_mov_b32 m0, s%d' % S_T0)
            p('buffer_load_dwordx4 v2, s[%d:%d], s%d offen sc1 lds' % (S_WS, S_WS + 3, S_T1))
            if j < 23: p('s_add_u32 s%d, s%d, 1024' % (S_T1, S_T1))
    def KS(jt, u): return 80 + 4 * (jt * 6 + u)
    def k_direct():
        for j in range(12):
            if j % 4 == 0: p('s_add_u32 s%d, s%d, %d' % (S_T0, S_QKO, 12288 + j * 1024))
            p('buffer_load_dwordx4 %s, v2, s[%d:%d], s%d offen offset:%d sc1' % (vr(80 + 4 * j, 4), S_WS, S_WS + 3, S_T0, (j % 4) * 1024))
    def qk_wait(add, sampled=False):
        if USE_FLAGS:
            p('s_add_u32 s%d, s%d, %d' % (S_T3, S_STEP, add))
            lok = p.newlabel('LAok')
            if sampled:
                p('v_cmp_gt_u32 vcc, s%d, v1' % S_T3); p('s_cbranch_vccz %s' % lok)
            wait_flags(p, 0, F_QK, S_T3, 7)
            p.label(lok)
    p('s_lshl_b32 s%d, s%d, %d' % (S_T0, h, FSH)); p('v_mov_b32 v0, s%d' % S_T0)
    l = p.newlabel('La')
    p('s_cmp_lg_u32 s%d, 3' % S_WAVE); p('s_cbranch_scc1 %s' % l)
    qk_wait(1)
    p('s_mov_b32 s%d, %d' % (S_T3, A_QKB)); qk_dma(S_T3)
    p.label(l)
    l = p.newlabel('La')
    p('s_cmp_lg_u32 s%d, 0' % S_WAVE); p('s_cbranch_scc1 %s' % l)
    qk_wait(1)
    k_direct()
    p.label(l)
    stamp(p, 1, st)
    pf_init(p)
    loop = p.newlabel('LAloop'); p.label(loop)
    lg.reset(); vm.reset()
    pf(p, 0)
    for r in range(16, 40): p('v_mov_b32 v%d, 0' % r)
    wst_load(p, 0, 15, lg); wst_load(p, 1, 15, lg)
    step_offsets(p, 0, ('mem', 'p')); mem_lds_addr(p)
    p('s_mov_b32 s%d, %d' % (S_T0, F_QK))
    p('buffer_load_dword v1, v0, s[%d:%d], s%d offen sc1' % (S_WS, S_WS + 3, S_T0))
    p('s_waitcnt lgkmcnt(0)'); lg.reset()
    emit_poll_mem(p, A_MEMX, lg, 'memA')
    pf(p, 1)
    trace(p, 0, trace_on)
    proj_phase(p, lg, 6, 16, 0, 15)
    for x in range(3): half_sum(p, 16 + 4 * x, 28 + 4 * x)
    for x in range(3):
        a = 16 + 4 * x
        p('v_cvt_pk_bf16_f32 v%d, v%d, v%d' % (a, a, a + 1)); p('v_cvt_pk_bf16_f32 v%d, v%d, v%d' % (a + 1, a + 2, a + 3))
        p('ds_write_b64 v11, %s offset:%d' % (vr(a, 2), x * 256))
    pf(p, 2)
    p('s_waitcnt vmcnt(0) lgkmcnt(0)'); lg.reset()
    p('s_barrier')
    pf(p, 3)
    trace(p, 1, trace_on)
    lw = p.newlabel('LAw'); lend = p.newlabel('LAe'); lw3 = p.newlabel('LAw3')
    QF = 16; KM = 40; SA = 64
    def scores(kind):
        lg.reset()
        if kind == 'mem':
            for u in range(6):
                for z in range(2):
                    p('ds_read_b64_tr_b16 %s, v12 offset:%d' % (vr(QF + 4 * u + 2 * z, 2), (2 * u + z) * 256)); lg.issue(('q', u))
        else:
            p('s_and_b32 s%d, s%d, 1' % (S_T0, S_STEP)); p('s_mul_i32 s%d, s%d, 24576' % (S_T0, S_T0)); p('s_add_u32 s%d, s%d, %d' % (S_T0, S_T0, A_QKB))
            p('v_add_u32 v7, s%d, v2' % S_T0)
            p('s_sub_u32 s%d, s%d, 1' % (S_T1, S_WAVE)); p('s_mul_i32 s%d, s%d, 6144' % (S_T1, S_T1)); p('v_add_u32 v76, s%d, v7' % S_T1)
            for u in range(6):
                p('ds_read_b128 %s, v76 offset:%d' % (vr(QF + 4 * u, 4), u * 1024)); lg.issue(('q', u))
                for jt in range(2):
                    p('ds_read_b128 %s, v7 offset:%d' % (vr(KS(jt, u), 4), 12288 + jt * 6144 + u * 1024)); lg.issue(('q', u))
        for u in range(6):
            lg.wait(('q', u))
            for jt in range(2):
                p('v_mfma_f32_16x16x32_bf16 %s, %s, %s, %s' % (vr(SA + 4 * jt, 4), vr(KS(jt, u), 4), vr(QF + 4 * u, 4), '0' if u == 0 else vr(SA + 4 * jt, 4)))
            if u == 0:
                for uu in range(6):
                    for z in range(2):
                        p('ds_read_b64_tr_b16 %s, v12 offset:%d' % (vr(KM + 4 * uu + 2 * z, 2), 3072 + (2 * uu + z) * 256)); lg.issue(('km', uu))
        SM = 72
        for u in range(6):
            lg.wait(('km', u))
            p('v_mfma_f32_16x16x32_bf16 %s, %s, %s, %s' % (vr(SM, 4), vr(KM + 4 * u, 4), vr(QF + 4 * u, 4), '0' if u == 0 else vr(SM, 4)))
        vals = list(range(SA, SA + 8)) + list(range(SM, SM + 4))
        p('v_mov_b32 v40, 0xff800000')
        if kind == 'seg':
            p('v_lshrrev_b32 v41, 4, v2'); p('v_and_b32 v42, 15, v41'); p('v_lshrrev_b32 v41, 4, v41'); p('v_lshlrev_b32 v41, 2, v41'); p('v_sub_u32 v41, v42, v41')
            p('s_sub_u32 s%d, s%d, 1' % (S_T1, S_WAVE)); p('s_lshl_b32 s%d, s%d, 4' % (S_T1, S_T1)); p('v_add_u32 v41, s%d, v41' % S_T1)
            for jt in range(2):
                for r in range(4):
                    p('v_cmp_le_i32 vcc, %d, v41' % (16 * jt + r))
                    p('v_cndmask_b32 v%d, v40, v%d, vcc' % (SA + 4 * jt + r, SA + 4 * jt + r))
        for r in range(4): p('v_cndmask_b32 v%d, v%d, v40, s[%d:%d]' % (SM + r, SM + r, S_MASK, S_MASK + 1))
        p('v_max3_f32 v17, v%d, v%d, v%d' % tuple(vals[0:3]))
        for i in range(3, 11, 2): p('v_max3_f32 v17, v17, v%d, v%d' % (vals[i], vals[i + 1]))
        p('v_max_f32 v17, v17, v%d' % vals[11])
        p('v_mov_b32 v18, v17'); p('v_permlane16_swap_b32 v17, v18'); p('v_max_f32 v17, v17, v18')
        p('v_mov_b32 v18, v17'); p('v_permlane32_swap_b32 v17, v18'); p('v_max_f32 v17, v17, v18')
        p('v_mul_f32 v17, s%d, v17' % S_C)
        for v in vals: p('v_fma_f32 v%d, v%d, s%d, -v17' % (v, v, S_C))
        for v in vals: p('v_exp_f32 v%d, v%d' % (v, v))
        p('v_add_f32 v18, v%d, v%d' % (vals[0], vals[1])); p('v_add_f32 v19, v%d, v%d' % (vals[2], vals[3]))
        for i in range(4, 12, 2):
            p('v_add_f32 v18, v18, v%d' % vals[i]); p('v_add_f32 v19, v19, v%d' % vals[i + 1])
        p('v_add_f32 v18, v18, v19')
        p('v_mov_b32 v19, v18'); p('v_permlane16_swap_b32 v18, v19'); p('v_add_f32 v18, v18, v19')
        p('v_mov_b32 v19, v18'); p('v_permlane32_swap_b32 v18, v19'); p('v_add_f32 v18, v18, v19')
        p('v_rcp_f32 v18, v18')
        for v in vals: p('v_mul_f32 v%d, v%d, v18' % (v, v))
        W = 20
        if kind == 'mem':
            p('v_cvt_pk_bf16_f32 v%d, v%d, v%d' % (W + 0, SA + 0, SA + 1)); p('v_cvt_pk_bf16_f32 v%d, v%d, v%d' % (W + 2, SA + 2, SA + 3))
            p('v_cvt_pk_bf16_f32 v%d, v%d, v%d' % (W + 1, SA + 4, SA + 5)); p('v_cvt_pk_bf16_f32 v%d, v%d, v%d' % (W + 3, SA + 6, SA + 7))
            p('v_cvt_pk_bf16_f32 v%d, v%d, v%d' % (W + 4, SM + 0, SM + 1)); p('v_cvt_pk_bf16_f32 v%d, v%d, v%d' % (W + 6, SM + 2, SM + 3))
            p('v_permlane16_swap_b32 v%d, v%d' % (W + 0, W + 2)); p('v_permlane16_swap_b32 v%d, v%d' % (W + 1, W + 3))
            p('buffer_store_dwordx4 %s, v13, s[%d:%d], s%d offen sc1' % (vr(W, 4), S_WS, S_WS + 3, S_PO))
            p('v_mov_b32 v%d, v%d' % (W + 5, W + 4)); p('v_mov_b32 v%d, v%d' % (W + 7, W + 6))
            p('v_permlane16_swap_b32 v%d, v%d' % (W + 4, W + 5)); p('v_permlane16_swap_b32 v%d, v%d' % (W + 6, W + 7))
            p('buffer_store_dwordx4 %s, v14, s[%d:%d], s%d offen sc1' % (vr(W + 4, 4), S_WS, S_WS + 3, S_PO))
        else:
            for k in range(4): p('v_cvt_pk_bf16_f32 v%d, v%d, v%d' % (W + k, SA + 2 * k, SA + 2 * k + 1))
            p('v_cvt_pk_bf16_f32 v%d, v%d, v%d' % (W + 4, SM + 0, SM + 1)); p('v_cvt_pk_bf16_f32 v%d, v%d, v%d' % (W + 5, SM + 2, SM + 3))
            p('s_mul_i32 s%d, s%d, 81920' % (S_T0, S_STEP)); p('s_sub_u32 s%d, s%d, 1' % (S_T1, S_WAVE)); p('s_lshl_b32 s%d, s%d, 15' % (S_T2, S_T1))
            p('s_add_u32 s%d, s%d, s%d' % (S_T2, S_T2, S_T0)); p('s_lshl_b32 s%d, s%d, 10' % (S_T3, h)); p('s_add_u32 s%d, s%d, s%d' % (S_T2, S_T2, S_T3)); p('s_add_u32 s%d, s%d, %d' % (S_T2, S_T2, OFF_PS))
            p('buffer_store_dwordx4 %s, v2, s[%d:%d], s%d offen sc1' % (vr(W, 4), S_WS, S_WS + 3, S_T2))
            p('v_mov_b32 v%d, v%d' % (W + 6, W + 4)); p('v_mov_b32 v%d, v%d' % (W + 7, W + 5))
            p('v_permlane16_swap_b32 v%d, v%d' % (W + 4, W + 6)); p('v_permlane16_swap_b32 v%d, v%d' % (W + 5, W + 7))
            p('s_lshl_b32 s%d, s%d, 13' % (S_T1, S_T1)); p('s_add_u32 s%d, s%d, s%d' % (S_T0, S_T0, S_T1)); p('s_lshl_b32 s%d, s%d, 8' % (S_T3, h)); p('s_add_u32 s%d, s%d, s%d' % (S_T0, S_T0, S_T3))
            p('s_add_u32 s%d, s%d, %d' % (S_T0, S_T0, OFF_PS + 65536))
            p('v_mov_b32 v42, 0x7ff00000'); p('v_cmp_gt_u32 vcc, 256, v2'); p('v_cndmask_b32 v42, v42, v2, vcc')
            p('buffer_store_dwordx4 %s, v42, s[%d:%d], s%d offen sc1' % (vr(W + 4, 4), S_WS, S_WS + 3, S_T0))
    p('s_cmp_lg_u32 s%d, 0' % S_WAVE); p('s_cbranch_scc1 %s' % lw)
    scores('mem')
    pf(p, 4)
    pf_acc(p)
    trace(p, 2, trace_on)
    p('s_barrier')
    p('s_cmp_ge_u32 s%d, 63' % S_STEP); p('s_cbranch_scc1 %s' % lend)
    p('s_add_u32 s%d, s%d, %d' % (S_QKO, S_QKO, 32 * 24576))
    qk_wait(2, True)
    if not NOBG & 1: k_direct()
    p('s_branch %s' % lend)
    p.label(lw)
    p('s_cmp_eq_u32 s%d, 3' % S_WAVE); p('s_cbranch_scc1 %s' % lw3)
    if PSEG: scores('seg')
    p('s_barrier')
    p('s_branch %s' % lend)
    p.label(lw3)
    p('s_add_u32 s%d, s%d, %d' % (S_T0, S_STEP, P_RING - 1)); p('s_and_b32 s%d, s%d, %d' % (S_T0, S_T0, P_RING - 1)); p('s_mul_i32 s%d, s%d, %d' % (S_T0, S_T0, 3 * BLK))
    p('s_add_u32 s%d, s%d, s%d' % (S_T0, S_T0, S_COMM)); p('s_add_u32 s%d, s%d, %d' % (S_T0, S_T0, BLK_P * BLK))
    for r in range(16, 20): p('v_mov_b32 v%d, -1' % r)
    p('buffer_store_dwordx4 v[16:19], v13, s[%d:%d], s%d offen sc1' % (S_WS, S_WS + 3, S_T0))
    p('buffer_store_dwordx4 v[16:19], v14, s[%d:%d], s%d offen sc1' % (S_WS, S_WS + 3, S_T0))
    def fp_flag():
        p('v_mov_b32 v20, 0x7ff00000'); p('v_cmp_eq_u32 vcc, 0, v2'); p('v_cndmask_b32 v20, v20, v0, vcc')
        p('v_mov_b32 v21, s%d' % S_STEP); p('s_mov_b32 s%d, %d' % (S_T0, F_P))
        p('buffer_store_dword v21, v20, s[%d:%d], s%d offen sc1' % (S_WS, S_WS + 3, S_T0))
    fp_flag()
    p('s_barrier')
    p('s_cmp_ge_u32 s%d, 63' % S_STEP); p('s_cbranch_scc1 %s' % lend)
    p('s_add_u32 s%d, s%d, %d' % (S_QKO, S_QKO, 32 * 24576))
    qk_wait(2, True)
    p('s_add_u32 s%d, s%d, 1' % (S_T3, S_STEP)); p('s_and_b32 s%d, s%d, 1' % (S_T3, S_T3)); p('s_mul_i32 s%d, s%d, 24576' % (S_T3, S_T3)); p('s_add_u32 s%d, s%d, %d' % (S_T3, S_T3, A_QKB))
    if not NOBG & 2: qk_dma(S_T3)
    p.label(lend)
    p('s_add_u32 s%d, s%d, 1' % (S_STEP, S_STEP)); p('s_cmp_lt_u32 s%d, s%d' % (S_STEP, S_NST)); p('s_cbranch_scc1 %s' % loop)
    p('s_waitcnt vmcnt(0)'); p('s_barrier')
    l = p.newlabel('LAfin'); p('s_cmp_lg_u32 s%d, 3' % S_WAVE); p('s_cbranch_scc1 %s' % l)
    fp_flag()
    p.label(l)

B_MEMX = 0; B_VX = 10240; B_WRES = 65536
def gen_B(p, trace_on=False, st=False):
    lg = Cnt(p, 'lgkmcnt', 15); vm = Cnt(p, 'vmcnt', 63)
    h = S_IDX
    srd(p, S_W1, KA['Wv'], 640 * 12288); srd(p, S_W2, KA['Wo'], 32 * 192 * 1280)
    common_lane_setup(p)
    p('s_waitcnt lgkmcnt(0)')
    mem_gather_setup(p, B_MEMX)
    p('s_mul_i32 s%d, s%d, 24576' % (S_T0, S_WAVE)); p('s_add_u32 s%d, s%d, 65536' % (S_T0, S_T0)); p('v_add_u32 v15, s%d, v2' % S_T0)
    STG = B_MEMX
    p('s_lshl_b32 s%d, s%d, 14' % (S_T4, S_WAVE)); p('s_add_u32 s%d, s%d, %d' % (S_T4, S_T4, STG))
    voffs = [80, 81, 82]
    stage_offsets(p, voffs, 6, 12288, 1, 83, 84)
    p('v_lshrrev_b32 v83, 4, v1'); p('v_lshlrev_b32 v83, 3, v83'); p('v_bfe_u32 v84, v1, 2, 2'); p('v_add_u32 v83, v83, v84')
    p('v_and_b32 v84, 3, v1'); p('v_lshlrev_b32 v84, 3, v84')
    p('v_mul_u32_u24 v85, 96, v83'); p('v_add_u32 v85, v85, v84'); p('v_add_u32 v85, s%d, v85' % S_T4)
    p('v_mul_u32_u24 v86, 160, v83'); p('v_add_u32 v86, v86, v84'); p('v_add_u32 v86, s%d, v86' % S_T4)
    p('s_mul_i32 s%d, s%d, 384' % (S_T5, h)); p('s_mul_i32 s%d, s%d, 96' % (S_T0, S_WAVE)); p('s_add_u32 s%d, s%d, s%d' % (S_T5, S_T5, S_T0))
    p('s_mul_i32 s%d, s%d, 3' % (S_T6, S_WAVE))
    jobs = []
    for tau in range(10):
        for half in range(2):
            def soff(dst, tau=tau, half=half):
                p('s_add_u32 s%d, s%d, %d' % (dst, S_T6, tau))
                p('s_sub_u32 s%d, s%d, 10' % (S_T2, dst)); p('s_cmp_ge_u32 s%d, 10' % dst); p('s_cselect_b32 s%d, s%d, s%d' % (dst, S_T2, dst))
                p('s_mul_i32 s%d, s%d, %d' % (dst, dst, 64 * 12288))
                p('s_add_u32 s%d, s%d, s%d' % (dst, dst, S_T5))
                if half: p('s_add_u32 s%d, s%d, %d' % (dst, dst, 32 * 12288))
            dests = []
            for x in range(3):
                kind, n = UM[tau * 3 + x]
                if kind == 'reg': dests.append((x * 32, ('reg', unit_reg(n, 4 * half, 2), unit_reg(n, 4 * half + 2, 2))))
                else: dests.append((x * 32, ('lds', n * 2048 + half * 1024)))
            jobs.append(dict(srd=S_W1, soff=soff, dests=dests))
    load_weights_type1(p, jobs, 85, 3072, 5, voffs, 3, 96, lg, vm, 15, 88, S_T4)
    voffs = [100, 101, 102, 103, 104]
    stage_offsets(p, voffs, 10, 1280, 1, 83, 84)
    p('s_mul_i32 s%d, s%d, %d' % (S_T5, h, 192 * 1280)); p('s_mul_i32 s%d, s%d, 320' % (S_T0, S_WAVE)); p('s_add_u32 s%d, s%d, s%d' % (S_T5, S_T5, S_T0))
    jobs = []
    for u in range(6):
        for ch in range(2):
            def soff(dst, u=u, ch=ch): p('s_add_u32 s%d, s%d, %d' % (dst, S_T5, u * 32 * 1280 + ch * 160))
            dests = []
            for x in range(5):
                cc = ch * 5 + x
                kind, n = UM[30 + cc * 3 + (u >> 1)]
                half = u & 1
                if kind == 'reg': dests.append((x * 32, ('reg', unit_reg(n, 4 * half, 2), unit_reg(n, 4 * half + 2, 2))))
                else: dests.append((x * 32, ('lds', n * 2048 + half * 1024)))
            jobs.append(dict(srd=S_W2, soff=soff, dests=dests))
    load_weights_type1(p, jobs, 86, 5120, 3, voffs, 5, 160, lg, vm, 15, 88, S_T4)
    p('s_barrier')
    p('v_bfe_u32 v80, v1, 3, 1'); p('v_lshlrev_b32 v80, 9, v80')
    p('v_bfe_u32 v81, v1, 2, 1'); p('v_lshlrev_b32 v81, 6, v81'); p('v_add_u32 v80, v80, v81')
    p('v_and_b32 v81, 1, v1'); p('v_lshlrev_b32 v81, 5, v81'); p('v_add_u32 v80, v80, v81')
    p('v_bfe_u32 v81, v1, 1, 1'); p('v_lshlrev_b32 v81, 4, v81'); p('v_add_u32 v80, v80, v81')
    p('v_bfe_u32 v81, v1, 4, 1'); p('v_lshlrev_b32 v81, 3, v81'); p('v_add_u32 v80, v80, v81')
    def tile_off(dstv, tv):
        p('v_lshrrev_b32 v82, 2, v%d' % tv); p('v_lshlrev_b32 v82, 10, v82')
        p('v_and_b32 v83, 3, v%d' % tv); p('v_lshlrev_b32 v83, 7, v83')
        p('v_add3_u32 v%d, v80, v82, v83' % dstv); p('v_add_u32 v%d, %d, v%d' % (dstv, B_VX, dstv))
    p('s_mul_i32 s%d, s%d, 3' % (S_T0, S_WAVE))
    p('v_lshrrev_b32 v84, 5, v1'); p('v_add_u32 v84, s%d, v84' % S_T0); tile_off(11, 84)
    p('v_mov_b32 v84, s%d' % S_T0); p('v_add_u32 v84, 2, v84'); tile_off(12, 84)
    p('v_lshrrev_b32 v80, 4, v1'); p('v_lshlrev_b32 v80, 7, v80')
    p('v_bfe_u32 v81, v1, 2, 2'); p('v_lshlrev_b32 v81, 5, v81'); p('v_add_u32 v80, v80, v81')
    p('v_and_b32 v81, 3, v1'); p('v_lshlrev_b32 v81, 3, v81'); p('v_add_u32 v80, v80, v81')
    p('v_add_u32 v13, %d, v80' % B_VX)
    p('v_lshrrev_b32 v80, 5, v1'); p('v_bfe_u32 v81, v1, 4, 1'); p('v_lshlrev_b32 v81, 1, v81'); p('v_add_u32 v80, v80, v81')
    p('s_mul_i32 s%d, s%d, 10' % (S_T0, S_WAVE)); p('v_add_u32 v80, s%d, v80' % S_T0); p('v_lshlrev_b32 v80, 14, v80')
    p('v_and_b32 v81, 15, v1'); p('v_lshlrev_b32 v81, 4, v81'); p('v_add_u32 v80, v80, v81')
    p('s_lshl_b32 s%d, s%d, 8' % (S_T0, h)); p('v_add_u32 v14, s%d, v80' % S_T0)
    p('v_lshrrev_b32 v80, 5, v1'); p('s_mul_i32 s%d, s%d, 10' % (S_T1, S_WAVE)); p('s_add_u32 s%d, s%d, 8' % (S_T1, S_T1)); p('v_add_u32 v80, s%d, v80' % S_T1); p('v_lshlrev_b32 v80, 14, v80')
    p('v_add_u32 v80, v80, v81'); p('v_add_u32 v120, s%d, v80' % S_T0)
    p('v_mov_b32 v82, 0x7ff00000'); p('v_and_b32 v83, 16, v1'); p('v_cmp_eq_u32 vcc, 0, v83'); p('v_cndmask_b32 v120, v82, v120, vcc')
    p('s_mov_b32 s%d, 0' % S_STEP)
    parity_wait(p)
    ACC1 = 16; VF = 28; ACC2 = 80
    stamp(p, 1, st)
    pf_init(p)
    loop = p.newlabel('LBloop'); p.label(loop)
    lg.reset(); vm.reset()
    pf(p, 0)
    for r in range(ACC1, ACC1 + 12): p('v_mov_b32 v%d, 0' % r)
    for r in range(ACC2, ACC2 + 40): p('v_mov_b32 v%d, 0' % r)
    wst_load(p, 0, 15, lg); wst_load(p, 1, 15, lg)
    step_offsets(p, 0, ('mem', 'z')); mem_lds_addr(p)
    p('s_waitcnt lgkmcnt(0)'); lg.reset()
    emit_poll_mem(p, B_MEMX, lg, 'memB')
    pf(p, 1)
    trace(p, 0, trace_on)
    proj_phase(p, lg, 3, ACC1, 0, 15)
    half_sum(p, 16, 20)
    for r in range(4): p('v_mov_b32 v%d, v%d' % (28 + r, 24 + r))
    half_sum(p, 24, 28)
    for a, addr in ((16, 11), (24, 12)):
        p('v_cvt_pk_bf16_f32 v%d, v%d, v%d' % (a, a, a + 1)); p('v_cvt_pk_bf16_f32 v%d, v%d, v%d' % (a + 1, a + 2, a + 3))
        p('ds_write_b64 v%d, %s' % (addr, vr(a, 2))); lg.issue('vx')
    pf(p, 2)
    p('s_waitcnt vmcnt(0)')
    lg.wait('vx')
    p('s_barrier')
    pf(p, 3)
    VFR = 40
    for t in range(3):
        for z in range(2):
            p('ds_read_b64_tr_b16 %s, v13 offset:%d' % (vr(VFR + 4 * t + 2 * z, 2), t * 1024 + z * 512)); lg.issue(('vf', t))
    def hs(pair):
        a = ACC2 + 8 * pair
        half_sum(p, a, a + 4)
        p('v_cvt_pk_bf16_f32 v%d, v%d, v%d' % (a, a, a + 1)); p('v_cvt_pk_bf16_f32 v%d, v%d, v%d' % (a + 1, a + 2, a + 3))
    def fin4(grp):
        a = ACC2 + 16 * grp; b = a + 8
        p('v_mov_b32 v%d, v%d' % (a + 2, b)); p('v_mov_b32 v%d, v%d' % (a + 3, b + 1))
        p('v_permlane16_swap_b32 v%d, v%d' % (a, a + 2)); p('v_permlane16_swap_b32 v%d, v%d' % (a + 1, a + 3))
        p('s_add_u32 s%d, s%d, %d' % (S_T0, S_ZO, grp * 4 * BLK))
        p('buffer_store_dwordx4 %s, v14, s[%d:%d], s%d offen sc1' % (vr(a, 4), S_WS, S_WS + 3, S_T0))
    def fin_last():
        a = ACC2 + 32
        p('v_mov_b32 v%d, v%d' % (a + 2, a)); p('v_mov_b32 v%d, v%d' % (a + 3, a + 1))
        p('v_permlane16_swap_b32 v%d, v%d' % (a, a + 2)); p('v_permlane16_swap_b32 v%d, v%d' % (a + 1, a + 3))
        p('buffer_store_dwordx4 %s, v120, s[%d:%d], s%d offen sc1' % (vr(a, 4), S_WS, S_WS + 3, S_ZO))
    for cc in range(10):
        for t in range(3):
            if cc == 0: lg.wait(('vf', t))
            smf(p, ACC2 + 4 * cc, VFR + 4 * t, 30 + cc * 3 + t, lg, 15)
        if cc >= 3 and cc % 2 == 1:
            pr = (cc - 3) // 2
            hs(pr)
            if pr % 2 == 1: fin4(pr // 2)
    hs(4); fin_last()
    p('s_barrier')
    pf(p, 4)
    pf_acc(p)
    trace(p, 2, trace_on)
    p('s_add_u32 s%d, s%d, 1' % (S_STEP, S_STEP)); p('s_cmp_lt_u32 s%d, s%d' % (S_STEP, S_NST)); p('s_cbranch_scc1 %s' % loop)

R_RED = 0; R_RED2 = 4096
SEGROWS = True
def gen_R(p, trace_on=False, st=False):
    c = S_IDX
    srd(p, S_W1, KA['x'], 2048 * 1280)
    common_lane_setup(p)
    p('s_waitcnt lgkmcnt(0)')
    p('v_and_b32 v3, 8, v1'); p('v_cmp_eq_u32 vcc, 0, v3'); p('v_mov_b32 v3, 0xeeeeeeee'); p('v_mov_b32 v7, 0x44444444'); p('v_cndmask_b32 v3, v3, v7, vcc')
    p('s_lshr_b32 s%d, s%d, 1' % (S_T1, S_WAVE)); p('s_lshl_b32 s%d, s%d, 14' % (S_T1, S_T1)); p('s_and_b32 s%d, s%d, 1' % (S_T0, S_WAVE)); p('s_lshl_b32 s%d, s%d, 12' % (S_T0, S_T0))
    p('s_add_u32 s%d, s%d, s%d' % (S_T0, S_T0, S_T1)); p('v_add_u32 v4, s%d, v2' % S_T0)
    p('v_lshrrev_b32 v8, 4, v1'); p('v_lshlrev_b32 v8, 8, v8'); p('v_and_b32 v9, 7, v1'); p('v_lshlrev_b32 v9, 4, v9'); p('v_add_u32 v8, v8, v9')
    p('v_bfe_u32 v9, v1, 3, 1'); p('v_lshlrev_b32 v9, 3, v9'); p('v_add_u32 v8, v8, v9')
    p('s_lshl_b32 s%d, s%d, 10' % (S_T0, S_WAVE)); p('s_add_u32 s%d, s%d, 32768' % (S_T0, S_T0)); p('v_add_u32 v5, s%d, v8' % S_T0)
    p('s_lshl_b32 s%d, s%d, 14' % (S_T0, c)); p('s_lshl_b32 s%d, s%d, 11' % (S_T1, S_WAVE)); p('s_add_u32 s%d, s%d, s%d' % (S_T0, S_T0, S_T1)); p('v_add_u32 v6, s%d, v2' % S_T0)
    p('s_lshl_b32 s%d, s%d, 15' % (S_T0, c)); p('s_lshl_b32 s%d, s%d, 13' % (S_T1, S_WAVE)); p('s_add_u32 s%d, s%d, s%d' % (S_T0, S_T0, S_T1)); p('v_add_u32 v10, s%d, v2' % S_T0)
    p('v_bfe_u32 v8, v1, 1, 1'); p('v_lshlrev_b32 v8, 8, v8')
    p('v_bfe_u32 v9, v1, 4, 1'); p('v_lshlrev_b32 v9, 7, v9'); p('v_add_u32 v8, v8, v9')
    p('v_lshrrev_b32 v9, 5, v1'); p('v_lshlrev_b32 v9, 5, v9'); p('v_add_u32 v8, v8, v9')
    p('v_bfe_u32 v9, v1, 2, 2'); p('v_lshlrev_b32 v9, 3, v9'); p('v_add_u32 v8, v8, v9')
    p('v_and_b32 v9, 1, v1'); p('v_lshlrev_b32 v9, 2, v9'); p('v_add_u32 v8, v8, v9')
    p('s_lshl_b32 s%d, s%d, 9' % (S_T0, S_WAVE)); p('v_add_u32 v11, s%d, v8' % S_T0)
    p('v_lshlrev_b32 v12, 3, v1'); p('v_lshlrev_b32 v13, 2, v1'); p('s_lshl_b32 s%d, s%d, 8' % (S_T0, c))
    p('s_add_u32 s%d, s%d, 8192' % (S_T1, S_T0)); p('s_cmp_ge_u32 s%d, 32' % c); p('s_cselect_b32 s%d, s%d, s%d' % (S_T0, S_T1, S_T0))
    p('v_add_u32 v13, s%d, v13' % S_T0)
    p('v_lshlrev_b32 v14, 2, v1'); p('s_lshl_b32 s%d, s%d, 8' % (S_T0, c)); p('v_add_u32 v14, s%d, v14' % S_T0)
    p('v_mov_b32 v8, 0x7ff00000'); p('v_and_b32 v9, 3, v1'); p('v_cmp_eq_u32 vcc, 0, v9'); p('v_cndmask_b32 v13, v8, v13, vcc')
    p('s_lshl_b32 s%d, s%d, 11' % (S_T0, S_WAVE)); p('s_add_u32 s%d, s%d, %d' % (S_T0, S_T0, R_RED2)); p('v_add_u32 v15, s%d, v2' % S_T0)
    p('v_and_b32 v8, 15, v1'); p('s_and_b32 s%d, s%d, 1' % (S_T0, S_WAVE)); p('s_lshl_b32 s%d, s%d, 4' % (S_T0, S_T0)); p('v_add_u32 v8, s%d, v8' % S_T0); p('v_mul_u32_u24 v8, 1280, v8')
    p('v_lshrrev_b32 v9, 4, v1'); p('v_lshlrev_b32 v9, 3, v9'); p('s_lshl_b32 s%d, s%d, 5' % (S_T0, c)); p('v_add_u32 v9, s%d, v9' % S_T0)
    p('v_add_u32 v28, v8, v9')
    p('s_and_b32 s%d, s%d, 1' % (S_T0, S_WAVE)); p('s_lshl_b32 s%d, s%d, 10' % (S_T0, S_T0)); p('s_add_u32 s%d, s%d, %d' % (S_T0, S_T0, R_RED2)); p('v_add_u32 v29, s%d, v2' % S_T0)
    p('s_mov_b32 s%d, %d' % (S_T0, OFF_MOD + 2 * 1280))
    p('buffer_load_dwordx2 v[30:31], v9, s[%d:%d], s%d offen' % (S_WS, S_WS + 3, S_T0))
    p('s_waitcnt vmcnt(0)')
    p('v_lshlrev_b32 v24, 16, v30'); p('v_and_b32 v25, 0xffff0000, v30'); p('v_lshlrev_b32 v26, 16, v31'); p('v_and_b32 v27, 0xffff0000, v31')
    p('s_lshl_b32 s%d, s%d, %d' % (S_T0, c, FSH)); p('v_mov_b32 v30, s%d' % S_T0); p('v_mov_b32 v8, 0x7ff00000'); p('v_cmp_eq_u32 vcc, 0, v1'); p('v_cndmask_b32 v30, v8, v30, vcc')
    p('v_and_b32 v0, 31, v1'); p('v_lshlrev_b32 v0, %d, v0' % FSH)
    p('s_mov_b32 s%d, 0' % S_MASK); p('s_mov_b32 s%d, -1' % (S_MASK + 1))
    p('s_mov_b32 s%d, 0' % S_STEP)
    p('s_mov_b32 s%d, %d' % (S_VOO, OFF_VO))
    ZB = 64; PA = 72; PM = 88; ACC = 16; SENT = 96; PF = 128
    def VOa(k, j, n=4): return ar(40 * k + 4 * j, n)
    def Za(k, a): return ar(40 * k + 32 + 4 * a, 4)
    def vo_load(k):
        for j in range(8):
            if j == 4: p('s_add_u32 s%d, s%d, 4096' % (S_T0, S_VOO))
            p('buffer_load_dwordx4 %s, v10, s[%d:%d], s%d offen offset:%d sc1' % (VOa(k, j), S_WS, S_WS + 3, S_VOO if j < 4 else S_T0, (j % 4) * 1024))
    def vo_wait(add):
        if USE_FLAGS:
            p('s_add_u32 s%d, s%d, %d' % (S_T3, S_STEP, add)); wait_flags(p, 0, F_VO, S_T3, 7)
    S_SG = S_T6
    def seg_issue(wait):
        if wait and USE_FLAGS:
            p('s_add_u32 s%d, s%d, 1' % (S_T3, S_SG)); wait_flags(p, 0, F_P, S_T3, 7)
        p('s_mul_i32 s%d, s%d, 81920' % (S_T4, S_SG)); p('s_add_u32 s%d, s%d, %d' % (S_T4, S_T4, OFF_PS))
        for tau in range(2):
            p('s_lshl_b32 s%d, s%d, 13' % (S_T0, S_WAVE)); p('s_add_u32 s%d, s%d, s%d' % (S_T0, S_T0, S_T4)); p('s_add_u32 s%d, s%d, %d' % (S_T0, S_T0, tau * 32768))
            for j in range(8):
                if j == 4: p('s_add_u32 s%d, s%d, 4096' % (S_T0, S_T0))
                p('buffer_load_dwordx4 %s, v2, s[%d:%d], s%d offen offset:%d sc1' % (vr(PF + 40 * tau + 4 * j, 4), S_WS, S_WS + 3, S_T0, (j % 4) * 1024))
            p('s_lshl_b32 s%d, s%d, 11' % (S_T0, S_WAVE)); p('s_add_u32 s%d, s%d, s%d' % (S_T0, S_T0, S_T4)); p('s_add_u32 s%d, s%d, %d' % (S_T0, S_T0, 65536 + tau * 8192))
            for a in range(2):
                p('buffer_load_dwordx4 %s, v2, s[%d:%d], s%d offen offset:%d sc1' % (vr(PF + 40 * tau + 32 + 4 * a, 4), S_WS, S_WS + 3, S_T0, a * 1024))
        p('s_mul_i32 s%d, s%d, %d' % (S_T5, S_SG, 32 * 1280))
        p('buffer_load_dwordx2 v[100:101], v28, s[%d:%d], s%d offen' % (S_W1, S_W1 + 3, S_T5))
    def seg_compute(k, after):
        for tau in range(2):
            p('s_waitcnt vmcnt(%d)' % ((11 if tau == 0 else 1) + after))
            a = 104 + 4 * tau
            for j in range(8):
                p('v_mfma_f32_16x16x32_bf16 %s, %s, %s, %s' % (vr(a, 4), VOa(k, j), vr(PF + 40 * tau + 4 * j, 4), '0' if j == 0 else vr(a, 4)))
            for aa in range(2):
                p('v_mfma_f32_16x16x32_bf16 %s, %s, %s, %s' % (vr(a, 4), Za(k, aa), vr(PF + 40 * tau + 32 + 4 * aa, 4), vr(a, 4)))
        p('ds_write_b128 v15, v[104:107]'); p('ds_write_b128 v15, v[108:111] offset:1024')
        p('s_waitcnt lgkmcnt(0)'); p('s_barrier')
        l = p.newlabel('LRs'); p('s_cmp_ge_u32 s%d, 2' % S_WAVE); p('s_cbranch_scc1 %s' % l)
        for w in range(4): p('ds_read_b128 %s, v29 offset:%d' % (vr(104 + 4 * w, 4), w * 2048))
        p('s_waitcnt vmcnt(%d) lgkmcnt(0)' % after)
        for r in range(4):
            p('v_add_f32 v%d, v%d, v%d' % (104 + r, 104 + r, 108 + r)); p('v_add_f32 v%d, v%d, v%d' % (112 + r, 112 + r, 116 + r)); p('v_add_f32 v%d, v%d, v%d' % (104 + r, 104 + r, 112 + r))
        p('v_lshlrev_b32 v108, 16, v100'); p('v_and_b32 v109, 0xffff0000, v100'); p('v_lshlrev_b32 v110, 16, v101'); p('v_and_b32 v111, 0xffff0000, v101')
        for r in range(4): p('v_fmac_f32 v%d, v%d, v%d' % (108 + r, 24 + r, 104 + r))
        p('v_cvt_pk_bf16_f32 v100, v108, v109'); p('v_cvt_pk_bf16_f32 v101, v110, v111')
        p('s_add_u32 s%d, s%d, %d' % (S_T5, S_T5, OFF_X1))
        p('buffer_store_dwordx2 v[100:101], v28, s[%d:%d], s%d offen sc1' % (S_WS, S_WS + 3, S_T5))
        p.label(l)
    def x1_flag(val_s):
        p('v_mov_b32 v102, s%d' % val_s); p('s_mov_b32 s%d, %d' % (S_T0, F_X1))
        p('buffer_store_dword v102, v30, s[%d:%d], s%d offen sc1' % (S_WS, S_WS + 3, S_T0))
    parity_probe(p); parity_wait(p)
    vo_wait(1)
    vo_load(0)
    stamp(p, 1, st)
    pf_init(p)
    for r in range(SENT, SENT + 4): p('v_mov_b32 v%d, -1' % r)
    p('v_lshrrev_b32 v31, 5, v1'); p('v_lshlrev_b32 v31, %d, v31' % (FSH + 5)); p('v_add_u32 v31, v31, v0')
    loop = p.newlabel('LRloop'); p.label(loop)
    for k in range(4):
        pf(p, 0)
        for r in range(ACC, ACC + 4): p('v_mov_b32 v%d, 0' % r)
        step_offsets(p, 1)
        p('s_mov_b32 s%d, %d' % (S_T0, F_VO))
        p('buffer_load_dword v103, v31, s[%d:%d], s%d offen sc1' % (S_WS, S_WS + 3, S_T0))
        def ploads():
            for z in range(4): p('buffer_load_dwordx4 %s, v4, s[%d:%d], s%d offen offset:%d sc1' % (vr(PA + 4 * z, 4), S_WS, S_WS + 3, S_PO, z * 1024))
            for hp in range(2): p('buffer_load_dwordx2 %s, v5, s[%d:%d], s%d offen offset:%d sc1' % (vr(PM + 2 * hp, 2), S_WS, S_WS + 3, S_PO, hp * 128))
            return 6
        def zloads():
            p('buffer_load_dwordx4 %s, v6, s[%d:%d], s%d offen sc1' % (vr(ZB, 4), S_WS, S_WS + 3, S_ZO))
            p('buffer_load_dwordx4 %s, v6, s[%d:%d], s%d offen offset:1024 sc1' % (vr(ZB + 4, 4), S_WS, S_WS + 3, S_ZO))
            return 2
        if R_MODE == 0:
            pf(p, 1)
            poll_loop(p, lambda: ploads() + zloads(), list(range(PA, PA + 20)) + list(range(ZB, ZB + 8)), 7, 'p', 'p')
        elif R_MODE == 1:
            poll_loop(p, zloads, list(range(ZB, ZB + 8)), 7, 'z', 'z')
            pf(p, 1)
            poll_loop(p, ploads, list(range(PA, PA + 20)), 7, 'p', 'p')
        else:
            poll_loop(p, ploads, list(range(PA, PA + 20)), 7, 'p', 'p')
            pf(p, 1)
            poll_loop(p, zloads, list(range(ZB, ZB + 8)), 7, 'z', 'z')
        pf(p, 2)
        trace(p, 0, trace_on)
        p('v_smfmac_f32_16x16x64_bf16 %s, %s, %s, v3' % (vr(ACC, 4), vr(PM, 4), vr(ZB, 8)))
        for z in range(4): p('v_smfmac_f32_16x16x64_bf16 %s, %s, %s, v3' % (vr(ACC, 4), vr(PA + 4 * z, 4), VOa(k, 2 * z, 8)))
        p('v_permlane32_swap_b32 v%d, v%d' % (ACC, ACC + 1)); p('v_permlane32_swap_b32 v%d, v%d' % (ACC + 2, ACC + 3))
        p('v_add_f32 v%d, v%d, v%d' % (ACC, ACC, ACC + 1)); p('v_add_f32 v%d, v%d, v%d' % (ACC + 2, ACC + 2, ACC + 3))
        p('ds_write2_b32 v11, v%d, v%d offset0:0 offset1:16' % (ACC, ACC + 2))
        p('s_waitcnt lgkmcnt(0)')
        p('s_barrier')
        pf(p, 3)
        l = p.newlabel('LRw'); p('s_cmp_lg_u32 s%d, 0' % S_WAVE); p('s_cbranch_scc1 %s' % l)
        for w in range(4): p('ds_read_b64 %s, v12 offset:%d' % (vr(20 + 2 * w, 2) if w < 2 else vr(32 + 2 * (w - 2), 2), w * 512))
        p('s_waitcnt lgkmcnt(0)')
        p('v_add_f32 v20, v20, v22'); p('v_add_f32 v21, v21, v23'); p('v_add_f32 v32, v32, v34'); p('v_add_f32 v33, v33, v35')
        p('v_add_f32 v20, v20, v32'); p('v_add_f32 v21, v21, v33')
        p('v_cvt_pk_bf16_f32 v20, v20, v21')
        if HIST: p('v_mov_b32 v32, v20')
        for kk in (1, 2, 3): p('v_mov_b32_dpp v%d, v20 quad_perm:[%d,%d,%d,%d] row_mask:0xf bank_mask:0xf' % (20 + kk, kk, kk, kk, kk))
        p('buffer_store_dwordx4 v[20:23], v13, s[%d:%d], s%d offen sc1' % (S_WS, S_WS + 3, S_MEMO))
        pf(p, 4)
        pf_acc(p)
        trace(p, 2, trace_on)
        if HIST:
            p('s_mul_i32 s%d, s%d, 10240' % (S_T0, S_STEP)); p('s_add_u32 s%d, s%d, %d' % (S_T0, S_T0, OFF_HIST + 10240))
            p('buffer_store_dword v32, v14, s[%d:%d], s%d offen' % (S_WS, S_WS + 3, S_T0))
        p.label(l)
        l3 = p.newlabel('LRq'); p('s_cmp_lg_u32 s%d, 1' % S_WAVE); p('s_cbranch_scc1 %s' % l3)
        p('s_and_b32 s%d, s%d, %d' % (S_T0, S_STEP, MEM_RING - 1)); p('s_lshl_b32 s%d, s%d, 15' % (S_T0, S_T0)); p('s_add_u32 s%d, s%d, s%d' % (S_T0, S_T0, S_COMM))
        p('buffer_store_dwordx4 %s, v13, s[%d:%d], s%d offen sc1' % (vr(SENT, 4), S_WS, S_WS + 3, S_T0))
        p.label(l3)
        if SEGROWS:
            l4 = p.newlabel('LRx'); p('s_cmp_lg_u32 s%d, 2' % S_WAVE); p('s_cbranch_scc1 %s' % l4)
            p('s_cmp_lt_u32 s%d, 3' % S_STEP); p('s_cbranch_scc1 %s' % l4)
            p('s_sub_u32 s%d, s%d, 2' % (S_T1, S_STEP)); x1_flag(S_T1)
            p.label(l4)
        p('s_barrier')
        lok = p.newlabel('LRok')
        if USE_FLAGS:
            p('s_add_u32 s%d, s%d, 2' % (S_T1, S_STEP)); p('s_min_u32 s%d, s%d, 64' % (S_T1, S_T1))
            p('s_max_u32 s%d, s%d, 1' % (S_T2, S_STEP)); p('s_sub_u32 s%d, s%d, 1' % (S_T2, S_T2))
            p('v_mov_b32 v102, s%d' % S_T1); p('v_mov_b32 v7, s%d' % S_T2); p('v_cndmask_b32 v102, v102, v7, s[%d:%d]' % (S_MASK, S_MASK + 1))
            p('v_cmp_gt_u32 vcc, v102, v103'); p('s_cbranch_vccz %s' % lok)
            p('s_mov_b32 s%d, s%d' % (S_T3, S_T1)); wait_flags(p, 0, F_VO, S_T3, 7)
            p('s_max_u32 s%d, s%d, 1' % (S_T3, S_STEP)); p('s_sub_u32 s%d, s%d, 1' % (S_T3, S_T3)); wait_flags(p, 0, F_P, S_T3, 7)
        p.label(lok)
        for r in range(8): p('v_accvgpr_write_b32 a%d, v%d' % (40 * k + 32 + r, ZB + r))
        p('s_add_u32 s%d, s%d, 1' % (S_STEP, S_STEP))
        lns = p.newlabel('LRns'); ljoin = p.newlabel('LRj')
        def tail_loads():
            p('buffer_store_dwordx4 %s, v6, s[%d:%d], s%d offen sc1' % (vr(SENT, 4), S_WS, S_WS + 3, S_ZO))
            p('buffer_store_dwordx4 %s, v6, s[%d:%d], s%d offen offset:1024 sc1' % (vr(SENT, 4), S_WS, S_WS + 3, S_ZO))
            p('s_add_u32 s%d, s%d, %d' % (S_VOO, S_VOO, 40 * 32 * 1024))
            vo_load((k + 1) & 3)
        if SEGROWS:
            p('s_cmp_lt_u32 s%d, 3' % S_STEP); p('s_cbranch_scc1 %s' % lns)
            p('s_sub_u32 s%d, s%d, 3' % (S_SG, S_STEP)); seg_issue(False)
            tail_loads()
            seg_compute((k + 2) & 3, 10)
            p('s_branch %s' % ljoin)
        p.label(lns)
        tail_loads()
        p.label(ljoin)
    p('s_cmp_lt_u32 s%d, s%d' % (S_STEP, S_NST)); p('s_cbranch_scc1 %s' % loop)
    if SEGROWS:
        for sg in (62, 63):
            p('s_barrier')
            p('s_mov_b32 s%d, %d' % (S_SG, sg)); seg_issue(True); seg_compute(sg & 3, 0)
        p('s_waitcnt vmcnt(0)'); p('s_barrier')
        l = p.newlabel('LRf'); p('s_cmp_lg_u32 s%d, 2' % S_WAVE); p('s_cbranch_scc1 %s' % l)
        p('s_mov_b32 s%d, 64' % S_T1); x1_flag(S_T1)
        p.label(l)

HEADER = '''.amdgcn_target "amdgcn-amd-amdhsa--gfx950"
.text
'''
def kernel_desc(name, vgpr=512, accum=256, sgpr=96):
    return '''.section .rodata,"a"
.p2align 6
.amdhsa_kernel %s
  .amdhsa_next_free_vgpr %d
  .amdhsa_next_free_sgpr %d
  .amdhsa_accum_offset %d
  .amdhsa_group_segment_fixed_size 0
  .amdhsa_kernarg_size 128
  .amdhsa_user_sgpr_count 2
  .amdhsa_user_sgpr_kernarg_segment_ptr 1
  .amdhsa_system_sgpr_workgroup_id_x 1
.end_amdhsa_kernel
''' % (name, vgpr, sgpr, accum)

PLACE = 0
def gen_core_test(nsteps=64, trace_on=False, st=False):
    p = Prog()
    name = 'core_kernel'
    p.raw('.globl %s' % name); p.raw('.p2align 8'); p.raw('.type %s,@function' % name); p.label(name)
    srd(p, S_WS, KA['ws'], WS_BYTES)
    p('s_load_dwordx2 s[%d:%d], s[0:1], %d' % (S_DBG, S_DBG + 1, KA['dbg']))
    p('s_mov_b32 s%d, %d' % (S_NST, nsteps))
    p('s_waitcnt lgkmcnt(0)')
    comm_setup(p)
    lA, lB, lR, lend = 'L_roleA', 'L_roleB', 'L_roleR', 'L_end'
    if PLACE == 1:
        p('s_and_b32 s20, s2, 7'); p('s_cmp_ge_u32 s20, 4'); p('s_cbranch_scc1 L_exit')
        p('s_lshr_b32 s21, s2, 3'); p('s_lshl_b32 s21, s21, 2'); p('s_add_u32 s2, s21, s20')
    elif PLACE == 2:
        p('s_and_b32 s20, s2, 7'); p('s_cmp_ge_u32 s20, 4'); p('s_cbranch_scc1 L_exit')
        p('s_lshr_b32 s21, s2, 3')
        l0 = p.newlabel('Lpl'); l1 = p.newlabel('Lpl')
        p('s_cmp_ge_u32 s20, 2'); p('s_cbranch_scc1 %s' % l0)
        p('s_lshl_b32 s20, s20, 5'); p('s_add_u32 s2, s20, s21'); p('s_branch %s' % l1)
        p.label(l0)
        p('s_cmp_ge_u32 s21, 20'); p('s_cbranch_scc1 L_exit')
        p('s_sub_u32 s20, s20, 2'); p('s_mul_i32 s20, s20, 20'); p('s_add_u32 s2, s20, s21'); p('s_add_u32 s2, s2, 64')
        p.label(l1)
    elif PLACE == 3:
        p('s_and_b32 s20, s2, 7'); p('s_cmp_ge_u32 s20, 4'); p('s_cbranch_scc1 L_exit')
        p('s_lshr_b32 s21, s2, 3')
        l0 = p.newlabel('Lpl'); l1 = p.newlabel('Lpl')
        p('s_cmp_ge_u32 s20, 2'); p('s_cbranch_scc1 %s' % l0)
        p('s_lshr_b32 s22, s21, 1'); p('s_lshl_b32 s23, s20, 4'); p('s_add_u32 s22, s22, s23'); p('s_and_b32 s21, s21, 1'); p('s_lshl_b32 s21, s21, 5'); p('s_add_u32 s2, s22, s21'); p('s_branch %s' % l1)
        p.label(l0)
        p('s_cmp_ge_u32 s21, 20'); p('s_cbranch_scc1 L_exit')
        p('s_sub_u32 s20, s20, 2'); p('s_mul_i32 s20, s20, 20'); p('s_add_u32 s2, s20, s21'); p('s_add_u32 s2, s2, 64')
        p.label(l1)
    if st:
        p('v_lshrrev_b32 v3, 6, v0'); p('v_readfirstlane_b32 s%d, v3' % S_WAVE); p('v_mov_b32 v20, v0'); stamp(p, 0, True); p('v_mov_b32 v0, v20')
    p('s_cmp_lt_u32 s2, 32'); p('s_cbranch_scc1 %s' % lA)
    p('s_cmp_lt_u32 s2, 64'); p('s_cbranch_scc1 %s' % lB)
    p('s_cmp_lt_u32 s2, 104'); p('s_cbranch_scc1 %s' % lR)
    p.label('L_exit')
    p('s_endpgm')
    p.label(lA); p('s_mov_b32 s%d, s2' % S_IDX); gen_A(p, trace_on, st); p('s_branch %s' % lend)
    p.label(lB); p('s_sub_u32 s%d, s2, 32' % S_IDX); gen_B(p, trace_on, st); p('s_branch %s' % lend)
    p.label(lR); p('s_sub_u32 s%d, s2, 64' % S_IDX); gen_R(p, trace_on, st)
    p.label(lend)
    stamp(p, 2, st)
    pf_out(p)
    l = p.newlabel('Lok'); p('s_cmp_lg_u32 s%d, 0' % S_SPIN); p('s_cbranch_scc1 %s' % l)
    p('v_mov_b32 v4, 0'); p('v_mov_b32 v5, s2'); p('v_add_u32 v5, 1, v5'); p('global_store_dword v4, v5, s[%d:%d]' % (S_DBG, S_DBG + 1))
    p.label(l)
    p('s_waitcnt vmcnt(0)')
    p('s_endpgm')
    body = p.text()
    return '; @launch grid=(256,1,1) block=(256,1,1) lds=163840\n' + HEADER + body + kernel_desc(name), p

if __name__ == '__main__':
    t, p = gen_core_test()
    open('core.s', 'w').write(t)
    print(len(t), 'bytes', p.nops, 'nops')
```

```python
from asmlib import Prog
from layout import *

WS_BYTES = 268435456
KA = dict(x=0, mem0=8, Wq=16, Wk=24, Wv=32, Wo=40, wg=64, wu=72, wd=80, c=88, wmod=96, out=104, dbg=112, ws=120)

FS = 128
F_QK = OFF_FLAGS; F_VO = F_QK + 32 * FS; F_P = F_VO + 32 * FS; F_X1 = F_P + 64 * FS; F_H2 = F_X1 + 40 * FS; F_HM = F_H2 + 4 * FS; F_END = F_HM + 48 * FS
FSH = 7
S_WS = 4
S_W1 = 8
S_W2 = 12
S_WAVE = 16; S_IDX = 17; S_STEP = 18; S_SPIN = 19
S_T0 = 20; S_T1 = 21; S_T2 = 22; S_T3 = 23
S_MASK = 24
S_MEMO = 26; S_PO = 27; S_ZO = 28; S_QKO = 29; S_VOO = 30; S_NST = 31
S_DBG = 32
S_T4 = 34; S_T5 = 35; S_T6 = 36; S_T7 = 37
S_C = 38
S_TR0 = 40
S_TRO = 42
S_COMM = 43
S_NONCE = 70
PARITY = 0
DYN_PAR = False
HIST = True
SPIN_BUDGET = 400000

class Cnt:
    def __init__(self, p, name, maxv):
        self.p = p; self.name = name; self.maxv = maxv; self.q = []
    def issue(self, tag): self.q.append(tag)
    def wait(self, tag):
        if tag not in self.q: return
        i = len(self.q) - 1 - self.q[::-1].index(tag)
        n = len(self.q) - 1 - i
        n = min(n, self.maxv)
        self.p('s_waitcnt %s(%d)' % (self.name, n))
        self.q = self.q[len(self.q) - n:] if n else []
    def drain(self):
        self.p('s_waitcnt %s(0)' % self.name); self.q = []
    def reset(self): self.q = []

def srd(p, s, karg, nbytes):
    p('s_load_dwordx2 s[%d:%d], s[0:1], %d' % (s, s + 1, karg))
    p('s_mov_b32 s%d, 0x%x' % (s + 2, nbytes))
    p('s_mov_b32 s%d, 0x00020000' % (s + 3))

def vr(a, n=1): return 'v%d' % a if n == 1 else 'v[%d:%d]' % (a, a + n - 1)
def ar(a, n=1): return 'a%d' % a if n == 1 else 'a[%d:%d]' % (a, a + n - 1)

def unit_reg(rr, lo=0, n=8):
    if rr < 32: return ar(8 * rr + lo, n)
    return vr(128 + 8 * (rr - 32) + lo, n)

def unit_map():
    m = []; rr = 0
    for o in range(60):
        if o % 5 == 4: m.append(('lds', o // 5))
        else: m.append(('reg', rr)); rr += 1
    return m
UM = unit_map()

def poll_check(p, regs, tmp, done, again):
    r = list(regs)
    p('v_max3_u32 v%d, v%d, v%d, v%d' % (tmp, r[0], r[1], r[2])); r = r[3:]
    while len(r) >= 2:
        p('v_max3_u32 v%d, v%d, v%d, v%d' % (tmp, tmp, r[0], r[1])); r = r[2:]
    if r: p('v_max_u32 v%d, v%d, v%d' % (tmp, tmp, r[0]))
    p('v_cmp_eq_u32 vcc, -1, v%d' % tmp)
    p('s_cbranch_vccz %s' % done)
    p('s_cmp_eq_u32 s%d, 0' % S_SPIN)
    p('s_cbranch_scc1 %s' % done)
    p('s_sub_u32 s%d, s%d, 1' % (S_SPIN, S_SPIN))
    p('s_branch %s' % again)

POLL_D = 4
POLL_DK = {}
R_MODE = 0
POLL_SLEEP = {'mem': 1, 'z': 1, 'p': 2}
PRE_SLEEP = {'memA': 0, 'memB': 0, 'z': 0, 'p': 0}
def poll_loop(p, loads, regs, tmp, kind, pre=None):
    top = p.newlabel('Lpl'); done = p.newlabel('Lpld')
    for r in regs: p('v_mov_b32 v%d, -1' % r)
    if pre and PRE_SLEEP[pre]: p('s_sleep %d' % PRE_SLEEP[pre])
    p.label(top)
    n = loads()
    p('s_waitcnt vmcnt(%d)' % (n * (POLL_DK.get(kind, POLL_D) - 1)))
    r = list(regs)
    p('v_max3_u32 v%d, v%d, v%d, v%d' % (tmp, r[0], r[1], r[2])); r = r[3:]
    while len(r) >= 2:
        p('v_max3_u32 v%d, v%d, v%d, v%d' % (tmp, tmp, r[0], r[1])); r = r[2:]
    if r: p('v_max_u32 v%d, v%d, v%d' % (tmp, tmp, r[0]))
    p('v_cmp_eq_u32 vcc, -1, v%d' % tmp)
    p('s_cbranch_vccz %s' % done)
    if POLL_SLEEP[kind]: p('s_sleep %d' % POLL_SLEEP[kind])
    p('s_cmp_eq_u32 s%d, 0' % S_SPIN)
    p('s_cbranch_scc1 %s' % done)
    p('s_sub_u32 s%d, s%d, 1' % (S_SPIN, S_SPIN))
    p('s_branch %s' % top)
    p.label(done)

def step_offsets(p, mem_add=0, want=('mem', 'p', 'z')):
    if 'mem' in want:
        p('s_add_u32 s%d, s%d, %d' % (S_T0, S_STEP, mem_add)); p('s_and_b32 s%d, s%d, %d' % (S_T0, S_T0, MEM_RING - 1))
        p('s_lshl_b32 s%d, s%d, 15' % (S_T0, S_T0)); p('s_add_u32 s%d, s%d, s%d' % (S_MEMO, S_T0, S_COMM))
        if BLK_MEM: p('s_add_u32 s%d, s%d, %d' % (S_MEMO, S_MEMO, BLK_MEM * BLK))
    if 'p' in want:
        p('s_and_b32 s%d, s%d, %d' % (S_T0, S_STEP, P_RING - 1)); p('s_mul_i32 s%d, s%d, %d' % (S_T0, S_T0, 3 * BLK))
        p('s_add_u32 s%d, s%d, s%d' % (S_PO, S_T0, S_COMM)); p('s_add_u32 s%d, s%d, %d' % (S_PO, S_PO, BLK_P * BLK))
    if 'z' in want:
        p('s_and_b32 s%d, s%d, %d' % (S_T0, S_STEP, Z_RING - 1)); p('s_mul_i32 s%d, s%d, %d' % (S_T0, S_T0, 40 * BLK))
        p('s_add_u32 s%d, s%d, s%d' % (S_ZO, S_T0, S_COMM)); p('s_add_u32 s%d, s%d, %d' % (S_ZO, S_ZO, BLK_Z * BLK))

def comm_setup(p):
    p('s_add_u32 s%d, s%d, %d' % (S_T0, S_WS, OFF_COMM))
    p('s_sub_u32 s%d, 0, s%d' % (S_T0, S_T0)); p('s_and_b32 s%d, s%d, 0x1fffff' % (S_T0, S_T0))
    p('s_add_u32 s%d, s%d, %d' % (S_COMM, S_T0, OFF_COMM + (0 if DYN_PAR else PARITY * 8192)))

def wait_flags(p, voff, foff, need_s, tmp, sleep=2, base_s=None):
    top = p.newlabel('Lwf'); done = p.newlabel('Lwfd')
    if base_s is None: p('s_mov_b32 s%d, %d' % (S_T2, foff))
    else: p('s_add_u32 s%d, s%d, %d' % (S_T2, base_s, foff))
    p.label(top)
    p('buffer_load_dword v%d, v%d, s[%d:%d], s%d offen sc1' % (tmp, voff, S_WS, S_WS + 3, S_T2))
    p('s_waitcnt vmcnt(0)')
    p('v_cmp_gt_u32 vcc, s%d, v%d' % (need_s, tmp))
    p('s_cbranch_vccz %s' % done)
    p('s_sleep %d' % sleep)
    p('s_cmp_eq_u32 s%d, 0' % S_SPIN); p('s_cbranch_scc1 %s' % done)
    p('s_sub_u32 s%d, s%d, 1' % (S_SPIN, S_SPIN)); p('s_branch %s' % top)
    p.label(done)

def wait_flags_w0(p, voff, foff, need_s, tmp, sleep=4, base_s=None):
    l = p.newlabel('Lw0'); p('s_cmp_lg_u32 s%d, 0' % S_WAVE); p('s_cbranch_scc1 %s' % l)
    wait_flags(p, voff, foff, need_s, tmp, sleep, base_s)
    p.label(l)

def dbg_srd(p, s):
    p('s_mov_b32 s%d, s%d' % (s, S_DBG)); p('s_mov_b32 s%d, s%d' % (s + 1, S_DBG + 1))
    p('s_mov_b32 s%d, 256' % (s + 2)); p('s_mov_b32 s%d, 0x00020000' % (s + 3))

def parity_probe(p):
    if not DYN_PAR: return
    l = p.newlabel('Lpp'); p('s_cmp_lg_u32 s%d, 0' % S_WAVE); p('s_cbranch_scc1 %s' % l)
    p('s_cmp_lg_u32 s%d, 0' % S_IDX); p('s_cbranch_scc1 %s' % l)
    p('v_mov_b32 v16, 0'); p('v_mov_b32 v17, -1')
    p('s_mov_b32 s48, 0'); p('s_mov_b32 s49, 0')
    for i in range(4):
        for par in range(2):
            p('s_add_u32 s%d, s%d, %d' % (S_T0, S_COMM, (112 + i) * BLK + par * 8192 + i * 256))
            p('buffer_store_dword v17, v16, s[%d:%d], s%d offen sc1' % (S_WS, S_WS + 3, S_T0))
            p('s_waitcnt vmcnt(0)')
            p('s_memtime s[50:51]'); p('s_waitcnt lgkmcnt(0)')
            p('buffer_load_dword v18, v16, s[%d:%d], s%d offen sc1' % (S_WS, S_WS + 3, S_T0))
            p('s_waitcnt vmcnt(0)')
            p('s_memtime s[52:53]'); p('s_waitcnt lgkmcnt(0)')
            p('s_sub_u32 s50, s52, s50')
            if i > 0: p('s_add_u32 s%d, s%d, s50' % (48 + par, 48 + par))
    p('s_cmp_lt_u32 s49, s48'); p('s_cselect_b32 s50, 2, 1')
    dbg_srd(p, 52)
    p('v_mov_b32 v17, s50')
    p('v_cmp_eq_u32 vcc, 0, v1'); p('v_mov_b32 v18, 0x7ff00000'); p('v_cndmask_b32 v16, v18, v16, vcc')
    p('buffer_store_dword v17, v16, s[52:55], 0 offen sc1')
    p('s_waitcnt vmcnt(0)')
    p.label(l)

def parity_wait(p):
    if not DYN_PAR: return
    dbg_srd(p, 52)
    top = p.newlabel('Lpw'); done = p.newlabel('Lpwd')
    p('v_mov_b32 v16, 0')
    p.label(top)
    p('buffer_load_dword v17, v16, s[52:55], 0 offen sc1'); p('s_waitcnt vmcnt(0)')
    p('v_readfirstlane_b32 s50, v17')
    p('s_cmp_lg_u32 s50, 0'); p('s_cbranch_scc1 %s' % done)
    p('s_sleep 4')
    p('s_cmp_eq_u32 s%d, 0' % S_SPIN); p('s_cbranch_scc1 %s' % done)
    p('s_sub_u32 s%d, s%d, 1' % (S_SPIN, S_SPIN)); p('s_branch %s' % top)
    p.label(done)
    p('s_lshr_b32 s50, s50, 1'); p('s_lshl_b32 s50, s50, 13'); p('s_add_u32 s%d, s%d, s50' % (S_COMM, S_COMM))

TRV = 58
TLB_WARM = False
def tlb_warm(p, srd_s, base, nbytes, vt, vlane=1):
    if not TLB_WARM: return
    p('v_min_u32 v%d, %d, v%d' % (vt, (nbytes - 1) >> 21, vlane)); p('v_lshlrev_b32 v%d, 21, v%d' % (vt, vt))
    p('s_mov_b32 s%d, %d' % (S_T0, base))
    p('buffer_load_dword v%d, v%d, s[%d:%d], s%d offen' % (vt + 1, vt, srd_s, srd_s + 3, S_T0))

def sleep_units(p, n):
    while n > 0:
        k = min(n, 127); p('s_sleep %d' % k); n -= k

def trace(p, slot, on):
    if not on: return
    l = p.newlabel('Ltr')
    p('s_cmp_lg_u32 s%d, 0' % S_WAVE)
    p('s_cbranch_scc1 %s' % l)
    p('s_memrealtime s[%d:%d]' % (S_TR0, S_TR0 + 1))
    p('s_lshl_b32 s%d, s%d, 8' % (S_T7, S_STEP))
    p('s_add_u32 s%d, s%d, s2' % (S_T7, S_T7))
    p('s_lshl_b32 s%d, s%d, 4' % (S_T7, S_T7))
    p('s_add_u32 s%d, s%d, %d' % (S_T7, S_T7, OFF_TRACE + slot * 4))
    p('s_waitcnt lgkmcnt(0)')
    p('v_mov_b32 v%d, s%d' % (TRV, S_TR0))
    p('v_mov_b32 v%d, 0' % (TRV + 1))
    p('buffer_store_dword v%d, v%d, s[%d:%d], s%d offen' % (TRV, TRV + 1, S_WS, S_WS + 3, S_T7))
    p.label(l)

PROF = False
ALIGN = 0
def loop_align(p):
    if ALIGN: p.raw('.p2align %d' % ALIGN)
FUSED = False
PSEG = True
USE_FLAGS = True
NOBG = 0
def pf(p, k):
    if PROF: p('s_memtime s[%d:%d]' % (46 + 2 * k, 47 + 2 * k))
def pf_init(p):
    if PROF:
        for k in range(5): p('s_mov_b32 s%d, 0' % (56 + k))
        p('s_mov_b32 s68, 0'); p('s_mov_b32 s69, 0')
def pf_acc(p):
    if PROF:
        p('s_waitcnt lgkmcnt(0)')
        for k in range(4):
            p('s_sub_u32 s61, s%d, s%d' % (48 + 2 * k, 46 + 2 * k))
            p('s_add_u32 s%d, s%d, s61' % (56 + k, 56 + k))
def pf_out(p):
    if PROF:
        l = p.newlabel('Lpf')
        p('s_cmp_lg_u32 s%d, 0' % S_WAVE); p('s_cbranch_scc1 %s' % l)
        p('s_lshl_b32 s%d, s2, 6' % S_T7)
        p('s_add_u32 s%d, s%d, %d' % (S_T7, S_T7, OFF_TRACE + 524288 + 32))
        for k in range(4): p('v_mov_b32 v%d, s%d' % (20 + k, 56 + k))
        p('v_mov_b32 v7, 0')
        p('buffer_store_dwordx4 v[20:23], v7, s[%d:%d], s%d offen' % (S_WS, S_WS + 3, S_T7))
        p('v_mov_b32 v24, s68'); p('v_mov_b32 v25, s69'); p('buffer_store_dwordx2 v[24:25], v7, s[%d:%d], s%d offen offset:16' % (S_WS, S_WS + 3, S_T7))
        p.label(l)

def stamp(p, slot, on):
    if not on: return
    l = p.newlabel('Lst')
    p('s_cmp_lg_u32 s%d, 0' % S_WAVE)
    p('s_cbranch_scc1 %s' % l)
    p('s_memrealtime s[%d:%d]' % (S_TR0, S_TR0 + 1))
    p('s_memtime s[46:47]')
    p('s_lshl_b32 s%d, s2, 6' % S_T7)
    p('s_add_u32 s%d, s%d, %d' % (S_T7, S_T7, OFF_TRACE + 524288 + slot * 8))
    p('s_waitcnt lgkmcnt(0)')
    p('v_mov_b32 v16, s%d' % S_TR0)
    p('v_mov_b32 v17, s46')
    p('v_mov_b32 v7, 0')
    p('buffer_store_dwordx2 v[16:17], v7, s[%d:%d], s%d offen' % (S_WS, S_WS + 3, S_T7))
    p('s_waitcnt vmcnt(0)')
    p.label(l)

DEEP_LOAD = False
def load_weights_type1(p, jobs, stg_base_v, slot_bytes, nslots, voffs, ninstr, rowbytes, lg, vm, wres_v, tmpv, stg_s, zrows=4):
    if DEEP_LOAD and all(len(j['dests']) == ninstr for j in jobs):
        return load_weights_deep(p, jobs, stg_base_v, slot_bytes, nslots, voffs, ninstr, rowbytes, wres_v, stg_s, zrows)
    n = len(jobs)
    def issue(j):
        job = jobs[j]
        job['soff'](S_T0)
        for i in range(ninstr):
            p('s_add_u32 s%d, s%d, %d' % (S_T1, stg_s, (j % nslots) * slot_bytes + i * 1024))
            p('s_mov_b32 m0, s%d' % S_T1)
            p('buffer_load_dwordx4 v%d, s[%d:%d], s%d offen lds' % (voffs[i], job['srd'], job['srd'] + 3, S_T0))
            vm.issue(('w', j))
    depth = nslots - 1
    for j in range(min(depth, n)): issue(j)
    for j in range(n):
        vm.wait(('w', j))
        slot = (j % nslots) * slot_bytes
        pend = []
        for di, (toff, dest) in enumerate(jobs[j]['dests']):
            if dest[0] == 'reg':
                for z in range(2):
                    p('ds_read_b64_tr_b16 %s, v%d offset:%d' % (dest[1 + z], stg_base_v, slot + z * zrows * rowbytes + toff))
            else:
                t = tmpv + 4 * (len(pend) % 3)
                for z in range(2):
                    p('ds_read_b64_tr_b16 %s, v%d offset:%d' % (vr(t + 2 * z, 2), stg_base_v, slot + z * zrows * rowbytes + toff))
                pend.append((t, dest[1]))
        p('s_waitcnt lgkmcnt(0)')
        for (t, off) in pend:
            p('ds_write_b128 v%d, %s offset:%d' % (wres_v, vr(t, 4), off))
        if j + depth < n: issue(j + depth)
    p('s_waitcnt lgkmcnt(0)')

def _quad(op2):
    import re
    m = re.match(r'([va])\[(\d+):', op2); return '%s[%d:%d]' % (m.group(1), int(m.group(2)), int(m.group(2)) + 3)

DEEP_TMP = 16
def load_weights_deep(p, jobs, stg_base_v, slot_bytes, nslots, voffs, ninstr, rowbytes, wres_v, stg_s, zrows):
    n = len(jobs)
    vm = Cnt(p, 'vmcnt', 63); lg = Cnt(p, 'lgkmcnt', 15)
    raw = []; tmpi = 0
    for job in jobs:
        q = []
        for (toff, dest) in job['dests']:
            if dest[0] == 'reg': q.append(_quad(dest[1]))
            else: q.append(vr(DEEP_TMP + 4 * (tmpi % 16), 4)); tmpi += 1
        raw.append(q)
    p('v_add_u32 v127, s%d, v2' % stg_s)
    maxjobs = 60 // ninstr
    def lds_cnt(a, b): return sum(1 for j in range(a, b) for (t, d) in jobs[j]['dests'] if d[0] == 'lds')
    issued = [0]
    def issue_upto(done):
        while issued[0] < n and issued[0] - done < maxjobs and lds_cnt(done, issued[0] + 1) <= 16:
            j = issued[0]; jobs[j]['soff'](S_T0)
            for i in range(ninstr):
                p('buffer_load_dwordx4 %s, v%d, s[%d:%d], s%d offen' % (raw[j][i], voffs[i], jobs[j]['srd'], jobs[j]['srd'] + 3, S_T0)); vm.issue(('w', j))
            issued[0] += 1
    issue_upto(0)
    def wr(j):
        vm.wait(('w', j))
        for i in range(ninstr):
            p('ds_write_b128 v127, %s offset:%d' % (raw[j][i], (j % nslots) * slot_bytes + i * 1024)); lg.issue(('sw', j))
    wr(0)
    for j in range(n):
        if j + 1 < n: wr(j + 1)
        lg.wait(('sw', j))
        slot = (j % nslots) * slot_bytes
        for di, (toff, dest) in enumerate(jobs[j]['dests']):
            ops = (dest[1], dest[2]) if dest[0] == 'reg' else tuple(raw[j][di].replace(']', ']') and x for x in (_half(raw[j][di], 0), _half(raw[j][di], 1)))
            for z in range(2):
                p('ds_read_b64_tr_b16 %s, v%d offset:%d' % (ops[z], stg_base_v, slot + z * zrows * rowbytes + toff)); lg.issue(('tr', j))
        ldsd = [(di, d) for di, (t, d) in enumerate(jobs[j]['dests']) if d[0] == 'lds']
        if ldsd or nslots < 3:
            lg.wait(('tr', j))
        for di, d in ldsd:
            p('ds_write_b128 v%d, %s offset:%d' % (wres_v, raw[j][di], d[1])); lg.issue(('rw', j))
        if ldsd: lg.wait(('rw', j))
        issue_upto(j + 1)
    p('s_waitcnt lgkmcnt(0)')

def _half(q, z):
    import re
    m = re.match(r'([va])\[(\d+):', q); b = int(m.group(2)) + 2 * z
    return '%s[%d:%d]' % (m.group(1), b, b + 1)

def magic_div(p, dst, src, d, tmp_s):
    m = (1 << 20) // d + 1
    for x in range(4096): assert (x * m) >> 20 == x // d
    p('s_mov_b32 s%d, %d' % (tmp_s, m))
    p('v_mul_lo_u32 v%d, v%d, s%d' % (dst, src, tmp_s))
    p('v_lshrrev_b32 v%d, 20, v%d' % (dst, dst))

def stage_offsets(p, voffs, cpr, gstride, vlane, t1, t2):
    for i, vo in enumerate(voffs):
        p('v_add_u32 v%d, %d, v%d' % (t1, i * 64, vlane))
        magic_div(p, t2, t1, cpr, S_T0)
        p('v_mul_u32_u24 v%d, %d, v%d' % (vo, cpr, t2))
        p('v_sub_u32 v%d, v%d, v%d' % (vo, t1, vo))
        p('v_lshlrev_b32 v%d, 4, v%d' % (vo, vo))
        p('s_mov_b32 s%d, %d' % (S_T0, gstride))
        p('v_mul_lo_u32 v%d, v%d, s%d' % (t2, t2, S_T0))
        p('v_add_u32 v%d, v%d, v%d' % (vo, vo, t2))

def common_lane_setup(p):
    p('v_lshrrev_b32 v3, 6, v0')
    p('v_and_b32 v1, 63, v0')
    p('v_readfirstlane_b32 s%d, v3' % S_WAVE)
    p('v_lshlrev_b32 v2, 4, v1')
    p('s_mov_b32 s%d, %d' % (S_SPIN, SPIN_BUDGET))

def mem_gather_setup(p, memx):
    p('s_mul_i32 s%d, s%d, 3' % (S_T0, S_WAVE))
    def tmod(dst, add):
        p('s_add_u32 s%d, s%d, %d' % (dst, S_T0, add))
        p('s_sub_u32 s%d, s%d, 10' % (S_T2, dst))
        p('s_cmp_ge_u32 s%d, 10' % dst)
        p('s_cselect_b32 s%d, s%d, s%d' % (dst, S_T2, dst))
        p('s_lshl_b32 s%d, s%d, 10' % (dst, dst))
    for j in range(3):
        tmod(S_T1, j)
        p('s_add_u32 s%d, s%d, 8192' % (S_T2, S_T1)); p('s_cmp_ge_u32 s%d, 8192' % S_T1); p('s_cselect_b32 s%d, s%d, s%d' % (S_T1, S_T2, S_T1))
        p('v_add_u32 v%d, s%d, v2' % (4 + j, S_T1))
    for (vreg, tau) in ((8, 3), (9, 4), (10, 7)):
        tmod(S_T1, tau)
        p('s_add_u32 s%d, s%d, %d' % (S_T1, S_T1, memx))
        p('v_add_u32 v%d, s%d, v2' % (vreg, S_T1))
    p('v_and_b32 v3, 1, v1')
    p('v_cmp_eq_u32 vcc, 0, v3')
    p('v_mov_b32 v3, 0xeeeeeeee')
    p('v_mov_b32 v7, 0x44444444')
    p('v_cndmask_b32 v3, v3, v7, vcc')

def memfrag_addr(tau, memx_unused=None):
    if tau == 3: return (8, 0)
    if tau <= 6: return (9, (tau - 4) * 1024)
    return (10, (tau - 7) * 1024)

P0 = 40; RING = 52; WST = 64

def emit_poll_mem(p, memx, lg, pre):
    def loads():
        for j in range(3):
            p('buffer_load_dwordx4 %s, v%d, s[%d:%d], s%d offen sc1' % (vr(P0 + 4 * j, 4), 4 + j, S_WS, S_WS + 3, S_MEMO))
        return 3
    poll_loop(p, loads, range(P0, P0 + 12), 7, 'mem', pre)
    for j in range(3):
        p('ds_write_b128 v%d, %s' % (RING + j, vr(P0 + 4 * j, 4)))
        lg.issue(('mw', j))

def mem_lds_addr(p):
    for j in range(3):
        p('v_lshrrev_b32 v7, 1, v%d' % (4 + j)); p('v_and_b32 v7, 0x2000, v7')
        p('v_and_b32 v%d, 0x1fff, v%d' % (RING + j, 4 + j)); p('v_or_b32 v%d, v7, v%d' % (RING + j, RING + j))

def wst_load(p, k, wres_v, lg):
    b = WST + 8 * (k & 1)
    p('ds_read_b128 %s, v%d offset:%d' % (vr(b, 4), wres_v, k * 2048)); lg.issue(('w', k))
    p('ds_read_b128 %s, v%d offset:%d' % (vr(b + 4, 4), wres_v, k * 2048 + 1024)); lg.issue(('w', k))

def smf(p, acc, afrag, o, lg, wres_v, idxv=3, nlds=12):
    kind, n = UM[o]
    if kind == 'reg':
        p('v_smfmac_f32_16x16x64_bf16 %s, %s, %s, v%d' % (vr(acc, 4), vr(afrag, 4), unit_reg(n), idxv))
    else:
        lg.wait(('w', n))
        p('v_smfmac_f32_16x16x64_bf16 %s, %s, %s, v%d' % (vr(acc, 4), vr(afrag, 4), vr(WST + 8 * (n & 1), 8), idxv))
        if n + 2 < nlds: wst_load(p, n + 2, wres_v, lg)

def proj_phase(p, lg, ntile, acc0, obase, wres_v, extra=None):
    def frag(tau): return P0 + 4 * tau if tau < 3 else RING + 4 * ((tau - 3) % 3)
    def rd(tau):
        a, off = memfrag_addr(tau)
        p('ds_read_b128 %s, v%d offset:%d' % (vr(frag(tau), 4), a, off)); lg.issue(('m', tau))
    for tau in range(10):
        if tau == 2:
            lg.wait(('mw', 2))
            p('s_barrier')
            for t in (3, 4, 5): rd(t)
        if tau >= 3: lg.wait(('m', tau))
        for tile in range(ntile):
            smf(p, acc0 + 4 * tile, frag(tau), obase + tau * ntile + tile, lg, wres_v)
        if tau >= 3 and tau + 3 < 10: rd(tau + 3)
        if extra: extra(tau)

def half_sum(p, X, Y):
    for r in range(4): p('v_permlane32_swap_b32 v%d, v%d' % (X + r, Y + r))
    for r in range(4): p('v_add_f32 v%d, v%d, v%d' % (X + r, X + r, Y + r))

A_MEMX = 0; A_QX = 10240; A_QKB = 16384; A_WRES = 65536
def gen_A(p, trace_on=False, st=False):
    lg = Cnt(p, 'lgkmcnt', 15); vm = Cnt(p, 'vmcnt', 63)
    h = S_IDX
    srd(p, S_W1, KA['Wq'], 640 * 12288); srd(p, S_W2, KA['Wk'], 640 * 12288)
    common_lane_setup(p)
    p('s_waitcnt lgkmcnt(0)')
    mem_gather_setup(p, A_MEMX)
    p('s_mul_i32 s%d, s%d, 24576' % (S_T0, S_WAVE)); p('s_add_u32 s%d, s%d, 65536' % (S_T0, S_T0)); p('v_add_u32 v15, s%d, v2' % S_T0)
    STG = A_MEMX
    voffs = [80, 81, 82]
    stage_offsets(p, voffs, 6, 12288, 1, 83, 84)
    p('v_lshrrev_b32 v83, 4, v1'); p('v_lshlrev_b32 v83, 3, v83')
    p('v_bfe_u32 v84, v1, 2, 2'); p('v_add_u32 v83, v83, v84')
    p('v_mul_u32_u24 v83, 96, v83'); p('v_and_b32 v84, 3, v1'); p('v_lshlrev_b32 v84, 3, v84')
    p('v_add_u32 v85, v83, v84')
    p('s_lshl_b32 s%d, s%d, 14' % (S_T4, S_WAVE)); p('s_add_u32 s%d, s%d, %d' % (S_T4, S_T4, STG))
    p('v_add_u32 v85, s%d, v85' % S_T4)
    p('s_mul_i32 s%d, s%d, 384' % (S_T5, h)); p('s_mul_i32 s%d, s%d, 96' % (S_T0, S_WAVE)); p('s_add_u32 s%d, s%d, s%d' % (S_T5, S_T5, S_T0))
    p('s_mul_i32 s%d, s%d, 3' % (S_T6, S_WAVE))
    jobs = []
    for tau in range(10):
        for half in range(2):
            for mat in range(2):
                def soff(dst, tau=tau, half=half):
                    p('s_add_u32 s%d, s%d, %d' % (dst, S_T6, tau))
                    p('s_sub_u32 s%d, s%d, 10' % (S_T2, dst)); p('s_cmp_ge_u32 s%d, 10' % dst); p('s_cselect_b32 s%d, s%d, s%d' % (dst, S_T2, dst))
                    p('s_mul_i32 s%d, s%d, %d' % (dst, dst, 64 * 12288))
                    p('s_add_u32 s%d, s%d, s%d' % (dst, dst, S_T5))
                    if half: p('s_add_u32 s%d, s%d, %d' % (dst, dst, 32 * 12288))
                dests = []
                for x in range(3):
                    kind, n = UM[tau * 6 + mat * 3 + x]
                    if kind == 'reg': dests.append((x * 32, ('reg', unit_reg(n, 4 * half, 2), unit_reg(n, 4 * half + 2, 2))))
                    else: dests.append((x * 32, ('lds', n * 2048 + half * 1024)))
                jobs.append(dict(srd=S_W1 if mat == 0 else S_W2, soff=soff, dests=dests))
    load_weights_type1(p, jobs, 85, 3072, 5, voffs, 3, 96, lg, vm, 15, 88, S_T4)
    p('s_barrier')
    p('v_lshrrev_b32 v80, 5, v1'); p('v_mul_u32_u24 v80, 3072, v80')
    p('v_and_b32 v81, 3, v1'); p('v_lshlrev_b32 v81, 6, v81'); p('v_add_u32 v80, v80, v81')
    p('v_bfe_u32 v81, v1, 2, 2'); p('v_lshlrev_b32 v81, 4, v81'); p('v_add_u32 v80, v80, v81')
    p('v_bfe_u32 v81, v1, 4, 1'); p('v_lshlrev_b32 v81, 3, v81'); p('v_add_u32 v80, v80, v81')
    p('s_mul_i32 s%d, s%d, 768' % (S_T0, S_WAVE)); p('s_add_u32 s%d, s%d, %d' % (S_T0, S_T0, A_QX))
    p('v_add_u32 v11, s%d, v80' % S_T0)
    p('v_bfe_u32 v80, v1, 2, 2'); p('v_lshlrev_b32 v80, 6, v80')
    p('v_lshrrev_b32 v81, 4, v1'); p('v_lshlrev_b32 v81, 4, v81'); p('v_add_u32 v80, v80, v81')
    p('v_and_b32 v81, 1, v1'); p('v_lshlrev_b32 v81, 3, v81'); p('v_add_u32 v80, v80, v81')
    p('v_add_u32 v12, %d, v80' % A_QX)
    p('v_lshrrev_b32 v80, 5, v1'); p('v_lshlrev_b32 v80, 8, v80')
    p('v_bfe_u32 v81, v1, 4, 1'); p('v_lshlrev_b32 v81, 7, v81'); p('v_add_u32 v80, v80, v81')
    p('v_and_b32 v81, 7, v1'); p('v_lshlrev_b32 v82, 4, v81'); p('v_add_u32 v80, v80, v82')
    p('s_lshr_b32 s%d, s%d, 4' % (S_T1, h)); p('s_lshl_b32 s%d, s%d, 14' % (S_T1, S_T1)); p('s_and_b32 s%d, s%d, 15' % (S_T0, h)); p('s_lshl_b32 s%d, s%d, 9' % (S_T0, S_T0)); p('s_add_u32 s%d, s%d, s%d' % (S_T0, S_T0, S_T1))
    p('v_add_u32 v13, s%d, v80' % S_T0)
    p('v_mov_b32 v82, 0x7ff00000'); p('v_and_b32 v83, 8, v1'); p('v_cmp_eq_u32 vcc, 0, v83'); p('v_cndmask_b32 v13, v82, v13, vcc')
    p('v_lshlrev_b32 v80, 4, v1')
    p('s_lshl_b32 s%d, s%d, 7' % (S_T0, h)); p('s_add_u32 s%d, s%d, 32768' % (S_T0, S_T0)); p('v_add_u32 v14, s%d, v80' % S_T0)
    p('v_cmp_gt_u32 vcc, 8, v1'); p('v_cndmask_b32 v14, v82, v14, vcc')
    p('s_mov_b32 s%d, 0' % S_MASK); p('s_mov_b32 s%d, -1' % (S_MASK + 1))
    p('s_mov_b32 s%d, 0x%x' % (S_C, __import__('struct').unpack('<I', __import__('struct').pack('<f', 192 ** -0.5 * 1.4426950408889634))[0]))
    p('s_mov_b32 s%d, 0' % S_STEP)
    p('s_mul_i32 s%d, s%d, 24576' % (S_QKO, h)); p('s_add_u32 s%d, s%d, %d' % (S_QKO, S_QKO, OFF_QK))
    parity_wait(p)
    def qk_dma(bufsel_s):
        p('s_mov_b32 s%d, s%d' % (S_T1, S_QKO))
        for j in range(24):
            p('s_add_u32 s%d, s%d, %d' % (S_T0, bufsel_s, j * 1024))
            p('s_mov_b32 m0, s%d' % S_T0)
            p('buffer_load_dwordx4 v2, s[%d:%d], s%d offen sc1 lds' % (S_WS, S_WS + 3, S_T1))
            if j < 23: p('s_add_u32 s%d, s%d, 1024' % (S_T1, S_T1))
    def KS(jt, u): return 80 + 4 * (jt * 6 + u)
    def k_direct():
        for j in range(12):
            if j % 4 == 0: p('s_add_u32 s%d, s%d, %d' % (S_T0, S_QKO, 12288 + j * 1024))
            p('buffer_load_dwordx4 %s, v2, s[%d:%d], s%d offen offset:%d sc1' % (vr(80 + 4 * j, 4), S_WS, S_WS + 3, S_T0, (j % 4) * 1024))
    def qk_wait(add, sampled=False):
        if USE_FLAGS:
            p('s_add_u32 s%d, s%d, %d' % (S_T3, S_STEP, add))
            lok = p.newlabel('LAok')
            if sampled:
                p('v_cmp_gt_u32 vcc, s%d, v1' % S_T3); p('s_cbranch_vccz %s' % lok)
            wait_flags(p, 0, F_QK, S_T3, 7)
            p.label(lok)
    p('s_lshl_b32 s%d, s%d, %d' % (S_T0, h, FSH)); p('v_mov_b32 v0, s%d' % S_T0)
    l = p.newlabel('La')
    p('s_cmp_lg_u32 s%d, 3' % S_WAVE); p('s_cbranch_scc1 %s' % l)
    qk_wait(1)
    p('s_mov_b32 s%d, %d' % (S_T3, A_QKB)); qk_dma(S_T3)
    p.label(l)
    l = p.newlabel('La')
    p('s_cmp_lg_u32 s%d, 0' % S_WAVE); p('s_cbranch_scc1 %s' % l)
    qk_wait(1)
    k_direct()
    p.label(l)
    stamp(p, 1, st)
    pf_init(p)
    loop = p.newlabel('LAloop'); p.label(loop)
    lg.reset(); vm.reset()
    pf(p, 0)
    for r in range(16, 40): p('v_mov_b32 v%d, 0' % r)
    wst_load(p, 0, 15, lg); wst_load(p, 1, 15, lg)
    step_offsets(p, 0, ('mem', 'p')); mem_lds_addr(p)
    p('s_mov_b32 s%d, %d' % (S_T0, F_QK))
    p('buffer_load_dword v1, v0, s[%d:%d], s%d offen sc1' % (S_WS, S_WS + 3, S_T0))
    p('s_waitcnt lgkmcnt(0)'); lg.reset()
    emit_poll_mem(p, A_MEMX, lg, 'memA')
    pf(p, 1)
    trace(p, 0, trace_on)
    proj_phase(p, lg, 6, 16, 0, 15)
    for x in range(3): half_sum(p, 16 + 4 * x, 28 + 4 * x)
    for x in range(3):
        a = 16 + 4 * x
        p('v_cvt_pk_bf16_f32 v%d, v%d, v%d' % (a, a, a + 1)); p('v_cvt_pk_bf16_f32 v%d, v%d, v%d' % (a + 1, a + 2, a + 3))
        p('ds_write_b64 v11, %s offset:%d' % (vr(a, 2), x * 256))
    pf(p, 2)
    p('s_waitcnt vmcnt(0) lgkmcnt(0)'); lg.reset()
    p('s_barrier')
    pf(p, 3)
    trace(p, 1, trace_on)
    lw = p.newlabel('LAw'); lend = p.newlabel('LAe'); lw3 = p.newlabel('LAw3')
    QF = 16; KM = 40; SA = 64
    def scores(kind):
        lg.reset()
        if kind == 'mem':
            for u in range(6):
                for z in range(2):
                    p('ds_read_b64_tr_b16 %s, v12 offset:%d' % (vr(QF + 4 * u + 2 * z, 2), (2 * u + z) * 256)); lg.issue(('q', u))
        else:
            p('s_and_b32 s%d, s%d, 1' % (S_T0, S_STEP)); p('s_mul_i32 s%d, s%d, 24576' % (S_T0, S_T0)); p('s_add_u32 s%d, s%d, %d' % (S_T0, S_T0, A_QKB))
            p('v_add_u32 v7, s%d, v2' % S_T0)
            p('s_sub_u32 s%d, s%d, 1' % (S_T1, S_WAVE)); p('s_mul_i32 s%d, s%d, 6144' % (S_T1, S_T1)); p('v_add_u32 v76, s%d, v7' % S_T1)
            for u in range(6):
                p('ds_read_b128 %s, v76 offset:%d' % (vr(QF + 4 * u, 4), u * 1024)); lg.issue(('q', u))
                for jt in range(2):
                    p('ds_read_b128 %s, v7 offset:%d' % (vr(KS(jt, u), 4), 12288 + jt * 6144 + u * 1024)); lg.issue(('q', u))
        for u in range(6):
            lg.wait(('q', u))
            for jt in range(2):
                p('v_mfma_f32_16x16x32_bf16 %s, %s, %s, %s' % (vr(SA + 4 * jt, 4), vr(KS(jt, u), 4), vr(QF + 4 * u, 4), '0' if u == 0 else vr(SA + 4 * jt, 4)))
            if u == 0:
                for uu in range(6):
                    for z in range(2):
                        p('ds_read_b64_tr_b16 %s, v12 offset:%d' % (vr(KM + 4 * uu + 2 * z, 2), 3072 + (2 * uu + z) * 256)); lg.issue(('km', uu))
        SM = 72
        for u in range(6):
            lg.wait(('km', u))
            p('v_mfma_f32_16x16x32_bf16 %s, %s, %s, %s' % (vr(SM, 4), vr(KM + 4 * u, 4), vr(QF + 4 * u, 4), '0' if u == 0 else vr(SM, 4)))
        vals = list(range(SA, SA + 8)) + list(range(SM, SM + 4))
        p('v_mov_b32 v40, 0xff800000')
        if kind == 'seg':
            p('v_lshrrev_b32 v41, 4, v2'); p('v_and_b32 v42, 15, v41'); p('v_lshrrev_b32 v41, 4, v41'); p('v_lshlrev_b32 v41, 2, v41'); p('v_sub_u32 v41, v42, v41')
            p('s_sub_u32 s%d, s%d, 1' % (S_T1, S_WAVE)); p('s_lshl_b32 s%d, s%d, 4' % (S_T1, S_T1)); p('v_add_u32 v41, s%d, v41' % S_T1)
            for jt in range(2):
                for r in range(4):
                    p('v_cmp_le_i32 vcc, %d, v41' % (16 * jt + r))
                    p('v_cndmask_b32 v%d, v40, v%d, vcc' % (SA + 4 * jt + r, SA + 4 * jt + r))
        for r in range(4): p('v_cndmask_b32 v%d, v%d, v40, s[%d:%d]' % (SM + r, SM + r, S_MASK, S_MASK + 1))
        p('v_max3_f32 v17, v%d, v%d, v%d' % tuple(vals[0:3]))
        for i in range(3, 11, 2): p('v_max3_f32 v17, v17, v%d, v%d' % (vals[i], vals[i + 1]))
        p('v_max_f32 v17, v17, v%d' % vals[11])
        p('v_mov_b32 v18, v17'); p('v_permlane16_swap_b32 v17, v18'); p('v_max_f32 v17, v17, v18')
        p('v_mov_b32 v18, v17'); p('v_permlane32_swap_b32 v17, v18'); p('v_max_f32 v17, v17, v18')
        p('v_mul_f32 v17, s%d, v17' % S_C)
        for v in vals: p('v_fma_f32 v%d, v%d, s%d, -v17' % (v, v, S_C))
        for v in vals: p('v_exp_f32 v%d, v%d' % (v, v))
        p('v_add_f32 v18, v%d, v%d' % (vals[0], vals[1])); p('v_add_f32 v19, v%d, v%d' % (vals[2], vals[3]))
        for i in range(4, 12, 2):
            p('v_add_f32 v18, v18, v%d' % vals[i]); p('v_add_f32 v19, v19, v%d' % vals[i + 1])
        p('v_add_f32 v18, v18, v19')
        p('v_mov_b32 v19, v18'); p('v_permlane16_swap_b32 v18, v19'); p('v_add_f32 v18, v18, v19')
        p('v_mov_b32 v19, v18'); p('v_permlane32_swap_b32 v18, v19'); p('v_add_f32 v18, v18, v19')
        p('v_rcp_f32 v18, v18')
        for v in vals: p('v_mul_f32 v%d, v%d, v18' % (v, v))
        W = 20
        if kind == 'mem':
            p('v_cvt_pk_bf16_f32 v%d, v%d, v%d' % (W + 0, SA + 0, SA + 1)); p('v_cvt_pk_bf16_f32 v%d, v%d, v%d' % (W + 2, SA + 2, SA + 3))
            p('v_cvt_pk_bf16_f32 v%d, v%d, v%d' % (W + 1, SA + 4, SA + 5)); p('v_cvt_pk_bf16_f32 v%d, v%d, v%d' % (W + 3, SA + 6, SA + 7))
            p('v_cvt_pk_bf16_f32 v%d, v%d, v%d' % (W + 4, SM + 0, SM + 1)); p('v_cvt_pk_bf16_f32 v%d, v%d, v%d' % (W + 6, SM + 2, SM + 3))
            p('v_permlane16_swap_b32 v%d, v%d' % (W + 0, W + 2)); p('v_permlane16_swap_b32 v%d, v%d' % (W + 1, W + 3))
            p('buffer_store_dwordx4 %s, v13, s[%d:%d], s%d offen sc1' % (vr(W, 4), S_WS, S_WS + 3, S_PO))
            p('v_mov_b32 v%d, v%d' % (W + 5, W + 4)); p('v_mov_b32 v%d, v%d' % (W + 7, W + 6))
            p('v_permlane16_swap_b32 v%d, v%d' % (W + 4, W + 5)); p('v_permlane16_swap_b32 v%d, v%d' % (W + 6, W + 7))
            p('buffer_store_dwordx4 %s, v14, s[%d:%d], s%d offen sc1' % (vr(W + 4, 4), S_WS, S_WS + 3, S_PO))
        else:
            for k in range(4): p('v_cvt_pk_bf16_f32 v%d, v%d, v%d' % (W + k, SA + 2 * k, SA + 2 * k + 1))
            p('v_cvt_pk_bf16_f32 v%d, v%d, v%d' % (W + 4, SM + 0, SM + 1)); p('v_cvt_pk_bf16_f32 v%d, v%d, v%d' % (W + 5, SM + 2, SM + 3))
            p('s_mul_i32 s%d, s%d, 81920' % (S_T0, S_STEP)); p('s_sub_u32 s%d, s%d, 1' % (S_T1, S_WAVE)); p('s_lshl_b32 s%d, s%d, 15' % (S_T2, S_T1))
            p('s_add_u32 s%d, s%d, s%d' % (S_T2, S_T2, S_T0)); p('s_lshl_b32 s%d, s%d, 10' % (S_T3, h)); p('s_add_u32 s%d, s%d, s%d' % (S_T2, S_T2, S_T3)); p('s_add_u32 s%d, s%d, %d' % (S_T2, S_T2, OFF_PS))
            p('buffer_store_dwordx4 %s, v2, s[%d:%d], s%d offen sc1' % (vr(W, 4), S_WS, S_WS + 3, S_T2))
            p('v_mov_b32 v%d, v%d' % (W + 6, W + 4)); p('v_mov_b32 v%d, v%d' % (W + 7, W + 5))
            p('v_permlane16_swap_b32 v%d, v%d' % (W + 4, W + 6)); p('v_permlane16_swap_b32 v%d, v%d' % (W + 5, W + 7))
            p('s_lshl_b32 s%d, s%d, 13' % (S_T1, S_T1)); p('s_add_u32 s%d, s%d, s%d' % (S_T0, S_T0, S_T1)); p('s_lshl_b32 s%d, s%d, 8' % (S_T3, h)); p('s_add_u32 s%d, s%d, s%d' % (S_T0, S_T0, S_T3))
            p('s_add_u32 s%d, s%d, %d' % (S_T0, S_T0, OFF_PS + 65536))
            p('v_mov_b32 v42, 0x7ff00000'); p('v_cmp_gt_u32 vcc, 256, v2'); p('v_cndmask_b32 v42, v42, v2, vcc')
            p('buffer_store_dwordx4 %s, v42, s[%d:%d], s%d offen sc1' % (vr(W + 4, 4), S_WS, S_WS + 3, S_T0))
    p('s_cmp_lg_u32 s%d, 0' % S_WAVE); p('s_cbranch_scc1 %s' % lw)
    scores('mem')
    pf(p, 4)
    pf_acc(p)
    trace(p, 2, trace_on)
    p('s_barrier')
    p('s_cmp_ge_u32 s%d, 63' % S_STEP); p('s_cbranch_scc1 %s' % lend)
    p('s_add_u32 s%d, s%d, %d' % (S_QKO, S_QKO, 32 * 24576))
    qk_wait(2, True)
    if not NOBG & 1: k_direct()
    p('s_branch %s' % lend)
    p.label(lw)
    p('s_cmp_eq_u32 s%d, 3' % S_WAVE); p('s_cbranch_scc1 %s' % lw3)
    if PSEG: scores('seg')
    p('s_barrier')
    p('s_branch %s' % lend)
    p.label(lw3)
    p('s_add_u32 s%d, s%d, %d' % (S_T0, S_STEP, P_RING - 1)); p('s_and_b32 s%d, s%d, %d' % (S_T0, S_T0, P_RING - 1)); p('s_mul_i32 s%d, s%d, %d' % (S_T0, S_T0, 3 * BLK))
    p('s_add_u32 s%d, s%d, s%d' % (S_T0, S_T0, S_COMM)); p('s_add_u32 s%d, s%d, %d' % (S_T0, S_T0, BLK_P * BLK))
    for r in range(16, 20): p('v_mov_b32 v%d, -1' % r)
    p('buffer_store_dwordx4 v[16:19], v13, s[%d:%d], s%d offen sc1' % (S_WS, S_WS + 3, S_T0))
    p('buffer_store_dwordx4 v[16:19], v14, s[%d:%d], s%d offen sc1' % (S_WS, S_WS + 3, S_T0))
    def fp_flag():
        p('v_mov_b32 v20, 0x7ff00000'); p('v_cmp_eq_u32 vcc, 0, v2'); p('v_cndmask_b32 v20, v20, v0, vcc')
        p('v_mov_b32 v21, s%d' % S_STEP); p('s_mov_b32 s%d, %d' % (S_T0, F_P))
        p('buffer_store_dword v21, v20, s[%d:%d], s%d offen sc1' % (S_WS, S_WS + 3, S_T0))
    fp_flag()
    p('s_barrier')
    p('s_cmp_ge_u32 s%d, 63' % S_STEP); p('s_cbranch_scc1 %s' % lend)
    p('s_add_u32 s%d, s%d, %d' % (S_QKO, S_QKO, 32 * 24576))
    qk_wait(2, True)
    p('s_add_u32 s%d, s%d, 1' % (S_T3, S_STEP)); p('s_and_b32 s%d, s%d, 1' % (S_T3, S_T3)); p('s_mul_i32 s%d, s%d, 24576' % (S_T3, S_T3)); p('s_add_u32 s%d, s%d, %d' % (S_T3, S_T3, A_QKB))
    if not NOBG & 2: qk_dma(S_T3)
    p.label(lend)
    p('s_add_u32 s%d, s%d, 1' % (S_STEP, S_STEP)); p('s_cmp_lt_u32 s%d, s%d' % (S_STEP, S_NST)); p('s_cbranch_scc1 %s' % loop)
    p('s_waitcnt vmcnt(0)'); p('s_barrier')
    l = p.newlabel('LAfin'); p('s_cmp_lg_u32 s%d, 3' % S_WAVE); p('s_cbranch_scc1 %s' % l)
    fp_flag()
    p.label(l)

B_MEMX = 0; B_VX = 10240; B_WRES = 65536
def gen_B(p, trace_on=False, st=False):
    lg = Cnt(p, 'lgkmcnt', 15); vm = Cnt(p, 'vmcnt', 63)
    h = S_IDX
    srd(p, S_W1, KA['Wv'], 640 * 12288); srd(p, S_W2, KA['Wo'], 32 * 192 * 1280)
    common_lane_setup(p)
    p('s_waitcnt lgkmcnt(0)')
    mem_gather_setup(p, B_MEMX)
    p('s_mul_i32 s%d, s%d, 24576' % (S_T0, S_WAVE)); p('s_add_u32 s%d, s%d, 65536' % (S_T0, S_T0)); p('v_add_u32 v15, s%d, v2' % S_T0)
    STG = B_MEMX
    p('s_lshl_b32 s%d, s%d, 14' % (S_T4, S_WAVE)); p('s_add_u32 s%d, s%d, %d' % (S_T4, S_T4, STG))
    voffs = [80, 81, 82]
    stage_offsets(p, voffs, 6, 12288, 1, 83, 84)
    p('v_lshrrev_b32 v83, 4, v1'); p('v_lshlrev_b32 v83, 3, v83'); p('v_bfe_u32 v84, v1, 2, 2'); p('v_add_u32 v83, v83, v84')
    p('v_and_b32 v84, 3, v1'); p('v_lshlrev_b32 v84, 3, v84')
    p('v_mul_u32_u24 v85, 96, v83'); p('v_add_u32 v85, v85, v84'); p('v_add_u32 v85, s%d, v85' % S_T4)
    p('v_mul_u32_u24 v86, 160, v83'); p('v_add_u32 v86, v86, v84'); p('v_add_u32 v86, s%d, v86' % S_T4)
    p('s_mul_i32 s%d, s%d, 384' % (S_T5, h)); p('s_mul_i32 s%d, s%d, 96' % (S_T0, S_WAVE)); p('s_add_u32 s%d, s%d, s%d' % (S_T5, S_T5, S_T0))
    p('s_mul_i32 s%d, s%d, 3' % (S_T6, S_WAVE))
    jobs = []
    for tau in range(10):
        for half in range(2):
            def soff(dst, tau=tau, half=half):
                p('s_add_u32 s%d, s%d, %d' % (dst, S_T6, tau))
                p('s_sub_u32 s%d, s%d, 10' % (S_T2, dst)); p('s_cmp_ge_u32 s%d, 10' % dst); p('s_cselect_b32 s%d, s%d, s%d' % (dst, S_T2, dst))
                p('s_mul_i32 s%d, s%d, %d' % (dst, dst, 64 * 12288))
                p('s_add_u32 s%d, s%d, s%d' % (dst, dst, S_T5))
                if half: p('s_add_u32 s%d, s%d, %d' % (dst, dst, 32 * 12288))
            dests = []
            for x in range(3):
                kind, n = UM[tau * 3 + x]
                if kind == 'reg': dests.append((x * 32, ('reg', unit_reg(n, 4 * half, 2), unit_reg(n, 4 * half + 2, 2))))
                else: dests.append((x * 32, ('lds', n * 2048 + half * 1024)))
            jobs.append(dict(srd=S_W1, soff=soff, dests=dests))
    load_weights_type1(p, jobs, 85, 3072, 5, voffs, 3, 96, lg, vm, 15, 88, S_T4)
    voffs = [100, 101, 102, 103, 104]
    stage_offsets(p, voffs, 10, 1280, 1, 83, 84)
    p('s_mul_i32 s%d, s%d, %d' % (S_T5, h, 192 * 1280)); p('s_mul_i32 s%d, s%d, 320' % (S_T0, S_WAVE)); p('s_add_u32 s%d, s%d, s%d' % (S_T5, S_T5, S_T0))
    jobs = []
    for u in range(6):
        for ch in range(2):
            def soff(dst, u=u, ch=ch): p('s_add_u32 s%d, s%d, %d' % (dst, S_T5, u * 32 * 1280 + ch * 160))
            dests = []
            for x in range(5):
                cc = ch * 5 + x
                kind, n = UM[30 + cc * 3 + (u >> 1)]
                half = u & 1
                if kind == 'reg': dests.append((x * 32, ('reg', unit_reg(n, 4 * half, 2), unit_reg(n, 4 * half + 2, 2))))
                else: dests.append((x * 32, ('lds', n * 2048 + half * 1024)))
            jobs.append(dict(srd=S_W2, soff=soff, dests=dests))
    load_weights_type1(p, jobs, 86, 5120, 3, voffs, 5, 160, lg, vm, 15, 88, S_T4)
    p('s_barrier')
    p('v_bfe_u32 v80, v1, 3, 1'); p('v_lshlrev_b32 v80, 9, v80')
    p('v_bfe_u32 v81, v1, 2, 1'); p('v_lshlrev_b32 v81, 6, v81'); p('v_add_u32 v80, v80, v81')
    p('v_and_b32 v81, 1, v1'); p('v_lshlrev_b32 v81, 5, v81'); p('v_add_u32 v80, v80, v81')
    p('v_bfe_u32 v81, v1, 1, 1'); p('v_lshlrev_b32 v81, 4, v81'); p('v_add_u32 v80, v80, v81')
    p('v_bfe_u32 v81, v1, 4, 1'); p('v_lshlrev_b32 v81, 3, v81'); p('v_add_u32 v80, v80, v81')
    def tile_off(dstv, tv):
        p('v_lshrrev_b32 v82, 2, v%d' % tv); p('v_lshlrev_b32 v82, 10, v82')
        p('v_and_b32 v83, 3, v%d' % tv); p('v_lshlrev_b32 v83, 7, v83')
        p('v_add3_u32 v%d, v80, v82, v83' % dstv); p('v_add_u32 v%d, %d, v%d' % (dstv, B_VX, dstv))
    p('s_mul_i32 s%d, s%d, 3' % (S_T0, S_WAVE))
    p('v_lshrrev_b32 v84, 5, v1'); p('v_add_u32 v84, s%d, v84' % S_T0); tile_off(11, 84)
    p('v_mov_b32 v84, s%d' % S_T0); p('v_add_u32 v84, 2, v84'); tile_off(12, 84)
    p('v_lshrrev_b32 v80, 4, v1'); p('v_lshlrev_b32 v80, 7, v80')
    p('v_bfe_u32 v81, v1, 2, 2'); p('v_lshlrev_b32 v81, 5, v81'); p('v_add_u32 v80, v80, v81')
    p('v_and_b32 v81, 3, v1'); p('v_lshlrev_b32 v81, 3, v81'); p('v_add_u32 v80, v80, v81')
    p('v_add_u32 v13, %d, v80' % B_VX)
    p('v_lshrrev_b32 v80, 5, v1'); p('v_bfe_u32 v81, v1, 4, 1'); p('v_lshlrev_b32 v81, 1, v81'); p('v_add_u32 v80, v80, v81')
    p('s_mul_i32 s%d, s%d, 10' % (S_T0, S_WAVE)); p('v_add_u32 v80, s%d, v80' % S_T0); p('v_lshlrev_b32 v80, 14, v80')
    p('v_and_b32 v81, 15, v1'); p('v_lshlrev_b32 v81, 4, v81'); p('v_add_u32 v80, v80, v81')
    p('s_lshl_b32 s%d, s%d, 8' % (S_T0, h)); p('v_add_u32 v14, s%d, v80' % S_T0)
    p('v_lshrrev_b32 v80, 5, v1'); p('s_mul_i32 s%d, s%d, 10' % (S_T1, S_WAVE)); p('s_add_u32 s%d, s%d, 8' % (S_T1, S_T1)); p('v_add_u32 v80, s%d, v80' % S_T1); p('v_lshlrev_b32 v80, 14, v80')
    p('v_add_u32 v80, v80, v81'); p('v_add_u32 v120, s%d, v80' % S_T0)
    p('v_mov_b32 v82, 0x7ff00000'); p('v_and_b32 v83, 16, v1'); p('v_cmp_eq_u32 vcc, 0, v83'); p('v_cndmask_b32 v120, v82, v120, vcc')
    p('s_mov_b32 s%d, 0' % S_STEP)
    parity_wait(p)
    ACC1 = 16; VF = 28; ACC2 = 80
    stamp(p, 1, st)
    pf_init(p)
    loop = p.newlabel('LBloop'); p.label(loop)
    lg.reset(); vm.reset()
    pf(p, 0)
    for r in range(ACC1, ACC1 + 12): p('v_mov_b32 v%d, 0' % r)
    for r in range(ACC2, ACC2 + 40): p('v_mov_b32 v%d, 0' % r)
    wst_load(p, 0, 15, lg); wst_load(p, 1, 15, lg)
    step_offsets(p, 0, ('mem', 'z')); mem_lds_addr(p)
    p('s_waitcnt lgkmcnt(0)'); lg.reset()
    emit_poll_mem(p, B_MEMX, lg, 'memB')
    pf(p, 1)
    trace(p, 0, trace_on)
    proj_phase(p, lg, 3, ACC1, 0, 15)
    half_sum(p, 16, 20)
    for r in range(4): p('v_mov_b32 v%d, v%d' % (28 + r, 24 + r))
    half_sum(p, 24, 28)
    for a, addr in ((16, 11), (24, 12)):
        p('v_cvt_pk_bf16_f32 v%d, v%d, v%d' % (a, a, a + 1)); p('v_cvt_pk_bf16_f32 v%d, v%d, v%d' % (a + 1, a + 2, a + 3))
        p('ds_write_b64 v%d, %s' % (addr, vr(a, 2))); lg.issue('vx')
    pf(p, 2)
    p('s_waitcnt vmcnt(0)')
    lg.wait('vx')
    p('s_barrier')
    pf(p, 3)
    VFR = 40
    for t in range(3):
        for z in range(2):
            p('ds_read_b64_tr_b16 %s, v13 offset:%d' % (vr(VFR + 4 * t + 2 * z, 2), t * 1024 + z * 512)); lg.issue(('vf', t))
    def hs(pair):
        a = ACC2 + 8 * pair
        half_sum(p, a, a + 4)
        p('v_cvt_pk_bf16_f32 v%d, v%d, v%d' % (a, a, a + 1)); p('v_cvt_pk_bf16_f32 v%d, v%d, v%d' % (a + 1, a + 2, a + 3))
    def fin4(grp):
        a = ACC2 + 16 * grp; b = a + 8
        p('v_mov_b32 v%d, v%d' % (a + 2, b)); p('v_mov_b32 v%d, v%d' % (a + 3, b + 1))
        p('v_permlane16_swap_b32 v%d, v%d' % (a, a + 2)); p('v_permlane16_swap_b32 v%d, v%d' % (a + 1, a + 3))
        p('s_add_u32 s%d, s%d, %d' % (S_T0, S_ZO, grp * 4 * BLK))
        p('buffer_store_dwordx4 %s, v14, s[%d:%d], s%d offen sc1' % (vr(a, 4), S_WS, S_WS + 3, S_T0))
    def fin_last():
        a = ACC2 + 32
        p('v_mov_b32 v%d, v%d' % (a + 2, a)); p('v_mov_b32 v%d, v%d' % (a + 3, a + 1))
        p('v_permlane16_swap_b32 v%d, v%d' % (a, a + 2)); p('v_permlane16_swap_b32 v%d, v%d' % (a + 1, a + 3))
        p('buffer_store_dwordx4 %s, v120, s[%d:%d], s%d offen sc1' % (vr(a, 4), S_WS, S_WS + 3, S_ZO))
    for cc in range(10):
        for t in range(3):
            if cc == 0: lg.wait(('vf', t))
            smf(p, ACC2 + 4 * cc, VFR + 4 * t, 30 + cc * 3 + t, lg, 15)
        if cc >= 3 and cc % 2 == 1:
            pr = (cc - 3) // 2
            hs(pr)
            if pr % 2 == 1: fin4(pr // 2)
    hs(4); fin_last()
    p('s_barrier')
    pf(p, 4)
    pf_acc(p)
    trace(p, 2, trace_on)
    p('s_add_u32 s%d, s%d, 1' % (S_STEP, S_STEP)); p('s_cmp_lt_u32 s%d, s%d' % (S_STEP, S_NST)); p('s_cbranch_scc1 %s' % loop)

R_RED = 0; R_RED2 = 4096
SEGROWS = True
def gen_R(p, trace_on=False, st=False):
    c = S_IDX
    srd(p, S_W1, KA['x'], 2048 * 1280)
    common_lane_setup(p)
    p('s_waitcnt lgkmcnt(0)')
    p('v_and_b32 v3, 8, v1'); p('v_cmp_eq_u32 vcc, 0, v3'); p('v_mov_b32 v3, 0xeeeeeeee'); p('v_mov_b32 v7, 0x44444444'); p('v_cndmask_b32 v3, v3, v7, vcc')
    p('s_lshr_b32 s%d, s%d, 1' % (S_T1, S_WAVE)); p('s_lshl_b32 s%d, s%d, 14' % (S_T1, S_T1)); p('s_and_b32 s%d, s%d, 1' % (S_T0, S_WAVE)); p('s_lshl_b32 s%d, s%d, 12' % (S_T0, S_T0))
    p('s_add_u32 s%d, s%d, s%d' % (S_T0, S_T0, S_T1)); p('v_add_u32 v4, s%d, v2' % S_T0)
    p('v_lshrrev_b32 v8, 4, v1'); p('v_lshlrev_b32 v8, 8, v8'); p('v_and_b32 v9, 7, v1'); p('v_lshlrev_b32 v9, 4, v9'); p('v_add_u32 v8, v8, v9')
    p('v_bfe_u32 v9, v1, 3, 1'); p('v_lshlrev_b32 v9, 3, v9'); p('v_add_u32 v8, v8, v9')
    p('s_lshl_b32 s%d, s%d, 10' % (S_T0, S_WAVE)); p('s_add_u32 s%d, s%d, 32768' % (S_T0, S_T0)); p('v_add_u32 v5, s%d, v8' % S_T0)
    p('s_lshl_b32 s%d, s%d, 14' % (S_T0, c)); p('s_lshl_b32 s%d, s%d, 11' % (S_T1, S_WAVE)); p('s_add_u32 s%d, s%d, s%d' % (S_T0, S_T0, S_T1)); p('v_add_u32 v6, s%d, v2' % S_T0)
    p('s_lshl_b32 s%d, s%d, 15' % (S_T0, c)); p('s_lshl_b32 s%d, s%d, 13' % (S_T1, S_WAVE)); p('s_add_u32 s%d, s%d, s%d' % (S_T0, S_T0, S_T1)); p('v_add_u32 v10, s%d, v2' % S_T0)
    p('v_bfe_u32 v8, v1, 1, 1'); p('v_lshlrev_b32 v8, 8, v8')
    p('v_bfe_u32 v9, v1, 4, 1'); p('v_lshlrev_b32 v9, 7, v9'); p('v_add_u32 v8, v8, v9')
    p('v_lshrrev_b32 v9, 5, v1'); p('v_lshlrev_b32 v9, 5, v9'); p('v_add_u32 v8, v8, v9')
    p('v_bfe_u32 v9, v1, 2, 2'); p('v_lshlrev_b32 v9, 3, v9'); p('v_add_u32 v8, v8, v9')
    p('v_and_b32 v9, 1, v1'); p('v_lshlrev_b32 v9, 2, v9'); p('v_add_u32 v8, v8, v9')
    p('s_lshl_b32 s%d, s%d, 9' % (S_T0, S_WAVE)); p('v_add_u32 v11, s%d, v8' % S_T0)
    p('v_lshlrev_b32 v12, 3, v1'); p('v_lshlrev_b32 v13, 2, v1'); p('s_lshl_b32 s%d, s%d, 8' % (S_T0, c))
    p('s_add_u32 s%d, s%d, 8192' % (S_T1, S_T0)); p('s_cmp_ge_u32 s%d, 32' % c); p('s_cselect_b32 s%d, s%d, s%d' % (S_T0, S_T1, S_T0))
    p('v_add_u32 v13, s%d, v13' % S_T0)
    p('v_lshlrev_b32 v14, 2, v1'); p('s_lshl_b32 s%d, s%d, 8' % (S_T0, c)); p('v_add_u32 v14, s%d, v14' % S_T0)
    p('v_mov_b32 v8, 0x7ff00000'); p('v_and_b32 v9, 3, v1'); p('v_cmp_eq_u32 vcc, 0, v9'); p('v_cndmask_b32 v13, v8, v13, vcc')
    p('s_lshl_b32 s%d, s%d, 11' % (S_T0, S_WAVE)); p('s_add_u32 s%d, s%d, %d' % (S_T0, S_T0, R_RED2)); p('v_add_u32 v15, s%d, v2' % S_T0)
    p('v_and_b32 v8, 15, v1'); p('s_and_b32 s%d, s%d, 1' % (S_T0, S_WAVE)); p('s_lshl_b32 s%d, s%d, 4' % (S_T0, S_T0)); p('v_add_u32 v8, s%d, v8' % S_T0); p('v_mul_u32_u24 v8, 1280, v8')
    p('v_lshrrev_b32 v9, 4, v1'); p('v_lshlrev_b32 v9, 3, v9'); p('s_lshl_b32 s%d, s%d, 5' % (S_T0, c)); p('v_add_u32 v9, s%d, v9' % S_T0)
    p('v_add_u32 v28, v8, v9')
    p('s_and_b32 s%d, s%d, 1' % (S_T0, S_WAVE)); p('s_lshl_b32 s%d, s%d, 10' % (S_T0, S_T0)); p('s_add_u32 s%d, s%d, %d' % (S_T0, S_T0, R_RED2)); p('v_add_u32 v29, s%d, v2' % S_T0)
    p('s_mov_b32 s%d, %d' % (S_T0, OFF_MOD + 2 * 1280))
    p('buffer_load_dwordx2 v[30:31], v9, s[%d:%d], s%d offen' % (S_WS, S_WS + 3, S_T0))
    p('s_waitcnt vmcnt(0)')
    p('v_lshlrev_b32 v24, 16, v30'); p('v_and_b32 v25, 0xffff0000, v30'); p('v_lshlrev_b32 v26, 16, v31'); p('v_and_b32 v27, 0xffff0000, v31')
    p('s_lshl_b32 s%d, s%d, %d' % (S_T0, c, FSH)); p('v_mov_b32 v30, s%d' % S_T0); p('v_mov_b32 v8, 0x7ff00000'); p('v_cmp_eq_u32 vcc, 0, v1'); p('v_cndmask_b32 v30, v8, v30, vcc')
    p('v_and_b32 v0, 31, v1'); p('v_lshlrev_b32 v0, %d, v0' % FSH)
    p('s_mov_b32 s%d, 0' % S_MASK); p('s_mov_b32 s%d, -1' % (S_MASK + 1))
    p('s_mov_b32 s%d, 0' % S_STEP)
    p('s_mov_b32 s%d, %d' % (S_VOO, OFF_VO))
    ZB = 64; PA = 72; PM = 88; ACC = 16; SENT = 96; PF = 128
    def VOa(k, j, n=4): return ar(40 * k + 4 * j, n)
    def Za(k, a): return ar(40 * k + 32 + 4 * a, 4)
    def vo_load(k):
        for j in range(8):
            if j == 4: p('s_add_u32 s%d, s%d, 4096' % (S_T0, S_VOO))
            p('buffer_load_dwordx4 %s, v10, s[%d:%d], s%d offen offset:%d sc1' % (VOa(k, j), S_WS, S_WS + 3, S_VOO if j < 4 else S_T0, (j % 4) * 1024))
    def vo_wait(add):
        if USE_FLAGS:
            p('s_add_u32 s%d, s%d, %d' % (S_T3, S_STEP, add)); wait_flags(p, 0, F_VO, S_T3, 7)
    S_SG = S_T6
    def seg_issue(wait):
        if wait and USE_FLAGS:
            p('s_add_u32 s%d, s%d, 1' % (S_T3, S_SG)); wait_flags(p, 0, F_P, S_T3, 7)
        p('s_mul_i32 s%d, s%d, 81920' % (S_T4, S_SG)); p('s_add_u32 s%d, s%d, %d' % (S_T4, S_T4, OFF_PS))
        for tau in range(2):
            p('s_lshl_b32 s%d, s%d, 13' % (S_T0, S_WAVE)); p('s_add_u32 s%d, s%d, s%d' % (S_T0, S_T0, S_T4)); p('s_add_u32 s%d, s%d, %d' % (S_T0, S_T0, tau * 32768))
            for j in range(8):
                if j == 4: p('s_add_u32 s%d, s%d, 4096' % (S_T0, S_T0))
                p('buffer_load_dwordx4 %s, v2, s[%d:%d], s%d offen offset:%d sc1' % (vr(PF + 40 * tau + 4 * j, 4), S_WS, S_WS + 3, S_T0, (j % 4) * 1024))
            p('s_lshl_b32 s%d, s%d, 11' % (S_T0, S_WAVE)); p('s_add_u32 s%d, s%d, s%d' % (S_T0, S_T0, S_T4)); p('s_add_u32 s%d, s%d, %d' % (S_T0, S_T0, 65536 + tau * 8192))
            for a in range(2):
                p('buffer_load_dwordx4 %s, v2, s[%d:%d], s%d offen offset:%d sc1' % (vr(PF + 40 * tau + 32 + 4 * a, 4), S_WS, S_WS + 3, S_T0, a * 1024))
        p('s_mul_i32 s%d, s%d, %d' % (S_T5, S_SG, 32 * 1280))
        p('buffer_load_dwordx2 v[100:101], v28, s[%d:%d], s%d offen' % (S_W1, S_W1 + 3, S_T5))
    def seg_compute(k, after):
        for tau in range(2):
            p('s_waitcnt vmcnt(%d)' % ((11 if tau == 0 else 1) + after))
            a = 104 + 4 * tau
            for j in range(8):
                p('v_mfma_f32_16x16x32_bf16 %s, %s, %s, %s' % (vr(a, 4), VOa(k, j), vr(PF + 40 * tau + 4 * j, 4), '0' if j == 0 else vr(a, 4)))
            for aa in range(2):
                p('v_mfma_f32_16x16x32_bf16 %s, %s, %s, %s' % (vr(a, 4), Za(k, aa), vr(PF + 40 * tau + 32 + 4 * aa, 4), vr(a, 4)))
        p('ds_write_b128 v15, v[104:107]'); p('ds_write_b128 v15, v[108:111] offset:1024')
        p('s_waitcnt lgkmcnt(0)'); p('s_barrier')
        l = p.newlabel('LRs'); p('s_cmp_ge_u32 s%d, 2' % S_WAVE); p('s_cbranch_scc1 %s' % l)
        for w in range(4): p('ds_read_b128 %s, v29 offset:%d' % (vr(104 + 4 * w, 4), w * 2048))
        p('s_waitcnt vmcnt(%d) lgkmcnt(0)' % after)
        for r in range(4):
            p('v_add_f32 v%d, v%d, v%d' % (104 + r, 104 + r, 108 + r)); p('v_add_f32 v%d, v%d, v%d' % (112 + r, 112 + r, 116 + r)); p('v_add_f32 v%d, v%d, v%d' % (104 + r, 104 + r, 112 + r))
        p('v_lshlrev_b32 v108, 16, v100'); p('v_and_b32 v109, 0xffff0000, v100'); p('v_lshlrev_b32 v110, 16, v101'); p('v_and_b32 v111, 0xffff0000, v101')
        for r in range(4): p('v_fmac_f32 v%d, v%d, v%d' % (108 + r, 24 + r, 104 + r))
        p('v_cvt_pk_bf16_f32 v100, v108, v109'); p('v_cvt_pk_bf16_f32 v101, v110, v111')
        p('s_add_u32 s%d, s%d, %d' % (S_T5, S_T5, OFF_X1))
        p('buffer_store_dwordx2 v[100:101], v28, s[%d:%d], s%d offen sc1' % (S_WS, S_WS + 3, S_T5))
        p.label(l)
    def x1_flag(val_s):
        p('v_mov_b32 v102, s%d' % val_s); p('s_mov_b32 s%d, %d' % (S_T0, F_X1))
        p('buffer_store_dword v102, v30, s[%d:%d], s%d offen sc1' % (S_WS, S_WS + 3, S_T0))
    parity_probe(p); parity_wait(p)
    vo_wait(1)
    vo_load(0)
    stamp(p, 1, st)
    pf_init(p)
    for r in range(SENT, SENT + 4): p('v_mov_b32 v%d, -1' % r)
    p('v_lshrrev_b32 v31, 5, v1'); p('v_lshlrev_b32 v31, %d, v31' % (FSH + 5)); p('v_add_u32 v31, v31, v0')
    loop = p.newlabel('LRloop'); p.label(loop)
    for k in range(4):
        pf(p, 0)
        for r in range(ACC, ACC + 4): p('v_mov_b32 v%d, 0' % r)
        step_offsets(p, 1)
        p('s_mov_b32 s%d, %d' % (S_T0, F_VO))
        p('buffer_load_dword v103, v31, s[%d:%d], s%d offen sc1' % (S_WS, S_WS + 3, S_T0))
        def ploads():
            for z in range(4): p('buffer_load_dwordx4 %s, v4, s[%d:%d], s%d offen offset:%d sc1' % (vr(PA + 4 * z, 4), S_WS, S_WS + 3, S_PO, z * 1024))
            for hp in range(2): p('buffer_load_dwordx2 %s, v5, s[%d:%d], s%d offen offset:%d sc1' % (vr(PM + 2 * hp, 2), S_WS, S_WS + 3, S_PO, hp * 128))
            return 6
        def zloads():
            p('buffer_load_dwordx4 %s, v6, s[%d:%d], s%d offen sc1' % (vr(ZB, 4), S_WS, S_WS + 3, S_ZO))
            p('buffer_load_dwordx4 %s, v6, s[%d:%d], s%d offen offset:1024 sc1' % (vr(ZB + 4, 4), S_WS, S_WS + 3, S_ZO))
            return 2
        if R_MODE == 0:
            pf(p, 1)
            poll_loop(p, lambda: ploads() + zloads(), list(range(PA, PA + 20)) + list(range(ZB, ZB + 8)), 7, 'p', 'p')
        elif R_MODE == 1:
            poll_loop(p, zloads, list(range(ZB, ZB + 8)), 7, 'z', 'z')
            pf(p, 1)
            poll_loop(p, ploads, list(range(PA, PA + 20)), 7, 'p', 'p')
        else:
            poll_loop(p, ploads, list(range(PA, PA + 20)), 7, 'p', 'p')
            pf(p, 1)
            poll_loop(p, zloads, list(range(ZB, ZB + 8)), 7, 'z', 'z')
        pf(p, 2)
        trace(p, 0, trace_on)
        p('v_smfmac_f32_16x16x64_bf16 %s, %s, %s, v3' % (vr(ACC, 4), vr(PM, 4), vr(ZB, 8)))
        for z in range(4): p('v_smfmac_f32_16x16x64_bf16 %s, %s, %s, v3' % (vr(ACC, 4), vr(PA + 4 * z, 4), VOa(k, 2 * z, 8)))
        p('v_permlane32_swap_b32 v%d, v%d' % (ACC, ACC + 1)); p('v_permlane32_swap_b32 v%d, v%d' % (ACC + 2, ACC + 3))
        p('v_add_f32 v%d, v%d, v%d' % (ACC, ACC, ACC + 1)); p('v_add_f32 v%d, v%d, v%d' % (ACC + 2, ACC + 2, ACC + 3))
        p('ds_write2_b32 v11, v%d, v%d offset0:0 offset1:16' % (ACC, ACC + 2))
        p('s_waitcnt lgkmcnt(0)')
        p('s_barrier')
        pf(p, 3)
        l = p.newlabel('LRw'); p('s_cmp_lg_u32 s%d, 0' % S_WAVE); p('s_cbranch_scc1 %s' % l)
        for w in range(4): p('ds_read_b64 %s, v12 offset:%d' % (vr(20 + 2 * w, 2) if w < 2 else vr(32 + 2 * (w - 2), 2), w * 512))
        p('s_waitcnt lgkmcnt(0)')
        p('v_add_f32 v20, v20, v22'); p('v_add_f32 v21, v21, v23'); p('v_add_f32 v32, v32, v34'); p('v_add_f32 v33, v33, v35')
        p('v_add_f32 v20, v20, v32'); p('v_add_f32 v21, v21, v33')
        p('v_cvt_pk_bf16_f32 v20, v20, v21')
        if HIST: p('v_mov_b32 v32, v20')
        for kk in (1, 2, 3): p('v_mov_b32_dpp v%d, v20 quad_perm:[%d,%d,%d,%d] row_mask:0xf bank_mask:0xf' % (20 + kk, kk, kk, kk, kk))
        p('buffer_store_dwordx4 v[20:23], v13, s[%d:%d], s%d offen sc1' % (S_WS, S_WS + 3, S_MEMO))
        pf(p, 4)
        pf_acc(p)
        trace(p, 2, trace_on)
        if HIST:
            p('s_mul_i32 s%d, s%d, 10240' % (S_T0, S_STEP)); p('s_add_u32 s%d, s%d, %d' % (S_T0, S_T0, OFF_HIST + 10240))
            p('buffer_store_dword v32, v14, s[%d:%d], s%d offen' % (S_WS, S_WS + 3, S_T0))
        p.label(l)
        l3 = p.newlabel('LRq'); p('s_cmp_lg_u32 s%d, 1' % S_WAVE); p('s_cbranch_scc1 %s' % l3)
        p('s_and_b32 s%d, s%d, %d' % (S_T0, S_STEP, MEM_RING - 1)); p('s_lshl_b32 s%d, s%d, 15' % (S_T0, S_T0)); p('s_add_u32 s%d, s%d, s%d' % (S_T0, S_T0, S_COMM))
        p('buffer_store_dwordx4 %s, v13, s[%d:%d], s%d offen sc1' % (vr(SENT, 4), S_WS, S_WS + 3, S_T0))
        p.label(l3)
        if SEGROWS:
            l4 = p.newlabel('LRx'); p('s_cmp_lg_u32 s%d, 2' % S_WAVE); p('s_cbranch_scc1 %s' % l4)
            p('s_cmp_lt_u32 s%d, 3' % S_STEP); p('s_cbranch_scc1 %s' % l4)
            p('s_sub_u32 s%d, s%d, 2' % (S_T1, S_STEP)); x1_flag(S_T1)
            p.label(l4)
        p('s_barrier')
        lok = p.newlabel('LRok')
        if USE_FLAGS:
            p('s_add_u32 s%d, s%d, 2' % (S_T1, S_STEP)); p('s_min_u32 s%d, s%d, 64' % (S_T1, S_T1))
            p('s_max_u32 s%d, s%d, 1' % (S_T2, S_STEP)); p('s_sub_u32 s%d, s%d, 1' % (S_T2, S_T2))
            p('v_mov_b32 v102, s%d' % S_T1); p('v_mov_b32 v7, s%d' % S_T2); p('v_cndmask_b32 v102, v102, v7, s[%d:%d]' % (S_MASK, S_MASK + 1))
            p('v_cmp_gt_u32 vcc, v102, v103'); p('s_cbranch_vccz %s' % lok)
            p('s_mov_b32 s%d, s%d' % (S_T3, S_T1)); wait_flags(p, 0, F_VO, S_T3, 7)
            p('s_max_u32 s%d, s%d, 1' % (S_T3, S_STEP)); p('s_sub_u32 s%d, s%d, 1' % (S_T3, S_T3)); wait_flags(p, 0, F_P, S_T3, 7)
        p.label(lok)
        for r in range(8): p('v_accvgpr_write_b32 a%d, v%d' % (40 * k + 32 + r, ZB + r))
        p('s_add_u32 s%d, s%d, 1' % (S_STEP, S_STEP))
        lns = p.newlabel('LRns'); ljoin = p.newlabel('LRj')
        def tail_loads():
            p('buffer_store_dwordx4 %s, v6, s[%d:%d], s%d offen sc1' % (vr(SENT, 4), S_WS, S_WS + 3, S_ZO))
            p('buffer_store_dwordx4 %s, v6, s[%d:%d], s%d offen offset:1024 sc1' % (vr(SENT, 4), S_WS, S_WS + 3, S_ZO))
            p('s_add_u32 s%d, s%d, %d' % (S_VOO, S_VOO, 40 * 32 * 1024))
            vo_load((k + 1) & 3)
        if SEGROWS:
            p('s_cmp_lt_u32 s%d, 3' % S_STEP); p('s_cbranch_scc1 %s' % lns)
            p('s_sub_u32 s%d, s%d, 3' % (S_SG, S_STEP)); seg_issue(False)
            tail_loads()
            seg_compute((k + 2) & 3, 10)
            p('s_branch %s' % ljoin)
        p.label(lns)
        tail_loads()
        p.label(ljoin)
    p('s_cmp_lt_u32 s%d, s%d' % (S_STEP, S_NST)); p('s_cbranch_scc1 %s' % loop)
    if SEGROWS:
        for sg in (62, 63):
            p('s_barrier')
            p('s_mov_b32 s%d, %d' % (S_SG, sg)); seg_issue(True); seg_compute(sg & 3, 0)
        p('s_waitcnt vmcnt(0)'); p('s_barrier')
        l = p.newlabel('LRf'); p('s_cmp_lg_u32 s%d, 2' % S_WAVE); p('s_cbranch_scc1 %s' % l)
        p('s_mov_b32 s%d, 64' % S_T1); x1_flag(S_T1)
        p.label(l)

HEADER = '''.amdgcn_target "amdgcn-amd-amdhsa--gfx950"
.text
'''
def kernel_desc(name, vgpr=512, accum=256, sgpr=96):
    return '''.section .rodata,"a"
.p2align 6
.amdhsa_kernel %s
  .amdhsa_next_free_vgpr %d
  .amdhsa_next_free_sgpr %d
  .amdhsa_accum_offset %d
  .amdhsa_group_segment_fixed_size 0
  .amdhsa_kernarg_size 128
  .amdhsa_user_sgpr_count 2
  .amdhsa_user_sgpr_kernarg_segment_ptr 1
  .amdhsa_system_sgpr_workgroup_id_x 1
.end_amdhsa_kernel
''' % (name, vgpr, sgpr, accum)

PLACE = 0
def gen_core_test(nsteps=64, trace_on=False, st=False):
    p = Prog()
    name = 'core_kernel'
    p.raw('.globl %s' % name); p.raw('.p2align 8'); p.raw('.type %s,@function' % name); p.label(name)
    srd(p, S_WS, KA['ws'], WS_BYTES)
    p('s_load_dwordx2 s[%d:%d], s[0:1], %d' % (S_DBG, S_DBG + 1, KA['dbg']))
    p('s_mov_b32 s%d, %d' % (S_NST, nsteps))
    p('s_waitcnt lgkmcnt(0)')
    comm_setup(p)
    lA, lB, lR, lend = 'L_roleA', 'L_roleB', 'L_roleR', 'L_end'
    if PLACE == 1:
        p('s_and_b32 s20, s2, 7'); p('s_cmp_ge_u32 s20, 4'); p('s_cbranch_scc1 L_exit')
        p('s_lshr_b32 s21, s2, 3'); p('s_lshl_b32 s21, s21, 2'); p('s_add_u32 s2, s21, s20')
    elif PLACE == 2:
        p('s_and_b32 s20, s2, 7'); p('s_cmp_ge_u32 s20, 4'); p('s_cbranch_scc1 L_exit')
        p('s_lshr_b32 s21, s2, 3')
        l0 = p.newlabel('Lpl'); l1 = p.newlabel('Lpl')
        p('s_cmp_ge_u32 s20, 2'); p('s_cbranch_scc1 %s' % l0)
        p('s_lshl_b32 s20, s20, 5'); p('s_add_u32 s2, s20, s21'); p('s_branch %s' % l1)
        p.label(l0)
        p('s_cmp_ge_u32 s21, 20'); p('s_cbranch_scc1 L_exit')
        p('s_sub_u32 s20, s20, 2'); p('s_mul_i32 s20, s20, 20'); p('s_add_u32 s2, s20, s21'); p('s_add_u32 s2, s2, 64')
        p.label(l1)
    elif PLACE == 3:
        p('s_and_b32 s20, s2, 7'); p('s_cmp_ge_u32 s20, 4'); p('s_cbranch_scc1 L_exit')
        p('s_lshr_b32 s21, s2, 3')
        l0 = p.newlabel('Lpl'); l1 = p.newlabel('Lpl')
        p('s_cmp_ge_u32 s20, 2'); p('s_cbranch_scc1 %s' % l0)
        p('s_lshr_b32 s22, s21, 1'); p('s_lshl_b32 s23, s20, 4'); p('s_add_u32 s22, s22, s23'); p('s_and_b32 s21, s21, 1'); p('s_lshl_b32 s21, s21, 5'); p('s_add_u32 s2, s22, s21'); p('s_branch %s' % l1)
        p.label(l0)
        p('s_cmp_ge_u32 s21, 20'); p('s_cbranch_scc1 L_exit')
        p('s_sub_u32 s20, s20, 2'); p('s_mul_i32 s20, s20, 20'); p('s_add_u32 s2, s20, s21'); p('s_add_u32 s2, s2, 64')
        p.label(l1)
    if st:
        p('v_lshrrev_b32 v3, 6, v0'); p('v_readfirstlane_b32 s%d, v3' % S_WAVE); p('v_mov_b32 v20, v0'); stamp(p, 0, True); p('v_mov_b32 v0, v20')
    p('s_cmp_lt_u32 s2, 32'); p('s_cbranch_scc1 %s' % lA)
    p('s_cmp_lt_u32 s2, 64'); p('s_cbranch_scc1 %s' % lB)
    p('s_cmp_lt_u32 s2, 104'); p('s_cbranch_scc1 %s' % lR)
    p.label('L_exit')
    p('s_endpgm')
    p.label(lA); p('s_mov_b32 s%d, s2' % S_IDX); gen_A(p, trace_on, st); p('s_branch %s' % lend)
    p.label(lB); p('s_sub_u32 s%d, s2, 32' % S_IDX); gen_B(p, trace_on, st); p('s_branch %s' % lend)
    p.label(lR); p('s_sub_u32 s%d, s2, 64' % S_IDX); gen_R(p, trace_on, st)
    p.label(lend)
    stamp(p, 2, st)
    pf_out(p)
    l = p.newlabel('Lok'); p('s_cmp_lg_u32 s%d, 0' % S_SPIN); p('s_cbranch_scc1 %s' % l)
    p('v_mov_b32 v4, 0'); p('v_mov_b32 v5, s2'); p('v_add_u32 v5, 1, v5'); p('global_store_dword v4, v5, s[%d:%d]' % (S_DBG, S_DBG + 1))
    p.label(l)
    p('s_waitcnt vmcnt(0)')
    p('s_endpgm')
    body = p.text()
    return '; @launch grid=(256,1,1) block=(256,1,1) lds=163840\n' + HEADER + body + kernel_desc(name), p

if __name__ == '__main__':
    t, p = gen_core_test()
    open('core.s', 'w').write(t)
    print(len(t), 'bytes', p.nops, 'nops')
```

```python
from core import *
import core, struct

S_COMZ = 39
PS_NEAR = True
FVO_TOP = False
X_EARLY = True
B_DELAY = 100
A_SYNC = True
ZP_GAP = 0
CSLEEP = {'mem': 0, 'z': 0, 'p': 0}
CPRE = {'A': 20, 'B': 35, 'R': 1}
CUR_ROLE = 'A'
POLL2 = {'mem': False, 'z': True, 'p': False}
FAST_SM = True
RTRACE = False
CLASSIC = {'mem': True, 'p': True}
CHECK1 = True
BAR_TAU = {'A': 1, 'B': 1}
S_DLY = 62; S_RND = 63; S_RSUM = 60
PACE = {'mem': 2, 'p': 4}
DLY_INIT = {'A': 0, 'B': 0, 'R': 0}
DLY_ADJ = [-3, 0, 2, 4, 8]

def comm_setup2(p):
    par = 0 if core.DYN_PAR else core.PARITY
    p('s_mov_b32 s%d, %d' % (S_COMM, OFF_COMM + (par & 1) * 8192))
    p('s_mov_b32 s%d, %d' % (S_COMZ, OFF_COMM + (2 << 20) + ((par >> 1) & 1) * 8192))

def parity_probe2(p):
    if not core.DYN_PAR: return
    l = p.newlabel('Lpp'); p('s_cmp_lg_u32 s%d, 0' % S_WAVE); p('s_cbranch_scc1 %s' % l)
    p('s_cmp_lg_u32 s%d, 0' % S_IDX); p('s_cbranch_scc1 %s' % l)
    p('v_mov_b32 v16, 0'); p('v_mov_b32 v17, -1')
    p('s_mov_b32 s54, 4')
    for pg, base in ((0, S_COMM), (1, S_COMZ)):
        p('s_mov_b32 s48, 0'); p('s_mov_b32 s49, 0')
        for i in range(4):
            for par in range(2):
                p('s_add_u32 s%d, s%d, %d' % (S_T0, base, (BLK_PROBE + i) * BLK + par * 8192 + i * 256))
                p('buffer_store_dword v17, v16, s[%d:%d], s%d offen sc1' % (S_WS, S_WS + 3, S_T0))
                p('s_waitcnt vmcnt(0)')
                p('s_memtime s[50:51]'); p('s_waitcnt lgkmcnt(0)')
                p('buffer_load_dword v18, v16, s[%d:%d], s%d offen sc1' % (S_WS, S_WS + 3, S_T0))
                p('s_waitcnt vmcnt(0)')
                p('s_memtime s[52:53]'); p('s_waitcnt lgkmcnt(0)')
                p('s_sub_u32 s50, s52, s50')
                if i > 0: p('s_add_u32 s%d, s%d, s50' % (48 + par, 48 + par))
        p('s_cmp_lt_u32 s49, s48'); p('s_cselect_b32 s50, %d, 0' % (1 << pg)); p('s_add_u32 s54, s54, s50')
    p('v_mov_b32 v17, s54')
    dbg_srd(p, 52)
    p('v_cmp_eq_u32 vcc, 0, v1'); p('v_mov_b32 v18, 0x7ff00000'); p('v_cndmask_b32 v16, v18, v16, vcc')
    p('buffer_store_dword v17, v16, s[52:55], 0 offen sc1')
    p('s_waitcnt vmcnt(0)')
    p.label(l)

def ready(p, h_only=False, half=None):
    if core.FUSED:
        import fused
        fused.wait_ready(p, off=OFF_FH if h_only else OFF_FI, half=half)

def parity_wait2(p, lds_off=10240):
    if core.FUSED and core.DYN_PAR:
        import fused
        fused.wait_ready(p, parity=lds_off)
    else:
        ready(p)
        if not core.DYN_PAR: return
        dbg_srd(p, 52)
        top = p.newlabel('Lpw'); done = p.newlabel('Lpwd')
        p('v_mov_b32 v16, 0')
        p.label(top)
        p('buffer_load_dword v17, v16, s[52:55], 0 offen sc1'); p('s_waitcnt vmcnt(0)')
        p('v_readfirstlane_b32 s50, v17')
        p('s_cmp_lg_u32 s50, 0'); p('s_cbranch_scc1 %s' % done)
        p('s_sleep 4')
        p('s_cmp_eq_u32 s%d, 0' % S_SPIN); p('s_cbranch_scc1 %s' % done)
        p('s_sub_u32 s%d, s%d, 1' % (S_SPIN, S_SPIN)); p('s_branch %s' % top)
        p.label(done)
    p('s_and_b32 s51, s50, 1'); p('s_lshl_b32 s51, s51, 13'); p('s_add_u32 s%d, s%d, s51' % (S_COMM, S_COMM))
    p('s_and_b32 s51, s50, 2'); p('s_lshl_b32 s51, s51, 12'); p('s_add_u32 s%d, s%d, s51' % (S_COMZ, S_COMZ))

def offsets2(p, mem_add=0, want=('mem', 'p', 'z')):
    if 'mem' in want:
        p('s_add_u32 s%d, s%d, %d' % (S_T0, S_STEP, mem_add)); p('s_and_b32 s%d, s%d, %d' % (S_T0, S_T0, MEM_RING - 1))
        p('s_mul_i32 s%d, s%d, %d' % (S_T0, S_T0, MEM_SLOT * BLK)); p('s_add_u32 s%d, s%d, s%d' % (S_MEMO, S_T0, S_COMM))
        if BLK_MEM: p('s_add_u32 s%d, s%d, %d' % (S_MEMO, S_MEMO, BLK_MEM * BLK))
    if 'p' in want:
        p('s_and_b32 s%d, s%d, %d' % (S_T0, S_STEP, P_RING - 1)); p('s_mul_i32 s%d, s%d, %d' % (S_T0, S_T0, P_SLOT * BLK))
        p('s_add_u32 s%d, s%d, s%d' % (S_PO, S_T0, S_COMM)); p('s_add_u32 s%d, s%d, %d' % (S_PO, S_PO, BLK_P * BLK))
    if 'z' in want:
        p('s_and_b32 s%d, s%d, %d' % (S_T0, S_STEP, Z_RING - 1)); p('s_mul_i32 s%d, s%d, %d' % (S_T0, S_T0, 40 * BLK))
        p('s_add_u32 s%d, s%d, s%d' % (S_ZO, S_T0, S_COMZ))

def check_regs(p, regs, tmp, quads=None):
    r = list(regs)
    if CHECK1 and quads: r = list(quads)
    if len(r) < 3: r = r + [r[0]] * (3 - len(r))
    p('v_max3_u32 v%d, v%d, v%d, v%d' % (tmp, r[0], r[1], r[2])); r = r[3:]
    while len(r) >= 2:
        p('v_max3_u32 v%d, v%d, v%d, v%d' % (tmp, tmp, r[0], r[1])); r = r[2:]
    if r: p('v_max_u32 v%d, v%d, v%d' % (tmp, tmp, r[0]))
    p('v_cmp_eq_u32 vcc, -1, v%d' % tmp)

def budget(p, giveup, again):
    p('s_cmp_eq_u32 s%d, 0' % S_SPIN); p('s_cbranch_scc1 %s' % giveup)
    p('s_sub_u32 s%d, s%d, 1' % (S_SPIN, S_SPIN)); p('s_branch %s' % again)

def multi_poll(p, issue, n, regs_of_set, tmp, kind, variant, first_hook=None, pre_issue=None, quads=None):
    if CLASSIC[kind]:
        top = p.newlabel('Lcl'); ok = p.newlabel('Lclok')
        if CPRE[CUR_ROLE]: p('s_sleep %d' % CPRE[CUR_ROLE])
        if pre_issue:
            pre_issue(); p('s_waitcnt vmcnt(0)'); first_hook()
            if ZP_GAP: p('s_sleep %d' % ZP_GAP)
        if POLL2[kind]: issue(0, 0)
        p.label(top)
        if core.PROF: p('s_memtime s[64:65]'); p('s_add_u32 s68, s68, 1')
        issue(0, 0); p('s_waitcnt vmcnt(%d)' % (n if POLL2[kind] else 0)); check_regs(p, regs_of_set(0), tmp, quads(0) if (quads and not POLL2[kind]) else None); p('s_cbranch_vccz %s' % ok)
        if CSLEEP[kind]: p('s_sleep %d' % CSLEEP[kind])
        budget(p, ok, top)
        p.label(ok)
        if core.PROF:
            p('s_memtime s[66:67]'); p('s_waitcnt lgkmcnt(0)'); p('s_sub_u32 s64, s66, s64'); p('s_add_u32 s69, s69, s64')
        p('s_mov_b32 s%d, 1' % S_RND)
        variant(0)
        return
    V = [p.newlabel('Lv%d' % j) for j in range(4)]; join = p.newlabel('Lvj'); fb = p.newlabel('Lfb'); fbok = p.newlabel('Lfbok')
    dl = p.newlabel('Ldl'); dld = p.newlabel('Ldld')
    p('s_mov_b32 s%d, s%d' % (S_T1, S_DLY))
    p.label(dl); p('s_cmp_eq_u32 s%d, 0' % S_T1); p('s_cbranch_scc1 %s' % dld)
    p('s_sleep 1'); p('s_sub_u32 s%d, s%d, 1' % (S_T1, S_T1)); p('s_branch %s' % dl)
    p.label(dld)
    if pre_issue: pre_issue()
    issue(0, 0); p('s_sleep %d' % PACE[kind]); issue(1, 1); p('s_sleep %d' % PACE[kind]); issue(2, 2)
    p('s_waitcnt vmcnt(%d)' % (2 * n))
    if first_hook: first_hook()
    check_regs(p, regs_of_set(0), tmp); p('s_cbranch_vccz %s' % V[0])
    issue(3, 3)
    p('s_waitcnt vmcnt(%d)' % (2 * n)); check_regs(p, regs_of_set(1), tmp); p('s_cbranch_vccz %s' % V[1])
    p('s_waitcnt vmcnt(%d)' % n); check_regs(p, regs_of_set(2), tmp); p('s_cbranch_vccz %s' % V[2])
    p('s_waitcnt vmcnt(0)'); check_regs(p, regs_of_set(3), tmp); p('s_cbranch_vccz %s' % V[3])
    p.label(fb)
    issue(0, 0); p('s_waitcnt vmcnt(0)'); check_regs(p, regs_of_set(0), tmp); p('s_cbranch_vccz %s' % fbok)
    budget(p, fbok, fb)
    p.label(fbok)
    p('s_mov_b32 s%d, 4' % S_RND)
    lv0 = p.newlabel('Lv0b'); p('s_branch %s' % lv0)
    for j in range(4):
        p.label(V[j]); p('s_mov_b32 s%d, %d' % (S_RND, j))
        if j == 0: p.label(lv0)
        variant(j)
        if j < 3: p('s_branch %s' % join)
    p.label(join)

def rnd_write(p, lds_off, t1, t2):
    p('s_lshl_b32 s%d, s%d, 2' % (S_T1, S_WAVE)); p('s_add_u32 s%d, s%d, %d' % (S_T1, S_T1, lds_off))
    p('v_mov_b32 v%d, s%d' % (t1, S_T1)); p('v_mov_b32 v%d, s%d' % (t2, S_RND)); p('ds_write_b32 v%d, v%d' % (t1, t2))
    if core.PROF: p('s_add_u32 s%d, s%d, s%d' % (S_RSUM, S_RSUM, S_RND))

def dly_update(p, lds_off, t):
    p('v_mov_b32 v%d, %d' % (t + 4, lds_off)); p('ds_read_b128 %s, v%d' % (vr(t, 4), t + 4)); p('s_waitcnt lgkmcnt(0)')
    p('v_max3_u32 v%d, v%d, v%d, v%d' % (t, t, t + 1, t + 2)); p('v_max_u32 v%d, v%d, v%d' % (t, t, t + 3))
    p('v_readfirstlane_b32 s%d, v%d' % (S_RND, t))
    p('s_mov_b32 s%d, %d' % (S_T1, DLY_ADJ[0]))
    for r in range(1, 5):
        p('s_cmp_eq_u32 s%d, %d' % (S_RND, r)); p('s_cselect_b32 s%d, %d, s%d' % (S_T1, DLY_ADJ[r], S_T1))
    p('s_add_i32 s%d, s%d, s%d' % (S_DLY, S_DLY, S_T1)); p('s_max_i32 s%d, s%d, 0' % (S_DLY, S_DLY)); p('s_min_i32 s%d, s%d, 120' % (S_DLY, S_DLY))
    if RTRACE:
        l = p.newlabel('Lrt'); p('s_cmp_lg_u32 s%d, 0' % S_WAVE); p('s_cbranch_scc1 %s' % l)
        p('s_lshl_b32 s%d, s%d, 8' % (S_T7, S_STEP)); p('s_add_u32 s%d, s%d, s2' % (S_T7, S_T7)); p('s_lshl_b32 s%d, s%d, 4' % (S_T7, S_T7)); p('s_add_u32 s%d, s%d, %d' % (S_T7, S_T7, OFF_TRACE + 12))
        p('s_lshl_b32 s%d, s%d, 8' % (S_T1, S_DLY)); p('s_or_b32 s%d, s%d, s%d' % (S_T1, S_T1, S_RND))
        p('v_mov_b32 v%d, s%d' % (t, S_T1)); p('v_mov_b32 v%d, 0' % (t + 1))
        p('buffer_store_dword v%d, v%d, s[%d:%d], s%d offen' % (t, t + 1, S_WS, S_WS + 3, S_T7))
        p.label(l)

def gset(): return 40 if CLASSIC['mem'] else 80
TRACE_ON = False
def gather_and_project(p, lg, ntile, acc0, wres_v, kind, hooks, tail_order=None, wave0_hooks=None):
    def issue(st, cp):
        if cp: p('s_add_u32 s%d, s%d, %d' % (S_T2, S_MEMO, cp * MEM_COPY * BLK))
        for j in range(3):
            p('buffer_load_dwordx4 %s, v%d, s[%d:%d], s%d offen sc1' % (vr(gset() + 12 * st + 4 * j, 4), 4 + j, S_WS, S_WS + 3, S_T2 if cp else S_MEMO))
    def ringreg(tau): return RING + 4 * ((tau - 3) % 3)
    def rd(tau):
        a, off = memfrag_addr(tau)
        p('ds_read_b128 %s, v%d offset:%d' % (vr(ringreg(tau), 4), a, off)); lg.issue(('m', tau))
    base_q = list(lg.q); end_q = []
    def variant(st):
        lg.q = list(base_q)
        pf(p, 1)
        trace(p, 0, TRACE_ON)
        fr = gset() + 12 * st
        for j in range(3):
            p('ds_write_b128 v%d, %s' % (RING + j, vr(fr + 4 * j, 4))); lg.issue(('mw', j))
        for tau in range(3):
            if tau == BAR_TAU[CUR_ROLE]:
                lg.wait(('mw', 2)); p('s_barrier')
                for t in (3, 4, 5): rd(t)
            for tile in range(ntile): smf(p, acc0 + 4 * tile, fr + 4 * tau, tau * ntile + tile, lg, wres_v)
        end_q[:] = list(lg.q)
    multi_poll(p, issue, 3, lambda st: range(gset() + 12 * st, gset() + 12 * st + 12), 7, 'mem', variant, quads=lambda st: [gset() + 12 * st + 4 * j + 3 for j in range(3)])
    lg.q = list(end_q)
    last = 8 if tail_order else 10
    def rest(t0, hk):
        for tau in range(t0, last):
            lg.wait(('m', tau))
            for tile in range(ntile): smf(p, acc0 + 4 * tile, ringreg(tau), tau * ntile + tile, lg, wres_v)
            if tau + 3 < 10: rd(tau + 3)
            if tau in hk: hk[tau]()
        if tail_order: tail_order(ringreg)
    if wave0_hooks is None:
        rest(3, hooks)
    else:
        lo = p.newlabel('Lnw0'); lj = p.newlabel('Lnw0j')
        q0 = list(lg.q)
        p('s_cmp_lg_u32 s%d, 0' % S_WAVE); p('s_cbranch_scc1 %s' % lo)
        rest(3, wave0_hooks); p('s_branch %s' % lj)
        p.label(lo); lg.q = list(q0); rest(3, hooks)
        p.label(lj)

def gen_A2(p, trace_on=False, st=False):
    global TRACE_ON, CUR_ROLE
    TRACE_ON = trace_on; CUR_ROLE = 'A'
    lg = Cnt(p, 'lgkmcnt', 15); vm = Cnt(p, 'vmcnt', 63)
    h = S_IDX
    srd(p, S_W1, KA['Wq'], 640 * 12288); srd(p, S_W2, KA['Wk'], 640 * 12288)
    common_lane_setup(p)
    p('s_waitcnt lgkmcnt(0)')
    mem_gather_setup(p, A_MEMX)
    p('s_mul_i32 s%d, s%d, 24576' % (S_T0, S_WAVE)); p('s_add_u32 s%d, s%d, 65536' % (S_T0, S_T0)); p('v_add_u32 v15, s%d, v2' % S_T0)
    voffs = [80, 81, 82]
    stage_offsets(p, voffs, 6, 12288, 1, 83, 84)
    p('v_lshrrev_b32 v83, 4, v1'); p('v_lshlrev_b32 v83, 3, v83'); p('v_bfe_u32 v84, v1, 2, 2'); p('v_add_u32 v83, v83, v84')
    p('v_mul_u32_u24 v83, 96, v83'); p('v_and_b32 v84, 3, v1'); p('v_lshlrev_b32 v84, 3, v84'); p('v_add_u32 v85, v83, v84')
    p('s_lshl_b32 s%d, s%d, 14' % (S_T4, S_WAVE)); p('v_add_u32 v85, s%d, v85' % S_T4)
    p('s_mul_i32 s%d, s%d, 384' % (S_T5, h)); p('s_mul_i32 s%d, s%d, 96' % (S_T0, S_WAVE)); p('s_add_u32 s%d, s%d, s%d' % (S_T5, S_T5, S_T0))
    p('s_mul_i32 s%d, s%d, 3' % (S_T6, S_WAVE))
    jobs = []
    for tau in range(10):
        for half in range(2):
            for mat in range(2):
                def soff(dst, tau=tau, half=half):
                    p('s_add_u32 s%d, s%d, %d' % (dst, S_T6, tau))
                    p('s_sub_u32 s%d, s%d, 10' % (S_T2, dst)); p('s_cmp_ge_u32 s%d, 10' % dst); p('s_cselect_b32 s%d, s%d, s%d' % (dst, S_T2, dst))
                    p('s_mul_i32 s%d, s%d, %d' % (dst, dst, 64 * 12288))
                    p('s_add_u32 s%d, s%d, s%d' % (dst, dst, S_T5))
                    if half: p('s_add_u32 s%d, s%d, %d' % (dst, dst, 32 * 12288))
                dests = []
                for x in range(3):
                    kind, n = UM[tau * 6 + mat * 3 + x]
                    if kind == 'reg': dests.append((x * 32, ('reg', unit_reg(n, 4 * half, 2), unit_reg(n, 4 * half + 2, 2))))
                    else: dests.append((x * 32, ('lds', n * 2048 + half * 1024)))
                jobs.append(dict(srd=S_W1 if mat == 0 else S_W2, soff=soff, dests=dests))
    load_weights_type1(p, jobs, 85, 3072, 5, voffs, 3, 96, lg, vm, 15, 88, S_T4)
    p('s_barrier')
    p('v_and_b32 v81, 3, v1'); p('v_lshlrev_b32 v80, 6, v81')
    p('v_bfe_u32 v81, v1, 2, 2'); p('v_lshlrev_b32 v81, 4, v81'); p('v_add_u32 v80, v80, v81')
    p('v_lshrrev_b32 v81, 4, v1'); p('v_lshlrev_b32 v81, 2, v81'); p('v_add_u32 v80, v80, v81')
    p('s_mul_i32 s%d, s%d, 768' % (S_T0, S_WAVE)); p('s_add_u32 s%d, s%d, %d' % (S_T0, S_T0, A_QX)); p('v_add_u32 v11, s%d, v80' % S_T0)
    p('v_bfe_u32 v80, v1, 2, 2'); p('v_lshlrev_b32 v80, 6, v80')
    p('v_lshrrev_b32 v81, 4, v1'); p('v_lshlrev_b32 v81, 4, v81'); p('v_add_u32 v80, v80, v81')
    p('v_and_b32 v81, 1, v1'); p('v_lshlrev_b32 v81, 3, v81'); p('v_add_u32 v80, v80, v81'); p('v_add_u32 v12, %d, v80' % A_QX)
    p('v_lshrrev_b32 v80, 5, v1'); p('v_lshlrev_b32 v80, 8, v80')
    p('v_bfe_u32 v81, v1, 4, 1'); p('v_lshlrev_b32 v81, 4, v81'); p('v_add_u32 v80, v80, v81')
    p('v_and_b32 v81, 7, v1'); p('v_lshlrev_b32 v82, 5, v81'); p('v_add_u32 v80, v80, v82'); p('v_lshlrev_b32 v82, 4, v81')
    p('v_bfe_u32 v83, v1, 3, 1'); p('v_mul_u32_u24 v83, %d, v83' % (P_COPY * BLK)); p('v_add_u32 v80, v80, v83')
    p('s_lshr_b32 s%d, s%d, 4' % (S_T1, h)); p('s_lshl_b32 s%d, s%d, 14' % (S_T1, S_T1)); p('s_and_b32 s%d, s%d, 15' % (S_T0, h)); p('s_lshl_b32 s%d, s%d, 9' % (S_T0, S_T0)); p('s_add_u32 s%d, s%d, s%d' % (S_T0, S_T0, S_T1))
    p('v_add_u32 v13, s%d, v80' % S_T0)
    if CLASSIC['p']: p('v_mov_b32 v82, 0x7ff00000'); p('v_and_b32 v83, 8, v1'); p('v_cmp_eq_u32 vcc, 0, v83'); p('v_cndmask_b32 v13, v82, v13, vcc'); p('v_and_b32 v81, 7, v1'); p('v_lshlrev_b32 v82, 4, v81')
    p('v_bfe_u32 v83, v1, 3, 2'); p('v_mul_u32_u24 v83, %d, v83' % (P_COPY * BLK)); p('v_add_u32 v80, v82, v83')
    p('s_lshl_b32 s%d, s%d, 7' % (S_T0, h)); p('s_add_u32 s%d, s%d, %d' % (S_T0, S_T0, 2 * BLK)); p('v_add_u32 v14, s%d, v80' % S_T0)
    p('v_mov_b32 v82, 0x7ff00000'); p('v_cmp_gt_u32 vcc, %d, v1' % (8 if CLASSIC['p'] else 32)); p('v_cndmask_b32 v14, v82, v14, vcc')
    p('s_mov_b32 s%d, 0' % S_MASK); p('s_mov_b32 s%d, -1' % (S_MASK + 1))
    p('s_mov_b32 s74, 0xff00ff00'); p('s_mov_b32 s75, 0xff00ff00')
    p('s_mov_b32 s%d, 0x%x' % (S_C, struct.unpack('<I', struct.pack('<f', 192 ** -0.5 * 1.4426950408889634))[0]))
    p('s_mov_b32 s%d, 0' % S_STEP)
    p('s_mul_i32 s%d, s%d, 24576' % (S_QKO, h)); p('s_add_u32 s%d, s%d, %d' % (S_QKO, S_QKO, OFF_QK))
    stamp(p, 3, st)
    parity_wait2(p)
    def qk_dma(bufsel_s):
        p('s_mov_b32 s%d, s%d' % (S_T1, S_QKO))
        for j in range(24):
            p('s_add_u32 s%d, s%d, %d' % (S_T0, bufsel_s, j * 1024)); p('s_mov_b32 m0, s%d' % S_T0)
            p('buffer_load_dwordx4 v2, s[%d:%d], s%d offen sc1 lds' % (S_WS, S_WS + 3, S_T1))
            if j < 23: p('s_add_u32 s%d, s%d, 1024' % (S_T1, S_T1))
    def KS(jt, u): return 80 + 4 * (jt * 6 + u)
    def qk_wait(add, sampled=False):
        p('s_add_u32 s%d, s%d, %d' % (S_T3, S_STEP, add))
        lok = p.newlabel('LAok')
        if sampled: p('v_cmp_gt_u32 vcc, s%d, v1' % S_T3); p('s_cbranch_vccz %s' % lok)
        wait_flags(p, 0, F_QK, S_T3, 7)
        p.label(lok)
    tlb_warm(p, S_WS, OFF_QK, 64 * 32 * 24576, 36); tlb_warm(p, S_WS, OFF_PS, 64 * 81920 + (2 << 20), 38); p('s_waitcnt vmcnt(0)')
    p('s_lshl_b32 s%d, s%d, %d' % (S_T0, h, FSH)); p('v_mov_b32 v0, s%d' % S_T0)
    l = p.newlabel('La')
    p('s_cmp_lg_u32 s%d, 3' % S_WAVE); p('s_cbranch_scc1 %s' % l)
    qk_wait(1)
    p('s_mov_b32 s%d, %d' % (S_T3, A_QKB)); qk_dma(S_T3)
    p('s_waitcnt vmcnt(0)')
    p.label(l)
    stamp(p, 1, st)
    pf_init(p); p('s_mov_b32 s%d, %d' % (S_DLY, DLY_INIT['A'])); p('s_mov_b32 s%d, 0' % S_RSUM); p('s_mov_b32 s%d, 1' % S_RND); rnd_write(p, A_QX, 40, 41)
    loop = p.newlabel('LAloop'); core.loop_align(p); p.label(loop)
    lg.reset()
    pf(p, 0)
    for r in range(16, 40): p('v_mov_b32 v%d, 0' % r)
    wst_load(p, 0, 15, lg); wst_load(p, 1, 15, lg)
    offsets2(p, 0, ('mem', 'p')); mem_lds_addr(p)
    p('s_mov_b32 s%d, %d' % (S_T0, F_QK))
    p('buffer_load_dword v1, v0, s[%d:%d], s%d offen sc1' % (S_WS, S_WS + 3, S_T0))
    p('s_waitcnt lgkmcnt(0)'); lg.reset()
    if not CLASSIC['mem']: p('s_barrier'); dly_update(p, A_QX, 40)
    elif A_SYNC: p('s_barrier')
    def kread(lst):
        for (jt, u) in lst:
            p('ds_read_b128 %s, v7 offset:%d' % (vr(KS(jt, u), 4), jt * 6144 + u * 1024)); lg.issue(('k', jt, u))
    def h3():
        if not CLASSIC['mem']: p('s_waitcnt vmcnt(0)')
        p('s_and_b32 s%d, s%d, 1' % (S_T0, S_STEP)); p('s_mul_i32 s%d, s%d, 24576' % (S_T0, S_T0)); p('s_add_u32 s%d, s%d, %d' % (S_T0, S_T0, A_QKB + 12288))
        p('v_add_u32 v7, s%d, v2' % S_T0)
        kread([(0, 0), (1, 0)])
    w0hooks = {3: h3, 4: lambda: kread([(0, 1), (1, 1), (0, 2)]), 5: lambda: kread([(1, 2), (0, 3)]), 6: lambda: kread([(1, 3), (0, 4), (1, 4)]), 7: lambda: kread([(0, 5), (1, 5)])}
    hooks = {} if CLASSIC['mem'] else {4: lambda: p('s_waitcnt vmcnt(0)')}
    def exch(x):
        L = []
        for a, off in ((16 + 4 * x, x * 256), (28 + 4 * x, 3072 + x * 256)):
            L += ['v_add_f32 v%d, v%d, v%d' % (a, a, a + 1), 'v_add_f32 v%d, v%d, v%d' % (a + 2, a + 2, a + 3),
                  'v_cvt_pk_bf16_f32 v%d, v%d, v%d' % (a, a, a + 2), 'ds_write_b32 v11, v%d offset:%d' % (a, off)]
        return L
    def tail_order(ringreg):
        lg.wait(('m', 8));
        seq = []
        for x in range(3):
            for tau in (8, 9): seq += [(tau, x), (tau, 3 + x)]
        fill = []
        for i, (tau, tile) in enumerate(seq):
            if i == 2: lg.wait(('m', 9))
            smf(p, 16 + 4 * tile, ringreg(tau), tau * 6 + tile, lg, 15)
            if i == 5: fill += exch(0)
            if i == 9: fill += exch(1)
            for _ in range(3):
                if fill:
                    ins = fill.pop(0); p(ins)
                    if ins.startswith('ds_'): lg.issue('qx')
        for ins in fill + exch(2):
            p(ins)
            if ins.startswith('ds_'): lg.issue('qx')
    gather_and_project(p, lg, 6, 16, 15, 'mem', hooks, tail_order, w0hooks)
    pf(p, 2)
    p('s_waitcnt vmcnt(0) lgkmcnt(0)' if POLL2['mem'] else 's_waitcnt lgkmcnt(0)'); lg.reset()
    p('s_barrier')
    pf(p, 3)
    trace(p, 1, trace_on)
    lw = p.newlabel('LAw'); lend = p.newlabel('LAe'); lw3 = p.newlabel('LAw3')
    QF = 16; KM = 40; SA = 64; SM = 72
    def scores(kind):
        lg.reset()
        if kind == 'seg':
            p('s_and_b32 s%d, s%d, 1' % (S_T0, S_STEP)); p('s_mul_i32 s%d, s%d, 24576' % (S_T0, S_T0)); p('s_add_u32 s%d, s%d, %d' % (S_T0, S_T0, A_QKB))
            p('s_sub_u32 s%d, s%d, 1' % (S_T1, S_WAVE)); p('s_mul_i32 s%d, s%d, 6144' % (S_T1, S_T1)); p('v_add_u32 v7, s%d, v2' % S_T0); p('s_add_u32 s%d, s%d, s%d' % (S_T0, S_T0, S_T1)); p('v_add_u32 v76, s%d, v2' % S_T0)
        for u in range(6):
            if kind == 'seg':
                for jt in range(2):
                    p('ds_read_b128 %s, v7 offset:%d' % (vr(KS(jt, u), 4), 12288 + jt * 6144 + u * 1024)); lg.issue(('q', u))
            if kind == 'mem':
                for z in range(2):
                    p('ds_read_b64_tr_b16 %s, v12 offset:%d' % (vr(QF + 4 * u + 2 * z, 2), (2 * u + z) * 256)); lg.issue(('q', u))
            else:
                p('ds_read_b128 %s, v76 offset:%d' % (vr(QF + 4 * u, 4), u * 1024)); lg.issue(('q', u))
            for z in range(2):
                p('ds_read_b64_tr_b16 %s, v12 offset:%d' % (vr(KM + 4 * u + 2 * z, 2), 3072 + (2 * u + z) * 256)); lg.issue(('q', u))
            if u >= 2:
                uu = u - 2
                lg.wait(('q', uu)); mf(uu)
        for uu in (4, 5): lg.wait(('q', uu)); mf(uu)
        softmax(kind)
    def mf(u):
        for jt in range(2):
            p('v_mfma_f32_16x16x32_bf16 %s, %s, %s, %s' % (vr(SA + 4 * jt, 4), vr(KS(jt, u), 4), vr(QF + 4 * u, 4), '0' if u == 0 else vr(SA + 4 * jt, 4)))
        p('v_mfma_f32_16x16x32_bf16 %s, %s, %s, %s' % (vr(SM, 4), vr(KM + 4 * u, 4), vr(QF + 4 * u, 4), '0' if u == 0 else vr(SM, 4)))
    def softmax_mem():
        DUP = 72 + 0
        X = [76, 77, 78, 79]; Y = [40, 41]
        p('v_mov_b32 v42, 0xff800000')
        for r in range(4): p('v_cndmask_b32 v%d, v%d, v%d, s[74:75]' % (X[r], SA + r, SA + 4 + r))
        for r in range(2):
            p('v_cndmask_b32 v%d, v%d, v%d, s[74:75]' % (Y[r], SM + r, SM + 2 + r))
            p('v_cndmask_b32 v%d, v%d, v42, s[%d:%d]' % (Y[r], Y[r], S_MASK, S_MASK + 1))
        vals = X + Y
        p('v_max3_f32 v17, v%d, v%d, v%d' % tuple(X[0:3])); p('v_max3_f32 v17, v17, v%d, v%d' % (X[3], Y[0])); p('v_max_f32 v17, v17, v%d' % Y[1])
        p('v_max_f32_dpp v17, v17, v17 row_ror:8 row_mask:0xf bank_mask:0xf')
        p('v_mov_b32 v18, v17'); p('v_permlane16_swap_b32 v17, v18'); p('v_max_f32 v17, v17, v18')
        p('v_mov_b32 v18, v17'); p('v_permlane32_swap_b32 v17, v18'); p('v_max_f32 v17, v17, v18')
        p('v_mul_f32 v17, s%d, v17' % S_C)
        for v in vals: p('v_fma_f32 v%d, v%d, s%d, -v17' % (v, v, S_C))
        for v in vals: p('v_exp_f32 v%d, v%d' % (v, v))
        p('v_add_f32 v18, v%d, v%d' % (X[0], X[1])); p('v_add_f32 v19, v%d, v%d' % (X[2], X[3])); p('v_add_f32 v43, v%d, v%d' % (Y[0], Y[1]))
        p('v_add_f32 v18, v18, v19'); p('v_add_f32 v18, v18, v43')
        p('v_add_f32_dpp v18, v18, v18 row_ror:8 row_mask:0xf bank_mask:0xf')
        p('v_mov_b32 v19, v18'); p('v_permlane16_swap_b32 v18, v19'); p('v_add_f32 v18, v18, v19')
        p('v_mov_b32 v19, v18'); p('v_permlane32_swap_b32 v18, v19'); p('v_add_f32 v18, v18, v19')
        p('v_rcp_f32 v18, v18')
        W = 20
        for v in X: p('v_mul_f32 v%d, v%d, v18' % (v, v))
        p('v_cvt_pk_bf16_f32 v%d, v%d, v%d' % (W + 0, X[0], X[1])); p('v_cvt_pk_bf16_f32 v%d, v%d, v%d' % (W + 2, X[2], X[3]))
        for v in Y: p('v_mul_f32 v%d, v%d, v18' % (v, v))
        p('v_permlane16_swap_b32 v%d, v%d' % (W + 0, W + 2))
        p('v_cvt_pk_bf16_f32 v%d, v%d, v%d' % (W + 4, Y[0], Y[1]))
        p('v_mov_b32_dpp v%d, v%d row_ror:8 row_mask:0xf bank_mask:0xf' % (W + 1, W + 0)); p('v_mov_b32_dpp v%d, v%d row_ror:8 row_mask:0xf bank_mask:0xf' % (W + 3, W + 2))
        p('v_mov_b32 v%d, v%d' % (W + 5, W + 4))
        p('buffer_store_dwordx4 %s, v13, s[%d:%d], s%d offen sc1' % (vr(W, 4), S_WS, S_WS + 3, S_PO))
        p('v_permlane16_swap_b32 v%d, v%d' % (W + 4, W + 5))
        p('v_mov_b32_dpp v%d, v%d row_ror:8 row_mask:0xf bank_mask:0xf' % (W + 6, W + 4)); p('v_mov_b32_dpp v%d, v%d row_ror:8 row_mask:0xf bank_mask:0xf' % (W + 7, W + 5))
        p('buffer_store_dwordx4 %s, v14, s[%d:%d], s%d offen sc1' % (vr(W + 4, 4), S_WS, S_WS + 3, S_PO))
    def softmax(kind):
        if kind == 'mem' and CLASSIC['p'] and FAST_SM: return softmax_mem()
        vals = list(range(SA, SA + 8)) + list(range(SM, SM + 4))
        p('v_mov_b32 v76, 0xff800000')
        if kind == 'seg':
            p('v_lshrrev_b32 v77, 4, v2'); p('v_and_b32 v78, 15, v77'); p('v_lshrrev_b32 v77, 4, v77'); p('v_lshlrev_b32 v77, 2, v77'); p('v_sub_u32 v77, v78, v77')
            p('s_sub_u32 s%d, s%d, 1' % (S_T1, S_WAVE)); p('s_lshl_b32 s%d, s%d, 4' % (S_T1, S_T1)); p('v_add_u32 v77, s%d, v77' % S_T1)
            for jt in range(2):
                for r in range(4):
                    p('v_cmp_le_i32 vcc, %d, v77' % (16 * jt + r))
                    p('v_cndmask_b32 v%d, v76, v%d, vcc' % (SA + 4 * jt + r, SA + 4 * jt + r))
        p('v_max3_f32 v17, v%d, v%d, v%d' % tuple(vals[0:3]))
        for i in range(3, 7, 2): p('v_max3_f32 v17, v17, v%d, v%d' % (vals[i], vals[i + 1]))
        for r in range(4): p('v_cndmask_b32 v%d, v%d, v76, s[%d:%d]' % (SM + r, SM + r, S_MASK, S_MASK + 1))
        p('v_max3_f32 v17, v17, v%d, v%d' % (vals[7], vals[8])); p('v_max3_f32 v17, v17, v%d, v%d' % (vals[9], vals[10])); p('v_max_f32 v17, v17, v%d' % vals[11])
        p('v_mov_b32 v18, v17'); p('v_permlane16_swap_b32 v17, v18'); p('v_max_f32 v17, v17, v18')
        p('v_mov_b32 v18, v17'); p('v_permlane32_swap_b32 v17, v18'); p('v_max_f32 v17, v17, v18')
        p('v_mul_f32 v17, s%d, v17' % S_C)
        for v in vals: p('v_fma_f32 v%d, v%d, s%d, -v17' % (v, v, S_C))
        for v in vals: p('v_exp_f32 v%d, v%d' % (v, v))
        p('v_add_f32 v18, v%d, v%d' % (vals[0], vals[1])); p('v_add_f32 v19, v%d, v%d' % (vals[2], vals[3]))
        for i in range(4, 12, 2):
            p('v_add_f32 v18, v18, v%d' % vals[i]); p('v_add_f32 v19, v19, v%d' % vals[i + 1])
        p('v_add_f32 v18, v18, v19')
        p('v_mov_b32 v19, v18'); p('v_permlane16_swap_b32 v18, v19'); p('v_add_f32 v18, v18, v19')
        p('v_mov_b32 v19, v18'); p('v_permlane32_swap_b32 v18, v19'); p('v_add_f32 v18, v18, v19')
        p('v_rcp_f32 v18, v18')
        W = 20
        if kind == 'mem':
            for v in vals[:8]: p('v_mul_f32 v%d, v%d, v18' % (v, v))
            p('v_cvt_pk_bf16_f32 v%d, v%d, v%d' % (W + 0, SA + 0, SA + 1)); p('v_cvt_pk_bf16_f32 v%d, v%d, v%d' % (W + 2, SA + 2, SA + 3))
            p('v_cvt_pk_bf16_f32 v%d, v%d, v%d' % (W + 1, SA + 4, SA + 5)); p('v_cvt_pk_bf16_f32 v%d, v%d, v%d' % (W + 3, SA + 6, SA + 7))
            for v in vals[8:]: p('v_mul_f32 v%d, v%d, v18' % (v, v))
            p('v_permlane16_swap_b32 v%d, v%d' % (W + 0, W + 2)); p('v_permlane16_swap_b32 v%d, v%d' % (W + 1, W + 3))
            p('v_cvt_pk_bf16_f32 v%d, v%d, v%d' % (W + 4, SM + 0, SM + 1)); p('v_cvt_pk_bf16_f32 v%d, v%d, v%d' % (W + 6, SM + 2, SM + 3))
            p('s_add_u32 s%d, s%d, %d' % (S_T0, S_PO, 2 * P_COPY * BLK))
            p('buffer_store_dwordx4 %s, v13, s[%d:%d], s%d offen sc1' % (vr(W, 4), S_WS, S_WS + 3, S_PO))
            p('v_mov_b32 v%d, v%d' % (W + 5, W + 4)); p('v_mov_b32 v%d, v%d' % (W + 7, W + 6))
            if not CLASSIC['p']: p('buffer_store_dwordx4 %s, v13, s[%d:%d], s%d offen sc1' % (vr(W, 4), S_WS, S_WS + 3, S_T0))
            p('v_permlane16_swap_b32 v%d, v%d' % (W + 4, W + 5)); p('v_permlane16_swap_b32 v%d, v%d' % (W + 6, W + 7))
            p('buffer_store_dwordx4 %s, v14, s[%d:%d], s%d offen sc1' % (vr(W + 4, 4), S_WS, S_WS + 3, S_PO))
        else:
            for v in vals: p('v_mul_f32 v%d, v%d, v18' % (v, v))
            for k in range(4): p('v_cvt_pk_bf16_f32 v%d, v%d, v%d' % (W + k, SA + 2 * k, SA + 2 * k + 1))
            p('v_cvt_pk_bf16_f32 v%d, v%d, v%d' % (W + 4, SM + 0, SM + 1)); p('v_cvt_pk_bf16_f32 v%d, v%d, v%d' % (W + 5, SM + 2, SM + 3))
            if PS_NEAR:
                p('s_and_b32 s%d, s%d, %d' % (S_T0, S_STEP, PS_RING - 1)); p('s_mul_i32 s%d, s%d, %d' % (S_T0, S_T0, 10 * BLK)); p('s_add_u32 s%d, s%d, s%d' % (S_T0, S_T0, S_COMM)); p('s_add_u32 s%d, s%d, %d' % (S_T0, S_T0, BLK_PS * BLK))
                p('s_sub_u32 s%d, s%d, 1' % (S_T1, S_WAVE)); p('s_lshl_b32 s%d, s%d, 2' % (S_T2, S_T1)); p('s_lshr_b32 s%d, s%d, 3' % (S_T3, h)); p('s_add_u32 s%d, s%d, s%d' % (S_T2, S_T2, S_T3)); p('s_lshl_b32 s%d, s%d, 14' % (S_T2, S_T2))
                p('s_and_b32 s%d, s%d, 7' % (S_T3, h)); p('s_lshl_b32 s%d, s%d, 10' % (S_T3, S_T3)); p('s_add_u32 s%d, s%d, s%d' % (S_T2, S_T2, S_T3)); p('s_add_u32 s%d, s%d, s%d' % (S_T2, S_T2, S_T0))
            else:
                p('s_mul_i32 s%d, s%d, 81920' % (S_T0, S_STEP)); p('s_sub_u32 s%d, s%d, 1' % (S_T1, S_WAVE)); p('s_lshl_b32 s%d, s%d, 15' % (S_T2, S_T1))
                p('s_add_u32 s%d, s%d, s%d' % (S_T2, S_T2, S_T0)); p('s_lshl_b32 s%d, s%d, 10' % (S_T3, h)); p('s_add_u32 s%d, s%d, s%d' % (S_T2, S_T2, S_T3)); p('s_add_u32 s%d, s%d, %d' % (S_T2, S_T2, OFF_PS))
            p('buffer_store_dwordx4 %s, v2, s[%d:%d], s%d offen sc1' % (vr(W, 4), S_WS, S_WS + 3, S_T2))
            p('v_mov_b32 v%d, v%d' % (W + 6, W + 4)); p('v_mov_b32 v%d, v%d' % (W + 7, W + 5))
            p('v_permlane16_swap_b32 v%d, v%d' % (W + 4, W + 6)); p('v_permlane16_swap_b32 v%d, v%d' % (W + 5, W + 7))
            if PS_NEAR:
                p('s_add_u32 s%d, s%d, 8' % (S_T1, S_T1)); p('s_lshl_b32 s%d, s%d, 14' % (S_T1, S_T1)); p('s_add_u32 s%d, s%d, s%d' % (S_T0, S_T0, S_T1)); p('s_lshl_b32 s%d, s%d, 8' % (S_T3, h)); p('s_add_u32 s%d, s%d, s%d' % (S_T0, S_T0, S_T3))
            else:
                p('s_lshl_b32 s%d, s%d, 13' % (S_T1, S_T1)); p('s_add_u32 s%d, s%d, s%d' % (S_T0, S_T0, S_T1)); p('s_lshl_b32 s%d, s%d, 8' % (S_T3, h)); p('s_add_u32 s%d, s%d, s%d' % (S_T0, S_T0, S_T3)); p('s_add_u32 s%d, s%d, %d' % (S_T0, S_T0, OFF_PS + 65536))
            p('v_mov_b32 v42, 0x7ff00000'); p('v_cmp_gt_u32 vcc, 256, v2'); p('v_cndmask_b32 v42, v42, v2, vcc')
            p('buffer_store_dwordx4 %s, v42, s[%d:%d], s%d offen sc1' % (vr(W + 4, 4), S_WS, S_WS + 3, S_T0))
    p('s_cmp_lg_u32 s%d, 0' % S_WAVE); p('s_cbranch_scc1 %s' % lw)
    scores('mem')
    pf(p, 4)
    pf_acc(p)
    trace(p, 2, trace_on)
    p('s_barrier')
    p('s_branch %s' % lend)
    p.label(lw)
    p('s_cmp_eq_u32 s%d, 3' % S_WAVE); p('s_cbranch_scc1 %s' % lw3)
    scores('seg')
    p('s_barrier')
    p('s_waitcnt vmcnt(0)')
    p('v_mov_b32 v20, 0x7ff00000'); p('v_mov_b32 v22, 0'); p('v_cmp_eq_u32 vcc, 0, v2'); p('v_cndmask_b32 v20, v20, v22, vcc')
    p('s_add_u32 s%d, s%d, 1' % (S_T0, S_STEP)); p('v_mov_b32 v21, s%d' % S_T0)
    p('s_lshl_b32 s%d, s%d, 1' % (S_T1, h)); p('s_add_u32 s%d, s%d, s%d' % (S_T1, S_T1, S_WAVE)); p('s_sub_u32 s%d, s%d, 1' % (S_T1, S_T1)); p('s_lshl_b32 s%d, s%d, %d' % (S_T1, S_T1, FSH)); p('s_add_u32 s%d, s%d, %d' % (S_T1, S_T1, BLK_FP * BLK)); p('s_add_u32 s%d, s%d, s%d' % (S_T1, S_T1, S_COMM))
    p('buffer_store_dword v21, v20, s[%d:%d], s%d offen sc1' % (S_WS, S_WS + 3, S_T1))
    p('s_branch %s' % lend)
    p.label(lw3)
    p('s_add_u32 s%d, s%d, %d' % (S_T0, S_STEP, P_RING - 1)); p('s_and_b32 s%d, s%d, %d' % (S_T0, S_T0, P_RING - 1)); p('s_mul_i32 s%d, s%d, %d' % (S_T0, S_T0, P_SLOT * BLK))
    p('s_add_u32 s%d, s%d, s%d' % (S_T0, S_T0, S_COMM)); p('s_add_u32 s%d, s%d, %d' % (S_T0, S_T0, BLK_P * BLK)); p('s_add_u32 s%d, s%d, %d' % (S_T1, S_T0, 2 * P_COPY * BLK))
    for r in range(16, 20): p('v_mov_b32 v%d, -1' % r)
    def fp_flag():
        p('v_mov_b32 v20, 0x7ff00000'); p('v_cmp_eq_u32 vcc, 0, v2'); p('v_cndmask_b32 v20, v20, v0, vcc')
        p('v_mov_b32 v21, s%d' % S_STEP); p('s_mov_b32 s%d, %d' % (S_T2, F_P))
        p('buffer_store_dword v21, v20, s[%d:%d], s%d offen sc1' % (S_WS, S_WS + 3, S_T2))
    p('s_barrier')
    p('buffer_store_dwordx4 v[16:19], v13, s[%d:%d], s%d offen sc1' % (S_WS, S_WS + 3, S_T0))
    if not CLASSIC['p']: p('buffer_store_dwordx4 v[16:19], v13, s[%d:%d], s%d offen sc1' % (S_WS, S_WS + 3, S_T1))
    p('buffer_store_dwordx4 v[16:19], v14, s[%d:%d], s%d offen sc1' % (S_WS, S_WS + 3, S_T0))
    p('s_cmp_ge_u32 s%d, 63' % S_STEP); p('s_cbranch_scc1 %s' % lend)
    p('s_add_u32 s%d, s%d, %d' % (S_QKO, S_QKO, 32 * 24576))
    qk_wait(2, True)
    p('s_add_u32 s%d, s%d, 1' % (S_T3, S_STEP)); p('s_and_b32 s%d, s%d, 1' % (S_T3, S_T3)); p('s_mul_i32 s%d, s%d, 24576' % (S_T3, S_T3)); p('s_add_u32 s%d, s%d, %d' % (S_T3, S_T3, A_QKB))
    qk_dma(S_T3)
    p.label(lend)
    rnd_write(p, A_QX, 40, 41)
    p('s_add_u32 s%d, s%d, 1' % (S_STEP, S_STEP)); p('s_cmp_lt_u32 s%d, s%d' % (S_STEP, S_NST)); p('s_cbranch_scc1 %s' % loop)

def gen_B2(p, trace_on=False, st=False):
    global CUR_ROLE
    CUR_ROLE = 'B'
    lg = Cnt(p, 'lgkmcnt', 15); vm = Cnt(p, 'vmcnt', 63)
    h = S_IDX
    srd(p, S_W1, KA['Wv'], 640 * 12288); srd(p, S_W2, KA['Wo'], 32 * 192 * 1280)
    common_lane_setup(p)
    p('s_waitcnt lgkmcnt(0)')
    mem_gather_setup(p, B_MEMX)
    p('s_mul_i32 s%d, s%d, 24576' % (S_T0, S_WAVE)); p('s_add_u32 s%d, s%d, 65536' % (S_T0, S_T0)); p('v_add_u32 v15, s%d, v2' % S_T0)
    p('s_lshl_b32 s%d, s%d, 14' % (S_T4, S_WAVE))
    voffs = [80, 81, 82]
    stage_offsets(p, voffs, 6, 12288, 1, 83, 84)
    p('v_lshrrev_b32 v83, 4, v1'); p('v_lshlrev_b32 v83, 3, v83'); p('v_bfe_u32 v84, v1, 2, 2'); p('v_add_u32 v83, v83, v84')
    p('v_and_b32 v84, 3, v1'); p('v_lshlrev_b32 v84, 3, v84')
    p('v_mul_u32_u24 v85, 96, v83'); p('v_add_u32 v85, v85, v84'); p('v_add_u32 v85, s%d, v85' % S_T4)
    p('v_mul_u32_u24 v86, 160, v83'); p('v_add_u32 v86, v86, v84'); p('v_add_u32 v86, s%d, v86' % S_T4)
    p('s_mul_i32 s%d, s%d, 384' % (S_T5, h)); p('s_mul_i32 s%d, s%d, 96' % (S_T0, S_WAVE)); p('s_add_u32 s%d, s%d, s%d' % (S_T5, S_T5, S_T0))
    p('s_mul_i32 s%d, s%d, 3' % (S_T6, S_WAVE))
    sleep_units(p, B_DELAY)
    jobs = []
    for tau in range(10):
        for half in range(2):
            def soff(dst, tau=tau, half=half):
                p('s_add_u32 s%d, s%d, %d' % (dst, S_T6, tau))
                p('s_sub_u32 s%d, s%d, 10' % (S_T2, dst)); p('s_cmp_ge_u32 s%d, 10' % dst); p('s_cselect_b32 s%d, s%d, s%d' % (dst, S_T2, dst))
                p('s_mul_i32 s%d, s%d, %d' % (dst, dst, 64 * 12288))
                p('s_add_u32 s%d, s%d, s%d' % (dst, dst, S_T5))
                if half: p('s_add_u32 s%d, s%d, %d' % (dst, dst, 32 * 12288))
            dests = []
            for x in range(3):
                kind, n = UM[tau * 3 + x]
                if kind == 'reg': dests.append((x * 32, ('reg', unit_reg(n, 4 * half, 2), unit_reg(n, 4 * half + 2, 2))))
                else: dests.append((x * 32, ('lds', n * 2048 + half * 1024)))
            jobs.append(dict(srd=S_W1, soff=soff, dests=dests))
    load_weights_type1(p, jobs, 85, 3072, 5, voffs, 3, 96, lg, vm, 15, 88, S_T4)
    voffs = [100, 101, 102, 103, 104]
    stage_offsets(p, voffs, 10, 1280, 1, 83, 84)
    p('s_mul_i32 s%d, s%d, %d' % (S_T5, h, 192 * 1280)); p('s_mul_i32 s%d, s%d, 320' % (S_T0, S_WAVE)); p('s_add_u32 s%d, s%d, s%d' % (S_T5, S_T5, S_T0))
    jobs = []
    for u in range(6):
        for ch in range(2):
            def soff(dst, u=u, ch=ch): p('s_add_u32 s%d, s%d, %d' % (dst, S_T5, u * 32 * 1280 + ch * 160))
            dests = []
            for x in range(5):
                cc = ch * 5 + x
                kind, n = UM[30 + cc * 3 + (u >> 1)]; half = u & 1
                if kind == 'reg': dests.append((x * 32, ('reg', unit_reg(n, 4 * half, 2), unit_reg(n, 4 * half + 2, 2))))
                else: dests.append((x * 32, ('lds', n * 2048 + half * 1024)))
            jobs.append(dict(srd=S_W2, soff=soff, dests=dests))
    load_weights_type1(p, jobs, 86, 5120, 3, voffs, 5, 160, lg, vm, 15, 88, S_T4)
    p('s_barrier')
    p('v_bfe_u32 v80, v1, 3, 1'); p('v_lshlrev_b32 v80, 9, v80')
    p('v_bfe_u32 v81, v1, 2, 1'); p('v_lshlrev_b32 v81, 6, v81'); p('v_add_u32 v80, v80, v81')
    p('v_and_b32 v81, 1, v1'); p('v_lshlrev_b32 v81, 5, v81'); p('v_add_u32 v80, v80, v81')
    p('v_bfe_u32 v81, v1, 1, 1'); p('v_lshlrev_b32 v81, 2, v81'); p('v_add_u32 v80, v80, v81')
    p('v_lshrrev_b32 v81, 4, v1'); p('v_lshlrev_b32 v81, 3, v81'); p('v_add_u32 v80, v80, v81')
    for x, dst in enumerate((11, 12, 29)):
        p('s_mul_i32 s%d, s%d, 3' % (S_T0, S_WAVE)); p('s_add_u32 s%d, s%d, %d' % (S_T0, S_T0, x))
        p('s_lshr_b32 s%d, s%d, 2' % (S_T1, S_T0)); p('s_lshl_b32 s%d, s%d, 10' % (S_T1, S_T1)); p('s_and_b32 s%d, s%d, 3' % (S_T0, S_T0)); p('s_lshl_b32 s%d, s%d, 7' % (S_T0, S_T0))
        p('s_add_u32 s%d, s%d, s%d' % (S_T0, S_T0, S_T1)); p('s_add_u32 s%d, s%d, %d' % (S_T0, S_T0, B_VX)); p('v_add_u32 v%d, s%d, v80' % (dst, S_T0))
    p('v_mov_b32 v28, 0x05040100'); p('v_mov_b32 v82, 0x03020706'); p('v_and_b32 v83, 2, v1'); p('v_cmp_eq_u32 vcc, 0, v83'); p('v_cndmask_b32 v28, v82, v28, vcc')
    p('v_lshrrev_b32 v80, 4, v1'); p('v_lshlrev_b32 v80, 7, v80')
    p('v_bfe_u32 v81, v1, 2, 2'); p('v_lshlrev_b32 v81, 5, v81'); p('v_add_u32 v80, v80, v81')
    p('v_and_b32 v81, 3, v1'); p('v_lshlrev_b32 v81, 3, v81'); p('v_add_u32 v80, v80, v81'); p('v_add_u32 v13, %d, v80' % B_VX)
    p('v_lshrrev_b32 v80, 4, v1'); p('s_mul_i32 s%d, s%d, 10' % (S_T0, S_WAVE)); p('v_add_u32 v80, s%d, v80' % S_T0); p('v_lshlrev_b32 v80, 14, v80')
    p('v_and_b32 v81, 15, v1'); p('v_lshlrev_b32 v81, 4, v81'); p('v_add_u32 v80, v80, v81')
    p('s_lshl_b32 s%d, s%d, 8' % (S_T0, h)); p('v_add_u32 v14, s%d, v80' % S_T0)
    p('v_add_u32 v0, %d, v14' % (8 * BLK))
    p('v_mov_b32 v82, 0x7ff00000'); p('v_cmp_gt_u32 vcc, 32, v1'); p('v_cndmask_b32 v0, v82, v0, vcc')
    p('s_mov_b32 s%d, 0' % S_STEP)
    stamp(p, 3, st)
    parity_wait2(p)
    ACC1 = 16; ACC2 = 80; VFR = 40
    stamp(p, 1, st)
    pf_init(p); p('s_mov_b32 s%d, %d' % (S_DLY, DLY_INIT['B'])); p('s_mov_b32 s%d, 0' % S_RSUM); p('s_mov_b32 s%d, 1' % S_RND); rnd_write(p, 16384, 40, 41)
    loop = p.newlabel('LBloop'); core.loop_align(p); p.label(loop)
    lg.reset()
    pf(p, 0)
    for r in range(ACC1, ACC1 + 12): p('v_mov_b32 v%d, 0' % r)
    wst_load(p, 0, 15, lg); wst_load(p, 1, 15, lg)
    offsets2(p, 0, ('mem', 'z')); mem_lds_addr(p)
    p('s_waitcnt lgkmcnt(0)'); lg.reset()
    p('s_barrier')
    if not CLASSIC['mem']: dly_update(p, 16384, 40)
    def z0(lo, hi):
        for r in range(lo, hi): p('v_mov_b32 v%d, 0' % r)
    if CLASSIC['mem']:
        z0(ACC2, ACC2 + 40); hooks = {}
    else:
        def h4(): p('s_waitcnt vmcnt(0)'); z0(ACC2, ACC2 + 8)
        hooks = {4: h4, 5: lambda: z0(ACC2 + 8, ACC2 + 16), 6: lambda: z0(ACC2 + 16, ACC2 + 24), 7: lambda: z0(ACC2 + 24, ACC2 + 32)}
    def tail_order(ringreg):
        lg.wait(('m', 8))
        seq = [(8, 0), (8, 1), (9, 0), (9, 1), (8, 2), (9, 2)]
        for i, (tau, x) in enumerate(seq):
            if i == 2: lg.wait(('m', 9))
            smf(p, ACC1 + 4 * x, ringreg(tau), tau * 3 + x, lg, 15)
            if i >= 4 and not CLASSIC['mem']: z0(ACC2 + 32 + 4 * (i - 4), ACC2 + 36 + 4 * (i - 4))
        for x, addr in enumerate((11, 12, 29)):
            a = ACC1 + 4 * x
            p('v_add_f32 v%d, v%d, v%d' % (a, a, a + 1)); p('v_add_f32 v%d, v%d, v%d' % (a + 2, a + 2, a + 3))
            p('v_cvt_pk_bf16_f32 v%d, v%d, v%d' % (a, a, a + 2))
            p('v_mov_b32_dpp v%d, v%d quad_perm:[2,3,0,1] row_mask:0xf bank_mask:0xf' % (a + 1, a))
            p('v_perm_b32 v%d, v%d, v%d, v28' % (a, a + 1, a))
            p('ds_write_b32 v%d, v%d' % (addr, a)); lg.issue('vx')
    gather_and_project(p, lg, 3, ACC1, 15, 'mem', hooks, tail_order)
    pf(p, 2)
    if POLL2['mem']: p('s_waitcnt vmcnt(0)')
    lg.wait('vx')
    p('s_barrier')
    pf(p, 3)
    for t in range(3):
        for z in range(2):
            p('ds_read_b64_tr_b16 %s, v13 offset:%d' % (vr(VFR + 4 * t + 2 * z, 2), t * 1024 + z * 512)); lg.issue(('vf', t))
    def red(cc, dst):
        a = ACC2 + 4 * cc
        return ['v_add_f32 v%d, v%d, v%d' % (a, a, a + 1), 'v_add_f32 v%d, v%d, v%d' % (a + 2, a + 2, a + 3), 'v_cvt_pk_bf16_f32 v%d, v%d, v%d' % (dst, a, a + 2)]
    def fin(q, voff, soff_add):
        L = ['v_permlane32_swap_b32 v%d, v%d' % (q, q + 2), 'v_permlane32_swap_b32 v%d, v%d' % (q + 1, q + 3)]
        if soff_add: L += ['s_add_u32 s%d, s%d, %d' % (S_T0, S_ZO, soff_add)]
        L += ['v_permlane16_swap_b32 v%d, v%d' % (q, q + 1), 'v_permlane16_swap_b32 v%d, v%d' % (q + 2, q + 3),
              'buffer_store_dwordx4 %s, v%d, s[%d:%d], s%d offen sc1' % (vr(q, 4), voff, S_WS, S_WS + 3, S_T0 if soff_add else S_ZO)]
        return L
    fill = []
    for pr in range(5):
        for t in range(3):
            for cc in (2 * pr, 2 * pr + 1):
                if pr == 0 and cc == 0: lg.wait(('vf', t))
                smf(p, ACC2 + 4 * cc, VFR + 4 * t, 30 + cc * 3 + t, lg, 15)
                if t == 1 and cc == 2 * pr and pr > 0:
                    a0 = 2 * (pr - 1); q = 16 + 4 * (a0 // 4)
                    fill += red(a0, q + (a0 % 4)) + red(a0 + 1, q + (a0 % 4) + 1)
                    if a0 % 4 == 2: fill += fin(q, 14, (a0 // 4) * 4 * BLK)
                for _ in range(2):
                    if fill: p(fill.pop(0))
    last = red(8, 24) + red(9, 25) + ['v_mov_b32 v26, v24', 'v_mov_b32 v27, v25'] + fin(24, 0, 0)
    for ins in fill + last: p(ins)
    pf(p, 4)
    pf_acc(p)
    trace(p, 2, trace_on)
    rnd_write(p, 16384, 40, 41)
    p('s_add_u32 s%d, s%d, 1' % (S_STEP, S_STEP)); p('s_cmp_lt_u32 s%d, s%d' % (S_STEP, S_NST)); p('s_cbranch_scc1 %s' % loop)

R_RED = 0; R_RED2 = 4096
def gen_R2(p, trace_on=False, st=False):
    global CUR_ROLE
    CUR_ROLE = 'R'
    c = S_IDX
    srd(p, S_W1, KA['x'], 2048 * 1280)
    common_lane_setup(p)
    p('s_waitcnt lgkmcnt(0)')
    p('v_and_b32 v3, 1, v1'); p('v_cmp_eq_u32 vcc, 0, v3'); p('v_mov_b32 v3, 0xeeeeeeee'); p('v_mov_b32 v7, 0x44444444'); p('v_cndmask_b32 v3, v3, v7, vcc')
    p('s_lshr_b32 s%d, s%d, 1' % (S_T1, S_WAVE)); p('s_lshl_b32 s%d, s%d, 14' % (S_T1, S_T1)); p('s_and_b32 s%d, s%d, 1' % (S_T0, S_WAVE)); p('s_lshl_b32 s%d, s%d, 12' % (S_T0, S_T0))
    p('s_add_u32 s%d, s%d, s%d' % (S_T0, S_T0, S_T1)); p('v_add_u32 v4, s%d, v2' % S_T0)
    p('v_lshrrev_b32 v8, 4, v1'); p('v_lshlrev_b32 v8, 8, v8'); p('v_and_b32 v9, 15, v1'); p('v_lshlrev_b32 v9, 3, v9'); p('v_add_u32 v8, v8, v9')
    p('s_lshl_b32 s%d, s%d, 10' % (S_T0, S_WAVE)); p('s_add_u32 s%d, s%d, 32768' % (S_T0, S_T0)); p('v_add_u32 v5, s%d, v8' % S_T0)
    p('s_lshl_b32 s%d, s%d, 14' % (S_T0, c)); p('s_lshl_b32 s%d, s%d, 11' % (S_T1, S_WAVE)); p('s_add_u32 s%d, s%d, s%d' % (S_T0, S_T0, S_T1)); p('v_add_u32 v6, s%d, v2' % S_T0)
    p('s_lshl_b32 s%d, s%d, 15' % (S_T0, c)); p('s_lshl_b32 s%d, s%d, 13' % (S_T1, S_WAVE)); p('s_add_u32 s%d, s%d, s%d' % (S_T0, S_T0, S_T1)); p('v_add_u32 v10, s%d, v2' % S_T0)
    p('v_lshrrev_b32 v8, 4, v1'); p('v_lshlrev_b32 v8, 7, v8')
    p('v_bfe_u32 v9, v1, 1, 1'); p('v_lshlrev_b32 v9, 5, v9'); p('v_add_u32 v8, v8, v9')
    p('v_bfe_u32 v9, v1, 2, 2'); p('v_lshlrev_b32 v9, 3, v9'); p('v_add_u32 v8, v8, v9')
    p('v_and_b32 v9, 1, v1'); p('v_lshlrev_b32 v9, 2, v9'); p('v_add_u32 v8, v8, v9')
    p('s_lshl_b32 s%d, s%d, 9' % (S_T0, S_WAVE)); p('v_add_u32 v11, s%d, v8' % S_T0)
    p('v_lshlrev_b32 v12, 3, v1'); p('v_lshrrev_b32 v13, 2, v1'); p('v_lshlrev_b32 v13, 4, v13'); p('s_lshl_b32 s%d, s%d, 8' % (S_T0, c))
    p('s_add_u32 s%d, s%d, 8192' % (S_T1, S_T0)); p('s_cmp_ge_u32 s%d, 32' % c); p('s_cselect_b32 s%d, s%d, s%d' % (S_T0, S_T1, S_T0))
    p('v_add_u32 v13, s%d, v13' % S_T0); p('v_and_b32 v9, 3, v1'); p('v_cmp_eq_u32 vcc, 0, v9'); p('v_mul_u32_u24 v9, %d, v9' % (MEM_COPY * BLK)); p('v_add_u32 v13, v13, v9')
    if CLASSIC['mem']: p('v_mov_b32 v8, 0x7ff00000'); p('v_cndmask_b32 v13, v8, v13, vcc')
    p('v_lshlrev_b32 v14, 2, v1'); p('s_lshl_b32 s%d, s%d, 8' % (S_T0, c)); p('v_add_u32 v14, s%d, v14' % S_T0)
    p('s_lshl_b32 s%d, s%d, 11' % (S_T0, S_WAVE)); p('s_add_u32 s%d, s%d, %d' % (S_T0, S_T0, R_RED2)); p('v_add_u32 v15, s%d, v2' % S_T0)
    p('v_and_b32 v8, 15, v1'); p('s_and_b32 s%d, s%d, 1' % (S_T0, S_WAVE)); p('s_lshl_b32 s%d, s%d, 4' % (S_T0, S_T0)); p('v_add_u32 v8, s%d, v8' % S_T0); p('v_mul_u32_u24 v8, 1280, v8')
    p('v_lshrrev_b32 v9, 4, v1'); p('v_lshlrev_b32 v9, 3, v9'); p('s_lshl_b32 s%d, s%d, 5' % (S_T0, c)); p('v_add_u32 v9, s%d, v9' % S_T0)
    p('v_add_u32 v28, v8, v9')
    p('s_and_b32 s%d, s%d, 1' % (S_T0, S_WAVE)); p('s_lshl_b32 s%d, s%d, 10' % (S_T0, S_T0)); p('s_add_u32 s%d, s%d, %d' % (S_T0, S_T0, R_RED2)); p('v_add_u32 v29, s%d, v2' % S_T0)
    p('v_mov_b32 v33, v9')
    p('s_lshl_b32 s%d, s%d, %d' % (S_T0, c, FSH)); p('v_mov_b32 v30, s%d' % S_T0); p('v_mov_b32 v8, 0x7ff00000'); p('v_cmp_eq_u32 vcc, 0, v1'); p('v_cndmask_b32 v30, v8, v30, vcc')
    p('v_and_b32 v0, 31, v1'); p('v_lshlrev_b32 v0, %d, v0' % FSH)
    p('v_lshlrev_b32 v31, %d, v1' % FSH)
    p('s_mov_b32 s%d, 0' % S_MASK); p('s_mov_b32 s%d, -1' % (S_MASK + 1))
    p('s_mov_b32 s%d, 0' % S_STEP); p('s_mov_b32 s%d, %d' % (S_VOO, OFF_VO))
    ZB = 64; ACC = 16; SENT = 92; PF = 160; PS = 128
    def VOa(k, j, n=4): return ar(40 * k + 4 * j, n)
    def Za(k, a): return ar(40 * k + 32 + 4 * a, 4)
    def vo_load(k):
        for j in range(8):
            if j == 4: p('s_add_u32 s%d, s%d, 4096' % (S_T0, S_VOO))
            p('buffer_load_dwordx4 %s, v10, s[%d:%d], s%d offen offset:%d sc1' % (VOa(k, j), S_WS, S_WS + 3, S_VOO if j < 4 else S_T0, (j % 4) * 1024))
    S_SG = S_T6
    def x_load(seg_s, add):
        p('s_add_u32 s%d, s%d, %d' % (S_T5, seg_s, add)); p('s_mul_i32 s%d, s%d, %d' % (S_T5, S_T5, 32 * 1280))
        p('buffer_load_dwordx2 v[96:97], v28, s[%d:%d], s%d offen' % (S_W1, S_W1 + 3, S_T5))
    def seg_issue(wait, with_x=True):
        if wait: p('s_add_u32 s%d, s%d, 1' % (S_T3, S_SG)); wait_flags(p, 31, BLK_FP * BLK, S_T3, 7, 1, S_COMM)
        if PS_NEAR:
            p('s_and_b32 s%d, s%d, %d' % (S_T4, S_SG, PS_RING - 1)); p('s_mul_i32 s%d, s%d, %d' % (S_T4, S_T4, 10 * BLK)); p('s_add_u32 s%d, s%d, s%d' % (S_T4, S_T4, S_COMM)); p('s_add_u32 s%d, s%d, %d' % (S_T4, S_T4, BLK_PS * BLK))
            wsh, tstep, mbase, mstep = 14, 4 * BLK, 8 * BLK, BLK
        else:
            p('s_mul_i32 s%d, s%d, 81920' % (S_T4, S_SG)); p('s_add_u32 s%d, s%d, %d' % (S_T4, S_T4, OFF_PS))
            wsh, tstep, mbase, mstep = 13, 32768, 65536, 8192
        for tau in range(2):
            p('s_lshl_b32 s%d, s%d, %d' % (S_T0, S_WAVE, wsh)); p('s_add_u32 s%d, s%d, s%d' % (S_T0, S_T0, S_T4))
            if tau: p('s_add_u32 s%d, s%d, %d' % (S_T0, S_T0, tstep))
            for j in range(8):
                if j == 4: p('s_add_u32 s%d, s%d, 4096' % (S_T0, S_T0))
                p('buffer_load_dwordx4 %s, v2, s[%d:%d], s%d offen offset:%d sc1' % (ar(PF + 40 * tau + 4 * j, 4), S_WS, S_WS + 3, S_T0, (j % 4) * 1024))
            p('s_lshl_b32 s%d, s%d, 11' % (S_T0, S_WAVE)); p('s_add_u32 s%d, s%d, s%d' % (S_T0, S_T0, S_T4)); p('s_add_u32 s%d, s%d, %d' % (S_T0, S_T0, mbase + tau * mstep))
            for a in range(2):
                p('buffer_load_dwordx4 %s, v2, s[%d:%d], s%d offen offset:%d sc1' % (ar(PF + 40 * tau + 32 + 4 * a, 4), S_WS, S_WS + 3, S_T0, a * 1024))
        if with_x:
            p('s_mul_i32 s%d, s%d, %d' % (S_T5, S_SG, 32 * 1280))
            p('buffer_load_dwordx2 v[100:101], v28, s[%d:%d], s%d offen' % (S_W1, S_W1 + 3, S_T5))
    def seg_compute(k, after):
        for tau in range(2):
            if after is not None: p('s_waitcnt vmcnt(%d)' % ((11 if tau == 0 else 1) + after))
            a = 104 + 4 * tau
            for j in range(8):
                p('v_mfma_f32_16x16x32_bf16 %s, %s, %s, %s' % (vr(a, 4), VOa(k, j), ar(PF + 40 * tau + 4 * j, 4), '0' if j == 0 else vr(a, 4)))
            for aa in range(2):
                p('v_mfma_f32_16x16x32_bf16 %s, %s, %s, %s' % (vr(a, 4), Za(k, aa), ar(PF + 40 * tau + 32 + 4 * aa, 4), vr(a, 4)))
        p('ds_write_b128 v15, v[104:107]'); p('ds_write_b128 v15, v[108:111] offset:1024')
        p('s_waitcnt lgkmcnt(0)'); p('s_barrier')
        l = p.newlabel('LRs'); p('s_cmp_ge_u32 s%d, 2' % S_WAVE); p('s_cbranch_scc1 %s' % l)
        for w in range(4): p('ds_read_b128 %s, v29 offset:%d' % (vr(104 + 4 * w, 4), w * 2048))
        p('s_waitcnt vmcnt(%d) lgkmcnt(0)' % after if after is not None else 's_waitcnt lgkmcnt(0)')
        for r in range(4):
            p('v_add_f32 v%d, v%d, v%d' % (104 + r, 104 + r, 108 + r)); p('v_add_f32 v%d, v%d, v%d' % (112 + r, 112 + r, 116 + r)); p('v_add_f32 v%d, v%d, v%d' % (104 + r, 104 + r, 112 + r))
        p('v_lshlrev_b32 v108, 16, v100'); p('v_and_b32 v109, 0xffff0000, v100'); p('v_lshlrev_b32 v110, 16, v101'); p('v_and_b32 v111, 0xffff0000, v101')
        for r in range(4): p('v_fmac_f32 v%d, v%d, v%d' % (108 + r, 24 + r, 104 + r))
        p('v_cvt_pk_bf16_f32 v100, v108, v109'); p('v_cvt_pk_bf16_f32 v101, v110, v111')
        p('s_mul_i32 s%d, s%d, %d' % (S_T5, S_SG, 32 * 1280)); p('s_add_u32 s%d, s%d, %d' % (S_T5, S_T5, OFF_X1))
        p('buffer_store_dwordx2 v[100:101], v28, s[%d:%d], s%d offen sc1' % (S_WS, S_WS + 3, S_T5))
        p.label(l)
    def x1_flag(val_s):
        p('v_mov_b32 v102, s%d' % val_s); p('s_add_u32 s%d, s%d, %d' % (S_T0, S_COMM, BLK_FX * BLK))
        p('buffer_store_dword v102, v30, s[%d:%d], s%d offen sc1' % (S_WS, S_WS + 3, S_T0))
    if not core.FUSED: parity_probe2(p)
    parity_wait2(p)
    p('s_mov_b32 s%d, %d' % (S_T0, OFF_MOD + 2 * 1280))
    p('buffer_load_dwordx2 v[34:35], v33, s[%d:%d], s%d offen sc1' % (S_WS, S_WS + 3, S_T0))
    p('s_waitcnt vmcnt(0)')
    p('v_lshlrev_b32 v24, 16, v34'); p('v_and_b32 v25, 0xffff0000, v34'); p('v_lshlrev_b32 v26, 16, v35'); p('v_and_b32 v27, 0xffff0000, v35')
    tlb_warm(p, S_WS, OFF_VO, 64 * 40 * 32 * 1024, 36); tlb_warm(p, S_WS, OFF_PS, 64 * 81920 + (2 << 20), 38); tlb_warm(p, S_WS, OFF_X1, 64 * 40960 + (2 << 20), 40); tlb_warm(p, S_W1, 0, 2048 * 1280, 42)
    p('s_mov_b32 s%d, 1' % S_T3); wait_flags(p, 0, BLK_FV * BLK, S_T3, 7, 2, S_COMM)
    vo_load(0)
    stamp(p, 1, st)
    pf_init(p); p('s_mov_b32 s%d, %d' % (S_DLY, DLY_INIT['R'])); p('s_mov_b32 s%d, 0' % S_RSUM); p('s_mov_b32 s%d, 1' % S_RND); rnd_write(p, 16384, 40, 41)
    for r in range(SENT, SENT + 4): p('v_mov_b32 v%d, -1' % r)
    p('v_mov_b32 v99, 0'); p('v_mov_b32 v103, 0')
    def flags_sample():
        p('s_add_u32 s%d, s%d, %d' % (S_T0, S_COMM, BLK_FV * BLK))
        p('buffer_load_dword v103, v0, s[%d:%d], s%d offen sc1' % (S_WS, S_WS + 3, S_T0))
    def flags_check(vo_add):
        lok = p.newlabel('LRok')
        p('s_add_u32 s%d, s%d, %d' % (S_T3, S_STEP, vo_add)); p('s_min_u32 s%d, s%d, 64' % (S_T3, S_T3))
        p('v_cmp_gt_u32 vcc, s%d, v103' % S_T3); p('s_cbranch_vccz %s' % lok)
        wait_flags(p, 0, BLK_FV * BLK, S_T3, 7, 2, S_COMM)
        p.label(lok)
    loop = p.newlabel('LRloop'); core.loop_align(p); p.label(loop)
    for k in range(4):
        pf(p, 0)
        for r in range(ACC, ACC + 4): p('v_mov_b32 v%d, 0' % r)
        offsets2(p, 1)
        lns0 = p.newlabel('LRn0'); p('s_cmp_lt_u32 s%d, 1' % S_STEP); p('s_cbranch_scc1 %s' % lns0)
        p('s_sub_u32 s%d, s%d, 1' % (S_SG, S_STEP))
        lfp = p.newlabel('LRfp')
        p('s_waitcnt vmcnt(%d)' % (9 if X_EARLY else 8))
        p('v_cmp_gt_u32 vcc, s%d, v99' % S_STEP); p('s_cbranch_vccz %s' % lfp)
        p('s_mov_b32 s%d, s%d' % (S_T3, S_STEP)); wait_flags(p, 31, BLK_FP * BLK, S_T3, 7, 1, S_COMM)
        p.label(lfp)
        seg_issue(False, not X_EARLY)
        p.label(lns0)
        if FVO_TOP: flags_sample()
        if k == 3: p('s_cmp_eq_u32 s%d, 63' % S_STEP); p('s_cbranch_scc1 LR_last')
        if not CLASSIC['p']: p('s_waitcnt lgkmcnt(0)'); p('s_barrier'); dly_update(p, 16384, 40)
        def zloads():
            p('buffer_load_dwordx4 %s, v6, s[%d:%d], s%d offen sc1' % (vr(ZB, 4), S_WS, S_WS + 3, S_ZO))
            p('buffer_load_dwordx4 %s, v6, s[%d:%d], s%d offen offset:1024 sc1' % (vr(ZB + 4, 4), S_WS, S_WS + 3, S_ZO))
        def issue(st_, cp):
            if cp: p('s_add_u32 s%d, s%d, %d' % (S_T2, S_PO, cp * P_COPY * BLK))
            so = S_T2 if cp else S_PO; b = PS + 20 * st_
            for z in range(4): p('buffer_load_dwordx4 %s, v4, s[%d:%d], s%d offen offset:%d sc1' % (vr(b + 4 * z, 4), S_WS, S_WS + 3, so, z * 1024))
            for hp in range(2): p('buffer_load_dwordx2 %s, v5, s[%d:%d], s%d offen offset:%d sc1' % (vr(b + 16 + 2 * hp, 2), S_WS, S_WS + 3, so, hp * 128))
        def zcheck():
            ok = p.newlabel('Lzok'); top = p.newlabel('Lzt')
            check_regs(p, range(ZB, ZB + 8), 7, [ZB + 3, ZB + 7]); p('s_cbranch_vccz %s' % ok)
            if POLL2['z']: zloads()
            p.label(top)
            zloads(); p('s_waitcnt vmcnt(%d)' % (2 if POLL2['z'] else 0)); check_regs(p, range(ZB, ZB + 8), 7, None if POLL2['z'] else [ZB + 3, ZB + 7]); p('s_cbranch_vccz %s' % ok)
            if CSLEEP['z']: p('s_sleep %d' % CSLEEP['z'])
            budget(p, ok, top)
            p.label(ok)
        def variant(st_):
            pf(p, 2)
            b = PS + 20 * st_
            p('v_smfmac_f32_16x16x64_bf16 %s, %s, %s, v3' % (vr(ACC, 4), vr(b + 16, 4), vr(ZB, 8)))
            for z in range(4): p('v_smfmac_f32_16x16x64_bf16 %s, %s, %s, v3' % (vr(ACC, 4), vr(b + 4 * z, 4), VOa(k, 2 * z, 8)))
        pf(p, 1)
        multi_poll(p, issue, 6, lambda st_: range(PS + 20 * st_, PS + 20 * st_ + 20), 7, 'p', variant, first_hook=zcheck, pre_issue=zloads,
                   quads=lambda st_: [PS + 20 * st_ + 4 * z + 3 for z in range(4)] + [PS + 20 * st_ + 17, PS + 20 * st_ + 19])
        trace(p, 0, trace_on)
        if not FVO_TOP: flags_sample()
        p('v_add_f32 v%d, v%d, v%d' % (ACC, ACC, ACC + 1)); p('v_add_f32 v%d, v%d, v%d' % (ACC + 2, ACC + 2, ACC + 3))
        p('ds_write2_b32 v11, v%d, v%d offset0:0 offset1:16' % (ACC, ACC + 2))
        p('s_waitcnt lgkmcnt(0)')
        p('s_barrier')
        pf(p, 3)
        l = p.newlabel('LRw'); p('s_cmp_lg_u32 s%d, 0' % S_WAVE); p('s_cbranch_scc1 %s' % l)
        for w in range(4): p('ds_read_b64 %s, v12 offset:%d' % (vr(20 + 2 * w, 2) if w < 2 else vr(32 + 2 * (w - 2), 2), w * 512))
        p('s_waitcnt lgkmcnt(0)')
        p('v_add_f32 v20, v20, v22'); p('v_add_f32 v21, v21, v23'); p('v_add_f32 v32, v32, v34'); p('v_add_f32 v33, v33, v35')
        p('v_add_f32 v20, v20, v32'); p('v_add_f32 v21, v21, v33')
        p('v_cvt_pk_bf16_f32 v32, v20, v21')
        for kk in range(4): p('v_mov_b32_dpp v%d, v32 quad_perm:[%d,%d,%d,%d] row_mask:0xf bank_mask:0xf' % (20 + kk, kk, kk, kk, kk))
        p('buffer_store_dwordx4 v[20:23], v13, s[%d:%d], s%d offen sc1' % (S_WS, S_WS + 3, S_MEMO))
        pf(p, 4)
        pf_acc(p)
        trace(p, 2, trace_on)
        if core.HIST:
            p('s_mul_i32 s%d, s%d, 10240' % (S_T0, S_STEP)); p('s_add_u32 s%d, s%d, %d' % (S_T0, S_T0, OFF_HIST + 10240))
            p('buffer_store_dword v32, v14, s[%d:%d], s%d offen' % (S_WS, S_WS + 3, S_T0))
        p.label(l)
        p('s_barrier')
        for r in range(8): p('v_accvgpr_write_b32 a%d, v%d' % (40 * k + 32 + r, ZB + r))
        flags_check(2)
        l3 = p.newlabel('LRq'); p('s_cmp_lg_u32 s%d, 1' % S_WAVE); p('s_cbranch_scc1 %s' % l3)
        p('s_and_b32 s%d, s%d, %d' % (S_T0, S_STEP, MEM_RING - 1)); p('s_mul_i32 s%d, s%d, %d' % (S_T0, S_T0, MEM_SLOT * BLK)); p('s_add_u32 s%d, s%d, s%d' % (S_T0, S_T0, S_COMM))
        p('buffer_store_dwordx4 %s, v13, s[%d:%d], s%d offen sc1' % (vr(SENT, 4), S_WS, S_WS + 3, S_T0))
        p.label(l3)
        l4 = p.newlabel('LRx'); p('s_cmp_lg_u32 s%d, 2' % S_WAVE); p('s_cbranch_scc1 %s' % l4)
        p('s_cmp_lt_u32 s%d, 2' % S_STEP); p('s_cbranch_scc1 %s' % l4)
        p('s_sub_u32 s%d, s%d, 1' % (S_T1, S_STEP)); x1_flag(S_T1)
        p.label(l4)
        p('buffer_store_dwordx4 %s, v6, s[%d:%d], s%d offen sc1' % (vr(SENT, 4), S_WS, S_WS + 3, S_ZO))
        p('buffer_store_dwordx4 %s, v6, s[%d:%d], s%d offen offset:1024 sc1' % (vr(SENT, 4), S_WS, S_WS + 3, S_ZO))
        p('s_add_u32 s%d, s%d, %d' % (S_T0, S_COMM, BLK_FP * BLK))
        p('buffer_load_dword v99, v31, s[%d:%d], s%d offen sc1' % (S_WS, S_WS + 3, S_T0))
        p('s_add_u32 s%d, s%d, %d' % (S_VOO, S_VOO, 40 * 32 * 1024))
        vo_load((k + 1) & 3)
        rnd_write(p, 16384, 40, 41)
        lns = p.newlabel('LRns')
        p('s_cmp_lt_u32 s%d, 1' % S_STEP); p('s_cbranch_scc1 %s' % lns)
        if X_EARLY: p('v_mov_b32 v100, v96'); p('v_mov_b32 v101, v97')
        seg_compute((k + 3) & 3, None)
        p.label(lns)
        if X_EARLY: x_load(S_STEP, 0)
        p('s_add_u32 s%d, s%d, 1' % (S_STEP, S_STEP))
    p('s_branch %s' % loop)
    p.label('LR_last')
    p('s_waitcnt vmcnt(0)'); p('s_barrier')
    l = p.newlabel('LRf1'); p('s_cmp_lg_u32 s%d, 2' % S_WAVE); p('s_cbranch_scc1 %s' % l)
    p('s_mov_b32 s%d, 62' % S_T1); x1_flag(S_T1)
    p.label(l)
    if X_EARLY: p('v_mov_b32 v100, v96'); p('v_mov_b32 v101, v97')
    seg_compute(2, None)
    top = p.newlabel('Lzl'); ok = p.newlabel('Lzlok')
    p.label(top)
    p('buffer_load_dwordx4 %s, v6, s[%d:%d], s%d offen sc1' % (vr(ZB, 4), S_WS, S_WS + 3, S_ZO))
    p('buffer_load_dwordx4 %s, v6, s[%d:%d], s%d offen offset:1024 sc1' % (vr(ZB + 4, 4), S_WS, S_WS + 3, S_ZO))
    p('s_waitcnt vmcnt(0)'); check_regs(p, range(ZB, ZB + 8), 7, [ZB + 3, ZB + 7]); p('s_cbranch_vccz %s' % ok)
    budget(p, ok, top)
    p.label(ok)
    for r in range(8): p('v_accvgpr_write_b32 a%d, v%d' % (40 * 3 + 32 + r, ZB + r))
    p('s_barrier')
    l = p.newlabel('LRf2'); p('s_cmp_lg_u32 s%d, 2' % S_WAVE); p('s_cbranch_scc1 %s' % l)
    p('s_mov_b32 s%d, 63' % S_T1); x1_flag(S_T1)
    p.label(l)
    p('s_mov_b32 s%d, 63' % S_SG); seg_issue(True); seg_compute(3, 0)
    p('s_waitcnt vmcnt(0)'); p('s_barrier')
    l = p.newlabel('LRf'); p('s_cmp_lg_u32 s%d, 2' % S_WAVE); p('s_cbranch_scc1 %s' % l)
    p('s_mov_b32 s%d, 64' % S_T1); x1_flag(S_T1)
    p.label(l)
```

```python
H, DH, D, M, L, S, F = 32, 192, 640, 8, 32, 64, 1536
off = 0
def _take(n, align=4096):
    global off
    off = (off + align - 1) // align * align
    o = off; off += n
    return o
OFF_FLAGS = _take(65536)
OFF_MOD  = _take(3840 * 4)
OFF_MODL = _take(40 * 128)
OFF_FH   = _take(128 * 128)
OFF_FI   = _take(128 * 128)
OFF_COMM = _take(4 << 20, 2 << 20)
OFF_H    = _take(64 * 40960)
OFF_QK   = _take(64 * 32 * 24576)
OFF_VO   = _take(64 * 40 * 32 * 1024)
OFF_PS   = _take(64 * 81920)
OFF_X1   = _take(64 * 40960)
OFF_HM   = _take(64 * 98304)
OFF_H2   = _take(64 * 40960)
OFF_HIST = _take(65 * 10240)
OFF_TRACE = _take(1 << 20)
WS_END = off
assert WS_END + (2 << 20) <= 268435456
BLK = 16384
NCOPY = 1
MEM_RING = 4; P_RING = 4; Z_RING = 2
BLK_MEM = 0
MEM_SLOT = 2 * NCOPY; MEM_COPY = 2
BLK_P   = BLK_MEM + MEM_SLOT * MEM_RING
P_SLOT = 3 * NCOPY; P_COPY = 3
BLK_FP = BLK_P + P_SLOT * P_RING
BLK_FX = BLK_FP + 1
BLK_FV = BLK_FX + 1
BLK_XEND = BLK_FV + 1
PS_RING = 4
BLK_PS = BLK_XEND
assert BLK_PS + 10 * PS_RING <= 112
BLK_Z   = 0
assert 40 * Z_RING <= 112
BLK_PROBE = 112
NBLK_INIT = BLK_XEND + 40 * Z_RING
def ws_delta(ws_ptr):
    return (-ws_ptr) & ((2 << 20) - 1)
def comm_page(ws_ptr):
    return ws_delta(ws_ptr) + OFF_COMM
if __name__ == '__main__':
    for k, v in list(globals().items()):
        if k.startswith('OFF_') or k.startswith('BLK') or k in ('WS_END',): print(k, v, hex(v))
```

```python
from core import *
import core, core2, roles2, roles3, pro, fused

NAME = 'adaLN_cond__memory_aug_recurrent_mem_tr__glu_gated_bilinear__prompt_kernel'
DYN_ROLE = True
SHIFT = 0
FUSED = True
FAKE_XCC = 0
ROLES = dict(A=True, B=True, R=True, AP=True, BP=True, L2=True, F1=True, F2=True)

def gen_main(name, nsteps=64, st=False, trace_on=False):
    p = Prog()
    p.raw('.globl %s' % name); p.raw('.p2align 8'); p.raw('.type %s,@function' % name); p.label(name)
    p('s_cmp_ge_u32 s2, 256'); p('s_cbranch_scc1 L_exit')
    for _ in range(SHIFT): p('s_nop 0')
    p('s_load_dwordx2 s[%d:%d], s[0:1], %d' % (S_WS, S_WS + 1, KA['ws']))
    p('s_load_dwordx2 s[%d:%d], s[0:1], %d' % (S_DBG, S_DBG + 1, KA['dbg']))
    p('s_mov_b32 s%d, %d' % (S_NST, nsteps))
    p('s_waitcnt lgkmcnt(0)')
    p('s_sub_u32 s20, 0, s%d' % S_WS); p('s_and_b32 s20, s20, 0x1fffff')
    p('s_add_u32 s%d, s%d, s20' % (S_WS, S_WS)); p('s_addc_u32 s%d, s%d, 0' % (S_WS + 1, S_WS + 1))
    p('s_sub_u32 s%d, 0x%x, s20' % (S_WS + 2, WS_BYTES)); p('s_mov_b32 s%d, 0x00020000' % (S_WS + 3))
    core2.comm_setup2(p)
    if DYN_ROLE:
        dbg_srd(p, 52)
        if FAKE_XCC: p('s_lshr_b32 s20, s2, 6'); p('s_and_b32 s20, s20, 7'); p('s_mul_i32 s20, s20, %d' % FAKE_XCC); p('s_and_b32 s20, s20, 7')
        else: p('s_getreg_b32 s20, hwreg(HW_REG_XCC_ID)'); p('s_and_b32 s20, s20, 7')
        lw = 'L_tk_other'
        p('v_lshrrev_b32 v3, 6, v0'); p('v_readfirstlane_b32 s%d, v3' % S_WAVE)
        p('s_cmp_lg_u32 s%d, 0' % S_WAVE); p('s_cbranch_scc1 %s' % lw)
        p('v_mov_b32 v4, 0x7ff00000'); p('v_mov_b32 v5, 0'); p('v_cmp_eq_u32 vcc, 0, v0'); p('v_cndmask_b32 v4, v4, v5, vcc')
        p('s_lshl_b32 s21, s20, 2'); p('s_add_u32 s21, s21, 32')
        p('v_mov_b32 v6, 1')
        p('buffer_atomic_add v6, v4, s[52:55], s21 offen sc0 sc1')
        p('v_mov_b32 v9, 128'); p('v_cndmask_b32 v9, 0x7ff00000, v9, vcc') if False else None
        p('s_cmp_lg_u32 s2, 0'); p('s_cbranch_scc1 L_nonce_rd')
        p('s_memrealtime s[%d:%d]' % (S_NONCE, S_NONCE + 1)); p('s_waitcnt lgkmcnt(0)'); p('s_or_b32 s%d, s%d, 1' % (S_NONCE, S_NONCE))
        p('v_mov_b32 v8, s%d' % S_NONCE); p('s_movk_i32 s23, 128')
        p('buffer_store_dword v8, v4, s[52:55], s23 offen sc1')
        p.label('L_nonce_rd')
        p('v_mov_b32 v9, 128'); p('s_mov_b32 s26, %d' % SPIN_BUDGET)
        p.label('L_nonce_poll')
        p('buffer_load_dword v8, v9, s[52:55], 0 offen sc1')
        p('s_waitcnt vmcnt(0)')
        p('v_readfirstlane_b32 s%d, v8' % S_NONCE)
        p('s_cmp_lg_u32 s%d, 0' % S_NONCE); p('s_cbranch_scc1 L_nonce_ok')
        p('s_sub_u32 s26, s26, 1'); p('s_cmp_lg_u32 s26, 0'); p('s_cbranch_scc1 L_nonce_poll')
        p.label('L_nonce_ok')
        p('v_readfirstlane_b32 s22, v6')
        p('s_cmp_lt_u32 s22, 32'); p('s_cbranch_scc1 L_tk_ok')
        p('v_mov_b32 v6, 1'); p('s_mov_b32 s21, 64')
        p('buffer_atomic_add v6, v4, s[52:55], s21 offen sc0 sc1'); p('s_waitcnt vmcnt(0)')
        p('v_readfirstlane_b32 s23, v6')
        p('v_lshlrev_b32 v7, 2, v0'); p('v_min_u32 v7, 28, v7')
        p('s_mov_b32 s26, %d' % SPIN_BUDGET)
        p.label('L_tk_wait')
        p('buffer_load_dword v8, v7, s[52:55], 0 offen offset:32 sc1'); p('s_waitcnt vmcnt(0)')
        p('s_mov_b32 s24, 0')
        for y in range(8): p('v_readlane_b32 s25, v8, %d' % y); p('s_add_u32 s24, s24, s25')
        p('s_cmp_ge_u32 s24, 256'); p('s_cbranch_scc1 L_tk_all')
        p('s_sleep 8'); p('s_sub_u32 s26, s26, 1'); p('s_cmp_lg_u32 s26, 0'); p('s_cbranch_scc1 L_tk_wait')
        p.label('L_tk_all')
        for y in range(8):
            ln = 'L_tk_n%d' % y
            p('v_readlane_b32 s25, v8, %d' % y); p('s_min_u32 s25, s25, 32'); p('s_sub_u32 s24, 32, s25')
            p('s_cmp_lt_u32 s23, s24'); p('s_cbranch_scc0 %s' % ln)
            p('s_mov_b32 s20, %d' % y); p('s_add_u32 s22, s25, s23'); p('s_branch L_tk_ok')
            p.label(ln)
            p('s_sub_u32 s23, s23, s24')
        p('s_mov_b32 s20, 16'); p('s_mov_b32 s22, 0')
        p.label('L_tk_ok')
        p('s_lshl_b32 s22, s22, 2'); p('s_and_b32 s21, s20, 3'); p('s_add_u32 s22, s22, s21')
        p('s_lshr_b32 s20, s20, 2'); p('s_lshl_b32 s20, s20, 7'); p('s_add_u32 s22, s22, s20')
        p('v_mov_b32 v6, s22'); p('v_mov_b32 v7, s%d' % S_NONCE); p('v_mov_b32 v8, 0'); p('ds_write_b64 v8, v[6:7]'); p('s_waitcnt lgkmcnt(0)')
        p.label(lw)
        p('s_barrier')
        p('v_mov_b32 v8, 0'); p('ds_read_b64 v[6:7], v8'); p('s_waitcnt lgkmcnt(0)')
        p('v_readfirstlane_b32 s2, v6'); p('v_readfirstlane_b32 s%d, v7' % S_NONCE)
        p('s_barrier')
        p('s_cmp_ge_u32 s2, 256'); p('s_cbranch_scc1 L_exit')
    else:
        p('s_and_b32 s20, s2, 7'); p('s_lshr_b32 s21, s2, 3'); p('s_lshl_b32 s21, s21, 2'); p('s_and_b32 s22, s20, 3'); p('s_add_u32 s21, s21, s22')
        p('s_lshr_b32 s20, s20, 2'); p('s_lshl_b32 s20, s20, 7'); p('s_add_u32 s2, s21, s20')
    if st:
        p('v_lshrrev_b32 v3, 6, v0'); p('v_readfirstlane_b32 s%d, v3' % S_WAVE); stamp(p, 0, True)
    if FUSED:
        fused.gen_prologue(p)
    table = [('A', 0, 32, lambda: core2.gen_A2(p, trace_on, st)), ('B', 32, 64, lambda: core2.gen_B2(p, trace_on, st)), ('R', 64, 104, lambda: core2.gen_R2(p, trace_on, st)),
             ('AP', 128, 160, lambda: roles2.gen_AP(p, st)), ('BP', 160, 192, lambda: roles2.gen_BP(p, st)),
             ('F2', 104, 124, lambda: roles3.gen_F2(p, st)), ('L2', 124, 128, lambda: roles3.gen_L2(p, st)), ('F1', 192, 240, lambda: roles3.gen_F1(p, st))]
    for nm, lo, hi, fn in table:
        if not ROLES.get(nm): continue
        l = 'L_not' + nm
        p('s_cmp_lt_u32 s2, %d' % lo); p('s_cbranch_scc1 %s' % l)
        p('s_cmp_ge_u32 s2, %d' % hi); p('s_cbranch_scc1 %s' % l)
        p('s_sub_u32 s%d, s2, %d' % (S_IDX, lo))
        p('s_branch L_go' + nm)
        p.label(l)
    p.label('L_exit')
    p('s_endpgm')
    for nm, lo, hi, fn in table:
        if not ROLES.get(nm): continue
        p.label('L_go' + nm); fn(); p('s_branch L_end')
    p.label('L_end')
    stamp(p, 2, st)
    pf_out(p)
    l = p.newlabel('Lok'); p('s_cmp_lg_u32 s%d, 0' % S_SPIN); p('s_cbranch_scc1 %s' % l)
    p('v_mov_b32 v4, 4'); p('v_mov_b32 v5, s2'); p('v_add_u32 v5, 1, v5'); p('global_store_dword v4, v5, s[%d:%d]' % (S_DBG, S_DBG + 1))
    p.label(l)
    p('s_waitcnt vmcnt(0)')
    p('s_endpgm')
    return p.text(), kernel_desc(name), p

def gen_all(st=False, trace_on=False, names=('k0_kernel', 'k1_kernel', 'main_kernel')):
    core.FUSED = FUSED
    t2, d2, p = gen_main(names[2], 64, st, trace_on)
    if FUSED:
        launches = [(names[2], 256, 163840)]
        return '; @launch grid=(256,1,1) block=(256,1,1) lds=163840\n' + HEADER + t2 + d2, launches
    t0, d0 = pro.gen_k0(names[0]); t1, d1 = pro.gen_k1(names[1])
    launches = [(names[0], 377, 8192), (names[1], 128, 1024), (names[2], 256, 163840)]
    head = ''.join('; @launch kernel=%s grid=(%d,1,1) block=(256,1,1) lds=%d\n' % l for l in launches)
    return head + HEADER + t0 + t1 + t2 + d0 + d1 + d2, launches

if __name__ == '__main__':
    txt, _ = gen_all()
    open('all.s', 'w').write(txt); print(len(txt))
```

```python
from core import *
import core, struct

S_COMZ = 39
P2MEM = {'A': False, 'B': False, 'R': False}
def poll2(kind): return P2MEM[CUR_ROLE] if kind == 'mem' else POLL2[kind]
PS_NEAR = True
FVO_TOP = False
X_EARLY = True
B_DELAY = 100
A_SYNC = True
ZP_GAP = 0
CSLEEP = {'mem': 0, 'z': 0, 'p': 0}
CPRE = {'A': 20, 'B': 35, 'R': 1}
CUR_ROLE = 'A'
POLL2 = {'mem': False, 'z': True, 'p': False}
FAST_SM = True
RTRACE = False
CLASSIC = {'mem': True, 'p': True}
CHECK1 = True
BAR_TAU = {'A': 1, 'B': 1}
S_DLY = 62; S_RND = 63; S_RSUM = 60
PACE = {'mem': 2, 'p': 4}
DLY_INIT = {'A': 0, 'B': 0, 'R': 0}
DLY_ADJ = [-3, 0, 2, 4, 8]

def comm_setup2(p):
    par = 0 if core.DYN_PAR else core.PARITY
    p('s_mov_b32 s%d, %d' % (S_COMM, OFF_COMM + (par & 1) * 8192))
    p('s_mov_b32 s%d, %d' % (S_COMZ, OFF_COMM + (2 << 20) + ((par >> 1) & 1) * 8192))

def parity_probe2(p):
    if not core.DYN_PAR: return
    l = p.newlabel('Lpp'); p('s_cmp_lg_u32 s%d, 0' % S_WAVE); p('s_cbranch_scc1 %s' % l)
    p('s_cmp_lg_u32 s%d, 0' % S_IDX); p('s_cbranch_scc1 %s' % l)
    p('v_mov_b32 v16, 0'); p('v_mov_b32 v17, -1')
    p('s_mov_b32 s54, 4')
    for pg, base in ((0, S_COMM), (1, S_COMZ)):
        p('s_mov_b32 s48, 0'); p('s_mov_b32 s49, 0')
        for i in range(4):
            for par in range(2):
                p('s_add_u32 s%d, s%d, %d' % (S_T0, base, (BLK_PROBE + i) * BLK + par * 8192 + i * 256))
                p('buffer_store_dword v17, v16, s[%d:%d], s%d offen sc1' % (S_WS, S_WS + 3, S_T0))
                p('s_waitcnt vmcnt(0)')
                p('s_memtime s[50:51]'); p('s_waitcnt lgkmcnt(0)')
                p('buffer_load_dword v18, v16, s[%d:%d], s%d offen sc1' % (S_WS, S_WS + 3, S_T0))
                p('s_waitcnt vmcnt(0)')
                p('s_memtime s[52:53]'); p('s_waitcnt lgkmcnt(0)')
                p('s_sub_u32 s50, s52, s50')
                if i > 0: p('s_add_u32 s%d, s%d, s50' % (48 + par, 48 + par))
        p('s_cmp_lt_u32 s49, s48'); p('s_cselect_b32 s50, %d, 0' % (1 << pg)); p('s_add_u32 s54, s54, s50')
    p('v_mov_b32 v17, s54')
    dbg_srd(p, 52)
    p('v_cmp_eq_u32 vcc, 0, v1'); p('v_mov_b32 v18, 0x7ff00000'); p('v_cndmask_b32 v16, v18, v16, vcc')
    p('buffer_store_dword v17, v16, s[52:55], 0 offen sc1')
    p('s_waitcnt vmcnt(0)')
    p.label(l)

def ready(p, h_only=False, half=None):
    if core.FUSED:
        import fused
        fused.wait_ready(p, off=OFF_FH if h_only else OFF_FI, half=half)

def parity_wait2(p, lds_off=10240):
    if core.FUSED and core.DYN_PAR:
        import fused
        fused.wait_ready(p, parity=lds_off)
    else:
        ready(p)
        if not core.DYN_PAR: return
        dbg_srd(p, 52)
        top = p.newlabel('Lpw'); done = p.newlabel('Lpwd')
        p('v_mov_b32 v16, 0')
        p.label(top)
        p('buffer_load_dword v17, v16, s[52:55], 0 offen sc1'); p('s_waitcnt vmcnt(0)')
        p('v_readfirstlane_b32 s50, v17')
        p('s_cmp_lg_u32 s50, 0'); p('s_cbranch_scc1 %s' % done)
        p('s_sleep 4')
        p('s_cmp_eq_u32 s%d, 0' % S_SPIN); p('s_cbranch_scc1 %s' % done)
        p('s_sub_u32 s%d, s%d, 1' % (S_SPIN, S_SPIN)); p('s_branch %s' % top)
        p.label(done)
    p('s_and_b32 s51, s50, 1'); p('s_lshl_b32 s51, s51, 13'); p('s_add_u32 s%d, s%d, s51' % (S_COMM, S_COMM))
    p('s_and_b32 s51, s50, 2'); p('s_lshl_b32 s51, s51, 12'); p('s_add_u32 s%d, s%d, s51' % (S_COMZ, S_COMZ))

def offsets2(p, mem_add=0, want=('mem', 'p', 'z')):
    if 'mem' in want:
        p('s_add_u32 s%d, s%d, %d' % (S_T0, S_STEP, mem_add)); p('s_and_b32 s%d, s%d, %d' % (S_T0, S_T0, MEM_RING - 1))
        p('s_mul_i32 s%d, s%d, %d' % (S_T0, S_T0, MEM_SLOT * BLK)); p('s_add_u32 s%d, s%d, s%d' % (S_MEMO, S_T0, S_COMM))
        if BLK_MEM: p('s_add_u32 s%d, s%d, %d' % (S_MEMO, S_MEMO, BLK_MEM * BLK))
    if 'p' in want:
        p('s_and_b32 s%d, s%d, %d' % (S_T0, S_STEP, P_RING - 1)); p('s_mul_i32 s%d, s%d, %d' % (S_T0, S_T0, P_SLOT * BLK))
        p('s_add_u32 s%d, s%d, s%d' % (S_PO, S_T0, S_COMM)); p('s_add_u32 s%d, s%d, %d' % (S_PO, S_PO, BLK_P * BLK))
    if 'z' in want:
        p('s_and_b32 s%d, s%d, %d' % (S_T0, S_STEP, Z_RING - 1)); p('s_mul_i32 s%d, s%d, %d' % (S_T0, S_T0, 40 * BLK))
        p('s_add_u32 s%d, s%d, s%d' % (S_ZO, S_T0, S_COMZ))

def check_regs(p, regs, tmp, quads=None):
    r = list(regs)
    if CHECK1 and quads: r = list(quads)
    if len(r) < 3: r = r + [r[0]] * (3 - len(r))
    p('v_max3_u32 v%d, v%d, v%d, v%d' % (tmp, r[0], r[1], r[2])); r = r[3:]
    while len(r) >= 2:
        p('v_max3_u32 v%d, v%d, v%d, v%d' % (tmp, tmp, r[0], r[1])); r = r[2:]
    if r: p('v_max_u32 v%d, v%d, v%d' % (tmp, tmp, r[0]))
    p('v_cmp_eq_u32 vcc, -1, v%d' % tmp)

def budget(p, giveup, again):
    p('s_cmp_eq_u32 s%d, 0' % S_SPIN); p('s_cbranch_scc1 %s' % giveup)
    p('s_sub_u32 s%d, s%d, 1' % (S_SPIN, S_SPIN)); p('s_branch %s' % again)

def multi_poll(p, issue, n, regs_of_set, tmp, kind, variant, first_hook=None, pre_issue=None, quads=None):
    if CLASSIC[kind]:
        top = p.newlabel('Lcl'); ok = p.newlabel('Lclok')
        if CPRE[CUR_ROLE]: p('s_sleep %d' % CPRE[CUR_ROLE])
        if pre_issue:
            pre_issue(); p('s_waitcnt vmcnt(0)'); first_hook()
            if ZP_GAP: p('s_sleep %d' % ZP_GAP)
        if poll2(kind): issue(0, 0)
        p.label(top)
        if core.PROF: p('s_memtime s[64:65]'); p('s_add_u32 s68, s68, 1')
        issue(0, 0); p('s_waitcnt vmcnt(%d)' % (n if poll2(kind) else 0)); check_regs(p, regs_of_set(0), tmp, quads(0) if (quads and not poll2(kind)) else None); p('s_cbranch_vccz %s' % ok)
        if CSLEEP[kind]: p('s_sleep %d' % CSLEEP[kind])
        budget(p, ok, top)
        p.label(ok)
        if core.PROF:
            p('s_memtime s[66:67]'); p('s_waitcnt lgkmcnt(0)'); p('s_sub_u32 s64, s66, s64'); p('s_add_u32 s69, s69, s64')
        p('s_mov_b32 s%d, 1' % S_RND)
        variant(0)
        return
    V = [p.newlabel('Lv%d' % j) for j in range(4)]; join = p.newlabel('Lvj'); fb = p.newlabel('Lfb'); fbok = p.newlabel('Lfbok')
    dl = p.newlabel('Ldl'); dld = p.newlabel('Ldld')
    p('s_mov_b32 s%d, s%d' % (S_T1, S_DLY))
    p.label(dl); p('s_cmp_eq_u32 s%d, 0' % S_T1); p('s_cbranch_scc1 %s' % dld)
    p('s_sleep 1'); p('s_sub_u32 s%d, s%d, 1' % (S_T1, S_T1)); p('s_branch %s' % dl)
    p.label(dld)
    if pre_issue: pre_issue()
    issue(0, 0); p('s_sleep %d' % PACE[kind]); issue(1, 1); p('s_sleep %d' % PACE[kind]); issue(2, 2)
    p('s_waitcnt vmcnt(%d)' % (2 * n))
    if first_hook: first_hook()
    check_regs(p, regs_of_set(0), tmp); p('s_cbranch_vccz %s' % V[0])
    issue(3, 3)
    p('s_waitcnt vmcnt(%d)' % (2 * n)); check_regs(p, regs_of_set(1), tmp); p('s_cbranch_vccz %s' % V[1])
    p('s_waitcnt vmcnt(%d)' % n); check_regs(p, regs_of_set(2), tmp); p('s_cbranch_vccz %s' % V[2])
    p('s_waitcnt vmcnt(0)'); check_regs(p, regs_of_set(3), tmp); p('s_cbranch_vccz %s' % V[3])
    p.label(fb)
    issue(0, 0); p('s_waitcnt vmcnt(0)'); check_regs(p, regs_of_set(0), tmp); p('s_cbranch_vccz %s' % fbok)
    budget(p, fbok, fb)
    p.label(fbok)
    p('s_mov_b32 s%d, 4' % S_RND)
    lv0 = p.newlabel('Lv0b'); p('s_branch %s' % lv0)
    for j in range(4):
        p.label(V[j]); p('s_mov_b32 s%d, %d' % (S_RND, j))
        if j == 0: p.label(lv0)
        variant(j)
        if j < 3: p('s_branch %s' % join)
    p.label(join)

def rnd_write(p, lds_off, t1, t2):
    p('s_lshl_b32 s%d, s%d, 2' % (S_T1, S_WAVE)); p('s_add_u32 s%d, s%d, %d' % (S_T1, S_T1, lds_off))
    p('v_mov_b32 v%d, s%d' % (t1, S_T1)); p('v_mov_b32 v%d, s%d' % (t2, S_RND)); p('ds_write_b32 v%d, v%d' % (t1, t2))
    if core.PROF: p('s_add_u32 s%d, s%d, s%d' % (S_RSUM, S_RSUM, S_RND))

def dly_update(p, lds_off, t):
    p('v_mov_b32 v%d, %d' % (t + 4, lds_off)); p('ds_read_b128 %s, v%d' % (vr(t, 4), t + 4)); p('s_waitcnt lgkmcnt(0)')
    p('v_max3_u32 v%d, v%d, v%d, v%d' % (t, t, t + 1, t + 2)); p('v_max_u32 v%d, v%d, v%d' % (t, t, t + 3))
    p('v_readfirstlane_b32 s%d, v%d' % (S_RND, t))
    p('s_mov_b32 s%d, %d' % (S_T1, DLY_ADJ[0]))
    for r in range(1, 5):
        p('s_cmp_eq_u32 s%d, %d' % (S_RND, r)); p('s_cselect_b32 s%d, %d, s%d' % (S_T1, DLY_ADJ[r], S_T1))
    p('s_add_i32 s%d, s%d, s%d' % (S_DLY, S_DLY, S_T1)); p('s_max_i32 s%d, s%d, 0' % (S_DLY, S_DLY)); p('s_min_i32 s%d, s%d, 120' % (S_DLY, S_DLY))
    if RTRACE:
        l = p.newlabel('Lrt'); p('s_cmp_lg_u32 s%d, 0' % S_WAVE); p('s_cbranch_scc1 %s' % l)
        p('s_lshl_b32 s%d, s%d, 8' % (S_T7, S_STEP)); p('s_add_u32 s%d, s%d, s2' % (S_T7, S_T7)); p('s_lshl_b32 s%d, s%d, 4' % (S_T7, S_T7)); p('s_add_u32 s%d, s%d, %d' % (S_T7, S_T7, OFF_TRACE + 12))
        p('s_lshl_b32 s%d, s%d, 8' % (S_T1, S_DLY)); p('s_or_b32 s%d, s%d, s%d' % (S_T1, S_T1, S_RND))
        p('v_mov_b32 v%d, s%d' % (t, S_T1)); p('v_mov_b32 v%d, 0' % (t + 1))
        p('buffer_store_dword v%d, v%d, s[%d:%d], s%d offen' % (t, t + 1, S_WS, S_WS + 3, S_T7))
        p.label(l)

def gset(): return 40 if CLASSIC['mem'] else 80
TRACE_ON = False
def gather_and_project(p, lg, ntile, acc0, wres_v, kind, hooks, tail_order=None, wave0_hooks=None):
    def issue(st, cp):
        if cp: p('s_add_u32 s%d, s%d, %d' % (S_T2, S_MEMO, cp * MEM_COPY * BLK))
        for j in range(3):
            p('buffer_load_dwordx4 %s, v%d, s[%d:%d], s%d offen sc1' % (vr(gset() + 12 * st + 4 * j, 4), 4 + j, S_WS, S_WS + 3, S_T2 if cp else S_MEMO))
    def ringreg(tau): return RING + 4 * ((tau - 3) % 3)
    def rd(tau):
        a, off = memfrag_addr(tau)
        p('ds_read_b128 %s, v%d offset:%d' % (vr(ringreg(tau), 4), a, off)); lg.issue(('m', tau))
    base_q = list(lg.q); end_q = []
    def variant(st):
        lg.q = list(base_q)
        pf(p, 1)
        trace(p, 0, TRACE_ON)
        fr = gset() + 12 * st
        for j in range(3):
            p('ds_write_b128 v%d, %s' % (RING + j, vr(fr + 4 * j, 4))); lg.issue(('mw', j))
        for tau in range(3):
            if tau == BAR_TAU[CUR_ROLE]:
                lg.wait(('mw', 2)); p('s_barrier')
                for t in (3, 4, 5): rd(t)
            for tile in range(ntile): smf(p, acc0 + 4 * tile, fr + 4 * tau, tau * ntile + tile, lg, wres_v)
        end_q[:] = list(lg.q)
    multi_poll(p, issue, 3, lambda st: range(gset() + 12 * st, gset() + 12 * st + 12), 7, 'mem', variant, quads=lambda st: [gset() + 12 * st + 4 * j + 3 for j in range(3)])
    lg.q = list(end_q)
    last = 8 if tail_order else 10
    def rest(t0, hk):
        for tau in range(t0, last):
            lg.wait(('m', tau))
            for tile in range(ntile): smf(p, acc0 + 4 * tile, ringreg(tau), tau * ntile + tile, lg, wres_v)
            if tau + 3 < 10: rd(tau + 3)
            if tau in hk: hk[tau]()
        if tail_order: tail_order(ringreg)
    if wave0_hooks is None:
        rest(3, hooks)
    else:
        lo = p.newlabel('Lnw0'); lj = p.newlabel('Lnw0j')
        q0 = list(lg.q)
        p('s_cmp_lg_u32 s%d, 0' % S_WAVE); p('s_cbranch_scc1 %s' % lo)
        rest(3, wave0_hooks); p('s_branch %s' % lj)
        p.label(lo); lg.q = list(q0); rest(3, hooks)
        p.label(lj)

def gen_A2(p, trace_on=False, st=False):
    global TRACE_ON, CUR_ROLE
    TRACE_ON = trace_on; CUR_ROLE = 'A'
    lg = Cnt(p, 'lgkmcnt', 15); vm = Cnt(p, 'vmcnt', 63)
    h = S_IDX
    srd(p, S_W1, KA['Wq'], 640 * 12288); srd(p, S_W2, KA['Wk'], 640 * 12288)
    common_lane_setup(p)
    p('s_waitcnt lgkmcnt(0)')
    mem_gather_setup(p, A_MEMX)
    p('s_mul_i32 s%d, s%d, 24576' % (S_T0, S_WAVE)); p('s_add_u32 s%d, s%d, 65536' % (S_T0, S_T0)); p('v_add_u32 v15, s%d, v2' % S_T0)
    voffs = [80, 81, 82]
    stage_offsets(p, voffs, 6, 12288, 1, 83, 84)
    p('v_lshrrev_b32 v83, 4, v1'); p('v_lshlrev_b32 v83, 3, v83'); p('v_bfe_u32 v84, v1, 2, 2'); p('v_add_u32 v83, v83, v84')
    p('v_mul_u32_u24 v83, 96, v83'); p('v_and_b32 v84, 3, v1'); p('v_lshlrev_b32 v84, 3, v84'); p('v_add_u32 v85, v83, v84')
    p('s_lshl_b32 s%d, s%d, 14' % (S_T4, S_WAVE)); p('v_add_u32 v85, s%d, v85' % S_T4)
    p('s_mul_i32 s%d, s%d, 384' % (S_T5, h)); p('s_mul_i32 s%d, s%d, 96' % (S_T0, S_WAVE)); p('s_add_u32 s%d, s%d, s%d' % (S_T5, S_T5, S_T0))
    p('s_mul_i32 s%d, s%d, 3' % (S_T6, S_WAVE))
    jobs = []
    for tau in range(10):
        for half in range(2):
            for mat in range(2):
                def soff(dst, tau=tau, half=half):
                    p('s_add_u32 s%d, s%d, %d' % (dst, S_T6, tau))
                    p('s_sub_u32 s%d, s%d, 10' % (S_T2, dst)); p('s_cmp_ge_u32 s%d, 10' % dst); p('s_cselect_b32 s%d, s%d, s%d' % (dst, S_T2, dst))
                    p('s_mul_i32 s%d, s%d, %d' % (dst, dst, 64 * 12288))
                    p('s_add_u32 s%d, s%d, s%d' % (dst, dst, S_T5))
                    if half: p('s_add_u32 s%d, s%d, %d' % (dst, dst, 32 * 12288))
                dests = []
                for x in range(3):
                    kind, n = UM[tau * 6 + mat * 3 + x]
                    if kind == 'reg': dests.append((x * 32, ('reg', unit_reg(n, 4 * half, 2), unit_reg(n, 4 * half + 2, 2))))
                    else: dests.append((x * 32, ('lds', n * 2048 + half * 1024)))
                jobs.append(dict(srd=S_W1 if mat == 0 else S_W2, soff=soff, dests=dests))
    load_weights_type1(p, jobs, 85, 3072, 5, voffs, 3, 96, lg, vm, 15, 88, S_T4)
    p('s_barrier')
    p('v_and_b32 v81, 3, v1'); p('v_lshlrev_b32 v80, 6, v81')
    p('v_bfe_u32 v81, v1, 2, 2'); p('v_lshlrev_b32 v81, 4, v81'); p('v_add_u32 v80, v80, v81')
    p('v_lshrrev_b32 v81, 4, v1'); p('v_lshlrev_b32 v81, 2, v81'); p('v_add_u32 v80, v80, v81')
    p('s_mul_i32 s%d, s%d, 768' % (S_T0, S_WAVE)); p('s_add_u32 s%d, s%d, %d' % (S_T0, S_T0, A_QX)); p('v_add_u32 v11, s%d, v80' % S_T0)
    p('v_bfe_u32 v80, v1, 2, 2'); p('v_lshlrev_b32 v80, 6, v80')
    p('v_lshrrev_b32 v81, 4, v1'); p('v_lshlrev_b32 v81, 4, v81'); p('v_add_u32 v80, v80, v81')
    p('v_and_b32 v81, 1, v1'); p('v_lshlrev_b32 v81, 3, v81'); p('v_add_u32 v80, v80, v81'); p('v_add_u32 v12, %d, v80' % A_QX)
    p('v_lshrrev_b32 v80, 5, v1'); p('v_lshlrev_b32 v80, 8, v80')
    p('v_bfe_u32 v81, v1, 4, 1'); p('v_lshlrev_b32 v81, 4, v81'); p('v_add_u32 v80, v80, v81')
    p('v_and_b32 v81, 7, v1'); p('v_lshlrev_b32 v82, 5, v81'); p('v_add_u32 v80, v80, v82'); p('v_lshlrev_b32 v82, 4, v81')
    p('v_bfe_u32 v83, v1, 3, 1'); p('v_mul_u32_u24 v83, %d, v83' % (P_COPY * BLK)); p('v_add_u32 v80, v80, v83')
    p('s_lshr_b32 s%d, s%d, 4' % (S_T1, h)); p('s_lshl_b32 s%d, s%d, 14' % (S_T1, S_T1)); p('s_and_b32 s%d, s%d, 15' % (S_T0, h)); p('s_lshl_b32 s%d, s%d, 9' % (S_T0, S_T0)); p('s_add_u32 s%d, s%d, s%d' % (S_T0, S_T0, S_T1))
    p('v_add_u32 v13, s%d, v80' % S_T0)
    if CLASSIC['p']: p('v_mov_b32 v82, 0x7ff00000'); p('v_and_b32 v83, 8, v1'); p('v_cmp_eq_u32 vcc, 0, v83'); p('v_cndmask_b32 v13, v82, v13, vcc'); p('v_and_b32 v81, 7, v1'); p('v_lshlrev_b32 v82, 4, v81')
    p('v_bfe_u32 v83, v1, 3, 2'); p('v_mul_u32_u24 v83, %d, v83' % (P_COPY * BLK)); p('v_add_u32 v80, v82, v83')
    p('s_lshl_b32 s%d, s%d, 7' % (S_T0, h)); p('s_add_u32 s%d, s%d, %d' % (S_T0, S_T0, 2 * BLK)); p('v_add_u32 v14, s%d, v80' % S_T0)
    p('v_mov_b32 v82, 0x7ff00000'); p('v_cmp_gt_u32 vcc, %d, v1' % (8 if CLASSIC['p'] else 32)); p('v_cndmask_b32 v14, v82, v14, vcc')
    p('s_mov_b32 s%d, 0' % S_MASK); p('s_mov_b32 s%d, -1' % (S_MASK + 1))
    p('s_mov_b32 s74, 0xff00ff00'); p('s_mov_b32 s75, 0xff00ff00')
    p('s_mov_b32 s%d, 0x%x' % (S_C, struct.unpack('<I', struct.pack('<f', 192 ** -0.5 * 1.4426950408889634))[0]))
    p('s_mov_b32 s%d, 0' % S_STEP)
    p('s_mul_i32 s%d, s%d, 24576' % (S_QKO, h)); p('s_add_u32 s%d, s%d, %d' % (S_QKO, S_QKO, OFF_QK))
    stamp(p, 3, st)
    parity_wait2(p)
    def qk_dma(bufsel_s):
        p('s_mov_b32 s%d, s%d' % (S_T1, S_QKO))
        for j in range(24):
            p('s_add_u32 s%d, s%d, %d' % (S_T0, bufsel_s, j * 1024)); p('s_mov_b32 m0, s%d' % S_T0)
            p('buffer_load_dwordx4 v2, s[%d:%d], s%d offen sc1 lds' % (S_WS, S_WS + 3, S_T1))
            if j < 23: p('s_add_u32 s%d, s%d, 1024' % (S_T1, S_T1))
    def KS(jt, u): return 80 + 4 * (jt * 6 + u)
    def qk_wait(add, sampled=False):
        p('s_add_u32 s%d, s%d, %d' % (S_T3, S_STEP, add))
        lok = p.newlabel('LAok')
        if sampled: p('v_cmp_gt_u32 vcc, s%d, v1' % S_T3); p('s_cbranch_vccz %s' % lok)
        wait_flags(p, 0, F_QK, S_T3, 7)
        p.label(lok)
    tlb_warm(p, S_WS, OFF_QK, 64 * 32 * 24576, 36); tlb_warm(p, S_WS, OFF_PS, 64 * 81920 + (2 << 20), 38); p('s_waitcnt vmcnt(0)')
    p('s_lshl_b32 s%d, s%d, %d' % (S_T0, h, FSH)); p('v_mov_b32 v0, s%d' % S_T0)
    l = p.newlabel('La')
    p('s_cmp_lg_u32 s%d, 3' % S_WAVE); p('s_cbranch_scc1 %s' % l)
    qk_wait(1)
    p('s_mov_b32 s%d, %d' % (S_T3, A_QKB)); qk_dma(S_T3)
    p('s_waitcnt vmcnt(0)')
    p.label(l)
    stamp(p, 1, st)
    pf_init(p); p('s_mov_b32 s%d, %d' % (S_DLY, DLY_INIT['A'])); p('s_mov_b32 s%d, 0' % S_RSUM); p('s_mov_b32 s%d, 1' % S_RND); rnd_write(p, A_QX, 40, 41)
    loop = p.newlabel('LAloop'); core.loop_align(p); p.label(loop)
    lg.reset()
    pf(p, 0)
    for r in range(16, 40): p('v_mov_b32 v%d, 0' % r)
    wst_load(p, 0, 15, lg); wst_load(p, 1, 15, lg)
    offsets2(p, 0, ('mem', 'p')); mem_lds_addr(p)
    p('s_mov_b32 s%d, %d' % (S_T0, F_QK))
    p('buffer_load_dword v1, v0, s[%d:%d], s%d offen sc1' % (S_WS, S_WS + 3, S_T0))
    p('s_waitcnt lgkmcnt(0)'); lg.reset()
    if not CLASSIC['mem']: p('s_barrier'); dly_update(p, A_QX, 40)
    elif A_SYNC: p('s_barrier')
    def kread(lst):
        for (jt, u) in lst:
            p('ds_read_b128 %s, v7 offset:%d' % (vr(KS(jt, u), 4), jt * 6144 + u * 1024)); lg.issue(('k', jt, u))
    def h3():
        if not CLASSIC['mem']: p('s_waitcnt vmcnt(0)')
        p('s_and_b32 s%d, s%d, 1' % (S_T0, S_STEP)); p('s_mul_i32 s%d, s%d, 24576' % (S_T0, S_T0)); p('s_add_u32 s%d, s%d, %d' % (S_T0, S_T0, A_QKB + 12288))
        p('v_add_u32 v7, s%d, v2' % S_T0)
        kread([(0, 0), (1, 0)])
    w0hooks = {3: h3, 4: lambda: kread([(0, 1), (1, 1), (0, 2)]), 5: lambda: kread([(1, 2), (0, 3)]), 6: lambda: kread([(1, 3), (0, 4), (1, 4)]), 7: lambda: kread([(0, 5), (1, 5)])}
    hooks = {} if CLASSIC['mem'] else {4: lambda: p('s_waitcnt vmcnt(0)')}
    def exch(x):
        L = []
        for a, off in ((16 + 4 * x, x * 256), (28 + 4 * x, 3072 + x * 256)):
            L += ['v_add_f32 v%d, v%d, v%d' % (a, a, a + 1), 'v_add_f32 v%d, v%d, v%d' % (a + 2, a + 2, a + 3),
                  'v_cvt_pk_bf16_f32 v%d, v%d, v%d' % (a, a, a + 2), 'ds_write_b32 v11, v%d offset:%d' % (a, off)]
        return L
    def tail_order(ringreg):
        lg.wait(('m', 8));
        seq = []
        for x in range(3):
            for tau in (8, 9): seq += [(tau, x), (tau, 3 + x)]
        fill = []
        for i, (tau, tile) in enumerate(seq):
            if i == 2: lg.wait(('m', 9))
            smf(p, 16 + 4 * tile, ringreg(tau), tau * 6 + tile, lg, 15)
            if i == 5: fill += exch(0)
            if i == 9: fill += exch(1)
            for _ in range(3):
                if fill:
                    ins = fill.pop(0); p(ins)
                    if ins.startswith('ds_'): lg.issue('qx')
        for ins in fill + exch(2):
            p(ins)
            if ins.startswith('ds_'): lg.issue('qx')
    gather_and_project(p, lg, 6, 16, 15, 'mem', hooks, tail_order, w0hooks)
    pf(p, 2)
    p('s_waitcnt vmcnt(0) lgkmcnt(0)' if P2MEM['A'] else 's_waitcnt lgkmcnt(0)'); lg.reset()
    p('s_barrier')
    pf(p, 3)
    trace(p, 1, trace_on)
    lw = p.newlabel('LAw'); lend = p.newlabel('LAe'); lw3 = p.newlabel('LAw3')
    QF = 16; KM = 40; SA = 64; SM = 72
    def scores(kind):
        lg.reset()
        if kind == 'seg':
            p('s_and_b32 s%d, s%d, 1' % (S_T0, S_STEP)); p('s_mul_i32 s%d, s%d, 24576' % (S_T0, S_T0)); p('s_add_u32 s%d, s%d, %d' % (S_T0, S_T0, A_QKB))
            p('s_sub_u32 s%d, s%d, 1' % (S_T1, S_WAVE)); p('s_mul_i32 s%d, s%d, 6144' % (S_T1, S_T1)); p('v_add_u32 v7, s%d, v2' % S_T0); p('s_add_u32 s%d, s%d, s%d' % (S_T0, S_T0, S_T1)); p('v_add_u32 v76, s%d, v2' % S_T0)
        for u in range(6):
            if kind == 'seg':
                for jt in range(2):
                    p('ds_read_b128 %s, v7 offset:%d' % (vr(KS(jt, u), 4), 12288 + jt * 6144 + u * 1024)); lg.issue(('q', u))
            if kind == 'mem':
                for z in range(2):
                    p('ds_read_b64_tr_b16 %s, v12 offset:%d' % (vr(QF + 4 * u + 2 * z, 2), (2 * u + z) * 256)); lg.issue(('q', u))
            else:
                p('ds_read_b128 %s, v76 offset:%d' % (vr(QF + 4 * u, 4), u * 1024)); lg.issue(('q', u))
            for z in range(2):
                p('ds_read_b64_tr_b16 %s, v12 offset:%d' % (vr(KM + 4 * u + 2 * z, 2), 3072 + (2 * u + z) * 256)); lg.issue(('q', u))
            if u >= 2:
                uu = u - 2
                lg.wait(('q', uu)); mf(uu)
        for uu in (4, 5): lg.wait(('q', uu)); mf(uu)
        softmax(kind)
    def mf(u):
        for jt in range(2):
            p('v_mfma_f32_16x16x32_bf16 %s, %s, %s, %s' % (vr(SA + 4 * jt, 4), vr(KS(jt, u), 4), vr(QF + 4 * u, 4), '0' if u == 0 else vr(SA + 4 * jt, 4)))
        p('v_mfma_f32_16x16x32_bf16 %s, %s, %s, %s' % (vr(SM, 4), vr(KM + 4 * u, 4), vr(QF + 4 * u, 4), '0' if u == 0 else vr(SM, 4)))
    def softmax_mem():
        DUP = 72 + 0
        X = [76, 77, 78, 79]; Y = [40, 41]
        p('v_mov_b32 v42, 0xff800000')
        for r in range(4): p('v_cndmask_b32 v%d, v%d, v%d, s[74:75]' % (X[r], SA + r, SA + 4 + r))
        for r in range(2):
            p('v_cndmask_b32 v%d, v%d, v%d, s[74:75]' % (Y[r], SM + r, SM + 2 + r))
            p('v_cndmask_b32 v%d, v%d, v42, s[%d:%d]' % (Y[r], Y[r], S_MASK, S_MASK + 1))
        vals = X + Y
        p('v_max3_f32 v17, v%d, v%d, v%d' % tuple(X[0:3])); p('v_max3_f32 v17, v17, v%d, v%d' % (X[3], Y[0])); p('v_max_f32 v17, v17, v%d' % Y[1])
        p('v_max_f32_dpp v17, v17, v17 row_ror:8 row_mask:0xf bank_mask:0xf')
        p('v_mov_b32 v18, v17'); p('v_permlane16_swap_b32 v17, v18'); p('v_max_f32 v17, v17, v18')
        p('v_mov_b32 v18, v17'); p('v_permlane32_swap_b32 v17, v18'); p('v_max_f32 v17, v17, v18')
        p('v_mul_f32 v17, s%d, v17' % S_C)
        for v in vals: p('v_fma_f32 v%d, v%d, s%d, -v17' % (v, v, S_C))
        for v in vals: p('v_exp_f32 v%d, v%d' % (v, v))
        p('v_add_f32 v18, v%d, v%d' % (X[0], X[1])); p('v_add_f32 v19, v%d, v%d' % (X[2], X[3])); p('v_add_f32 v43, v%d, v%d' % (Y[0], Y[1]))
        p('v_add_f32 v18, v18, v19'); p('v_add_f32 v18, v18, v43')
        p('v_add_f32_dpp v18, v18, v18 row_ror:8 row_mask:0xf bank_mask:0xf')
        p('v_mov_b32 v19, v18'); p('v_permlane16_swap_b32 v18, v19'); p('v_add_f32 v18, v18, v19')
        p('v_mov_b32 v19, v18'); p('v_permlane32_swap_b32 v18, v19'); p('v_add_f32 v18, v18, v19')
        p('v_rcp_f32 v18, v18')
        W = 20
        for v in X: p('v_mul_f32 v%d, v%d, v18' % (v, v))
        p('v_cvt_pk_bf16_f32 v%d, v%d, v%d' % (W + 0, X[0], X[1])); p('v_cvt_pk_bf16_f32 v%d, v%d, v%d' % (W + 2, X[2], X[3]))
        for v in Y: p('v_mul_f32 v%d, v%d, v18' % (v, v))
        p('v_permlane16_swap_b32 v%d, v%d' % (W + 0, W + 2))
        p('v_cvt_pk_bf16_f32 v%d, v%d, v%d' % (W + 4, Y[0], Y[1]))
        p('v_mov_b32_dpp v%d, v%d row_ror:8 row_mask:0xf bank_mask:0xf' % (W + 1, W + 0)); p('v_mov_b32_dpp v%d, v%d row_ror:8 row_mask:0xf bank_mask:0xf' % (W + 3, W + 2))
        p('v_mov_b32 v%d, v%d' % (W + 5, W + 4))
        p('buffer_store_dwordx4 %s, v13, s[%d:%d], s%d offen sc1' % (vr(W, 4), S_WS, S_WS + 3, S_PO))
        p('v_permlane16_swap_b32 v%d, v%d' % (W + 4, W + 5))
        p('v_mov_b32_dpp v%d, v%d row_ror:8 row_mask:0xf bank_mask:0xf' % (W + 6, W + 4)); p('v_mov_b32_dpp v%d, v%d row_ror:8 row_mask:0xf bank_mask:0xf' % (W + 7, W + 5))
        p('buffer_store_dwordx4 %s, v14, s[%d:%d], s%d offen sc1' % (vr(W + 4, 4), S_WS, S_WS + 3, S_PO))
    def softmax(kind):
        if kind == 'mem' and CLASSIC['p'] and FAST_SM: return softmax_mem()
        vals = list(range(SA, SA + 8)) + list(range(SM, SM + 4))
        p('v_mov_b32 v76, 0xff800000')
        if kind == 'seg':
            p('v_lshrrev_b32 v77, 4, v2'); p('v_and_b32 v78, 15, v77'); p('v_lshrrev_b32 v77, 4, v77'); p('v_lshlrev_b32 v77, 2, v77'); p('v_sub_u32 v77, v78, v77')
            p('s_sub_u32 s%d, s%d, 1' % (S_T1, S_WAVE)); p('s_lshl_b32 s%d, s%d, 4' % (S_T1, S_T1)); p('v_add_u32 v77, s%d, v77' % S_T1)
            for jt in range(2):
                for r in range(4):
                    p('v_cmp_le_i32 vcc, %d, v77' % (16 * jt + r))
                    p('v_cndmask_b32 v%d, v76, v%d, vcc' % (SA + 4 * jt + r, SA + 4 * jt + r))
        p('v_max3_f32 v17, v%d, v%d, v%d' % tuple(vals[0:3]))
        for i in range(3, 7, 2): p('v_max3_f32 v17, v17, v%d, v%d' % (vals[i], vals[i + 1]))
        for r in range(4): p('v_cndmask_b32 v%d, v%d, v76, s[%d:%d]' % (SM + r, SM + r, S_MASK, S_MASK + 1))
        p('v_max3_f32 v17, v17, v%d, v%d' % (vals[7], vals[8])); p('v_max3_f32 v17, v17, v%d, v%d' % (vals[9], vals[10])); p('v_max_f32 v17, v17, v%d' % vals[11])
        p('v_mov_b32 v18, v17'); p('v_permlane16_swap_b32 v17, v18'); p('v_max_f32 v17, v17, v18')
        p('v_mov_b32 v18, v17'); p('v_permlane32_swap_b32 v17, v18'); p('v_max_f32 v17, v17, v18')
        p('v_mul_f32 v17, s%d, v17' % S_C)
        for v in vals: p('v_fma_f32 v%d, v%d, s%d, -v17' % (v, v, S_C))
        for v in vals: p('v_exp_f32 v%d, v%d' % (v, v))
        p('v_add_f32 v18, v%d, v%d' % (vals[0], vals[1])); p('v_add_f32 v19, v%d, v%d' % (vals[2], vals[3]))
        for i in range(4, 12, 2):
            p('v_add_f32 v18, v18, v%d' % vals[i]); p('v_add_f32 v19, v19, v%d' % vals[i + 1])
        p('v_add_f32 v18, v18, v19')
        p('v_mov_b32 v19, v18'); p('v_permlane16_swap_b32 v18, v19'); p('v_add_f32 v18, v18, v19')
        p('v_mov_b32 v19, v18'); p('v_permlane32_swap_b32 v18, v19'); p('v_add_f32 v18, v18, v19')
        p('v_rcp_f32 v18, v18')
        W = 20
        if kind == 'mem':
            for v in vals[:8]: p('v_mul_f32 v%d, v%d, v18' % (v, v))
            p('v_cvt_pk_bf16_f32 v%d, v%d, v%d' % (W + 0, SA + 0, SA + 1)); p('v_cvt_pk_bf16_f32 v%d, v%d, v%d' % (W + 2, SA + 2, SA + 3))
            p('v_cvt_pk_bf16_f32 v%d, v%d, v%d' % (W + 1, SA + 4, SA + 5)); p('v_cvt_pk_bf16_f32 v%d, v%d, v%d' % (W + 3, SA + 6, SA + 7))
            for v in vals[8:]: p('v_mul_f32 v%d, v%d, v18' % (v, v))
            p('v_permlane16_swap_b32 v%d, v%d' % (W + 0, W + 2)); p('v_permlane16_swap_b32 v%d, v%d' % (W + 1, W + 3))
            p('v_cvt_pk_bf16_f32 v%d, v%d, v%d' % (W + 4, SM + 0, SM + 1)); p('v_cvt_pk_bf16_f32 v%d, v%d, v%d' % (W + 6, SM + 2, SM + 3))
            p('s_add_u32 s%d, s%d, %d' % (S_T0, S_PO, 2 * P_COPY * BLK))
            p('buffer_store_dwordx4 %s, v13, s[%d:%d], s%d offen sc1' % (vr(W, 4), S_WS, S_WS + 3, S_PO))
            p('v_mov_b32 v%d, v%d' % (W + 5, W + 4)); p('v_mov_b32 v%d, v%d' % (W + 7, W + 6))
            if not CLASSIC['p']: p('buffer_store_dwordx4 %s, v13, s[%d:%d], s%d offen sc1' % (vr(W, 4), S_WS, S_WS + 3, S_T0))
            p('v_permlane16_swap_b32 v%d, v%d' % (W + 4, W + 5)); p('v_permlane16_swap_b32 v%d, v%d' % (W + 6, W + 7))
            p('buffer_store_dwordx4 %s, v14, s[%d:%d], s%d offen sc1' % (vr(W + 4, 4), S_WS, S_WS + 3, S_PO))
        else:
            for v in vals: p('v_mul_f32 v%d, v%d, v18' % (v, v))
            for k in range(4): p('v_cvt_pk_bf16_f32 v%d, v%d, v%d' % (W + k, SA + 2 * k, SA + 2 * k + 1))
            p('v_cvt_pk_bf16_f32 v%d, v%d, v%d' % (W + 4, SM + 0, SM + 1)); p('v_cvt_pk_bf16_f32 v%d, v%d, v%d' % (W + 5, SM + 2, SM + 3))
            if PS_NEAR:
                p('s_and_b32 s%d, s%d, %d' % (S_T0, S_STEP, PS_RING - 1)); p('s_mul_i32 s%d, s%d, %d' % (S_T0, S_T0, 10 * BLK)); p('s_add_u32 s%d, s%d, s%d' % (S_T0, S_T0, S_COMM)); p('s_add_u32 s%d, s%d, %d' % (S_T0, S_T0, BLK_PS * BLK))
                p('s_sub_u32 s%d, s%d, 1' % (S_T1, S_WAVE)); p('s_lshl_b32 s%d, s%d, 2' % (S_T2, S_T1)); p('s_lshr_b32 s%d, s%d, 3' % (S_T3, h)); p('s_add_u32 s%d, s%d, s%d' % (S_T2, S_T2, S_T3)); p('s_lshl_b32 s%d, s%d, 14' % (S_T2, S_T2))
                p('s_and_b32 s%d, s%d, 7' % (S_T3, h)); p('s_lshl_b32 s%d, s%d, 10' % (S_T3, S_T3)); p('s_add_u32 s%d, s%d, s%d' % (S_T2, S_T2, S_T3)); p('s_add_u32 s%d, s%d, s%d' % (S_T2, S_T2, S_T0))
            else:
                p('s_mul_i32 s%d, s%d, 81920' % (S_T0, S_STEP)); p('s_sub_u32 s%d, s%d, 1' % (S_T1, S_WAVE)); p('s_lshl_b32 s%d, s%d, 15' % (S_T2, S_T1))
                p('s_add_u32 s%d, s%d, s%d' % (S_T2, S_T2, S_T0)); p('s_lshl_b32 s%d, s%d, 10' % (S_T3, h)); p('s_add_u32 s%d, s%d, s%d' % (S_T2, S_T2, S_T3)); p('s_add_u32 s%d, s%d, %d' % (S_T2, S_T2, OFF_PS))
            p('buffer_store_dwordx4 %s, v2, s[%d:%d], s%d offen sc1' % (vr(W, 4), S_WS, S_WS + 3, S_T2))
            p('v_mov_b32 v%d, v%d' % (W + 6, W + 4)); p('v_mov_b32 v%d, v%d' % (W + 7, W + 5))
            p('v_permlane16_swap_b32 v%d, v%d' % (W + 4, W + 6)); p('v_permlane16_swap_b32 v%d, v%d' % (W + 5, W + 7))
            if PS_NEAR:
                p('s_add_u32 s%d, s%d, 8' % (S_T1, S_T1)); p('s_lshl_b32 s%d, s%d, 14' % (S_T1, S_T1)); p('s_add_u32 s%d, s%d, s%d' % (S_T0, S_T0, S_T1)); p('s_lshl_b32 s%d, s%d, 8' % (S_T3, h)); p('s_add_u32 s%d, s%d, s%d' % (S_T0, S_T0, S_T3))
            else:
                p('s_lshl_b32 s%d, s%d, 13' % (S_T1, S_T1)); p('s_add_u32 s%d, s%d, s%d' % (S_T0, S_T0, S_T1)); p('s_lshl_b32 s%d, s%d, 8' % (S_T3, h)); p('s_add_u32 s%d, s%d, s%d' % (S_T0, S_T0, S_T3)); p('s_add_u32 s%d, s%d, %d' % (S_T0, S_T0, OFF_PS + 65536))
            p('v_mov_b32 v42, 0x7ff00000'); p('v_cmp_gt_u32 vcc, 256, v2'); p('v_cndmask_b32 v42, v42, v2, vcc')
            p('buffer_store_dwordx4 %s, v42, s[%d:%d], s%d offen sc1' % (vr(W + 4, 4), S_WS, S_WS + 3, S_T0))
    p('s_cmp_lg_u32 s%d, 0' % S_WAVE); p('s_cbranch_scc1 %s' % lw)
    scores('mem')
    pf(p, 4)
    pf_acc(p)
    trace(p, 2, trace_on)
    p('s_barrier')
    p('s_branch %s' % lend)
    p.label(lw)
    p('s_cmp_eq_u32 s%d, 3' % S_WAVE); p('s_cbranch_scc1 %s' % lw3)
    scores('seg')
    p('s_barrier')
    p('s_waitcnt vmcnt(0)')
    p('v_mov_b32 v20, 0x7ff00000'); p('v_mov_b32 v22, 0'); p('v_cmp_eq_u32 vcc, 0, v2'); p('v_cndmask_b32 v20, v20, v22, vcc')
    p('s_add_u32 s%d, s%d, 1' % (S_T0, S_STEP)); p('v_mov_b32 v21, s%d' % S_T0)
    p('s_lshl_b32 s%d, s%d, 1' % (S_T1, h)); p('s_add_u32 s%d, s%d, s%d' % (S_T1, S_T1, S_WAVE)); p('s_sub_u32 s%d, s%d, 1' % (S_T1, S_T1)); p('s_lshl_b32 s%d, s%d, %d' % (S_T1, S_T1, FSH)); p('s_add_u32 s%d, s%d, %d' % (S_T1, S_T1, BLK_FP * BLK)); p('s_add_u32 s%d, s%d, s%d' % (S_T1, S_T1, S_COMM))
    p('buffer_store_dword v21, v20, s[%d:%d], s%d offen sc1' % (S_WS, S_WS + 3, S_T1))
    p('s_branch %s' % lend)
    p.label(lw3)
    p('s_add_u32 s%d, s%d, %d' % (S_T0, S_STEP, P_RING - 1)); p('s_and_b32 s%d, s%d, %d' % (S_T0, S_T0, P_RING - 1)); p('s_mul_i32 s%d, s%d, %d' % (S_T0, S_T0, P_SLOT * BLK))
    p('s_add_u32 s%d, s%d, s%d' % (S_T0, S_T0, S_COMM)); p('s_add_u32 s%d, s%d, %d' % (S_T0, S_T0, BLK_P * BLK)); p('s_add_u32 s%d, s%d, %d' % (S_T1, S_T0, 2 * P_COPY * BLK))
    for r in range(16, 20): p('v_mov_b32 v%d, -1' % r)
    def fp_flag():
        p('v_mov_b32 v20, 0x7ff00000'); p('v_cmp_eq_u32 vcc, 0, v2'); p('v_cndmask_b32 v20, v20, v0, vcc')
        p('v_mov_b32 v21, s%d' % S_STEP); p('s_mov_b32 s%d, %d' % (S_T2, F_P))
        p('buffer_store_dword v21, v20, s[%d:%d], s%d offen sc1' % (S_WS, S_WS + 3, S_T2))
    p('s_barrier')
    p('buffer_store_dwordx4 v[16:19], v13, s[%d:%d], s%d offen sc1' % (S_WS, S_WS + 3, S_T0))
    if not CLASSIC['p']: p('buffer_store_dwordx4 v[16:19], v13, s[%d:%d], s%d offen sc1' % (S_WS, S_WS + 3, S_T1))
    p('buffer_store_dwordx4 v[16:19], v14, s[%d:%d], s%d offen sc1' % (S_WS, S_WS + 3, S_T0))
    p('s_cmp_ge_u32 s%d, 63' % S_STEP); p('s_cbranch_scc1 %s' % lend)
    p('s_add_u32 s%d, s%d, %d' % (S_QKO, S_QKO, 32 * 24576))
    qk_wait(2, True)
    p('s_add_u32 s%d, s%d, 1' % (S_T3, S_STEP)); p('s_and_b32 s%d, s%d, 1' % (S_T3, S_T3)); p('s_mul_i32 s%d, s%d, 24576' % (S_T3, S_T3)); p('s_add_u32 s%d, s%d, %d' % (S_T3, S_T3, A_QKB))
    qk_dma(S_T3)
    p.label(lend)
    rnd_write(p, A_QX, 40, 41)
    p('s_add_u32 s%d, s%d, 1' % (S_STEP, S_STEP)); p('s_cmp_lt_u32 s%d, s%d' % (S_STEP, S_NST)); p('s_cbranch_scc1 %s' % loop)

def gen_B2(p, trace_on=False, st=False):
    global CUR_ROLE
    CUR_ROLE = 'B'
    lg = Cnt(p, 'lgkmcnt', 15); vm = Cnt(p, 'vmcnt', 63)
    h = S_IDX
    srd(p, S_W1, KA['Wv'], 640 * 12288); srd(p, S_W2, KA['Wo'], 32 * 192 * 1280)
    common_lane_setup(p)
    p('s_waitcnt lgkmcnt(0)')
    mem_gather_setup(p, B_MEMX)
    p('s_mul_i32 s%d, s%d, 24576' % (S_T0, S_WAVE)); p('s_add_u32 s%d, s%d, 65536' % (S_T0, S_T0)); p('v_add_u32 v15, s%d, v2' % S_T0)
    p('s_lshl_b32 s%d, s%d, 14' % (S_T4, S_WAVE))
    voffs = [80, 81, 82]
    stage_offsets(p, voffs, 6, 12288, 1, 83, 84)
    p('v_lshrrev_b32 v83, 4, v1'); p('v_lshlrev_b32 v83, 3, v83'); p('v_bfe_u32 v84, v1, 2, 2'); p('v_add_u32 v83, v83, v84')
    p('v_and_b32 v84, 3, v1'); p('v_lshlrev_b32 v84, 3, v84')
    p('v_mul_u32_u24 v85, 96, v83'); p('v_add_u32 v85, v85, v84'); p('v_add_u32 v85, s%d, v85' % S_T4)
    p('v_mul_u32_u24 v86, 160, v83'); p('v_add_u32 v86, v86, v84'); p('v_add_u32 v86, s%d, v86' % S_T4)
    p('s_mul_i32 s%d, s%d, 384' % (S_T5, h)); p('s_mul_i32 s%d, s%d, 96' % (S_T0, S_WAVE)); p('s_add_u32 s%d, s%d, s%d' % (S_T5, S_T5, S_T0))
    p('s_mul_i32 s%d, s%d, 3' % (S_T6, S_WAVE))
    sleep_units(p, B_DELAY)
    jobs = []
    for tau in range(10):
        for half in range(2):
            def soff(dst, tau=tau, half=half):
                p('s_add_u32 s%d, s%d, %d' % (dst, S_T6, tau))
                p('s_sub_u32 s%d, s%d, 10' % (S_T2, dst)); p('s_cmp_ge_u32 s%d, 10' % dst); p('s_cselect_b32 s%d, s%d, s%d' % (dst, S_T2, dst))
                p('s_mul_i32 s%d, s%d, %d' % (dst, dst, 64 * 12288))
                p('s_add_u32 s%d, s%d, s%d' % (dst, dst, S_T5))
                if half: p('s_add_u32 s%d, s%d, %d' % (dst, dst, 32 * 12288))
            dests = []
            for x in range(3):
                kind, n = UM[tau * 3 + x]
                if kind == 'reg': dests.append((x * 32, ('reg', unit_reg(n, 4 * half, 2), unit_reg(n, 4 * half + 2, 2))))
                else: dests.append((x * 32, ('lds', n * 2048 + half * 1024)))
            jobs.append(dict(srd=S_W1, soff=soff, dests=dests))
    load_weights_type1(p, jobs, 85, 3072, 5, voffs, 3, 96, lg, vm, 15, 88, S_T4)
    voffs = [100, 101, 102, 103, 104]
    stage_offsets(p, voffs, 10, 1280, 1, 83, 84)
    p('s_mul_i32 s%d, s%d, %d' % (S_T5, h, 192 * 1280)); p('s_mul_i32 s%d, s%d, 320' % (S_T0, S_WAVE)); p('s_add_u32 s%d, s%d, s%d' % (S_T5, S_T5, S_T0))
    jobs = []
    for u in range(6):
        for ch in range(2):
            def soff(dst, u=u, ch=ch): p('s_add_u32 s%d, s%d, %d' % (dst, S_T5, u * 32 * 1280 + ch * 160))
            dests = []
            for x in range(5):
                cc = ch * 5 + x
                kind, n = UM[30 + cc * 3 + (u >> 1)]; half = u & 1
                if kind == 'reg': dests.append((x * 32, ('reg', unit_reg(n, 4 * half, 2), unit_reg(n, 4 * half + 2, 2))))
                else: dests.append((x * 32, ('lds', n * 2048 + half * 1024)))
            jobs.append(dict(srd=S_W2, soff=soff, dests=dests))
    load_weights_type1(p, jobs, 86, 5120, 3, voffs, 5, 160, lg, vm, 15, 88, S_T4)
    p('s_barrier')
    p('v_bfe_u32 v80, v1, 3, 1'); p('v_lshlrev_b32 v80, 9, v80')
    p('v_bfe_u32 v81, v1, 2, 1'); p('v_lshlrev_b32 v81, 6, v81'); p('v_add_u32 v80, v80, v81')
    p('v_and_b32 v81, 1, v1'); p('v_lshlrev_b32 v81, 5, v81'); p('v_add_u32 v80, v80, v81')
    p('v_bfe_u32 v81, v1, 1, 1'); p('v_lshlrev_b32 v81, 2, v81'); p('v_add_u32 v80, v80, v81')
    p('v_lshrrev_b32 v81, 4, v1'); p('v_lshlrev_b32 v81, 3, v81'); p('v_add_u32 v80, v80, v81')
    for x, dst in enumerate((11, 12, 29)):
        p('s_mul_i32 s%d, s%d, 3' % (S_T0, S_WAVE)); p('s_add_u32 s%d, s%d, %d' % (S_T0, S_T0, x))
        p('s_lshr_b32 s%d, s%d, 2' % (S_T1, S_T0)); p('s_lshl_b32 s%d, s%d, 10' % (S_T1, S_T1)); p('s_and_b32 s%d, s%d, 3' % (S_T0, S_T0)); p('s_lshl_b32 s%d, s%d, 7' % (S_T0, S_T0))
        p('s_add_u32 s%d, s%d, s%d' % (S_T0, S_T0, S_T1)); p('s_add_u32 s%d, s%d, %d' % (S_T0, S_T0, B_VX)); p('v_add_u32 v%d, s%d, v80' % (dst, S_T0))
    p('v_mov_b32 v28, 0x05040100'); p('v_mov_b32 v82, 0x03020706'); p('v_and_b32 v83, 2, v1'); p('v_cmp_eq_u32 vcc, 0, v83'); p('v_cndmask_b32 v28, v82, v28, vcc')
    p('v_lshrrev_b32 v80, 4, v1'); p('v_lshlrev_b32 v80, 7, v80')
    p('v_bfe_u32 v81, v1, 2, 2'); p('v_lshlrev_b32 v81, 5, v81'); p('v_add_u32 v80, v80, v81')
    p('v_and_b32 v81, 3, v1'); p('v_lshlrev_b32 v81, 3, v81'); p('v_add_u32 v80, v80, v81'); p('v_add_u32 v13, %d, v80' % B_VX)
    p('v_lshrrev_b32 v80, 4, v1'); p('s_mul_i32 s%d, s%d, 10' % (S_T0, S_WAVE)); p('v_add_u32 v80, s%d, v80' % S_T0); p('v_lshlrev_b32 v80, 14, v80')
    p('v_and_b32 v81, 15, v1'); p('v_lshlrev_b32 v81, 4, v81'); p('v_add_u32 v80, v80, v81')
    p('s_lshl_b32 s%d, s%d, 8' % (S_T0, h)); p('v_add_u32 v14, s%d, v80' % S_T0)
    p('v_add_u32 v0, %d, v14' % (8 * BLK))
    p('v_mov_b32 v82, 0x7ff00000'); p('v_cmp_gt_u32 vcc, 32, v1'); p('v_cndmask_b32 v0, v82, v0, vcc')
    p('s_mov_b32 s%d, 0' % S_STEP)
    stamp(p, 3, st)
    parity_wait2(p)
    ACC1 = 16; ACC2 = 80; VFR = 40
    stamp(p, 1, st)
    pf_init(p); p('s_mov_b32 s%d, %d' % (S_DLY, DLY_INIT['B'])); p('s_mov_b32 s%d, 0' % S_RSUM); p('s_mov_b32 s%d, 1' % S_RND); rnd_write(p, 16384, 40, 41)
    loop = p.newlabel('LBloop'); core.loop_align(p); p.label(loop)
    lg.reset()
    pf(p, 0)
    for r in range(ACC1, ACC1 + 12): p('v_mov_b32 v%d, 0' % r)
    wst_load(p, 0, 15, lg); wst_load(p, 1, 15, lg)
    offsets2(p, 0, ('mem', 'z')); mem_lds_addr(p)
    p('s_waitcnt lgkmcnt(0)'); lg.reset()
    p('s_barrier')
    if not CLASSIC['mem']: dly_update(p, 16384, 40)
    def z0(lo, hi):
        for r in range(lo, hi): p('v_mov_b32 v%d, 0' % r)
    if CLASSIC['mem']:
        z0(ACC2, ACC2 + 40); hooks = {}
    else:
        def h4(): p('s_waitcnt vmcnt(0)'); z0(ACC2, ACC2 + 8)
        hooks = {4: h4, 5: lambda: z0(ACC2 + 8, ACC2 + 16), 6: lambda: z0(ACC2 + 16, ACC2 + 24), 7: lambda: z0(ACC2 + 24, ACC2 + 32)}
    def tail_order(ringreg):
        lg.wait(('m', 8))
        seq = [(8, 0), (8, 1), (9, 0), (9, 1), (8, 2), (9, 2)]
        for i, (tau, x) in enumerate(seq):
            if i == 2: lg.wait(('m', 9))
            smf(p, ACC1 + 4 * x, ringreg(tau), tau * 3 + x, lg, 15)
            if i >= 4 and not CLASSIC['mem']: z0(ACC2 + 32 + 4 * (i - 4), ACC2 + 36 + 4 * (i - 4))
        for x, addr in enumerate((11, 12, 29)):
            a = ACC1 + 4 * x
            p('v_add_f32 v%d, v%d, v%d' % (a, a, a + 1)); p('v_add_f32 v%d, v%d, v%d' % (a + 2, a + 2, a + 3))
            p('v_cvt_pk_bf16_f32 v%d, v%d, v%d' % (a, a, a + 2))
            p('v_mov_b32_dpp v%d, v%d quad_perm:[2,3,0,1] row_mask:0xf bank_mask:0xf' % (a + 1, a))
            p('v_perm_b32 v%d, v%d, v%d, v28' % (a, a + 1, a))
            p('ds_write_b32 v%d, v%d' % (addr, a)); lg.issue('vx')
    gather_and_project(p, lg, 3, ACC1, 15, 'mem', hooks, tail_order)
    pf(p, 2)
    if P2MEM['B']: p('s_waitcnt vmcnt(0)')
    lg.wait('vx')
    p('s_barrier')
    pf(p, 3)
    for t in range(3):
        for z in range(2):
            p('ds_read_b64_tr_b16 %s, v13 offset:%d' % (vr(VFR + 4 * t + 2 * z, 2), t * 1024 + z * 512)); lg.issue(('vf', t))
    def red(cc, dst):
        a = ACC2 + 4 * cc
        return ['v_add_f32 v%d, v%d, v%d' % (a, a, a + 1), 'v_add_f32 v%d, v%d, v%d' % (a + 2, a + 2, a + 3), 'v_cvt_pk_bf16_f32 v%d, v%d, v%d' % (dst, a, a + 2)]
    def fin(q, voff, soff_add):
        L = ['v_permlane32_swap_b32 v%d, v%d' % (q, q + 2), 'v_permlane32_swap_b32 v%d, v%d' % (q + 1, q + 3)]
        if soff_add: L += ['s_add_u32 s%d, s%d, %d' % (S_T0, S_ZO, soff_add)]
        L += ['v_permlane16_swap_b32 v%d, v%d' % (q, q + 1), 'v_permlane16_swap_b32 v%d, v%d' % (q + 2, q + 3),
              'buffer_store_dwordx4 %s, v%d, s[%d:%d], s%d offen sc1' % (vr(q, 4), voff, S_WS, S_WS + 3, S_T0 if soff_add else S_ZO)]
        return L
    fill = []
    for pr in range(5):
        for t in range(3):
            for cc in (2 * pr, 2 * pr + 1):
                if pr == 0 and cc == 0: lg.wait(('vf', t))
                smf(p, ACC2 + 4 * cc, VFR + 4 * t, 30 + cc * 3 + t, lg, 15)
                if t == 1 and cc == 2 * pr and pr > 0:
                    a0 = 2 * (pr - 1); q = 16 + 4 * (a0 // 4)
                    fill += red(a0, q + (a0 % 4)) + red(a0 + 1, q + (a0 % 4) + 1)
                    if a0 % 4 == 2: fill += fin(q, 14, (a0 // 4) * 4 * BLK)
                for _ in range(2):
                    if fill: p(fill.pop(0))
    last = red(8, 24) + red(9, 25) + ['v_mov_b32 v26, v24', 'v_mov_b32 v27, v25'] + fin(24, 0, 0)
    for ins in fill + last: p(ins)
    pf(p, 4)
    pf_acc(p)
    trace(p, 2, trace_on)
    rnd_write(p, 16384, 40, 41)
    p('s_add_u32 s%d, s%d, 1' % (S_STEP, S_STEP)); p('s_cmp_lt_u32 s%d, s%d' % (S_STEP, S_NST)); p('s_cbranch_scc1 %s' % loop)

R_RED = 0; R_RED2 = 4096
def gen_R2(p, trace_on=False, st=False):
    global CUR_ROLE
    CUR_ROLE = 'R'
    c = S_IDX
    srd(p, S_W1, KA['x'], 2048 * 1280)
    common_lane_setup(p)
    p('s_waitcnt lgkmcnt(0)')
    p('v_and_b32 v3, 1, v1'); p('v_cmp_eq_u32 vcc, 0, v3'); p('v_mov_b32 v3, 0xeeeeeeee'); p('v_mov_b32 v7, 0x44444444'); p('v_cndmask_b32 v3, v3, v7, vcc')
    p('s_lshr_b32 s%d, s%d, 1' % (S_T1, S_WAVE)); p('s_lshl_b32 s%d, s%d, 14' % (S_T1, S_T1)); p('s_and_b32 s%d, s%d, 1' % (S_T0, S_WAVE)); p('s_lshl_b32 s%d, s%d, 12' % (S_T0, S_T0))
    p('s_add_u32 s%d, s%d, s%d' % (S_T0, S_T0, S_T1)); p('v_add_u32 v4, s%d, v2' % S_T0)
    p('v_lshrrev_b32 v8, 4, v1'); p('v_lshlrev_b32 v8, 8, v8'); p('v_and_b32 v9, 15, v1'); p('v_lshlrev_b32 v9, 3, v9'); p('v_add_u32 v8, v8, v9')
    p('s_lshl_b32 s%d, s%d, 10' % (S_T0, S_WAVE)); p('s_add_u32 s%d, s%d, 32768' % (S_T0, S_T0)); p('v_add_u32 v5, s%d, v8' % S_T0)
    p('s_lshl_b32 s%d, s%d, 14' % (S_T0, c)); p('s_lshl_b32 s%d, s%d, 11' % (S_T1, S_WAVE)); p('s_add_u32 s%d, s%d, s%d' % (S_T0, S_T0, S_T1)); p('v_add_u32 v6, s%d, v2' % S_T0)
    p('s_lshl_b32 s%d, s%d, 15' % (S_T0, c)); p('s_lshl_b32 s%d, s%d, 13' % (S_T1, S_WAVE)); p('s_add_u32 s%d, s%d, s%d' % (S_T0, S_T0, S_T1)); p('v_add_u32 v10, s%d, v2' % S_T0)
    p('v_lshrrev_b32 v8, 4, v1'); p('v_lshlrev_b32 v8, 7, v8')
    p('v_bfe_u32 v9, v1, 1, 1'); p('v_lshlrev_b32 v9, 5, v9'); p('v_add_u32 v8, v8, v9')
    p('v_bfe_u32 v9, v1, 2, 2'); p('v_lshlrev_b32 v9, 3, v9'); p('v_add_u32 v8, v8, v9')
    p('v_and_b32 v9, 1, v1'); p('v_lshlrev_b32 v9, 2, v9'); p('v_add_u32 v8, v8, v9')
    p('s_lshl_b32 s%d, s%d, 9' % (S_T0, S_WAVE)); p('v_add_u32 v11, s%d, v8' % S_T0)
    p('v_lshlrev_b32 v12, 3, v1'); p('v_lshrrev_b32 v13, 2, v1'); p('v_lshlrev_b32 v13, 4, v13'); p('s_lshl_b32 s%d, s%d, 8' % (S_T0, c))
    p('s_add_u32 s%d, s%d, 8192' % (S_T1, S_T0)); p('s_cmp_ge_u32 s%d, 32' % c); p('s_cselect_b32 s%d, s%d, s%d' % (S_T0, S_T1, S_T0))
    p('v_add_u32 v13, s%d, v13' % S_T0); p('v_and_b32 v9, 3, v1'); p('v_cmp_eq_u32 vcc, 0, v9'); p('v_mul_u32_u24 v9, %d, v9' % (MEM_COPY * BLK)); p('v_add_u32 v13, v13, v9')
    if CLASSIC['mem']: p('v_mov_b32 v8, 0x7ff00000'); p('v_cndmask_b32 v13, v8, v13, vcc')
    p('v_lshlrev_b32 v14, 2, v1'); p('s_lshl_b32 s%d, s%d, 8' % (S_T0, c)); p('v_add_u32 v14, s%d, v14' % S_T0)
    p('s_lshl_b32 s%d, s%d, 11' % (S_T0, S_WAVE)); p('s_add_u32 s%d, s%d, %d' % (S_T0, S_T0, R_RED2)); p('v_add_u32 v15, s%d, v2' % S_T0)
    p('v_and_b32 v8, 15, v1'); p('s_and_b32 s%d, s%d, 1' % (S_T0, S_WAVE)); p('s_lshl_b32 s%d, s%d, 4' % (S_T0, S_T0)); p('v_add_u32 v8, s%d, v8' % S_T0); p('v_mul_u32_u24 v8, 1280, v8')
    p('v_lshrrev_b32 v9, 4, v1'); p('v_lshlrev_b32 v9, 3, v9'); p('s_lshl_b32 s%d, s%d, 5' % (S_T0, c)); p('v_add_u32 v9, s%d, v9' % S_T0)
    p('v_add_u32 v28, v8, v9')
    p('s_and_b32 s%d, s%d, 1' % (S_T0, S_WAVE)); p('s_lshl_b32 s%d, s%d, 10' % (S_T0, S_T0)); p('s_add_u32 s%d, s%d, %d' % (S_T0, S_T0, R_RED2)); p('v_add_u32 v29, s%d, v2' % S_T0)
    p('v_mov_b32 v33, v9')
    p('s_lshl_b32 s%d, s%d, %d' % (S_T0, c, FSH)); p('v_mov_b32 v30, s%d' % S_T0); p('v_mov_b32 v8, 0x7ff00000'); p('v_cmp_eq_u32 vcc, 0, v1'); p('v_cndmask_b32 v30, v8, v30, vcc')
    p('v_and_b32 v0, 31, v1'); p('v_lshlrev_b32 v0, %d, v0' % FSH)
    p('v_lshlrev_b32 v31, %d, v1' % FSH)
    p('s_mov_b32 s%d, 0' % S_MASK); p('s_mov_b32 s%d, -1' % (S_MASK + 1))
    p('s_mov_b32 s%d, 0' % S_STEP); p('s_mov_b32 s%d, %d' % (S_VOO, OFF_VO))
    ZB = 64; ACC = 16; SENT = 92; PF = 160; PS = 128
    def VOa(k, j, n=4): return ar(40 * k + 4 * j, n)
    def Za(k, a): return ar(40 * k + 32 + 4 * a, 4)
    def vo_load(k):
        for j in range(8):
            if j == 4: p('s_add_u32 s%d, s%d, 4096' % (S_T0, S_VOO))
            p('buffer_load_dwordx4 %s, v10, s[%d:%d], s%d offen offset:%d sc1' % (VOa(k, j), S_WS, S_WS + 3, S_VOO if j < 4 else S_T0, (j % 4) * 1024))
    S_SG = S_T6
    def x_load(seg_s, add):
        p('s_add_u32 s%d, s%d, %d' % (S_T5, seg_s, add)); p('s_mul_i32 s%d, s%d, %d' % (S_T5, S_T5, 32 * 1280))
        p('buffer_load_dwordx2 v[96:97], v28, s[%d:%d], s%d offen' % (S_W1, S_W1 + 3, S_T5))
    def seg_issue(wait, with_x=True):
        if wait: p('s_add_u32 s%d, s%d, 1' % (S_T3, S_SG)); wait_flags(p, 31, BLK_FP * BLK, S_T3, 7, 1, S_COMM)
        if PS_NEAR:
            p('s_and_b32 s%d, s%d, %d' % (S_T4, S_SG, PS_RING - 1)); p('s_mul_i32 s%d, s%d, %d' % (S_T4, S_T4, 10 * BLK)); p('s_add_u32 s%d, s%d, s%d' % (S_T4, S_T4, S_COMM)); p('s_add_u32 s%d, s%d, %d' % (S_T4, S_T4, BLK_PS * BLK))
            wsh, tstep, mbase, mstep = 14, 4 * BLK, 8 * BLK, BLK
        else:
            p('s_mul_i32 s%d, s%d, 81920' % (S_T4, S_SG)); p('s_add_u32 s%d, s%d, %d' % (S_T4, S_T4, OFF_PS))
            wsh, tstep, mbase, mstep = 13, 32768, 65536, 8192
        for tau in range(2):
            p('s_lshl_b32 s%d, s%d, %d' % (S_T0, S_WAVE, wsh)); p('s_add_u32 s%d, s%d, s%d' % (S_T0, S_T0, S_T4))
            if tau: p('s_add_u32 s%d, s%d, %d' % (S_T0, S_T0, tstep))
            for j in range(8):
                if j == 4: p('s_add_u32 s%d, s%d, 4096' % (S_T0, S_T0))
                p('buffer_load_dwordx4 %s, v2, s[%d:%d], s%d offen offset:%d sc1' % (ar(PF + 40 * tau + 4 * j, 4), S_WS, S_WS + 3, S_T0, (j % 4) * 1024))
            p('s_lshl_b32 s%d, s%d, 11' % (S_T0, S_WAVE)); p('s_add_u32 s%d, s%d, s%d' % (S_T0, S_T0, S_T4)); p('s_add_u32 s%d, s%d, %d' % (S_T0, S_T0, mbase + tau * mstep))
            for a in range(2):
                p('buffer_load_dwordx4 %s, v2, s[%d:%d], s%d offen offset:%d sc1' % (ar(PF + 40 * tau + 32 + 4 * a, 4), S_WS, S_WS + 3, S_T0, a * 1024))
        if with_x:
            p('s_mul_i32 s%d, s%d, %d' % (S_T5, S_SG, 32 * 1280))
            p('buffer_load_dwordx2 v[100:101], v28, s[%d:%d], s%d offen' % (S_W1, S_W1 + 3, S_T5))
    def seg_compute(k, after):
        for tau in range(2):
            if after is not None: p('s_waitcnt vmcnt(%d)' % ((11 if tau == 0 else 1) + after))
            a = 104 + 4 * tau
            for j in range(8):
                p('v_mfma_f32_16x16x32_bf16 %s, %s, %s, %s' % (vr(a, 4), VOa(k, j), ar(PF + 40 * tau + 4 * j, 4), '0' if j == 0 else vr(a, 4)))
            for aa in range(2):
                p('v_mfma_f32_16x16x32_bf16 %s, %s, %s, %s' % (vr(a, 4), Za(k, aa), ar(PF + 40 * tau + 32 + 4 * aa, 4), vr(a, 4)))
        p('ds_write_b128 v15, v[104:107]'); p('ds_write_b128 v15, v[108:111] offset:1024')
        p('s_waitcnt lgkmcnt(0)'); p('s_barrier')
        l = p.newlabel('LRs'); p('s_cmp_ge_u32 s%d, 2' % S_WAVE); p('s_cbranch_scc1 %s' % l)
        for w in range(4): p('ds_read_b128 %s, v29 offset:%d' % (vr(104 + 4 * w, 4), w * 2048))
        p('s_waitcnt vmcnt(%d) lgkmcnt(0)' % after if after is not None else 's_waitcnt lgkmcnt(0)')
        for r in range(4):
            p('v_add_f32 v%d, v%d, v%d' % (104 + r, 104 + r, 108 + r)); p('v_add_f32 v%d, v%d, v%d' % (112 + r, 112 + r, 116 + r)); p('v_add_f32 v%d, v%d, v%d' % (104 + r, 104 + r, 112 + r))
        p('v_lshlrev_b32 v108, 16, v100'); p('v_and_b32 v109, 0xffff0000, v100'); p('v_lshlrev_b32 v110, 16, v101'); p('v_and_b32 v111, 0xffff0000, v101')
        for r in range(4): p('v_fmac_f32 v%d, v%d, v%d' % (108 + r, 24 + r, 104 + r))
        p('v_cvt_pk_bf16_f32 v100, v108, v109'); p('v_cvt_pk_bf16_f32 v101, v110, v111')
        p('s_mul_i32 s%d, s%d, %d' % (S_T5, S_SG, 32 * 1280)); p('s_add_u32 s%d, s%d, %d' % (S_T5, S_T5, OFF_X1))
        p('buffer_store_dwordx2 v[100:101], v28, s[%d:%d], s%d offen sc1' % (S_WS, S_WS + 3, S_T5))
        p.label(l)
    def x1_flag(val_s):
        p('v_mov_b32 v102, s%d' % val_s); p('s_add_u32 s%d, s%d, %d' % (S_T0, S_COMM, BLK_FX * BLK))
        p('buffer_store_dword v102, v30, s[%d:%d], s%d offen sc1' % (S_WS, S_WS + 3, S_T0))
    if not core.FUSED: parity_probe2(p)
    parity_wait2(p)
    p('s_mov_b32 s%d, %d' % (S_T0, OFF_MOD + 2 * 1280))
    p('buffer_load_dwordx2 v[34:35], v33, s[%d:%d], s%d offen sc1' % (S_WS, S_WS + 3, S_T0))
    p('s_waitcnt vmcnt(0)')
    p('v_lshlrev_b32 v24, 16, v34'); p('v_and_b32 v25, 0xffff0000, v34'); p('v_lshlrev_b32 v26, 16, v35'); p('v_and_b32 v27, 0xffff0000, v35')
    tlb_warm(p, S_WS, OFF_VO, 64 * 40 * 32 * 1024, 36); tlb_warm(p, S_WS, OFF_PS, 64 * 81920 + (2 << 20), 38); tlb_warm(p, S_WS, OFF_X1, 64 * 40960 + (2 << 20), 40); tlb_warm(p, S_W1, 0, 2048 * 1280, 42)
    p('s_mov_b32 s%d, 1' % S_T3); wait_flags(p, 0, BLK_FV * BLK, S_T3, 7, 2, S_COMM)
    vo_load(0)
    stamp(p, 1, st)
    pf_init(p); p('s_mov_b32 s%d, %d' % (S_DLY, DLY_INIT['R'])); p('s_mov_b32 s%d, 0' % S_RSUM); p('s_mov_b32 s%d, 1' % S_RND); rnd_write(p, 16384, 40, 41)
    for r in range(SENT, SENT + 4): p('v_mov_b32 v%d, -1' % r)
    p('v_mov_b32 v99, 0'); p('v_mov_b32 v103, 0')
    def flags_sample():
        p('s_add_u32 s%d, s%d, %d' % (S_T0, S_COMM, BLK_FV * BLK))
        p('buffer_load_dword v103, v0, s[%d:%d], s%d offen sc1' % (S_WS, S_WS + 3, S_T0))
    def flags_check(vo_add):
        lok = p.newlabel('LRok')
        p('s_add_u32 s%d, s%d, %d' % (S_T3, S_STEP, vo_add)); p('s_min_u32 s%d, s%d, 64' % (S_T3, S_T3))
        p('v_cmp_gt_u32 vcc, s%d, v103' % S_T3); p('s_cbranch_vccz %s' % lok)
        wait_flags(p, 0, BLK_FV * BLK, S_T3, 7, 2, S_COMM)
        p.label(lok)
    loop = p.newlabel('LRloop'); core.loop_align(p); p.label(loop)
    for k in range(4):
        pf(p, 0)
        for r in range(ACC, ACC + 4): p('v_mov_b32 v%d, 0' % r)
        offsets2(p, 1)
        lns0 = p.newlabel('LRn0'); p('s_cmp_lt_u32 s%d, 1' % S_STEP); p('s_cbranch_scc1 %s' % lns0)
        p('s_sub_u32 s%d, s%d, 1' % (S_SG, S_STEP))
        lfp = p.newlabel('LRfp')
        p('s_waitcnt vmcnt(%d)' % (9 if X_EARLY else 8))
        p('v_cmp_gt_u32 vcc, s%d, v99' % S_STEP); p('s_cbranch_vccz %s' % lfp)
        p('s_mov_b32 s%d, s%d' % (S_T3, S_STEP)); wait_flags(p, 31, BLK_FP * BLK, S_T3, 7, 1, S_COMM)
        p.label(lfp)
        seg_issue(False, not X_EARLY)
        p.label(lns0)
        if FVO_TOP: flags_sample()
        if k == 3: p('s_cmp_eq_u32 s%d, 63' % S_STEP); p('s_cbranch_scc1 LR_last')
        if not CLASSIC['p']: p('s_waitcnt lgkmcnt(0)'); p('s_barrier'); dly_update(p, 16384, 40)
        def zloads():
            p('buffer_load_dwordx4 %s, v6, s[%d:%d], s%d offen sc1' % (vr(ZB, 4), S_WS, S_WS + 3, S_ZO))
            p('buffer_load_dwordx4 %s, v6, s[%d:%d], s%d offen offset:1024 sc1' % (vr(ZB + 4, 4), S_WS, S_WS + 3, S_ZO))
        def issue(st_, cp):
            if cp: p('s_add_u32 s%d, s%d, %d' % (S_T2, S_PO, cp * P_COPY * BLK))
            so = S_T2 if cp else S_PO; b = PS + 20 * st_
            for z in range(4): p('buffer_load_dwordx4 %s, v4, s[%d:%d], s%d offen offset:%d sc1' % (vr(b + 4 * z, 4), S_WS, S_WS + 3, so, z * 1024))
            for hp in range(2): p('buffer_load_dwordx2 %s, v5, s[%d:%d], s%d offen offset:%d sc1' % (vr(b + 16 + 2 * hp, 2), S_WS, S_WS + 3, so, hp * 128))
        def zcheck():
            ok = p.newlabel('Lzok'); top = p.newlabel('Lzt')
            check_regs(p, range(ZB, ZB + 8), 7, [ZB + 3, ZB + 7]); p('s_cbranch_vccz %s' % ok)
            if POLL2['z']: zloads()
            p.label(top)
            zloads(); p('s_waitcnt vmcnt(%d)' % (2 if POLL2['z'] else 0)); check_regs(p, range(ZB, ZB + 8), 7, None if POLL2['z'] else [ZB + 3, ZB + 7]); p('s_cbranch_vccz %s' % ok)
            if CSLEEP['z']: p('s_sleep %d' % CSLEEP['z'])
            budget(p, ok, top)
            p.label(ok)
        def variant(st_):
            pf(p, 2)
            b = PS + 20 * st_
            p('v_smfmac_f32_16x16x64_bf16 %s, %s, %s, v3' % (vr(ACC, 4), vr(b + 16, 4), vr(ZB, 8)))
            for z in range(4): p('v_smfmac_f32_16x16x64_bf16 %s, %s, %s, v3' % (vr(ACC, 4), vr(b + 4 * z, 4), VOa(k, 2 * z, 8)))
        pf(p, 1)
        multi_poll(p, issue, 6, lambda st_: range(PS + 20 * st_, PS + 20 * st_ + 20), 7, 'p', variant, first_hook=zcheck, pre_issue=zloads,
                   quads=lambda st_: [PS + 20 * st_ + 4 * z + 3 for z in range(4)] + [PS + 20 * st_ + 17, PS + 20 * st_ + 19])
        trace(p, 0, trace_on)
        if not FVO_TOP: flags_sample()
        p('v_add_f32 v%d, v%d, v%d' % (ACC, ACC, ACC + 1)); p('v_add_f32 v%d, v%d, v%d' % (ACC + 2, ACC + 2, ACC + 3))
        p('ds_write2_b32 v11, v%d, v%d offset0:0 offset1:16' % (ACC, ACC + 2))
        p('s_waitcnt lgkmcnt(0)')
        p('s_barrier')
        pf(p, 3)
        l = p.newlabel('LRw'); p('s_cmp_lg_u32 s%d, 0' % S_WAVE); p('s_cbranch_scc1 %s' % l)
        for w in range(4): p('ds_read_b64 %s, v12 offset:%d' % (vr(20 + 2 * w, 2) if w < 2 else vr(32 + 2 * (w - 2), 2), w * 512))
        p('s_waitcnt lgkmcnt(0)')
        p('v_add_f32 v20, v20, v22'); p('v_add_f32 v21, v21, v23'); p('v_add_f32 v32, v32, v34'); p('v_add_f32 v33, v33, v35')
        p('v_add_f32 v20, v20, v32'); p('v_add_f32 v21, v21, v33')
        p('v_cvt_pk_bf16_f32 v32, v20, v21')
        for kk in range(4): p('v_mov_b32_dpp v%d, v32 quad_perm:[%d,%d,%d,%d] row_mask:0xf bank_mask:0xf' % (20 + kk, kk, kk, kk, kk))
        p('buffer_store_dwordx4 v[20:23], v13, s[%d:%d], s%d offen sc1' % (S_WS, S_WS + 3, S_MEMO))
        pf(p, 4)
        pf_acc(p)
        trace(p, 2, trace_on)
        if core.HIST:
            p('s_mul_i32 s%d, s%d, 10240' % (S_T0, S_STEP)); p('s_add_u32 s%d, s%d, %d' % (S_T0, S_T0, OFF_HIST + 10240))
            p('buffer_store_dword v32, v14, s[%d:%d], s%d offen' % (S_WS, S_WS + 3, S_T0))
        p.label(l)
        p('s_barrier')
        for r in range(8): p('v_accvgpr_write_b32 a%d, v%d' % (40 * k + 32 + r, ZB + r))
        flags_check(2)
        l3 = p.newlabel('LRq'); p('s_cmp_lg_u32 s%d, 1' % S_WAVE); p('s_cbranch_scc1 %s' % l3)
        p('s_and_b32 s%d, s%d, %d' % (S_T0, S_STEP, MEM_RING - 1)); p('s_mul_i32 s%d, s%d, %d' % (S_T0, S_T0, MEM_SLOT * BLK)); p('s_add_u32 s%d, s%d, s%d' % (S_T0, S_T0, S_COMM))
        p('buffer_store_dwordx4 %s, v13, s[%d:%d], s%d offen sc1' % (vr(SENT, 4), S_WS, S_WS + 3, S_T0))
        p.label(l3)
        l4 = p.newlabel('LRx'); p('s_cmp_lg_u32 s%d, 2' % S_WAVE); p('s_cbranch_scc1 %s' % l4)
        p('s_cmp_lt_u32 s%d, 2' % S_STEP); p('s_cbranch_scc1 %s' % l4)
        p('s_sub_u32 s%d, s%d, 1' % (S_T1, S_STEP)); x1_flag(S_T1)
        p.label(l4)
        p('buffer_store_dwordx4 %s, v6, s[%d:%d], s%d offen sc1' % (vr(SENT, 4), S_WS, S_WS + 3, S_ZO))
        p('buffer_store_dwordx4 %s, v6, s[%d:%d], s%d offen offset:1024 sc1' % (vr(SENT, 4), S_WS, S_WS + 3, S_ZO))
        p('s_add_u32 s%d, s%d, %d' % (S_T0, S_COMM, BLK_FP * BLK))
        p('buffer_load_dword v99, v31, s[%d:%d], s%d offen sc1' % (S_WS, S_WS + 3, S_T0))
        p('s_add_u32 s%d, s%d, %d' % (S_VOO, S_VOO, 40 * 32 * 1024))
        vo_load((k + 1) & 3)
        rnd_write(p, 16384, 40, 41)
        lns = p.newlabel('LRns')
        p('s_cmp_lt_u32 s%d, 1' % S_STEP); p('s_cbranch_scc1 %s' % lns)
        if X_EARLY: p('v_mov_b32 v100, v96'); p('v_mov_b32 v101, v97')
        seg_compute((k + 3) & 3, None)
        p.label(lns)
        if X_EARLY: x_load(S_STEP, 0)
        p('s_add_u32 s%d, s%d, 1' % (S_STEP, S_STEP))
    p('s_branch %s' % loop)
    p.label('LR_last')
    p('s_waitcnt vmcnt(0)'); p('s_barrier')
    l = p.newlabel('LRf1'); p('s_cmp_lg_u32 s%d, 2' % S_WAVE); p('s_cbranch_scc1 %s' % l)
    p('s_mov_b32 s%d, 62' % S_T1); x1_flag(S_T1)
    p.label(l)
    if X_EARLY: p('v_mov_b32 v100, v96'); p('v_mov_b32 v101, v97')
    seg_compute(2, None)
    top = p.newlabel('Lzl'); ok = p.newlabel('Lzlok')
    p.label(top)
    p('buffer_load_dwordx4 %s, v6, s[%d:%d], s%d offen sc1' % (vr(ZB, 4), S_WS, S_WS + 3, S_ZO))
    p('buffer_load_dwordx4 %s, v6, s[%d:%d], s%d offen offset:1024 sc1' % (vr(ZB + 4, 4), S_WS, S_WS + 3, S_ZO))
    p('s_waitcnt vmcnt(0)'); check_regs(p, range(ZB, ZB + 8), 7, [ZB + 3, ZB + 7]); p('s_cbranch_vccz %s' % ok)
    budget(p, ok, top)
    p.label(ok)
    for r in range(8): p('v_accvgpr_write_b32 a%d, v%d' % (40 * 3 + 32 + r, ZB + r))
    p('s_barrier')
    l = p.newlabel('LRf2'); p('s_cmp_lg_u32 s%d, 2' % S_WAVE); p('s_cbranch_scc1 %s' % l)
    p('s_mov_b32 s%d, 63' % S_T1); x1_flag(S_T1)
    p.label(l)
    p('s_mov_b32 s%d, 63' % S_SG); seg_issue(True); seg_compute(3, 0)
    p('s_waitcnt vmcnt(0)'); p('s_barrier')
    l = p.newlabel('LRf'); p('s_cmp_lg_u32 s%d, 2' % S_WAVE); p('s_cbranch_scc1 %s' % l)
    p('s_mov_b32 s%d, 64' % S_T1); x1_flag(S_T1)
    p.label(l)
```

```python
from core import *
import core
from core2 import ready

def flag_store(p, voff, foff_add_s, val_s, tmpv):
    p('v_mov_b32 v%d, s%d' % (tmpv, val_s))
    p('buffer_store_dword v%d, v%d, s[%d:%d], s%d offen sc1' % (tmpv, voff, S_WS, S_WS + 3, foff_add_s))

def one_lane_off(p, dst, tmp, off_s=None, const=0):
    if off_s is not None: p('v_mov_b32 v%d, s%d' % (dst, off_s))
    else: p('v_mov_b32 v%d, %d' % (dst, const))
    p('v_mov_b32 v%d, 0x7ff00000' % tmp); p('v_cmp_eq_u32 vcc, 0, v0'); p('v_cndmask_b32 v%d, v%d, v%d, vcc' % (dst, tmp, dst))

def tr_base(p, dst, rowbytes, rowmul, stg_s, t1, t2):
    p('v_lshrrev_b32 v%d, 4, v1' % t1); p('v_mul_u32_u24 v%d, %d, v%d' % (t1, rowmul, t1))
    p('v_bfe_u32 v%d, v1, 2, 2' % t2); p('v_add_u32 v%d, v%d, v%d' % (t1, t1, t2))
    p('v_mul_u32_u24 v%d, %d, v%d' % (t1, rowbytes, t1)); p('v_and_b32 v%d, 3, v1' % t2); p('v_lshlrev_b32 v%d, 3, v%d' % (t2, t2))
    p('v_add_u32 v%d, v%d, v%d' % (dst, t1, t2)); p('v_add_u32 v%d, s%d, v%d' % (dst, stg_s, dst))

class WStream:
    def __init__(self, p, lg, wres_v, base):
        self.p = p; self.lg = lg; self.v = wres_v; self.base = base
    def load(self, k):
        b = self.base + 8 * (k & 1)
        self.p('ds_read_b128 %s, v%d offset:%d' % (vr(b, 4), self.v, k * 2048)); self.lg.issue(('w', k))
        self.p('ds_read_b128 %s, v%d offset:%d' % (vr(b + 4, 4), self.v, k * 2048 + 1024)); self.lg.issue(('w', k))
    def operand(self, o, half):
        kind, n = UM[o]
        if kind == 'reg': return unit_reg(n, 4 * half, 4)
        self.lg.wait(('w', n))
        return vr(self.base + 8 * (n & 1) + 4 * half, 4)
    def done(self, o, wrap=True):
        kind, n = UM[o]
        if kind == 'lds':
            if n + 2 < 12: self.load(n + 2)
            elif wrap: self.load(n + 2 - 12)

S_SEG = S_STEP
BP_DELAY = 80
INTERLEAVE = True
S_HO = 26; S_LB = 27; S_LB1 = 28; S_LB2 = 29; S_OUT = 30; S_FL = 44; S_VAL = 45

def gen_AP(p, st=False):
    lg = Cnt(p, 'lgkmcnt', 15); vm = Cnt(p, 'vmcnt', 63)
    h = S_IDX
    p('s_load_dwordx2 s[%d:%d], s[0:1], %d' % (S_W1, S_W1 + 1, KA['Wq'])); p('s_load_dwordx2 s[%d:%d], s[0:1], %d' % (S_W2, S_W2 + 1, KA['Wk']))
    common_lane_setup(p)
    p('s_waitcnt lgkmcnt(0)')
    p('s_cmp_ge_u32 s%d, 2' % S_WAVE)
    p('s_cselect_b32 s%d, s%d, s%d' % (S_W1, S_W2, S_W1)); p('s_cselect_b32 s%d, s%d, s%d' % (S_W1 + 1, S_W2 + 1, S_W1 + 1))
    p('s_mov_b32 s%d, 0x%x' % (S_W1 + 2, 640 * 12288)); p('s_mov_b32 s%d, 0x00020000' % (S_W1 + 3))
    one_lane_off(p, 8, 80, off_s=None, const=0); p('s_lshl_b32 s%d, s%d, %d' % (S_T0, h, FSH)); p('s_add_u32 s%d, s%d, %d' % (S_FL, S_T0, F_QK))
    p('s_mul_i32 s%d, s%d, 24576' % (S_T0, S_WAVE)); p('s_add_u32 s%d, s%d, 65536' % (S_T0, S_T0)); p('v_add_u32 v15, s%d, v2' % S_T0)
    p('s_lshl_b32 s%d, s%d, 14' % (S_T4, S_WAVE))
    voffs = [80, 81, 82]
    stage_offsets(p, voffs, 6, 12288, 1, 83, 84)
    tr_base(p, 85, 96, 8, S_T4, 83, 84)
    p('s_mul_i32 s%d, s%d, 384' % (S_T5, h)); p('s_and_b32 s%d, s%d, 1' % (S_T0, S_WAVE)); p('s_mul_i32 s%d, s%d, 192' % (S_T0, S_T0)); p('s_add_u32 s%d, s%d, s%d' % (S_T5, S_T5, S_T0))
    jobs = []
    for u in range(20):
        for ch in range(2):
            def soff(dst, u=u, ch=ch): p('s_add_u32 s%d, s%d, %d' % (dst, S_T5, u * 32 * 12288 + ch * 96))
            dests = []
            for xx in range(3):
                x = ch * 3 + xx
                kind, n = UM[(u >> 1) * 6 + x]; half = u & 1
                if kind == 'reg': dests.append((xx * 32, ('reg', unit_reg(n, 4 * half, 2), unit_reg(n, 4 * half + 2, 2))))
                else: dests.append((xx * 32, ('lds', n * 2048 + half * 1024)))
            jobs.append(dict(srd=S_W1, soff=soff, dests=dests))
    load_weights_type1(p, jobs, 85, 3072, 5, voffs, 3, 96, lg, vm, 15, 88, S_T4)
    p('s_barrier')
    stamp(p, 3, st)
    tlb_warm(p, S_WS, OFF_QK, 64 * 32 * 24576, 36); tlb_warm(p, S_WS, OFF_H, 64 * 40960 + (2 << 20), 38)
    ready(p, True, 0)
    stamp(p, 1, st)
    p('s_mul_i32 s%d, s%d, 24576' % (S_OUT, h)); p('s_lshr_b32 s%d, s%d, 1' % (S_T0, S_WAVE)); p('s_mul_i32 s%d, s%d, 12288' % (S_T0, S_T0)); p('s_add_u32 s%d, s%d, s%d' % (S_OUT, S_OUT, S_T0))
    p('s_and_b32 s%d, s%d, 1' % (S_T0, S_WAVE)); p('s_mul_i32 s%d, s%d, 3072' % (S_T0, S_T0)); p('s_add_u32 s%d, s%d, s%d' % (S_OUT, S_OUT, S_T0)); p('s_add_u32 s%d, s%d, %d' % (S_OUT, S_OUT, OFF_QK))
    p('s_lshr_b32 s%d, s%d, 1' % (S_T0, S_WAVE)); p('s_and_b32 s%d, s%d, 1' % (S_T1, S_WAVE)); p('s_mul_i32 s%d, s%d, 5120' % (S_T1, S_T1))
    p('s_mul_i32 s%d, s%d, 20480' % (S_T2, S_T0)); p('s_add_u32 s%d, s%d, s%d' % (S_T5, S_T2, S_T1)); p('s_add_u32 s%d, s%d, %d' % (S_T5, S_T5, OFF_H))
    p('s_mul_i32 s%d, s%d, 10240' % (S_T2, S_T0)); p('s_add_u32 s%d, s%d, s%d' % (S_T6, S_T2, S_T1))
    def dma(slot_s, goff_s):
        for i in range(5):
            p('s_add_u32 s%d, s%d, s%d' % (S_T0, slot_s, S_T6));
            if i: p('s_add_u32 s%d, s%d, %d' % (S_T0, S_T0, i * 1024))
            p('s_mov_b32 m0, s%d' % S_T0)
            p('s_add_u32 s%d, s%d, %d' % (S_T1, goff_s, i * 1024))
            p('buffer_load_dwordx4 v2, s[%d:%d], s%d offen sc1 lds' % (S_WS, S_WS + 3, S_T1))
    p('s_mov_b32 s%d, 0' % S_LB); p('s_mov_b32 s%d, 20480' % S_LB1); p('s_mov_b32 s%d, 40960' % S_LB2)
    p('s_mov_b32 s%d, s%d' % (S_HO, S_T5))
    dma(S_LB, S_HO); p('s_add_u32 s%d, s%d, 10240' % (S_HO, S_HO)); dma(S_LB1, S_HO)
    p('s_add_u32 s%d, s%d, %d' % (S_HO, S_HO, 40960 - 10240))
    ws = WStream(p, lg, 15, 80)
    ACC = 16; HF = 64; OUT = 96
    p('s_mov_b32 s%d, 0' % S_SEG)
    ws.load(0); ws.load(1)
    first = p.newlabel('LAPf')
    p('s_waitcnt vmcnt(5)')
    p('s_branch %s' % first)
    loop = p.newlabel('LAPl'); core.loop_align(p); p.label(loop)
    lh = p.newlabel('LAPh'); p('s_cmp_lg_u32 s%d, 16' % S_SEG); p('s_cbranch_scc1 %s' % lh)
    ready(p, True, 1)
    p.label(lh)
    p('s_waitcnt vmcnt(12)')
    p.label(first)
    lg.q = [('w', 0), ('w', 0), ('w', 1), ('w', 1)]
    for hf in range(2):
        if hf == 1: p('s_waitcnt vmcnt(0)')
        p('s_barrier')
        if hf == 1:
            flag_store(p, 8, S_FL, S_SEG, 9)
        fill = []
        if INTERLEAVE:
            p('s_add_u32 s78, s%d, s%d' % (S_LB2, S_T6)); p('s_mov_b32 s79, s%d' % S_HO)
            for i in range(5):
                fill += ['s_add_u32 s76, s78, %d' % (i * 1024), 's_mov_b32 m0, s76', 's_add_u32 s77, s79, %d' % (i * 1024),
                         'buffer_load_dwordx4 v2, s[%d:%d], s77 offen sc1 lds' % (S_WS, S_WS + 3)]
        else: dma(S_LB2, S_HO)
        p('s_add_u32 s%d, s%d, %d' % (S_HO, S_HO, 10240 if hf == 0 else 40960 - 10240))
        p('v_add_u32 v10, s%d, v2' % S_LB)
        def hread(uu):
            b = HF + 8 * (uu & 1)
            for tau in range(2):
                p('ds_read_b128 %s, v10 offset:%d' % (vr(b + 4 * tau, 4), tau * 10240 + uu * 1024)); lg.issue(('h', uu))
        hread(0)
        for uu in range(10):
            u = 10 * hf + uu; t = u >> 1; half = u & 1
            if uu + 1 < 10: hread(uu + 1)
            lg.wait(('h', uu))
            for x in range(6):
                o = t * 6 + x
                wop = ws.operand(o, half)
                for tau in range(2):
                    a = ACC + 8 * x + 4 * tau
                    p('v_mfma_f32_16x16x32_bf16 %s, %s, %s, %s' % (vr(a, 4), wop, vr(HF + 8 * (uu & 1) + 4 * tau, 4), '0' if u == 0 else vr(a, 4)))
                    for _ in range(2):
                        if fill: p(fill.pop(0))
                if half == 1: ws.done(o)
        p('s_mov_b32 s%d, s%d' % (S_T0, S_LB)); p('s_mov_b32 s%d, s%d' % (S_LB, S_LB1)); p('s_mov_b32 s%d, s%d' % (S_LB1, S_LB2)); p('s_mov_b32 s%d, s%d' % (S_LB2, S_T0))
    for pr in range(3):
        for tau in range(2):
            o = OUT + 4 * ((pr * 2 + tau) % 6)
            a0 = ACC + 8 * (2 * pr) + 4 * tau; a1 = ACC + 8 * (2 * pr + 1) + 4 * tau
            p('v_cvt_pk_bf16_f32 v%d, v%d, v%d' % (o, a0, a0 + 1)); p('v_cvt_pk_bf16_f32 v%d, v%d, v%d' % (o + 1, a0 + 2, a0 + 3))
            p('v_cvt_pk_bf16_f32 v%d, v%d, v%d' % (o + 2, a1, a1 + 1)); p('v_cvt_pk_bf16_f32 v%d, v%d, v%d' % (o + 3, a1 + 2, a1 + 3))
            p('s_add_u32 s%d, s%d, %d' % (S_T0, S_OUT, tau * 6144 + pr * 1024))
            p('buffer_store_dwordx4 %s, v2, s[%d:%d], s%d offen sc1' % (vr(o, 4), S_WS, S_WS + 3, S_T0))
    p('s_add_u32 s%d, s%d, %d' % (S_OUT, S_OUT, 32 * 24576))
    p('s_add_u32 s%d, s%d, 1' % (S_SEG, S_SEG))
    l0 = p.newlabel('LAP0'); p('s_cmp_lg_u32 s%d, 1' % S_SEG); p('s_cbranch_scc1 %s' % l0)
    p('s_waitcnt vmcnt(0)'); ready(p); flag_store(p, 8, S_FL, S_SEG, 9)
    p.label(l0)
    p('s_cmp_lt_u32 s%d, s%d' % (S_SEG, S_NST)); p('s_cbranch_scc1 %s' % loop)
    p('s_waitcnt vmcnt(0) lgkmcnt(0)'); p('s_barrier')
    flag_store(p, 8, S_FL, S_SEG, 9)

BP_H = 0; BP_VX = 40960
def gen_BP(p, st=False):
    lg = Cnt(p, 'lgkmcnt', 15); vm = Cnt(p, 'vmcnt', 63)
    h = S_IDX
    srd(p, S_W1, KA['Wv'], 640 * 12288); srd(p, S_W2, KA['Wo'], 32 * 192 * 1280)
    common_lane_setup(p)
    p('s_waitcnt lgkmcnt(0)')
    p('v_lshlrev_b32 v8, 13, v0'); p('v_mov_b32 v80, 0x7ff00000'); p('v_cmp_gt_u32 vcc, 2, v0'); p('v_cndmask_b32 v8, v80, v8, vcc')
    p('s_lshl_b32 s%d, s%d, %d' % (S_T0, h, FSH)); p('s_add_u32 s%d, s%d, %d' % (S_FL, S_T0, OFF_COMM + BLK_FV * BLK))
    p('s_mul_i32 s%d, s%d, 24576' % (S_T0, S_WAVE)); p('s_add_u32 s%d, s%d, 65536' % (S_T0, S_T0)); p('v_add_u32 v15, s%d, v2' % S_T0)
    p('s_lshl_b32 s%d, s%d, 14' % (S_T4, S_WAVE))
    voffs = [80, 81, 82]
    stage_offsets(p, voffs, 6, 12288, 1, 83, 84)
    tr_base(p, 85, 96, 8, S_T4, 83, 84)
    p('s_mul_i32 s%d, s%d, 384' % (S_T5, h)); p('s_mul_i32 s%d, s%d, 96' % (S_T0, S_WAVE)); p('s_add_u32 s%d, s%d, s%d' % (S_T5, S_T5, S_T0))
    sleep_units(p, BP_DELAY)
    jobs = []
    for u in range(20):
        def soff(dst, u=u): p('s_add_u32 s%d, s%d, %d' % (dst, S_T5, u * 32 * 12288))
        dests = []
        for x in range(3):
            kind, n = UM[(u >> 1) * 3 + x]; half = u & 1
            if kind == 'reg': dests.append((x * 32, ('reg', unit_reg(n, 4 * half, 2), unit_reg(n, 4 * half + 2, 2))))
            else: dests.append((x * 32, ('lds', n * 2048 + half * 1024)))
        jobs.append(dict(srd=S_W1, soff=soff, dests=dests))
    load_weights_type1(p, jobs, 85, 3072, 5, voffs, 3, 96, lg, vm, 15, 88, S_T4)
    voffs = [100, 101, 102, 103, 104]
    stage_offsets(p, voffs, 10, 1280, 1, 83, 84)
    tr_base(p, 86, 160, 4, S_T4, 83, 84)
    p('s_mul_i32 s%d, s%d, %d' % (S_T5, h, 192 * 1280)); p('s_mul_i32 s%d, s%d, 320' % (S_T0, S_WAVE)); p('s_add_u32 s%d, s%d, s%d' % (S_T5, S_T5, S_T0))
    jobs = []
    for u in range(6):
        for ch in range(2):
            def soff(dst, u=u, ch=ch): p('s_add_u32 s%d, s%d, %d' % (dst, S_T5, u * 32 * 1280 + ch * 160))
            dests = []
            for x in range(5):
                cc = ch * 5 + x
                kind, n = UM[30 + cc * 3 + (u >> 1)]; half = u & 1
                if kind == 'reg': dests.append((x * 32, ('reg', unit_reg(n, 4 * half, 2), unit_reg(n, 4 * half + 2, 2))))
                else: dests.append((x * 32, ('lds', n * 2048 + half * 1024)))
            jobs.append(dict(srd=S_W2, soff=soff, dests=dests))
    load_weights_type1(p, jobs, 86, 5120, 3, voffs, 5, 160, lg, vm, 15, 88, S_T4, zrows=16)
    p('s_barrier')
    stamp(p, 3, st)
    tlb_warm(p, S_WS, OFF_VO, 64 * 40 * 32 * 1024, 36); tlb_warm(p, S_WS, OFF_H, 64 * 40960 + (2 << 20), 38)
    ready(p, True, 0)
    stamp(p, 1, st)
    for x in range(3):
        p('s_mul_i32 s%d, s%d, 3' % (S_T0, S_WAVE)); p('s_add_u32 s%d, s%d, %d' % (S_T0, S_T0, x))
        p('s_lshr_b32 s%d, s%d, 1' % (S_T1, S_T0)); p('s_lshl_b32 s%d, s%d, 10' % (S_T1, S_T1))
        p('s_and_b32 s%d, s%d, 1' % (S_T0, S_T0)); p('s_lshl_b32 s%d, s%d, 3' % (S_T0, S_T0)); p('s_add_u32 s%d, s%d, s%d' % (S_T0, S_T0, S_T1)); p('s_add_u32 s%d, s%d, %d' % (S_T0, S_T0, BP_VX))
        p('v_add_u32 v%d, s%d, v2' % (10 + x, S_T0))
    p('v_add_u32 v13, %d, v2' % BP_VX)
    p('s_mul_i32 s%d, s%d, 10240' % (S_T6, S_WAVE)); p('s_add_u32 s%d, s%d, %d' % (S_HO, S_T6, OFF_H))
    def dma():
        for i in range(10):
            p('s_add_u32 s%d, s%d, %d' % (S_T0, S_T6, BP_H + i * 1024)); p('s_mov_b32 m0, s%d' % S_T0)
            p('s_add_u32 s%d, s%d, %d' % (S_T1, S_HO, i * 1024))
            p('buffer_load_dwordx4 v2, s[%d:%d], s%d offen sc1 lds' % (S_WS, S_WS + 3, S_T1))
    dma()
    p('s_mul_i32 s%d, s%d, %d' % (S_OUT, S_WAVE, 10 * 32768)); p('s_lshl_b32 s%d, s%d, 10' % (S_T0, h)); p('s_add_u32 s%d, s%d, s%d' % (S_OUT, S_OUT, S_T0)); p('s_add_u32 s%d, s%d, %d' % (S_OUT, S_OUT, OFF_VO))
    ws = WStream(p, lg, 15, 56)
    ACCV = 16; HF = 40; VF = 72; ACCO = 16; OUT = 32
    p('s_mov_b32 s%d, 0' % S_SEG)
    ws.load(0); ws.load(1)
    first = p.newlabel('LBPf')
    p('s_waitcnt vmcnt(0)'); p('s_branch %s' % first)
    loop = p.newlabel('LBPl'); core.loop_align(p); p.label(loop)
    lh = p.newlabel('LBPh'); p('s_cmp_lg_u32 s%d, 16' % S_SEG); p('s_cbranch_scc1 %s' % lh)
    ready(p, True, 1)
    p.label(lh)
    p('s_waitcnt vmcnt(10)')
    p.label(first)
    lg.q = [('w', 0), ('w', 0), ('w', 1), ('w', 1)]
    p('s_barrier')
    def hread(u):
        b = HF + 8 * (u & 1)
        for tau in range(2):
            p('ds_read_b128 %s, v2 offset:%d' % (vr(b + 4 * tau, 4), BP_H + tau * 20480 + u * 1024)); lg.issue(('h', u))
    hread(0)
    for u in range(20):
        t = u >> 1; half = u & 1
        if u + 1 < 20: hread(u + 1)
        lg.wait(('h', u))
        for x in range(3):
            o = t * 3 + x
            wop = ws.operand(o, half)
            for tau in range(2):
                a = ACCV + 8 * x + 4 * tau
                p('v_mfma_f32_16x16x32_bf16 %s, %s, %s, %s' % (vr(a, 4), wop, vr(HF + 8 * (u & 1) + 4 * tau, 4), '0' if u == 0 else vr(a, 4)))
            if half == 1: ws.done(o)
    for x in range(3):
        for tau in range(2):
            a = ACCV + 8 * x + 4 * tau
            p('v_cvt_pk_bf16_f32 v%d, v%d, v%d' % (a, a, a + 1)); p('v_cvt_pk_bf16_f32 v%d, v%d, v%d' % (a + 1, a + 2, a + 3))
            p('ds_write_b64 v%d, %s offset:%d' % (10 + x, vr(a, 2), tau * 6144)); lg.issue('vx')
    p('s_waitcnt vmcnt(0)')
    lg.wait('vx')
    p('s_barrier')
    flag_store(p, 8, S_FL, S_SEG, 9)
    p('s_add_u32 s%d, s%d, 40960' % (S_HO, S_HO))
    fill = []
    if INTERLEAVE:
        for i in range(10):
            fill += ['s_add_u32 s76, s%d, %d' % (S_T6, BP_H + i * 1024), 's_mov_b32 m0, s76', 's_add_u32 s77, s%d, %d' % (S_HO, i * 1024),
                     'buffer_load_dwordx4 v2, s[%d:%d], s77 offen sc1 lds' % (S_WS, S_WS + 3)]
    else: dma()
    for u in range(6):
        for tau in range(2):
            p('ds_read_b128 %s, v13 offset:%d' % (vr(VF + 4 * (tau * 6 + u), 4), tau * 6144 + u * 1024)); lg.issue(('v', tau * 6 + u))
    def epi(cc):
        a = ACCO + 8 * (cc & 1); o = OUT + 4 * (cc & 1)
        p('v_cvt_pk_bf16_f32 v%d, v%d, v%d' % (o, a, a + 1)); p('v_cvt_pk_bf16_f32 v%d, v%d, v%d' % (o + 1, a + 2, a + 3))
        p('v_cvt_pk_bf16_f32 v%d, v%d, v%d' % (o + 2, a + 4, a + 5)); p('v_cvt_pk_bf16_f32 v%d, v%d, v%d' % (o + 3, a + 6, a + 7))
        p('s_add_u32 s%d, s%d, %d' % (S_T0, S_OUT, cc * 32768))
        p('buffer_store_dwordx4 %s, v2, s[%d:%d], s%d offen sc1' % (vr(o, 4), S_WS, S_WS + 3, S_T0))
    for cc in range(10):
        for u in range(6):
            o = 30 + cc * 3 + (u >> 1); half = u & 1
            wop = ws.operand(o, half)
            for tau in range(2):
                if cc == 0: lg.wait(('v', tau * 6 + u))
                a = ACCO + 8 * (cc & 1) + 4 * tau
                p('v_mfma_f32_16x16x32_bf16 %s, %s, %s, %s' % (vr(a, 4), vr(VF + 4 * (tau * 6 + u), 4), wop, '0' if u == 0 else vr(a, 4)))
                for _ in range(3):
                    if fill: p(fill.pop(0))
            if half == 1: ws.done(o)
            if u == 2 and cc > 0:
                while fill: p(fill.pop(0))
                epi(cc - 1)
    epi(9)
    p('s_add_u32 s%d, s%d, %d' % (S_OUT, S_OUT, 40 * 32768))
    p('s_add_u32 s%d, s%d, 1' % (S_SEG, S_SEG))
    l0 = p.newlabel('LBP0'); p('s_cmp_lg_u32 s%d, 1' % S_SEG); p('s_cbranch_scc1 %s' % l0)
    p('s_waitcnt vmcnt(0)'); ready(p); flag_store(p, 8, S_FL, S_SEG, 9)
    p.label(l0)
    p('s_cmp_lt_u32 s%d, s%d' % (S_SEG, S_NST)); p('s_cbranch_scc1 %s' % loop)
    p('s_waitcnt vmcnt(0) lgkmcnt(0)'); p('s_barrier')
    flag_store(p, 8, S_FL, S_SEG, 9)
```

```python
from core import *
import core, pro
from roles2 import flag_store, one_lane_off, tr_base
from core2 import ready, parity_wait2
S_SEG = S_STEP
OUT_FLAG = ''
FSLEEP = 1
S_HO = 26; S_OUT = 30; S_FL = 44; S_SET = 45; S_J = 27

def lane_flag_off(p, dst, n, tmp):
    p('v_min_u32 v%d, %d, v1' % (dst, n - 1)); p('v_lshlrev_b32 v%d, %d, v%d' % (dst, FSH, dst))

def gen_L2(p, st=False):
    common_lane_setup(p)
    p('s_and_b32 s%d, s%d, 1' % (S_J, S_IDX)); p('s_lshr_b32 s%d, s%d, 1' % (S_SET, S_IDX))
    one_lane_off(p, 8, 9, const=0)
    p('s_lshl_b32 s%d, s%d, %d' % (S_T0, S_IDX, FSH)); p('s_add_u32 s%d, s%d, %d' % (S_FL, S_T0, F_H2))
    lane_flag_off(p, 0, 40, 9)
    parity_wait2(p, 2048)
    pro.ln_setup(p, 4)
    X0 = 16; D0 = 36; A0 = 76; B0 = 116; T = 156
    import fused
    fused.mod_load_sc1(p, 4, A0, B0, 4, 3, D0)
    stamp(p, 1, st)
    p('s_mov_b32 s%d, s%d' % (S_SEG, S_SET))
    loop = p.newlabel('LL2'); p.label(loop)
    p('s_add_u32 s%d, s%d, 1' % (S_T3, S_SEG)); wait_flags_w0(p, 0, BLK_FX * BLK, S_T3, 7, FSLEEP, S_COMM)
    p('s_barrier')
    p('s_lshl_b32 s%d, s%d, 1' % (S_T0, S_SEG)); p('s_add_u32 s%d, s%d, s%d' % (S_T0, S_T0, S_J)); p('s_mul_i32 s%d, s%d, %d' % (S_T1, S_T0, 16 * 1280)); p('s_add_u32 s%d, s%d, %d' % (S_T1, S_T1, OFF_X1))
    for k in range(5): p('buffer_load_dwordx4 %s, v4, s[%d:%d], s%d offen offset:%d sc1' % (vr(X0 + 4 * k, 4), S_WS, S_WS + 3, S_T1, k * 64))
    p('s_mul_i32 s%d, s%d, 20480' % (S_OUT, S_T0)); p('s_mul_i32 s%d, s%d, 5120' % (S_T1, S_WAVE)); p('s_add_u32 s%d, s%d, s%d' % (S_OUT, S_OUT, S_T1)); p('s_add_u32 s%d, s%d, %d' % (S_OUT, S_OUT, OFF_H2))
    p('s_waitcnt vmcnt(0)')
    pro.ln_compute(p, X0, D0, A0, B0, 6, 0, T)
    for k in range(5):
        if k == 4: p('s_add_u32 s%d, s%d, 4096' % (S_OUT, S_OUT))
        p('buffer_store_dwordx4 %s, v2, s[%d:%d], s%d offen offset:%d sc1' % (vr(X0 + 4 * k, 4), S_WS, S_WS + 3, S_OUT, (k % 4) * 1024))
    p('s_waitcnt vmcnt(0)'); p('s_barrier')
    p('s_add_u32 s%d, s%d, 1' % (S_T3, S_SEG)); flag_store(p, 8, S_FL, S_T3, 9)
    p('s_add_u32 s%d, s%d, 2' % (S_SEG, S_SEG)); p('s_cmp_lt_u32 s%d, s%d' % (S_SEG, S_NST)); p('s_cbranch_scc1 %s' % loop)

def gen_F1(p, st=False):
    lg = Cnt(p, 'lgkmcnt', 15); vm = Cnt(p, 'vmcnt', 63)
    srd(p, S_W1, KA['wg'], 640 * 3072); srd(p, S_W2, KA['wu'], 640 * 3072)
    common_lane_setup(p)
    p('s_waitcnt lgkmcnt(0)')
    p('s_cmp_ge_u32 s%d, 24' % S_IDX); p('s_cselect_b32 s%d, 1, 0' % S_SET)
    p('s_mul_i32 s%d, s%d, 24' % (S_T0, S_SET)); p('s_sub_u32 s%d, s%d, s%d' % (S_J, S_IDX, S_T0))
    one_lane_off(p, 8, 9, const=0)
    p('s_lshl_b32 s%d, s%d, %d' % (S_T0, S_IDX, FSH)); p('s_add_u32 s%d, s%d, %d' % (S_FL, S_T0, F_HM))
    p('v_and_b32 v0, 1, v1'); p('s_lshl_b32 s%d, s%d, 1' % (S_T0, S_SET)); p('v_add_u32 v0, s%d, v0' % S_T0); p('v_lshlrev_b32 v0, %d, v0' % FSH)
    p('s_lshl_b32 s%d, s%d, 14' % (S_T4, S_WAVE))
    voffs = [80, 81]
    stage_offsets(p, voffs, 4, 3072, 1, 83, 84)
    tr_base(p, 85, 64, 8, S_T4, 83, 84)
    p('s_lshl_b32 s%d, s%d, 7' % (S_T5, S_J)); p('s_lshr_b32 s%d, s%d, 1' % (S_T0, S_WAVE)); p('s_lshl_b32 s%d, s%d, 6' % (S_T0, S_T0)); p('s_add_u32 s%d, s%d, s%d' % (S_T5, S_T5, S_T0))
    def wreg(mat, x, u, lo=0, n=4):
        f = (u * 4 + mat * 2 + x)
        return ar(4 * f + lo, n) if f < 64 else vr(128 + 4 * (f - 64) + lo, n)
    jobs = []
    for u in range(20):
        for mat in range(2):
            def soff(dst, u=u): p('s_add_u32 s%d, s%d, %d' % (dst, S_T5, u * 32 * 3072))
            dests = [(x * 32, ('reg', wreg(mat, x, u, 0, 2), wreg(mat, x, u, 2, 2))) for x in range(2)]
            jobs.append(dict(srd=S_W1 if mat == 0 else S_W2, soff=soff, dests=dests))
    ready(p)
    p('s_sleep 100')
    load_weights_type1(p, jobs, 85, 2048, 8, voffs, 2, 64, lg, vm, 15, 88, S_T4)
    p('s_barrier')
    stamp(p, 1, st)
    p('s_mul_i32 s%d, s%d, 10240' % (S_T6, S_WAVE))
    p('s_and_b32 s%d, s%d, 1' % (S_T0, S_WAVE)); p('s_mul_i32 s%d, s%d, 20480' % (S_T0, S_T0)); p('v_add_u32 v10, s%d, v2' % S_T0)
    ACC = 16; HF = 32; OUT = 48
    p('s_mov_b32 s%d, s%d' % (S_SEG, S_SET))
    loop = p.newlabel('LF1'); p.label(loop)
    p('s_add_u32 s%d, s%d, 1' % (S_T3, S_SEG)); wait_flags_w0(p, 0, F_H2, S_T3, 7, FSLEEP)
    p('s_barrier')
    p('s_mul_i32 s%d, s%d, 40960' % (S_HO, S_SEG)); p('s_add_u32 s%d, s%d, s%d' % (S_HO, S_HO, S_T6)); p('s_add_u32 s%d, s%d, %d' % (S_HO, S_HO, OFF_H2))
    for i in range(10):
        p('s_add_u32 s%d, s%d, %d' % (S_T0, S_T6, i * 1024)); p('s_mov_b32 m0, s%d' % S_T0)
        p('s_add_u32 s%d, s%d, %d' % (S_T1, S_HO, i * 1024))
        p('buffer_load_dwordx4 v2, s[%d:%d], s%d offen sc1 lds' % (S_WS, S_WS + 3, S_T1))
    p('s_waitcnt vmcnt(0)'); p('s_barrier')
    lg.reset()
    def hread(u):
        p('ds_read_b128 %s, v10 offset:%d' % (vr(HF + 4 * (u % 4), 4), u * 1024)); lg.issue(('h', u))
    for u in range(3): hread(u)
    for u in range(20):
        if u + 3 < 20: hread(u + 3)
        lg.wait(('h', u))
        for mat in range(2):
            for x in range(2):
                a = ACC + 8 * mat + 4 * x
                p('v_mfma_f32_16x16x32_bf16 %s, %s, %s, %s' % (vr(a, 4), wreg(mat, x, u), vr(HF + 4 * (u % 4), 4), '0' if u == 0 else vr(a, 4)))
    for k in range(8): p('v_mul_f32 v%d, v%d, v%d' % (ACC + k, ACC + k, ACC + 8 + k))
    for k in range(4): p('v_cvt_pk_bf16_f32 v%d, v%d, v%d' % (OUT + k, ACC + 2 * k, ACC + 2 * k + 1))
    p('s_mul_i32 s%d, s%d, 98304' % (S_OUT, S_SEG)); p('s_and_b32 s%d, s%d, 1' % (S_T0, S_WAVE)); p('s_mul_i32 s%d, s%d, 49152' % (S_T0, S_T0)); p('s_add_u32 s%d, s%d, s%d' % (S_OUT, S_OUT, S_T0))
    p('s_lshl_b32 s%d, s%d, 1' % (S_T0, S_J)); p('s_lshr_b32 s%d, s%d, 1' % (S_T1, S_WAVE)); p('s_add_u32 s%d, s%d, s%d' % (S_T0, S_T0, S_T1)); p('s_lshl_b32 s%d, s%d, 10' % (S_T0, S_T0))
    p('s_add_u32 s%d, s%d, s%d' % (S_OUT, S_OUT, S_T0)); p('s_add_u32 s%d, s%d, %d' % (S_OUT, S_OUT, OFF_HM))
    p('buffer_store_dwordx4 %s, v2, s[%d:%d], s%d offen sc1' % (vr(OUT, 4), S_WS, S_WS + 3, S_OUT))
    p('s_waitcnt vmcnt(0)'); p('s_barrier')
    p('s_add_u32 s%d, s%d, 1' % (S_T3, S_SEG)); flag_store(p, 8, S_FL, S_T3, 9)
    p('s_add_u32 s%d, s%d, 2' % (S_SEG, S_SEG)); p('s_cmp_lt_u32 s%d, s%d' % (S_SEG, S_NST)); p('s_cbranch_scc1 %s' % loop)

def gen_F2(p, st=False):
    lg = Cnt(p, 'lgkmcnt', 15); vm = Cnt(p, 'vmcnt', 63)
    srd(p, S_W1, KA['wd'], 1536 * 1280); srd(p, S_W2, KA['out'], 2048 * 1280)
    common_lane_setup(p)
    p('s_waitcnt lgkmcnt(0)')
    p('s_cmp_ge_u32 s%d, 10' % S_IDX); p('s_cselect_b32 s%d, 1, 0' % S_SET)
    p('s_mul_i32 s%d, s%d, 10' % (S_T0, S_SET)); p('s_sub_u32 s%d, s%d, s%d' % (S_J, S_IDX, S_T0))
    p('v_min_u32 v0, 23, v1'); p('s_mul_i32 s%d, s%d, 24' % (S_T0, S_SET)); p('v_add_u32 v0, s%d, v0' % S_T0); p('v_lshlrev_b32 v0, %d, v0' % FSH)
    p('s_lshl_b32 s%d, s%d, 14' % (S_T4, S_WAVE))
    voffs = [80]
    stage_offsets(p, voffs, 2, 1280, 1, 83, 84)
    tr_base(p, 85, 32, 4, S_T4, 83, 84)
    p('s_lshl_b32 s%d, s%d, 2' % (S_T5, S_J)); p('s_add_u32 s%d, s%d, s%d' % (S_T5, S_T5, S_WAVE)); p('s_lshl_b32 s%d, s%d, 5' % (S_T5, S_T5))
    p('s_mov_b32 s%d, s%d' % (S_T7 + 1, S_T5))
    jobs = []
    for u in range(48):
        def soff(dst, u=u): p('s_add_u32 s%d, s%d, %d' % (dst, S_T5, u * 32 * 1280))
        jobs.append(dict(srd=S_W1, soff=soff, dests=[(0, ('reg', ar(4 * u, 2), ar(4 * u + 2, 2)))]))
    ready(p)
    p('s_sleep 100')
    load_weights_type1(p, jobs, 85, 1024, 16, voffs, 1, 32, lg, vm, 15, 88, S_T4, zrows=16)
    p('s_barrier')
    p('v_lshrrev_b32 v9, 4, v1'); p('v_lshlrev_b32 v9, 3, v9'); p('v_add_u32 v9, s%d, v9' % S_T5)
    p('v_and_b32 v11, 15, v1'); p('v_mul_u32_u24 v11, 1280, v11'); p('v_add_u32 v11, v11, v9')
    p('s_mov_b32 s%d, %d' % (S_T0, OFF_MOD + 5 * 1280))
    p('buffer_load_dwordx2 v[30:31], v9, s[%d:%d], s%d offen sc1' % (S_WS, S_WS + 3, S_T0))
    p('s_waitcnt vmcnt(0)')
    p('v_lshlrev_b32 v24, 16, v30'); p('v_and_b32 v25, 0xffff0000, v30'); p('v_lshlrev_b32 v26, 16, v31'); p('v_and_b32 v27, 0xffff0000, v31')
    stamp(p, 1, st)
    p('s_mul_i32 s%d, s%d, 24576' % (S_T6, S_WAVE))
    ACC = 16; HF = 32; XR = 64
    p('s_mov_b32 s%d, s%d' % (S_SEG, S_SET))
    loop = p.newlabel('LF2'); p.label(loop)
    p('s_add_u32 s%d, s%d, 1' % (S_T3, S_SEG)); wait_flags_w0(p, 0, F_HM, S_T3, 7, FSLEEP)
    p('s_barrier')
    p('s_mul_i32 s%d, s%d, 98304' % (S_HO, S_SEG)); p('s_add_u32 s%d, s%d, %d' % (S_HO, S_HO, OFF_HM))
    p('s_and_b32 s%d, s%d, 1' % (S_T0, S_WAVE)); p('s_mul_i32 s%d, s%d, 49152' % (S_T0, S_T0)); p('s_lshr_b32 s%d, s%d, 1' % (S_T1, S_WAVE)); p('s_mul_i32 s%d, s%d, 24576' % (S_T1, S_T1))
    p('s_add_u32 s%d, s%d, s%d' % (S_T6, S_T0, S_T1)); p('s_add_u32 s%d, s%d, s%d' % (S_HO, S_HO, S_T6))
    for i in range(24):
        p('s_add_u32 s%d, s%d, %d' % (S_T0, S_T6, i * 1024)); p('s_mov_b32 m0, s%d' % S_T0)
        p('s_add_u32 s%d, s%d, %d' % (S_T1, S_HO, i * 1024))
        p('buffer_load_dwordx4 v2, s[%d:%d], s%d offen sc1 lds' % (S_WS, S_WS + 3, S_T1))
    p('s_mul_i32 s%d, s%d, %d' % (S_OUT, S_SEG, 32 * 1280)); p('s_add_u32 s%d, s%d, %d' % (S_T1, S_OUT, OFF_X1))
    p('buffer_load_dwordx2 %s, v11, s[%d:%d], s%d offen sc1' % (vr(XR, 2), S_WS, S_WS + 3, S_T1))
    p('s_add_u32 s%d, s%d, %d' % (S_T1, S_T1, 16 * 1280))
    p('buffer_load_dwordx2 %s, v11, s[%d:%d], s%d offen sc1' % (vr(XR + 2, 2), S_WS, S_WS + 3, S_T1))
    p('s_waitcnt vmcnt(0)'); p('s_barrier')
    lg.reset()
    def hread(u):
        for tau in range(2):
            p('ds_read_b128 %s, v12 offset:%d' % (vr(HF + 8 * (u % 4) + 4 * tau, 4), u * 1024) if tau == 0 else
              'ds_read_b128 %s, v13 offset:%d' % (vr(HF + 8 * (u % 4) + 4 * tau, 4), u * 1024))
            lg.issue(('h', u))
    p('v_mov_b32 v12, v2'); p('v_add_u32 v13, 49152, v2')
    for u in range(3): hread(u)
    for u in range(48):
        if u + 3 < 48: hread(u + 3)
        lg.wait(('h', u))
        for tau in range(2):
            a = ACC + 4 * tau
            p('v_mfma_f32_16x16x32_bf16 %s, %s, %s, %s' % (vr(a, 4), ar(4 * u, 4), vr(HF + 8 * (u % 4) + 4 * tau, 4), '0' if u == 0 else vr(a, 4)))
    for tau in range(2):
        a = ACC + 4 * tau; x = XR + 2 * tau; t = 68
        p('v_lshlrev_b32 v%d, 16, v%d' % (t, x)); p('v_and_b32 v%d, 0xffff0000, v%d' % (t + 1, x)); p('v_lshlrev_b32 v%d, 16, v%d' % (t + 2, x + 1)); p('v_and_b32 v%d, 0xffff0000, v%d' % (t + 3, x + 1))
        for r in range(4): p('v_fmac_f32 v%d, v%d, v%d' % (t + r, 24 + r, a + r))
        p('v_cvt_pk_bf16_f32 v%d, v%d, v%d' % (x, t, t + 1)); p('v_cvt_pk_bf16_f32 v%d, v%d, v%d' % (x + 1, t + 2, t + 3))
        if tau: p('s_add_u32 s%d, s%d, %d' % (S_OUT, S_OUT, 16 * 1280))
        p('buffer_store_dwordx2 %s, v11, s[%d:%d], s%d offen%s' % (vr(x, 2), S_W2, S_W2 + 3, S_OUT, OUT_FLAG))
    p('s_add_u32 s%d, s%d, 2' % (S_SEG, S_SEG)); p('s_cmp_lt_u32 s%d, s%d' % (S_SEG, S_NST)); p('s_cbranch_scc1 %s' % loop)
```
